```python
import torch

def _softmax(x, axis=-1):
    return torch.softmax(x, dim=axis)
def _gelu(x):
    return torch.nn.functional.gelu(x, approximate="tanh")
def _silu(x):
    return torch.nn.functional.silu(x)
def _sigmoid(x):
    return torch.sigmoid(x)
def _layernorm(x, axis=-1, eps=1e-5):
    m = x.mean(dim=axis, keepdim=True)
    v = x.var(dim=axis, keepdim=True, unbiased=False)
    return (x - m) / torch.sqrt(v + eps)
def _scatter_add(tgt, idx, src, axis=0):
    return tgt.clone().index_add_(axis, idx, src)
def _segment_sum(src, seg, n):
    out = torch.zeros((n,) + src.shape[1:], dtype=src.dtype)
    return out.index_add_(0, seg, src)
def _pad(x, pw):
    flat = tuple(v for pair in reversed(pw) for v in pair)
    return torch.nn.functional.pad(x, flat)

kernel_name = 'concat_heads__linear_attn_block__sliding_block__prompt'

def setup_inputs():

    _w = (lambda a: (lambda t: t.to(torch.bfloat16) if t.is_floating_point() else t)(torch.as_tensor(a)))
    def _A_setup():
        B, S, D = 1, 2048, 640
        return {
            "x": _w((lambda *s: torch.randn(*s, dtype=torch.bfloat16) * 0.05)(B, S, D)),
            "wqkv": _w((lambda *s: torch.randn(*s, dtype=torch.bfloat16) * 1.6)(D, 3 * D)),
            "wo": _w((lambda *s: torch.randn(*s, dtype=torch.bfloat16) * 0.8)(D, D)),
        }
    _A_in = _A_setup()

    def _B_setup():
        B, S, D = 1, 2048, 640
        return {
            "x": _w((lambda *s: torch.randn(*s, dtype=torch.bfloat16) * 0.2)(B, S, D)),
            "wqkv": _w((lambda *s: torch.randn(*s, dtype=torch.bfloat16) * 0.2)(D, 3 * D)),
            "wo": _w((lambda *s: torch.randn(*s, dtype=torch.bfloat16) * 0.05)(D, D)),
        }
    _B_in = _B_setup()

    return {
        "A_x": _A_in["x"],
        "A_wqkv": _A_in["wqkv"],
        "A_wo": _A_in["wo"],
        "B_x": _B_in["x"],
        "B_wqkv": _B_in["wqkv"],
        "B_wo": _B_in["wo"],
    }

def reference(A_x, A_wqkv, A_wo, B_x, B_wqkv, B_wo):
    def _A_ref(x, wqkv, wo):
        B, S, D = x.shape
        H = 32; Dh = D // H
        qkv = (lambda x, *d: x.permute(*d))((x @ wqkv).reshape(B, S, 3, H, Dh), 2, 0, 3, 1, 4)
        q, k, v = qkv[0], qkv[1], qkv[2]
        phi = lambda t: torch.where(t > 0, t + 1, torch.exp(t)) + 1e-6
        pq, pk = phi(q), phi(k)
        kv = torch.einsum("bhsd,bhse->bhde", pk, v)
        z = torch.einsum("bhsd->bhd", pk)
        num = torch.einsum("bhqd,bhde->bhqe", pq, kv)
        den = torch.einsum("bhqd,bhd->bhq", pq, z)[..., None] + 1e-6
        o = num / den
        return (lambda x, *d: x.permute(*d))(o, 0, 2, 1, 3).reshape(B, S, D) @ wo

    def _B_ref(x, wqkv, wo):
        B, S, D = x.shape
        H = 32; Dh = D // H; W = 256
        qkv = (lambda x, *d: x.permute(*d))((x @ wqkv).reshape(B, S, 3, H, Dh), 2, 0, 3, 1, 4)
        q, k, v = qkv[0], qkv[1], qkv[2]
        scores = torch.einsum("bhqd,bhkd->bhqk", q, k) * (Dh ** -0.5)
        idx = torch.arange(S)
        mask = (idx[:, None] - idx[None, :] >= 0) & (idx[:, None] - idx[None, :] < W)
        scores = torch.where(mask[None, None], scores, -1e9)
        p = _softmax(scores, axis=-1)
        o = torch.einsum("bhqk,bhkd->bhqd", p, v)
        return (lambda x, *d: x.permute(*d))(o, 0, 2, 1, 3).reshape(B, S, D) @ wo

    a = _A_ref(A_x, A_wqkv, A_wo)
    b = _B_ref(B_x, B_wqkv, B_wo)
    return torch.concatenate([a, b], axis=-1)
```

```python
class A:
    def __init__(self):
        self.L = []
    def __call__(self, s=""):
        for ln in s.split("\n"):
            self.L.append(ln)
    def c(self, s):
        self.L.append("    ; " + s)
    def label(self, s):
        self.L.append(s + ":")
    def text(self):
        out = []
        for ln in self.L:
            if ln.endswith(":") or ln.startswith(".") or ln.startswith(";") or ln.startswith("    ;") or ln == "":
                out.append(ln)
            else:
                out.append("    " + ln.strip())
        return "\n".join(out) + "\n"

def v(n, cnt=1):
    return "v%d" % n if cnt == 1 else "v[%d:%d]" % (n, n + cnt - 1)
def s(n, cnt=1):
    return "s%d" % n if cnt == 1 else "s[%d:%d]" % (n, n + cnt - 1)
def a(n, cnt=1):
    return "a%d" % n if cnt == 1 else "a[%d:%d]" % (n, n + cnt - 1)

def kernel_header(asm, name):
    asm(".globl %s" % name)
    asm(".p2align 8")
    asm(".type %s,@function" % name)
    asm.label(name)

def kernel_desc(asm, name, vgpr, sgpr, accum=None):
    if accum is None:
        accum = min(256, (vgpr + 3) // 4 * 4)
    asm(".p2align 6")
    asm(".amdhsa_kernel %s" % name)
    asm("  .amdhsa_next_free_vgpr %d" % vgpr)
    asm("  .amdhsa_next_free_sgpr %d" % sgpr)
    asm("  .amdhsa_accum_offset %d" % accum)
    asm("  .amdhsa_group_segment_fixed_size 0")
    asm("  .amdhsa_kernarg_size 72")
    asm("  .amdhsa_user_sgpr_count 2")
    asm("  .amdhsa_user_sgpr_kernarg_segment_ptr 1")
    asm("  .amdhsa_system_sgpr_workgroup_id_x 1")
    asm("  .amdhsa_float_denorm_mode_32 3")
    asm("  .amdhsa_float_denorm_mode_16_64 3")
    asm(".end_amdhsa_kernel")

def srd(asm, d, base_lo, base_hi, nrec):
    asm("s_mov_b32 %s, %s" % (s(d), base_lo))
    asm("s_and_b32 %s, %s, 0xffff" % (s(d + 1), base_hi))
    asm("s_mov_b32 %s, %s" % (s(d + 2), nrec if isinstance(nrec, str) else hex(nrec)))
    asm("s_mov_b32 %s, 0x20000" % s(d + 3))

import struct
def f2u(x):
    return struct.unpack("<I", struct.pack("<f", x))[0]
def fhex(x):
    return "0x%08x" % f2u(x)
```

```python
from asmlib import *
import math
REG = 2621440
LOG2E = 1.4426950408889634
QSCALE = LOG2E / math.sqrt(20.0)

K1_LDS = 3 * 49152

def gen_k1(A_, name="k1_kernel", stamp=False):
    asm = A_
    sST = 64
    nst = [0]
    def st_():
        if stamp:
            asm("s_memtime %s" % s(sST + 4 * nst[0], 2)); asm("s_memrealtime %s" % s(sST + 4 * nst[0] + 2, 2)); nst[0] += 1
    def st_real():
        pass
    sBR, sRB, sCB, sPART, sCBP, sW, sWM, sWN = 28, 29, 30, 31, 32, 33, 34, 35
    sT0, sT1, sT2 = 36, 37, 38
    sXOFF, sWOFF, sM0X, sM0W = 40, 41, 42, 43
    sSTG, sDBUF, sDELTA, sRBUF = 44, 45, 46, 47
    sXN, sWN_REC = 48, 49
    sNEG = 53
    sTN, sGG, sSO = 50, 51, 52
    sC0 = 54
    sC1 = 56
    sTMo = 58
    SX, SWD, SO = 16, 20, 24
    ACC = 0
    FX = [128, 144]
    FW = [160, 168]
    vXA = 176
    vWA = 180
    vDX = 182
    vDW = 190
    vL, vT, vU, vV = 194, 195, 196, 197
    vSO = 198
    TMP = 200
    TE = 216
    NV = 224

    kernel_header(asm, name)
    asm("s_cmp_ge_u32 s2, 240")
    asm("s_cbranch_scc1 %s_end" % name)
    st_real(); st_()
    asm("s_load_dwordx4 s[4:7], s[0:1], 0")
    asm("s_load_dwordx4 s[8:11], s[0:1], 24")
    asm("s_load_dwordx2 s[12:13], s[0:1], 64")
    asm.c("decode workgroup id -> (br, rb, cb)")
    asm("s_and_b32 %s, s2, 7" % s(sT0))
    asm("s_lshr_b32 %s, s2, 3" % s(sT1))
    asm("s_lshr_b32 %s, %s, 2" % (s(sBR), s(sT0)))
    asm("s_and_b32 %s, %s, 3" % (s(sT0), s(sT0)))
    asm("s_mul_i32 %s, %s, 30" % (s(sT0), s(sT0)))
    asm("s_add_u32 %s, %s, %s" % (s(sT0), s(sT0), s(sT1)))
    asm("s_cmp_ge_u32 %s, 60" % s(sT0))
    asm("s_cselect_b32 %s, 4, 0" % s(sT1))
    asm("s_cselect_b32 %s, 60, 0" % s(sT2))
    asm("s_sub_u32 %s, %s, %s" % (s(sT0), s(sT0), s(sT2)))
    asm("s_lshr_b32 %s, %s, 2" % (s(sCB), s(sT0)))
    asm("s_and_b32 %s, %s, 3" % (s(sT0), s(sT0)))
    asm("s_add_u32 %s, %s, %s" % (s(sRB), s(sT1), s(sT0)))
    asm("s_cmp_ge_u32 %s, 5" % s(sCB))
    asm("s_cselect_b32 %s, 1, 0" % s(sPART))
    asm("s_cmp_ge_u32 %s, 10" % s(sCB))
    asm("s_cselect_b32 %s, 2, %s" % (s(sPART), s(sPART)))
    asm("s_mul_i32 %s, %s, 5" % (s(sT0), s(sPART)))
    asm("s_sub_u32 %s, %s, %s" % (s(sCBP), s(sCB), s(sT0)))
    asm.c("wave id, lane")
    asm("v_lshrrev_b32 %s, 6, v0" % v(vT))
    asm("v_and_b32 %s, 63, v0" % v(vL))
    asm("v_readfirstlane_b32 %s, %s" % (s(sW), v(vT)))
    asm("s_nop 3")
    asm("s_lshr_b32 %s, %s, 1" % (s(sWM), s(sW)))
    asm("s_and_b32 %s, %s, 1" % (s(sWN), s(sW)))
    asm("v_lshrrev_b32 %s, 3, %s" % (v(vT), v(vL)))
    asm("s_lshl_b32 %s, %s, 6" % (s(sT0), s(sW)))
    asm("v_add_u32 %s, %s, %s" % (v(vT), s(sT0), v(vT)))
    asm("s_movk_i32 %s, 1280" % s(sT1))
    asm("v_mul_lo_u32 %s, %s, %s" % (v(vT), v(vT), s(sT1)))
    asm("v_lshrrev_b32 %s, 4, %s" % (v(vU), v(vL)))
    asm("v_and_b32 %s, 7, %s" % (v(vV), v(vL)))
    for par in range(2):
        if par == 1:
            asm("v_add_u32 %s, 4, %s" % (v(vU), v(vU)))
        asm("v_xor_b32 %s, %s, %s" % (v(TMP + par), v(vV), v(vU)))
        asm("v_lshl_add_u32 %s, %s, 4, %s" % (v(TMP + par), v(TMP + par), v(vT)))
    for i in range(8):
        asm("v_add_u32 %s, %d, %s" % (v(vDX + i), i * 8 * 1280 - (i & 3) * 1024, v(TMP + (i & 1))))
    asm("v_lshrrev_b32 %s, 4, %s" % (v(vU), v(vL)))
    asm("s_lshl_b32 %s, %s, 4" % (s(sT0), s(sW)))
    asm("v_add_u32 %s, %s, %s" % (v(vT), s(sT0), v(vU)))
    asm("s_movk_i32 %s, 3840" % s(sT1))
    asm("v_mul_lo_u32 %s, %s, %s" % (v(vT), v(vT), s(sT1)))
    asm("v_lshlrev_b32 %s, 2, %s" % (v(vU), v(vU)))
    asm("v_and_b32 %s, 15, %s" % (v(vV), v(vL)))
    asm("v_xor_b32 %s, %s, %s" % (v(vV), v(vV), v(vU)))
    asm("v_lshl_add_u32 %s, %s, 4, %s" % (v(vT), v(vV), v(vT)))
    for i in range(4):
        asm("v_add_u32 %s, %d, %s" % (v(vDW + i), i * 4 * 3840 - i * 1024, v(vT)))
    asm("s_waitcnt lgkmcnt(0)")
    asm("s_cmp_eq_u32 %s, 0" % s(sBR))
    asm("s_cselect_b32 s4, s4, s8")
    asm("s_cselect_b32 s5, s5, s9")
    asm("s_cselect_b32 s6, s6, s10")
    asm("s_cselect_b32 s7, s7, s11")
    asm("s_mul_i32 %s, %s, %d" % (s(sT0), s(sRB), 256 * 1280))
    asm("s_add_u32 s4, s4, %s" % s(sT0))
    asm("s_addc_u32 s5, s5, 0")
    asm("s_lshl_b32 %s, %s, 8" % (s(sT0), s(sCB)))
    asm("s_add_u32 s6, s6, %s" % s(sT0))
    asm("s_addc_u32 s7, s7, 0")
    asm("s_mov_b32 %s, %d" % (s(sXN), 256 * 1280))
    asm("s_sub_u32 %s, %d, %s" % (s(sWN_REC), 640 * 3840, s(sT0)))
    srd(asm, SX, "s4", "s5", s(sXN))
    srd(asm, SWD, "s6", "s7", s(sWN_REC))
    asm("s_mul_i32 %s, %s, 3" % (s(sT0), s(sBR)))
    asm("s_add_u32 %s, %s, %s" % (s(sT0), s(sT0), s(sPART)))
    asm("s_mul_i32 %s, %s, %d" % (s(sT0), s(sT0), REG))
    asm("s_add_u32 s12, s12, %s" % s(sT0))
    asm("s_addc_u32 s13, s13, 0")
    srd(asm, SO, "s12", "s13", REG)

    def dma(idx):
        if idx < 8:
            if idx == 0:
                asm("s_mov_b32 m0, %s" % s(sM0X))
                asm("s_nop 0")
            if idx == 4:
                asm("s_add_u32 m0, %s, 4096" % s(sM0X))
                asm("s_nop 0")
            asm("buffer_load_dwordx4 %s, %s, %s offen offset:%d lds" % (v(vDX + idx), s(SX, 4), s(sXOFF), (idx & 3) * 1024))
        else:
            j = idx - 8
            if j == 0:
                asm("s_mov_b32 m0, %s" % s(sM0W))
                asm("s_nop 0")
            asm("buffer_load_dwordx4 %s, %s, %s offen offset:%d lds" % (v(vDW + j), s(SWD, 4), s(sWOFF), j * 1024))
    def set_dma_stage_regs():
        asm("s_lshl_b32 %s, %s, 13" % (s(sT0), s(sW)))
        asm("s_add_u32 %s, %s, %s" % (s(sM0X), s(sDBUF), s(sT0)))
        asm("s_lshl_b32 %s, %s, 12" % (s(sT0), s(sW)))
        asm("s_add_u32 %s, %s, %s" % (s(sT0), s(sT0), s(sDBUF)))
        asm("s_add_u32 %s, %s, 32768" % (s(sM0W), s(sT0)))
    def advance_dma_stage():
        asm("s_add_u32 %s, %s, 128" % (s(sXOFF), s(sXOFF)))
        asm("s_add_u32 %s, %s, %d" % (s(sWOFF), s(sWOFF), 64 * 3840))
        asm("s_add_u32 %s, %s, 49152" % (s(sDBUF), s(sDBUF)))
        asm("s_cmp_ge_u32 %s, %d" % (s(sDBUF), 3 * 49152))
        asm("s_cselect_b32 %s, 0, %s" % (s(sDBUF), s(sDBUF)))
        set_dma_stage_regs()

    st_()
    asm.c("prologue DMA: stage 0, stage 1, group 0 of stage 2")
    asm("s_mov_b32 %s, 0" % s(sXOFF))
    asm("s_mov_b32 %s, 0" % s(sWOFF))
    asm("s_mov_b32 %s, 0" % s(sDBUF))
    set_dma_stage_regs()
    for i in range(12): dma(i)
    advance_dma_stage()
    for i in range(12): dma(i)
    advance_dma_stage()
    for i in range(3): dma(i)

    asm.c("X frag read addr: (128wm + t)*128 + ((2ks+h) ^ ((t>>1)&7))*16")
    asm("v_and_b32 %s, 31, %s" % (v(vT), v(vL)))
    asm("s_lshl_b32 %s, %s, 7" % (s(sT0), s(sWM)))
    asm("v_add_u32 %s, %s, %s" % (v(vU), s(sT0), v(vT)))
    asm("v_lshlrev_b32 %s, 7, %s" % (v(vU), v(vU)))
    asm("v_bfe_u32 %s, %s, 1, 3" % (v(vT), v(vT)))
    asm("v_lshrrev_b32 %s, 5, %s" % (v(vV), v(vL)))
    for ks in range(4):
        asm("v_add_u32 %s, %d, %s" % (v(TMP), 2 * ks, v(vV)))
        asm("v_xor_b32 %s, %s, %s" % (v(TMP), v(TMP), v(vT)))
        asm("v_lshl_add_u32 %s, %s, 4, %s" % (v(vXA + ks), v(TMP), v(vU)))
    asm.c("W frag read addr")
    asm("v_bfe_u32 %s, %s, 2, 2" % (v(vT), v(vL)))
    asm("v_lshrrev_b32 %s, 5, %s" % (v(vU), v(vL)))
    asm("v_lshl_add_u32 %s, %s, 3, %s" % (v(vU), v(vU), v(vT)))
    asm("v_lshlrev_b32 %s, 8, %s" % (v(vU), v(vU)))
    asm("v_add_u32 %s, 32768, %s" % (v(vU), v(vU)))
    asm("v_and_b32 %s, 1, %s" % (v(vV), v(vL)))
    asm("v_lshl_add_u32 %s, %s, 3, %s" % (v(vU), v(vV), v(vU)))
    asm("v_bfe_u32 %s, %s, 4, 1" % (v(vV), v(vL)))
    asm("v_lshlrev_b32 %s, 1, %s" % (v(vV), v(vV)))
    asm("v_bfe_u32 %s, %s, 1, 1" % (v(TMP), v(vL)))
    asm("v_add_u32 %s, %s, %s" % (v(vV), v(vV), v(TMP)))
    asm("s_lshl_b32 %s, %s, 3" % (s(sT0), s(sWN)))
    asm("v_add_u32 %s, %s, %s" % (v(vV), s(sT0), v(vV)))
    asm("v_lshlrev_b32 %s, 2, %s" % (v(vT), v(vT)))
    for tn in range(2):
        asm("v_add_u32 %s, %d, %s" % (v(TMP), 4 * tn, v(vV)))
        asm("v_xor_b32 %s, %s, %s" % (v(TMP), v(TMP), v(vT)))
        asm("v_lshl_add_u32 %s, %s, 4, %s" % (v(vWA + tn), v(TMP), v(vU)))
    asm.c("zero accumulators")
    for i in range(128):
        asm("v_mov_b32 %s, 0" % v(ACC + i))

    def rdX(st, tm, ks):
        asm("ds_read_b128 %s, %s offset:%d" % (v(FX[st] + 4 * tm, 4), v(vXA + ks), tm * 4096))
    def rdW(st, tn, a_, ks):
        asm("ds_read_b64_tr_b16 %s, %s offset:%d" % (v(FW[st] + 4 * tn + 2 * a_, 2), v(vWA + tn), ks * 4096 + a_ * 1024))
    def reads(st, ks):
        return [lambda: rdW(st, 0, 0, ks), lambda: rdW(st, 0, 1, ks), lambda: rdX(st, 0, ks), lambda: rdX(st, 1, ks),
                lambda: rdW(st, 1, 0, ks), lambda: rdW(st, 1, 1, ks), lambda: rdX(st, 2, ks), lambda: rdX(st, 3, ks)]
    MORD = [(0, 0), (1, 0), (0, 1), (1, 1), (2, 0), (2, 1), (3, 0), (3, 1)]
    def mfma(orient, st, tm, tn):
        acc = v(ACC + (tm * 2 + tn) * 16, 16)
        x = v(FX[st] + 4 * tm, 4); w = v(FW[st] + 4 * tn, 4)
        if orient == "T":
            asm("v_mfma_f32_32x32x16_bf16 %s, %s, %s, %s" % (acc, w, x, acc))
        else:
            asm("v_mfma_f32_32x32x16_bf16 %s, %s, %s, %s" % (acc, x, w, acc))

    asm("s_waitcnt vmcnt(15)")
    asm("s_barrier")
    st_()
    for f in reads(0, 0): f()
    asm("s_mov_b32 %s, 0" % s(sSTG))
    asm("s_mov_b32 %s, 0" % s(sRBUF))
    asm("s_mov_b32 %s, 0x%x" % (s(sNEG), (-2 * 49152) & 0xffffffff))
    asm("s_cmp_eq_u32 %s, 0" % s(sPART))
    asm("s_cbranch_scc1 %s_loopT" % name)
    asm("s_add_u32 %s, %s, %s" % (s(sT0), s(sBR), s(sBR)))
    asm("s_add_u32 %s, %s, %s" % (s(sT0), s(sT0), s(sPART)))
    asm("s_cmp_eq_u32 %s, 3" % s(sT0))
    asm("s_cbranch_scc0 %s_loopF" % name)

    def loop(orient):
        lab = "%s_loop%s" % (name, orient)
        asm(".p2align 4")
        asm.label(lab)
        for ks in range(4):
            st = ks & 1
            nst = st ^ 1
            asm("s_waitcnt lgkmcnt(0)")
            if ks < 3:
                rs = reads(nst, ks + 1)
                for m in range(8):
                    mfma(orient, st, *MORD[m])
                    if m < 4:
                        rs[2 * m](); rs[2 * m + 1]()
                    elif m < 7:
                        dma(3 + 3 * ks + (m - 4))
                    if m == 7:
                        pass
                if ks == 2:
                    pass
            else:
                mfma(orient, st, *MORD[0])
                asm("s_add_u32 %s, %s, 1" % (s(sRBUF), s(sRBUF)))
                asm("s_cmp_eq_u32 %s, 3" % s(sRBUF))
                asm("s_cselect_b32 %s, 0, %s" % (s(sRBUF), s(sRBUF)))
                asm("s_cselect_b32 %s, %s, 49152" % (s(sDELTA), s(sNEG)))
                mfma(orient, st, *MORD[1])
                for k in range(4):
                    asm("v_add_u32 %s, %s, %s" % (v(vXA + k), s(sDELTA), v(vXA + k)))
                for k in range(2):
                    asm("v_add_u32 %s, %s, %s" % (v(vWA + k), s(sDELTA), v(vWA + k)))
                asm("s_waitcnt vmcnt(12)")
                asm("s_barrier")
                rs = reads(nst, 0)
                mfma(orient, st, *MORD[2])
                rs[0](); rs[1](); rs[2]()
                mfma(orient, st, *MORD[3])
                rs[3](); rs[4](); rs[5]()
                mfma(orient, st, *MORD[4])
                rs[6](); rs[7]()
                advance_dma_stage()
                asm("s_add_u32 %s, %s, 1" % (s(sSTG), s(sSTG)))
                asm("s_cmp_lt_u32 %s, 8" % s(sSTG))
                asm("s_cselect_b32 %s, %s, 0" % (s(SX + 2), s(sXN)))
                asm("s_cselect_b32 %s, %s, 0" % (s(SWD + 2), s(sWN_REC)))
                mfma(orient, st, *MORD[5])
                dma(0)
                mfma(orient, st, *MORD[6])
                dma(1)
                mfma(orient, st, *MORD[7])
                dma(2)
        asm("s_cmp_lt_u32 %s, 10" % s(sSTG))
        asm("s_cbranch_scc1 %s" % lab)
        asm("s_branch %s_epi%s" % (name, orient))

    loop("T")
    loop("F")

    asm.label("%s_epiT" % name)
    asm("s_lshl_b32 %s, %s, 3" % (s(sT0), s(sRB)))
    asm("s_lshl_b32 %s, %s, 2" % (s(sT1), s(sWM)))
    asm("s_add_u32 %s, %s, %s" % (s(sT0), s(sT0), s(sT1)))
    asm("s_mul_i32 %s, %s, 40" % (s(sT0), s(sT0)))
    asm("s_lshl_b32 %s, %s, 3" % (s(sT1), s(sCBP)))
    asm("s_add_u32 %s, %s, %s" % (s(sT0), s(sT0), s(sT1)))
    asm("s_lshl_b32 %s, %s, 2" % (s(sT1), s(sWN)))
    asm("s_add_u32 %s, %s, %s" % (s(sT0), s(sT0), s(sT1)))
    asm("s_lshl_b32 %s, %s, 10" % (s(sT0), s(sT0)))
    asm("v_lshlrev_b32 %s, 4, %s" % (v(vSO), v(vL)))
    asm("v_add_u32 %s, %s, %s" % (v(vSO), s(sT0), v(vSO)))
    asm("s_movk_i32 %s, 2048" % s(sTN))
    asm("s_movk_i32 %s, 1024" % s(sGG))
    asm("s_branch %s_epi" % name)
    asm.label("%s_epiF" % name)
    asm("s_lshl_b32 %s, %s, 3" % (s(sT0), s(sRB)))
    asm("s_lshl_b32 %s, %s, 2" % (s(sT1), s(sWM)))
    asm("s_add_u32 %s, %s, %s" % (s(sT0), s(sT0), s(sT1)))
    asm("s_mul_i32 %s, %s, 40960" % (s(sT0), s(sT0)))
    asm("s_lshl_b32 %s, %s, 11" % (s(sT1), s(sCBP)))
    asm("s_add_u32 %s, %s, %s" % (s(sT0), s(sT0), s(sT1)))
    asm("s_lshl_b32 %s, %s, 10" % (s(sT1), s(sWN)))
    asm("s_add_u32 %s, %s, %s" % (s(sT0), s(sT0), s(sT1)))
    asm("v_lshrrev_b32 %s, 5, %s" % (v(vT), v(vL)))
    asm("v_mul_u32_u24 %s, 10240, %s" % (v(vT), v(vT)))
    asm("v_and_b32 %s, 31, %s" % (v(vU), v(vL)))
    asm("v_lshl_add_u32 %s, %s, 4, %s" % (v(vSO), v(vU), v(vT)))
    asm("v_add_u32 %s, %s, %s" % (v(vSO), s(sT0), v(vSO)))
    asm("s_movk_i32 %s, 512" % s(sTN))
    asm("s_movk_i32 %s, 20480" % s(sGG))
    asm.label("%s_epi" % name)
    st_()
    asm("s_lshl_b32 %s, %s, 2" % (s(sT0), s(sBR)))
    asm("s_add_u32 %s, %s, %s" % (s(sT0), s(sT0), s(sPART)))
    asm("s_cmp_lt_u32 %s, 2" % s(sT0))
    asm("s_cbranch_scc1 %s_phi" % name)
    asm("s_cmp_eq_u32 %s, 4" % s(sT0))
    asm("s_cselect_b32 %s, %s, 1.0" % (s(sC0), fhex(QSCALE)))
    asm("s_mov_b32 %s, %s" % (s(sC0 + 1), s(sC0)))

    def store_tile(tm, tn, tset):
        for gg in range(2):
            if gg == 0:
                asm("s_mul_i32 %s, %s, %d" % (s(sSO), s(sTN), tn))
                if tm: asm("s_add_u32 %s, %s, %d" % (s(sSO), s(sSO), tm * 40960))
            else:
                asm("s_add_u32 %s, %s, %s" % (s(sSO), s(sSO), s(sGG)))
            asm("buffer_store_dwordx4 %s, %s, %s, %s offen" % (v(TMP + 8 * tset + 4 * gg, 4), v(vSO), s(SO, 4), s(sSO)))

    asm("s_nop 7")
    cnt = 0
    for tm in range(4):
        for tn in range(2):
            b = ACC + (tm * 2 + tn) * 16
            ts = cnt & 1; cnt += 1
            for p in range(8):
                asm("v_pk_mul_f32 %s, %s, %s" % (v(b + 2 * p, 2), v(b + 2 * p, 2), s(sC0, 2)))
            for p in range(8):
                asm("v_cvt_pk_bf16_f32 %s, %s, %s" % (v(TMP + 8 * ts + p), v(b + 2 * p), v(b + 2 * p + 1)))
            store_tile(tm, tn, ts)
    asm("s_branch %s_fin" % name)

    asm.label("%s_phi" % name)
    asm("s_mov_b32 %s, %s" % (s(sC0), fhex(LOG2E)))
    asm("s_mov_b32 %s, %s" % (s(sC0 + 1), fhex(LOG2E)))
    asm("s_mov_b32 %s, %s" % (s(sC1), fhex(1e-6)))
    asm("s_nop 7")
    cnt = 0
    for tm in range(4):
        for tn in range(2):
            b = ACC + (tm * 2 + tn) * 16
            ts = cnt & 1; cnt += 1
            for q in range(4):
                r0 = b + 4 * q
                asm("v_pk_mul_f32 %s, %s, %s" % (v(TE, 2), v(r0, 2), s(sC0, 2)))
                asm("v_pk_mul_f32 %s, %s, %s" % (v(TE + 2, 2), v(r0 + 2, 2), s(sC0, 2)))
                for k in range(4):
                    asm("v_exp_f32_e64 %s, %s clamp" % (v(TE + k), v(TE + k)))
                for k in range(4):
                    asm("v_max_f32 %s, %s, %s" % (v(r0 + k), s(sC1), v(r0 + k)))
                asm("v_pk_add_f32 %s, %s, %s" % (v(r0, 2), v(r0, 2), v(TE, 2)))
                asm("v_pk_add_f32 %s, %s, %s" % (v(r0 + 2, 2), v(r0 + 2, 2), v(TE + 2, 2)))
                asm("v_cvt_pk_bf16_f32 %s, %s, %s" % (v(TMP + 8 * ts + 2 * q), v(r0), v(r0 + 1)))
                asm("v_cvt_pk_bf16_f32 %s, %s, %s" % (v(TMP + 8 * ts + 2 * q + 1), v(r0 + 2), v(r0 + 3)))
            store_tile(tm, tn, ts)
    asm.label("%s_fin" % name)
    if stamp:
        st_()
        asm("s_waitcnt vmcnt(0)")
        st_(); st_real()
        asm("s_waitcnt lgkmcnt(0)")
        asm("s_load_dwordx2 s[12:13], s[0:1], 64")
        asm("s_waitcnt lgkmcnt(0)")
        asm("s_add_u32 s12, s12, %d" % (9 * REG))
        asm("s_addc_u32 s13, s13, 0")
        srd(asm, SO, "s12", "s13", 1 << 20)
        asm("s_lshl_b32 %s, s2, 2" % s(sT0))
        asm("s_add_u32 %s, %s, %s" % (s(sT0), s(sT0), s(sW)))
        asm("s_lshl_b32 %s, %s, 7" % (s(sT0), s(sT0)))
        asm("v_mov_b32 %s, %s" % (v(vT), s(sT0)))
        for i in range(2 * nst[0]):
            asm("v_mov_b32 %s, %s" % (v(TMP), s(sST + 2 * i)))
            asm("v_mov_b32 %s, %s" % (v(TMP + 1), s(sST + 2 * i + 1)))
            asm("buffer_store_dwordx2 %s, %s, %s, 0 offen offset:%d" % (v(TMP, 2), v(vT), s(SO, 4), 8 * i))
            asm("s_nop 1")
    asm.label("%s_end" % name)
    asm("s_endpgm")
    return dict(name=name, vgpr=NV, sgpr=100, grid=240, block=256, lds=K1_LDS)
```

```python
from asmlib import *
REG = 2621440
R_QA, R_KA, R_VA, R_QB, R_KB, R_VB, R_OA, R_OB, R_KVP = [i * REG for i in range(9)]
WS_REC = 9 * REG
K2_LDS = 65536 + 2048
BIG = -1.0e30
OOB = 0x40000000

class Stamper:
    def __init__(self, asm, on, base=64):
        self.asm, self.on, self.base, self.n = asm, on, base, 0
    def __call__(self):
        if self.on:
            self.asm("s_memtime %s" % s(self.base + 4 * self.n, 2)); self.asm("s_memrealtime %s" % s(self.base + 4 * self.n + 2, 2)); self.n += 1
    def finish(self, region_off, sWGW, vT, vD, SO, tmp_lo):
        if not self.on: return
        asm = self.asm
        asm("s_waitcnt vmcnt(0)")
        self()
        asm("s_waitcnt lgkmcnt(0)")
        asm("s_load_dwordx2 %s, s[0:1], 64" % s(tmp_lo, 2))
        asm("s_waitcnt lgkmcnt(0)")
        asm("s_add_u32 %s, %s, %d" % (s(tmp_lo), s(tmp_lo), region_off))
        asm("s_addc_u32 %s, %s, 0" % (s(tmp_lo + 1), s(tmp_lo + 1)))
        srd(asm, SO, s(tmp_lo), s(tmp_lo + 1), 1 << 20)
        asm("s_lshl_b32 %s, %s, 7" % (s(sWGW), s(sWGW)))
        asm("v_mov_b32 %s, %s" % (v(vT), s(sWGW)))
        for i in range(2 * self.n):
            asm("v_mov_b32 %s, %s" % (v(vD), s(self.base + 2 * i)))
            asm("v_mov_b32 %s, %s" % (v(vD + 1), s(self.base + 2 * i + 1)))
            asm("buffer_store_dwordx2 %s, %s, %s, 0 offen offset:%d" % (v(vD, 2), v(vT), s(SO, 4), 8 * i))
            asm("s_nop 1")

def gen_k2(asm, name="k2_kernel", stamp=False):
    st = Stamper(asm, stamp)
    SWS, SDBG = 8, 12
    sHH, sRB, sW, sG0, sDQ, sTB, sNT = 16, 17, 18, 19, 20, 21, 22
    sT0, sT1, sT2, sT3 = 23, 24, 25, 26
    sMSK = 28
    sNMSK = 30
    sP = 32
    sQM = 40
    sPOLL = 48
    sOffO, sOffKVP = 49, 50
    sBIG = 51
    sEPS = 52
    sCNT = 53
    S = 0; O = 144; Q = 160; F = [168, 176]; CM8 = 184; CM0 = 200
    vM, vNM = 216, 218
    vT = 220
    vLin, vKa, vVa, vL = 228, 229, 230, 231
    vOm, vOr, vFo, vU = 232, 233, 234, 235
    PB = 236
    NV = 244

    kernel_header(asm, name)
    asm("s_cmp_ge_u32 s2, 256")
    asm("s_cbranch_scc1 %s_end" % name)
    st()
    asm("s_load_dwordx4 s[4:7], s[0:1], 56")
    asm("s_and_b32 %s, s2, 7" % s(sT0))
    asm("s_lshr_b32 %s, s2, 3" % s(sT1))
    asm("s_lshl_b32 %s, %s, 2" % (s(sT0), s(sT0)))
    asm("s_and_b32 %s, %s, 3" % (s(sHH), s(sT1)))
    asm("s_add_u32 %s, %s, %s" % (s(sHH), s(sHH), s(sT0)))
    asm("s_lshr_b32 %s, %s, 2" % (s(sRB), s(sT1)))
    asm("s_mul_i32 %s, %s, 5" % (s(sT0), s(sHH)))
    asm("s_lshr_b32 %s, %s, 2" % (s(sG0), s(sT0)))
    asm("s_and_b32 %s, %s, 3" % (s(sDQ), s(sT0)))
    asm("v_lshrrev_b32 %s, 6, v0" % v(vT))
    asm("v_and_b32 %s, 63, v0" % v(vL))
    asm("v_readfirstlane_b32 %s, %s" % (s(sW), v(vT)))
    asm("v_lshlrev_b32 %s, 4, %s" % (v(vLin), v(vL)))
    asm("v_lshrrev_b32 %s, 5, %s" % (v(vT), v(vL)))
    asm("v_mul_u32_u24 %s, 10240, %s" % (v(vT), v(vT)))
    asm("v_and_b32 %s, 31, %s" % (v(vU), v(vL)))
    asm("v_lshl_add_u32 %s, %s, 4, %s" % (v(vFo), v(vU), v(vT)))
    asm("s_lshl_b32 %s, %s, 3" % (s(sTB), s(sRB)))
    asm("s_add_u32 %s, %s, %s" % (s(sTB), s(sTB), s(sW)))
    asm("s_add_u32 %s, %s, 1" % (s(sNT), s(sTB)))
    asm("s_min_u32 %s, %s, 9" % (s(sNT), s(sNT)))
    asm("s_mov_b32 %s, 0x000fffff" % s(sMSK)); asm("s_mov_b32 %s, 0x000fffff" % s(sMSK + 1))
    asm("s_mov_b32 %s, 0xfff00000" % s(sNMSK)); asm("s_mov_b32 %s, 0xfff00000" % s(sNMSK + 1))
    asm("s_waitcnt lgkmcnt(0)")
    srd(asm, SWS, "s6", "s7", WS_REC)
    srd(asm, SDBG, "s4", "s5", 256)
    st()
    asm("s_cmp_eq_u32 %s, 0" % s(sRB))
    asm("s_cselect_b32 %s, 4, 0" % s(sT0))
    asm("s_cmp_lt_u32 %s, %s" % (s(sW), s(sT0)))
    asm("s_cbranch_scc1 %s_nodma" % name)
    for ii in range(2):
        asm("s_lshl_b32 %s, %s, 3" % (s(sT0), s(sRB)))
        asm("s_lshl_b32 %s, %s, 1" % (s(sT1), s(sW)))
        asm("s_add_u32 %s, %s, %s" % (s(sT0), s(sT0), s(sT1)))
        asm("s_add_u32 %s, %s, %d" % (s(sT0), s(sT0), ii))
        asm("s_sub_u32 %s, %s, 8" % (s(sT0), s(sT0)))
        asm("s_mul_i32 %s, %s, 40" % (s(sT2), s(sT0)))
        asm("s_add_u32 %s, %s, %s" % (s(sT2), s(sT2), s(sG0)))
        asm("s_lshl_b32 %s, %s, 10" % (s(sT2), s(sT2)))
        asm("s_add_u32 %s, %s, %d" % (s(sT2), s(sT2), R_KB))
        asm("s_lshl_b32 %s, %s, 12" % (s(sT3), s(sW)))
        asm("s_add_u32 m0, %s, %d" % (s(sT3), ii * 2048))
        asm("s_nop 0")
        asm("buffer_load_dwordx4 %s, %s, %s offen lds" % (v(vLin), s(SWS, 4), s(sT2)))
        asm("buffer_load_dwordx4 %s, %s, %s offen offset:1024 lds" % (v(vLin), s(SWS, 4), s(sT2)))
        asm("s_mul_i32 %s, %s, 40960" % (s(sT2), s(sT0)))
        asm("s_mul_i32 %s, %s, 320" % (s(sT1), s(sHH)))
        asm("s_add_u32 %s, %s, %s" % (s(sT2), s(sT2), s(sT1)))
        asm("s_add_u32 %s, %s, %d" % (s(sT2), s(sT2), R_VB))
        asm("s_add_u32 %s, %s, %d" % (s(sT1), s(sT2), 20480 - 1024))
        asm("s_add_u32 m0, %s, %d" % (s(sT3), 32768 + ii * 2048))
        asm("s_mov_b64 exec, %s" % s(sMSK, 2))
        asm("buffer_load_dwordx4 %s, %s, %s offen lds" % (v(vFo), s(SWS, 4), s(sT2)))
        asm("buffer_load_dwordx4 %s, %s, %s offen offset:1024 lds" % (v(vFo), s(SWS, 4), s(sT1)))
        asm("s_mov_b64 exec, -1")
    asm.label("%s_nodma" % name)
    asm("s_mul_i32 %s, %s, 40" % (s(sT2), s(sTB)))
    asm("s_add_u32 %s, %s, %s" % (s(sT2), s(sT2), s(sG0)))
    asm("s_lshl_b32 %s, %s, 10" % (s(sT2), s(sT2)))
    asm("s_add_u32 %s, %s, %d" % (s(sT3), s(sT2), R_QB))
    asm("buffer_load_dwordx4 %s, %s, %s, %s offen" % (v(Q, 4), v(vLin), s(SWS, 4), s(sT3)))
    asm("buffer_load_dwordx4 %s, %s, %s, %s offen offset:1024" % (v(Q + 4, 4), v(vLin), s(SWS, 4), s(sT3)))
    asm("s_add_u32 %s, %s, %d" % (s(sPOLL), s(sT2), R_QA))
    sOffQA = 54
    asm("s_mov_b32 %s, %s" % (s(sOffQA), s(sPOLL)))
    asm("v_mov_b32 %s, 0x3f803f80" % v(vT))
    for k in range(1, 4): asm("v_mov_b32 %s, %s" % (v(vT + k), v(vT)))
    asm("s_lshl_b32 %s, %s, 12" % (s(sT3), s(sW)))
    asm("s_add_u32 %s, %s, 32768" % (s(sT3), s(sT3)))
    asm("v_add_u32 %s, %s, %s" % (v(vU), s(sT3), v(vLin)))
    asm("s_mov_b64 exec, %s" % s(sNMSK, 2))
    for k in range(4):
        asm("ds_write_b128 %s, %s offset:%d" % (v(vU), v(vT, 4), k * 1024))
    asm("s_mov_b64 exec, -1")
    asm("s_cmp_lg_u32 %s, 0" % s(sW))
    asm("s_cbranch_scc1 %s_noA1" % name)
    for r in range(64, 128):
        asm("v_mov_b32 %s, %s" % (v(r), v(vT)))
    asm("s_lshl_b32 %s, %s, 3" % (s(sT0), s(sRB)))
    asm("s_mul_i32 %s, %s, 40960" % (s(sT0), s(sT0)))
    asm("s_mul_i32 %s, %s, 320" % (s(sT1), s(sHH)))
    asm("s_add_u32 %s, %s, %s" % (s(sT0), s(sT0), s(sT1)))
    asm("s_add_u32 %s, %s, %d" % (s(sT1), s(sT0), R_KA))
    asm("s_add_u32 %s, %s, %d" % (s(sT2), s(sT0), R_VA))
    asm("s_mov_b64 exec, %s" % s(sMSK, 2))
    for b in range(8):
        for m in range(2):
            asm("buffer_load_dwordx4 %s, %s, %s, %s offen" % (v((b * 2 + m) * 4, 4), v(vFo), s(SWS, 4), s(sT1)))
            asm("buffer_load_dwordx4 %s, %s, %s, %s offen" % (v(64 + (b * 2 + m) * 4, 4), v(vFo), s(SWS, 4), s(sT2)))
            asm("s_add_u32 %s, %s, 20480" % (s(sT1), s(sT1)))
            asm("s_add_u32 %s, %s, 20480" % (s(sT2), s(sT2)))
    asm("s_mov_b64 exec, -1")
    asm.label("%s_noA1" % name)
    asm("s_mov_b32 %s, %s" % (s(sBIG), fhex(BIG)))
    asm("v_and_b32 %s, 31, %s" % (v(vU), v(vL)))
    asm("v_lshrrev_b32 %s, 5, %s" % (v(vT + 4), v(vL)))
    asm("v_lshlrev_b32 %s, 2, %s" % (v(vT + 4), v(vT + 4)))
    asm("v_sub_u32 %s, %s, %s" % (v(vU), v(vU), v(vT + 4)))
    asm("v_mov_b32 %s, %s" % (v(vT + 5), s(sBIG)))
    asm("v_mov_b32 %s, 0" % v(vT + 6))
    for r0 in range(0, 16, 4):
        for k in range(4):
            r = r0 + k
            asm("v_cmp_le_i32 %s, %d, %s" % (s(sP + 2 * k, 2), 8 * (r >> 2) + (r & 3), v(vU)))
        asm("s_nop 1")
        for k in range(4):
            r = r0 + k
            asm("v_cndmask_b32 %s, %s, %s, %s" % (v(CM8 + r), v(vT + 5), v(vT + 6), s(sP + 2 * k, 2)))
            asm("v_cndmask_b32 %s, %s, %s, %s" % (v(CM0 + r), v(vT + 6), v(vT + 5), s(sP + 2 * k, 2)))
    for gg in range(2):
        for p in range(2):
            k = gg * 2 + p
            for h in range(2):
                asm("s_sub_u32 %s, %d, %s" % (s(sT0), 4 * gg + 2 * p + h, s(sDQ)))
                asm("s_cmp_le_u32 %s, 4" % s(sT0))
                asm("s_cselect_b32 %s, -1, 0" % s(sQM + 2 * k + h))
    asm("s_lshl_b32 %s, %s, 11" % (s(sT0), s(sW)))
    asm("v_add_u32 %s, %s, %s" % (v(vKa), s(sT0), v(vLin)))
    asm("v_add_u32 %s, 32768, %s" % (v(vVa), v(vKa)))
    asm("s_lshl_b32 %s, %s, 5" % (s(sT0), s(sTB)))
    asm("s_add_u32 %s, %s, %s" % (s(sT0), s(sT0), s(sHH)))
    asm("s_mul_i32 %s, %s, 1280" % (s(sOffO), s(sT0)))
    asm("v_mov_b32 %s, %s" % (v(vOm), v(vLin)))
    asm("v_lshlrev_b32 %s, 3, %s" % (v(vOr), v(vL)))
    asm("v_add_u32 %s, 1024, %s" % (v(vOr), v(vOr)))
    asm("v_mov_b32 %s, 0x%x" % (v(vT + 4), OOB))
    asm("v_cmp_gt_u32 vcc, 32, %s" % v(vL))
    asm("s_nop 1")
    asm("v_cndmask_b32 %s, %s, %s, vcc" % (v(vOr), v(vT + 4), v(vOr)))
    asm("s_cmp_lg_u32 %s, 0" % s(sW))
    asm("s_cbranch_scc1 %s_w1" % name)
    asm("s_waitcnt vmcnt(32) lgkmcnt(0)")
    asm("s_branch %s_w2" % name)
    asm.label("%s_w1" % name)
    asm("s_waitcnt vmcnt(0) lgkmcnt(0)")
    asm.label("%s_w2" % name)
    asm("s_barrier")
    st()
    def rdK(d, dst):
        for gg in range(2):
            asm("ds_read_b128 %s, %s offset:%d" % (v(dst + 4 * gg, 4), v(vKa), (8 - d) * 2048 + gg * 1024))
    def rdV(d, dst):
        for m in range(2):
            asm("ds_read_b128 %s, %s offset:%d" % (v(dst + 4 * m, 4), v(vVa), (8 - d) * 2048 + m * 1024))
    rdK(0, F[0])
    for gg in range(2):
        for p in range(2):
            k = gg * 2 + p
            for j in range(2):
                r = Q + 4 * gg + 2 * p + j
                asm("v_cndmask_b32 %s, 0, %s, %s" % (v(r), v(r), s(sQM + 2 * k, 2)))
    asm("s_cmp_lg_u32 %s, 0" % s(sW))
    asm("s_cbranch_scc1 %s_noA2" % name)
    asm("s_waitcnt vmcnt(0)")
    for b in range(16):
        c = "0" if b == 0 else v(O, 16)
        asm("v_mfma_f32_32x32x16_bf16 %s, %s, %s, %s" % (v(O, 16), v(b * 4, 4), v(64 + b * 4, 4), c))
    asm("s_lshl_b32 %s, %s, 3" % (s(sT0), s(sHH)))
    asm("s_add_u32 %s, %s, %s" % (s(sT0), s(sT0), s(sRB)))
    asm("s_mul_i32 %s, %s, 3072" % (s(sT0), s(sT0)))
    asm("s_add_u32 %s, %s, %d" % (s(sT0), s(sT0), R_KVP))
    asm("s_nop 7"); asm("s_nop 1")
    for j in range(3):
        asm("buffer_store_dwordx4 %s, %s, %s, %s offen offset:%d sc1" % (v(O + 4 * j, 4), v(vLin), s(SWS, 4), s(sT0), j * 1024))
    asm.label("%s_noA2" % name)
    def maxes(d):
        b = S + 16 * d
        if d == 0:
            asm("v_max3_f32 %s, %s, %s, %s" % (v(vM), v(b), v(b + 1), v(b + 2)))
            for k in range(3, 15, 2):
                asm("v_max3_f32 %s, %s, %s, %s" % (v(vM), v(vM), v(b + k), v(b + k + 1)))
            asm("v_max_f32 %s, %s, %s" % (v(vM), v(vM), v(b + 15)))
        else:
            for k in range(0, 16, 2):
                asm("v_max3_f32 %s, %s, %s, %s" % (v(vM), v(vM), v(b + k), v(b + k + 1)))
    for d in range(9):
        cur, nxt = F[d & 1], F[(d + 1) & 1]
        asm("s_waitcnt lgkmcnt(0)")
        if d < 8: rdK(d + 1, nxt)
        if d > 0:
            asm("s_cmp_le_u32 %s, %d" % (s(sNT), d))
            asm("s_cbranch_scc1 %s_p1skip%d" % (name, d))
        else:
            asm("s_nop 1")
        c = v(CM8, 16) if d == 0 else (v(CM0, 16) if d == 8 else "0")
        b = v(S + 16 * d, 16)
        asm("v_mfma_f32_32x32x16_bf16 %s, %s, %s, %s" % (b, v(cur, 4), v(Q, 4), c))
        asm("v_mfma_f32_32x32x16_bf16 %s, %s, %s, %s" % (b, v(cur + 4, 4), v(Q + 4, 4), b))
        if d > 0:
            asm.label("%s_p1skip%d" % (name, d))
            if d == 1: asm("s_nop 7")
            maxes(d - 1)
            asm("s_cbranch_scc1 %s_p1end" % name)
    asm("s_nop 3")
    maxes(8)
    asm.label("%s_p1end" % name)
    st()
    asm("s_waitcnt lgkmcnt(0)")
    rdV(0, F[0])
    asm("s_cmp_lg_u32 %s, 0" % s(sW))
    asm("s_cbranch_scc1 %s_nosig" % name)
    asm("s_waitcnt vmcnt(0)")
    asm("v_mov_b32 %s, 1" % v(vT))
    asm("s_lshl_b32 %s, %s, 2" % (s(sT0), s(sHH)))
    asm("v_mov_b32 %s, %s" % (v(vT + 1), s(sT0)))
    asm("s_mov_b64 exec, 1")
    asm("buffer_atomic_add %s, %s, %s, 0 offen" % (v(vT), v(vT + 1), s(SDBG, 4)))
    asm("s_mov_b64 exec, -1")
    asm.label("%s_nosig" % name)
    asm("buffer_load_dwordx4 %s, %s, %s, %s offen" % (v(Q, 4), v(vLin), s(SWS, 4), s(sOffQA)))
    asm("buffer_load_dwordx4 %s, %s, %s, %s offen offset:1024" % (v(Q + 4, 4), v(vLin), s(SWS, 4), s(sOffQA)))
    asm("v_mov_b32 %s, %s" % (v(vT + 2), v(vM)))
    asm("v_mov_b32 %s, %s" % (v(vT + 3), v(vM)))
    asm("s_nop 1")
    asm("v_permlane32_swap_b32 %s, %s" % (v(vT + 2), v(vT + 3)))
    asm("s_nop 1")
    asm("v_max_f32 %s, %s, %s" % (v(vM), v(vT + 2), v(vT + 3)))
    asm("v_sub_f32 %s, 0, %s" % (v(vNM), v(vM)))
    asm("v_sub_f32 %s, 0, %s" % (v(vNM + 1), v(vM)))
    for d in range(9):
        cur, nxt = F[d & 1], F[(d + 1) & 1]
        b = S + 16 * d
        if d > 0:
            asm("s_cmp_le_u32 %s, %d" % (s(sNT), d))
            asm("s_cbranch_scc1 %s_p2end" % name)
        for k in range(8):
            asm("v_pk_add_f32 %s, %s, %s" % (v(b + 2 * k, 2), v(b + 2 * k, 2), v(vNM, 2)))
        for k in range(16):
            asm("v_exp_f32 %s, %s" % (v(b + k), v(b + k)))
        asm("s_waitcnt lgkmcnt(0)")
        if d < 8: rdV(d + 1, nxt)
        for k in range(8):
            asm("v_cvt_pk_bf16_f32 %s, %s, %s" % (v(b + k), v(b + 2 * k), v(b + 2 * k + 1)))
        asm("s_nop 1")
        asm("v_mfma_f32_32x32x16_bf16 %s, %s, %s, %s" % (v(O, 16), v(cur, 4), v(b, 4), "0" if d == 0 else v(O, 16)))
        asm("v_mfma_f32_32x32x16_bf16 %s, %s, %s, %s" % (v(O, 16), v(cur + 4, 4), v(b + 4, 4), v(O, 16)))
    asm.label("%s_p2end" % name)
    st()
    def normalize(dst, eps):
        asm("v_mov_b32 %s, %s" % (v(vT), v(O + 8)))
        asm("v_mov_b32 %s, %s" % (v(vT + 1), v(O + 8)))
        asm("s_nop 1")
        asm("v_permlane32_swap_b32 %s, %s" % (v(vT), v(vT + 1)))
        asm("s_nop 1")
        if eps: asm("v_add_f32 %s, %s, %s" % (v(vT + 1), s(sEPS), v(vT + 1)))
        asm("v_rcp_f32 %s, %s" % (v(vT + 1), v(vT + 1)))
        asm("s_nop 0")
        for k in range(12):
            asm("v_mul_f32 %s, %s, %s" % (v(O + k), v(vT + 1), v(O + k)))
        for k in range(6):
            asm("v_cvt_pk_bf16_f32 %s, %s, %s" % (v(dst + k), v(O + 2 * k), v(O + 2 * k + 1)))
    def store_o(src, region):
        asm("s_add_u32 %s, %s, %d" % (s(sT0), s(sOffO), region))
        asm("buffer_store_dwordx4 %s, %s, %s, %s offen" % (v(src, 4), v(vOm), s(SWS, 4), s(sT0)))
        asm("buffer_store_dwordx2 %s, %s, %s, %s offen" % (v(src + 4, 2), v(vOr), s(SWS, 4), s(sT0)))
    asm("s_mov_b32 %s, %s" % (s(sEPS), fhex(1e-6)))
    asm("s_cmp_ge_u32 %s, 4" % s(sW))
    asm("s_cbranch_scc1 %s_hiwaves" % name)
    asm("s_lshl_b32 %s, %s, 2" % (s(sT0), s(sHH)))
    asm("v_mov_b32 %s, %s" % (v(vU), s(sT0)))
    asm("buffer_load_dword %s, %s, %s, 0 offen sc1" % (v(vT + 4), v(vU), s(SDBG, 4)))
    asm("s_nop 7"); asm("s_nop 3")
    normalize(PB, False)
    asm("s_mov_b32 %s, 0" % s(sCNT))
    asm.label("%s_poll" % name)
    asm("s_waitcnt vmcnt(0)")
    asm("v_readfirstlane_b32 %s, %s" % (s(sPOLL), v(vT + 4)))
    asm("s_add_u32 %s, %s, 1" % (s(sCNT), s(sCNT)))
    asm("s_nop 2")
    asm("s_cmp_ge_u32 %s, 8" % s(sPOLL))
    asm("s_cbranch_scc1 %s_ready" % name)
    asm("s_cmp_ge_u32 %s, 0x100000" % s(sCNT))
    asm("s_cbranch_scc1 %s_ready" % name)
    asm("s_sleep 1")
    asm("buffer_load_dword %s, %s, %s, 0 offen sc1" % (v(vT + 4), v(vU), s(SDBG, 4)))
    asm("s_branch %s_poll" % name)
    asm.label("%s_ready" % name)
    asm("s_lshl_b32 %s, %s, 1" % (s(sT0), s(sW)))
    asm("s_sub_u32 %s, %s, %s" % (s(sT0), s(sT0), s(sDQ)))
    asm("v_lshrrev_b32 %s, 5, %s" % (v(vT), v(vL)))
    asm("v_add_u32 %s, %s, %s" % (v(vT), s(sT0), v(vT)))
    asm("v_and_b32 %s, 31, %s" % (v(vT + 1), v(vL)))
    asm("v_lshlrev_b32 %s, 4, %s" % (v(vT + 1), v(vT + 1)))
    asm("v_lshl_add_u32 %s, %s, 9, %s" % (v(vT + 1), v(vT), v(vT + 1)))
    asm("v_cmp_ge_u32 vcc, 4, %s" % v(vT))
    asm("v_mov_b32 %s, 0x%x" % (v(vT + 2), OOB))
    asm("s_nop 0")
    asm("v_cndmask_b32 %s, %s, %s, vcc" % (v(vU), v(vT + 2), v(vT + 1)))
    asm("s_lshl_b32 %s, %s, 3" % (s(sT0), s(sHH)))
    asm("s_mul_i32 %s, %s, 3072" % (s(sT0), s(sT0)))
    asm("s_add_u32 %s, %s, %d" % (s(sT0), s(sT0), R_KVP))
    for r in range(8):
        asm("buffer_load_dwordx4 %s, %s, %s, %s offen sc1" % (v(S + 4 * r, 4), v(vU), s(SWS, 4), s(sT0)))
        if r < 7: asm("s_add_u32 %s, %s, 3072" % (s(sT0), s(sT0)))
    store_o(PB, R_OB)
    asm("s_waitcnt vmcnt(2)")
    for r in range(1, 8):
        for k in range(4):
            asm("v_add_f32 %s, %s, %s" % (v(S + k), v(S + k), v(S + 4 * r + k)))
    asm("v_cvt_pk_bf16_f32 %s, %s, %s" % (v(vT), v(S), v(S + 1)))
    asm("v_cvt_pk_bf16_f32 %s, %s, %s" % (v(vT + 1), v(S + 2), v(S + 3)))
    asm("s_lshr_b32 %s, %s, 1" % (s(sT0), s(sW)))
    asm("s_lshl_b32 %s, %s, 10" % (s(sT0), s(sT0)))
    asm("s_and_b32 %s, %s, 1" % (s(sT1), s(sW)))
    asm("s_lshl_b32 %s, %s, 3" % (s(sT1), s(sT1)))
    asm("s_add_u32 %s, %s, %s" % (s(sT0), s(sT0), s(sT1)))
    asm("s_add_u32 %s, %s, 65536" % (s(sT0), s(sT0)))
    asm("v_add_u32 %s, %s, %s" % (v(vU), s(sT0), v(vLin)))
    asm("ds_write_b64 %s, %s" % (v(vU), v(vT, 2)))
    asm("s_waitcnt lgkmcnt(0)")
    asm("s_branch %s_join" % name)
    asm.label("%s_hiwaves" % name)
    asm("s_nop 7"); asm("s_nop 3")
    normalize(PB, False)
    store_o(PB, R_OB)
    asm.label("%s_join" % name)
    asm("s_barrier")
    st()
    asm("v_add_u32 %s, 0x10000, %s" % (v(vU), v(vLin)))
    asm("ds_read_b128 %s, %s" % (v(F[0], 4), v(vU)))
    asm("ds_read_b128 %s, %s offset:1024" % (v(F[0] + 4, 4), v(vU)))
    asm("s_waitcnt vmcnt(2) lgkmcnt(0)")
    asm("v_mfma_f32_32x32x16_bf16 %s, %s, %s, 0" % (v(O, 16), v(F[0], 4), v(Q, 4)))
    asm("v_mfma_f32_32x32x16_bf16 %s, %s, %s, %s" % (v(O, 16), v(F[0] + 4, 4), v(Q + 4, 4), v(O, 16)))
    asm("s_nop 7"); asm("s_nop 3")
    normalize(PB, True)
    store_o(PB, R_OA)
    if stamp:
        asm("s_lshl_b32 %s, s2, 3" % s(sT0))
        asm("s_add_u32 %s, %s, %s" % (s(sT0), s(sT0), s(sW)))
        st()
        st.finish(10 * REG, sT0, vT, vT + 2, SDBG, 4)
    asm.label("%s_end" % name)
    asm("s_endpgm")
    return dict(name=name, vgpr=NV, sgpr=100, grid=256, block=512, lds=K2_LDS)
```

```python
from asmlib import *
from k2 import Stamper, REG, R_OA, R_OB, WS_REC
K3_LDS = 102400 + 20480

def gen_k3(asm, name="k3_kernel", stamp=False):
    st = Stamper(asm, stamp)
    SWS, SWO, SOUT = 8, 12, 16
    sBR, sRB, sCB, sW, sTB = 20, 21, 22, 23, 24
    sT0, sT1, sT2, sT3 = 25, 26, 27, 28
    sOffO = 29
    sDA = 30
    sDM = 31
    sOM = 32
    OF = 0
    ACC = 160
    WF = [200, 220]
    vDW = 240
    vOM, vOR, vWm, vWm2, vWr, vWr2 = 245, 246, 247, 248, 249, 250
    vL, vT, vU = 251, 252, 253
    vX = 254
    NV = 256
    kernel_header(asm, name)
    asm("s_cmp_ge_u32 s2, 256")
    asm("s_cbranch_scc1 %s_end" % name)
    st()
    asm("s_load_dwordx2 s[4:5], s[0:1], 16")
    asm("s_load_dwordx4 s[36:39], s[0:1], 40")
    asm("s_load_dwordx2 s[6:7], s[0:1], 64")
    asm("s_and_b32 %s, s2, 7" % s(sT0))
    asm("s_lshr_b32 %s, s2, 3" % s(sT1))
    asm("s_lshr_b32 %s, %s, 2" % (s(sBR), s(sT0)))
    asm("s_and_b32 %s, %s, 3" % (s(sT0), s(sT0)))
    asm("s_lshl_b32 %s, %s, 2" % (s(sT0), s(sT0)))
    asm("s_lshr_b32 %s, %s, 3" % (s(sRB), s(sT1)))
    asm("s_add_u32 %s, %s, %s" % (s(sRB), s(sRB), s(sT0)))
    asm("s_and_b32 %s, %s, 7" % (s(sCB), s(sT1)))
    asm("v_lshrrev_b32 %s, 6, v0" % v(vT))
    asm("v_and_b32 %s, 63, v0" % v(vL))
    asm("v_readfirstlane_b32 %s, %s" % (s(sW), v(vT)))
    asm("s_movk_i32 %s, 6554" % s(sT2))
    asm("s_movk_i32 %s, 1280" % s(sT3))
    for b in range(5):
        asm("v_add_u32 %s, %d, %s" % (v(vT), 64 * b, v(vL)))
        asm("v_mul_lo_u32 %s, %s, %s" % (v(vU), v(vT), s(sT2)))
        asm("v_lshrrev_b32 %s, 16, %s" % (v(vU), v(vU)))
        asm("v_mul_u32_u24 %s, 10, %s" % (v(vX), v(vU)))
        asm("v_sub_u32 %s, %s, %s" % (v(vT), v(vT), v(vX)))
        asm("v_lshlrev_b32 %s, 4, %s" % (v(vT), v(vT)))
        asm("v_mad_u32_u24 %s, %s, %s, %s" % (v(vDW + b), v(vU), s(sT3), v(vT)))
        if 0 < b < 4: asm("v_subrev_u32 %s, %d, %s" % (v(vDW + b), b * 1024, v(vDW + b)))
    asm("v_lshrrev_b32 %s, 4, %s" % (v(vT), v(vL)))
    asm("v_and_b32 %s, 15, %s" % (v(vU), v(vL)))
    asm("v_lshrrev_b32 %s, 1, %s" % (v(vX), v(vT)))
    asm("v_mul_u32_u24 %s, 1280, %s" % (v(vOM), v(vX)))
    asm("v_and_b32 %s, 1, %s" % (v(vX), v(vT)))
    asm("v_lshl_add_u32 %s, %s, 9, %s" % (v(vOM), v(vX), v(vOM)))
    asm("v_lshl_add_u32 %s, %s, 4, %s" % (v(vOM), v(vU), v(vOM)))
    asm("v_mul_u32_u24 %s, 1280, %s" % (v(vOR), v(vT)))
    asm("v_lshl_add_u32 %s, %s, 3, %s" % (v(vOR), v(vU), v(vOR)))
    asm("v_add_u32 %s, 1024, %s" % (v(vOR), v(vOR)))
    asm("v_bfe_u32 %s, %s, 2, 2" % (v(vU), v(vL)))
    asm("v_lshrrev_b32 %s, 1, %s" % (v(vX), v(vT)))
    asm("v_mul_u32_u24 %s, 20, %s" % (v(vWm), v(vX)))
    asm("v_and_b32 %s, 1, %s" % (v(vX), v(vT)))
    asm("v_lshl_add_u32 %s, %s, 2, %s" % (v(vWm), v(vX), v(vWm)))
    asm("v_add_u32 %s, %s, %s" % (v(vWm), v(vWm), v(vU)))
    asm("v_mul_u32_u24 %s, 160, %s" % (v(vWm), v(vWm)))
    asm("v_mul_u32_u24 %s, 20, %s" % (v(vWr), v(vT)))
    asm("v_add_u32 %s, %s, %s" % (v(vWr), v(vWr), v(vU)))
    asm("v_add_u32 %s, 16, %s" % (v(vWr), v(vWr)))
    asm("v_mul_u32_u24 %s, 160, %s" % (v(vWr), v(vWr)))
    asm("v_and_b32 %s, 3, %s" % (v(vX), v(vL)))
    asm("v_lshl_add_u32 %s, %s, 3, %s" % (v(vWm), v(vX), v(vWm)))
    asm("v_lshl_add_u32 %s, %s, 3, %s" % (v(vWr), v(vX), v(vWr)))
    asm("v_add_u32 %s, 51200, %s" % (v(vWm2), v(vWm)))
    asm("v_add_u32 %s, 51200, %s" % (v(vWr2), v(vWr)))
    asm("s_lshl_b32 %s, %s, 2" % (s(sTB), s(sRB)))
    asm("s_add_u32 %s, %s, %s" % (s(sTB), s(sTB), s(sW)))
    asm("s_waitcnt lgkmcnt(0)")
    asm("s_cmp_eq_u32 %s, 0" % s(sBR))
    asm("s_cselect_b32 s4, s4, s36")
    asm("s_cselect_b32 s5, s5, s37")
    asm("s_cselect_b32 %s, %d, %d" % (s(sOffO), R_OA, 0) if False else "s_cselect_b32 %s, 0, 1" % s(sOffO))
    asm("s_mul_i32 %s, %s, %d" % (s(sOffO), s(sOffO), REG))
    asm("s_add_u32 %s, %s, %d" % (s(sOffO), s(sOffO), R_OA))
    asm("s_mul_i32 %s, %s, 40960" % (s(sT0), s(sTB)))
    asm("s_add_u32 %s, %s, %s" % (s(sOffO), s(sOffO), s(sT0)))
    asm("s_mul_i32 %s, %s, 160" % (s(sT0), s(sCB)))
    asm("s_add_u32 s4, s4, %s" % s(sT0))
    asm("s_addc_u32 s5, s5, 0")
    asm("s_sub_u32 %s, %d, %s" % (s(sT1), 640 * 1280, s(sT0)))
    srd(asm, SWO, "s4", "s5", s(sT1))
    srd(asm, SWS, "s6", "s7", WS_REC)
    srd(asm, SOUT, "s38", "s39", 2048 * 2560)
    st()
    asm("s_mul_i32 %s, %s, %d" % (s(sDA), s(sW), 32 * 1280))
    asm("s_mul_i32 %s, %s, 5120" % (s(sDM), s(sW)))
    asm("s_mov_b32 %s, %s" % (s(sOM), s(sOffO)))
    def dma_ops():
        ops = []
        def first():
            asm("s_mov_b32 m0, %s" % s(sDM)); asm("s_nop 0")
            asm("buffer_load_dwordx4 %s, %s, %s offen lds" % (v(vDW), s(SWO, 4), s(sDA)))
        ops.append(first)
        for b in range(1, 4):
            ops.append(lambda b=b: asm("buffer_load_dwordx4 %s, %s, %s offen offset:%d lds" % (v(vDW + b), s(SWO, 4), s(sDA), b * 1024)))
        def last():
            asm("s_add_u32 m0, %s, 4096" % s(sDM)); asm("s_nop 0")
            asm("buffer_load_dwordx4 %s, %s, %s offen lds" % (v(vDW + 4), s(SWO, 4), s(sDA)))
            asm("s_add_u32 %s, %s, %d" % (s(sDA), s(sDA), 4 * 32 * 1280))
            asm("s_add_u32 %s, %s, %d" % (s(sDM), s(sDM), 4 * 5120))
        ops.append(last)
        return ops
    def omain_ops(steps):
        ops = []
        for sidx in steps:
            def f(sidx=sidx):
                for rt in range(2):
                    asm("buffer_load_dwordx4 %s, %s, %s, %s offen offset:%d" % (v(OF + (sidx * 2 + rt) * 4, 4), v(vOM), s(SWS, 4), s(sOM), rt * 256))
                asm("s_add_u32 %s, %s, 2560" % (s(sOM), s(sOM)))
            ops.append(f)
        return ops
    def orem_ops():
        ops = []
        for a_ in range(4):
            for half in range(2):
                def f(a_=a_, half=half):
                    asm("s_add_u32 %s, %s, %d" % (s(sT0), s(sOffO), a_ * 8 * 1280 + half * 5120))
                    for rt in range(2):
                        asm("buffer_load_dwordx2 %s, %s, %s, %s offen offset:%d" % (v(OF + ((16 + a_) * 2 + rt) * 4 + 2 * half, 2), v(vOR), s(SWS, 4), s(sT0), rt * 128))
                ops.append(f)
        return ops
    def wreads(step, dst):
        ops = []
        for ct in range(5):
            for a_ in range(2):
                if step < 16:
                    base = vWm if step < 8 else vWm2
                    off = (step & 7) * 6400 + a_ * 1280 + ct * 32
                else:
                    ap = step - 16
                    base = vWr if ap < 2 else vWr2
                    off = (ap & 1) * 25600 + a_ * 12800 + ct * 32
                ops.append(lambda ct=ct, a_=a_, base=base, off=off: asm("ds_read_b64_tr_b16 %s, %s offset:%d" % (v(dst + 4 * ct + 2 * a_, 2), v(base), off)))
        return ops
    def compute(steps, extra, first_step_global):
        extra = list(extra)
        for f in wreads(steps[0], WF[steps[0] & 1]): f()
        for n, sidx in enumerate(steps):
            cur = WF[sidx & 1]
            nxt_ops = wreads(steps[n + 1], WF[steps[n + 1] & 1]) if n + 1 < len(steps) else []
            asm("s_waitcnt lgkmcnt(0)")
            m = 0
            for ct in range(5):
                for rt in range(2):
                    acc = v(ACC + (rt * 5 + ct) * 4, 4)
                    c = "0" if sidx == 0 else acc
                    asm("v_mfma_f32_16x16x32_bf16 %s, %s, %s, %s" % (acc, v(cur + 4 * ct, 4), v(OF + (sidx * 2 + rt) * 4, 4), c))
                    if m < 5 and nxt_ops:
                        nxt_ops[2 * m](); nxt_ops[2 * m + 1]()
                    elif m >= 5 and extra:
                        extra.pop(0)()
                    m += 1
        for f in extra: f()
    for f in dma_ops(): f()
    for f in omain_ops([0, 1, 2]): f()
    for f in dma_ops(): f()
    for f in omain_ops([3, 4, 5]): f()
    vOUT = [OF + 150, OF + 151, OF + 152, OF + 153, OF + 154]
    asm("s_waitcnt vmcnt(11)")
    asm("s_barrier")
    st()
    compute([0, 1, 2], dma_ops() + omain_ops([6, 7, 8]), True)
    asm("s_waitcnt vmcnt(11)")
    asm("s_barrier")
    compute([3, 4, 5], dma_ops() + omain_ops([9, 10, 11]), False)
    asm("s_waitcnt vmcnt(11)")
    asm("s_barrier")
    compute([6, 7, 8], dma_ops() + omain_ops([12, 13, 14, 15]), False)
    asm("s_waitcnt vmcnt(13)")
    asm("s_barrier")
    compute([9, 10, 11], orem_ops(), False)
    asm("s_waitcnt vmcnt(16)")
    asm("s_barrier")
    compute([12, 13, 14, 15], [], False)
    asm("s_waitcnt vmcnt(0)")
    compute([16, 17, 18, 19], [], False)
    st()
    asm("v_and_b32 %s, 15, %s" % (v(vU), v(vL)))
    asm("v_mul_u32_u24 %s, 160, %s" % (v(vU), v(vU)))
    asm("v_lshrrev_b32 %s, 4, %s" % (v(vT), v(vL)))
    asm("v_lshl_add_u32 %s, %s, 3, %s" % (v(vU), v(vT), v(vU)))
    asm("s_mul_i32 %s, %s, 5120" % (s(sT0), s(sW)))
    asm("s_add_u32 %s, %s, 102400" % (s(sT0), s(sT0)))
    asm("v_add_u32 %s, %s, %s" % (v(vU), s(sT0), v(vU)))
    asm("v_lshlrev_b32 %s, 4, %s" % (v(vX), v(vL)))
    asm("v_add_u32 %s, %s, %s" % (v(vX), s(sT0), v(vX)))
    asm("s_nop 3")
    for rt in range(2):
        for ct in range(5):
            b = ACC + (rt * 5 + ct) * 4
            t = OF + (rt * 5 + ct) * 2
            asm("v_cvt_pk_bf16_f32 %s, %s, %s" % (v(t), v(b), v(b + 1)))
            asm("v_cvt_pk_bf16_f32 %s, %s, %s" % (v(t + 1), v(b + 2), v(b + 3)))
            asm("ds_write_b64 %s, %s offset:%d" % (v(vU), v(t, 2), rt * 2560 + ct * 32))
    asm("s_movk_i32 %s, 6554" % s(sT2))
    asm("s_movk_i32 %s, 2560" % s(sT3))
    for b in range(5):
        asm("v_add_u32 %s, %d, %s" % (v(vT), 64 * b, v(vL)))
        asm("v_mul_lo_u32 %s, %s, %s" % (v(vWm), v(vT), s(sT2)))
        asm("v_lshrrev_b32 %s, 16, %s" % (v(vWm), v(vWm)))
        asm("v_mul_u32_u24 %s, 10, %s" % (v(vWr), v(vWm)))
        asm("v_sub_u32 %s, %s, %s" % (v(vT), v(vT), v(vWr)))
        asm("v_lshlrev_b32 %s, 4, %s" % (v(vT), v(vT)))
        asm("v_mad_u32_u24 %s, %s, %s, %s" % (v(vDW + b), v(vWm), s(sT3), v(vT)))
    asm("s_mul_i32 %s, %s, %d" % (s(sT0), s(sTB), 32 * 2560))
    asm("s_mul_i32 %s, %s, 1280" % (s(sT1), s(sBR)))
    asm("s_add_u32 %s, %s, %s" % (s(sT0), s(sT0), s(sT1)))
    asm("s_mul_i32 %s, %s, 160" % (s(sT1), s(sCB)))
    asm("s_add_u32 %s, %s, %s" % (s(sT0), s(sT0), s(sT1)))
    asm("s_waitcnt lgkmcnt(0)")
    for b in range(5):
        asm("ds_read_b128 %s, %s offset:%d" % (v(32 + 4 * b, 4), v(vX), b * 1024))
    for b in range(5):
        asm("s_waitcnt lgkmcnt(%d)" % (4 - b))
        asm("buffer_store_dwordx4 %s, %s, %s, %s offen" % (v(32 + 4 * b, 4), v(vDW + b), s(SOUT, 4), s(sT0)))
    if stamp:
        asm("s_lshl_b32 %s, s2, 2" % s(sT0))
        asm("s_add_u32 %s, %s, %s" % (s(sT0), s(sT0), s(sW)))
        st()
        st.finish(11 * REG, sT0, vT, vWm, SOUT, 4)
    asm.label("%s_end" % name)
    asm("s_endpgm")
    return dict(name=name, vgpr=NV, sgpr=100, grid=256, block=256, lds=K3_LDS)
```

```python
import sys
from asmlib import *
import k1
HEADER = open("concat_heads__linear_attn_block__sliding_block__prompt.s.ref").read().split("; Override")[0]
def build(which=("k1",), stamp=False):
    body = A()
    infos = []
    if "k1" in which: infos.append(k1.gen_k1(body, stamp=stamp))
    if "k2" in which:
        import k2; infos.append(k2.gen_k2(body, stamp=stamp))
    if "k3" in which:
        import k3; infos.append(k3.gen_k3(body, stamp=stamp))
    out = HEADER
    for i in infos:
        out += "; @launch kernel=%s grid=(%d,1,1) block=(%d,1,1) lds=%d\n" % (i["name"], i["grid"], i["block"], i["lds"])
    out += '.amdgcn_target "amdgcn-amd-amdhsa--gfx950"\n.text\n'
    out += body.text()
    d = A()
    d('.section .rodata,"a"')
    for i in infos: kernel_desc(d, i["name"], i["vgpr"], i["sgpr"])
    out += d.text()
    return out
if __name__ == "__main__":
    which = sys.argv[2].split(",") if len(sys.argv) > 2 else ["k1"]
    open(sys.argv[1], "w").write(build(which, stamp=len(sys.argv) > 3))
```

```python
from asmlib import *
import math
REG = 2621440
R_QA, R_KA, R_VA, R_QB, R_KB, R_VB, R_OA, R_OB, R_KVP, R_FLG = [i * REG for i in range(10)]
F1 = R_FLG
F2 = R_FLG + 4096
F3 = R_FLG + 16384
WS_REC = R_FLG + 65536
R_STAMP = 10 * REG
LOG2E = 1.4426950408889634
QSCALE = LOG2E / math.sqrt(20.0)
BIG = -1.0e30
OOB = 0x40000000
L_WO, L_K, L_V, L_KVT = 0, 102400, 135168, 155648
L_OUT = L_K
L_SYNC = 157696
W_CNT1, W_S1, W_S1A, W_S2, W_CNT3B, W_CNT3A, W_S3 = [L_SYNC + 4 * i for i in range(7)]
LDS_BYTES = 157696 + 64
SPIN_MAX = 0x40000
NAME = "concat_heads__linear_attn_block__sliding_block__prompt_kernel"
class G:
    pass
def gen(asm, stamp=False, name=NAME, opts=None):
    opts = opts or {}
    N = name
    D1 = opts.get("d1", 0)
    SC = " sc1" if D1 else ""
    sW = 3
    SWS, SDBG = 8, 12
    sNON = 16
    sT0, sT1, sT2, sT3 = 18, 19, 20, 21
    sCNT, sPL = 22, 23
    SA_, SB_ = 24, 28
    sMASK = 32
    sPC = 34
    STB = 72
    sP8, sSLOT, sLOCAL, sXCC = 70, 71, 98, 99
    def st(k):
        if stamp:
            asm("s_memrealtime %s" % s(STB + 2 * k, 2))
    def lane(dst):
        asm("v_mbcnt_lo_u32_b32 %s, -1, 0" % v(dst))
        asm("v_mbcnt_hi_u32_b32 %s, -1, %s" % (v(dst), v(dst)))
    uid = [0]
    def lab(p):
        uid[0] += 1
        return "%s_%s%d" % (N, p, uid[0])
    def sync_issue(vd, vo):
        lane(vo)
        asm("s_lshl_b32 %s, %s, 3" % (s(sT0), s(sP8)))
        asm("s_add_u32 %s, %s, 64" % (s(sT0), s(sT0)))
        asm("v_cmp_eq_u32 vcc, 1, %s" % v(vo))
        asm("v_mov_b32 %s, %s" % (v(vd), s(sT0)))
        asm("v_mov_b32 %s, 0" % v(vo))
        asm("v_cndmask_b32 %s, %s, %s, vcc" % (v(vo), v(vo), v(vd)))
        asm("buffer_load_dwordx2 %s, %s, %s, 0 offen sc1" % (v(vd, 2), v(vo), s(SDBG, 4)))
    def get_sync(vd, vo, preissued=False):
        L, D = lab("non"), lab("nond")
        if not preissued: sync_issue(vd, vo)
        asm("s_mov_b32 %s, 0" % s(sCNT))
        asm.label(L)
        asm("s_waitcnt vmcnt(0)")
        asm("v_readlane_b32 %s, %s, 0" % (s(sNON), v(vd)))
        asm("v_readlane_b32 %s, %s, 0" % (s(sNON + 1), v(vd + 1)))
        asm("v_readlane_b32 %s, %s, 1" % (s(sPC), v(vd)))
        asm("v_readlane_b32 %s, %s, 1" % (s(sPC + 1), v(vd + 1)))
        asm("s_add_u32 %s, %s, 1" % (s(sCNT), s(sCNT)))
        asm("s_nop 2")
        asm("s_cmp_lg_u32 %s, 0" % s(sNON))
        asm("s_cbranch_scc1 %s" % D)
        asm("s_cmp_ge_u32 %s, 0x%x" % (s(sCNT), SPIN_MAX))
        asm("s_cbranch_scc1 %s" % D)
        asm("s_sleep 4")
        asm("buffer_load_dwordx2 %s, %s, %s, 0 offen sc1" % (v(vd, 2), v(vo), s(SDBG, 4)))
        asm("s_branch %s" % L)
        asm.label(D)
        asm("s_lshl_b32 %s, %s, 3" % (s(sT0), s(sXCC)))
        asm("s_lshl_b64 %s, 32, %s" % (s(sMASK, 2), s(sT0)))
        asm("s_cmp_eq_u64 %s, %s" % (s(sMASK, 2), s(sPC, 2)))
        asm("s_cselect_b32 %s, 1, 0" % s(sLOCAL))
        if opts.get("nolocal"): asm("s_mov_b32 %s, 0" % s(sLOCAL))
    def release():
        if D1: return
        D = lab("rel")
        asm("s_cmp_lg_u32 %s, 0" % s(sLOCAL))
        asm("s_cbranch_scc1 %s" % D)
        asm("buffer_wbl2 sc1")
        asm("s_waitcnt vmcnt(0)")
        asm.label(D)
    def lds_set(word, va, vd):
        asm("v_mov_b32 %s, 0x%x" % (v(va), word))
        asm("v_mov_b32 %s, 1" % v(vd))
        asm("ds_write_b32 %s, %s" % (v(va), v(vd)))
    def lds_wait(word, va, vd):
        L, D = lab("lw"), lab("lwd")
        asm("v_mov_b32 %s, 0x%x" % (v(va), word))
        asm("s_mov_b32 %s, 0" % s(sCNT))
        asm.label(L)
        asm("ds_read_b32 %s, %s" % (v(vd), v(va)))
        asm("s_waitcnt lgkmcnt(0)")
        asm("v_readfirstlane_b32 %s, %s" % (s(sT0), v(vd)))
        asm("s_add_u32 %s, %s, 1" % (s(sCNT), s(sCNT)))
        asm("s_nop 2")
        asm("s_cmp_lg_u32 %s, 0" % s(sT0))
        asm("s_cbranch_scc1 %s" % D)
        asm("s_cmp_ge_u32 %s, 0x%x" % (s(sCNT), SPIN_MAX * 8))
        asm("s_cbranch_scc1 %s" % D)
        asm("s_sleep 1")
        asm("s_branch %s" % L)
        asm.label(D)
    def lds_arrive(word, n, va, vd, soff):
        D = lab("arr")
        asm("v_mov_b32 %s, 0x%x" % (v(va), word))
        asm("v_mov_b32 %s, 1" % v(vd))
        asm("s_mov_b64 exec, 1")
        asm("ds_add_rtn_u32 %s, %s, %s" % (v(vd), v(va), v(vd)))
        asm("s_waitcnt lgkmcnt(0)")
        asm("s_mov_b64 exec, -1")
        asm("v_readfirstlane_b32 %s, %s" % (s(sCNT), v(vd)))
        asm("s_nop 3")
        asm("s_cmp_lg_u32 %s, %d" % (s(sCNT), n - 1))
        asm("s_cbranch_scc1 %s" % D)
        flag_store(soff, vd, va)
        asm.label(D)
    def poll_issue(soff, vd, vo, n):
        asm("s_mov_b32 exec_lo, 0x%x" % ((1 << n) - 1))
        asm("s_mov_b32 exec_hi, 0")
        asm("buffer_load_dwordx2 %s, %s, %s, %s offen sc1" % (v(vd, 2), v(vo), s(SWS, 4), soff))
        asm("s_mov_b64 exec, -1")
    def poll(soff, n, vd, vo, preissued=False, lo=0):
        L, D = lab("poll"), lab("polld")
        m = ((1 << n) - 1) & ~((1 << lo) - 1)
        asm("s_mov_b32 %s, 0x%x" % (s(sMASK), m & 0xffffffff))
        asm("s_mov_b32 %s, 0x%x" % (s(sMASK + 1), m >> 32))
        if not preissued: poll_issue(soff, vd, vo, n)
        asm("s_mov_b32 %s, 0" % s(sCNT))
        asm.label(L)
        asm("s_waitcnt vmcnt(0)")
        asm("v_cmp_eq_u32 vcc, %s, %s" % (s(sNON), v(vd)))
        asm("v_cmp_eq_u32 %s, %s, %s" % (s(sPC, 2), s(sNON + 1), v(vd + 1)))
        asm("s_add_u32 %s, %s, 1" % (s(sCNT), s(sCNT)))
        asm("s_nop 3")
        asm("s_and_b64 %s, %s, vcc" % (s(sPC, 2), s(sPC, 2)))
        asm("s_and_b64 %s, %s, %s" % (s(sPC, 2), s(sPC, 2), s(sMASK, 2)))
        asm("s_cmp_eq_u64 %s, %s" % (s(sPC, 2), s(sMASK, 2)))
        asm("s_cbranch_scc1 %s" % D)
        asm("s_cmp_ge_u32 %s, 0x%x" % (s(sCNT), SPIN_MAX))
        asm("s_cbranch_scc1 %s" % D)
        asm("s_sleep %d" % opts.get("sleep", 3))
        poll_issue(soff, vd, vo, n)
        asm("s_branch %s" % L)
        asm.label(D)
    def flag_store(soff, vd, vo):
        asm("v_mov_b32 %s, %s" % (v(vd), s(sNON)))
        asm("v_mov_b32 %s, %s" % (v(vd + 1), s(sNON + 1)))
        asm("v_mov_b32 %s, 0" % v(vo))
        asm("s_mov_b64 exec, 1")
        asm("buffer_store_dwordx2 %s, %s, %s, %s offen sc1" % (v(vd, 2), v(vo), s(SWS, 4), soff))
        asm("s_mov_b64 exec, -1")
    kernel_header(asm, N)
    asm("s_cmp_ge_u32 s2, 256")
    asm("s_cbranch_scc1 %s_end" % N)
    if stamp:
        for i in range(26): asm("s_mov_b32 %s, 0" % s(STB + i))
    st(0)
    asm("s_load_dwordx4 s[4:7], s[0:1], 56")
    asm("s_load_dwordx4 s[36:39], s[0:1], 0")
    asm("s_load_dwordx4 s[40:43], s[0:1], 24")
    asm("v_lshrrev_b32 v1, 6, v0")
    asm("s_nop 0")
    asm("v_readfirstlane_b32 %s, v1" % s(sW))
    sBR, sRB, sCB, sPART, sCBP, sW4, sWM, sWN = 44, 45, 46, 47, 48, 49, 50, 51
    asm("s_and_b32 %s, s2, 7" % s(sP8))
    asm("s_lshr_b32 %s, s2, 3" % s(sSLOT))
    asm("s_getreg_b32 %s, hwreg(HW_REG_XCC_ID, 0, 4)" % s(sXCC))
    asm("s_and_b32 %s, %s, 7" % (s(sXCC), s(sXCC)))
    if not D1:
        asm("s_cmp_ge_u32 %s, 15" % s(sSLOT))
        asm("s_cselect_b32 %s, 1, 0" % s(sBR))
        asm("s_cselect_b32 %s, 15, 0" % s(sT0))
        asm("s_sub_u32 %s, %s, %s" % (s(sCB), s(sSLOT), s(sT0)))
        asm("s_mov_b32 %s, %s" % (s(sRB), s(sP8)))
    else:
        asm("s_lshr_b32 %s, %s, 2" % (s(sBR), s(sP8)))
        asm("s_and_b32 %s, %s, 3" % (s(sT0), s(sP8)))
        asm("s_mul_i32 %s, %s, 30" % (s(sT0), s(sT0)))
        asm("s_add_u32 %s, %s, %s" % (s(sT0), s(sT0), s(sSLOT)))
        asm("s_cmp_ge_u32 %s, 60" % s(sT0))
        asm("s_cselect_b32 %s, 4, 0" % s(sT1))
        asm("s_cselect_b32 %s, 60, 0" % s(sT2))
        asm("s_sub_u32 %s, %s, %s" % (s(sT0), s(sT0), s(sT2)))
        asm("s_lshr_b32 %s, %s, 2" % (s(sCB), s(sT0)))
        asm("s_and_b32 %s, %s, 3" % (s(sT0), s(sT0)))
        asm("s_add_u32 %s, %s, %s" % (s(sRB), s(sT1), s(sT0)))
    asm("s_cmp_ge_u32 %s, 5" % s(sCB))
    asm("s_cselect_b32 %s, 1, 0" % s(sPART))
    asm("s_cmp_ge_u32 %s, 10" % s(sCB))
    asm("s_cselect_b32 %s, 2, %s" % (s(sPART), s(sPART)))
    asm("s_mul_i32 %s, %s, 5" % (s(sT0), s(sPART)))
    asm("s_sub_u32 %s, %s, %s" % (s(sCBP), s(sCB), s(sT0)))
    asm("s_and_b32 %s, %s, 3" % (s(sW4), s(sW)))
    asm("s_lshr_b32 %s, %s, 1" % (s(sWM), s(sW4)))
    asm("s_and_b32 %s, %s, 1" % (s(sWN), s(sW4)))
    asm("s_waitcnt lgkmcnt(0)")
    srd(asm, SWS, "s6", "s7", WS_REC)
    srd(asm, SDBG, "s4", "s5", 256)
    asm("s_cmp_ge_u32 %s, 4" % s(sW))
    asm("s_cbranch_scc1 %s_p1h" % N)
    ACC = 0; FX = [128, 144]; FW = [160, 168]
    vXA, vWA = 176, 180
    vL, vT, vU, vV = 194, 195, 196, 197
    vSO = 198; TMP = 200; TE = 216; vN = 220
    sSTG, sDELTA, sRBUF, sNEG = 52, 53, 54, 55
    sTN, sGG, sSO = 56, 57, 58
    sC0, sC1 = 60, 62
    asm("s_or_b32 %s, s2, %s" % (s(sT0), s(sW)))
    asm("s_cmp_lg_u32 %s, 0" % s(sT0))
    asm("s_cbranch_scc1 %s_nonon" % N)
    asm("s_memrealtime %s" % s(sNON, 2))
    asm("s_waitcnt lgkmcnt(0)")
    asm("s_or_b32 %s, %s, 1" % (s(sNON), s(sNON)))
    asm("v_mov_b32 v2, %s" % s(sNON))
    asm("v_mov_b32 v3, %s" % s(sNON + 1))
    asm("v_mov_b32 v4, 0")
    asm("s_mov_b64 exec, 1")
    asm("buffer_store_dwordx2 v[2:3], v4, %s, 0 offen sc1" % s(SDBG, 4))
    asm("s_mov_b64 exec, -1")
    asm.label("%s_nonon" % N)
    asm("s_cmp_lg_u32 %s, 0" % s(sW))
    asm("s_cbranch_scc1 %s_noinit" % N)
    asm("s_lshl_b32 %s, %s, 3" % (s(sT0), s(sXCC)))
    asm("s_lshl_b64 s[4:5], 1, %s" % s(sT0))
    asm("s_lshl_b32 %s, %s, 3" % (s(sT0), s(sP8)))
    asm("s_add_u32 %s, %s, 64" % (s(sT0), s(sT0)))
    asm("v_mov_b32 v2, s4")
    asm("v_mov_b32 v3, s5")
    asm("v_mov_b32 v4, %s" % s(sT0))
    asm("s_mov_b64 exec, 1")
    asm("buffer_atomic_add_x2 v[2:3], v4, %s, 0 offen" % s(SDBG, 4))
    asm("s_mov_b64 exec, -1")
    lane(5)
    asm("v_lshlrev_b32 v5, 2, v5")
    asm("v_add_u32 v5, 0x%x, v5" % L_SYNC)
    asm("v_mov_b32 v6, 0")
    asm("s_mov_b32 exec_lo, 0xffff")
    asm("s_mov_b32 exec_hi, 0")
    asm("ds_write_b32 v5, v6")
    asm("s_mov_b64 exec, -1")
    asm("s_waitcnt lgkmcnt(0)")
    asm.label("%s_noinit" % N)
    asm("s_cmp_ge_u32 %s, 30" % s(sSLOT))
    asm("s_cbranch_scc1 %s_p2c" % N)
    lane(vL)
    asm.c("X frag read addr")
    asm("v_and_b32 %s, 31, %s" % (v(vT), v(vL)))
    asm("s_lshl_b32 %s, %s, 7" % (s(sT0), s(sWM)))
    asm("v_add_u32 %s, %s, %s" % (v(vU), s(sT0), v(vT)))
    asm("v_lshlrev_b32 %s, 7, %s" % (v(vU), v(vU)))
    asm("v_bfe_u32 %s, %s, 1, 3" % (v(vT), v(vT)))
    asm("v_lshrrev_b32 %s, 5, %s" % (v(vV), v(vL)))
    for ks in range(4):
        asm("v_add_u32 %s, %d, %s" % (v(TMP), 2 * ks, v(vV)))
        asm("v_xor_b32 %s, %s, %s" % (v(TMP), v(TMP), v(vT)))
        asm("v_lshl_add_u32 %s, %s, 4, %s" % (v(vXA + ks), v(TMP), v(vU)))
    asm.c("W frag read addr")
    asm("v_bfe_u32 %s, %s, 2, 2" % (v(vT), v(vL)))
    asm("v_lshrrev_b32 %s, 5, %s" % (v(vU), v(vL)))
    asm("v_lshl_add_u32 %s, %s, 3, %s" % (v(vU), v(vU), v(vT)))
    asm("v_lshlrev_b32 %s, 8, %s" % (v(vU), v(vU)))
    asm("v_add_u32 %s, 32768, %s" % (v(vU), v(vU)))
    asm("v_and_b32 %s, 1, %s" % (v(vV), v(vL)))
    asm("v_lshl_add_u32 %s, %s, 3, %s" % (v(vU), v(vV), v(vU)))
    asm("v_bfe_u32 %s, %s, 4, 1" % (v(vV), v(vL)))
    asm("v_lshlrev_b32 %s, 1, %s" % (v(vV), v(vV)))
    asm("v_bfe_u32 %s, %s, 1, 1" % (v(TMP), v(vL)))
    asm("v_add_u32 %s, %s, %s" % (v(vV), v(vV), v(TMP)))
    asm("s_lshl_b32 %s, %s, 3" % (s(sT0), s(sWN)))
    asm("v_add_u32 %s, %s, %s" % (v(vV), s(sT0), v(vV)))
    asm("v_lshlrev_b32 %s, 2, %s" % (v(vT), v(vT)))
    for tn in range(2):
        asm("v_add_u32 %s, %d, %s" % (v(TMP), 4 * tn, v(vV)))
        asm("v_xor_b32 %s, %s, %s" % (v(TMP), v(TMP), v(vT)))
        asm("v_lshl_add_u32 %s, %s, 4, %s" % (v(vWA + tn), v(TMP), v(vU)))
    for i in range(128):
        asm("v_mov_b32 %s, 0" % v(ACC + i))
    asm("s_mul_i32 %s, %s, 3" % (s(sT0), s(sBR)))
    asm("s_add_u32 %s, %s, %s" % (s(sT0), s(sT0), s(sPART)))
    asm("s_mul_i32 %s, %s, %d" % (s(sT0), s(sT0), REG))
    asm("s_add_u32 s6, s6, %s" % s(sT0))
    asm("s_addc_u32 s7, s7, 0")
    SO = SA_
    srd(asm, SO, "s6", "s7", REG)
    def rdX(st_, tm, ks):
        asm("ds_read_b128 %s, %s offset:%d" % (v(FX[st_] + 4 * tm, 4), v(vXA + ks), tm * 4096))
    def rdW(st_, tn, a_, ks):
        asm("ds_read_b64_tr_b16 %s, %s offset:%d" % (v(FW[st_] + 4 * tn + 2 * a_, 2), v(vWA + tn), ks * 4096 + a_ * 1024))
    def reads(st_, ks):
        return [lambda: rdW(st_, 0, 0, ks), lambda: rdW(st_, 0, 1, ks), lambda: rdX(st_, 0, ks), lambda: rdX(st_, 1, ks),
                lambda: rdW(st_, 1, 0, ks), lambda: rdW(st_, 1, 1, ks), lambda: rdX(st_, 2, ks), lambda: rdX(st_, 3, ks)]
    MORD = [(0, 0), (1, 0), (0, 1), (1, 1), (2, 0), (2, 1), (3, 0), (3, 1)]
    def mfma(orient, st_, tm, tn):
        acc = v(ACC + (tm * 2 + tn) * 16, 16)
        x = v(FX[st_] + 4 * tm, 4); w = v(FW[st_] + 4 * tn, 4)
        if orient == "T": asm("v_mfma_f32_32x32x16_bf16 %s, %s, %s, %s" % (acc, w, x, acc))
        else: asm("v_mfma_f32_32x32x16_bf16 %s, %s, %s, %s" % (acc, x, w, acc))
    asm("s_mov_b32 %s, 0" % s(sSTG))
    asm("s_mov_b32 %s, 0" % s(sRBUF))
    asm("s_mov_b32 %s, 0x%x" % (s(sNEG), (-2 * 49152) & 0xffffffff))
    asm("s_barrier")
    st(1)
    for f in reads(0, 0): f()
    asm("s_cmp_eq_u32 %s, 0" % s(sPART))
    asm("s_cbranch_scc1 %s_loopT" % N)
    asm("s_add_u32 %s, %s, %s" % (s(sT0), s(sBR), s(sBR)))
    asm("s_add_u32 %s, %s, %s" % (s(sT0), s(sT0), s(sPART)))
    asm("s_cmp_eq_u32 %s, 3" % s(sT0))
    asm("s_cbranch_scc0 %s_loopF" % N)
    def loop(orient):
        L = "%s_loop%s" % (N, orient)
        asm(".p2align 4")
        asm.label(L)
        for ks in range(4):
            st_ = ks & 1; nst_ = st_ ^ 1
            asm("s_waitcnt lgkmcnt(0)")
            if ks < 3:
                rs = reads(nst_, ks + 1)
                for m in range(8):
                    mfma(orient, st_, *MORD[m])
                    if m < 4:
                        rs[2 * m](); rs[2 * m + 1]()
                    if ks == 2 and m == 4:
                        asm("s_add_u32 %s, %s, 1" % (s(sRBUF), s(sRBUF)))
                        asm("s_cmp_eq_u32 %s, 3" % s(sRBUF))
                        asm("s_cselect_b32 %s, 0, %s" % (s(sRBUF), s(sRBUF)))
                        asm("s_cselect_b32 %s, %s, 49152" % (s(sDELTA), s(sNEG)))
                    if ks == 2 and m == 5:
                        for k in range(3): asm("v_add_u32 %s, %s, %s" % (v(vXA + k), s(sDELTA), v(vXA + k)))
                    if ks == 2 and m == 6:
                        asm("v_add_u32 %s, %s, %s" % (v(vXA + 3), s(sDELTA), v(vXA + 3)))
                        for k in range(2): asm("v_add_u32 %s, %s, %s" % (v(vWA + k), s(sDELTA), v(vWA + k)))
                    if ks == 2 and m == 7:
                        asm("s_add_u32 %s, %s, 1" % (s(sSTG), s(sSTG)))
            else:
                mfma(orient, st_, *MORD[0])
                mfma(orient, st_, *MORD[1])
                asm("s_barrier")
                rs = reads(nst_, 0)
                mfma(orient, st_, *MORD[2])
                rs[0](); rs[1](); rs[2]()
                mfma(orient, st_, *MORD[3])
                rs[3](); rs[4](); rs[5]()
                mfma(orient, st_, *MORD[4])
                rs[6](); rs[7]()
                mfma(orient, st_, *MORD[5])
                mfma(orient, st_, *MORD[6])
                asm("s_cmp_lt_u32 %s, 10" % s(sSTG))
                mfma(orient, st_, *MORD[7])
        asm("s_cbranch_scc1 %s" % L)
        asm("s_branch %s_epi%s" % (N, orient))
    loop("T")
    loop("F")
    asm.label("%s_epiT" % N)
    asm("s_lshl_b32 %s, %s, 3" % (s(sT0), s(sRB)))
    asm("s_lshl_b32 %s, %s, 2" % (s(sT1), s(sWM)))
    asm("s_add_u32 %s, %s, %s" % (s(sT0), s(sT0), s(sT1)))
    asm("s_mul_i32 %s, %s, 40" % (s(sT0), s(sT0)))
    asm("s_lshl_b32 %s, %s, 3" % (s(sT1), s(sCBP)))
    asm("s_add_u32 %s, %s, %s" % (s(sT0), s(sT0), s(sT1)))
    asm("s_lshl_b32 %s, %s, 2" % (s(sT1), s(sWN)))
    asm("s_add_u32 %s, %s, %s" % (s(sT0), s(sT0), s(sT1)))
    asm("s_lshl_b32 %s, %s, 10" % (s(sT0), s(sT0)))
    asm("v_lshlrev_b32 %s, 4, %s" % (v(vSO), v(vL)))
    asm("v_add_u32 %s, %s, %s" % (v(vSO), s(sT0), v(vSO)))
    asm("s_movk_i32 %s, 2048" % s(sTN))
    asm("s_movk_i32 %s, 1024" % s(sGG))
    asm("s_branch %s_epi" % N)
    asm.label("%s_epiF" % N)
    asm("s_lshl_b32 %s, %s, 3" % (s(sT0), s(sRB)))
    asm("s_lshl_b32 %s, %s, 2" % (s(sT1), s(sWM)))
    asm("s_add_u32 %s, %s, %s" % (s(sT0), s(sT0), s(sT1)))
    asm("s_mul_i32 %s, %s, 40960" % (s(sT0), s(sT0)))
    asm("s_lshl_b32 %s, %s, 11" % (s(sT1), s(sCBP)))
    asm("s_add_u32 %s, %s, %s" % (s(sT0), s(sT0), s(sT1)))
    asm("s_lshl_b32 %s, %s, 10" % (s(sT1), s(sWN)))
    asm("s_add_u32 %s, %s, %s" % (s(sT0), s(sT0), s(sT1)))
    asm("v_lshrrev_b32 %s, 5, %s" % (v(vT), v(vL)))
    asm("v_mul_u32_u24 %s, 10240, %s" % (v(vT), v(vT)))
    asm("v_and_b32 %s, 31, %s" % (v(vU), v(vL)))
    asm("v_lshl_add_u32 %s, %s, 4, %s" % (v(vSO), v(vU), v(vT)))
    asm("v_add_u32 %s, %s, %s" % (v(vSO), s(sT0), v(vSO)))
    asm("s_movk_i32 %s, 512" % s(sTN))
    asm("s_movk_i32 %s, 20480" % s(sGG))
    asm.label("%s_epi" % N)
    st(2)
    sync_issue(vN, vN + 2)
    asm("s_lshl_b32 %s, %s, 2" % (s(sT0), s(sBR)))
    asm("s_add_u32 %s, %s, %s" % (s(sT0), s(sT0), s(sPART)))
    asm("s_cmp_lt_u32 %s, 2" % s(sT0))
    asm("s_cbranch_scc1 %s_phi" % N)
    asm("s_cmp_eq_u32 %s, 4" % s(sT0))
    asm("s_cselect_b32 %s, %s, 1.0" % (s(sC0), fhex(QSCALE)))
    asm("s_mov_b32 %s, %s" % (s(sC0 + 1), s(sC0)))
    def store_tile(tm, tn, tset, sc):
        for gg in range(2):
            if gg == 0:
                asm("s_mul_i32 %s, %s, %d" % (s(sSO), s(sTN), tn))
                if tm: asm("s_add_u32 %s, %s, %d" % (s(sSO), s(sSO), tm * 40960))
            else:
                asm("s_add_u32 %s, %s, %s" % (s(sSO), s(sSO), s(sGG)))
            asm("buffer_store_dwordx4 %s, %s, %s, %s offen%s" % (v(TMP + 8 * tset + 4 * gg, 4), v(vSO), s(SO, 4), s(sSO), sc))
    def plain_epi(sc, scale):
        cnt = 0
        for tm in range(4):
            for tn in range(2):
                b = ACC + (tm * 2 + tn) * 16
                ts = cnt & 1; cnt += 1
                if scale:
                    for p in range(8):
                        asm("v_pk_mul_f32 %s, %s, %s" % (v(b + 2 * p, 2), v(b + 2 * p, 2), s(sC0, 2)))
                for p in range(8):
                    asm("v_cvt_pk_bf16_f32 %s, %s, %s" % (v(TMP + 8 * ts + p), v(b + 2 * p), v(b + 2 * p + 1)))
                store_tile(tm, tn, ts, sc)
    asm("s_cmp_ge_u32 %s, 5" % s(sT0))
    asm("s_cbranch_scc1 %s_epikv" % N)
    asm("s_nop 7")
    plain_epi(SC, True)
    asm("s_branch %s_fin1" % N)
    asm.label("%s_epikv" % N)
    asm("s_nop 7")
    plain_epi(" sc1", False)
    asm("s_branch %s_fin1" % N)
    asm.label("%s_phi" % N)
    asm("s_mov_b32 %s, %s" % (s(sC0), fhex(LOG2E)))
    asm("s_mov_b32 %s, %s" % (s(sC0 + 1), fhex(LOG2E)))
    asm("s_mov_b32 %s, %s" % (s(sC1), fhex(1e-6)))
    asm("s_nop 7")
    cnt = 0
    for tm in range(4):
        for tn in range(2):
            b = ACC + (tm * 2 + tn) * 16
            ts = cnt & 1; cnt += 1
            for q in range(4):
                r0 = b + 4 * q
                asm("v_pk_mul_f32 %s, %s, %s" % (v(TE, 2), v(r0, 2), s(sC0, 2)))
                asm("v_pk_mul_f32 %s, %s, %s" % (v(TE + 2, 2), v(r0 + 2, 2), s(sC0, 2)))
                for k in range(4): asm("v_exp_f32_e64 %s, %s clamp" % (v(TE + k), v(TE + k)))
                for k in range(4): asm("v_max_f32 %s, %s, %s" % (v(r0 + k), s(sC1), v(r0 + k)))
                asm("v_pk_add_f32 %s, %s, %s" % (v(r0, 2), v(r0, 2), v(TE, 2)))
                asm("v_pk_add_f32 %s, %s, %s" % (v(r0 + 2, 2), v(r0 + 2, 2), v(TE + 2, 2)))
                asm("v_cvt_pk_bf16_f32 %s, %s, %s" % (v(TMP + 8 * ts + 2 * q), v(r0), v(r0 + 1)))
                asm("v_cvt_pk_bf16_f32 %s, %s, %s" % (v(TMP + 8 * ts + 2 * q + 1), v(r0 + 2), v(r0 + 3)))
            store_tile(tm, tn, ts, SC)
    asm.label("%s_fin1" % N)
    st(3)
    get_sync(vN, vN + 2, preissued=True)
    release()
    asm("s_lshl_b32 %s, %s, 3" % (s(sT1), s(sBR)))
    asm("s_add_u32 %s, %s, %s" % (s(sT1), s(sT1), s(sRB)))
    asm("s_lshl_b32 %s, %s, 4" % (s(sT1), s(sT1)))
    asm("s_add_u32 %s, %s, %s" % (s(sT1), s(sT1), s(sCB)))
    asm("s_lshl_b32 %s, %s, 3" % (s(sT1), s(sT1)))
    asm("s_add_u32 %s, %s, %d" % (s(sT1), s(sT1), F1))
    lds_arrive(W_CNT1, 4, vN + 2, vN, s(sT1))
    st(4)
    asm("s_branch %s_p2common" % N)
    asm.label("%s_p2c" % N)
    asm("s_barrier")
    get_sync(220, 222)
    asm("s_branch %s_p2common" % N)

    asm.label("%s_p1h" % N)
    hL, hT, hU, hV = 2, 3, 4, 5
    vDX, vDW, hTMP = 8, 16, 20
    sXOFF, sWOFF, sM0X, sM0W, sDBUF, sHS = 52, 53, 54, 55, 56, 57
    SX, SWD = SA_, SB_
    asm("s_cmp_lt_u32 %s, 30" % s(sSLOT))
    asm("s_cbranch_scc1 %s_p1h2" % N)
    asm("s_barrier")
    asm("s_branch %s_p2h" % N)
    asm.label("%s_p1h2" % N)
    lane(hL)
    asm("v_lshrrev_b32 %s, 3, %s" % (v(hT), v(hL)))
    asm("s_lshl_b32 %s, %s, 6" % (s(sT0), s(sW4)))
    asm("v_add_u32 %s, %s, %s" % (v(hT), s(sT0), v(hT)))
    asm("s_movk_i32 %s, 1280" % s(sT1))
    asm("v_mul_lo_u32 %s, %s, %s" % (v(hT), v(hT), s(sT1)))
    asm("v_lshrrev_b32 %s, 4, %s" % (v(hU), v(hL)))
    asm("v_and_b32 %s, 7, %s" % (v(hV), v(hL)))
    for par in range(2):
        if par == 1: asm("v_add_u32 %s, 4, %s" % (v(hU), v(hU)))
        asm("v_xor_b32 %s, %s, %s" % (v(hTMP + par), v(hV), v(hU)))
        asm("v_lshl_add_u32 %s, %s, 4, %s" % (v(hTMP + par), v(hTMP + par), v(hT)))
    for i in range(8):
        asm("v_add_u32 %s, %d, %s" % (v(vDX + i), i * 8 * 1280 - (i & 3) * 1024, v(hTMP + (i & 1))))
    asm("v_lshrrev_b32 %s, 4, %s" % (v(hU), v(hL)))
    asm("s_lshl_b32 %s, %s, 4" % (s(sT0), s(sW4)))
    asm("v_add_u32 %s, %s, %s" % (v(hT), s(sT0), v(hU)))
    asm("s_movk_i32 %s, 3840" % s(sT1))
    asm("v_mul_lo_u32 %s, %s, %s" % (v(hT), v(hT), s(sT1)))
    asm("v_lshlrev_b32 %s, 2, %s" % (v(hU), v(hU)))
    asm("v_and_b32 %s, 15, %s" % (v(hV), v(hL)))
    asm("v_xor_b32 %s, %s, %s" % (v(hV), v(hV), v(hU)))
    asm("v_lshl_add_u32 %s, %s, 4, %s" % (v(hT), v(hV), v(hT)))
    for i in range(4):
        asm("v_add_u32 %s, %d, %s" % (v(vDW + i), i * 4 * 3840 - i * 1024, v(hT)))
    asm("s_cmp_eq_u32 %s, 0" % s(sBR))
    asm("s_cselect_b32 s36, s36, s40")
    asm("s_cselect_b32 s37, s37, s41")
    asm("s_cselect_b32 s38, s38, s42")
    asm("s_cselect_b32 s39, s39, s43")
    asm("s_mul_i32 %s, %s, %d" % (s(sT0), s(sRB), 256 * 1280))
    asm("s_add_u32 s36, s36, %s" % s(sT0))
    asm("s_addc_u32 s37, s37, 0")
    asm("s_lshl_b32 %s, %s, 8" % (s(sT0), s(sCB)))
    asm("s_add_u32 s38, s38, %s" % s(sT0))
    asm("s_addc_u32 s39, s39, 0")
    asm("s_sub_u32 %s, %d, %s" % (s(sT1), 640 * 3840, s(sT0)))
    srd(asm, SX, "s36", "s37", 256 * 1280)
    srd(asm, SWD, "s38", "s39", s(sT1))
    def dma_stage():
        asm("s_lshl_b32 %s, %s, 13" % (s(sT0), s(sW4)))
        asm("s_add_u32 %s, %s, %s" % (s(sM0X), s(sDBUF), s(sT0)))
        asm("s_lshl_b32 %s, %s, 12" % (s(sT0), s(sW4)))
        asm("s_add_u32 %s, %s, %s" % (s(sT0), s(sT0), s(sDBUF)))
        asm("s_add_u32 %s, %s, 32768" % (s(sM0W), s(sT0)))
        for idx in range(8):
            if idx == 0:
                asm("s_mov_b32 m0, %s" % s(sM0X)); asm("s_nop 0")
            if idx == 4:
                asm("s_add_u32 m0, %s, 4096" % s(sM0X)); asm("s_nop 0")
            asm("buffer_load_dwordx4 %s, %s, %s offen offset:%d lds" % (v(vDX + idx), s(SX, 4), s(sXOFF), (idx & 3) * 1024))
        asm("s_mov_b32 m0, %s" % s(sM0W)); asm("s_nop 0")
        for j in range(4):
            asm("buffer_load_dwordx4 %s, %s, %s offen offset:%d lds" % (v(vDW + j), s(SWD, 4), s(sWOFF), j * 1024))
        asm("s_add_u32 %s, %s, 128" % (s(sXOFF), s(sXOFF)))
        asm("s_add_u32 %s, %s, %d" % (s(sWOFF), s(sWOFF), 64 * 3840))
        asm("s_add_u32 %s, %s, 49152" % (s(sDBUF), s(sDBUF)))
        asm("s_cmp_ge_u32 %s, %d" % (s(sDBUF), 3 * 49152))
        asm("s_cselect_b32 %s, 0, %s" % (s(sDBUF), s(sDBUF)))
    asm("s_mov_b32 %s, 0" % s(sXOFF))
    asm("s_mov_b32 %s, 0" % s(sWOFF))
    asm("s_mov_b32 %s, 0" % s(sDBUF))
    asm("s_mov_b32 %s, 0" % s(sHS))
    Lp = "%s_hpro" % N
    asm.label(Lp)
    dma_stage()
    asm("s_add_u32 %s, %s, 1" % (s(sHS), s(sHS)))
    asm("s_cmp_lt_u32 %s, 3" % s(sHS))
    asm("s_cbranch_scc0 %s_hpro_done" % N)
    asm("s_cmp_eq_u32 %s, 1" % s(sHS))
    asm("s_cbranch_scc0 %s" % Lp)
    asm("s_sleep %d" % opts.get("prosleep", 4))
    asm("s_branch %s" % Lp)
    asm.label("%s_hpro_done" % N)
    asm("s_waitcnt vmcnt(24)")
    asm("s_barrier")
    asm("s_mov_b32 %s, 0" % s(sHS))
    Lh = "%s_hloop" % N
    asm.label(Lh)
    asm("s_cmp_lt_u32 %s, 8" % s(sHS))
    asm("s_cbranch_scc1 %s_hw12" % N)
    asm("s_waitcnt vmcnt(0)")
    asm("s_branch %s_hw" % N)
    asm.label("%s_hw12" % N)
    asm("s_waitcnt vmcnt(12)")
    asm.label("%s_hw" % N)
    asm("s_barrier")
    asm("s_cmp_lt_u32 %s, 7" % s(sHS))
    asm("s_cbranch_scc0 %s_hnodma" % N)
    dma_stage()
    asm.label("%s_hnodma" % N)
    asm("s_add_u32 %s, %s, 1" % (s(sHS), s(sHS)))
    asm("s_cmp_lt_u32 %s, 10" % s(sHS))
    asm("s_cbranch_scc1 %s" % Lh)
    asm.label("%s_p2h" % N)
    st(2)
    sBR3, sRB3, sCB3 = 64, 65, 66
    def decode3():
        if not D1:
            asm("s_lshr_b32 %s, %s, 4" % (s(sBR3), s(sSLOT)))
            asm("s_bfe_u32 %s, %s, 0x10003" % (s(sRB3), s(sSLOT)))
            asm("s_lshl_b32 %s, %s, 1" % (s(sT0), s(sP8)))
            asm("s_add_u32 %s, %s, %s" % (s(sRB3), s(sRB3), s(sT0)))
            asm("s_and_b32 %s, %s, 7" % (s(sCB3), s(sSLOT)))
        else:
            asm("s_lshr_b32 %s, %s, 2" % (s(sBR3), s(sP8)))
            asm("s_and_b32 %s, %s, 3" % (s(sT0), s(sP8)))
            asm("s_lshl_b32 %s, %s, 2" % (s(sT0), s(sT0)))
            asm("s_lshr_b32 %s, %s, 3" % (s(sRB3), s(sSLOT)))
            asm("s_add_u32 %s, %s, %s" % (s(sRB3), s(sRB3), s(sT0)))
            asm("s_and_b32 %s, %s, 7" % (s(sCB3), s(sSLOT)))
    decode3()
    asm("s_load_dwordx2 s[4:5], s[0:1], 16")
    asm("s_load_dwordx2 s[6:7], s[0:1], 40")
    lane(hL)
    vDWO = 8
    asm("s_movk_i32 %s, 6554" % s(sT2))
    asm("s_movk_i32 %s, 1280" % s(sT3))
    for b in range(5):
        asm("v_add_u32 %s, %d, %s" % (v(hT), 64 * b, v(hL)))
        asm("v_mul_lo_u32 %s, %s, %s" % (v(hU), v(hT), s(sT2)))
        asm("v_lshrrev_b32 %s, 16, %s" % (v(hU), v(hU)))
        asm("v_mul_u32_u24 %s, 10, %s" % (v(hV), v(hU)))
        asm("v_sub_u32 %s, %s, %s" % (v(hT), v(hT), v(hV)))
        asm("v_lshlrev_b32 %s, 4, %s" % (v(hT), v(hT)))
        asm("v_mad_u32_u24 %s, %s, %s, %s" % (v(vDWO + b), v(hU), s(sT3), v(hT)))
        if 0 < b < 4: asm("v_subrev_u32 %s, %d, %s" % (v(vDWO + b), b * 1024, v(vDWO + b)))
    asm("s_waitcnt lgkmcnt(0)")
    asm("s_cmp_eq_u32 %s, 0" % s(sBR3))
    asm("s_cselect_b32 s4, s4, s6")
    asm("s_cselect_b32 s5, s5, s7")
    asm("s_mul_i32 %s, %s, 160" % (s(sT0), s(sCB3)))
    asm("s_add_u32 s4, s4, %s" % s(sT0))
    asm("s_addc_u32 s5, s5, 0")
    asm("s_sub_u32 %s, %d, %s" % (s(sT1), 640 * 1280, s(sT0)))
    SWO = SA_
    srd(asm, SWO, "s4", "s5", s(sT1))
    sDA, sDM, sI = 52, 53, 54
    asm("s_and_b32 %s, %s, 3" % (s(sT0), s(sW)))
    asm("s_mul_i32 %s, %s, %d" % (s(sDA), s(sT0), 32 * 1280))
    asm("s_mul_i32 %s, %s, 5120" % (s(sDM), s(sT0)))
    asm("s_mov_b32 %s, 0" % s(sI))
    Lw = "%s_wo" % N
    asm.label(Lw)
    asm("s_mov_b32 m0, %s" % s(sDM)); asm("s_nop 0")
    asm("buffer_load_dwordx4 %s, %s, %s offen lds" % (v(vDWO), s(SWO, 4), s(sDA)))
    for b in range(1, 4):
        asm("buffer_load_dwordx4 %s, %s, %s offen offset:%d lds" % (v(vDWO + b), s(SWO, 4), s(sDA), b * 1024))
    asm("s_add_u32 m0, %s, 4096" % s(sDM)); asm("s_nop 0")
    asm("buffer_load_dwordx4 %s, %s, %s offen lds" % (v(vDWO + 4), s(SWO, 4), s(sDA)))
    asm("s_add_u32 %s, %s, %d" % (s(sDA), s(sDA), 4 * 32 * 1280))
    asm("s_add_u32 %s, %s, %d" % (s(sDM), s(sDM), 4 * 5120))
    asm("s_add_u32 %s, %s, 1" % (s(sI), s(sI)))
    asm("s_cmp_lt_u32 %s, 5" % s(sI))
    asm("s_cbranch_scc1 %s" % Lw)
    get_sync(220, 222)
    sHH, sRB2, sG0, sDQ, sTB, sNT = 44, 45, 46, 47, 48, 49
    sMSK, sM40 = 50, 52
    sP = 54
    sQM = 54
    sOffO, sOffQA, sBIG, sEPS = 62, 63, 67, 68
    def decode2():
        if not D1:
            asm("s_mov_b32 %s, %s" % (s(sHH), s(sSLOT)))
            asm("s_mov_b32 %s, %s" % (s(sRB2), s(sP8)))
        else:
            asm("s_lshl_b32 %s, %s, 2" % (s(sT0), s(sP8)))
            asm("s_and_b32 %s, %s, 3" % (s(sHH), s(sSLOT)))
            asm("s_add_u32 %s, %s, %s" % (s(sHH), s(sHH), s(sT0)))
            asm("s_lshr_b32 %s, %s, 2" % (s(sRB2), s(sSLOT)))
        asm("s_mul_i32 %s, %s, 5" % (s(sT0), s(sHH)))
        asm("s_lshr_b32 %s, %s, 2" % (s(sG0), s(sT0)))
        asm("s_and_b32 %s, %s, 3" % (s(sDQ), s(sT0)))
        asm("s_lshl_b32 %s, %s, 3" % (s(sTB), s(sRB2)))
        asm("s_add_u32 %s, %s, %s" % (s(sTB), s(sTB), s(sW)))
        asm("s_add_u32 %s, %s, 1" % (s(sNT), s(sTB)))
        asm("s_min_u32 %s, %s, 9" % (s(sNT), s(sNT)))
        asm("s_mov_b32 %s, 0x000fffff" % s(sMSK)); asm("s_mov_b32 %s, 0x000fffff" % s(sMSK + 1))
    S = 0; O = 144; Q = 160; F = [168, 176]; CM8 = 184; CM0 = 200; VF = [184, 192]
    vM, vNM = 216, 218
    vT = 220
    vLin, vKa, vVa, vL = 228, 229, 230, 231
    vOm, vOr, vFo, vU = 232, 233, 234, 235
    PB = 236
    vL8 = 242
    decode2()
    lane(vL)
    asm("v_lshlrev_b32 %s, 3, %s" % (v(vL8), v(vL)))
    asm("v_lshlrev_b32 %s, 4, %s" % (v(vLin), v(vL)))
    asm("s_cmp_eq_u32 %s, 4" % s(sW))
    asm("s_cbranch_scc1 %s_w4poll" % N)
    lds_wait(W_S1, vT, vT + 1)
    asm("s_branch %s_kv_go" % N)
    asm.label("%s_w4poll" % N)
    asm("s_add_u32 %s, %s, 8" % (s(sT0), s(sRB2)))
    asm("s_lshl_b32 %s, %s, 7" % (s(sT0), s(sT0)))
    asm("s_add_u32 %s, %s, %d" % (s(sPL), s(sT0), F1))
    poll(s(sPL), 15, vT, vL8)
    asm("s_cmp_eq_u32 %s, 0" % s(sRB2))
    asm("s_cbranch_scc1 %s_w4set" % N)
    asm("s_sub_u32 %s, %s, 128" % (s(sPL), s(sPL)))
    poll(s(sPL), 15, vT, vL8, lo=5)
    asm.label("%s_w4set" % N)
    lds_set(W_S1, vT, vT + 1)
    asm.label("%s_kv_go" % N)
    st(4)
    asm("v_cmp_le_u32 vcc, 20, %s" % v(vL))
    asm("v_mov_b32 %s, 0" % v(vT))
    asm("v_mov_b32 %s, %d" % (v(vT + 1), 10240 - 320))
    asm("v_cndmask_b32 %s, %s, %s, vcc" % (v(vT), v(vT), v(vT + 1)))
    asm("v_add_u32 %s, %s, %s" % (v(vFo), v(vT), v(vLin)))
    asm("s_mov_b32 %s, -1" % s(sM40)); asm("s_mov_b32 %s, 0xff" % s(sM40 + 1))
    asm("s_and_b32 %s, %s, 3" % (s(sI + 15), s(sW)))
    sW4b = sI + 15
    asm("s_cmp_eq_u32 %s, 0" % s(sRB2))
    asm("s_cselect_b32 %s, 2, 0" % s(sT0))
    asm("s_cmp_lt_u32 %s, %s" % (s(sW4b), s(sT0)))
    asm("s_cbranch_scc1 %s_p2rest" % N)
    sTK, sKO, sVO, sLK, sLV = 54, 55, 56, 57, 58
    asm("s_lshl_b32 %s, %s, 3" % (s(sTK), s(sRB2)))
    asm("s_lshl_b32 %s, %s, 2" % (s(sT1), s(sW4b)))
    asm("s_add_u32 %s, %s, %s" % (s(sTK), s(sTK), s(sT1)))
    asm("s_sub_u32 %s, %s, 8" % (s(sTK), s(sTK)))
    asm("s_mul_i32 %s, %s, 40" % (s(sKO), s(sTK)))
    asm("s_add_u32 %s, %s, %s" % (s(sKO), s(sKO), s(sG0)))
    asm("s_lshl_b32 %s, %s, 10" % (s(sKO), s(sKO)))
    asm("s_add_u32 %s, %s, %d" % (s(sKO), s(sKO), R_KB))
    asm("s_mul_i32 %s, %s, 40960" % (s(sVO), s(sTK)))
    asm("s_mul_i32 %s, %s, 320" % (s(sT1), s(sHH)))
    asm("s_add_u32 %s, %s, %s" % (s(sVO), s(sVO), s(sT1)))
    asm("s_add_u32 %s, %s, %d" % (s(sVO), s(sVO), R_VB))
    asm("s_lshl_b32 %s, %s, 13" % (s(sLK), s(sW4b)))
    asm("s_add_u32 %s, %s, %d" % (s(sLK), s(sLK), L_K))
    asm("s_mul_i32 %s, %s, %d" % (s(sLV), s(sW4b), 4 * 1280))
    asm("s_add_u32 %s, %s, %d" % (s(sLV), s(sLV), L_V))
    for ii in range(4):
        asm("s_add_u32 m0, %s, %d" % (s(sLK), ii * 2048))
        asm("s_nop 0")
        asm("buffer_load_dwordx4 %s, %s, %s offen sc1 lds" % (v(vLin), s(SWS, 4), s(sKO)))
        asm("buffer_load_dwordx4 %s, %s, %s offen offset:1024 sc1 lds" % (v(vLin), s(SWS, 4), s(sKO)))
        asm("s_add_u32 %s, %s, 40960" % (s(sKO), s(sKO)))
        asm("s_add_u32 m0, %s, %d" % (s(sLV), ii * 1280))
        asm("s_mov_b64 exec, %s" % s(sM40, 2))
        asm("buffer_load_dwordx4 %s, %s, %s offen sc1 lds" % (v(vFo), s(SWS, 4), s(sVO)))
        asm("s_add_u32 %s, %s, %d" % (s(sT1), s(sVO), 20480 - 640))
        asm("buffer_load_dwordx4 %s, %s, %s offen offset:640 sc1 lds" % (v(vFo), s(SWS, 4), s(sT1)))
        asm("s_mov_b64 exec, -1")
        asm("s_add_u32 %s, %s, 40960" % (s(sVO), s(sVO)))
    asm("s_branch %s_p2rest" % N)
    asm.label("%s_p2common" % N)
    decode2()
    lane(vL)
    asm("v_lshlrev_b32 %s, 3, %s" % (v(vL8), v(vL)))
    asm("v_lshlrev_b32 %s, 4, %s" % (v(vLin), v(vL)))
    lds_wait(W_S1, vT, vT + 1)
    asm.label("%s_p2rest" % N)
    asm("v_lshrrev_b32 %s, 5, %s" % (v(vT), v(vL)))
    asm("v_mul_u32_u24 %s, 10240, %s" % (v(vT), v(vT)))
    asm("v_and_b32 %s, 31, %s" % (v(vU), v(vL)))
    asm("v_lshl_add_u32 %s, %s, 4, %s" % (v(vFo), v(vU), v(vT)))
    asm("s_mul_i32 %s, %s, 40" % (s(sT2), s(sTB)))
    asm("s_add_u32 %s, %s, %s" % (s(sT2), s(sT2), s(sG0)))
    asm("s_lshl_b32 %s, %s, 10" % (s(sT2), s(sT2)))
    asm("s_add_u32 %s, %s, %d" % (s(sT3), s(sT2), R_QB))
    asm("buffer_load_dwordx4 %s, %s, %s, %s offen sc1" % (v(Q, 4), v(vLin), s(SWS, 4), s(sT3)))
    asm("buffer_load_dwordx4 %s, %s, %s, %s offen offset:1024 sc1" % (v(Q + 4, 4), v(vLin), s(SWS, 4), s(sT3)))
    asm("s_add_u32 %s, %s, %d" % (s(sOffQA), s(sT2), R_QA))
    asm("s_mov_b32 %s, %s" % (s(sBIG), fhex(BIG)))
    asm("v_and_b32 %s, 31, %s" % (v(vU), v(vL)))
    asm("v_lshrrev_b32 %s, 5, %s" % (v(vT + 4), v(vL)))
    asm("v_lshlrev_b32 %s, 2, %s" % (v(vT + 4), v(vT + 4)))
    asm("v_sub_u32 %s, %s, %s" % (v(vU), v(vU), v(vT + 4)))
    asm("v_mov_b32 %s, %s" % (v(vT + 5), s(sBIG)))
    asm("v_mov_b32 %s, 0" % v(vT + 6))
    for r0 in range(0, 16, 4):
        for k in range(4):
            r = r0 + k
            asm("v_cmp_le_i32 %s, %d, %s" % (s(sP + 2 * k, 2), 8 * (r >> 2) + (r & 3), v(vU)))
        asm("s_nop 1")
        for k in range(4):
            r = r0 + k
            asm("v_cndmask_b32 %s, %s, %s, %s" % (v(CM8 + r), v(vT + 5), v(vT + 6), s(sP + 2 * k, 2)))
            asm("v_cndmask_b32 %s, %s, %s, %s" % (v(CM0 + r), v(vT + 6), v(vT + 5), s(sP + 2 * k, 2)))
    asm("s_nop 3")
    for gg in range(2):
        for p in range(2):
            k = gg * 2 + p
            for h in range(2):
                asm("s_sub_u32 %s, %d, %s" % (s(sT0), 4 * gg + 2 * p + h, s(sDQ)))
                asm("s_cmp_le_u32 %s, 4" % s(sT0))
                asm("s_cselect_b32 %s, -1, 0" % s(sQM + 2 * k + h))
    asm("s_lshl_b32 %s, %s, 11" % (s(sT0), s(sW)))
    asm("s_add_u32 %s, %s, %d" % (s(sT0), s(sT0), L_K))
    asm("v_add_u32 %s, %s, %s" % (v(vKa), s(sT0), v(vLin)))
    asm("v_lshrrev_b32 %s, 5, %s" % (v(vT), v(vL)))
    asm("v_mul_u32_u24 %s, 20, %s" % (v(vT), v(vT)))
    asm("v_and_b32 %s, 31, %s" % (v(vU), v(vL)))
    asm("v_add_u32 %s, %s, %s" % (v(vT), v(vT), v(vU)))
    asm("v_lshlrev_b32 %s, 4, %s" % (v(vT), v(vT)))
    asm("s_mul_i32 %s, %s, 1280" % (s(sT0), s(sW)))
    asm("s_add_u32 %s, %s, %d" % (s(sT0), s(sT0), L_V))
    asm("v_add_u32 %s, %s, %s" % (v(vVa), s(sT0), v(vT)))
    asm("s_lshl_b32 %s, %s, 5" % (s(sT0), s(sTB)))
    asm("s_add_u32 %s, %s, %s" % (s(sT0), s(sT0), s(sHH)))
    asm("s_mul_i32 %s, %s, 1280" % (s(sOffO), s(sT0)))
    asm("v_mov_b32 %s, %s" % (v(vOm), v(vLin)))
    asm("v_add_u32 %s, 1024, %s" % (v(vOr), v(vL8)))
    asm("v_mov_b32 %s, 0x%x" % (v(vT + 4), OOB))
    asm("v_cmp_gt_u32 vcc, 32, %s" % v(vL))
    asm("s_nop 1")
    asm("v_cndmask_b32 %s, %s, %s, vcc" % (v(vOr), v(vT + 4), v(vOr)))
    asm("s_waitcnt vmcnt(0) lgkmcnt(0)")
    asm("s_barrier")
    st(5)
    def rdK(d, dst):
        for gg in range(2):
            asm("ds_read_b128 %s, %s offset:%d" % (v(dst + 4 * gg, 4), v(vKa), (8 - d) * 2048 + gg * 1024))
    def rdV(d, dst):
        asm("s_mov_b64 exec, %s" % s(sMSK, 2))
        for m in range(2):
            asm("ds_read_b128 %s, %s offset:%d" % (v(dst + 4 * m, 4), v(vVa), (8 - d) * 1280 + m * 640))
        asm("s_mov_b64 exec, -1")
    rdK(0, F[0])
    for gg in range(2):
        for p in range(2):
            k = gg * 2 + p
            for j in range(2):
                r = Q + 4 * gg + 2 * p + j
                asm("v_cndmask_b32 %s, 0, %s, %s" % (v(r), v(r), s(sQM + 2 * k, 2)))
    AW = 4
    asm("s_lshl_b32 %s, %s, 7" % (s(sT0), s(sRB2)))
    asm("s_add_u32 %s, %s, %d" % (s(sPL), s(sT0), F1))
    asm("s_cmp_lg_u32 %s, %d" % (s(sW), AW))
    asm("s_cbranch_scc1 %s_noA2" % N)
    asm("v_mov_b32 %s, 0x3f803f80" % v(vT + 2))
    for r in range(64, 128): asm("v_mov_b32 %s, %s" % (v(r), v(vT + 2)))
    poll(s(sPL), 15, vT, vL8)
    lds_set(W_S1A, vT, vT + 1)
    asm("s_lshl_b32 %s, %s, 3" % (s(sT0), s(sRB2)))
    asm("s_mul_i32 %s, %s, 40960" % (s(sT0), s(sT0)))
    asm("s_mul_i32 %s, %s, 320" % (s(sT1), s(sHH)))
    asm("s_add_u32 %s, %s, %s" % (s(sT0), s(sT0), s(sT1)))
    asm("s_add_u32 %s, %s, %d" % (s(sT1), s(sT0), R_KA))
    asm("s_add_u32 %s, %s, %d" % (s(sT2), s(sT0), R_VA))
    asm("s_mov_b64 exec, %s" % s(sMSK, 2))
    for b in range(8):
        for m in range(2):
            asm("buffer_load_dwordx4 %s, %s, %s, %s offen sc1" % (v((b * 2 + m) * 4, 4), v(vFo), s(SWS, 4), s(sT1)))
            asm("buffer_load_dwordx4 %s, %s, %s, %s offen sc1" % (v(64 + (b * 2 + m) * 4, 4), v(vFo), s(SWS, 4), s(sT2)))
            asm("s_add_u32 %s, %s, 20480" % (s(sT1), s(sT1)))
            asm("s_add_u32 %s, %s, 20480" % (s(sT2), s(sT2)))
    asm("s_mov_b64 exec, -1")
    for b in range(16):
        asm("s_waitcnt vmcnt(%d)" % (30 - 2 * b))
        c = "0" if b == 0 else v(O, 16)
        asm("v_mfma_f32_32x32x16_bf16 %s, %s, %s, %s" % (v(O, 16), v(b * 4, 4), v(64 + b * 4, 4), c))
    asm("s_lshl_b32 %s, %s, 3" % (s(sT0), s(sHH)))
    asm("s_add_u32 %s, %s, %s" % (s(sT0), s(sT0), s(sRB2)))
    asm("s_mul_i32 %s, %s, 3072" % (s(sT0), s(sT0)))
    asm("s_add_u32 %s, %s, %d" % (s(sT0), s(sT0), R_KVP))
    asm("s_nop 7"); asm("s_nop 1")
    for j in range(3):
        asm("buffer_store_dwordx4 %s, %s, %s, %s offen offset:%d sc1" % (v(O + 4 * j, 4), v(vLin), s(SWS, 4), s(sT0), j * 1024))
    asm.label("%s_noA2" % N)
    def maxes(d):
        b = S + 16 * d
        if d == 0:
            asm("v_max3_f32 %s, %s, %s, %s" % (v(vM), v(b), v(b + 1), v(b + 2)))
            for k in range(3, 15, 2):
                asm("v_max3_f32 %s, %s, %s, %s" % (v(vM), v(vM), v(b + k), v(b + k + 1)))
            asm("v_max_f32 %s, %s, %s" % (v(vM), v(vM), v(b + 15)))
        else:
            for k in range(0, 16, 2):
                asm("v_max3_f32 %s, %s, %s, %s" % (v(vM), v(vM), v(b + k), v(b + k + 1)))
    for d in range(9):
        cur, nxt = F[d & 1], F[(d + 1) & 1]
        asm("s_waitcnt lgkmcnt(0)")
        if d < 8: rdK(d + 1, nxt)
        if d > 0:
            asm("s_cmp_le_u32 %s, %d" % (s(sNT), d))
            asm("s_cbranch_scc1 %s_p1skip%d" % (N, d))
        else:
            asm("s_nop 1")
        c = v(CM8, 16) if d == 0 else (v(CM0, 16) if d == 8 else "0")
        b = v(S + 16 * d, 16)
        asm("v_mfma_f32_32x32x16_bf16 %s, %s, %s, %s" % (b, v(cur, 4), v(Q, 4), c))
        asm("v_mfma_f32_32x32x16_bf16 %s, %s, %s, %s" % (b, v(cur + 4, 4), v(Q + 4, 4), b))
        if d > 0:
            asm.label("%s_p1skip%d" % (N, d))
            if d == 1: asm("s_nop 7")
            maxes(d - 1)
            asm("s_cbranch_scc1 %s_p1end" % N)
    asm("s_nop 3")
    maxes(8)
    asm.label("%s_p1end" % N)
    st(6)
    asm("s_cmp_lg_u32 %s, %d" % (s(sW), AW))
    asm("s_cbranch_scc1 %s_nosig" % N)
    asm("s_waitcnt vmcnt(0)")
    asm("s_lshl_b32 %s, %s, 4" % (s(sT0), s(sHH)))
    asm("s_add_u32 %s, %s, %s" % (s(sT0), s(sT0), s(sRB2)))
    asm("s_lshl_b32 %s, %s, 3" % (s(sT0), s(sT0)))
    asm("s_add_u32 %s, %s, %d" % (s(sT0), s(sT0), F2))
    flag_store(s(sT0), vT, vT + 2)
    asm.label("%s_nosig" % N)
    asm("s_waitcnt lgkmcnt(0)")
    asm("s_mov_b32 %s, 0x3f803f80" % s(sT0))
    for r in range(16): asm("v_mov_b32 %s, %s" % (v(VF[0] + r), s(sT0)))
    rdV(0, VF[0])
    asm("v_mov_b32 %s, %s" % (v(vT + 2), v(vM)))
    asm("v_mov_b32 %s, %s" % (v(vT + 3), v(vM)))
    asm("s_nop 1")
    asm("v_permlane32_swap_b32 %s, %s" % (v(vT + 2), v(vT + 3)))
    asm("s_nop 1")
    asm("v_max_f32 %s, %s, %s" % (v(vM), v(vT + 2), v(vT + 3)))
    asm("v_sub_f32 %s, 0, %s" % (v(vNM), v(vM)))
    asm("v_sub_f32 %s, 0, %s" % (v(vNM + 1), v(vM)))
    for d in range(9):
        cur, nxt = VF[d & 1], VF[(d + 1) & 1]
        b = S + 16 * d
        if d > 0:
            asm("s_cmp_le_u32 %s, %d" % (s(sNT), d))
            asm("s_cbranch_scc1 %s_p2end" % N)
        for k in range(8):
            asm("v_pk_add_f32 %s, %s, %s" % (v(b + 2 * k, 2), v(b + 2 * k, 2), v(vNM, 2)))
        for k in range(16):
            asm("v_exp_f32 %s, %s" % (v(b + k), v(b + k)))
        asm("s_waitcnt lgkmcnt(0)")
        if d < 8: rdV(d + 1, nxt)
        for k in range(8):
            asm("v_cvt_pk_bf16_f32 %s, %s, %s" % (v(b + k), v(b + 2 * k), v(b + 2 * k + 1)))
        asm("s_nop 1")
        asm("v_mfma_f32_32x32x16_bf16 %s, %s, %s, %s" % (v(O, 16), v(cur, 4), v(b, 4), "0" if d == 0 else v(O, 16)))
        asm("v_mfma_f32_32x32x16_bf16 %s, %s, %s, %s" % (v(O, 16), v(cur + 4, 4), v(b + 4, 4), v(O, 16)))
        if d == 0:
            lds_wait(W_S1A, vT + 4, vT + 5)
            asm("buffer_load_dwordx4 %s, %s, %s, %s offen sc1" % (v(Q, 4), v(vLin), s(SWS, 4), s(sOffQA)))
            asm("buffer_load_dwordx4 %s, %s, %s, %s offen offset:1024 sc1" % (v(Q + 4, 4), v(vLin), s(SWS, 4), s(sOffQA)))
    asm.label("%s_p2end" % N)
    st(7)
    def normalize(dst, eps):
        asm("v_mov_b32 %s, %s" % (v(vT), v(O + 8)))
        asm("v_mov_b32 %s, %s" % (v(vT + 1), v(O + 8)))
        asm("s_nop 1")
        asm("v_permlane32_swap_b32 %s, %s" % (v(vT), v(vT + 1)))
        asm("s_nop 1")
        if eps: asm("v_add_f32 %s, %s, %s" % (v(vT + 1), s(sEPS), v(vT + 1)))
        asm("v_rcp_f32 %s, %s" % (v(vT + 1), v(vT + 1)))
        asm("s_nop 0")
        for k in range(12): asm("v_mul_f32 %s, %s, %s" % (v(O + k), v(vT + 1), v(O + k)))
        for k in range(6): asm("v_cvt_pk_bf16_f32 %s, %s, %s" % (v(dst + k), v(O + 2 * k), v(O + 2 * k + 1)))
    def store_o(src, region):
        asm("s_add_u32 %s, %s, %d" % (s(sT0), s(sOffO), region))
        asm("buffer_store_dwordx4 %s, %s, %s, %s offen%s" % (v(src, 4), v(vOm), s(SWS, 4), s(sT0), SC))
        asm("buffer_store_dwordx2 %s, %s, %s, %s offen%s" % (v(src + 4, 2), v(vOr), s(SWS, 4), s(sT0), SC))
    asm("s_mov_b32 %s, %s" % (s(sEPS), fhex(1e-6)))
    asm("s_cmp_ge_u32 %s, 4" % s(sW))
    asm("s_cbranch_scc1 %s_hiwaves" % N)
    asm("s_lshl_b32 %s, %s, 7" % (s(sPL), s(sHH)))
    asm("s_add_u32 %s, %s, %d" % (s(sPL), s(sPL), F2))
    asm("s_cmp_lg_u32 %s, 0" % s(sW))
    asm("s_cbranch_scc1 %s_w123" % N)
    poll_issue(s(sPL), vT + 4, vL8, 8)
    asm("s_nop 7"); asm("s_nop 3")
    normalize(PB, False)
    poll(s(sPL), 8, vT + 4, vL8, preissued=True)
    lds_set(W_S2, vT + 4, vT + 5)
    asm("s_branch %s_w0123" % N)
    asm.label("%s_w123" % N)
    asm("s_nop 7"); asm("s_nop 3")
    normalize(PB, False)
    lds_wait(W_S2, vT + 4, vT + 5)
    asm.label("%s_w0123" % N)
    asm("s_lshl_b32 %s, %s, 1" % (s(sT0), s(sW)))
    asm("s_sub_u32 %s, %s, %s" % (s(sT0), s(sT0), s(sDQ)))
    asm("v_lshrrev_b32 %s, 5, %s" % (v(vT), v(vL)))
    asm("v_add_u32 %s, %s, %s" % (v(vT), s(sT0), v(vT)))
    asm("v_and_b32 %s, 31, %s" % (v(vT + 1), v(vL)))
    asm("v_lshlrev_b32 %s, 4, %s" % (v(vT + 1), v(vT + 1)))
    asm("v_lshl_add_u32 %s, %s, 9, %s" % (v(vT + 1), v(vT), v(vT + 1)))
    asm("v_cmp_ge_u32 vcc, 4, %s" % v(vT))
    asm("v_mov_b32 %s, 0x%x" % (v(vT + 2), OOB))
    asm("s_nop 0")
    asm("v_cndmask_b32 %s, %s, %s, vcc" % (v(vU), v(vT + 2), v(vT + 1)))
    asm("s_lshl_b32 %s, %s, 3" % (s(sT0), s(sHH)))
    asm("s_mul_i32 %s, %s, 3072" % (s(sT0), s(sT0)))
    asm("s_add_u32 %s, %s, %d" % (s(sT0), s(sT0), R_KVP))
    for r in range(8):
        asm("buffer_load_dwordx4 %s, %s, %s, %s offen sc1" % (v(S + 4 * r, 4), v(vU), s(SWS, 4), s(sT0)))
        if r < 7: asm("s_add_u32 %s, %s, 3072" % (s(sT0), s(sT0)))
    store_o(PB, R_OB)
    asm("s_waitcnt vmcnt(2)")
    for r in range(1, 8):
        for k in range(4):
            asm("v_add_f32 %s, %s, %s" % (v(S + k), v(S + k), v(S + 4 * r + k)))
    asm("v_cvt_pk_bf16_f32 %s, %s, %s" % (v(vT), v(S), v(S + 1)))
    asm("v_cvt_pk_bf16_f32 %s, %s, %s" % (v(vT + 1), v(S + 2), v(S + 3)))
    asm("s_lshr_b32 %s, %s, 1" % (s(sT0), s(sW)))
    asm("s_lshl_b32 %s, %s, 10" % (s(sT0), s(sT0)))
    asm("s_and_b32 %s, %s, 1" % (s(sT1), s(sW)))
    asm("s_lshl_b32 %s, %s, 3" % (s(sT1), s(sT1)))
    asm("s_add_u32 %s, %s, %s" % (s(sT0), s(sT0), s(sT1)))
    asm("s_add_u32 %s, %s, %d" % (s(sT0), s(sT0), L_KVT))
    asm("v_add_u32 %s, %s, %s" % (v(vU), s(sT0), v(vLin)))
    asm("ds_write_b64 %s, %s" % (v(vU), v(vT, 2)))
    asm("s_waitcnt lgkmcnt(0)")
    asm("s_branch %s_join" % N)
    asm.label("%s_hiwaves" % N)
    asm("s_nop 7"); asm("s_nop 3")
    normalize(PB, False)
    store_o(PB, R_OB)
    asm.label("%s_join" % N)
    asm("s_barrier")
    st(8)
    asm("v_add_u32 %s, 0x%x, %s" % (v(vU), L_KVT, v(vLin)))
    asm("ds_read_b128 %s, %s" % (v(F[0], 4), v(vU)))
    asm("ds_read_b128 %s, %s offset:1024" % (v(F[0] + 4, 4), v(vU)))
    asm("s_waitcnt vmcnt(2) lgkmcnt(0)")
    asm("v_mfma_f32_32x32x16_bf16 %s, %s, %s, 0" % (v(O, 16), v(F[0], 4), v(Q, 4)))
    asm("v_mfma_f32_32x32x16_bf16 %s, %s, %s, %s" % (v(O, 16), v(F[0] + 4, 4), v(Q + 4, 4), v(O, 16)))
    sF3 = 69
    asm("s_lshl_b32 %s, %s, 5" % (s(sF3), s(sRB2)))
    asm("s_add_u32 %s, %s, %s" % (s(sF3), s(sF3), s(sHH)))
    asm("s_lshl_b32 %s, %s, 3" % (s(sF3), s(sF3)))
    asm("s_add_u32 %s, %s, %d" % (s(sF3), s(sF3), F3))
    asm("s_add_u32 %s, %s, %d" % (s(sT1), s(sF3), 8 * 256))
    asm("s_waitcnt vmcnt(0)")
    release()
    lds_arrive(W_CNT3B, 8, vT + 6, vT + 4, s(sT1))
    asm("s_nop 3")
    normalize(PB, True)
    store_o(PB, R_OA)
    asm("s_waitcnt vmcnt(0)")
    release()
    lds_arrive(W_CNT3A, 8, vT + 6, vT + 4, s(sF3))
    st(9)
    asm("s_cmp_ge_u32 %s, 4" % s(sW))
    asm("s_cbranch_scc1 %s_fin" % N)
    OF = 0; ACC3 = 160; WF = [200, 220]
    vOM, vOR, vWm, vWm2, vWr, vWr2 = 245, 246, 247, 248, 249, 250
    p3L, p3T, p3U, p3X = 251, 252, 253, 254
    vDW3 = 240
    sTB3, sOffO3, sOM = 44, 45, 46
    SOUT = SB_
    decode3()
    asm("s_load_dwordx2 s[4:5], s[0:1], 48")
    asm("s_lshl_b32 %s, %s, 2" % (s(sTB3), s(sRB3)))
    asm("s_add_u32 %s, %s, %s" % (s(sTB3), s(sTB3), s(sW)))
    lane(p3L)
    asm("v_lshlrev_b32 %s, 3, %s" % (v(p3X), v(p3L)))
    asm("s_lshl_b32 %s, %s, 3" % (s(sT0), s(sBR3)))
    asm("s_lshr_b32 %s, %s, 1" % (s(sT1), s(sRB3)))
    asm("s_add_u32 %s, %s, %s" % (s(sT0), s(sT0), s(sT1)))
    asm("s_lshl_b32 %s, %s, 8" % (s(sT0), s(sT0)))
    asm("s_add_u32 %s, %s, %d" % (s(sPL), s(sT0), F3))
    asm("v_lshrrev_b32 %s, 4, %s" % (v(p3T), v(p3L)))
    asm("v_and_b32 %s, 15, %s" % (v(p3U), v(p3L)))
    asm("v_lshrrev_b32 %s, 1, %s" % (v(vWm2), v(p3T)))
    asm("v_mul_u32_u24 %s, 1280, %s" % (v(vOM), v(vWm2)))
    asm("v_and_b32 %s, 1, %s" % (v(vWm2), v(p3T)))
    asm("v_lshl_add_u32 %s, %s, 9, %s" % (v(vOM), v(vWm2), v(vOM)))
    asm("v_lshl_add_u32 %s, %s, 4, %s" % (v(vOM), v(p3U), v(vOM)))
    asm("v_mul_u32_u24 %s, 1280, %s" % (v(vOR), v(p3T)))
    asm("v_lshl_add_u32 %s, %s, 3, %s" % (v(vOR), v(p3U), v(vOR)))
    asm("v_add_u32 %s, 1024, %s" % (v(vOR), v(vOR)))
    asm("v_bfe_u32 %s, %s, 2, 2" % (v(p3U), v(p3L)))
    asm("v_lshrrev_b32 %s, 1, %s" % (v(vWm2), v(p3T)))
    asm("v_mul_u32_u24 %s, 20, %s" % (v(vWm), v(vWm2)))
    asm("v_and_b32 %s, 1, %s" % (v(vWm2), v(p3T)))
    asm("v_lshl_add_u32 %s, %s, 2, %s" % (v(vWm), v(vWm2), v(vWm)))
    asm("v_add_u32 %s, %s, %s" % (v(vWm), v(vWm), v(p3U)))
    asm("v_mul_u32_u24 %s, 160, %s" % (v(vWm), v(vWm)))
    asm("v_mul_u32_u24 %s, 20, %s" % (v(vWr), v(p3T)))
    asm("v_add_u32 %s, %s, %s" % (v(vWr), v(vWr), v(p3U)))
    asm("v_add_u32 %s, 16, %s" % (v(vWr), v(vWr)))
    asm("v_mul_u32_u24 %s, 160, %s" % (v(vWr), v(vWr)))
    asm("v_and_b32 %s, 3, %s" % (v(vWm2), v(p3L)))
    asm("v_lshl_add_u32 %s, %s, 3, %s" % (v(vWm), v(vWm2), v(vWm)))
    asm("v_lshl_add_u32 %s, %s, 3, %s" % (v(vWr), v(vWm2), v(vWr)))
    asm("v_add_u32 %s, 51200, %s" % (v(vWm2), v(vWm)))
    asm("v_add_u32 %s, 51200, %s" % (v(vWr2), v(vWr)))
    asm("s_mul_i32 %s, %s, %d" % (s(sOffO3), s(sBR3), REG))
    asm("s_add_u32 %s, %s, %d" % (s(sOffO3), s(sOffO3), R_OA))
    asm("s_mul_i32 %s, %s, 40960" % (s(sT0), s(sTB3)))
    asm("s_add_u32 %s, %s, %s" % (s(sOffO3), s(sOffO3), s(sT0)))
    asm("s_waitcnt lgkmcnt(0)")
    srd(asm, SOUT, "s4", "s5", 2048 * 2560)
    asm("s_cmp_lg_u32 %s, 0" % s(sW))
    asm("s_cbranch_scc1 %s_p3w" % N)
    poll(s(sPL), 32, vDW3, p3X)
    lds_set(W_S3, vDW3, vDW3 + 1)
    asm("s_branch %s_p3go" % N)
    asm.label("%s_p3w" % N)
    lds_wait(W_S3, vDW3, vDW3 + 1)
    asm.label("%s_p3go" % N)
    st(10)
    asm("s_mov_b32 %s, %s" % (s(sOM), s(sOffO3)))
    for sidx in range(16):
        for rt in range(2):
            asm("buffer_load_dwordx4 %s, %s, %s, %s offen offset:%d sc1" % (v(OF + (sidx * 2 + rt) * 4, 4), v(vOM), s(SWS, 4), s(sOM), rt * 256))
        asm("s_add_u32 %s, %s, 2560" % (s(sOM), s(sOM)))
    for a_ in range(4):
        for half in range(2):
            asm("s_add_u32 %s, %s, %d" % (s(sT0), s(sOffO3), a_ * 8 * 1280 + half * 5120))
            for rt in range(2):
                asm("buffer_load_dwordx2 %s, %s, %s, %s offen offset:%d sc1" % (v(OF + ((16 + a_) * 2 + rt) * 4 + 2 * half, 2), v(vOR), s(SWS, 4), s(sT0), rt * 128))
    def wreads(step, dst):
        ops = []
        for ct in range(5):
            for a_ in range(2):
                if step < 16:
                    base = vWm if step < 8 else vWm2
                    off = (step & 7) * 6400 + a_ * 1280 + ct * 32
                else:
                    ap = step - 16
                    base = vWr if ap < 2 else vWr2
                    off = (ap & 1) * 25600 + a_ * 12800 + ct * 32
                ops.append(lambda ct=ct, a_=a_, base=base, off=off: asm("ds_read_b64_tr_b16 %s, %s offset:%d" % (v(dst + 4 * ct + 2 * a_, 2), v(base), off)))
        return ops
    for f in wreads(0, WF[0]): f()
    for sidx in range(20):
        cur = WF[sidx & 1]
        nxt_ops = wreads(sidx + 1, WF[(sidx + 1) & 1]) if sidx < 19 else []
        vm = 48 - 2 * (sidx + 1) if sidx < 16 else 16 - 4 * (sidx - 15)
        asm("s_waitcnt vmcnt(%d) lgkmcnt(0)" % vm)
        m = 0
        for ct in range(5):
            for rt in range(2):
                acc = v(ACC3 + (rt * 5 + ct) * 4, 4)
                c = "0" if sidx == 0 else acc
                asm("v_mfma_f32_16x16x32_bf16 %s, %s, %s, %s" % (acc, v(cur + 4 * ct, 4), v(OF + (sidx * 2 + rt) * 4, 4), c))
                if m < 5 and nxt_ops:
                    nxt_ops[2 * m](); nxt_ops[2 * m + 1]()
                m += 1
    st(11)
    asm("v_and_b32 %s, 15, %s" % (v(p3U), v(p3L)))
    asm("v_mul_u32_u24 %s, 160, %s" % (v(p3U), v(p3U)))
    asm("v_lshrrev_b32 %s, 4, %s" % (v(p3T), v(p3L)))
    asm("v_lshl_add_u32 %s, %s, 3, %s" % (v(p3U), v(p3T), v(p3U)))
    asm("s_mul_i32 %s, %s, 5120" % (s(sT0), s(sW)))
    asm("s_add_u32 %s, %s, %d" % (s(sT0), s(sT0), L_OUT))
    asm("v_add_u32 %s, %s, %s" % (v(p3U), s(sT0), v(p3U)))
    asm("v_lshlrev_b32 %s, 4, %s" % (v(p3X), v(p3L)))
    asm("v_add_u32 %s, %s, %s" % (v(p3X), s(sT0), v(p3X)))
    asm("s_nop 3")
    for rt in range(2):
        for ct in range(5):
            b = ACC3 + (rt * 5 + ct) * 4
            t = OF + (rt * 5 + ct) * 2
            asm("v_cvt_pk_bf16_f32 %s, %s, %s" % (v(t), v(b), v(b + 1)))
            asm("v_cvt_pk_bf16_f32 %s, %s, %s" % (v(t + 1), v(b + 2), v(b + 3)))
            asm("ds_write_b64 %s, %s offset:%d" % (v(p3U), v(t, 2), rt * 2560 + ct * 32))
    asm("s_movk_i32 %s, 6554" % s(sT2))
    asm("s_movk_i32 %s, 2560" % s(sT3))
    for b in range(5):
        asm("v_add_u32 %s, %d, %s" % (v(p3T), 64 * b, v(p3L)))
        asm("v_mul_lo_u32 %s, %s, %s" % (v(vWm), v(p3T), s(sT2)))
        asm("v_lshrrev_b32 %s, 16, %s" % (v(vWm), v(vWm)))
        asm("v_mul_u32_u24 %s, 10, %s" % (v(vWr), v(vWm)))
        asm("v_sub_u32 %s, %s, %s" % (v(p3T), v(p3T), v(vWr)))
        asm("v_lshlrev_b32 %s, 4, %s" % (v(p3T), v(p3T)))
        asm("v_mad_u32_u24 %s, %s, %s, %s" % (v(vDW3 + b), v(vWm), s(sT3), v(p3T)))
    asm("s_mul_i32 %s, %s, %d" % (s(sT0), s(sTB3), 32 * 2560))
    asm("s_mul_i32 %s, %s, 1280" % (s(sT1), s(sBR3)))
    asm("s_add_u32 %s, %s, %s" % (s(sT0), s(sT0), s(sT1)))
    asm("s_mul_i32 %s, %s, 160" % (s(sT1), s(sCB3)))
    asm("s_add_u32 %s, %s, %s" % (s(sT0), s(sT0), s(sT1)))
    asm("s_waitcnt lgkmcnt(0)")
    for b in range(5):
        asm("ds_read_b128 %s, %s offset:%d" % (v(32 + 4 * b, 4), v(p3X), b * 1024))
    for b in range(5):
        asm("s_waitcnt lgkmcnt(%d)" % (4 - b))
        asm("buffer_store_dwordx4 %s, %s, %s, %s offen" % (v(32 + 4 * b, 4), v(vDW3 + b), s(SOUT, 4), s(sT0)))
    asm.label("%s_fin" % N)
    if stamp:
        asm("s_waitcnt vmcnt(0)")
        st(12)
        asm("s_waitcnt lgkmcnt(0)")
        asm("s_load_dwordx2 s[4:5], s[0:1], 64")
        asm("s_waitcnt lgkmcnt(0)")
        asm("s_add_u32 s4, s4, %d" % R_STAMP)
        asm("s_addc_u32 s5, s5, 0")
        srd(asm, SA_, "s4", "s5", 1 << 20)
        asm("s_lshl_b32 %s, s2, 3" % s(sT0))
        asm("s_add_u32 %s, %s, %s" % (s(sT0), s(sT0), s(sW)))
        asm("s_lshl_b32 %s, %s, 7" % (s(sT0), s(sT0)))
        asm("v_mov_b32 v1, %s" % s(sT0))
        for i in range(13):
            asm("v_mov_b32 v2, %s" % s(STB + 2 * i))
            asm("v_mov_b32 v3, %s" % s(STB + 2 * i + 1))
            asm("buffer_store_dwordx2 v[2:3], v1, %s, 0 offen offset:%d" % (s(SA_, 4), 8 * i))
            asm("s_nop 1")
    asm.label("%s_end" % N)
    asm("s_endpgm")
    return dict(name=N, vgpr=256, sgpr=100, grid=256, block=512, lds=LDS_BYTES)
HEADER = open("concat_heads__linear_attn_block__sliding_block__prompt.s.ref").read().split("; Override")[0]
def build(stamp=False, opts=None):
    body = A()
    i = gen(body, stamp=stamp, opts=opts)
    out = HEADER
    out += "; @launch grid=(%d,1,1) block=(%d,1,1) lds=%d\n" % (i["grid"], i["block"], i["lds"])
    out += '.amdgcn_target "amdgcn-amd-amdhsa--gfx950"\n.text\n'
    out += body.text()
    d = A()
    d('.section .rodata,"a"')
    kernel_desc(d, i["name"], i["vgpr"], i["sgpr"])
    out += d.text()
    return out
if __name__ == "__main__":
    import sys
    opts = {}
    for a_ in sys.argv[3:]:
        k, val = a_.split("="); opts[k] = int(val)
    open(sys.argv[1], "w").write(build(stamp=(len(sys.argv) > 2 and sys.argv[2] == "stamp"), opts=opts))
```

```python
from asmlib import *
import math
REG = 2621440
R_QA, R_KA, R_VA, R_QB, R_KB, R_VB, R_OA, R_OB, R_KVP, R_FLG = [i * REG for i in range(10)]
F1 = R_FLG
F2 = R_FLG + 16384
F3 = R_FLG + 24576
WS_REC = R_FLG + 65536
R_STAMP = 10 * REG
LOG2E = 1.4426950408889634
QSCALE = LOG2E / math.sqrt(20.0)
BIG = -1.0e30
OOB = 0x40000000
L_WO, L_K, L_V, L_KVT = 0, 102400, 135168, 155648
L_OUT = L_K
L_SYNC = 157696
W_CNT1, W_S1, W_S1A, W_S2, W_CNT3B, W_CNT3A, W_S3, W_ISS, W_KV = [L_SYNC + 4 * i for i in range(9)]
LDS_BYTES = 157696 + 64
SPIN_MAX = 0x40000
NAME = "concat_heads__linear_attn_block__sliding_block__prompt_kernel"
class G:
    pass
def gen(asm, stamp=False, name=NAME, opts=None):
    opts = opts or {}
    N = name
    D1 = opts.get("d1", 0)
    SC = " sc1" if D1 else ""
    LSC3 = "" if opts.get("plain3") else " sc1"
    sW = 3
    SWS, SDBG = 8, 12
    sNON = 16
    sT0, sT1, sT2, sT3 = 18, 19, 20, 21
    sCNT, sPL = 22, 23
    SA_, SB_ = 24, 28
    sMASK = 32
    sPC = 34
    STB = 72
    sP8, sSLOT, sLOCAL, sXCC = 70, 71, 98, 99
    def st(k):
        if stamp:
            asm("s_memrealtime %s" % s(STB + 2 * k, 2))
    def lane(dst):
        asm("v_mbcnt_lo_u32_b32 %s, -1, 0" % v(dst))
        asm("v_mbcnt_hi_u32_b32 %s, -1, %s" % (v(dst), v(dst)))
    uid = [0]
    def lab(p):
        uid[0] += 1
        return "%s_%s%d" % (N, p, uid[0])
    def sync_issue(vd, vo):
        lane(vo)
        asm("s_lshl_b32 %s, %s, 3" % (s(sT0), s(sP8)))
        asm("s_add_u32 %s, %s, 64" % (s(sT0), s(sT0)))
        asm("v_cmp_eq_u32 vcc, 1, %s" % v(vo))
        asm("v_mov_b32 %s, %s" % (v(vd), s(sT0)))
        asm("v_mov_b32 %s, 0" % v(vo))
        asm("v_cndmask_b32 %s, %s, %s, vcc" % (v(vo), v(vo), v(vd)))
        asm("buffer_load_dwordx2 %s, %s, %s, 0 offen sc1" % (v(vd, 2), v(vo), s(SDBG, 4)))
    def get_sync(vd, vo, preissued=False):
        L, D = lab("non"), lab("nond")
        if not preissued: sync_issue(vd, vo)
        asm("s_mov_b32 %s, 0" % s(sCNT))
        asm.label(L)
        asm("s_waitcnt vmcnt(0)")
        asm("v_readlane_b32 %s, %s, 0" % (s(sNON), v(vd)))
        asm("v_readlane_b32 %s, %s, 0" % (s(sNON + 1), v(vd + 1)))
        asm("v_readlane_b32 %s, %s, 1" % (s(sPC), v(vd)))
        asm("v_readlane_b32 %s, %s, 1" % (s(sPC + 1), v(vd + 1)))
        asm("s_add_u32 %s, %s, 1" % (s(sCNT), s(sCNT)))
        asm("s_nop 2")
        asm("s_cmp_lg_u32 %s, 0" % s(sNON))
        asm("s_cbranch_scc1 %s" % D)
        asm("s_cmp_ge_u32 %s, 0x%x" % (s(sCNT), SPIN_MAX))
        asm("s_cbranch_scc1 %s" % D)
        asm("s_sleep 4")
        asm("buffer_load_dwordx2 %s, %s, %s, 0 offen sc1" % (v(vd, 2), v(vo), s(SDBG, 4)))
        asm("s_branch %s" % L)
        asm.label(D)
        asm("s_lshl_b32 %s, %s, 3" % (s(sT0), s(sXCC)))
        asm("s_lshl_b64 %s, 32, %s" % (s(sMASK, 2), s(sT0)))
        asm("s_cmp_eq_u64 %s, %s" % (s(sMASK, 2), s(sPC, 2)))
        asm("s_cselect_b32 %s, 1, 0" % s(sLOCAL))
        if opts.get("nolocal"): asm("s_mov_b32 %s, 0" % s(sLOCAL))
    def release():
        if D1: return
        D = lab("rel")
        asm("s_cmp_lg_u32 %s, 0" % s(sLOCAL))
        asm("s_cbranch_scc1 %s" % D)
        asm("buffer_wbl2 sc1")
        asm("s_waitcnt vmcnt(0)")
        asm.label(D)
    def lds_set(word, va, vd):
        asm("v_mov_b32 %s, 0x%x" % (v(va), word))
        asm("v_mov_b32 %s, 1" % v(vd))
        asm("ds_write_b32 %s, %s" % (v(va), v(vd)))
    def lds_wait(word, va, vd, atleast=1):
        L, D = lab("lw"), lab("lwd")
        asm("v_mov_b32 %s, 0x%x" % (v(va), word))
        asm("s_mov_b32 %s, 0" % s(sCNT))
        asm.label(L)
        asm("ds_read_b32 %s, %s" % (v(vd), v(va)))
        asm("s_waitcnt lgkmcnt(0)")
        asm("v_readfirstlane_b32 %s, %s" % (s(sT0), v(vd)))
        asm("s_add_u32 %s, %s, 1" % (s(sCNT), s(sCNT)))
        asm("s_nop 2")
        asm("s_cmp_ge_u32 %s, %d" % (s(sT0), atleast))
        asm("s_cbranch_scc1 %s" % D)
        asm("s_cmp_ge_u32 %s, 0x%x" % (s(sCNT), SPIN_MAX * 8))
        asm("s_cbranch_scc1 %s" % D)
        asm("s_sleep 1")
        asm("s_branch %s" % L)
        asm.label(D)
    def lds_arrive(word, n, va, vd, soff, replicas=1):
        D = lab("arr")
        asm("v_mov_b32 %s, 0x%x" % (v(va), word))
        asm("v_mov_b32 %s, 1" % v(vd))
        asm("s_mov_b64 exec, 1")
        asm("ds_add_rtn_u32 %s, %s, %s" % (v(vd), v(va), v(vd)))
        asm("s_waitcnt lgkmcnt(0)")
        asm("s_mov_b64 exec, -1")
        asm("v_readfirstlane_b32 %s, %s" % (s(sCNT), v(vd)))
        asm("s_nop 3")
        asm("s_cmp_lg_u32 %s, %d" % (s(sCNT), n - 1))
        asm("s_cbranch_scc1 %s" % D)
        flag_store(soff, vd, va, replicas)
        asm.label(D)
    def poll_issue(soff, vd, vo, n):
        asm("s_mov_b32 exec_lo, 0x%x" % ((1 << n) - 1))
        asm("s_mov_b32 exec_hi, 0")
        asm("buffer_load_dwordx2 %s, %s, %s, %s offen sc1" % (v(vd, 2), v(vo), s(SWS, 4), soff))
        asm("s_mov_b64 exec, -1")
    def poll(soff, n, vd, vo, preissued=False, lo=0, smask=None):
        L, D = lab("poll"), lab("polld")
        m = ((1 << n) - 1) & ~((1 << lo) - 1)
        asm("s_mov_b32 %s, %s" % (s(sMASK), smask if smask else "0x%x" % (m & 0xffffffff)))
        asm("s_mov_b32 %s, 0x%x" % (s(sMASK + 1), m >> 32))
        if not preissued: poll_issue(soff, vd, vo, n)
        asm("s_mov_b32 %s, 0" % s(sCNT))
        asm.label(L)
        asm("s_waitcnt vmcnt(0)")
        asm("v_cmp_eq_u32 vcc, %s, %s" % (s(sNON), v(vd)))
        asm("v_cmp_eq_u32 %s, %s, %s" % (s(sPC, 2), s(sNON + 1), v(vd + 1)))
        asm("s_add_u32 %s, %s, 1" % (s(sCNT), s(sCNT)))
        asm("s_nop 3")
        asm("s_and_b64 %s, %s, vcc" % (s(sPC, 2), s(sPC, 2)))
        asm("s_and_b64 %s, %s, %s" % (s(sPC, 2), s(sPC, 2), s(sMASK, 2)))
        asm("s_cmp_eq_u64 %s, %s" % (s(sPC, 2), s(sMASK, 2)))
        asm("s_cbranch_scc1 %s" % D)
        asm("s_cmp_ge_u32 %s, 0x%x" % (s(sCNT), SPIN_MAX))
        asm("s_cbranch_scc1 %s" % D)
        asm("s_sleep %d" % opts.get("sleep", 3))
        poll_issue(soff, vd, vo, n)
        asm("s_branch %s" % L)
        asm.label(D)
    def flag_store(soff, vd, vo, replicas=1):
        if replicas > 1:
            lane(vo)
            asm("v_lshlrev_b32 %s, 11, %s" % (v(vo), v(vo)))
        else:
            asm("v_mov_b32 %s, 0" % v(vo))
        asm("v_mov_b32 %s, %s" % (v(vd), s(sNON)))
        asm("v_mov_b32 %s, %s" % (v(vd + 1), s(sNON + 1)))
        asm("s_mov_b64 exec, %d" % ((1 << replicas) - 1 if replicas <= 6 else -1) if replicas <= 6 else "s_mov_b32 exec_lo, 0x%x\n    s_mov_b32 exec_hi, 0" % ((1 << replicas) - 1))
        asm("buffer_store_dwordx2 %s, %s, %s, %s offen sc1" % (v(vd, 2), v(vo), s(SWS, 4), soff))
        asm("s_mov_b64 exec, -1")
    kernel_header(asm, N)
    asm("s_cmp_ge_u32 s2, 256")
    asm("s_cbranch_scc1 %s_end" % N)
    if stamp:
        for i in range(26): asm("s_mov_b32 %s, 0" % s(STB + i))
    st(0)
    asm("s_load_dwordx4 s[4:7], s[0:1], 56")
    asm("s_load_dwordx4 s[36:39], s[0:1], 0")
    asm("s_load_dwordx4 s[40:43], s[0:1], 24")
    asm("v_lshrrev_b32 v1, 6, v0")
    asm("s_nop 0")
    asm("v_readfirstlane_b32 %s, v1" % s(sW))
    sBR, sRB, sCB, sPART, sCBP, sW4, sWM, sWN = 44, 45, 46, 47, 48, 49, 50, 51
    asm("s_and_b32 %s, s2, 7" % s(sP8))
    asm("s_lshr_b32 %s, s2, 3" % s(sSLOT))
    asm("s_getreg_b32 %s, hwreg(HW_REG_XCC_ID, 0, 4)" % s(sXCC))
    asm("s_and_b32 %s, %s, 7" % (s(sXCC), s(sXCC)))
    if not D1:
        asm("s_cmp_ge_u32 %s, 15" % s(sSLOT))
        asm("s_cselect_b32 %s, 1, 0" % s(sBR))
        asm("s_cselect_b32 %s, 15, 0" % s(sT0))
        asm("s_sub_u32 %s, %s, %s" % (s(sCB), s(sSLOT), s(sT0)))
        asm("s_mov_b32 %s, %s" % (s(sRB), s(sP8)))
    else:
        asm("s_lshr_b32 %s, %s, 2" % (s(sBR), s(sP8)))
        asm("s_and_b32 %s, %s, 3" % (s(sT0), s(sP8)))
        asm("s_mul_i32 %s, %s, 30" % (s(sT0), s(sT0)))
        asm("s_add_u32 %s, %s, %s" % (s(sT0), s(sT0), s(sSLOT)))
        asm("s_cmp_ge_u32 %s, 60" % s(sT0))
        asm("s_cselect_b32 %s, 4, 0" % s(sT1))
        asm("s_cselect_b32 %s, 60, 0" % s(sT2))
        asm("s_sub_u32 %s, %s, %s" % (s(sT0), s(sT0), s(sT2)))
        asm("s_lshr_b32 %s, %s, 2" % (s(sCB), s(sT0)))
        asm("s_and_b32 %s, %s, 3" % (s(sT0), s(sT0)))
        asm("s_add_u32 %s, %s, %s" % (s(sRB), s(sT1), s(sT0)))
    asm("s_cmp_ge_u32 %s, 5" % s(sCB))
    asm("s_cselect_b32 %s, 1, 0" % s(sPART))
    asm("s_cmp_ge_u32 %s, 10" % s(sCB))
    asm("s_cselect_b32 %s, 2, %s" % (s(sPART), s(sPART)))
    asm("s_mul_i32 %s, %s, 5" % (s(sT0), s(sPART)))
    asm("s_sub_u32 %s, %s, %s" % (s(sCBP), s(sCB), s(sT0)))
    asm("s_and_b32 %s, %s, 3" % (s(sW4), s(sW)))
    asm("s_lshr_b32 %s, %s, 1" % (s(sWM), s(sW4)))
    asm("s_and_b32 %s, %s, 1" % (s(sWN), s(sW4)))
    asm("s_waitcnt lgkmcnt(0)")
    if opts.get("wsoff"):
        asm("s_add_u32 s6, s6, 0x%x" % (opts["wsoff"] << 20))
        asm("s_addc_u32 s7, s7, 0")
    srd(asm, SWS, "s6", "s7", WS_REC)
    srd(asm, SDBG, "s4", "s5", 256)
    asm("s_cmp_ge_u32 %s, 4" % s(sW))
    asm("s_cbranch_scc1 %s_p1h" % N)
    ACC = 0; FX = [128, 144]; FW = [160, 168]
    vXA, vWA = 176, 180
    vL, vT, vU, vV = 194, 195, 196, 197
    vSO = 198; TMP = 200; TE = 216; vN = 220
    sSTG, sDELTA, sRBUF, sNEG = 52, 53, 54, 55
    sTN, sGG, sSO = 56, 57, 58
    sC0, sC1 = 60, 62
    asm("s_or_b32 %s, s2, %s" % (s(sT0), s(sW)))
    asm("s_cmp_lg_u32 %s, 0" % s(sT0))
    asm("s_cbranch_scc1 %s_nonon" % N)
    asm("s_memrealtime %s" % s(sNON, 2))
    asm("s_waitcnt lgkmcnt(0)")
    asm("s_or_b32 %s, %s, 1" % (s(sNON), s(sNON)))
    asm("v_mov_b32 v2, %s" % s(sNON))
    asm("v_mov_b32 v3, %s" % s(sNON + 1))
    asm("v_mov_b32 v4, 0")
    asm("s_mov_b64 exec, 1")
    asm("buffer_store_dwordx2 v[2:3], v4, %s, 0 offen sc1" % s(SDBG, 4))
    asm("s_mov_b64 exec, -1")
    asm.label("%s_nonon" % N)
    asm("s_cmp_lg_u32 %s, 0" % s(sW))
    asm("s_cbranch_scc1 %s_noinit" % N)
    asm("s_lshl_b32 %s, %s, 3" % (s(sT0), s(sXCC)))
    asm("s_lshl_b64 s[4:5], 1, %s" % s(sT0))
    asm("s_lshl_b32 %s, %s, 3" % (s(sT0), s(sP8)))
    asm("s_add_u32 %s, %s, 64" % (s(sT0), s(sT0)))
    asm("v_mov_b32 v2, s4")
    asm("v_mov_b32 v3, s5")
    asm("v_mov_b32 v4, %s" % s(sT0))
    if not D1:
        asm("s_mov_b64 exec, 1")
        asm("buffer_atomic_add_x2 v[2:3], v4, %s, 0 offen" % s(SDBG, 4))
        asm("s_mov_b64 exec, -1")
    lane(5)
    asm("v_lshlrev_b32 v5, 2, v5")
    asm("v_add_u32 v5, 0x%x, v5" % L_SYNC)
    asm("v_mov_b32 v6, 0")
    asm("s_mov_b32 exec_lo, 0xffff")
    asm("s_mov_b32 exec_hi, 0")
    asm("ds_write_b32 v5, v6")
    asm("s_mov_b64 exec, -1")
    asm("s_waitcnt lgkmcnt(0)")
    asm.label("%s_noinit" % N)
    asm("s_cmp_ge_u32 %s, 30" % s(sSLOT))
    asm("s_cbranch_scc1 %s_p2c" % N)
    lane(vL)
    asm.c("X frag read addr")
    asm("v_and_b32 %s, 31, %s" % (v(vT), v(vL)))
    asm("s_lshl_b32 %s, %s, 7" % (s(sT0), s(sWM)))
    asm("v_add_u32 %s, %s, %s" % (v(vU), s(sT0), v(vT)))
    asm("v_lshlrev_b32 %s, 7, %s" % (v(vU), v(vU)))
    asm("v_bfe_u32 %s, %s, 1, 3" % (v(vT), v(vT)))
    asm("v_lshrrev_b32 %s, 5, %s" % (v(vV), v(vL)))
    for ks in range(4):
        asm("v_add_u32 %s, %d, %s" % (v(TMP), 2 * ks, v(vV)))
        asm("v_xor_b32 %s, %s, %s" % (v(TMP), v(TMP), v(vT)))
        asm("v_lshl_add_u32 %s, %s, 4, %s" % (v(vXA + ks), v(TMP), v(vU)))
    asm.c("W frag read addr")
    asm("v_bfe_u32 %s, %s, 2, 2" % (v(vT), v(vL)))
    asm("v_lshrrev_b32 %s, 5, %s" % (v(vU), v(vL)))
    asm("v_lshl_add_u32 %s, %s, 3, %s" % (v(vU), v(vU), v(vT)))
    asm("v_lshlrev_b32 %s, 8, %s" % (v(vU), v(vU)))
    asm("v_add_u32 %s, 32768, %s" % (v(vU), v(vU)))
    asm("v_and_b32 %s, 1, %s" % (v(vV), v(vL)))
    asm("v_lshl_add_u32 %s, %s, 3, %s" % (v(vU), v(vV), v(vU)))
    asm("v_bfe_u32 %s, %s, 4, 1" % (v(vV), v(vL)))
    asm("v_lshlrev_b32 %s, 1, %s" % (v(vV), v(vV)))
    asm("v_bfe_u32 %s, %s, 1, 1" % (v(TMP), v(vL)))
    asm("v_add_u32 %s, %s, %s" % (v(vV), v(vV), v(TMP)))
    asm("s_lshl_b32 %s, %s, 3" % (s(sT0), s(sWN)))
    asm("v_add_u32 %s, %s, %s" % (v(vV), s(sT0), v(vV)))
    asm("v_lshlrev_b32 %s, 2, %s" % (v(vT), v(vT)))
    for tn in range(2):
        asm("v_add_u32 %s, %d, %s" % (v(TMP), 4 * tn, v(vV)))
        asm("v_xor_b32 %s, %s, %s" % (v(TMP), v(TMP), v(vT)))
        asm("v_lshl_add_u32 %s, %s, 4, %s" % (v(vWA + tn), v(TMP), v(vU)))
    for i in range(128):
        asm("v_mov_b32 %s, 0" % v(ACC + i))
    asm("s_mul_i32 %s, %s, 3" % (s(sT0), s(sBR)))
    asm("s_add_u32 %s, %s, %s" % (s(sT0), s(sT0), s(sPART)))
    asm("s_mul_i32 %s, %s, %d" % (s(sT0), s(sT0), REG))
    asm("s_add_u32 s6, s6, %s" % s(sT0))
    asm("s_addc_u32 s7, s7, 0")
    SO = SA_
    srd(asm, SO, "s6", "s7", REG)
    def rdX(st_, tm, ks):
        asm("ds_read_b128 %s, %s offset:%d" % (v(FX[st_] + 4 * tm, 4), v(vXA + ks), tm * 4096))
    def rdW(st_, tn, a_, ks):
        asm("ds_read_b64_tr_b16 %s, %s offset:%d" % (v(FW[st_] + 4 * tn + 2 * a_, 2), v(vWA + tn), ks * 4096 + a_ * 1024))
    def reads(st_, ks):
        return [lambda: rdW(st_, 0, 0, ks), lambda: rdW(st_, 0, 1, ks), lambda: rdX(st_, 0, ks), lambda: rdX(st_, 1, ks),
                lambda: rdW(st_, 1, 0, ks), lambda: rdW(st_, 1, 1, ks), lambda: rdX(st_, 2, ks), lambda: rdX(st_, 3, ks)]
    MORD = [(0, 0), (1, 0), (0, 1), (1, 1), (2, 0), (2, 1), (3, 0), (3, 1)]
    def mfma(orient, st_, tm, tn):
        acc = v(ACC + (tm * 2 + tn) * 16, 16)
        x = v(FX[st_] + 4 * tm, 4); w = v(FW[st_] + 4 * tn, 4)
        if orient == "T": asm("v_mfma_f32_32x32x16_bf16 %s, %s, %s, %s" % (acc, w, x, acc))
        else: asm("v_mfma_f32_32x32x16_bf16 %s, %s, %s, %s" % (acc, x, w, acc))
    asm("s_mov_b32 %s, 0" % s(sSTG))
    asm("s_mov_b32 %s, 0" % s(sRBUF))
    asm("s_mov_b32 %s, 0x%x" % (s(sNEG), (-2 * 49152) & 0xffffffff))
    asm("s_barrier")
    st(1)
    for f in reads(0, 0): f()
    asm("s_cmp_eq_u32 %s, 0" % s(sPART))
    asm("s_cbranch_scc1 %s_loopT" % N)
    asm("s_add_u32 %s, %s, %s" % (s(sT0), s(sBR), s(sBR)))
    asm("s_add_u32 %s, %s, %s" % (s(sT0), s(sT0), s(sPART)))
    asm("s_cmp_eq_u32 %s, 3" % s(sT0))
    asm("s_cbranch_scc0 %s_loopF" % N)
    def loop(orient):
        L = "%s_loop%s" % (N, orient)
        asm(".p2align 4")
        asm.label(L)
        for ks in range(4):
            st_ = ks & 1; nst_ = st_ ^ 1
            asm("s_waitcnt lgkmcnt(0)")
            if ks < 3:
                rs = reads(nst_, ks + 1)
                for m in range(8):
                    mfma(orient, st_, *MORD[m])
                    if m < 4:
                        rs[2 * m](); rs[2 * m + 1]()
                    if ks == 2 and m == 4:
                        asm("s_add_u32 %s, %s, 1" % (s(sRBUF), s(sRBUF)))
                        asm("s_cmp_eq_u32 %s, 3" % s(sRBUF))
                        asm("s_cselect_b32 %s, 0, %s" % (s(sRBUF), s(sRBUF)))
                        asm("s_cselect_b32 %s, %s, 49152" % (s(sDELTA), s(sNEG)))
                    if ks == 2 and m == 5:
                        for k in range(3): asm("v_add_u32 %s, %s, %s" % (v(vXA + k), s(sDELTA), v(vXA + k)))
                    if ks == 2 and m == 6:
                        asm("v_add_u32 %s, %s, %s" % (v(vXA + 3), s(sDELTA), v(vXA + 3)))
                        for k in range(2): asm("v_add_u32 %s, %s, %s" % (v(vWA + k), s(sDELTA), v(vWA + k)))
                    if ks == 2 and m == 7:
                        asm("s_add_u32 %s, %s, 1" % (s(sSTG), s(sSTG)))
            else:
                mfma(orient, st_, *MORD[0])
                mfma(orient, st_, *MORD[1])
                asm("s_barrier")
                rs = reads(nst_, 0)
                mfma(orient, st_, *MORD[2])
                rs[0](); rs[1](); rs[2]()
                mfma(orient, st_, *MORD[3])
                rs[3](); rs[4](); rs[5]()
                mfma(orient, st_, *MORD[4])
                rs[6](); rs[7]()
                mfma(orient, st_, *MORD[5])
                mfma(orient, st_, *MORD[6])
                asm("s_cmp_lt_u32 %s, 10" % s(sSTG))
                mfma(orient, st_, *MORD[7])
        asm("s_cbranch_scc1 %s" % L)
        asm("s_branch %s_epi%s" % (N, orient))
    loop("T")
    loop("F")
    asm.label("%s_epiT" % N)
    asm("s_lshl_b32 %s, %s, 3" % (s(sT0), s(sRB)))
    asm("s_lshl_b32 %s, %s, 2" % (s(sT1), s(sWM)))
    asm("s_add_u32 %s, %s, %s" % (s(sT0), s(sT0), s(sT1)))
    asm("s_mul_i32 %s, %s, 40" % (s(sT0), s(sT0)))
    asm("s_lshl_b32 %s, %s, 3" % (s(sT1), s(sCBP)))
    asm("s_add_u32 %s, %s, %s" % (s(sT0), s(sT0), s(sT1)))
    asm("s_lshl_b32 %s, %s, 2" % (s(sT1), s(sWN)))
    asm("s_add_u32 %s, %s, %s" % (s(sT0), s(sT0), s(sT1)))
    asm("s_lshl_b32 %s, %s, 10" % (s(sT0), s(sT0)))
    asm("v_lshlrev_b32 %s, 4, %s" % (v(vSO), v(vL)))
    asm("v_add_u32 %s, %s, %s" % (v(vSO), s(sT0), v(vSO)))
    asm("s_movk_i32 %s, 2048" % s(sTN))
    asm("s_movk_i32 %s, 1024" % s(sGG))
    asm("s_branch %s_epi" % N)
    asm.label("%s_epiF" % N)
    asm("s_lshl_b32 %s, %s, 3" % (s(sT0), s(sRB)))
    asm("s_lshl_b32 %s, %s, 2" % (s(sT1), s(sWM)))
    asm("s_add_u32 %s, %s, %s" % (s(sT0), s(sT0), s(sT1)))
    asm("s_mul_i32 %s, %s, 40960" % (s(sT0), s(sT0)))
    asm("s_lshl_b32 %s, %s, 11" % (s(sT1), s(sCBP)))
    asm("s_add_u32 %s, %s, %s" % (s(sT0), s(sT0), s(sT1)))
    asm("s_lshl_b32 %s, %s, 10" % (s(sT1), s(sWN)))
    asm("s_add_u32 %s, %s, %s" % (s(sT0), s(sT0), s(sT1)))
    asm("v_lshrrev_b32 %s, 5, %s" % (v(vT), v(vL)))
    asm("v_mul_u32_u24 %s, 10240, %s" % (v(vT), v(vT)))
    asm("v_and_b32 %s, 31, %s" % (v(vU), v(vL)))
    asm("v_lshl_add_u32 %s, %s, 4, %s" % (v(vSO), v(vU), v(vT)))
    asm("v_add_u32 %s, %s, %s" % (v(vSO), s(sT0), v(vSO)))
    asm("s_movk_i32 %s, 512" % s(sTN))
    asm("s_movk_i32 %s, 20480" % s(sGG))
    asm.label("%s_epi" % N)
    st(2)
    sync_issue(vN, vN + 2)
    asm("s_lshl_b32 %s, %s, 2" % (s(sT0), s(sBR)))
    asm("s_add_u32 %s, %s, %s" % (s(sT0), s(sT0), s(sPART)))
    asm("s_cmp_lt_u32 %s, 2" % s(sT0))
    asm("s_cbranch_scc1 %s_phi" % N)
    asm("s_cmp_eq_u32 %s, 4" % s(sT0))
    asm("s_cselect_b32 %s, %s, 1.0" % (s(sC0), fhex(QSCALE)))
    asm("s_mov_b32 %s, %s" % (s(sC0 + 1), s(sC0)))
    def store_tile(tm, tn, tset, sc):
        for gg in range(2):
            if gg == 0:
                asm("s_mul_i32 %s, %s, %d" % (s(sSO), s(sTN), tn))
                if tm: asm("s_add_u32 %s, %s, %d" % (s(sSO), s(sSO), tm * 40960))
            else:
                asm("s_add_u32 %s, %s, %s" % (s(sSO), s(sSO), s(sGG)))
            asm("buffer_store_dwordx4 %s, %s, %s, %s offen%s" % (v(TMP + 8 * tset + 4 * gg, 4), v(vSO), s(SO, 4), s(sSO), sc))
    def plain_epi(sc, scale):
        cnt = 0
        for tm in range(4):
            for tn in range(2):
                b = ACC + (tm * 2 + tn) * 16
                ts = cnt & 1; cnt += 1
                if scale:
                    for p in range(8):
                        asm("v_pk_mul_f32 %s, %s, %s" % (v(b + 2 * p, 2), v(b + 2 * p, 2), s(sC0, 2)))
                for p in range(8):
                    asm("v_cvt_pk_bf16_f32 %s, %s, %s" % (v(TMP + 8 * ts + p), v(b + 2 * p), v(b + 2 * p + 1)))
                store_tile(tm, tn, ts, sc)
    asm("s_cmp_ge_u32 %s, 5" % s(sT0))
    asm("s_cbranch_scc1 %s_epikv" % N)
    asm("s_nop 7")
    plain_epi(SC, True)
    asm("s_branch %s_fin1" % N)
    asm.label("%s_epikv" % N)
    asm("s_nop 7")
    plain_epi(" sc1", False)
    asm("s_branch %s_fin1" % N)
    asm.label("%s_phi" % N)
    asm("s_mov_b32 %s, %s" % (s(sC0), fhex(LOG2E)))
    asm("s_mov_b32 %s, %s" % (s(sC0 + 1), fhex(LOG2E)))
    asm("s_mov_b32 %s, %s" % (s(sC1), fhex(1e-6)))
    asm("s_nop 7")
    cnt = 0
    for tm in range(4):
        for tn in range(2):
            b = ACC + (tm * 2 + tn) * 16
            ts = cnt & 1; cnt += 1
            for q in range(4):
                r0 = b + 4 * q
                asm("v_pk_mul_f32 %s, %s, %s" % (v(TE, 2), v(r0, 2), s(sC0, 2)))
                asm("v_pk_mul_f32 %s, %s, %s" % (v(TE + 2, 2), v(r0 + 2, 2), s(sC0, 2)))
                for k in range(4): asm("v_exp_f32_e64 %s, %s clamp" % (v(TE + k), v(TE + k)))
                for k in range(4): asm("v_max_f32 %s, %s, %s" % (v(r0 + k), s(sC1), v(r0 + k)))
                asm("v_pk_add_f32 %s, %s, %s" % (v(r0, 2), v(r0, 2), v(TE, 2)))
                asm("v_pk_add_f32 %s, %s, %s" % (v(r0 + 2, 2), v(r0 + 2, 2), v(TE + 2, 2)))
                asm("v_cvt_pk_bf16_f32 %s, %s, %s" % (v(TMP + 8 * ts + 2 * q), v(r0), v(r0 + 1)))
                asm("v_cvt_pk_bf16_f32 %s, %s, %s" % (v(TMP + 8 * ts + 2 * q + 1), v(r0 + 2), v(r0 + 3)))
            store_tile(tm, tn, ts, SC)
    asm.label("%s_fin1" % N)
    asm("v_mov_b32 %s, 0x%x" % (v(vT), W_ISS))
    asm("v_mov_b32 %s, 1" % v(vU))
    asm("s_mov_b64 exec, 1")
    asm("ds_add_u32 %s, %s" % (v(vT), v(vU)))
    asm("s_mov_b64 exec, -1")
    st(3)
    get_sync(vN, vN + 2, preissued=True)
    release()
    asm("s_lshl_b32 %s, %s, 3" % (s(sT1), s(sBR)))
    asm("s_add_u32 %s, %s, %s" % (s(sT1), s(sT1), s(sRB)))
    asm("s_lshl_b32 %s, %s, 4" % (s(sT1), s(sT1)))
    asm("s_add_u32 %s, %s, %s" % (s(sT1), s(sT1), s(sCB)))
    asm("s_lshl_b32 %s, %s, 3" % (s(sT1), s(sT1)))
    asm("s_add_u32 %s, %s, %d" % (s(sT1), s(sT1), F1))
    lds_arrive(W_CNT1, 4, vN + 2, vN, s(sT1), replicas=8)
    st(4)
    asm("s_branch %s_p2common" % N)
    asm.label("%s_p2c" % N)
    asm("s_barrier")
    get_sync(220, 222)
    asm("s_branch %s_p2common" % N)

    asm.label("%s_p1h" % N)
    hL, hT, hU, hV = 2, 3, 4, 5
    vDX, vDW, hTMP = 8, 16, 20
    sXOFF, sWOFF, sM0X, sM0W, sDBUF, sHS = 52, 53, 54, 55, 56, 57
    SX, SWD = SA_, SB_
    asm("s_cmp_lt_u32 %s, 30" % s(sSLOT))
    asm("s_cbranch_scc1 %s_p1h2" % N)
    asm("s_barrier")
    asm("s_branch %s_p2h" % N)
    asm.label("%s_p1h2" % N)
    lane(hL)
    asm("v_lshrrev_b32 %s, 3, %s" % (v(hT), v(hL)))
    asm("s_lshl_b32 %s, %s, 6" % (s(sT0), s(sW4)))
    asm("v_add_u32 %s, %s, %s" % (v(hT), s(sT0), v(hT)))
    asm("s_movk_i32 %s, 1280" % s(sT1))
    asm("v_mul_lo_u32 %s, %s, %s" % (v(hT), v(hT), s(sT1)))
    asm("v_lshrrev_b32 %s, 4, %s" % (v(hU), v(hL)))
    asm("v_and_b32 %s, 7, %s" % (v(hV), v(hL)))
    for par in range(2):
        if par == 1: asm("v_add_u32 %s, 4, %s" % (v(hU), v(hU)))
        asm("v_xor_b32 %s, %s, %s" % (v(hTMP + par), v(hV), v(hU)))
        asm("v_lshl_add_u32 %s, %s, 4, %s" % (v(hTMP + par), v(hTMP + par), v(hT)))
    for i in range(8):
        asm("v_add_u32 %s, %d, %s" % (v(vDX + i), i * 8 * 1280 - (i & 3) * 1024, v(hTMP + (i & 1))))
    asm("v_lshrrev_b32 %s, 4, %s" % (v(hU), v(hL)))
    asm("s_lshl_b32 %s, %s, 4" % (s(sT0), s(sW4)))
    asm("v_add_u32 %s, %s, %s" % (v(hT), s(sT0), v(hU)))
    asm("s_movk_i32 %s, 3840" % s(sT1))
    asm("v_mul_lo_u32 %s, %s, %s" % (v(hT), v(hT), s(sT1)))
    asm("v_lshlrev_b32 %s, 2, %s" % (v(hU), v(hU)))
    asm("v_and_b32 %s, 15, %s" % (v(hV), v(hL)))
    asm("v_xor_b32 %s, %s, %s" % (v(hV), v(hV), v(hU)))
    asm("v_lshl_add_u32 %s, %s, 4, %s" % (v(hT), v(hV), v(hT)))
    for i in range(4):
        asm("v_add_u32 %s, %d, %s" % (v(vDW + i), i * 4 * 3840 - i * 1024, v(hT)))
    asm("s_cmp_eq_u32 %s, 0" % s(sBR))
    asm("s_cselect_b32 s36, s36, s40")
    asm("s_cselect_b32 s37, s37, s41")
    asm("s_cselect_b32 s38, s38, s42")
    asm("s_cselect_b32 s39, s39, s43")
    asm("s_mul_i32 %s, %s, %d" % (s(sT0), s(sRB), 256 * 1280))
    asm("s_add_u32 s36, s36, %s" % s(sT0))
    asm("s_addc_u32 s37, s37, 0")
    asm("s_lshl_b32 %s, %s, 8" % (s(sT0), s(sCB)))
    asm("s_add_u32 s38, s38, %s" % s(sT0))
    asm("s_addc_u32 s39, s39, 0")
    asm("s_sub_u32 %s, %d, %s" % (s(sT1), 640 * 3840, s(sT0)))
    srd(asm, SX, "s36", "s37", 256 * 1280)
    srd(asm, SWD, "s38", "s39", s(sT1))
    def dma_stage():
        asm("s_lshl_b32 %s, %s, 13" % (s(sT0), s(sW4)))
        asm("s_add_u32 %s, %s, %s" % (s(sM0X), s(sDBUF), s(sT0)))
        asm("s_lshl_b32 %s, %s, 12" % (s(sT0), s(sW4)))
        asm("s_add_u32 %s, %s, %s" % (s(sT0), s(sT0), s(sDBUF)))
        asm("s_add_u32 %s, %s, 32768" % (s(sM0W), s(sT0)))
        for idx in range(8):
            if idx == 0:
                asm("s_mov_b32 m0, %s" % s(sM0X)); asm("s_nop 0")
            if idx == 4:
                asm("s_add_u32 m0, %s, 4096" % s(sM0X)); asm("s_nop 0")
            asm("buffer_load_dwordx4 %s, %s, %s offen offset:%d lds" % (v(vDX + idx), s(SX, 4), s(sXOFF), (idx & 3) * 1024))
        asm("s_mov_b32 m0, %s" % s(sM0W)); asm("s_nop 0")
        for j in range(4):
            asm("buffer_load_dwordx4 %s, %s, %s offen offset:%d lds" % (v(vDW + j), s(SWD, 4), s(sWOFF), j * 1024))
        asm("s_add_u32 %s, %s, 128" % (s(sXOFF), s(sXOFF)))
        asm("s_add_u32 %s, %s, %d" % (s(sWOFF), s(sWOFF), 64 * 3840))
        asm("s_add_u32 %s, %s, 49152" % (s(sDBUF), s(sDBUF)))
        asm("s_cmp_ge_u32 %s, %d" % (s(sDBUF), 3 * 49152))
        asm("s_cselect_b32 %s, 0, %s" % (s(sDBUF), s(sDBUF)))
    WARM = opts.get("warm", 3)
    if WARM:
        asm("s_load_dwordx2 s[4:5], s[0:1], 16")
        asm("s_load_dwordx2 s[6:7], s[0:1], 40")
        asm("s_lshl_b32 s58, %s, 2" % s(sSLOT))
        asm("s_add_u32 s58, s58, %s" % s(sW4))
        asm("s_mul_i32 s58, s58, %d" % (54 * 128))
        asm("v_lshlrev_b32 v6, 7, %s" % v(hL))
    asm("s_mov_b32 %s, 0" % s(sXOFF))
    asm("s_mov_b32 %s, 0" % s(sWOFF))
    asm("s_mov_b32 %s, 0" % s(sDBUF))
    asm("s_mov_b32 %s, 0" % s(sHS))
    pro = opts.get("pro", 2)
    Lp = "%s_hpro" % N
    asm.label(Lp)
    dma_stage()
    asm("s_add_u32 %s, %s, 1" % (s(sHS), s(sHS)))
    asm("s_cmp_eq_u32 %s, %d" % (s(sHS), pro))
    asm("s_cbranch_scc0 %s_hpro_n" % N)
    st(3)
    asm("s_waitcnt vmcnt(%d)" % (12 * (pro - 1)))
    st(1)
    asm("s_barrier")
    asm.label("%s_hpro_n" % N)
    asm("s_cmp_lt_u32 %s, 3" % s(sHS))
    asm("s_cbranch_scc1 %s" % Lp)
    asm("s_mov_b32 %s, 0" % s(sHS))
    Lh = "%s_hloop" % N
    asm.label(Lh)
    asm("s_cmp_lt_u32 %s, 8" % s(sHS))
    asm("s_cbranch_scc1 %s_hw12" % N)
    asm("s_waitcnt vmcnt(0)")
    asm("s_branch %s_hw" % N)
    asm.label("%s_hw12" % N)
    asm("s_waitcnt vmcnt(12)")
    asm.label("%s_hw" % N)
    asm("s_barrier")
    asm("s_cmp_lt_u32 %s, 7" % s(sHS))
    asm("s_cbranch_scc0 %s_hnodma" % N)
    dma_stage()
    if WARM:
        asm("s_cmp_eq_u32 %s, %d" % (s(sHS), WARM - 1))
        asm("s_cbranch_scc0 %s_hnodma" % N)
        asm("s_waitcnt lgkmcnt(0)")
        asm("s_cmp_lt_u32 %s, 4" % s(sP8))
        asm("s_cselect_b32 s4, s4, s6")
        asm("s_cselect_b32 s5, s5, s7")
        srd(asm, 60, "s4", "s5", 640 * 1280)
        asm("s_mov_b32 exec_lo, -1")
        asm("s_mov_b32 exec_hi, 0x3fffff")
        asm("buffer_load_dword v7, v6, s[60:63], s58 offen")
        asm("s_mov_b64 exec, -1")
    asm.label("%s_hnodma" % N)
    asm("s_add_u32 %s, %s, 1" % (s(sHS), s(sHS)))
    asm("s_cmp_lt_u32 %s, 10" % s(sHS))
    asm("s_cbranch_scc1 %s" % Lh)
    asm.label("%s_p2h" % N)
    st(2)
    sBR3, sRB3, sCB3 = 64, 65, 66
    def decode3():
        if not D1:
            asm("s_lshr_b32 %s, %s, 4" % (s(sBR3), s(sSLOT)))
            asm("s_bfe_u32 %s, %s, 0x10003" % (s(sRB3), s(sSLOT)))
            asm("s_lshl_b32 %s, %s, 1" % (s(sT0), s(sP8)))
            asm("s_add_u32 %s, %s, %s" % (s(sRB3), s(sRB3), s(sT0)))
            asm("s_and_b32 %s, %s, 7" % (s(sCB3), s(sSLOT)))
        else:
            asm("s_lshr_b32 %s, %s, 2" % (s(sBR3), s(sP8)))
            asm("s_and_b32 %s, %s, 3" % (s(sT0), s(sP8)))
            asm("s_lshl_b32 %s, %s, 2" % (s(sT0), s(sT0)))
            asm("s_lshr_b32 %s, %s, 3" % (s(sRB3), s(sSLOT)))
            asm("s_add_u32 %s, %s, %s" % (s(sRB3), s(sRB3), s(sT0)))
            asm("s_and_b32 %s, %s, 7" % (s(sCB3), s(sSLOT)))
    get_sync(220, 222)
    sHH, sRB2, sG0, sDQ, sTB, sNT = 44, 45, 46, 47, 48, 49
    sMSK, sM40 = 50, 52
    sP = 54
    sQM = 54
    sOffO, sOffQA, sBIG, sEPS = 62, 63, 67, 68
    def decode2():
        if not D1:
            asm("s_mov_b32 %s, %s" % (s(sHH), s(sSLOT)))
            asm("s_mov_b32 %s, %s" % (s(sRB2), s(sP8)))
        else:
            asm("s_lshl_b32 %s, %s, 2" % (s(sT0), s(sP8)))
            asm("s_and_b32 %s, %s, 3" % (s(sHH), s(sSLOT)))
            asm("s_add_u32 %s, %s, %s" % (s(sHH), s(sHH), s(sT0)))
            asm("s_lshr_b32 %s, %s, 2" % (s(sRB2), s(sSLOT)))
        asm("s_mul_i32 %s, %s, 5" % (s(sT0), s(sHH)))
        asm("s_lshr_b32 %s, %s, 2" % (s(sG0), s(sT0)))
        asm("s_and_b32 %s, %s, 3" % (s(sDQ), s(sT0)))
        asm("s_lshl_b32 %s, %s, 3" % (s(sTB), s(sRB2)))
        asm("s_add_u32 %s, %s, %s" % (s(sTB), s(sTB), s(sW)))
        asm("s_add_u32 %s, %s, 1" % (s(sNT), s(sTB)))
        asm("s_min_u32 %s, %s, 9" % (s(sNT), s(sNT)))
        asm("s_mov_b32 %s, 0x000fffff" % s(sMSK)); asm("s_mov_b32 %s, 0x000fffff" % s(sMSK + 1))
    S = 0; O = 144; Q = 160; F = [168, 176]; CM8 = 184; CM0 = 200; VF = [184, 192]
    vM, vNM = 216, 218
    vT = 220
    vLin, vKa, vVa, vL = 228, 229, 230, 231
    vOm, vOr, vFo, vU = 232, 233, 234, 235
    PB = 236
    vL8 = 242
    decode2()
    lane(vL)
    asm("v_lshlrev_b32 %s, 3, %s" % (v(vL8), v(vL)))
    asm("v_lshlrev_b32 %s, 4, %s" % (v(vLin), v(vL)))
    def q_loads():
        asm("s_mul_i32 %s, %s, 40" % (s(sT2), s(sTB)))
        asm("s_add_u32 %s, %s, %s" % (s(sT2), s(sT2), s(sG0)))
        asm("s_lshl_b32 %s, %s, 10" % (s(sT2), s(sT2)))
        asm("s_add_u32 %s, %s, %d" % (s(sT3), s(sT2), R_QB))
        asm("buffer_load_dwordx4 %s, %s, %s, %s offen sc1" % (v(Q, 4), v(vLin), s(SWS, 4), s(sT3)))
        asm("buffer_load_dwordx4 %s, %s, %s, %s offen offset:1024 sc1" % (v(Q + 4, 4), v(vLin), s(SWS, 4), s(sT3)))
        asm("s_add_u32 %s, %s, %d" % (s(sOffQA), s(sT2), R_QA))
    AW = 4
    def own_tile_wait():
        D = lab("otw")
        asm("s_cmp_ge_u32 %s, 30" % s(sSLOT))
        asm("s_cbranch_scc1 %s" % D)
        lds_wait(W_CNT1, vT, vT + 1, atleast=4)
        asm.label(D)
    asm("s_cmp_eq_u32 %s, %d" % (s(sW), AW))
    asm("s_cbranch_scc1 %s_aearly" % N)
    asm("s_cmp_eq_u32 %s, 5" % s(sW))
    asm("s_cbranch_scc1 %s_nowo" % N)
    vDWO = 243
    sDA, sDM = 4, 5
    SWO = SA_
    decode3()
    asm("s_load_dwordx2 s[4:5], s[0:1], 16")
    asm("s_load_dwordx2 s[6:7], s[0:1], 40")
    asm("s_movk_i32 %s, 6554" % s(sT2))
    asm("s_movk_i32 %s, 1280" % s(sT3))
    for b in range(5):
        asm("v_add_u32 %s, %d, %s" % (v(vT), 64 * b, v(vL)))
        asm("v_mul_lo_u32 %s, %s, %s" % (v(vT + 1), v(vT), s(sT2)))
        asm("v_lshrrev_b32 %s, 16, %s" % (v(vT + 1), v(vT + 1)))
        asm("v_mul_u32_u24 %s, 10, %s" % (v(vT + 2), v(vT + 1)))
        asm("v_sub_u32 %s, %s, %s" % (v(vT), v(vT), v(vT + 2)))
        asm("v_lshlrev_b32 %s, 4, %s" % (v(vT), v(vT)))
        asm("v_mad_u32_u24 %s, %s, %s, %s" % (v(vDWO + b), v(vT + 1), s(sT3), v(vT)))
        if 0 < b < 4: asm("v_subrev_u32 %s, %d, %s" % (v(vDWO + b), b * 1024, v(vDWO + b)))
    asm("s_waitcnt lgkmcnt(0)")
    asm("s_cmp_eq_u32 %s, 0" % s(sBR3))
    asm("s_cselect_b32 s4, s4, s6")
    asm("s_cselect_b32 s5, s5, s7")
    asm("s_mul_i32 %s, %s, 160" % (s(sT0), s(sCB3)))
    asm("s_add_u32 s4, s4, %s" % s(sT0))
    asm("s_addc_u32 s5, s5, 0")
    asm("s_sub_u32 %s, %d, %s" % (s(sT1), 640 * 1280, s(sT0)))
    srd(asm, SWO, "s4", "s5", s(sT1))
    asm("s_and_b32 %s, %s, 1" % (s(sT0), s(sW)))
    asm("s_mul_i32 %s, %s, %d" % (s(sDA), s(sT0), 32 * 1280))
    asm("s_mul_i32 %s, %s, 5120" % (s(sDM), s(sT0)))
    def wo_group():
        asm("s_mov_b32 m0, %s" % s(sDM)); asm("s_nop 0")
        asm("buffer_load_dwordx4 %s, %s, %s offen lds" % (v(vDWO), s(SWO, 4), s(sDA)))
        for b in range(1, 4):
            asm("buffer_load_dwordx4 %s, %s, %s offen offset:%d lds" % (v(vDWO + b), s(SWO, 4), s(sDA), b * 1024))
        asm("s_add_u32 m0, %s, 4096" % s(sDM)); asm("s_nop 0")
        asm("buffer_load_dwordx4 %s, %s, %s offen lds" % (v(vDWO + 4), s(SWO, 4), s(sDA)))
        asm("s_add_u32 %s, %s, %d" % (s(sDA), s(sDA), 2 * 32 * 1280))
        asm("s_add_u32 %s, %s, %d" % (s(sDM), s(sDM), 2 * 5120))
    asm("s_cmp_ge_u32 %s, 30" % s(sSLOT))
    asm("s_cbranch_scc1 %s_wogo" % N)
    lds_wait(W_ISS, vT, vT + 1, atleast=4)
    asm.label("%s_wogo" % N)
    asm("s_mov_b32 s6, 0")
    asm.label("%s_woloop" % N)
    wo_group()
    asm("s_add_u32 s6, s6, 1")
    asm("s_cmp_lt_u32 s6, 10")
    asm("s_cbranch_scc1 %s_woloop" % N)
    lds_wait(W_S1, vT, vT + 1)
    asm("s_waitcnt vmcnt(30)")
    asm("s_branch %s_kv_go" % N)
    asm.label("%s_nowo" % N)
    own_tile_wait()
    asm("s_add_u32 %s, %s, 7" % (s(sT0), s(sRB2)))
    asm("s_lshl_b32 %s, %s, 7" % (s(sT0), s(sT0)))
    asm("s_lshl_b32 %s, %s, 11" % (s(sT1), s(sP8)))
    asm("s_add_u32 %s, %s, %s" % (s(sT0), s(sT0), s(sT1)))
    asm("s_add_u32 %s, %s, %d" % (s(sPL), s(sT0), F1))
    asm("s_cmp_eq_u32 %s, 0" % s(sRB2))
    asm("s_cselect_b32 %s, 0, 0x7fe0" % s(sT1))
    asm("s_or_b32 %s, %s, 0x7fff0000" % (s(sT1), s(sT1)))
    poll(s(sPL), 32, vT, vL8, smask=s(sT1))
    lds_set(W_S1, vT, vT + 1)
    asm.label("%s_kv_go" % N)
    st(4)
    asm("v_cmp_le_u32 vcc, 20, %s" % v(vL))
    asm("v_mov_b32 %s, 0" % v(vT))
    asm("v_mov_b32 %s, %d" % (v(vT + 1), 10240 - 320))
    asm("v_cndmask_b32 %s, %s, %s, vcc" % (v(vT), v(vT), v(vT + 1)))
    asm("v_add_u32 %s, %s, %s" % (v(vFo), v(vT), v(vLin)))
    asm("s_mov_b32 %s, -1" % s(sM40)); asm("s_mov_b32 %s, 0xff" % s(sM40 + 1))
    sTK, sKO, sVO, sLK, sLV, sIk, sIe = 54, 55, 56, 57, 58, 59, 60
    asm("s_sub_u32 %s, %s, 5" % (s(sIk), s(sW)))
    asm("s_mul_i32 %s, %s, 5" % (s(sIk), s(sIk)))
    asm("s_add_u32 %s, %s, 5" % (s(sIe), s(sIk)))
    asm("s_cmp_eq_u32 %s, 7" % s(sW))
    asm("s_cselect_b32 %s, 16, %s" % (s(sIe), s(sIe)))
    asm("s_cmp_eq_u32 %s, 0" % s(sRB2))
    asm("s_cselect_b32 %s, 8, 0" % s(sT0))
    asm("s_max_u32 %s, %s, %s" % (s(sIk), s(sIk), s(sT0)))
    asm.label("%s_kvloop" % N)
    asm("s_cmp_ge_u32 %s, %s" % (s(sIk), s(sIe)))
    asm("s_cbranch_scc1 %s_p2rest" % N)
    asm("s_lshl_b32 %s, %s, 3" % (s(sTK), s(sRB2)))
    asm("s_add_u32 %s, %s, %s" % (s(sTK), s(sTK), s(sIk)))
    asm("s_sub_u32 %s, %s, 8" % (s(sTK), s(sTK)))
    asm("s_mul_i32 %s, %s, 40" % (s(sKO), s(sTK)))
    asm("s_add_u32 %s, %s, %s" % (s(sKO), s(sKO), s(sG0)))
    asm("s_lshl_b32 %s, %s, 10" % (s(sKO), s(sKO)))
    asm("s_add_u32 %s, %s, %d" % (s(sKO), s(sKO), R_KB))
    asm("s_mul_i32 %s, %s, 40960" % (s(sVO), s(sTK)))
    asm("s_mul_i32 %s, %s, 320" % (s(sT1), s(sHH)))
    asm("s_add_u32 %s, %s, %s" % (s(sVO), s(sVO), s(sT1)))
    asm("s_add_u32 %s, %s, %d" % (s(sVO), s(sVO), R_VB))
    asm("s_lshl_b32 %s, %s, 11" % (s(sLK), s(sIk)))
    asm("s_add_u32 m0, %s, %d" % (s(sLK), L_K))
    asm("s_mul_i32 %s, %s, 1280" % (s(sLV), s(sIk)))
    asm("buffer_load_dwordx4 %s, %s, %s offen sc1 lds" % (v(vLin), s(SWS, 4), s(sKO)))
    asm("buffer_load_dwordx4 %s, %s, %s offen offset:1024 sc1 lds" % (v(vLin), s(SWS, 4), s(sKO)))
    asm("s_add_u32 m0, %s, %d" % (s(sLV), L_V))
    asm("s_mov_b64 exec, %s" % s(sM40, 2))
    asm("buffer_load_dwordx4 %s, %s, %s offen sc1 lds" % (v(vFo), s(SWS, 4), s(sVO)))
    asm("s_add_u32 %s, %s, %d" % (s(sT1), s(sVO), 20480 - 640))
    asm("buffer_load_dwordx4 %s, %s, %s offen offset:640 sc1 lds" % (v(vFo), s(SWS, 4), s(sT1)))
    asm("s_mov_b64 exec, -1")
    asm("s_add_u32 %s, %s, 1" % (s(sIk), s(sIk)))
    asm("s_branch %s_kvloop" % N)
    asm.label("%s_aearly" % N)
    asm("v_lshrrev_b32 %s, 5, %s" % (v(vT), v(vL)))
    asm("v_mul_u32_u24 %s, 10240, %s" % (v(vT), v(vT)))
    asm("v_and_b32 %s, 31, %s" % (v(vU), v(vL)))
    asm("v_lshl_add_u32 %s, %s, 4, %s" % (v(vFo), v(vU), v(vT)))
    own_tile_wait()
    asm("s_lshl_b32 %s, %s, 7" % (s(sT0), s(sRB2)))
    asm("s_lshl_b32 %s, %s, 11" % (s(sT1), s(sP8)))
    asm("s_add_u32 %s, %s, %s" % (s(sT0), s(sT0), s(sT1)))
    asm("s_add_u32 %s, %s, %d" % (s(sPL), s(sT0), F1))
    asm("v_mov_b32 %s, 0x3f803f80" % v(vT + 2))
    for r in range(64, 128): asm("v_mov_b32 %s, %s" % (v(r), v(vT + 2)))
    poll(s(sPL), 15, vT, vL8)
    lds_set(W_S1A, vT, vT + 1)
    st(4)
    asm("s_lshl_b32 %s, %s, 3" % (s(sT0), s(sRB2)))
    asm("s_mul_i32 %s, %s, 40960" % (s(sT0), s(sT0)))
    asm("s_mul_i32 %s, %s, 320" % (s(sT1), s(sHH)))
    asm("s_add_u32 %s, %s, %s" % (s(sT0), s(sT0), s(sT1)))
    asm("s_add_u32 %s, %s, %d" % (s(sT1), s(sT0), R_KA))
    asm("s_add_u32 %s, %s, %d" % (s(sT2), s(sT0), R_VA))
    asm("s_mov_b64 exec, %s" % s(sMSK, 2))
    for b in range(8):
        for m in range(2):
            asm("buffer_load_dwordx4 %s, %s, %s, %s offen sc1" % (v((b * 2 + m) * 4, 4), v(vFo), s(SWS, 4), s(sT1)))
            asm("buffer_load_dwordx4 %s, %s, %s, %s offen sc1" % (v(64 + (b * 2 + m) * 4, 4), v(vFo), s(SWS, 4), s(sT2)))
            asm("s_add_u32 %s, %s, 20480" % (s(sT1), s(sT1)))
            asm("s_add_u32 %s, %s, 20480" % (s(sT2), s(sT2)))
    asm("s_mov_b64 exec, -1")
    lds_wait(W_S1, vT, vT + 1)
    q_loads()
    for b in range(16):
        asm("s_waitcnt vmcnt(%d)" % (32 - 2 * b))
        c = "0" if b == 0 else v(O, 16)
        asm("v_mfma_f32_32x32x16_bf16 %s, %s, %s, %s" % (v(O, 16), v(b * 4, 4), v(64 + b * 4, 4), c))
    asm("s_lshl_b32 %s, %s, 3" % (s(sT0), s(sHH)))
    asm("s_add_u32 %s, %s, %s" % (s(sT0), s(sT0), s(sRB2)))
    asm("s_mul_i32 %s, %s, 3072" % (s(sT0), s(sT0)))
    asm("s_add_u32 %s, %s, %d" % (s(sT0), s(sT0), R_KVP))
    asm("s_nop 7"); asm("s_nop 1")
    for j in range(3):
        asm("buffer_store_dwordx4 %s, %s, %s, %s offen offset:%d sc1" % (v(O + 4 * j, 4), v(vLin), s(SWS, 4), s(sT0), j * 1024))
    asm("s_branch %s_p2rest2" % N)
    asm.label("%s_p2common" % N)
    decode2()
    lane(vL)
    asm("v_lshlrev_b32 %s, 3, %s" % (v(vL8), v(vL)))
    asm("v_lshlrev_b32 %s, 4, %s" % (v(vLin), v(vL)))
    lds_wait(W_S1, vT, vT + 1)
    asm.label("%s_p2rest" % N)
    q_loads()
    asm.label("%s_p2rest2" % N)
    asm("s_mov_b32 %s, %s" % (s(sBIG), fhex(BIG)))
    asm("v_and_b32 %s, 31, %s" % (v(vU), v(vL)))
    asm("v_lshrrev_b32 %s, 5, %s" % (v(vT + 4), v(vL)))
    asm("v_lshlrev_b32 %s, 2, %s" % (v(vT + 4), v(vT + 4)))
    asm("v_sub_u32 %s, %s, %s" % (v(vU), v(vU), v(vT + 4)))
    asm("v_mov_b32 %s, %s" % (v(vT + 5), s(sBIG)))
    asm("v_mov_b32 %s, 0" % v(vT + 6))
    for r0 in range(0, 16, 4):
        for k in range(4):
            r = r0 + k
            asm("v_cmp_le_i32 %s, %d, %s" % (s(sP + 2 * k, 2), 8 * (r >> 2) + (r & 3), v(vU)))
        asm("s_nop 1")
        for k in range(4):
            r = r0 + k
            asm("v_cndmask_b32 %s, %s, %s, %s" % (v(CM8 + r), v(vT + 5), v(vT + 6), s(sP + 2 * k, 2)))
            asm("v_cndmask_b32 %s, %s, %s, %s" % (v(CM0 + r), v(vT + 6), v(vT + 5), s(sP + 2 * k, 2)))
    asm("s_nop 3")
    for gg in range(2):
        for p in range(2):
            k = gg * 2 + p
            for h in range(2):
                asm("s_sub_u32 %s, %d, %s" % (s(sT0), 4 * gg + 2 * p + h, s(sDQ)))
                asm("s_cmp_le_u32 %s, 4" % s(sT0))
                asm("s_cselect_b32 %s, -1, 0" % s(sQM + 2 * k + h))
    asm("s_lshl_b32 %s, %s, 11" % (s(sT0), s(sW)))
    asm("s_add_u32 %s, %s, %d" % (s(sT0), s(sT0), L_K))
    asm("v_add_u32 %s, %s, %s" % (v(vKa), s(sT0), v(vLin)))
    asm("v_lshrrev_b32 %s, 5, %s" % (v(vT), v(vL)))
    asm("v_mul_u32_u24 %s, 20, %s" % (v(vT), v(vT)))
    asm("v_and_b32 %s, 31, %s" % (v(vU), v(vL)))
    asm("v_add_u32 %s, %s, %s" % (v(vT), v(vT), v(vU)))
    asm("v_lshlrev_b32 %s, 4, %s" % (v(vT), v(vT)))
    asm("s_mul_i32 %s, %s, 1280" % (s(sT0), s(sW)))
    asm("s_add_u32 %s, %s, %d" % (s(sT0), s(sT0), L_V))
    asm("v_add_u32 %s, %s, %s" % (v(vVa), s(sT0), v(vT)))
    asm("s_lshl_b32 %s, %s, 5" % (s(sT0), s(sTB)))
    asm("s_add_u32 %s, %s, %s" % (s(sT0), s(sT0), s(sHH)))
    asm("s_mul_i32 %s, %s, 1280" % (s(sOffO), s(sT0)))
    asm("v_mov_b32 %s, %s" % (v(vOm), v(vLin)))
    asm("v_add_u32 %s, 1024, %s" % (v(vOr), v(vL8)))
    asm("v_mov_b32 %s, 0x%x" % (v(vT + 4), OOB))
    asm("v_cmp_gt_u32 vcc, 32, %s" % v(vL))
    asm("s_nop 1")
    asm("v_cndmask_b32 %s, %s, %s, vcc" % (v(vOr), v(vT + 4), v(vOr)))
    asm("s_cmp_lg_u32 %s, %d" % (s(sW), AW))
    asm("s_cbranch_scc1 %s_notaw" % N)
    asm("s_waitcnt vmcnt(3) lgkmcnt(0)")
    asm("s_branch %s_kvwait" % N)
    asm.label("%s_notaw" % N)
    asm("s_waitcnt vmcnt(0) lgkmcnt(0)")
    asm("s_cmp_lt_u32 %s, 5" % s(sW))
    asm("s_cbranch_scc1 %s_kvwait" % N)
    asm("v_mov_b32 %s, 0x%x" % (v(vT), W_KV))
    asm("v_mov_b32 %s, 1" % v(vT + 1))
    asm("s_mov_b64 exec, 1")
    asm("ds_add_u32 %s, %s" % (v(vT), v(vT + 1)))
    asm("s_mov_b64 exec, -1")
    asm.label("%s_kvwait" % N)
    lds_wait(W_KV, vT, vT + 1, atleast=3)
    st(5)

    def rdK(d, dst):
        for gg in range(2):
            asm("ds_read_b128 %s, %s offset:%d" % (v(dst + 4 * gg, 4), v(vKa), (8 - d) * 2048 + gg * 1024))
    def rdV(d, dst):
        asm("s_mov_b64 exec, %s" % s(sMSK, 2))
        for m in range(2):
            asm("ds_read_b128 %s, %s offset:%d" % (v(dst + 4 * m, 4), v(vVa), (8 - d) * 1280 + m * 640))
        asm("s_mov_b64 exec, -1")
    rdK(0, F[0])
    for gg in range(2):
        for p in range(2):
            k = gg * 2 + p
            for j in range(2):
                r = Q + 4 * gg + 2 * p + j
                asm("v_cndmask_b32 %s, 0, %s, %s" % (v(r), v(r), s(sQM + 2 * k, 2)))
    def maxes(d):
        b = S + 16 * d
        if d == 0:
            asm("v_max3_f32 %s, %s, %s, %s" % (v(vM), v(b), v(b + 1), v(b + 2)))
            for k in range(3, 15, 2):
                asm("v_max3_f32 %s, %s, %s, %s" % (v(vM), v(vM), v(b + k), v(b + k + 1)))
            asm("v_max_f32 %s, %s, %s" % (v(vM), v(vM), v(b + 15)))
        else:
            for k in range(0, 16, 2):
                asm("v_max3_f32 %s, %s, %s, %s" % (v(vM), v(vM), v(b + k), v(b + k + 1)))
    for d in range(9):
        cur, nxt = F[d & 1], F[(d + 1) & 1]
        asm("s_waitcnt lgkmcnt(0)")
        if d < 8: rdK(d + 1, nxt)
        if d > 0:
            asm("s_cmp_le_u32 %s, %d" % (s(sNT), d))
            asm("s_cbranch_scc1 %s_p1skip%d" % (N, d))
        else:
            asm("s_nop 1")
        c = v(CM8, 16) if d == 0 else (v(CM0, 16) if d == 8 else "0")
        b = v(S + 16 * d, 16)
        asm("v_mfma_f32_32x32x16_bf16 %s, %s, %s, %s" % (b, v(cur, 4), v(Q, 4), c))
        asm("v_mfma_f32_32x32x16_bf16 %s, %s, %s, %s" % (b, v(cur + 4, 4), v(Q + 4, 4), b))
        if d > 0:
            asm.label("%s_p1skip%d" % (N, d))
            if d == 1: asm("s_nop 7")
            maxes(d - 1)
            asm("s_cbranch_scc1 %s_p1end" % N)
    asm("s_nop 3")
    maxes(8)
    asm.label("%s_p1end" % N)
    st(6)
    asm("s_cmp_lg_u32 %s, %d" % (s(sW), AW))
    asm("s_cbranch_scc1 %s_nosig" % N)
    asm("s_waitcnt vmcnt(0)")
    asm("s_lshl_b32 %s, %s, 4" % (s(sT0), s(sHH)))
    asm("s_add_u32 %s, %s, %s" % (s(sT0), s(sT0), s(sRB2)))
    asm("s_lshl_b32 %s, %s, 3" % (s(sT0), s(sT0)))
    asm("s_add_u32 %s, %s, %d" % (s(sT0), s(sT0), F2))
    flag_store(s(sT0), vT, vT + 2)
    asm.label("%s_nosig" % N)
    asm("s_waitcnt lgkmcnt(0)")
    asm("s_mov_b32 %s, 0x3f803f80" % s(sT0))
    for r in range(16): asm("v_mov_b32 %s, %s" % (v(VF[0] + r), s(sT0)))
    rdV(0, VF[0])
    asm("v_mov_b32 %s, %s" % (v(vT + 2), v(vM)))
    asm("v_mov_b32 %s, %s" % (v(vT + 3), v(vM)))
    asm("s_nop 1")
    asm("v_permlane32_swap_b32 %s, %s" % (v(vT + 2), v(vT + 3)))
    asm("s_nop 1")
    asm("v_max_f32 %s, %s, %s" % (v(vM), v(vT + 2), v(vT + 3)))
    asm("v_sub_f32 %s, 0, %s" % (v(vNM), v(vM)))
    asm("v_sub_f32 %s, 0, %s" % (v(vNM + 1), v(vM)))
    for d in range(9):
        cur, nxt = VF[d & 1], VF[(d + 1) & 1]
        b = S + 16 * d
        if d > 0:
            asm("s_cmp_le_u32 %s, %d" % (s(sNT), d))
            asm("s_cbranch_scc1 %s_p2end" % N)
        for k in range(8):
            asm("v_pk_add_f32 %s, %s, %s" % (v(b + 2 * k, 2), v(b + 2 * k, 2), v(vNM, 2)))
        for k in range(16):
            asm("v_exp_f32 %s, %s" % (v(b + k), v(b + k)))
        asm("s_waitcnt lgkmcnt(0)")
        if d < 8: rdV(d + 1, nxt)
        for k in range(8):
            asm("v_cvt_pk_bf16_f32 %s, %s, %s" % (v(b + k), v(b + 2 * k), v(b + 2 * k + 1)))
        asm("s_nop 1")
        asm("v_mfma_f32_32x32x16_bf16 %s, %s, %s, %s" % (v(O, 16), v(cur, 4), v(b, 4), "0" if d == 0 else v(O, 16)))
        asm("v_mfma_f32_32x32x16_bf16 %s, %s, %s, %s" % (v(O, 16), v(cur + 4, 4), v(b + 4, 4), v(O, 16)))
        if d == 0:
            lds_wait(W_S1A, vT + 4, vT + 5)
            asm("buffer_load_dwordx4 %s, %s, %s, %s offen sc1" % (v(Q, 4), v(vLin), s(SWS, 4), s(sOffQA)))
            asm("buffer_load_dwordx4 %s, %s, %s, %s offen offset:1024 sc1" % (v(Q + 4, 4), v(vLin), s(SWS, 4), s(sOffQA)))
    asm.label("%s_p2end" % N)
    st(7)
    def normalize(dst, eps):
        asm("v_mov_b32 %s, %s" % (v(vT), v(O + 8)))
        asm("v_mov_b32 %s, %s" % (v(vT + 1), v(O + 8)))
        asm("s_nop 1")
        asm("v_permlane32_swap_b32 %s, %s" % (v(vT), v(vT + 1)))
        asm("s_nop 1")
        if eps: asm("v_add_f32 %s, %s, %s" % (v(vT + 1), s(sEPS), v(vT + 1)))
        asm("v_rcp_f32 %s, %s" % (v(vT + 1), v(vT + 1)))
        asm("s_nop 0")
        for k in range(12): asm("v_mul_f32 %s, %s, %s" % (v(O + k), v(vT + 1), v(O + k)))
        for k in range(6): asm("v_cvt_pk_bf16_f32 %s, %s, %s" % (v(dst + k), v(O + 2 * k), v(O + 2 * k + 1)))
    def store_o(src, region):
        asm("s_add_u32 %s, %s, %d" % (s(sT0), s(sOffO), region))
        asm("buffer_store_dwordx4 %s, %s, %s, %s offen%s" % (v(src, 4), v(vOm), s(SWS, 4), s(sT0), SC))
        asm("buffer_store_dwordx2 %s, %s, %s, %s offen%s" % (v(src + 4, 2), v(vOr), s(SWS, 4), s(sT0), SC))
    asm("s_mov_b32 %s, %s" % (s(sEPS), fhex(1e-6)))
    asm("s_cmp_ge_u32 %s, 4" % s(sW))
    asm("s_cbranch_scc1 %s_hiwaves" % N)
    asm("s_lshl_b32 %s, %s, 7" % (s(sPL), s(sHH)))
    asm("s_add_u32 %s, %s, %d" % (s(sPL), s(sPL), F2))
    asm("s_cmp_lg_u32 %s, 0" % s(sW))
    asm("s_cbranch_scc1 %s_w123" % N)
    poll_issue(s(sPL), vT + 4, vL8, 8)
    asm("s_nop 7"); asm("s_nop 3")
    normalize(PB, False)
    poll(s(sPL), 8, vT + 4, vL8, preissued=True)
    lds_set(W_S2, vT + 4, vT + 5)
    asm("s_branch %s_w0123" % N)
    asm.label("%s_w123" % N)
    asm("s_nop 7"); asm("s_nop 3")
    normalize(PB, False)
    lds_wait(W_S2, vT + 4, vT + 5)
    asm.label("%s_w0123" % N)
    asm("s_lshl_b32 %s, %s, 1" % (s(sT0), s(sW)))
    asm("s_sub_u32 %s, %s, %s" % (s(sT0), s(sT0), s(sDQ)))
    asm("v_lshrrev_b32 %s, 5, %s" % (v(vT), v(vL)))
    asm("v_add_u32 %s, %s, %s" % (v(vT), s(sT0), v(vT)))
    asm("v_and_b32 %s, 31, %s" % (v(vT + 1), v(vL)))
    asm("v_lshlrev_b32 %s, 4, %s" % (v(vT + 1), v(vT + 1)))
    asm("v_lshl_add_u32 %s, %s, 9, %s" % (v(vT + 1), v(vT), v(vT + 1)))
    asm("v_cmp_ge_u32 vcc, 4, %s" % v(vT))
    asm("v_mov_b32 %s, 0x%x" % (v(vT + 2), OOB))
    asm("s_nop 0")
    asm("v_cndmask_b32 %s, %s, %s, vcc" % (v(vU), v(vT + 2), v(vT + 1)))
    asm("s_lshl_b32 %s, %s, 3" % (s(sT0), s(sHH)))
    asm("s_mul_i32 %s, %s, 3072" % (s(sT0), s(sT0)))
    asm("s_add_u32 %s, %s, %d" % (s(sT0), s(sT0), R_KVP))
    for r in range(8):
        asm("buffer_load_dwordx4 %s, %s, %s, %s offen sc1" % (v(S + 4 * r, 4), v(vU), s(SWS, 4), s(sT0)))
        if r < 7: asm("s_add_u32 %s, %s, 3072" % (s(sT0), s(sT0)))
    store_o(PB, R_OB)
    asm("s_waitcnt vmcnt(2)")
    for r in range(1, 8):
        for k in range(4):
            asm("v_add_f32 %s, %s, %s" % (v(S + k), v(S + k), v(S + 4 * r + k)))
    asm("v_cvt_pk_bf16_f32 %s, %s, %s" % (v(vT), v(S), v(S + 1)))
    asm("v_cvt_pk_bf16_f32 %s, %s, %s" % (v(vT + 1), v(S + 2), v(S + 3)))
    asm("s_lshr_b32 %s, %s, 1" % (s(sT0), s(sW)))
    asm("s_lshl_b32 %s, %s, 10" % (s(sT0), s(sT0)))
    asm("s_and_b32 %s, %s, 1" % (s(sT1), s(sW)))
    asm("s_lshl_b32 %s, %s, 3" % (s(sT1), s(sT1)))
    asm("s_add_u32 %s, %s, %s" % (s(sT0), s(sT0), s(sT1)))
    asm("s_add_u32 %s, %s, %d" % (s(sT0), s(sT0), L_KVT))
    asm("v_add_u32 %s, %s, %s" % (v(vU), s(sT0), v(vLin)))
    asm("ds_write_b64 %s, %s" % (v(vU), v(vT, 2)))
    asm("s_branch %s_join" % N)
    asm.label("%s_hiwaves" % N)
    asm("s_nop 7"); asm("s_nop 3")
    normalize(PB, False)
    store_o(PB, R_OB)
    asm.label("%s_join" % N)
    sF3 = 69
    asm("s_lshl_b32 %s, %s, 5" % (s(sF3), s(sRB2)))
    asm("s_add_u32 %s, %s, %s" % (s(sF3), s(sF3), s(sHH)))
    asm("s_lshl_b32 %s, %s, 3" % (s(sF3), s(sF3)))
    asm("s_add_u32 %s, %s, %d" % (s(sF3), s(sF3), F3))
    asm("s_add_u32 %s, %s, %d" % (s(sT1), s(sF3), 8 * 256))
    asm("s_waitcnt vmcnt(0) lgkmcnt(0)")
    release()
    lds_arrive(W_CNT3B, 8, vT + 6, vT + 4, s(sT1))
    asm("s_barrier")
    st(8)
    asm("v_add_u32 %s, 0x%x, %s" % (v(vU), L_KVT, v(vLin)))
    asm("ds_read_b128 %s, %s" % (v(F[0], 4), v(vU)))
    asm("ds_read_b128 %s, %s offset:1024" % (v(F[0] + 4, 4), v(vU)))
    asm("s_waitcnt lgkmcnt(0)")
    asm("v_mfma_f32_32x32x16_bf16 %s, %s, %s, 0" % (v(O, 16), v(F[0], 4), v(Q, 4)))
    asm("v_mfma_f32_32x32x16_bf16 %s, %s, %s, %s" % (v(O, 16), v(F[0] + 4, 4), v(Q + 4, 4), v(O, 16)))
    asm("s_nop 7"); asm("s_nop 3")
    normalize(PB, True)
    store_o(PB, R_OA)
    asm("s_waitcnt vmcnt(0)")
    release()
    lds_arrive(W_CNT3A, 8, vT + 6, vT + 4, s(sF3))
    st(9)
    asm("s_cmp_ge_u32 %s, 4" % s(sW))
    asm("s_cbranch_scc1 %s_fin" % N)
    OF = 0; ACC3 = 160; WF = [200, 220]
    vOM, vOR, vWm, vWm2, vWr, vWr2 = 245, 246, 247, 248, 249, 250
    p3L, p3T, p3U, p3X = 251, 252, 253, 254
    vDW3 = 240
    sTB3, sOffO3, sOM = 44, 45, 46
    SOUT = SB_
    decode3()
    asm("s_load_dwordx2 s[4:5], s[0:1], 48")
    asm("s_lshl_b32 %s, %s, 2" % (s(sTB3), s(sRB3)))
    asm("s_add_u32 %s, %s, %s" % (s(sTB3), s(sTB3), s(sW)))
    lane(p3L)
    asm("v_lshlrev_b32 %s, 3, %s" % (v(p3X), v(p3L)))
    asm("s_lshl_b32 %s, %s, 3" % (s(sT0), s(sBR3)))
    asm("s_lshr_b32 %s, %s, 1" % (s(sT1), s(sRB3)))
    asm("s_add_u32 %s, %s, %s" % (s(sT0), s(sT0), s(sT1)))
    asm("s_lshl_b32 %s, %s, 8" % (s(sT0), s(sT0)))
    asm("s_add_u32 %s, %s, %d" % (s(sPL), s(sT0), F3))
    asm("v_lshrrev_b32 %s, 4, %s" % (v(p3T), v(p3L)))
    asm("v_and_b32 %s, 15, %s" % (v(p3U), v(p3L)))
    asm("v_lshrrev_b32 %s, 1, %s" % (v(vWm2), v(p3T)))
    asm("v_mul_u32_u24 %s, 1280, %s" % (v(vOM), v(vWm2)))
    asm("v_and_b32 %s, 1, %s" % (v(vWm2), v(p3T)))
    asm("v_lshl_add_u32 %s, %s, 9, %s" % (v(vOM), v(vWm2), v(vOM)))
    asm("v_lshl_add_u32 %s, %s, 4, %s" % (v(vOM), v(p3U), v(vOM)))
    asm("v_mul_u32_u24 %s, 1280, %s" % (v(vOR), v(p3T)))
    asm("v_lshl_add_u32 %s, %s, 3, %s" % (v(vOR), v(p3U), v(vOR)))
    asm("v_add_u32 %s, 1024, %s" % (v(vOR), v(vOR)))
    asm("v_bfe_u32 %s, %s, 2, 2" % (v(p3U), v(p3L)))
    asm("v_lshrrev_b32 %s, 1, %s" % (v(vWm2), v(p3T)))
    asm("v_mul_u32_u24 %s, 20, %s" % (v(vWm), v(vWm2)))
    asm("v_and_b32 %s, 1, %s" % (v(vWm2), v(p3T)))
    asm("v_lshl_add_u32 %s, %s, 2, %s" % (v(vWm), v(vWm2), v(vWm)))
    asm("v_add_u32 %s, %s, %s" % (v(vWm), v(vWm), v(p3U)))
    asm("v_mul_u32_u24 %s, 160, %s" % (v(vWm), v(vWm)))
    asm("v_mul_u32_u24 %s, 20, %s" % (v(vWr), v(p3T)))
    asm("v_add_u32 %s, %s, %s" % (v(vWr), v(vWr), v(p3U)))
    asm("v_add_u32 %s, 16, %s" % (v(vWr), v(vWr)))
    asm("v_mul_u32_u24 %s, 160, %s" % (v(vWr), v(vWr)))
    asm("v_and_b32 %s, 3, %s" % (v(vWm2), v(p3L)))
    asm("v_lshl_add_u32 %s, %s, 3, %s" % (v(vWm), v(vWm2), v(vWm)))
    asm("v_lshl_add_u32 %s, %s, 3, %s" % (v(vWr), v(vWm2), v(vWr)))
    asm("v_add_u32 %s, 51200, %s" % (v(vWm2), v(vWm)))
    asm("v_add_u32 %s, 51200, %s" % (v(vWr2), v(vWr)))
    asm("s_mul_i32 %s, %s, %d" % (s(sOffO3), s(sBR3), REG))
    asm("s_add_u32 %s, %s, %d" % (s(sOffO3), s(sOffO3), R_OA))
    asm("s_mul_i32 %s, %s, 40960" % (s(sT0), s(sTB3)))
    asm("s_add_u32 %s, %s, %s" % (s(sOffO3), s(sOffO3), s(sT0)))
    asm("s_waitcnt lgkmcnt(0)")
    srd(asm, SOUT, "s4", "s5", 2048 * 2560)
    asm("s_cmp_lg_u32 %s, 0" % s(sW))
    asm("s_cbranch_scc1 %s_p3w" % N)
    poll(s(sPL), 32, vDW3, p3X)
    lds_set(W_S3, vDW3, vDW3 + 1)
    asm("s_branch %s_p3go" % N)
    asm.label("%s_p3w" % N)
    lds_wait(W_S3, vDW3, vDW3 + 1)
    asm.label("%s_p3go" % N)
    st(10)
    def oloads(sidx):
        if sidx < 16:
            asm("s_add_u32 %s, %s, %d" % (s(sOM), s(sOffO3), 2560 * sidx))
            for rt in range(2):
                asm("buffer_load_dwordx4 %s, %s, %s, %s offen offset:%d%s" % (v(OF + (sidx * 2 + rt) * 4, 4), v(vOM), s(SWS, 4), s(sOM), rt * 256, LSC3))
        else:
            a_ = sidx - 16
            for half in range(2):
                asm("s_add_u32 %s, %s, %d" % (s(sOM), s(sOffO3), a_ * 8 * 1280 + half * 5120))
                for rt in range(2):
                    asm("buffer_load_dwordx2 %s, %s, %s, %s offen offset:%d%s" % (v(OF + ((16 + a_) * 2 + rt) * 4 + 2 * half, 2), v(vOR), s(SWS, 4), s(sOM), rt * 128, LSC3))
    def cum(k): return 2 * (k + 1) if k < 16 else 32 + 4 * (k - 15)
    PD = opts.get("pd", 5)
    for k in range(PD): oloads(k)
    def wreads(step, dst):
        ops = []
        for ct in range(5):
            for a_ in range(2):
                if step < 16:
                    base = vWm if step < 8 else vWm2
                    off = (step & 7) * 6400 + a_ * 1280 + ct * 32
                else:
                    ap = step - 16
                    base = vWr if ap < 2 else vWr2
                    off = (ap & 1) * 25600 + a_ * 12800 + ct * 32
                ops.append(lambda ct=ct, a_=a_, base=base, off=off: asm("ds_read_b64_tr_b16 %s, %s offset:%d" % (v(dst + 4 * ct + 2 * a_, 2), v(base), off)))
        return ops
    if opts.get("p3st"): st(1)
    for f in wreads(0, WF[0]): f()
    for sidx in range(20):
        cur = WF[sidx & 1]
        nxt_ops = wreads(sidx + 1, WF[(sidx + 1) & 1]) if sidx < 19 else []
        vm = cum(min(sidx + PD - 1, 19)) - cum(sidx)
        asm("s_waitcnt vmcnt(%d) lgkmcnt(0)" % vm)
        if opts.get("p3st") and sidx in (0, 8, 16): st({0: 2, 8: 3, 16: 4}[sidx])
        m = 0
        for ct in range(5):
            for rt in range(2):
                acc = v(ACC3 + (rt * 5 + ct) * 4, 4)
                c = "0" if sidx == 0 else acc
                asm("v_mfma_f32_16x16x32_bf16 %s, %s, %s, %s" % (acc, v(cur + 4 * ct, 4), v(OF + (sidx * 2 + rt) * 4, 4), c))
                if m < 5 and nxt_ops:
                    nxt_ops[2 * m](); nxt_ops[2 * m + 1]()
                if m == 5 and sidx + PD < 20: oloads(sidx + PD)
                m += 1
    st(11)
    asm("v_and_b32 %s, 15, %s" % (v(p3U), v(p3L)))
    asm("v_mul_u32_u24 %s, 160, %s" % (v(p3U), v(p3U)))
    asm("v_lshrrev_b32 %s, 4, %s" % (v(p3T), v(p3L)))
    asm("v_lshl_add_u32 %s, %s, 3, %s" % (v(p3U), v(p3T), v(p3U)))
    asm("s_mul_i32 %s, %s, 5120" % (s(sT0), s(sW)))
    asm("s_add_u32 %s, %s, %d" % (s(sT0), s(sT0), L_OUT))
    asm("v_add_u32 %s, %s, %s" % (v(p3U), s(sT0), v(p3U)))
    asm("v_lshlrev_b32 %s, 4, %s" % (v(p3X), v(p3L)))
    asm("v_add_u32 %s, %s, %s" % (v(p3X), s(sT0), v(p3X)))
    asm("s_nop 3")
    for rt in range(2):
        for ct in range(5):
            b = ACC3 + (rt * 5 + ct) * 4
            t = OF + (rt * 5 + ct) * 2
            asm("v_cvt_pk_bf16_f32 %s, %s, %s" % (v(t), v(b), v(b + 1)))
            asm("v_cvt_pk_bf16_f32 %s, %s, %s" % (v(t + 1), v(b + 2), v(b + 3)))
            asm("ds_write_b64 %s, %s offset:%d" % (v(p3U), v(t, 2), rt * 2560 + ct * 32))
    asm("s_movk_i32 %s, 6554" % s(sT2))
    asm("s_movk_i32 %s, 2560" % s(sT3))
    for b in range(5):
        asm("v_add_u32 %s, %d, %s" % (v(p3T), 64 * b, v(p3L)))
        asm("v_mul_lo_u32 %s, %s, %s" % (v(vWm), v(p3T), s(sT2)))
        asm("v_lshrrev_b32 %s, 16, %s" % (v(vWm), v(vWm)))
        asm("v_mul_u32_u24 %s, 10, %s" % (v(vWr), v(vWm)))
        asm("v_sub_u32 %s, %s, %s" % (v(p3T), v(p3T), v(vWr)))
        asm("v_lshlrev_b32 %s, 4, %s" % (v(p3T), v(p3T)))
        asm("v_mad_u32_u24 %s, %s, %s, %s" % (v(vDW3 + b), v(vWm), s(sT3), v(p3T)))
    asm("s_mul_i32 %s, %s, %d" % (s(sT0), s(sTB3), 32 * 2560))
    asm("s_mul_i32 %s, %s, 1280" % (s(sT1), s(sBR3)))
    asm("s_add_u32 %s, %s, %s" % (s(sT0), s(sT0), s(sT1)))
    asm("s_mul_i32 %s, %s, 160" % (s(sT1), s(sCB3)))
    asm("s_add_u32 %s, %s, %s" % (s(sT0), s(sT0), s(sT1)))
    asm("s_waitcnt lgkmcnt(0)")
    for b in range(5):
        asm("ds_read_b128 %s, %s offset:%d" % (v(32 + 4 * b, 4), v(p3X), b * 1024))
    for b in range(5):
        asm("s_waitcnt lgkmcnt(%d)" % (4 - b))
        asm("buffer_store_dwordx4 %s, %s, %s, %s offen" % (v(32 + 4 * b, 4), v(vDW3 + b), s(SOUT, 4), s(sT0)))
    asm.label("%s_fin" % N)
    if stamp:
        asm("s_waitcnt vmcnt(0)")
        st(12)
        asm("s_waitcnt lgkmcnt(0)")
        asm("s_load_dwordx2 s[4:5], s[0:1], 64")
        asm("s_waitcnt lgkmcnt(0)")
        asm("s_add_u32 s4, s4, %d" % (R_STAMP + (opts.get("wsoff", 0) << 20)))
        asm("s_addc_u32 s5, s5, 0")
        srd(asm, SA_, "s4", "s5", 1 << 20)
        asm("s_lshl_b32 %s, s2, 3" % s(sT0))
        asm("s_add_u32 %s, %s, %s" % (s(sT0), s(sT0), s(sW)))
        asm("s_lshl_b32 %s, %s, 7" % (s(sT0), s(sT0)))
        asm("v_mov_b32 v1, %s" % s(sT0))
        for i in range(13):
            asm("v_mov_b32 v2, %s" % s(STB + 2 * i))
            asm("v_mov_b32 v3, %s" % s(STB + 2 * i + 1))
            asm("buffer_store_dwordx2 v[2:3], v1, %s, 0 offen offset:%d" % (s(SA_, 4), 8 * i))
            asm("s_nop 1")
    asm.label("%s_end" % N)
    asm("s_endpgm")
    return dict(name=N, vgpr=256, sgpr=100, grid=256, block=512, lds=LDS_BYTES)
HEADER = open("concat_heads__linear_attn_block__sliding_block__prompt.s.ref").read().split("; Override")[0]
def build(stamp=False, opts=None):
    body = A()
    i = gen(body, stamp=stamp, opts=opts)
    out = HEADER
    out += "; @launch grid=(%d,1,1) block=(%d,1,1) lds=%d\n" % (i["grid"], i["block"], i["lds"])
    out += '.amdgcn_target "amdgcn-amd-amdhsa--gfx950"\n.text\n'
    out += body.text()
    d = A()
    d('.section .rodata,"a"')
    kernel_desc(d, i["name"], i["vgpr"], i["sgpr"])
    out += d.text()
    return out
if __name__ == "__main__":
    import sys
    opts = {}
    for a_ in sys.argv[3:]:
        k, val = a_.split("="); opts[k] = int(val)
    open(sys.argv[1], "w").write(build(stamp=(len(sys.argv) > 2 and sys.argv[2] == "stamp"), opts=opts))
```

```python
from asmlib import *
import math
REG = 2621440
R_QA, R_KA, R_VA, R_QB, R_KB, R_VB, R_OA, R_OB, R_KVP, R_FLG = [i * REG for i in range(10)]
F1 = R_FLG
F2 = R_FLG + 65536
F3 = R_FLG + 65536 + 8192
WS_REC = R_FLG + 131072
R_STAMP = 10 * REG
LOG2E = 1.4426950408889634
QSCALE = LOG2E / math.sqrt(20.0)
BIG = -1.0e30
OOB = 0x40000000
L_WO, L_K, L_V, L_KVT = 0, 102400, 135168, 155648
L_OUT = L_K
L_SYNC = 157696
W_CNT1, W_S1, W_S1A, W_S2, W_CNT3B, W_CNT3A, W_S3, W_ISS, W_K, W_V = [L_SYNC + 4 * i for i in range(10)]
LDS_BYTES = 157696 + 64
SPIN_MAX = 0x40000
NAME = "concat_heads__linear_attn_block__sliding_block__prompt_kernel"
class G:
    pass
def gen(asm, stamp=False, name=NAME, opts=None):
    opts = opts or {}
    N = name
    D1 = opts.get("d1", 0)
    SC = " sc1" if D1 else ""
    SC = {0: SC, 1: " sc0 sc1", 2: " sc1 nt", 3: " sc0 sc1 nt"}[opts.get("scmode", 0)]
    REPL = opts.get("repl", 8)
    LSC3 = "" if opts.get("plain3") else " sc1"
    sW = 3
    SWS, SDBG = 8, 12
    sNON = 16
    sT0, sT1, sT2, sT3 = 18, 19, 20, 21
    sCNT, sPL = 22, 23
    SA_, SB_ = 24, 28
    sMASK = 32
    sPC = 34
    STB = 72
    sP8, sSLOT, sLOCAL, sXCC = 70, 71, 98, 99
    def st(k):
        if stamp:
            asm("s_memrealtime %s" % s(STB + 2 * k, 2))
    def lane(dst):
        asm("v_mbcnt_lo_u32_b32 %s, -1, 0" % v(dst))
        asm("v_mbcnt_hi_u32_b32 %s, -1, %s" % (v(dst), v(dst)))
    uid = [0]
    def lab(p):
        uid[0] += 1
        return "%s_%s%d" % (N, p, uid[0])
    def sync_issue(vd, vo):
        lane(vo)
        asm("s_lshl_b32 %s, %s, 3" % (s(sT0), s(sP8)))
        asm("s_add_u32 %s, %s, 64" % (s(sT0), s(sT0)))
        asm("v_cmp_eq_u32 vcc, 1, %s" % v(vo))
        asm("v_mov_b32 %s, %s" % (v(vd), s(sT0)))
        asm("v_mov_b32 %s, 0" % v(vo))
        asm("v_cndmask_b32 %s, %s, %s, vcc" % (v(vo), v(vo), v(vd)))
        asm("buffer_load_dwordx2 %s, %s, %s, 0 offen sc1" % (v(vd, 2), v(vo), s(SDBG, 4)))
    def get_sync(vd, vo, preissued=False):
        L, D = lab("non"), lab("nond")
        if not preissued: sync_issue(vd, vo)
        asm("s_mov_b32 %s, 0" % s(sCNT))
        asm.label(L)
        asm("s_waitcnt vmcnt(0)")
        asm("v_readlane_b32 %s, %s, 0" % (s(sNON), v(vd)))
        asm("v_readlane_b32 %s, %s, 0" % (s(sNON + 1), v(vd + 1)))
        asm("v_readlane_b32 %s, %s, 1" % (s(sPC), v(vd)))
        asm("v_readlane_b32 %s, %s, 1" % (s(sPC + 1), v(vd + 1)))
        asm("s_add_u32 %s, %s, 1" % (s(sCNT), s(sCNT)))
        asm("s_nop 2")
        asm("s_cmp_lg_u32 %s, 0" % s(sNON))
        asm("s_cbranch_scc1 %s" % D)
        asm("s_cmp_ge_u32 %s, 0x%x" % (s(sCNT), SPIN_MAX))
        asm("s_cbranch_scc1 %s" % D)
        asm("s_sleep 4")
        asm("buffer_load_dwordx2 %s, %s, %s, 0 offen sc1" % (v(vd, 2), v(vo), s(SDBG, 4)))
        asm("s_branch %s" % L)
        asm.label(D)
        asm("s_lshl_b32 %s, %s, 3" % (s(sT0), s(sXCC)))
        asm("s_lshl_b64 %s, 32, %s" % (s(sMASK, 2), s(sT0)))
        asm("s_cmp_eq_u64 %s, %s" % (s(sMASK, 2), s(sPC, 2)))
        asm("s_cselect_b32 %s, 1, 0" % s(sLOCAL))
        if opts.get("nolocal"): asm("s_mov_b32 %s, 0" % s(sLOCAL))
    def release():
        if D1: return
        D = lab("rel")
        asm("s_cmp_lg_u32 %s, 0" % s(sLOCAL))
        asm("s_cbranch_scc1 %s" % D)
        asm("buffer_wbl2 sc1")
        asm("s_waitcnt vmcnt(0)")
        asm.label(D)
    def lds_set(word, va, vd):
        asm("v_mov_b32 %s, 0x%x" % (v(va), word))
        asm("v_mov_b32 %s, 1" % v(vd))
        asm("ds_write_b32 %s, %s" % (v(va), v(vd)))
    def lds_wait(word, va, vd, atleast=1):
        L, D = lab("lw"), lab("lwd")
        asm("v_mov_b32 %s, 0x%x" % (v(va), word))
        asm("s_mov_b32 %s, 0" % s(sCNT))
        asm.label(L)
        asm("ds_read_b32 %s, %s" % (v(vd), v(va)))
        asm("s_waitcnt lgkmcnt(0)")
        asm("v_readfirstlane_b32 %s, %s" % (s(sT0), v(vd)))
        asm("s_add_u32 %s, %s, 1" % (s(sCNT), s(sCNT)))
        asm("s_nop 2")
        asm("s_cmp_ge_u32 %s, %d" % (s(sT0), atleast))
        asm("s_cbranch_scc1 %s" % D)
        asm("s_cmp_ge_u32 %s, 0x%x" % (s(sCNT), SPIN_MAX * 8))
        asm("s_cbranch_scc1 %s" % D)
        asm("s_sleep 1")
        asm("s_branch %s" % L)
        asm.label(D)
    def lds_arrive(word, n, va, vd, soff, replicas=1):
        D = lab("arr")
        asm("v_mov_b32 %s, 0x%x" % (v(va), word))
        asm("v_mov_b32 %s, 1" % v(vd))
        asm("s_mov_b64 exec, 1")
        asm("ds_add_rtn_u32 %s, %s, %s" % (v(vd), v(va), v(vd)))
        asm("s_waitcnt lgkmcnt(0)")
        asm("s_mov_b64 exec, -1")
        asm("v_readfirstlane_b32 %s, %s" % (s(sCNT), v(vd)))
        asm("s_nop 3")
        asm("s_cmp_lg_u32 %s, %d" % (s(sCNT), n - 1))
        asm("s_cbranch_scc1 %s" % D)
        flag_store(soff, vd, va, replicas)
        asm.label(D)
    def poll_issue(soff, vd, vo, n):
        asm("s_mov_b32 exec_lo, 0x%x" % ((1 << n) - 1))
        asm("s_mov_b32 exec_hi, 0")
        asm("buffer_load_dwordx2 %s, %s, %s, %s offen sc1" % (v(vd, 2), v(vo), s(SWS, 4), soff))
        asm("s_mov_b64 exec, -1")
    def poll(soff, n, vd, vo, preissued=False, lo=0, smask=None):
        L, D = lab("poll"), lab("polld")
        m = ((1 << n) - 1) & ~((1 << lo) - 1)
        asm("s_mov_b32 %s, %s" % (s(sMASK), smask if smask else "0x%x" % (m & 0xffffffff)))
        asm("s_mov_b32 %s, 0x%x" % (s(sMASK + 1), m >> 32))
        if not preissued: poll_issue(soff, vd, vo, n)
        asm("s_mov_b32 %s, 0" % s(sCNT))
        asm.label(L)
        asm("s_waitcnt vmcnt(0)")
        asm("v_cmp_eq_u32 vcc, %s, %s" % (s(sNON), v(vd)))
        asm("v_cmp_eq_u32 %s, %s, %s" % (s(sPC, 2), s(sNON + 1), v(vd + 1)))
        asm("s_add_u32 %s, %s, 1" % (s(sCNT), s(sCNT)))
        asm("s_nop 3")
        asm("s_and_b64 %s, %s, vcc" % (s(sPC, 2), s(sPC, 2)))
        asm("s_and_b64 %s, %s, %s" % (s(sPC, 2), s(sPC, 2), s(sMASK, 2)))
        asm("s_cmp_eq_u64 %s, %s" % (s(sPC, 2), s(sMASK, 2)))
        asm("s_cbranch_scc1 %s" % D)
        asm("s_cmp_ge_u32 %s, 0x%x" % (s(sCNT), SPIN_MAX))
        asm("s_cbranch_scc1 %s" % D)
        asm("s_sleep %d" % opts.get("sleep", 3))
        poll_issue(soff, vd, vo, n)
        asm("s_branch %s" % L)
        asm.label(D)
    def flag_store(soff, vd, vo, replicas=1):
        if replicas > 1:
            lane(vo)
            asm("v_lshlrev_b32 %s, 11, %s" % (v(vo), v(vo)))
        else:
            asm("v_mov_b32 %s, 0" % v(vo))
        asm("v_mov_b32 %s, %s" % (v(vd), s(sNON)))
        asm("v_mov_b32 %s, %s" % (v(vd + 1), s(sNON + 1)))
        asm("s_mov_b64 exec, %d" % ((1 << replicas) - 1 if replicas <= 6 else -1) if replicas <= 6 else "s_mov_b32 exec_lo, 0x%x\n    s_mov_b32 exec_hi, 0" % ((1 << replicas) - 1))
        asm("buffer_store_dwordx2 %s, %s, %s, %s offen sc1" % (v(vd, 2), v(vo), s(SWS, 4), soff))
        asm("s_mov_b64 exec, -1")
    kernel_header(asm, N)
    asm("s_cmp_ge_u32 s2, 256")
    asm("s_cbranch_scc1 %s_end" % N)
    if stamp:
        for i in range(26): asm("s_mov_b32 %s, 0" % s(STB + i))
    st(0)
    asm("s_load_dwordx4 s[4:7], s[0:1], 56")
    asm("s_load_dwordx4 s[36:39], s[0:1], 0")
    asm("s_load_dwordx4 s[40:43], s[0:1], 24")
    asm("v_lshrrev_b32 v1, 6, v0")
    asm("s_nop 0")
    asm("v_readfirstlane_b32 %s, v1" % s(sW))
    sBR, sRB, sCB, sPART, sCBP, sW4, sWM, sWN = 44, 45, 46, 47, 48, 49, 50, 51
    asm("s_and_b32 %s, s2, 7" % s(sP8))
    asm("s_lshr_b32 %s, s2, 3" % s(sSLOT))
    asm("s_getreg_b32 %s, hwreg(HW_REG_XCC_ID, 0, 4)" % s(sXCC))
    asm("s_and_b32 %s, %s, 7" % (s(sXCC), s(sXCC)))
    if not D1:
        asm("s_cmp_ge_u32 %s, 15" % s(sSLOT))
        asm("s_cselect_b32 %s, 1, 0" % s(sBR))
        asm("s_cselect_b32 %s, 15, 0" % s(sT0))
        asm("s_sub_u32 %s, %s, %s" % (s(sCB), s(sSLOT), s(sT0)))
        asm("s_mov_b32 %s, %s" % (s(sRB), s(sP8)))
    else:
        asm("s_lshr_b32 %s, %s, 2" % (s(sBR), s(sP8)))
        asm("s_and_b32 %s, %s, 3" % (s(sT0), s(sP8)))
        asm("s_mul_i32 %s, %s, 30" % (s(sT0), s(sT0)))
        asm("s_add_u32 %s, %s, %s" % (s(sT0), s(sT0), s(sSLOT)))
        asm("s_cmp_ge_u32 %s, 60" % s(sT0))
        asm("s_cselect_b32 %s, 4, 0" % s(sT1))
        asm("s_cselect_b32 %s, 60, 0" % s(sT2))
        asm("s_sub_u32 %s, %s, %s" % (s(sT0), s(sT0), s(sT2)))
        asm("s_lshr_b32 %s, %s, 2" % (s(sCB), s(sT0)))
        asm("s_and_b32 %s, %s, 3" % (s(sT0), s(sT0)))
        asm("s_add_u32 %s, %s, %s" % (s(sRB), s(sT1), s(sT0)))
    asm("s_cmp_ge_u32 %s, 5" % s(sCB))
    asm("s_cselect_b32 %s, 1, 0" % s(sPART))
    asm("s_cmp_ge_u32 %s, 10" % s(sCB))
    asm("s_cselect_b32 %s, 2, %s" % (s(sPART), s(sPART)))
    asm("s_mul_i32 %s, %s, 5" % (s(sT0), s(sPART)))
    asm("s_sub_u32 %s, %s, %s" % (s(sCBP), s(sCB), s(sT0)))
    asm("s_and_b32 %s, %s, 3" % (s(sW4), s(sW)))
    asm("s_lshr_b32 %s, %s, 1" % (s(sWM), s(sW4)))
    asm("s_and_b32 %s, %s, 1" % (s(sWN), s(sW4)))
    asm("s_waitcnt lgkmcnt(0)")
    if opts.get("wsoff"):
        asm("s_add_u32 s6, s6, 0x%x" % (opts["wsoff"] << 20))
        asm("s_addc_u32 s7, s7, 0")
    srd(asm, SWS, "s6", "s7", WS_REC)
    srd(asm, SDBG, "s4", "s5", 256)
    asm("s_cmp_ge_u32 %s, 4" % s(sW))
    asm("s_cbranch_scc1 %s_p1h" % N)
    ACC = 0; FX = [128, 144]; FW = [160, 168]
    vXA, vWA = 176, 180
    vL, vT, vU, vV = 194, 195, 196, 197
    vSO = 198; TMP = 200; TE = 216; vN = 220
    sSTG, sDELTA, sRBUF, sNEG = 52, 53, 54, 55
    sTN, sGG, sSO = 56, 57, 58
    sC0, sC1 = 60, 62
    asm("s_or_b32 %s, s2, %s" % (s(sT0), s(sW)))
    asm("s_cmp_lg_u32 %s, 0" % s(sT0))
    asm("s_cbranch_scc1 %s_nonon" % N)
    asm("s_memrealtime %s" % s(sNON, 2))
    asm("s_waitcnt lgkmcnt(0)")
    asm("s_or_b32 %s, %s, 1" % (s(sNON), s(sNON)))
    asm("v_mov_b32 v2, %s" % s(sNON))
    asm("v_mov_b32 v3, %s" % s(sNON + 1))
    asm("v_mov_b32 v4, 0")
    asm("s_mov_b64 exec, 1")
    asm("buffer_store_dwordx2 v[2:3], v4, %s, 0 offen sc1" % s(SDBG, 4))
    asm("s_mov_b64 exec, -1")
    asm.label("%s_nonon" % N)
    asm("s_cmp_lg_u32 %s, 0" % s(sW))
    asm("s_cbranch_scc1 %s_noinit" % N)
    asm("s_lshl_b32 %s, %s, 3" % (s(sT0), s(sXCC)))
    asm("s_lshl_b64 s[4:5], 1, %s" % s(sT0))
    asm("s_lshl_b32 %s, %s, 3" % (s(sT0), s(sP8)))
    asm("s_add_u32 %s, %s, 64" % (s(sT0), s(sT0)))
    asm("v_mov_b32 v2, s4")
    asm("v_mov_b32 v3, s5")
    asm("v_mov_b32 v4, %s" % s(sT0))
    if not D1:
        asm("s_mov_b64 exec, 1")
        asm("buffer_atomic_add_x2 v[2:3], v4, %s, 0 offen" % s(SDBG, 4))
        asm("s_mov_b64 exec, -1")
    lane(5)
    asm("v_lshlrev_b32 v5, 2, v5")
    asm("v_add_u32 v5, 0x%x, v5" % L_SYNC)
    asm("v_mov_b32 v6, 0")
    asm("s_mov_b32 exec_lo, 0xffff")
    asm("s_mov_b32 exec_hi, 0")
    asm("ds_write_b32 v5, v6")
    asm("s_mov_b64 exec, -1")
    asm("s_waitcnt lgkmcnt(0)")
    asm.label("%s_noinit" % N)
    asm("s_cmp_ge_u32 %s, 30" % s(sSLOT))
    asm("s_cbranch_scc1 %s_p2c" % N)
    lane(vL)
    asm.c("X frag read addr")
    asm("v_and_b32 %s, 31, %s" % (v(vT), v(vL)))
    asm("s_lshl_b32 %s, %s, 7" % (s(sT0), s(sWM)))
    asm("v_add_u32 %s, %s, %s" % (v(vU), s(sT0), v(vT)))
    asm("v_lshlrev_b32 %s, 7, %s" % (v(vU), v(vU)))
    asm("v_bfe_u32 %s, %s, 1, 3" % (v(vT), v(vT)))
    asm("v_lshrrev_b32 %s, 5, %s" % (v(vV), v(vL)))
    for ks in range(4):
        asm("v_add_u32 %s, %d, %s" % (v(TMP), 2 * ks, v(vV)))
        asm("v_xor_b32 %s, %s, %s" % (v(TMP), v(TMP), v(vT)))
        asm("v_lshl_add_u32 %s, %s, 4, %s" % (v(vXA + ks), v(TMP), v(vU)))
    asm.c("W frag read addr")
    asm("v_bfe_u32 %s, %s, 2, 2" % (v(vT), v(vL)))
    asm("v_lshrrev_b32 %s, 5, %s" % (v(vU), v(vL)))
    asm("v_lshl_add_u32 %s, %s, 3, %s" % (v(vU), v(vU), v(vT)))
    asm("v_lshlrev_b32 %s, 8, %s" % (v(vU), v(vU)))
    asm("v_add_u32 %s, 32768, %s" % (v(vU), v(vU)))
    asm("v_and_b32 %s, 1, %s" % (v(vV), v(vL)))
    asm("v_lshl_add_u32 %s, %s, 3, %s" % (v(vU), v(vV), v(vU)))
    asm("v_bfe_u32 %s, %s, 4, 1" % (v(vV), v(vL)))
    asm("v_lshlrev_b32 %s, 1, %s" % (v(vV), v(vV)))
    asm("v_bfe_u32 %s, %s, 1, 1" % (v(TMP), v(vL)))
    asm("v_add_u32 %s, %s, %s" % (v(vV), v(vV), v(TMP)))
    asm("s_lshl_b32 %s, %s, 3" % (s(sT0), s(sWN)))
    asm("v_add_u32 %s, %s, %s" % (v(vV), s(sT0), v(vV)))
    asm("v_lshlrev_b32 %s, 2, %s" % (v(vT), v(vT)))
    for tn in range(2):
        asm("v_add_u32 %s, %d, %s" % (v(TMP), 4 * tn, v(vV)))
        asm("v_xor_b32 %s, %s, %s" % (v(TMP), v(TMP), v(vT)))
        asm("v_lshl_add_u32 %s, %s, 4, %s" % (v(vWA + tn), v(TMP), v(vU)))
    for i in range(128):
        asm("v_mov_b32 %s, 0" % v(ACC + i))
    asm("s_mul_i32 %s, %s, 3" % (s(sT0), s(sBR)))
    asm("s_add_u32 %s, %s, %s" % (s(sT0), s(sT0), s(sPART)))
    asm("s_mul_i32 %s, %s, %d" % (s(sT0), s(sT0), REG))
    asm("s_add_u32 s6, s6, %s" % s(sT0))
    asm("s_addc_u32 s7, s7, 0")
    SO = SA_
    srd(asm, SO, "s6", "s7", REG)
    def rdX(st_, tm, ks):
        asm("ds_read_b128 %s, %s offset:%d" % (v(FX[st_] + 4 * tm, 4), v(vXA + ks), tm * 4096))
    def rdW(st_, tn, a_, ks):
        asm("ds_read_b64_tr_b16 %s, %s offset:%d" % (v(FW[st_] + 4 * tn + 2 * a_, 2), v(vWA + tn), ks * 4096 + a_ * 1024))
    def reads(st_, ks):
        return [lambda: rdW(st_, 0, 0, ks), lambda: rdW(st_, 0, 1, ks), lambda: rdX(st_, 0, ks), lambda: rdX(st_, 1, ks),
                lambda: rdW(st_, 1, 0, ks), lambda: rdW(st_, 1, 1, ks), lambda: rdX(st_, 2, ks), lambda: rdX(st_, 3, ks)]
    MORD = [(0, 0), (1, 0), (0, 1), (1, 1), (2, 0), (2, 1), (3, 0), (3, 1)]
    def mfma(orient, st_, tm, tn):
        acc = v(ACC + (tm * 2 + tn) * 16, 16)
        x = v(FX[st_] + 4 * tm, 4); w = v(FW[st_] + 4 * tn, 4)
        if orient == "T": asm("v_mfma_f32_32x32x16_bf16 %s, %s, %s, %s" % (acc, w, x, acc))
        else: asm("v_mfma_f32_32x32x16_bf16 %s, %s, %s, %s" % (acc, x, w, acc))
    asm("s_mov_b32 %s, 0" % s(sSTG))
    asm("s_mov_b32 %s, 0" % s(sRBUF))
    asm("s_mov_b32 %s, 0x%x" % (s(sNEG), (-2 * 49152) & 0xffffffff))
    asm("s_barrier")
    st(1)
    for f in reads(0, 0): f()
    asm("s_cmp_eq_u32 %s, 0" % s(sPART))
    asm("s_cbranch_scc1 %s_loopT" % N)
    asm("s_add_u32 %s, %s, %s" % (s(sT0), s(sBR), s(sBR)))
    asm("s_add_u32 %s, %s, %s" % (s(sT0), s(sT0), s(sPART)))
    asm("s_cmp_eq_u32 %s, 3" % s(sT0))
    asm("s_cbranch_scc0 %s_loopF" % N)
    def loop(orient):
        L = "%s_loop%s" % (N, orient)
        asm(".p2align 4")
        asm.label(L)
        for ks in range(4):
            st_ = ks & 1; nst_ = st_ ^ 1
            asm("s_waitcnt lgkmcnt(0)")
            if ks < 3:
                rs = reads(nst_, ks + 1)
                for m in range(8):
                    mfma(orient, st_, *MORD[m])
                    if m < 4:
                        rs[2 * m](); rs[2 * m + 1]()
                    if ks == 2 and m == 4:
                        asm("s_add_u32 %s, %s, 1" % (s(sRBUF), s(sRBUF)))
                        asm("s_cmp_eq_u32 %s, 3" % s(sRBUF))
                        asm("s_cselect_b32 %s, 0, %s" % (s(sRBUF), s(sRBUF)))
                        asm("s_cselect_b32 %s, %s, 49152" % (s(sDELTA), s(sNEG)))
                    if ks == 2 and m == 5:
                        for k in range(3): asm("v_add_u32 %s, %s, %s" % (v(vXA + k), s(sDELTA), v(vXA + k)))
                    if ks == 2 and m == 6:
                        asm("v_add_u32 %s, %s, %s" % (v(vXA + 3), s(sDELTA), v(vXA + 3)))
                        for k in range(2): asm("v_add_u32 %s, %s, %s" % (v(vWA + k), s(sDELTA), v(vWA + k)))
                    if ks == 2 and m == 7:
                        asm("s_add_u32 %s, %s, 1" % (s(sSTG), s(sSTG)))
            else:
                mfma(orient, st_, *MORD[0])
                mfma(orient, st_, *MORD[1])
                asm("s_barrier")
                rs = reads(nst_, 0)
                mfma(orient, st_, *MORD[2])
                rs[0](); rs[1](); rs[2]()
                mfma(orient, st_, *MORD[3])
                rs[3](); rs[4](); rs[5]()
                mfma(orient, st_, *MORD[4])
                rs[6](); rs[7]()
                mfma(orient, st_, *MORD[5])
                mfma(orient, st_, *MORD[6])
                asm("s_cmp_lt_u32 %s, 10" % s(sSTG))
                mfma(orient, st_, *MORD[7])
        asm("s_cbranch_scc1 %s" % L)
        asm("s_branch %s_epi%s" % (N, orient))
    loop("T")
    loop("F")
    asm.label("%s_epiT" % N)
    asm("s_lshl_b32 %s, %s, 3" % (s(sT0), s(sRB)))
    asm("s_lshl_b32 %s, %s, 2" % (s(sT1), s(sWM)))
    asm("s_add_u32 %s, %s, %s" % (s(sT0), s(sT0), s(sT1)))
    asm("s_mul_i32 %s, %s, 40" % (s(sT0), s(sT0)))
    asm("s_lshl_b32 %s, %s, 3" % (s(sT1), s(sCBP)))
    asm("s_add_u32 %s, %s, %s" % (s(sT0), s(sT0), s(sT1)))
    asm("s_lshl_b32 %s, %s, 2" % (s(sT1), s(sWN)))
    asm("s_add_u32 %s, %s, %s" % (s(sT0), s(sT0), s(sT1)))
    asm("s_lshl_b32 %s, %s, 10" % (s(sT0), s(sT0)))
    asm("v_lshlrev_b32 %s, 4, %s" % (v(vSO), v(vL)))
    asm("v_add_u32 %s, %s, %s" % (v(vSO), s(sT0), v(vSO)))
    asm("s_movk_i32 %s, 2048" % s(sTN))
    asm("s_movk_i32 %s, 1024" % s(sGG))
    asm("s_branch %s_epi" % N)
    asm.label("%s_epiF" % N)
    asm("s_lshl_b32 %s, %s, 3" % (s(sT0), s(sRB)))
    asm("s_lshl_b32 %s, %s, 2" % (s(sT1), s(sWM)))
    asm("s_add_u32 %s, %s, %s" % (s(sT0), s(sT0), s(sT1)))
    asm("s_mul_i32 %s, %s, 40960" % (s(sT0), s(sT0)))
    asm("s_lshl_b32 %s, %s, 11" % (s(sT1), s(sCBP)))
    asm("s_add_u32 %s, %s, %s" % (s(sT0), s(sT0), s(sT1)))
    asm("s_lshl_b32 %s, %s, 10" % (s(sT1), s(sWN)))
    asm("s_add_u32 %s, %s, %s" % (s(sT0), s(sT0), s(sT1)))
    asm("v_lshrrev_b32 %s, 5, %s" % (v(vT), v(vL)))
    asm("v_mul_u32_u24 %s, 10240, %s" % (v(vT), v(vT)))
    asm("v_and_b32 %s, 31, %s" % (v(vU), v(vL)))
    asm("v_lshl_add_u32 %s, %s, 4, %s" % (v(vSO), v(vU), v(vT)))
    asm("v_add_u32 %s, %s, %s" % (v(vSO), s(sT0), v(vSO)))
    asm("s_movk_i32 %s, 512" % s(sTN))
    asm("s_movk_i32 %s, 20480" % s(sGG))
    asm.label("%s_epi" % N)
    st(2)
    sync_issue(vN, vN + 2)
    asm("s_lshl_b32 %s, %s, 2" % (s(sT0), s(sBR)))
    asm("s_add_u32 %s, %s, %s" % (s(sT0), s(sT0), s(sPART)))
    asm("s_cmp_lt_u32 %s, 2" % s(sT0))
    asm("s_cbranch_scc1 %s_phi" % N)
    asm("s_cmp_eq_u32 %s, 4" % s(sT0))
    asm("s_cselect_b32 %s, %s, 1.0" % (s(sC0), fhex(QSCALE)))
    asm("s_mov_b32 %s, %s" % (s(sC0 + 1), s(sC0)))
    def store_tile(tm, tn, tset, sc, src=None):
        for gg in range(2):
            if gg == 0:
                asm("s_mul_i32 %s, %s, %d" % (s(sSO), s(sTN), tn))
                if tm: asm("s_add_u32 %s, %s, %d" % (s(sSO), s(sSO), tm * 40960))
            else:
                asm("s_add_u32 %s, %s, %s" % (s(sSO), s(sSO), s(sGG)))
            asm("buffer_store_dwordx4 %s, %s, %s, %s offen%s" % (v((TMP + 8 * tset if src is None else src) + 4 * gg, 4), v(vSO), s(SO, 4), s(sSO), sc))
    def plain_epi(sc, scale):
        cnt = 0
        for tm in range(4):
            for tn in range(2):
                b = ACC + (tm * 2 + tn) * 16
                ts = cnt & 1; cnt += 1
                if scale:
                    for p in range(8):
                        asm("v_pk_mul_f32 %s, %s, %s" % (v(b + 2 * p, 2), v(b + 2 * p, 2), s(sC0, 2)))
                for p in range(8):
                    asm("v_cvt_pk_bf16_f32 %s, %s, %s" % (v(TMP + 8 * ts + p), v(b + 2 * p), v(b + 2 * p + 1)))
                store_tile(tm, tn, ts, sc)
    asm("s_cmp_ge_u32 %s, 5" % s(sT0))
    asm("s_cbranch_scc1 %s_epikv" % N)
    asm("s_nop 7")
    plain_epi(SC, True)
    asm("s_branch %s_fin1" % N)
    asm.label("%s_epikv" % N)
    asm("s_nop 7")
    plain_epi(SC if D1 else " sc1", False)
    asm("s_branch %s_fin1" % N)
    asm.label("%s_phi" % N)
    asm("s_mov_b32 %s, %s" % (s(sC0), fhex(LOG2E)))
    asm("s_mov_b32 %s, %s" % (s(sC0 + 1), fhex(LOG2E)))
    asm("s_mov_b32 %s, %s" % (s(sC1), fhex(1e-6)))
    asm("s_nop 7")
    PHI2 = opts.get("phi2", 1)
    cnt = 0
    for tm in range(4):
        for tn in range(2):
            b = ACC + (tm * 2 + tn) * 16
            ts = cnt & 1; cnt += 1
            for q in range(4):
                r0 = b + 4 * q
                asm("v_pk_mul_f32 %s, %s, %s" % (v(TE, 2), v(r0, 2), s(sC0, 2)))
                asm("v_pk_mul_f32 %s, %s, %s" % (v(TE + 2, 2), v(r0 + 2, 2), s(sC0, 2)))
                for k in range(4): asm("v_exp_f32_e64 %s, %s clamp" % (v(TE + k), v(TE + k)))
                for k in range(4): asm("v_max_f32 %s, %s, %s" % (v(r0 + k), s(sC1), v(r0 + k)))
                asm("v_pk_add_f32 %s, %s, %s" % (v(r0, 2), v(r0, 2), v(TE, 2)))
                asm("v_pk_add_f32 %s, %s, %s" % (v(r0 + 2, 2), v(r0 + 2, 2), v(TE + 2, 2)))
                dst = (b + 2 * q) if PHI2 else (TMP + 8 * ts + 2 * q)
                asm("v_cvt_pk_bf16_f32 %s, %s, %s" % (v(dst), v(r0), v(r0 + 1)))
                asm("v_cvt_pk_bf16_f32 %s, %s, %s" % (v(dst + 1), v(r0 + 2), v(r0 + 3)))
            if not PHI2: store_tile(tm, tn, ts, SC)
    if PHI2:
        for tm in range(4):
            for tn in range(2):
                store_tile(tm, tn, 0, SC, src=ACC + (tm * 2 + tn) * 16)
    asm.label("%s_fin1" % N)
    asm("v_mov_b32 %s, 0x%x" % (v(vT), W_ISS))
    asm("v_mov_b32 %s, 1" % v(vU))
    asm("s_mov_b64 exec, 1")
    asm("ds_add_u32 %s, %s" % (v(vT), v(vU)))
    asm("s_mov_b64 exec, -1")
    st(3)
    get_sync(vN, vN + 2, preissued=True)
    release()
    asm("s_lshl_b32 %s, %s, 3" % (s(sT1), s(sBR)))
    asm("s_add_u32 %s, %s, %s" % (s(sT1), s(sT1), s(sRB)))
    asm("s_lshl_b32 %s, %s, 4" % (s(sT1), s(sT1)))
    asm("s_add_u32 %s, %s, %s" % (s(sT1), s(sT1), s(sCB)))
    asm("s_lshl_b32 %s, %s, 3" % (s(sT1), s(sT1)))
    asm("s_add_u32 %s, %s, %d" % (s(sT1), s(sT1), F1))
    lds_arrive(W_CNT1, 4, vN + 2, vN, s(sT1), replicas=REPL)
    st(4)
    asm("s_branch %s_p2setup" % N)
    asm.label("%s_p2c" % N)
    asm("s_barrier")
    get_sync(220, 222)
    asm("s_branch %s_p2setup" % N)

    asm.label("%s_p1h" % N)
    hL, hT, hU, hV = 2, 3, 4, 5
    vDX, vDW, hTMP = 8, 16, 20
    sXOFF, sWOFF, sM0X, sM0W, sDBUF, sHS = 52, 53, 54, 55, 56, 57
    SX, SWD = SA_, SB_
    asm("s_cmp_lt_u32 %s, 30" % s(sSLOT))
    asm("s_cbranch_scc1 %s_p1h2" % N)
    asm("s_barrier")
    asm("s_branch %s_p2h" % N)
    asm.label("%s_p1h2" % N)
    lane(hL)
    asm("v_lshrrev_b32 %s, 3, %s" % (v(hT), v(hL)))
    asm("s_lshl_b32 %s, %s, 6" % (s(sT0), s(sW4)))
    asm("v_add_u32 %s, %s, %s" % (v(hT), s(sT0), v(hT)))
    asm("s_movk_i32 %s, 1280" % s(sT1))
    asm("v_mul_lo_u32 %s, %s, %s" % (v(hT), v(hT), s(sT1)))
    asm("v_lshrrev_b32 %s, 4, %s" % (v(hU), v(hL)))
    asm("v_and_b32 %s, 7, %s" % (v(hV), v(hL)))
    for par in range(2):
        if par == 1: asm("v_add_u32 %s, 4, %s" % (v(hU), v(hU)))
        asm("v_xor_b32 %s, %s, %s" % (v(hTMP + par), v(hV), v(hU)))
        asm("v_lshl_add_u32 %s, %s, 4, %s" % (v(hTMP + par), v(hTMP + par), v(hT)))
    for i in range(8):
        asm("v_add_u32 %s, %d, %s" % (v(vDX + i), i * 8 * 1280 - (i & 3) * 1024, v(hTMP + (i & 1))))
    asm("v_lshrrev_b32 %s, 4, %s" % (v(hU), v(hL)))
    asm("s_lshl_b32 %s, %s, 4" % (s(sT0), s(sW4)))
    asm("v_add_u32 %s, %s, %s" % (v(hT), s(sT0), v(hU)))
    asm("s_movk_i32 %s, 3840" % s(sT1))
    asm("v_mul_lo_u32 %s, %s, %s" % (v(hT), v(hT), s(sT1)))
    asm("v_lshlrev_b32 %s, 2, %s" % (v(hU), v(hU)))
    asm("v_and_b32 %s, 15, %s" % (v(hV), v(hL)))
    asm("v_xor_b32 %s, %s, %s" % (v(hV), v(hV), v(hU)))
    asm("v_lshl_add_u32 %s, %s, 4, %s" % (v(hT), v(hV), v(hT)))
    for i in range(4):
        asm("v_add_u32 %s, %d, %s" % (v(vDW + i), i * 4 * 3840 - i * 1024, v(hT)))
    asm("s_cmp_eq_u32 %s, 0" % s(sBR))
    asm("s_cselect_b32 s36, s36, s40")
    asm("s_cselect_b32 s37, s37, s41")
    asm("s_cselect_b32 s38, s38, s42")
    asm("s_cselect_b32 s39, s39, s43")
    asm("s_mul_i32 %s, %s, %d" % (s(sT0), s(sRB), 256 * 1280))
    asm("s_add_u32 s36, s36, %s" % s(sT0))
    asm("s_addc_u32 s37, s37, 0")
    asm("s_lshl_b32 %s, %s, 8" % (s(sT0), s(sCB)))
    asm("s_add_u32 s38, s38, %s" % s(sT0))
    asm("s_addc_u32 s39, s39, 0")
    asm("s_sub_u32 %s, %d, %s" % (s(sT1), 640 * 3840, s(sT0)))
    srd(asm, SX, "s36", "s37", 256 * 1280)
    srd(asm, SWD, "s38", "s39", s(sT1))
    def dma_stage():
        asm("s_lshl_b32 %s, %s, 13" % (s(sT0), s(sW4)))
        asm("s_add_u32 %s, %s, %s" % (s(sM0X), s(sDBUF), s(sT0)))
        asm("s_lshl_b32 %s, %s, 12" % (s(sT0), s(sW4)))
        asm("s_add_u32 %s, %s, %s" % (s(sT0), s(sT0), s(sDBUF)))
        asm("s_add_u32 %s, %s, 32768" % (s(sM0W), s(sT0)))
        for idx in range(8):
            if idx == 0:
                asm("s_mov_b32 m0, %s" % s(sM0X)); asm("s_nop 0")
            if idx == 4:
                asm("s_add_u32 m0, %s, 4096" % s(sM0X)); asm("s_nop 0")
            asm("buffer_load_dwordx4 %s, %s, %s offen offset:%d lds" % (v(vDX + idx), s(SX, 4), s(sXOFF), (idx & 3) * 1024))
        asm("s_mov_b32 m0, %s" % s(sM0W)); asm("s_nop 0")
        for j in range(4):
            asm("buffer_load_dwordx4 %s, %s, %s offen offset:%d lds" % (v(vDW + j), s(SWD, 4), s(sWOFF), j * 1024))
        asm("s_add_u32 %s, %s, 128" % (s(sXOFF), s(sXOFF)))
        asm("s_add_u32 %s, %s, %d" % (s(sWOFF), s(sWOFF), 64 * 3840))
        asm("s_add_u32 %s, %s, 49152" % (s(sDBUF), s(sDBUF)))
        asm("s_cmp_ge_u32 %s, %d" % (s(sDBUF), 3 * 49152))
        asm("s_cselect_b32 %s, 0, %s" % (s(sDBUF), s(sDBUF)))
    WARM = opts.get("warm", 3)
    if WARM:
        asm("s_load_dwordx2 s[4:5], s[0:1], 16")
        asm("s_load_dwordx2 s[6:7], s[0:1], 40")
        asm("s_lshl_b32 s58, %s, 2" % s(sSLOT))
        asm("s_add_u32 s58, s58, %s" % s(sW4))
        asm("s_mul_i32 s58, s58, %d" % (54 * 128))
        asm("v_lshlrev_b32 v6, 7, %s" % v(hL))
    asm("s_mov_b32 %s, 0" % s(sXOFF))
    asm("s_mov_b32 %s, 0" % s(sWOFF))
    asm("s_mov_b32 %s, 0" % s(sDBUF))
    asm("s_mov_b32 %s, 0" % s(sHS))
    pro = opts.get("pro", 2)
    Lp = "%s_hpro" % N
    asm.label(Lp)
    dma_stage()
    asm("s_add_u32 %s, %s, 1" % (s(sHS), s(sHS)))
    asm("s_cmp_eq_u32 %s, %d" % (s(sHS), pro))
    asm("s_cbranch_scc0 %s_hpro_n" % N)
    st(3)
    asm("s_waitcnt vmcnt(%d)" % (12 * (pro - 1)))
    st(1)
    asm("s_barrier")
    asm.label("%s_hpro_n" % N)
    asm("s_cmp_lt_u32 %s, 3" % s(sHS))
    asm("s_cbranch_scc1 %s" % Lp)
    asm("s_mov_b32 %s, 0" % s(sHS))
    Lh = "%s_hloop" % N
    asm.label(Lh)
    asm("s_cmp_lt_u32 %s, 8" % s(sHS))
    asm("s_cbranch_scc1 %s_hw12" % N)
    asm("s_waitcnt vmcnt(0)")
    asm("s_branch %s_hw" % N)
    asm.label("%s_hw12" % N)
    asm("s_waitcnt vmcnt(12)")
    asm.label("%s_hw" % N)
    asm("s_barrier")
    asm("s_cmp_lt_u32 %s, 7" % s(sHS))
    asm("s_cbranch_scc0 %s_hnodma" % N)
    dma_stage()
    if WARM:
        asm("s_cmp_eq_u32 %s, %d" % (s(sHS), WARM - 1))
        asm("s_cbranch_scc0 %s_hnodma" % N)
        asm("s_waitcnt lgkmcnt(0)")
        asm("s_cmp_lt_u32 %s, 4" % s(sP8))
        asm("s_cselect_b32 s4, s4, s6")
        asm("s_cselect_b32 s5, s5, s7")
        srd(asm, 60, "s4", "s5", 640 * 1280)
        asm("s_mov_b32 exec_lo, -1")
        asm("s_mov_b32 exec_hi, 0x3fffff")
        asm("buffer_load_dword v7, v6, s[60:63], s58 offen")
        asm("s_mov_b64 exec, -1")
    asm.label("%s_hnodma" % N)
    asm("s_add_u32 %s, %s, 1" % (s(sHS), s(sHS)))
    asm("s_cmp_lt_u32 %s, 10" % s(sHS))
    asm("s_cbranch_scc1 %s" % Lh)
    asm.label("%s_p2h" % N)
    st(2)
    sBR3, sRB3, sCB3 = 64, 65, 66
    def decode3():
        if not D1:
            asm("s_lshr_b32 %s, %s, 4" % (s(sBR3), s(sSLOT)))
            asm("s_bfe_u32 %s, %s, 0x10003" % (s(sRB3), s(sSLOT)))
            asm("s_lshl_b32 %s, %s, 1" % (s(sT0), s(sP8)))
            asm("s_add_u32 %s, %s, %s" % (s(sRB3), s(sRB3), s(sT0)))
            asm("s_and_b32 %s, %s, 7" % (s(sCB3), s(sSLOT)))
        else:
            asm("s_lshr_b32 %s, %s, 2" % (s(sBR3), s(sP8)))
            asm("s_and_b32 %s, %s, 3" % (s(sT0), s(sP8)))
            asm("s_lshl_b32 %s, %s, 2" % (s(sT0), s(sT0)))
            asm("s_lshr_b32 %s, %s, 3" % (s(sRB3), s(sSLOT)))
            asm("s_add_u32 %s, %s, %s" % (s(sRB3), s(sRB3), s(sT0)))
            asm("s_and_b32 %s, %s, 7" % (s(sCB3), s(sSLOT)))
    get_sync(220, 222)
    sHH, sRB2, sG0, sDQ, sTB, sNT = 44, 45, 46, 47, 48, 49
    sMSK, sM40 = 50, 52
    sP = 36
    sQM = 54
    sOffO, sOffQA, sBIG, sEPS = 62, 63, 67, 68
    S = 0; O = 144; Q = 160; F = [168, 176]; CM8 = 184; CM0 = 200; VF = [184, 192]
    vM, vNM = 216, 218
    vT = 220
    vLin, vKa, vVa, vL = 228, 229, 230, 231
    vOm, vOr, vFo, vU = 232, 233, 234, 235
    PB = 236
    PA = 168
    vL8 = 242
    AW = 4
    asm.label("%s_p2setup" % N)
    if not D1:
        asm("s_mov_b32 %s, %s" % (s(sHH), s(sSLOT)))
        asm("s_mov_b32 %s, %s" % (s(sRB2), s(sP8)))
    else:
        asm("s_lshl_b32 %s, %s, 2" % (s(sT0), s(sP8)))
        asm("s_and_b32 %s, %s, 3" % (s(sHH), s(sSLOT)))
        asm("s_add_u32 %s, %s, %s" % (s(sHH), s(sHH), s(sT0)))
        asm("s_lshr_b32 %s, %s, 2" % (s(sRB2), s(sSLOT)))
    asm("s_mul_i32 %s, %s, 5" % (s(sT0), s(sHH)))
    asm("s_lshr_b32 %s, %s, 2" % (s(sG0), s(sT0)))
    asm("s_and_b32 %s, %s, 3" % (s(sDQ), s(sT0)))
    asm("s_lshl_b32 %s, %s, 3" % (s(sTB), s(sRB2)))
    asm("s_add_u32 %s, %s, %s" % (s(sTB), s(sTB), s(sW)))
    asm("s_add_u32 %s, %s, 1" % (s(sNT), s(sTB)))
    asm("s_min_u32 %s, %s, 9" % (s(sNT), s(sNT)))
    asm("s_mov_b32 %s, 0x000fffff" % s(sMSK)); asm("s_mov_b32 %s, 0x000fffff" % s(sMSK + 1))
    asm("s_mov_b32 %s, -1" % s(sM40)); asm("s_mov_b32 %s, 0xff" % s(sM40 + 1))
    lane(vL)
    asm("v_lshlrev_b32 %s, 3, %s" % (v(vL8), v(vL)))
    asm("v_lshlrev_b32 %s, 4, %s" % (v(vLin), v(vL)))
    asm("s_mov_b32 %s, %s" % (s(sBIG), fhex(BIG)))
    asm("v_and_b32 %s, 31, %s" % (v(vU), v(vL)))
    asm("v_lshrrev_b32 %s, 5, %s" % (v(vT + 4), v(vL)))
    asm("v_lshlrev_b32 %s, 2, %s" % (v(vT + 4), v(vT + 4)))
    asm("v_sub_u32 %s, %s, %s" % (v(vU), v(vU), v(vT + 4)))
    asm("v_mov_b32 %s, %s" % (v(vT + 5), s(sBIG)))
    asm("v_mov_b32 %s, 0" % v(vT + 6))
    for r0 in range(0, 16, 4):
        for k in range(4):
            r = r0 + k
            asm("v_cmp_le_i32 %s, %d, %s" % (s(sP + 2 * k, 2), 8 * (r >> 2) + (r & 3), v(vU)))
        asm("s_nop 1")
        for k in range(4):
            r = r0 + k
            asm("v_cndmask_b32 %s, %s, %s, %s" % (v(CM8 + r), v(vT + 5), v(vT + 6), s(sP + 2 * k, 2)))
            asm("v_cndmask_b32 %s, %s, %s, %s" % (v(CM0 + r), v(vT + 6), v(vT + 5), s(sP + 2 * k, 2)))
    for gg in range(2):
        for p in range(2):
            k = gg * 2 + p
            for h in range(2):
                asm("s_sub_u32 %s, %d, %s" % (s(sT0), 4 * gg + 2 * p + h, s(sDQ)))
                asm("s_cmp_le_u32 %s, 4" % s(sT0))
                asm("s_cselect_b32 %s, -1, 0" % s(sQM + 2 * k + h))
    asm("s_lshl_b32 %s, %s, 11" % (s(sT0), s(sW)))
    asm("s_add_u32 %s, %s, %d" % (s(sT0), s(sT0), L_K))
    asm("v_add_u32 %s, %s, %s" % (v(vKa), s(sT0), v(vLin)))
    asm("v_lshrrev_b32 %s, 5, %s" % (v(vT), v(vL)))
    asm("v_mul_u32_u24 %s, 20, %s" % (v(vT), v(vT)))
    asm("v_and_b32 %s, 31, %s" % (v(vU), v(vL)))
    asm("v_add_u32 %s, %s, %s" % (v(vT), v(vT), v(vU)))
    asm("v_lshlrev_b32 %s, 4, %s" % (v(vT), v(vT)))
    asm("s_mul_i32 %s, %s, 1280" % (s(sT0), s(sW)))
    asm("s_add_u32 %s, %s, %d" % (s(sT0), s(sT0), L_V))
    asm("v_add_u32 %s, %s, %s" % (v(vVa), s(sT0), v(vT)))
    asm("s_lshl_b32 %s, %s, 5" % (s(sT0), s(sTB)))
    asm("s_add_u32 %s, %s, %s" % (s(sT0), s(sT0), s(sHH)))
    asm("s_mul_i32 %s, %s, 1280" % (s(sOffO), s(sT0)))
    asm("v_mov_b32 %s, %s" % (v(vOm), v(vLin)))
    asm("v_add_u32 %s, 1024, %s" % (v(vOr), v(vL8)))
    asm("v_mov_b32 %s, 0x%x" % (v(vT + 4), OOB))
    asm("v_cmp_gt_u32 vcc, 32, %s" % v(vL))
    asm("s_nop 1")
    asm("v_cndmask_b32 %s, %s, %s, vcc" % (v(vOr), v(vT + 4), v(vOr)))
    asm("s_mul_i32 %s, %s, 40" % (s(sT2), s(sTB)))
    asm("s_add_u32 %s, %s, %s" % (s(sT2), s(sT2), s(sG0)))
    asm("s_lshl_b32 %s, %s, 10" % (s(sT2), s(sT2)))
    asm("s_add_u32 %s, %s, %d" % (s(sOffQA), s(sT2), R_QA))
    def q_loads():
        asm("s_add_u32 %s, %s, %d" % (s(sT3), s(sOffQA), R_QB - R_QA))
        asm("buffer_load_dwordx4 %s, %s, %s, %s offen sc1" % (v(Q, 4), v(vLin), s(SWS, 4), s(sT3)))
        asm("buffer_load_dwordx4 %s, %s, %s, %s offen offset:1024 sc1" % (v(Q + 4, 4), v(vLin), s(SWS, 4), s(sT3)))
    def own_tile_wait():
        D = lab("otw")
        asm("s_cmp_ge_u32 %s, 30" % s(sSLOT))
        asm("s_cbranch_scc1 %s" % D)
        lds_wait(W_CNT1, vT, vT + 1, atleast=4)
        asm.label(D)
    def lds_inc(word):
        asm("v_mov_b32 %s, 0x%x" % (v(vT), word))
        asm("v_mov_b32 %s, 1" % v(vT + 1))
        asm("s_mov_b64 exec, 1")
        asm("ds_add_u32 %s, %s" % (v(vT), v(vT + 1)))
        asm("s_mov_b64 exec, -1")
    asm("s_cmp_eq_u32 %s, %d" % (s(sW), AW))
    asm("s_cbranch_scc1 %s_aearly" % N)
    asm("s_cmp_eq_u32 %s, 5" % s(sW))
    asm("s_cbranch_scc1 %s_w5" % N)
    asm("s_cmp_ge_u32 %s, 6" % s(sW))
    asm("s_cbranch_scc1 %s_w67" % N)
    sTK, sKO, sLK, sIk = 4, 5, 6, 7
    lds_wait(W_S1, vT, vT + 1)
    st(4) if opts.get("kvst") else None
    asm("s_lshl_b32 %s, %s, 2" % (s(sIk), s(sW)))
    asm("s_cmp_eq_u32 %s, 0" % s(sRB2))
    asm("s_cselect_b32 %s, 8, 0" % s(sT0))
    asm("s_cmp_lt_u32 %s, %s" % (s(sIk), s(sT0)))
    asm("s_cbranch_scc1 %s_nok" % N)
    asm("s_lshl_b32 %s, %s, 3" % (s(sTK), s(sRB2)))
    asm("s_add_u32 %s, %s, %s" % (s(sTK), s(sTK), s(sIk)))
    asm("s_sub_u32 %s, %s, 8" % (s(sTK), s(sTK)))
    asm("s_mul_i32 %s, %s, 40" % (s(sKO), s(sTK)))
    asm("s_add_u32 %s, %s, %s" % (s(sKO), s(sKO), s(sG0)))
    asm("s_lshl_b32 %s, %s, 10" % (s(sKO), s(sKO)))
    asm("s_add_u32 %s, %s, %d" % (s(sKO), s(sKO), R_KB))
    asm("s_lshl_b32 %s, %s, 11" % (s(sLK), s(sIk)))
    asm("s_add_u32 %s, %s, %d" % (s(sLK), s(sLK), L_K))
    for ii in range(4):
        asm("s_add_u32 m0, %s, %d" % (s(sLK), ii * 2048))
        asm("s_nop 0")
        asm("buffer_load_dwordx4 %s, %s, %s offen sc1 lds" % (v(vLin), s(SWS, 4), s(sKO)))
        asm("buffer_load_dwordx4 %s, %s, %s offen offset:1024 sc1 lds" % (v(vLin), s(SWS, 4), s(sKO)))
        if ii < 3: asm("s_add_u32 %s, %s, 40960" % (s(sKO), s(sKO)))
    asm.label("%s_nok" % N)
    q_loads()
    asm("s_waitcnt vmcnt(0)")
    lds_inc(W_K)
    asm("s_branch %s_kwait" % N)
    asm.label("%s_w67" % N)
    vDWO = 243
    sDA, sDM = 4, 5
    SWO = SA_
    decode3()
    asm("s_load_dwordx2 s[4:5], s[0:1], 16")
    asm("s_load_dwordx2 s[6:7], s[0:1], 40")
    asm("s_movk_i32 %s, 6554" % s(sT2))
    asm("s_movk_i32 %s, 1280" % s(sT3))
    for b in range(5):
        asm("v_add_u32 %s, %d, %s" % (v(vT), 64 * b, v(vL)))
        asm("v_mul_lo_u32 %s, %s, %s" % (v(vT + 1), v(vT), s(sT2)))
        asm("v_lshrrev_b32 %s, 16, %s" % (v(vT + 1), v(vT + 1)))
        asm("v_mul_u32_u24 %s, 10, %s" % (v(vT + 2), v(vT + 1)))
        asm("v_sub_u32 %s, %s, %s" % (v(vT), v(vT), v(vT + 2)))
        asm("v_lshlrev_b32 %s, 4, %s" % (v(vT), v(vT)))
        asm("v_mad_u32_u24 %s, %s, %s, %s" % (v(vDWO + b), v(vT + 1), s(sT3), v(vT)))
        if 0 < b < 4: asm("v_subrev_u32 %s, %d, %s" % (v(vDWO + b), b * 1024, v(vDWO + b)))
    asm("s_waitcnt lgkmcnt(0)")
    asm("s_cmp_eq_u32 %s, 0" % s(sBR3))
    asm("s_cselect_b32 s4, s4, s6")
    asm("s_cselect_b32 s5, s5, s7")
    asm("s_mul_i32 %s, %s, 160" % (s(sT0), s(sCB3)))
    asm("s_add_u32 s4, s4, %s" % s(sT0))
    asm("s_addc_u32 s5, s5, 0")
    asm("s_sub_u32 %s, %d, %s" % (s(sT1), 640 * 1280, s(sT0)))
    srd(asm, SWO, "s4", "s5", s(sT1))
    asm("s_and_b32 %s, %s, 1" % (s(sT0), s(sW)))
    asm("s_mul_i32 %s, %s, %d" % (s(sDA), s(sT0), 32 * 1280))
    asm("s_mul_i32 %s, %s, 5120" % (s(sDM), s(sT0)))
    def wo_group():
        asm("s_mov_b32 m0, %s" % s(sDM)); asm("s_nop 0")
        asm("buffer_load_dwordx4 %s, %s, %s offen lds" % (v(vDWO), s(SWO, 4), s(sDA)))
        for b in range(1, 4):
            asm("buffer_load_dwordx4 %s, %s, %s offen offset:%d lds" % (v(vDWO + b), s(SWO, 4), s(sDA), b * 1024))
        asm("s_add_u32 m0, %s, 4096" % s(sDM)); asm("s_nop 0")
        asm("buffer_load_dwordx4 %s, %s, %s offen lds" % (v(vDWO + 4), s(SWO, 4), s(sDA)))
        asm("s_add_u32 %s, %s, %d" % (s(sDA), s(sDA), 2 * 32 * 1280))
        asm("s_add_u32 %s, %s, %d" % (s(sDM), s(sDM), 2 * 5120))
    asm("s_cmp_ge_u32 %s, 30" % s(sSLOT))
    asm("s_cbranch_scc1 %s_wogo" % N)
    lds_wait(W_ISS, vT, vT + 1, atleast=4)
    asm.label("%s_wogo" % N)
    asm("s_mov_b32 s6, 0")
    asm.label("%s_woloop" % N)
    wo_group()
    asm("s_add_u32 s6, s6, 1")
    asm("s_cmp_lt_u32 s6, 10")
    asm("s_cbranch_scc1 %s_woloop" % N)
    lds_wait(W_S1, vT, vT + 1)
    asm("s_waitcnt vmcnt(30)")
    q_loads()
    asm("v_cmp_le_u32 vcc, 20, %s" % v(vL))
    asm("v_mov_b32 %s, 0" % v(vT))
    asm("v_mov_b32 %s, %d" % (v(vT + 1), 10240 - 320))
    asm("v_cndmask_b32 %s, %s, %s, vcc" % (v(vT), v(vT), v(vT + 1)))
    asm("v_add_u32 %s, %s, %s" % (v(vFo), v(vT), v(vLin)))
    asm("s_and_b32 %s, %s, 1" % (s(sIk), s(sW)))
    asm("s_lshl_b32 %s, %s, 3" % (s(sIk), s(sIk)))
    asm("s_or_b32 %s, %s, %s" % (s(sT0), s(sIk), s(sRB2)))
    asm("s_cmp_eq_u32 %s, 0" % s(sT0))
    asm("s_cbranch_scc1 %s_nov" % N)
    asm("s_lshl_b32 %s, %s, 3" % (s(sTK), s(sRB2)))
    asm("s_add_u32 %s, %s, %s" % (s(sTK), s(sTK), s(sIk)))
    asm("s_sub_u32 %s, %s, 8" % (s(sTK), s(sTK)))
    asm("s_mul_i32 %s, %s, 40960" % (s(sKO), s(sTK)))
    asm("s_mul_i32 %s, %s, 320" % (s(sT1), s(sHH)))
    asm("s_add_u32 %s, %s, %s" % (s(sKO), s(sKO), s(sT1)))
    asm("s_add_u32 %s, %s, %d" % (s(sKO), s(sKO), R_VB))
    asm("s_mul_i32 %s, %s, 1280" % (s(sLK), s(sIk)))
    asm("s_add_u32 %s, %s, %d" % (s(sLK), s(sLK), L_V))
    asm("s_mov_b64 exec, %s" % s(sM40, 2))
    for ii in range(8):
        asm("s_add_u32 m0, %s, %d" % (s(sLK), ii * 1280))
        asm("s_add_u32 %s, %s, %d" % (s(sT1), s(sKO), 20480 - 640))
        asm("buffer_load_dwordx4 %s, %s, %s offen sc1 lds" % (v(vFo), s(SWS, 4), s(sKO)))
        asm("buffer_load_dwordx4 %s, %s, %s offen offset:640 sc1 lds" % (v(vFo), s(SWS, 4), s(sT1)))
        if ii < 7: asm("s_add_u32 %s, %s, 40960" % (s(sKO), s(sKO)))
    asm("s_mov_b64 exec, -1")
    asm("s_waitcnt vmcnt(16)")
    asm("s_branch %s_kwait" % N)
    asm.label("%s_nov" % N)
    asm("s_waitcnt vmcnt(0)")
    asm("s_branch %s_kwait" % N)
    asm.label("%s_w5" % N)
    own_tile_wait()
    asm("s_add_u32 %s, %s, 7" % (s(sT0), s(sRB2)))
    asm("s_lshl_b32 %s, %s, 7" % (s(sT0), s(sT0)))
    asm("s_and_b32 %s, %s, %d" % (s(sT1), s(sP8) if REPL <= 8 else s(sHH), REPL - 1))
    asm("s_lshl_b32 %s, %s, 11" % (s(sT1), s(sT1)))
    asm("s_add_u32 %s, %s, %s" % (s(sT0), s(sT0), s(sT1)))
    asm("s_add_u32 %s, %s, %d" % (s(sPL), s(sT0), F1))
    asm("s_cmp_eq_u32 %s, 0" % s(sRB2))
    asm("s_cselect_b32 %s, 0, 0x7fe0" % s(sT1))
    asm("s_or_b32 %s, %s, 0x7fff0000" % (s(sT1), s(sT1)))
    poll(s(sPL), 32, vT, vL8, smask=s(sT1))
    lds_set(W_S1, vT, vT + 1)
    st(4)
    q_loads()
    asm("s_waitcnt vmcnt(0)")
    asm("s_branch %s_kwait" % N)
    asm.label("%s_aearly" % N)
    asm("v_lshrrev_b32 %s, 5, %s" % (v(vT), v(vL)))
    asm("v_mul_u32_u24 %s, 10240, %s" % (v(vT), v(vT)))
    asm("v_and_b32 %s, 31, %s" % (v(vU), v(vL)))
    asm("v_lshl_add_u32 %s, %s, 4, %s" % (v(vFo), v(vU), v(vT)))
    asm("v_mov_b32 %s, 0x3f803f80" % v(vT + 2))
    for r in range(64, 128): asm("v_mov_b32 %s, %s" % (v(r), v(vT + 2)))
    own_tile_wait()
    asm("s_lshl_b32 %s, %s, 7" % (s(sT0), s(sRB2)))
    asm("s_and_b32 %s, %s, %d" % (s(sT1), s(sP8) if REPL <= 8 else s(sHH), REPL - 1))
    asm("s_lshl_b32 %s, %s, 11" % (s(sT1), s(sT1)))
    asm("s_add_u32 %s, %s, %s" % (s(sT0), s(sT0), s(sT1)))
    asm("s_add_u32 %s, %s, %d" % (s(sPL), s(sT0), F1))
    poll(s(sPL), 15, vT, vL8)
    lds_set(W_S1A, vT, vT + 1)
    st(4)
    asm("s_lshl_b32 %s, %s, 3" % (s(sT0), s(sRB2)))
    asm("s_mul_i32 %s, %s, 40960" % (s(sT0), s(sT0)))
    asm("s_mul_i32 %s, %s, 320" % (s(sT1), s(sHH)))
    asm("s_add_u32 %s, %s, %s" % (s(sT0), s(sT0), s(sT1)))
    asm("s_add_u32 %s, %s, %d" % (s(sT1), s(sT0), R_KA))
    asm("s_add_u32 %s, %s, %d" % (s(sT2), s(sT0), R_VA))
    asm("s_mov_b64 exec, %s" % s(sMSK, 2))
    for b in range(8):
        for m in range(2):
            asm("buffer_load_dwordx4 %s, %s, %s, %s offen sc1" % (v((b * 2 + m) * 4, 4), v(vFo), s(SWS, 4), s(sT1)))
            asm("buffer_load_dwordx4 %s, %s, %s, %s offen sc1" % (v(64 + (b * 2 + m) * 4, 4), v(vFo), s(SWS, 4), s(sT2)))
            asm("s_add_u32 %s, %s, 20480" % (s(sT1), s(sT1)))
            asm("s_add_u32 %s, %s, 20480" % (s(sT2), s(sT2)))
    asm("s_mov_b64 exec, -1")
    lds_wait(W_S1, vT, vT + 1)
    q_loads()
    for b in range(16):
        asm("s_waitcnt vmcnt(%d)" % (32 - 2 * b))
        c = "0" if b == 0 else v(O, 16)
        asm("v_mfma_f32_32x32x16_bf16 %s, %s, %s, %s" % (v(O, 16), v(b * 4, 4), v(64 + b * 4, 4), c))
    asm("s_lshl_b32 %s, %s, 3" % (s(sT0), s(sHH)))
    asm("s_add_u32 %s, %s, %s" % (s(sT0), s(sT0), s(sRB2)))
    asm("s_mul_i32 %s, %s, 3072" % (s(sT0), s(sT0)))
    asm("s_add_u32 %s, %s, %d" % (s(sT0), s(sT0), R_KVP))
    asm("s_nop 7"); asm("s_nop 1")
    for j in range(3):
        asm("buffer_store_dwordx4 %s, %s, %s, %s offen offset:%d sc1" % (v(O + 4 * j, 4), v(vLin), s(SWS, 4), s(sT0), j * 1024))
    asm("s_waitcnt vmcnt(3)")
    asm.label("%s_kwait" % N)
    lds_wait(W_K, vT, vT + 1, atleast=4)
    st(5)
    def rdK(d, dst):
        for gg in range(2):
            asm("ds_read_b128 %s, %s offset:%d" % (v(dst + 4 * gg, 4), v(vKa), (8 - d) * 2048 + gg * 1024))
    def rdV(d, dst):
        asm("s_mov_b64 exec, %s" % s(sMSK, 2))
        for m in range(2):
            asm("ds_read_b128 %s, %s offset:%d" % (v(dst + 4 * m, 4), v(vVa), (8 - d) * 1280 + m * 640))
        asm("s_mov_b64 exec, -1")
    rdK(0, F[0])
    for gg in range(2):
        for p in range(2):
            k = gg * 2 + p
            for j in range(2):
                r = Q + 4 * gg + 2 * p + j
                asm("v_cndmask_b32 %s, 0, %s, %s" % (v(r), v(r), s(sQM + 2 * k, 2)))
    def maxes(d):
        b = S + 16 * d
        if d == 0:
            asm("v_max3_f32 %s, %s, %s, %s" % (v(vM), v(b), v(b + 1), v(b + 2)))
            for k in range(3, 15, 2):
                asm("v_max3_f32 %s, %s, %s, %s" % (v(vM), v(vM), v(b + k), v(b + k + 1)))
            asm("v_max_f32 %s, %s, %s" % (v(vM), v(vM), v(b + 15)))
        else:
            for k in range(0, 16, 2):
                asm("v_max3_f32 %s, %s, %s, %s" % (v(vM), v(vM), v(b + k), v(b + k + 1)))
    for d in range(9):
        cur, nxt = F[d & 1], F[(d + 1) & 1]
        asm("s_waitcnt lgkmcnt(0)")
        if d < 8: rdK(d + 1, nxt)
        if d > 0:
            asm("s_cmp_le_u32 %s, %d" % (s(sNT), d))
            asm("s_cbranch_scc1 %s_p1skip%d" % (N, d))
        else:
            asm("s_nop 1")
        c = v(CM8, 16) if d == 0 else (v(CM0, 16) if d == 8 else "0")
        b = v(S + 16 * d, 16)
        asm("v_mfma_f32_32x32x16_bf16 %s, %s, %s, %s" % (b, v(cur, 4), v(Q, 4), c))
        asm("v_mfma_f32_32x32x16_bf16 %s, %s, %s, %s" % (b, v(cur + 4, 4), v(Q + 4, 4), b))
        if d > 0:
            asm.label("%s_p1skip%d" % (N, d))
            if d == 1: asm("s_nop 7")
            maxes(d - 1)
            asm("s_cbranch_scc1 %s_p1end" % N)
    asm("s_nop 3")
    maxes(8)
    asm.label("%s_p1end" % N)
    st(6)
    asm("s_cmp_lg_u32 %s, %d" % (s(sW), AW))
    asm("s_cbranch_scc1 %s_nosig" % N)
    asm("s_waitcnt vmcnt(0)")
    asm("s_lshl_b32 %s, %s, 4" % (s(sT0), s(sHH)))
    asm("s_add_u32 %s, %s, %s" % (s(sT0), s(sT0), s(sRB2)))
    asm("s_lshl_b32 %s, %s, 3" % (s(sT0), s(sT0)))
    asm("s_add_u32 %s, %s, %d" % (s(sT0), s(sT0), F2))
    flag_store(s(sT0), vT, vT + 2)
    asm.label("%s_nosig" % N)
    asm("s_cmp_lt_u32 %s, 6" % s(sW))
    asm("s_cbranch_scc1 %s_vw" % N)
    asm("s_waitcnt vmcnt(0)")
    lds_inc(W_V)
    asm.label("%s_vw" % N)
    lds_wait(W_V, vT, vT + 1, atleast=2)
    asm("s_waitcnt lgkmcnt(0)")
    asm("s_mov_b32 %s, 0x3f803f80" % s(sT0))
    for r in range(16): asm("v_mov_b32 %s, %s" % (v(VF[0] + r), s(sT0)))
    rdV(0, VF[0])
    asm("v_mov_b32 %s, %s" % (v(vT + 2), v(vM)))
    asm("v_mov_b32 %s, %s" % (v(vT + 3), v(vM)))
    asm("s_nop 1")
    asm("v_permlane32_swap_b32 %s, %s" % (v(vT + 2), v(vT + 3)))
    asm("s_nop 1")
    asm("v_max_f32 %s, %s, %s" % (v(vM), v(vT + 2), v(vT + 3)))
    asm("v_sub_f32 %s, 0, %s" % (v(vNM), v(vM)))
    asm("v_sub_f32 %s, 0, %s" % (v(vNM + 1), v(vM)))
    for d in range(9):
        cur, nxt = VF[d & 1], VF[(d + 1) & 1]
        b = S + 16 * d
        if d > 0:
            asm("s_cmp_le_u32 %s, %d" % (s(sNT), d))
            asm("s_cbranch_scc1 %s_p2end" % N)
        for k in range(8):
            asm("v_pk_add_f32 %s, %s, %s" % (v(b + 2 * k, 2), v(b + 2 * k, 2), v(vNM, 2)))
        for k in range(16):
            asm("v_exp_f32 %s, %s" % (v(b + k), v(b + k)))
        asm("s_waitcnt lgkmcnt(0)")
        if d < 8: rdV(d + 1, nxt)
        for k in range(8):
            asm("v_cvt_pk_bf16_f32 %s, %s, %s" % (v(b + k), v(b + 2 * k), v(b + 2 * k + 1)))
        asm("s_nop 1")
        asm("v_mfma_f32_32x32x16_bf16 %s, %s, %s, %s" % (v(O, 16), v(cur, 4), v(b, 4), "0" if d == 0 else v(O, 16)))
        asm("v_mfma_f32_32x32x16_bf16 %s, %s, %s, %s" % (v(O, 16), v(cur + 4, 4), v(b + 4, 4), v(O, 16)))
        if d == 0:
            lds_wait(W_S1A, vT + 4, vT + 5)
            asm("buffer_load_dwordx4 %s, %s, %s, %s offen sc1" % (v(Q, 4), v(vLin), s(SWS, 4), s(sOffQA)))
            asm("buffer_load_dwordx4 %s, %s, %s, %s offen offset:1024 sc1" % (v(Q + 4, 4), v(vLin), s(SWS, 4), s(sOffQA)))
    asm.label("%s_p2end" % N)
    st(7)
    def normalize(dst, eps):
        asm("v_mov_b32 %s, %s" % (v(vT), v(O + 8)))
        asm("v_mov_b32 %s, %s" % (v(vT + 1), v(O + 8)))
        asm("s_nop 1")
        asm("v_permlane32_swap_b32 %s, %s" % (v(vT), v(vT + 1)))
        asm("s_nop 1")
        if eps: asm("v_add_f32 %s, %s, %s" % (v(vT + 1), s(sEPS), v(vT + 1)))
        asm("v_rcp_f32 %s, %s" % (v(vT + 1), v(vT + 1)))
        asm("s_nop 0")
        for k in range(12): asm("v_mul_f32 %s, %s, %s" % (v(O + k), v(vT + 1), v(O + k)))
        for k in range(6): asm("v_cvt_pk_bf16_f32 %s, %s, %s" % (v(dst + k), v(O + 2 * k), v(O + 2 * k + 1)))
    def store_o(src, region):
        asm("s_add_u32 %s, %s, %d" % (s(sT0), s(sOffO), region))
        asm("buffer_store_dwordx4 %s, %s, %s, %s offen%s" % (v(src, 4), v(vOm), s(SWS, 4), s(sT0), SC))
        asm("buffer_store_dwordx2 %s, %s, %s, %s offen%s" % (v(src + 4, 2), v(vOr), s(SWS, 4), s(sT0), SC))
    asm("s_mov_b32 %s, %s" % (s(sEPS), fhex(1e-6)))
    asm("s_cmp_ge_u32 %s, 4" % s(sW))
    asm("s_cbranch_scc1 %s_hiwaves" % N)
    asm("s_lshl_b32 %s, %s, 7" % (s(sPL), s(sHH)))
    asm("s_add_u32 %s, %s, %d" % (s(sPL), s(sPL), F2))
    asm("s_cmp_lg_u32 %s, 0" % s(sW))
    asm("s_cbranch_scc1 %s_w123" % N)
    poll_issue(s(sPL), vT + 4, vL8, 8)
    asm("s_nop 7"); asm("s_nop 3")
    normalize(PB, False)
    poll(s(sPL), 8, vT + 4, vL8, preissued=True)
    lds_set(W_S2, vT + 4, vT + 5)
    asm("s_branch %s_w0123" % N)
    asm.label("%s_w123" % N)
    asm("s_nop 7"); asm("s_nop 3")
    normalize(PB, False)
    lds_wait(W_S2, vT + 4, vT + 5)
    asm.label("%s_w0123" % N)
    asm("s_lshl_b32 %s, %s, 1" % (s(sT0), s(sW)))
    asm("s_sub_u32 %s, %s, %s" % (s(sT0), s(sT0), s(sDQ)))
    asm("v_lshrrev_b32 %s, 5, %s" % (v(vT), v(vL)))
    asm("v_add_u32 %s, %s, %s" % (v(vT), s(sT0), v(vT)))
    asm("v_and_b32 %s, 31, %s" % (v(vT + 1), v(vL)))
    asm("v_lshlrev_b32 %s, 4, %s" % (v(vT + 1), v(vT + 1)))
    asm("v_lshl_add_u32 %s, %s, 9, %s" % (v(vT + 1), v(vT), v(vT + 1)))
    asm("v_cmp_ge_u32 vcc, 4, %s" % v(vT))
    asm("v_mov_b32 %s, 0x%x" % (v(vT + 2), OOB))
    asm("s_nop 0")
    asm("v_cndmask_b32 %s, %s, %s, vcc" % (v(vU), v(vT + 2), v(vT + 1)))
    asm("s_lshl_b32 %s, %s, 3" % (s(sT0), s(sHH)))
    asm("s_mul_i32 %s, %s, 3072" % (s(sT0), s(sT0)))
    asm("s_add_u32 %s, %s, %d" % (s(sT0), s(sT0), R_KVP))
    for r in range(8):
        asm("buffer_load_dwordx4 %s, %s, %s, %s offen sc1" % (v(S + 4 * r, 4), v(vU), s(SWS, 4), s(sT0)))
        if r < 7: asm("s_add_u32 %s, %s, 3072" % (s(sT0), s(sT0)))
    store_o(PB, R_OB)
    asm("s_waitcnt vmcnt(2)")
    for r in range(1, 8):
        for k in range(4):
            asm("v_add_f32 %s, %s, %s" % (v(S + k), v(S + k), v(S + 4 * r + k)))
    asm("v_cvt_pk_bf16_f32 %s, %s, %s" % (v(vT), v(S), v(S + 1)))
    asm("v_cvt_pk_bf16_f32 %s, %s, %s" % (v(vT + 1), v(S + 2), v(S + 3)))
    asm("s_lshr_b32 %s, %s, 1" % (s(sT0), s(sW)))
    asm("s_lshl_b32 %s, %s, 10" % (s(sT0), s(sT0)))
    asm("s_and_b32 %s, %s, 1" % (s(sT1), s(sW)))
    asm("s_lshl_b32 %s, %s, 3" % (s(sT1), s(sT1)))
    asm("s_add_u32 %s, %s, %s" % (s(sT0), s(sT0), s(sT1)))
    asm("s_add_u32 %s, %s, %d" % (s(sT0), s(sT0), L_KVT))
    asm("v_add_u32 %s, %s, %s" % (v(vU), s(sT0), v(vLin)))
    asm("ds_write_b64 %s, %s" % (v(vU), v(vT, 2)))
    asm("s_branch %s_join" % N)
    asm.label("%s_hiwaves" % N)
    asm("s_nop 7"); asm("s_nop 3")
    normalize(PB, False)
    store_o(PB, R_OB)
    asm.label("%s_join" % N)
    asm("s_waitcnt lgkmcnt(0)")
    asm("s_barrier")
    st(8)
    asm("v_add_u32 %s, 0x%x, %s" % (v(vU), L_KVT, v(vLin)))
    asm("ds_read_b128 %s, %s" % (v(F[0], 4), v(vU)))
    asm("ds_read_b128 %s, %s offset:1024" % (v(F[0] + 4, 4), v(vU)))
    sF3 = 69
    asm("s_lshl_b32 %s, %s, 5" % (s(sF3), s(sRB2)))
    asm("s_add_u32 %s, %s, %s" % (s(sF3), s(sF3), s(sHH)))
    asm("s_lshl_b32 %s, %s, 3" % (s(sF3), s(sF3)))
    asm("s_add_u32 %s, %s, %d" % (s(sF3), s(sF3), F3))
    asm("s_waitcnt vmcnt(2) lgkmcnt(0)")
    asm("v_mfma_f32_32x32x16_bf16 %s, %s, %s, 0" % (v(O, 16), v(F[0], 4), v(Q, 4)))
    asm("v_mfma_f32_32x32x16_bf16 %s, %s, %s, %s" % (v(O, 16), v(F[0] + 4, 4), v(Q + 4, 4), v(O, 16)))
    asm("s_nop 7"); asm("s_nop 3")
    normalize(PA, True)
    store_o(PA, R_OA)
    asm("s_add_u32 %s, %s, %d" % (s(sT1), s(sF3), 8 * 256))
    asm("s_waitcnt vmcnt(2)")
    release()
    lds_arrive(W_CNT3B, 8, vT + 6, vT + 4, s(sT1))
    asm("s_waitcnt vmcnt(0)")
    release()
    lds_arrive(W_CNT3A, 8, vT + 6, vT + 4, s(sF3))
    st(9)
    asm("s_cmp_ge_u32 %s, 4" % s(sW))
    asm("s_cbranch_scc1 %s_fin" % N)
    OF = 0; ACC3 = 160; WF = [200, 220]
    vOM, vOR, vWm, vWm2, vWr, vWr2 = 245, 246, 247, 248, 249, 250
    p3L, p3T, p3U, p3X = 251, 252, 253, 254
    vDW3 = 240
    sTB3, sOffO3, sOM = 44, 45, 46
    SOUT = SB_
    decode3()
    asm("s_load_dwordx2 s[4:5], s[0:1], 48")
    asm("s_lshl_b32 %s, %s, 2" % (s(sTB3), s(sRB3)))
    asm("s_add_u32 %s, %s, %s" % (s(sTB3), s(sTB3), s(sW)))
    lane(p3L)
    asm("v_lshlrev_b32 %s, 3, %s" % (v(p3X), v(p3L)))
    asm("s_lshl_b32 %s, %s, 3" % (s(sT0), s(sBR3)))
    asm("s_lshr_b32 %s, %s, 1" % (s(sT1), s(sRB3)))
    asm("s_add_u32 %s, %s, %s" % (s(sT0), s(sT0), s(sT1)))
    asm("s_lshl_b32 %s, %s, 8" % (s(sT0), s(sT0)))
    asm("s_add_u32 %s, %s, %d" % (s(sPL), s(sT0), F3))
    asm("v_lshrrev_b32 %s, 4, %s" % (v(p3T), v(p3L)))
    asm("v_and_b32 %s, 15, %s" % (v(p3U), v(p3L)))
    asm("v_lshrrev_b32 %s, 1, %s" % (v(vWm2), v(p3T)))
    asm("v_mul_u32_u24 %s, 1280, %s" % (v(vOM), v(vWm2)))
    asm("v_and_b32 %s, 1, %s" % (v(vWm2), v(p3T)))
    asm("v_lshl_add_u32 %s, %s, 9, %s" % (v(vOM), v(vWm2), v(vOM)))
    asm("v_lshl_add_u32 %s, %s, 4, %s" % (v(vOM), v(p3U), v(vOM)))
    asm("v_mul_u32_u24 %s, 1280, %s" % (v(vOR), v(p3T)))
    asm("v_lshl_add_u32 %s, %s, 3, %s" % (v(vOR), v(p3U), v(vOR)))
    asm("v_add_u32 %s, 1024, %s" % (v(vOR), v(vOR)))
    asm("v_bfe_u32 %s, %s, 2, 2" % (v(p3U), v(p3L)))
    asm("v_lshrrev_b32 %s, 1, %s" % (v(vWm2), v(p3T)))
    asm("v_mul_u32_u24 %s, 20, %s" % (v(vWm), v(vWm2)))
    asm("v_and_b32 %s, 1, %s" % (v(vWm2), v(p3T)))
    asm("v_lshl_add_u32 %s, %s, 2, %s" % (v(vWm), v(vWm2), v(vWm)))
    asm("v_add_u32 %s, %s, %s" % (v(vWm), v(vWm), v(p3U)))
    asm("v_mul_u32_u24 %s, 160, %s" % (v(vWm), v(vWm)))
    asm("v_mul_u32_u24 %s, 20, %s" % (v(vWr), v(p3T)))
    asm("v_add_u32 %s, %s, %s" % (v(vWr), v(vWr), v(p3U)))
    asm("v_add_u32 %s, 16, %s" % (v(vWr), v(vWr)))
    asm("v_mul_u32_u24 %s, 160, %s" % (v(vWr), v(vWr)))
    asm("v_and_b32 %s, 3, %s" % (v(vWm2), v(p3L)))
    asm("v_lshl_add_u32 %s, %s, 3, %s" % (v(vWm), v(vWm2), v(vWm)))
    asm("v_lshl_add_u32 %s, %s, 3, %s" % (v(vWr), v(vWm2), v(vWr)))
    asm("v_add_u32 %s, 51200, %s" % (v(vWm2), v(vWm)))
    asm("v_add_u32 %s, 51200, %s" % (v(vWr2), v(vWr)))
    asm("s_mul_i32 %s, %s, %d" % (s(sOffO3), s(sBR3), REG))
    asm("s_add_u32 %s, %s, %d" % (s(sOffO3), s(sOffO3), R_OA))
    asm("s_mul_i32 %s, %s, 40960" % (s(sT0), s(sTB3)))
    asm("s_add_u32 %s, %s, %s" % (s(sOffO3), s(sOffO3), s(sT0)))
    asm("s_waitcnt lgkmcnt(0)")
    srd(asm, SOUT, "s4", "s5", 2048 * 2560)
    asm("s_cmp_lg_u32 %s, 0" % s(sW))
    asm("s_cbranch_scc1 %s_p3w" % N)
    poll(s(sPL), 32, vDW3, p3X)
    lds_set(W_S3, vDW3, vDW3 + 1)
    asm("s_branch %s_p3go" % N)
    asm.label("%s_p3w" % N)
    lds_wait(W_S3, vDW3, vDW3 + 1)
    asm.label("%s_p3go" % N)
    st(10)
    def oloads(sidx):
        if sidx < 16:
            asm("s_add_u32 %s, %s, %d" % (s(sOM), s(sOffO3), 2560 * sidx))
            for rt in range(2):
                asm("buffer_load_dwordx4 %s, %s, %s, %s offen offset:%d%s" % (v(OF + (sidx * 2 + rt) * 4, 4), v(vOM), s(SWS, 4), s(sOM), rt * 256, LSC3))
        else:
            a_ = sidx - 16
            for half in range(2):
                asm("s_add_u32 %s, %s, %d" % (s(sOM), s(sOffO3), a_ * 8 * 1280 + half * 5120))
                for rt in range(2):
                    asm("buffer_load_dwordx2 %s, %s, %s, %s offen offset:%d%s" % (v(OF + ((16 + a_) * 2 + rt) * 4 + 2 * half, 2), v(vOR), s(SWS, 4), s(sOM), rt * 128, LSC3))
    def cum(k): return 2 * (k + 1) if k < 16 else 32 + 4 * (k - 15)
    PD = opts.get("pd", 5)
    for k in range(PD): oloads(k)
    def wreads(step, dst):
        ops = []
        for ct in range(5):
            for a_ in range(2):
                if step < 16:
                    base = vWm if step < 8 else vWm2
                    off = (step & 7) * 6400 + a_ * 1280 + ct * 32
                else:
                    ap = step - 16
                    base = vWr if ap < 2 else vWr2
                    off = (ap & 1) * 25600 + a_ * 12800 + ct * 32
                ops.append(lambda ct=ct, a_=a_, base=base, off=off: asm("ds_read_b64_tr_b16 %s, %s offset:%d" % (v(dst + 4 * ct + 2 * a_, 2), v(base), off)))
        return ops
    if opts.get("p3st"): st(1)
    for f in wreads(0, WF[0]): f()
    for sidx in range(20):
        cur = WF[sidx & 1]
        nxt_ops = wreads(sidx + 1, WF[(sidx + 1) & 1]) if sidx < 19 else []
        vm = cum(min(sidx + PD - 1, 19)) - cum(sidx)
        asm("s_waitcnt vmcnt(%d) lgkmcnt(0)" % vm)
        if opts.get("p3st") and sidx in (0, 8, 16): st({0: 2, 8: 3, 16: 4}[sidx])
        m = 0
        for ct in range(5):
            for rt in range(2):
                acc = v(ACC3 + (rt * 5 + ct) * 4, 4)
                c = "0" if sidx == 0 else acc
                asm("v_mfma_f32_16x16x32_bf16 %s, %s, %s, %s" % (acc, v(cur + 4 * ct, 4), v(OF + (sidx * 2 + rt) * 4, 4), c))
                if m < 5 and nxt_ops:
                    nxt_ops[2 * m](); nxt_ops[2 * m + 1]()
                if m == 5 and sidx + PD < 20: oloads(sidx + PD)
                m += 1
    st(11)
    asm("v_and_b32 %s, 15, %s" % (v(p3U), v(p3L)))
    asm("v_mul_u32_u24 %s, 160, %s" % (v(p3U), v(p3U)))
    asm("v_lshrrev_b32 %s, 4, %s" % (v(p3T), v(p3L)))
    asm("v_lshl_add_u32 %s, %s, 3, %s" % (v(p3U), v(p3T), v(p3U)))
    asm("s_mul_i32 %s, %s, 5120" % (s(sT0), s(sW)))
    asm("s_add_u32 %s, %s, %d" % (s(sT0), s(sT0), L_OUT))
    asm("v_add_u32 %s, %s, %s" % (v(p3U), s(sT0), v(p3U)))
    asm("v_lshlrev_b32 %s, 4, %s" % (v(p3X), v(p3L)))
    asm("v_add_u32 %s, %s, %s" % (v(p3X), s(sT0), v(p3X)))
    asm("s_nop 3")
    for rt in range(2):
        for ct in range(5):
            b = ACC3 + (rt * 5 + ct) * 4
            t = OF + (rt * 5 + ct) * 2
            asm("v_cvt_pk_bf16_f32 %s, %s, %s" % (v(t), v(b), v(b + 1)))
            asm("v_cvt_pk_bf16_f32 %s, %s, %s" % (v(t + 1), v(b + 2), v(b + 3)))
            asm("ds_write_b64 %s, %s offset:%d" % (v(p3U), v(t, 2), rt * 2560 + ct * 32))
    asm("s_movk_i32 %s, 6554" % s(sT2))
    asm("s_movk_i32 %s, 2560" % s(sT3))
    for b in range(5):
        asm("v_add_u32 %s, %d, %s" % (v(p3T), 64 * b, v(p3L)))
        asm("v_mul_lo_u32 %s, %s, %s" % (v(vWm), v(p3T), s(sT2)))
        asm("v_lshrrev_b32 %s, 16, %s" % (v(vWm), v(vWm)))
        asm("v_mul_u32_u24 %s, 10, %s" % (v(vWr), v(vWm)))
        asm("v_sub_u32 %s, %s, %s" % (v(p3T), v(p3T), v(vWr)))
        asm("v_lshlrev_b32 %s, 4, %s" % (v(p3T), v(p3T)))
        asm("v_mad_u32_u24 %s, %s, %s, %s" % (v(vDW3 + b), v(vWm), s(sT3), v(p3T)))
    asm("s_mul_i32 %s, %s, %d" % (s(sT0), s(sTB3), 32 * 2560))
    asm("s_mul_i32 %s, %s, 1280" % (s(sT1), s(sBR3)))
    asm("s_add_u32 %s, %s, %s" % (s(sT0), s(sT0), s(sT1)))
    asm("s_mul_i32 %s, %s, 160" % (s(sT1), s(sCB3)))
    asm("s_add_u32 %s, %s, %s" % (s(sT0), s(sT0), s(sT1)))
    asm("s_waitcnt lgkmcnt(0)")
    for b in range(5):
        asm("ds_read_b128 %s, %s offset:%d" % (v(32 + 4 * b, 4), v(p3X), b * 1024))
    for b in range(5):
        asm("s_waitcnt lgkmcnt(%d)" % (4 - b))
        asm("buffer_store_dwordx4 %s, %s, %s, %s offen%s" % (v(32 + 4 * b, 4), v(vDW3 + b), s(SOUT, 4), s(sT0), {0: "", 1: " sc1", 2: " nt", 3: " sc0 sc1"}[opts.get("outsc", 0)]))
    asm.label("%s_fin" % N)
    if stamp:
        asm("s_waitcnt vmcnt(0)")
        st(12)
        asm("s_waitcnt lgkmcnt(0)")
        asm("s_load_dwordx2 s[4:5], s[0:1], 64")
        asm("s_waitcnt lgkmcnt(0)")
        asm("s_add_u32 s4, s4, %d" % (R_STAMP + (opts.get("wsoff", 0) << 20)))
        asm("s_addc_u32 s5, s5, 0")
        srd(asm, SA_, "s4", "s5", 1 << 20)
        asm("s_lshl_b32 %s, s2, 3" % s(sT0))
        asm("s_add_u32 %s, %s, %s" % (s(sT0), s(sT0), s(sW)))
        asm("s_lshl_b32 %s, %s, 7" % (s(sT0), s(sT0)))
        asm("v_mov_b32 v1, %s" % s(sT0))
        for i in range(13):
            asm("v_mov_b32 v2, %s" % s(STB + 2 * i))
            asm("v_mov_b32 v3, %s" % s(STB + 2 * i + 1))
            asm("buffer_store_dwordx2 v[2:3], v1, %s, 0 offen offset:%d" % (s(SA_, 4), 8 * i))
            asm("s_nop 1")
    asm.label("%s_end" % N)
    asm("s_endpgm")
    return dict(name=N, vgpr=256, sgpr=100, grid=256, block=512, lds=LDS_BYTES)
HEADER = open("concat_heads__linear_attn_block__sliding_block__prompt.s.ref").read().split("; Override")[0]
def build(stamp=False, opts=None):
    body = A()
    i = gen(body, stamp=stamp, opts=opts)
    out = HEADER
    out += "; @launch grid=(%d,1,1) block=(%d,1,1) lds=%d\n" % (i["grid"], i["block"], i["lds"])
    out += '.amdgcn_target "amdgcn-amd-amdhsa--gfx950"\n.text\n'
    out += body.text()
    d = A()
    d('.section .rodata,"a"')
    kernel_desc(d, i["name"], i["vgpr"], i["sgpr"])
    out += d.text()
    return out
if __name__ == "__main__":
    import sys
    opts = {}
    for a_ in sys.argv[3:]:
        k, val = a_.split("="); opts[k] = int(val)
    open(sys.argv[1], "w").write(build(stamp=(len(sys.argv) > 2 and sys.argv[2] == "stamp"), opts=opts))
```

```python
from asmlib import *
import math
REG = 2621440
R_QA, R_KA, R_VA, R_QB, R_KB, R_VB, R_OA, R_OB, R_KVP, R_FLG = [i * REG for i in range(10)]
F1 = R_FLG
F2 = R_FLG + 65536
F3 = R_FLG + 65536 + 8192
WS_REC = R_FLG + 131072
R_STAMP = 10 * REG
LOG2E = 1.4426950408889634
QSCALE = LOG2E / math.sqrt(20.0)
BIG = -1.0e30
OOB = 0x40000000
L_WO, L_K, L_V, L_KVT = 0, 102400, 135168, 155648
L_OUT = L_K
L_SYNC = 157696
W_CNT1, W_S1, W_S1A, W_S2, W_CNT3B, W_CNT3A, W_S3, W_ISS, W_K, W_V = [L_SYNC + 4 * i for i in range(10)]
LDS_BYTES = 157696 + 64
SPIN_MAX = 0x40000
NAME = "concat_heads__linear_attn_block__sliding_block__prompt_kernel"
class G:
    pass
def gen(asm, stamp=False, name=NAME, opts=None):
    opts = opts or {}
    N = name
    D1 = opts.get("d1", 0)
    SC = " sc1" if D1 else ""
    SC = {0: SC, 1: " sc0 sc1", 2: " sc1 nt", 3: " sc0 sc1 nt"}[opts.get("scmode", 0)]
    REPL = opts.get("repl", 8)
    LSC3 = "" if opts.get("plain3") else " sc1"
    sW = 3
    SWS, SDBG = 8, 12
    sNON = 16
    sT0, sT1, sT2, sT3 = 18, 19, 20, 21
    sCNT, sPL = 22, 23
    SA_, SB_ = 24, 28
    sMASK = 32
    sPC = 34
    STB = 72
    sP8, sSLOT, sLOCAL, sXCC = 70, 71, 98, 99
    def st(k):
        if stamp:
            asm("s_memrealtime %s" % s(STB + 2 * k, 2))
    def lane(dst):
        asm("v_mbcnt_lo_u32_b32 %s, -1, 0" % v(dst))
        asm("v_mbcnt_hi_u32_b32 %s, -1, %s" % (v(dst), v(dst)))
    uid = [0]
    def lab(p):
        uid[0] += 1
        return "%s_%s%d" % (N, p, uid[0])
    def sync_issue(vd, vo):
        lane(vo)
        asm("s_lshl_b32 %s, %s, 3" % (s(sT0), s(sP8)))
        asm("s_add_u32 %s, %s, 64" % (s(sT0), s(sT0)))
        asm("v_cmp_eq_u32 vcc, 1, %s" % v(vo))
        asm("v_mov_b32 %s, %s" % (v(vd), s(sT0)))
        asm("v_mov_b32 %s, 0" % v(vo))
        asm("v_cndmask_b32 %s, %s, %s, vcc" % (v(vo), v(vo), v(vd)))
        asm("buffer_load_dwordx2 %s, %s, %s, 0 offen sc1" % (v(vd, 2), v(vo), s(SDBG, 4)))
    def get_sync(vd, vo, preissued=False):
        L, D = lab("non"), lab("nond")
        if not preissued: sync_issue(vd, vo)
        asm("s_mov_b32 %s, 0" % s(sCNT))
        asm.label(L)
        asm("s_waitcnt vmcnt(0)")
        asm("v_readlane_b32 %s, %s, 0" % (s(sNON), v(vd)))
        asm("v_readlane_b32 %s, %s, 0" % (s(sNON + 1), v(vd + 1)))
        asm("v_readlane_b32 %s, %s, 1" % (s(sPC), v(vd)))
        asm("v_readlane_b32 %s, %s, 1" % (s(sPC + 1), v(vd + 1)))
        asm("s_add_u32 %s, %s, 1" % (s(sCNT), s(sCNT)))
        asm("s_nop 2")
        asm("s_cmp_lg_u32 %s, 0" % s(sNON))
        asm("s_cbranch_scc1 %s" % D)
        asm("s_cmp_ge_u32 %s, 0x%x" % (s(sCNT), SPIN_MAX))
        asm("s_cbranch_scc1 %s" % D)
        asm("s_sleep 4")
        asm("buffer_load_dwordx2 %s, %s, %s, 0 offen sc1" % (v(vd, 2), v(vo), s(SDBG, 4)))
        asm("s_branch %s" % L)
        asm.label(D)
        asm("s_lshl_b32 %s, %s, 3" % (s(sT0), s(sXCC)))
        asm("s_lshl_b64 %s, 32, %s" % (s(sMASK, 2), s(sT0)))
        asm("s_cmp_eq_u64 %s, %s" % (s(sMASK, 2), s(sPC, 2)))
        asm("s_cselect_b32 %s, 1, 0" % s(sLOCAL))
        if opts.get("nolocal"): asm("s_mov_b32 %s, 0" % s(sLOCAL))
    def release():
        if D1: return
        D = lab("rel")
        asm("s_cmp_lg_u32 %s, 0" % s(sLOCAL))
        asm("s_cbranch_scc1 %s" % D)
        asm("buffer_wbl2 sc1")
        asm("s_waitcnt vmcnt(0)")
        asm.label(D)
    def lds_set(word, va, vd):
        asm("v_mov_b32 %s, 0x%x" % (v(va), word))
        asm("v_mov_b32 %s, 1" % v(vd))
        asm("ds_write_b32 %s, %s" % (v(va), v(vd)))
    def lds_wait(word, va, vd, atleast=1):
        L, D = lab("lw"), lab("lwd")
        asm("v_mov_b32 %s, 0x%x" % (v(va), word))
        asm("s_mov_b32 %s, 0" % s(sCNT))
        asm.label(L)
        asm("ds_read_b32 %s, %s" % (v(vd), v(va)))
        asm("s_waitcnt lgkmcnt(0)")
        asm("v_readfirstlane_b32 %s, %s" % (s(sT0), v(vd)))
        asm("s_add_u32 %s, %s, 1" % (s(sCNT), s(sCNT)))
        asm("s_nop 2")
        asm("s_cmp_ge_u32 %s, %d" % (s(sT0), atleast))
        asm("s_cbranch_scc1 %s" % D)
        asm("s_cmp_ge_u32 %s, 0x%x" % (s(sCNT), SPIN_MAX * 8))
        asm("s_cbranch_scc1 %s" % D)
        asm("s_sleep 1")
        asm("s_branch %s" % L)
        asm.label(D)
    def lds_arrive(word, n, va, vd, soff, replicas=1):
        D = lab("arr")
        asm("v_mov_b32 %s, 0x%x" % (v(va), word))
        asm("v_mov_b32 %s, 1" % v(vd))
        asm("s_mov_b64 exec, 1")
        asm("ds_add_rtn_u32 %s, %s, %s" % (v(vd), v(va), v(vd)))
        asm("s_waitcnt lgkmcnt(0)")
        asm("s_mov_b64 exec, -1")
        asm("v_readfirstlane_b32 %s, %s" % (s(sCNT), v(vd)))
        asm("s_nop 3")
        asm("s_cmp_lg_u32 %s, %d" % (s(sCNT), n - 1))
        asm("s_cbranch_scc1 %s" % D)
        flag_store(soff, vd, va, replicas)
        asm.label(D)
    def poll_issue(soff, vd, vo, n):
        asm("s_mov_b32 exec_lo, 0x%x" % ((1 << n) - 1))
        asm("s_mov_b32 exec_hi, 0")
        asm("buffer_load_dwordx2 %s, %s, %s, %s offen sc1" % (v(vd, 2), v(vo), s(SWS, 4), soff))
        asm("s_mov_b64 exec, -1")
    def poll(soff, n, vd, vo, preissued=False, lo=0, smask=None):
        L, D = lab("poll"), lab("polld")
        m = ((1 << n) - 1) & ~((1 << lo) - 1)
        asm("s_mov_b32 %s, %s" % (s(sMASK), smask if smask else "0x%x" % (m & 0xffffffff)))
        asm("s_mov_b32 %s, 0x%x" % (s(sMASK + 1), m >> 32))
        if not preissued: poll_issue(soff, vd, vo, n)
        asm("s_mov_b32 %s, 0" % s(sCNT))
        asm.label(L)
        asm("s_waitcnt vmcnt(0)")
        asm("v_cmp_eq_u32 vcc, %s, %s" % (s(sNON), v(vd)))
        asm("v_cmp_eq_u32 %s, %s, %s" % (s(sPC, 2), s(sNON + 1), v(vd + 1)))
        asm("s_add_u32 %s, %s, 1" % (s(sCNT), s(sCNT)))
        asm("s_nop 3")
        asm("s_and_b64 %s, %s, vcc" % (s(sPC, 2), s(sPC, 2)))
        asm("s_and_b64 %s, %s, %s" % (s(sPC, 2), s(sPC, 2), s(sMASK, 2)))
        asm("s_cmp_eq_u64 %s, %s" % (s(sPC, 2), s(sMASK, 2)))
        asm("s_cbranch_scc1 %s" % D)
        asm("s_cmp_ge_u32 %s, 0x%x" % (s(sCNT), SPIN_MAX))
        asm("s_cbranch_scc1 %s" % D)
        asm("s_sleep %d" % opts.get("sleep", 3))
        poll_issue(soff, vd, vo, n)
        asm("s_branch %s" % L)
        asm.label(D)
    def ppoll(soff, n, regs, vo, smask=None):
        k = len(regs)
        L, D = lab("pp"), lab("ppd")
        m = (1 << n) - 1
        asm("s_mov_b32 %s, %s" % (s(sMASK), smask if smask else "0x%x" % (m & 0xffffffff)))
        asm("s_mov_b32 %s, 0x%x" % (s(sMASK + 1), m >> 32))
        for i, r in enumerate(regs):
            poll_issue(soff, r, vo, n)
            if i + 1 < k: asm("s_sleep %d" % opts.get("pstag", 6))
        asm("s_mov_b32 %s, 0" % s(sCNT))
        asm.label(L)
        for i, r in enumerate(regs):
            asm("s_waitcnt vmcnt(%d)" % (k - 1))
            asm("v_cmp_eq_u32 vcc, %s, %s" % (s(sNON), v(r)))
            asm("v_cmp_eq_u32 %s, %s, %s" % (s(sPC, 2), s(sNON + 1), v(r + 1)))
            asm("s_add_u32 %s, %s, 1" % (s(sCNT), s(sCNT)))
            asm("s_nop 3")
            asm("s_and_b64 %s, %s, vcc" % (s(sPC, 2), s(sPC, 2)))
            asm("s_and_b64 %s, %s, %s" % (s(sPC, 2), s(sPC, 2), s(sMASK, 2)))
            asm("s_cmp_eq_u64 %s, %s" % (s(sPC, 2), s(sMASK, 2)))
            asm("s_cbranch_scc1 %s" % D)
            poll_issue(soff, r, vo, n)
        asm("s_cmp_lt_u32 %s, 0x%x" % (s(sCNT), SPIN_MAX * 3))
        asm("s_cbranch_scc1 %s" % L)
        asm.label(D)
    def flag_store(soff, vd, vo, replicas=1):
        if replicas > 1:
            lane(vo)
            asm("v_lshlrev_b32 %s, 11, %s" % (v(vo), v(vo)))
        else:
            asm("v_mov_b32 %s, 0" % v(vo))
        asm("v_mov_b32 %s, %s" % (v(vd), s(sNON)))
        asm("v_mov_b32 %s, %s" % (v(vd + 1), s(sNON + 1)))
        asm("s_mov_b64 exec, %d" % ((1 << replicas) - 1 if replicas <= 6 else -1) if replicas <= 6 else "s_mov_b32 exec_lo, 0x%x\n    s_mov_b32 exec_hi, 0" % ((1 << replicas) - 1))
        asm("buffer_store_dwordx2 %s, %s, %s, %s offen sc1" % (v(vd, 2), v(vo), s(SWS, 4), soff))
        asm("s_mov_b64 exec, -1")
    kernel_header(asm, N)
    asm("s_cmp_ge_u32 s2, 256")
    asm("s_cbranch_scc1 %s_end" % N)
    if stamp:
        for i in range(26): asm("s_mov_b32 %s, 0" % s(STB + i))
    st(0)
    asm("s_load_dwordx4 s[4:7], s[0:1], 56")
    asm("s_load_dwordx4 s[36:39], s[0:1], 0")
    asm("s_load_dwordx4 s[40:43], s[0:1], 24")
    asm("v_lshrrev_b32 v1, 6, v0")
    asm("s_nop 0")
    asm("v_readfirstlane_b32 %s, v1" % s(sW))
    sBR, sRB, sCB, sPART, sCBP, sW4, sWM, sWN = 44, 45, 46, 47, 48, 49, 50, 51
    asm("s_and_b32 %s, s2, 7" % s(sP8))
    asm("s_lshr_b32 %s, s2, 3" % s(sSLOT))
    asm("s_getreg_b32 %s, hwreg(HW_REG_XCC_ID, 0, 4)" % s(sXCC))
    asm("s_and_b32 %s, %s, 7" % (s(sXCC), s(sXCC)))
    if not D1:
        asm("s_cmp_ge_u32 %s, 15" % s(sSLOT))
        asm("s_cselect_b32 %s, 1, 0" % s(sBR))
        asm("s_cselect_b32 %s, 15, 0" % s(sT0))
        asm("s_sub_u32 %s, %s, %s" % (s(sCB), s(sSLOT), s(sT0)))
        asm("s_mov_b32 %s, %s" % (s(sRB), s(sP8)))
    else:
        asm("s_lshr_b32 %s, %s, 2" % (s(sBR), s(sP8)))
        asm("s_and_b32 %s, %s, 3" % (s(sT0), s(sP8)))
        asm("s_mul_i32 %s, %s, 30" % (s(sT0), s(sT0)))
        asm("s_add_u32 %s, %s, %s" % (s(sT0), s(sT0), s(sSLOT)))
        asm("s_cmp_ge_u32 %s, 60" % s(sT0))
        asm("s_cselect_b32 %s, 4, 0" % s(sT1))
        asm("s_cselect_b32 %s, 60, 0" % s(sT2))
        asm("s_sub_u32 %s, %s, %s" % (s(sT0), s(sT0), s(sT2)))
        asm("s_lshr_b32 %s, %s, 2" % (s(sCB), s(sT0)))
        asm("s_and_b32 %s, %s, 3" % (s(sT0), s(sT0)))
        asm("s_add_u32 %s, %s, %s" % (s(sRB), s(sT1), s(sT0)))
    asm("s_cmp_ge_u32 %s, 5" % s(sCB))
    asm("s_cselect_b32 %s, 1, 0" % s(sPART))
    asm("s_cmp_ge_u32 %s, 10" % s(sCB))
    asm("s_cselect_b32 %s, 2, %s" % (s(sPART), s(sPART)))
    asm("s_mul_i32 %s, %s, 5" % (s(sT0), s(sPART)))
    asm("s_sub_u32 %s, %s, %s" % (s(sCBP), s(sCB), s(sT0)))
    asm("s_and_b32 %s, %s, 3" % (s(sW4), s(sW)))
    asm("s_lshr_b32 %s, %s, 1" % (s(sWM), s(sW4)))
    asm("s_and_b32 %s, %s, 1" % (s(sWN), s(sW4)))
    asm("s_waitcnt lgkmcnt(0)")
    if opts.get("wsoff"):
        asm("s_add_u32 s6, s6, 0x%x" % (opts["wsoff"] << 20))
        asm("s_addc_u32 s7, s7, 0")
    srd(asm, SWS, "s6", "s7", WS_REC)
    srd(asm, SDBG, "s4", "s5", 256)
    asm("s_cmp_ge_u32 %s, 4" % s(sW))
    asm("s_cbranch_scc1 %s_p1h" % N)
    ACC = 0; FX = [128, 144]; FW = [160, 168]
    vXA, vWA = 176, 180
    vL, vT, vU, vV = 194, 195, 196, 197
    vSO = 198; TMP = 200; TE = 216; vN = 220
    sSTG, sDELTA, sRBUF, sNEG = 52, 53, 54, 55
    sTN, sGG, sSO = 56, 57, 58
    sC0, sC1 = 60, 62
    asm("s_or_b32 %s, s2, %s" % (s(sT0), s(sW)))
    asm("s_cmp_lg_u32 %s, 0" % s(sT0))
    asm("s_cbranch_scc1 %s_nonon" % N)
    asm("s_memrealtime %s" % s(sNON, 2))
    asm("s_waitcnt lgkmcnt(0)")
    asm("s_or_b32 %s, %s, 1" % (s(sNON), s(sNON)))
    asm("v_mov_b32 v2, %s" % s(sNON))
    asm("v_mov_b32 v3, %s" % s(sNON + 1))
    asm("v_mov_b32 v4, 0")
    asm("s_mov_b64 exec, 1")
    asm("buffer_store_dwordx2 v[2:3], v4, %s, 0 offen sc1" % s(SDBG, 4))
    asm("s_mov_b64 exec, -1")
    asm.label("%s_nonon" % N)
    asm("s_cmp_lg_u32 %s, 0" % s(sW))
    asm("s_cbranch_scc1 %s_noinit" % N)
    asm("s_lshl_b32 %s, %s, 3" % (s(sT0), s(sXCC)))
    asm("s_lshl_b64 s[4:5], 1, %s" % s(sT0))
    asm("s_lshl_b32 %s, %s, 3" % (s(sT0), s(sP8)))
    asm("s_add_u32 %s, %s, 64" % (s(sT0), s(sT0)))
    asm("v_mov_b32 v2, s4")
    asm("v_mov_b32 v3, s5")
    asm("v_mov_b32 v4, %s" % s(sT0))
    if not D1:
        asm("s_mov_b64 exec, 1")
        asm("buffer_atomic_add_x2 v[2:3], v4, %s, 0 offen" % s(SDBG, 4))
        asm("s_mov_b64 exec, -1")
    lane(5)
    asm("v_lshlrev_b32 v5, 2, v5")
    asm("v_add_u32 v5, 0x%x, v5" % L_SYNC)
    asm("v_mov_b32 v6, 0")
    asm("s_mov_b32 exec_lo, 0xffff")
    asm("s_mov_b32 exec_hi, 0")
    asm("ds_write_b32 v5, v6")
    asm("s_mov_b64 exec, -1")
    asm("s_waitcnt lgkmcnt(0)")
    asm.label("%s_noinit" % N)
    asm("s_cmp_ge_u32 %s, 30" % s(sSLOT))
    asm("s_cbranch_scc1 %s_p2c" % N)
    lane(vL)
    asm.c("X frag read addr")
    asm("v_and_b32 %s, 31, %s" % (v(vT), v(vL)))
    asm("s_lshl_b32 %s, %s, 7" % (s(sT0), s(sWM)))
    asm("v_add_u32 %s, %s, %s" % (v(vU), s(sT0), v(vT)))
    asm("v_lshlrev_b32 %s, 7, %s" % (v(vU), v(vU)))
    asm("v_bfe_u32 %s, %s, 1, 3" % (v(vT), v(vT)))
    asm("v_lshrrev_b32 %s, 5, %s" % (v(vV), v(vL)))
    for ks in range(4):
        asm("v_add_u32 %s, %d, %s" % (v(TMP), 2 * ks, v(vV)))
        asm("v_xor_b32 %s, %s, %s" % (v(TMP), v(TMP), v(vT)))
        asm("v_lshl_add_u32 %s, %s, 4, %s" % (v(vXA + ks), v(TMP), v(vU)))
    asm.c("W frag read addr")
    asm("v_bfe_u32 %s, %s, 2, 2" % (v(vT), v(vL)))
    asm("v_lshrrev_b32 %s, 5, %s" % (v(vU), v(vL)))
    asm("v_lshl_add_u32 %s, %s, 3, %s" % (v(vU), v(vU), v(vT)))
    asm("v_lshlrev_b32 %s, 8, %s" % (v(vU), v(vU)))
    asm("v_add_u32 %s, 32768, %s" % (v(vU), v(vU)))
    asm("v_and_b32 %s, 1, %s" % (v(vV), v(vL)))
    asm("v_lshl_add_u32 %s, %s, 3, %s" % (v(vU), v(vV), v(vU)))
    asm("v_bfe_u32 %s, %s, 4, 1" % (v(vV), v(vL)))
    asm("v_lshlrev_b32 %s, 1, %s" % (v(vV), v(vV)))
    asm("v_bfe_u32 %s, %s, 1, 1" % (v(TMP), v(vL)))
    asm("v_add_u32 %s, %s, %s" % (v(vV), v(vV), v(TMP)))
    asm("s_lshl_b32 %s, %s, 3" % (s(sT0), s(sWN)))
    asm("v_add_u32 %s, %s, %s" % (v(vV), s(sT0), v(vV)))
    asm("v_lshlrev_b32 %s, 2, %s" % (v(vT), v(vT)))
    for tn in range(2):
        asm("v_add_u32 %s, %d, %s" % (v(TMP), 4 * tn, v(vV)))
        asm("v_xor_b32 %s, %s, %s" % (v(TMP), v(TMP), v(vT)))
        asm("v_lshl_add_u32 %s, %s, 4, %s" % (v(vWA + tn), v(TMP), v(vU)))
    for i in range(128):
        asm("v_mov_b32 %s, 0" % v(ACC + i))
    asm("s_mul_i32 %s, %s, 3" % (s(sT0), s(sBR)))
    asm("s_add_u32 %s, %s, %s" % (s(sT0), s(sT0), s(sPART)))
    asm("s_mul_i32 %s, %s, %d" % (s(sT0), s(sT0), REG))
    asm("s_add_u32 s6, s6, %s" % s(sT0))
    asm("s_addc_u32 s7, s7, 0")
    SO = SA_
    srd(asm, SO, "s6", "s7", REG)
    def rdX(st_, tm, ks):
        asm("ds_read_b128 %s, %s offset:%d" % (v(FX[st_] + 4 * tm, 4), v(vXA + ks), tm * 4096))
    def rdW(st_, tn, a_, ks):
        asm("ds_read_b64_tr_b16 %s, %s offset:%d" % (v(FW[st_] + 4 * tn + 2 * a_, 2), v(vWA + tn), ks * 4096 + a_ * 1024))
    def reads(st_, ks):
        return [lambda: rdW(st_, 0, 0, ks), lambda: rdW(st_, 0, 1, ks), lambda: rdX(st_, 0, ks), lambda: rdX(st_, 1, ks),
                lambda: rdW(st_, 1, 0, ks), lambda: rdW(st_, 1, 1, ks), lambda: rdX(st_, 2, ks), lambda: rdX(st_, 3, ks)]
    MORD = [(0, 0), (1, 0), (0, 1), (1, 1), (2, 0), (2, 1), (3, 0), (3, 1)]
    def mfma(orient, st_, tm, tn):
        acc = v(ACC + (tm * 2 + tn) * 16, 16)
        x = v(FX[st_] + 4 * tm, 4); w = v(FW[st_] + 4 * tn, 4)
        if orient == "T": asm("v_mfma_f32_32x32x16_bf16 %s, %s, %s, %s" % (acc, w, x, acc))
        else: asm("v_mfma_f32_32x32x16_bf16 %s, %s, %s, %s" % (acc, x, w, acc))
    asm("s_mov_b32 %s, 0" % s(sSTG))
    asm("s_mov_b32 %s, 0" % s(sRBUF))
    asm("s_mov_b32 %s, 0x%x" % (s(sNEG), (-2 * 49152) & 0xffffffff))
    asm("s_barrier")
    st(1)
    for f in reads(0, 0): f()
    asm("s_cmp_eq_u32 %s, 0" % s(sPART))
    asm("s_cbranch_scc1 %s_loopT" % N)
    asm("s_add_u32 %s, %s, %s" % (s(sT0), s(sBR), s(sBR)))
    asm("s_add_u32 %s, %s, %s" % (s(sT0), s(sT0), s(sPART)))
    asm("s_cmp_eq_u32 %s, 3" % s(sT0))
    asm("s_cbranch_scc0 %s_loopF" % N)
    def loop(orient):
        L = "%s_loop%s" % (N, orient)
        asm(".p2align 4")
        asm.label(L)
        for ks in range(4):
            st_ = ks & 1; nst_ = st_ ^ 1
            asm("s_waitcnt lgkmcnt(0)")
            if ks < 3:
                rs = reads(nst_, ks + 1)
                for m in range(8):
                    mfma(orient, st_, *MORD[m])
                    if m < 4:
                        rs[2 * m](); rs[2 * m + 1]()
                    if ks == 2 and m == 4:
                        asm("s_add_u32 %s, %s, 1" % (s(sRBUF), s(sRBUF)))
                        asm("s_cmp_eq_u32 %s, 3" % s(sRBUF))
                        asm("s_cselect_b32 %s, 0, %s" % (s(sRBUF), s(sRBUF)))
                        asm("s_cselect_b32 %s, %s, 49152" % (s(sDELTA), s(sNEG)))
                    if ks == 2 and m == 5:
                        for k in range(3): asm("v_add_u32 %s, %s, %s" % (v(vXA + k), s(sDELTA), v(vXA + k)))
                    if ks == 2 and m == 6:
                        asm("v_add_u32 %s, %s, %s" % (v(vXA + 3), s(sDELTA), v(vXA + 3)))
                        for k in range(2): asm("v_add_u32 %s, %s, %s" % (v(vWA + k), s(sDELTA), v(vWA + k)))
                    if ks == 2 and m == 7:
                        asm("s_add_u32 %s, %s, 1" % (s(sSTG), s(sSTG)))
            else:
                mfma(orient, st_, *MORD[0])
                mfma(orient, st_, *MORD[1])
                asm("s_barrier")
                rs = reads(nst_, 0)
                mfma(orient, st_, *MORD[2])
                rs[0](); rs[1](); rs[2]()
                mfma(orient, st_, *MORD[3])
                rs[3](); rs[4](); rs[5]()
                mfma(orient, st_, *MORD[4])
                rs[6](); rs[7]()
                mfma(orient, st_, *MORD[5])
                mfma(orient, st_, *MORD[6])
                asm("s_cmp_lt_u32 %s, 10" % s(sSTG))
                mfma(orient, st_, *MORD[7])
        asm("s_cbranch_scc1 %s" % L)
        asm("s_branch %s_epi%s" % (N, orient))
    loop("T")
    loop("F")
    asm.label("%s_epiT" % N)
    asm("s_lshl_b32 %s, %s, 3" % (s(sT0), s(sRB)))
    asm("s_lshl_b32 %s, %s, 2" % (s(sT1), s(sWM)))
    asm("s_add_u32 %s, %s, %s" % (s(sT0), s(sT0), s(sT1)))
    asm("s_mul_i32 %s, %s, 40" % (s(sT0), s(sT0)))
    asm("s_lshl_b32 %s, %s, 3" % (s(sT1), s(sCBP)))
    asm("s_add_u32 %s, %s, %s" % (s(sT0), s(sT0), s(sT1)))
    asm("s_lshl_b32 %s, %s, 2" % (s(sT1), s(sWN)))
    asm("s_add_u32 %s, %s, %s" % (s(sT0), s(sT0), s(sT1)))
    asm("s_lshl_b32 %s, %s, 10" % (s(sT0), s(sT0)))
    asm("v_lshlrev_b32 %s, 4, %s" % (v(vSO), v(vL)))
    asm("v_add_u32 %s, %s, %s" % (v(vSO), s(sT0), v(vSO)))
    asm("s_movk_i32 %s, 2048" % s(sTN))
    asm("s_movk_i32 %s, 1024" % s(sGG))
    asm("s_branch %s_epi" % N)
    asm.label("%s_epiF" % N)
    asm("s_lshl_b32 %s, %s, 3" % (s(sT0), s(sRB)))
    asm("s_lshl_b32 %s, %s, 2" % (s(sT1), s(sWM)))
    asm("s_add_u32 %s, %s, %s" % (s(sT0), s(sT0), s(sT1)))
    asm("s_mul_i32 %s, %s, 40960" % (s(sT0), s(sT0)))
    asm("s_lshl_b32 %s, %s, 11" % (s(sT1), s(sCBP)))
    asm("s_add_u32 %s, %s, %s" % (s(sT0), s(sT0), s(sT1)))
    asm("s_lshl_b32 %s, %s, 10" % (s(sT1), s(sWN)))
    asm("s_add_u32 %s, %s, %s" % (s(sT0), s(sT0), s(sT1)))
    asm("v_lshrrev_b32 %s, 5, %s" % (v(vT), v(vL)))
    asm("v_mul_u32_u24 %s, 10240, %s" % (v(vT), v(vT)))
    asm("v_and_b32 %s, 31, %s" % (v(vU), v(vL)))
    asm("v_lshl_add_u32 %s, %s, 4, %s" % (v(vSO), v(vU), v(vT)))
    asm("v_add_u32 %s, %s, %s" % (v(vSO), s(sT0), v(vSO)))
    asm("s_movk_i32 %s, 512" % s(sTN))
    asm("s_movk_i32 %s, 20480" % s(sGG))
    asm.label("%s_epi" % N)
    st(2)
    sync_issue(vN, vN + 2)
    asm("s_lshl_b32 %s, %s, 2" % (s(sT0), s(sBR)))
    asm("s_add_u32 %s, %s, %s" % (s(sT0), s(sT0), s(sPART)))
    asm("s_cmp_lt_u32 %s, 2" % s(sT0))
    asm("s_cbranch_scc1 %s_phi" % N)
    asm("s_cmp_eq_u32 %s, 4" % s(sT0))
    asm("s_cselect_b32 %s, %s, 1.0" % (s(sC0), fhex(QSCALE)))
    asm("s_mov_b32 %s, %s" % (s(sC0 + 1), s(sC0)))
    def store_tile(tm, tn, tset, sc, src=None):
        for gg in range(2):
            if gg == 0:
                asm("s_mul_i32 %s, %s, %d" % (s(sSO), s(sTN), tn))
                if tm: asm("s_add_u32 %s, %s, %d" % (s(sSO), s(sSO), tm * 40960))
            else:
                asm("s_add_u32 %s, %s, %s" % (s(sSO), s(sSO), s(sGG)))
            asm("buffer_store_dwordx4 %s, %s, %s, %s offen%s" % (v((TMP + 8 * tset if src is None else src) + 4 * gg, 4), v(vSO), s(SO, 4), s(sSO), sc))
    def plain_epi(sc, scale):
        cnt = 0
        for tm in range(4):
            for tn in range(2):
                b = ACC + (tm * 2 + tn) * 16
                ts = cnt & 1; cnt += 1
                if scale:
                    for p in range(8):
                        asm("v_pk_mul_f32 %s, %s, %s" % (v(b + 2 * p, 2), v(b + 2 * p, 2), s(sC0, 2)))
                for p in range(8):
                    asm("v_cvt_pk_bf16_f32 %s, %s, %s" % (v(TMP + 8 * ts + p), v(b + 2 * p), v(b + 2 * p + 1)))
                store_tile(tm, tn, ts, sc)
    asm("s_cmp_ge_u32 %s, 5" % s(sT0))
    asm("s_cbranch_scc1 %s_epikv" % N)
    asm("s_nop 7")
    plain_epi(SC, True)
    asm("s_branch %s_fin1" % N)
    asm.label("%s_epikv" % N)
    asm("s_nop 7")
    plain_epi(SC if D1 else " sc1", False)
    asm("s_branch %s_fin1" % N)
    asm.label("%s_phi" % N)
    asm("s_mov_b32 %s, %s" % (s(sC0), fhex(LOG2E)))
    asm("s_mov_b32 %s, %s" % (s(sC0 + 1), fhex(LOG2E)))
    asm("s_mov_b32 %s, %s" % (s(sC1), fhex(1e-6)))
    asm("s_nop 7")
    PHI2 = opts.get("phi2", 1)
    cnt = 0
    for tm in range(4):
        for tn in range(2):
            b = ACC + (tm * 2 + tn) * 16
            ts = cnt & 1; cnt += 1
            for q in range(4):
                r0 = b + 4 * q
                asm("v_pk_mul_f32 %s, %s, %s" % (v(TE, 2), v(r0, 2), s(sC0, 2)))
                asm("v_pk_mul_f32 %s, %s, %s" % (v(TE + 2, 2), v(r0 + 2, 2), s(sC0, 2)))
                for k in range(4): asm("v_exp_f32_e64 %s, %s clamp" % (v(TE + k), v(TE + k)))
                for k in range(4): asm("v_max_f32 %s, %s, %s" % (v(r0 + k), s(sC1), v(r0 + k)))
                asm("v_pk_add_f32 %s, %s, %s" % (v(r0, 2), v(r0, 2), v(TE, 2)))
                asm("v_pk_add_f32 %s, %s, %s" % (v(r0 + 2, 2), v(r0 + 2, 2), v(TE + 2, 2)))
                dst = (b + 2 * q) if PHI2 else (TMP + 8 * ts + 2 * q)
                asm("v_cvt_pk_bf16_f32 %s, %s, %s" % (v(dst), v(r0), v(r0 + 1)))
                asm("v_cvt_pk_bf16_f32 %s, %s, %s" % (v(dst + 1), v(r0 + 2), v(r0 + 3)))
            if not PHI2: store_tile(tm, tn, ts, SC)
    if PHI2:
        for tm in range(4):
            for tn in range(2):
                store_tile(tm, tn, 0, SC, src=ACC + (tm * 2 + tn) * 16)
    asm.label("%s_fin1" % N)
    asm("v_mov_b32 %s, 0x%x" % (v(vT), W_ISS))
    asm("v_mov_b32 %s, 1" % v(vU))
    asm("s_mov_b64 exec, 1")
    asm("ds_add_u32 %s, %s" % (v(vT), v(vU)))
    asm("s_mov_b64 exec, -1")
    st(3)
    get_sync(vN, vN + 2, preissued=True)
    release()
    asm("s_lshl_b32 %s, %s, 3" % (s(sT1), s(sBR)))
    asm("s_add_u32 %s, %s, %s" % (s(sT1), s(sT1), s(sRB)))
    asm("s_lshl_b32 %s, %s, 4" % (s(sT1), s(sT1)))
    asm("s_add_u32 %s, %s, %s" % (s(sT1), s(sT1), s(sCB)))
    asm("s_lshl_b32 %s, %s, 3" % (s(sT1), s(sT1)))
    asm("s_add_u32 %s, %s, %d" % (s(sT1), s(sT1), F1))
    lds_arrive(W_CNT1, 4, vN + 2, vN, s(sT1), replicas=REPL)
    st(4)
    asm("s_branch %s_p2setup" % N)
    asm.label("%s_p2c" % N)
    asm("s_barrier")
    get_sync(220, 222)
    asm("s_branch %s_p2setup" % N)

    asm.label("%s_p1h" % N)
    hL, hT, hU, hV = 2, 3, 4, 5
    vDX, vDW, hTMP = 8, 16, 20
    sXOFF, sWOFF, sM0X, sM0W, sDBUF, sHS = 52, 53, 54, 55, 56, 57
    SX, SWD = SA_, SB_
    asm("s_cmp_lt_u32 %s, 30" % s(sSLOT))
    asm("s_cbranch_scc1 %s_p1h2" % N)
    asm("s_barrier")
    asm("s_branch %s_p2h" % N)
    asm.label("%s_p1h2" % N)
    lane(hL)
    asm("v_lshrrev_b32 %s, 3, %s" % (v(hT), v(hL)))
    asm("s_lshl_b32 %s, %s, 6" % (s(sT0), s(sW4)))
    asm("v_add_u32 %s, %s, %s" % (v(hT), s(sT0), v(hT)))
    asm("s_movk_i32 %s, 1280" % s(sT1))
    asm("v_mul_lo_u32 %s, %s, %s" % (v(hT), v(hT), s(sT1)))
    asm("v_lshrrev_b32 %s, 4, %s" % (v(hU), v(hL)))
    asm("v_and_b32 %s, 7, %s" % (v(hV), v(hL)))
    for par in range(2):
        if par == 1: asm("v_add_u32 %s, 4, %s" % (v(hU), v(hU)))
        asm("v_xor_b32 %s, %s, %s" % (v(hTMP + par), v(hV), v(hU)))
        asm("v_lshl_add_u32 %s, %s, 4, %s" % (v(hTMP + par), v(hTMP + par), v(hT)))
    for i in range(8):
        asm("v_add_u32 %s, %d, %s" % (v(vDX + i), i * 8 * 1280 - (i & 3) * 1024, v(hTMP + (i & 1))))
    asm("v_lshrrev_b32 %s, 4, %s" % (v(hU), v(hL)))
    asm("s_lshl_b32 %s, %s, 4" % (s(sT0), s(sW4)))
    asm("v_add_u32 %s, %s, %s" % (v(hT), s(sT0), v(hU)))
    asm("s_movk_i32 %s, 3840" % s(sT1))
    asm("v_mul_lo_u32 %s, %s, %s" % (v(hT), v(hT), s(sT1)))
    asm("v_lshlrev_b32 %s, 2, %s" % (v(hU), v(hU)))
    asm("v_and_b32 %s, 15, %s" % (v(hV), v(hL)))
    asm("v_xor_b32 %s, %s, %s" % (v(hV), v(hV), v(hU)))
    asm("v_lshl_add_u32 %s, %s, 4, %s" % (v(hT), v(hV), v(hT)))
    for i in range(4):
        asm("v_add_u32 %s, %d, %s" % (v(vDW + i), i * 4 * 3840 - i * 1024, v(hT)))
    asm("s_cmp_eq_u32 %s, 0" % s(sBR))
    asm("s_cselect_b32 s36, s36, s40")
    asm("s_cselect_b32 s37, s37, s41")
    asm("s_cselect_b32 s38, s38, s42")
    asm("s_cselect_b32 s39, s39, s43")
    asm("s_mul_i32 %s, %s, %d" % (s(sT0), s(sRB), 256 * 1280))
    asm("s_add_u32 s36, s36, %s" % s(sT0))
    asm("s_addc_u32 s37, s37, 0")
    asm("s_lshl_b32 %s, %s, 8" % (s(sT0), s(sCB)))
    asm("s_add_u32 s38, s38, %s" % s(sT0))
    asm("s_addc_u32 s39, s39, 0")
    asm("s_sub_u32 %s, %d, %s" % (s(sT1), 640 * 3840, s(sT0)))
    srd(asm, SX, "s36", "s37", 256 * 1280)
    srd(asm, SWD, "s38", "s39", s(sT1))
    def dma_stage():
        asm("s_lshl_b32 %s, %s, 13" % (s(sT0), s(sW4)))
        asm("s_add_u32 %s, %s, %s" % (s(sM0X), s(sDBUF), s(sT0)))
        asm("s_lshl_b32 %s, %s, 12" % (s(sT0), s(sW4)))
        asm("s_add_u32 %s, %s, %s" % (s(sT0), s(sT0), s(sDBUF)))
        asm("s_add_u32 %s, %s, 32768" % (s(sM0W), s(sT0)))
        for idx in range(8):
            if idx == 0:
                asm("s_mov_b32 m0, %s" % s(sM0X)); asm("s_nop 0")
            if idx == 4:
                asm("s_add_u32 m0, %s, 4096" % s(sM0X)); asm("s_nop 0")
            asm("buffer_load_dwordx4 %s, %s, %s offen offset:%d lds" % (v(vDX + idx), s(SX, 4), s(sXOFF), (idx & 3) * 1024))
        asm("s_mov_b32 m0, %s" % s(sM0W)); asm("s_nop 0")
        for j in range(4):
            asm("buffer_load_dwordx4 %s, %s, %s offen offset:%d lds" % (v(vDW + j), s(SWD, 4), s(sWOFF), j * 1024))
        asm("s_add_u32 %s, %s, 128" % (s(sXOFF), s(sXOFF)))
        asm("s_add_u32 %s, %s, %d" % (s(sWOFF), s(sWOFF), 64 * 3840))
        asm("s_add_u32 %s, %s, 49152" % (s(sDBUF), s(sDBUF)))
        asm("s_cmp_ge_u32 %s, %d" % (s(sDBUF), 3 * 49152))
        asm("s_cselect_b32 %s, 0, %s" % (s(sDBUF), s(sDBUF)))
    WARM = opts.get("warm", 3)
    if WARM:
        asm("s_load_dwordx2 s[4:5], s[0:1], 16")
        asm("s_load_dwordx2 s[6:7], s[0:1], 40")
        asm("s_lshl_b32 s58, %s, 2" % s(sSLOT))
        asm("s_add_u32 s58, s58, %s" % s(sW4))
        asm("s_mul_i32 s58, s58, %d" % (54 * 128))
        asm("v_lshlrev_b32 v6, 7, %s" % v(hL))
    asm("s_mov_b32 %s, 0" % s(sXOFF))
    asm("s_mov_b32 %s, 0" % s(sWOFF))
    asm("s_mov_b32 %s, 0" % s(sDBUF))
    asm("s_mov_b32 %s, 0" % s(sHS))
    pro = opts.get("pro", 2)
    Lp = "%s_hpro" % N
    asm.label(Lp)
    dma_stage()
    asm("s_add_u32 %s, %s, 1" % (s(sHS), s(sHS)))
    asm("s_cmp_eq_u32 %s, %d" % (s(sHS), pro))
    asm("s_cbranch_scc0 %s_hpro_n" % N)
    st(3)
    asm("s_waitcnt vmcnt(%d)" % (12 * (pro - 1)))
    st(1)
    asm("s_barrier")
    asm.label("%s_hpro_n" % N)
    asm("s_cmp_lt_u32 %s, 3" % s(sHS))
    asm("s_cbranch_scc1 %s" % Lp)
    asm("s_mov_b32 %s, 0" % s(sHS))
    Lh = "%s_hloop" % N
    asm.label(Lh)
    asm("s_cmp_lt_u32 %s, 8" % s(sHS))
    asm("s_cbranch_scc1 %s_hw12" % N)
    asm("s_waitcnt vmcnt(0)")
    asm("s_branch %s_hw" % N)
    asm.label("%s_hw12" % N)
    asm("s_waitcnt vmcnt(12)")
    asm.label("%s_hw" % N)
    asm("s_barrier")
    asm("s_cmp_lt_u32 %s, 7" % s(sHS))
    asm("s_cbranch_scc0 %s_hnodma" % N)
    dma_stage()
    if WARM:
        asm("s_cmp_eq_u32 %s, %d" % (s(sHS), WARM - 1))
        asm("s_cbranch_scc0 %s_hnodma" % N)
        asm("s_waitcnt lgkmcnt(0)")
        asm("s_cmp_lt_u32 %s, 4" % s(sP8))
        asm("s_cselect_b32 s4, s4, s6")
        asm("s_cselect_b32 s5, s5, s7")
        srd(asm, 60, "s4", "s5", 640 * 1280)
        asm("s_mov_b32 exec_lo, -1")
        asm("s_mov_b32 exec_hi, 0x3fffff")
        asm("buffer_load_dword v7, v6, s[60:63], s58 offen")
        asm("s_mov_b64 exec, -1")
    asm.label("%s_hnodma" % N)
    asm("s_add_u32 %s, %s, 1" % (s(sHS), s(sHS)))
    asm("s_cmp_lt_u32 %s, 10" % s(sHS))
    asm("s_cbranch_scc1 %s" % Lh)
    asm.label("%s_p2h" % N)
    st(2)
    sBR3, sRB3, sCB3 = 64, 65, 66
    def decode3():
        if not D1:
            asm("s_lshr_b32 %s, %s, 4" % (s(sBR3), s(sSLOT)))
            asm("s_bfe_u32 %s, %s, 0x10003" % (s(sRB3), s(sSLOT)))
            asm("s_lshl_b32 %s, %s, 1" % (s(sT0), s(sP8)))
            asm("s_add_u32 %s, %s, %s" % (s(sRB3), s(sRB3), s(sT0)))
            asm("s_and_b32 %s, %s, 7" % (s(sCB3), s(sSLOT)))
        else:
            asm("s_lshr_b32 %s, %s, 2" % (s(sBR3), s(sP8)))
            asm("s_and_b32 %s, %s, 3" % (s(sT0), s(sP8)))
            asm("s_lshl_b32 %s, %s, 2" % (s(sT0), s(sT0)))
            asm("s_lshr_b32 %s, %s, 3" % (s(sRB3), s(sSLOT)))
            asm("s_add_u32 %s, %s, %s" % (s(sRB3), s(sRB3), s(sT0)))
            asm("s_and_b32 %s, %s, 7" % (s(sCB3), s(sSLOT)))
    get_sync(220, 222)
    sHH, sRB2, sG0, sDQ, sTB, sNT = 44, 45, 46, 47, 48, 49
    sMSK, sM40 = 50, 52
    sP = 36
    sQM = 54
    sOffO, sOffQA, sBIG, sEPS = 62, 63, 67, 68
    S = 0; O = 144; Q = 160; F = [168, 176]; CM8 = 184; CM0 = 200; VF = [184, 192]
    vM, vNM = 216, 218
    vT = 220
    vLin, vKa, vVa, vL = 228, 229, 230, 231
    vOm, vOr, vFo, vU = 232, 233, 234, 235
    PB = 236
    PA = 168
    vL8 = 242
    AW = 4
    asm.label("%s_p2setup" % N)
    if not D1:
        asm("s_mov_b32 %s, %s" % (s(sHH), s(sSLOT)))
        asm("s_mov_b32 %s, %s" % (s(sRB2), s(sP8)))
    else:
        asm("s_lshl_b32 %s, %s, 2" % (s(sT0), s(sP8)))
        asm("s_and_b32 %s, %s, 3" % (s(sHH), s(sSLOT)))
        asm("s_add_u32 %s, %s, %s" % (s(sHH), s(sHH), s(sT0)))
        asm("s_lshr_b32 %s, %s, 2" % (s(sRB2), s(sSLOT)))
    asm("s_mul_i32 %s, %s, 5" % (s(sT0), s(sHH)))
    asm("s_lshr_b32 %s, %s, 2" % (s(sG0), s(sT0)))
    asm("s_and_b32 %s, %s, 3" % (s(sDQ), s(sT0)))
    asm("s_lshl_b32 %s, %s, 3" % (s(sTB), s(sRB2)))
    asm("s_add_u32 %s, %s, %s" % (s(sTB), s(sTB), s(sW)))
    asm("s_add_u32 %s, %s, 1" % (s(sNT), s(sTB)))
    asm("s_min_u32 %s, %s, 9" % (s(sNT), s(sNT)))
    asm("s_mov_b32 %s, 0x000fffff" % s(sMSK)); asm("s_mov_b32 %s, 0x000fffff" % s(sMSK + 1))
    asm("s_mov_b32 %s, -1" % s(sM40)); asm("s_mov_b32 %s, 0xff" % s(sM40 + 1))
    lane(vL)
    asm("v_lshlrev_b32 %s, 3, %s" % (v(vL8), v(vL)))
    asm("v_lshlrev_b32 %s, 4, %s" % (v(vLin), v(vL)))
    asm("s_mov_b32 %s, %s" % (s(sBIG), fhex(BIG)))
    asm("v_and_b32 %s, 31, %s" % (v(vU), v(vL)))
    asm("v_lshrrev_b32 %s, 5, %s" % (v(vT + 4), v(vL)))
    asm("v_lshlrev_b32 %s, 2, %s" % (v(vT + 4), v(vT + 4)))
    asm("v_sub_u32 %s, %s, %s" % (v(vU), v(vU), v(vT + 4)))
    asm("v_mov_b32 %s, %s" % (v(vT + 5), s(sBIG)))
    asm("v_mov_b32 %s, 0" % v(vT + 6))
    for r0 in range(0, 16, 4):
        for k in range(4):
            r = r0 + k
            asm("v_cmp_le_i32 %s, %d, %s" % (s(sP + 2 * k, 2), 8 * (r >> 2) + (r & 3), v(vU)))
        asm("s_nop 1")
        for k in range(4):
            r = r0 + k
            asm("v_cndmask_b32 %s, %s, %s, %s" % (v(CM8 + r), v(vT + 5), v(vT + 6), s(sP + 2 * k, 2)))
            asm("v_cndmask_b32 %s, %s, %s, %s" % (v(CM0 + r), v(vT + 6), v(vT + 5), s(sP + 2 * k, 2)))
    for gg in range(2):
        for p in range(2):
            k = gg * 2 + p
            for h in range(2):
                asm("s_sub_u32 %s, %d, %s" % (s(sT0), 4 * gg + 2 * p + h, s(sDQ)))
                asm("s_cmp_le_u32 %s, 4" % s(sT0))
                asm("s_cselect_b32 %s, -1, 0" % s(sQM + 2 * k + h))
    asm("s_lshl_b32 %s, %s, 11" % (s(sT0), s(sW)))
    asm("s_add_u32 %s, %s, %d" % (s(sT0), s(sT0), L_K))
    asm("v_add_u32 %s, %s, %s" % (v(vKa), s(sT0), v(vLin)))
    asm("v_lshrrev_b32 %s, 5, %s" % (v(vT), v(vL)))
    asm("v_mul_u32_u24 %s, 20, %s" % (v(vT), v(vT)))
    asm("v_and_b32 %s, 31, %s" % (v(vU), v(vL)))
    asm("v_add_u32 %s, %s, %s" % (v(vT), v(vT), v(vU)))
    asm("v_lshlrev_b32 %s, 4, %s" % (v(vT), v(vT)))
    asm("s_mul_i32 %s, %s, 1280" % (s(sT0), s(sW)))
    asm("s_add_u32 %s, %s, %d" % (s(sT0), s(sT0), L_V))
    asm("v_add_u32 %s, %s, %s" % (v(vVa), s(sT0), v(vT)))
    asm("s_lshl_b32 %s, %s, 5" % (s(sT0), s(sTB)))
    asm("s_add_u32 %s, %s, %s" % (s(sT0), s(sT0), s(sHH)))
    asm("s_mul_i32 %s, %s, 1280" % (s(sOffO), s(sT0)))
    asm("v_mov_b32 %s, %s" % (v(vOm), v(vLin)))
    asm("v_add_u32 %s, 1024, %s" % (v(vOr), v(vL8)))
    asm("v_mov_b32 %s, 0x%x" % (v(vT + 4), OOB))
    asm("v_cmp_gt_u32 vcc, 32, %s" % v(vL))
    asm("s_nop 1")
    asm("v_cndmask_b32 %s, %s, %s, vcc" % (v(vOr), v(vT + 4), v(vOr)))
    asm("s_mul_i32 %s, %s, 40" % (s(sT2), s(sTB)))
    asm("s_add_u32 %s, %s, %s" % (s(sT2), s(sT2), s(sG0)))
    asm("s_lshl_b32 %s, %s, 10" % (s(sT2), s(sT2)))
    asm("s_add_u32 %s, %s, %d" % (s(sOffQA), s(sT2), R_QA))
    def q_loads():
        asm("s_add_u32 %s, %s, %d" % (s(sT3), s(sOffQA), R_QB - R_QA))
        asm("buffer_load_dwordx4 %s, %s, %s, %s offen sc1" % (v(Q, 4), v(vLin), s(SWS, 4), s(sT3)))
        asm("buffer_load_dwordx4 %s, %s, %s, %s offen offset:1024 sc1" % (v(Q + 4, 4), v(vLin), s(SWS, 4), s(sT3)))
    FINE = opts.get("fine", 1)
    def tile_masks():
        asm("s_lshr_b32 %s, %s, 3" % (s(sT1), s(sG0)))
        asm("s_lshl_b32 %s, 1, %s" % (s(sT1), s(sT1)))
        asm("s_add_u32 %s, %s, 1" % (s(sT2), s(sG0)))
        asm("s_lshr_b32 %s, %s, 3" % (s(sT2), s(sT2)))
        asm("s_lshl_b32 %s, 1, %s" % (s(sT2), s(sT2)))
        asm("s_or_b32 %s, %s, %s" % (s(sT1), s(sT1), s(sT2)))
        asm("s_mul_i32 %s, %s, 20" % (s(sT3), s(sHH)))
        asm("s_lshr_b32 %s, %s, 7" % (s(sT2), s(sT3)))
        asm("s_lshl_b32 %s, 1, %s" % (s(sT2), s(sT2)))
        asm("s_add_u32 %s, %s, 19" % (s(sT3), s(sT3)))
        asm("s_lshr_b32 %s, %s, 7" % (s(sT3), s(sT3)))
        asm("s_lshl_b32 %s, 1, %s" % (s(sT3), s(sT3)))
        asm("s_or_b32 %s, %s, %s" % (s(sT2), s(sT2), s(sT3)))
    def own_tile_wait():
        D = lab("otw")
        asm("s_cmp_ge_u32 %s, 30" % s(sSLOT))
        asm("s_cbranch_scc1 %s" % D)
        lds_wait(W_CNT1, vT, vT + 1, atleast=4)
        asm.label(D)
    def lds_inc(word):
        asm("v_mov_b32 %s, 0x%x" % (v(vT), word))
        asm("v_mov_b32 %s, 1" % v(vT + 1))
        asm("s_mov_b64 exec, 1")
        asm("ds_add_u32 %s, %s" % (v(vT), v(vT + 1)))
        asm("s_mov_b64 exec, -1")
    asm("s_cmp_eq_u32 %s, %d" % (s(sW), AW))
    asm("s_cbranch_scc1 %s_aearly" % N)
    asm("s_cmp_eq_u32 %s, 5" % s(sW))
    asm("s_cbranch_scc1 %s_w5" % N)
    asm("s_cmp_ge_u32 %s, 6" % s(sW))
    asm("s_cbranch_scc1 %s_w67" % N)
    sTK, sKO, sLK, sIk = 4, 5, 6, 7
    lds_wait(W_S1, vT, vT + 1)
    st(4) if opts.get("kvst") else None
    asm("s_lshl_b32 %s, %s, 2" % (s(sIk), s(sW)))
    asm("s_cmp_eq_u32 %s, 0" % s(sRB2))
    asm("s_cselect_b32 %s, 8, 0" % s(sT0))
    asm("s_cmp_lt_u32 %s, %s" % (s(sIk), s(sT0)))
    asm("s_cbranch_scc1 %s_nok" % N)
    asm("s_lshl_b32 %s, %s, 3" % (s(sTK), s(sRB2)))
    asm("s_add_u32 %s, %s, %s" % (s(sTK), s(sTK), s(sIk)))
    asm("s_sub_u32 %s, %s, 8" % (s(sTK), s(sTK)))
    asm("s_mul_i32 %s, %s, 40" % (s(sKO), s(sTK)))
    asm("s_add_u32 %s, %s, %s" % (s(sKO), s(sKO), s(sG0)))
    asm("s_lshl_b32 %s, %s, 10" % (s(sKO), s(sKO)))
    asm("s_add_u32 %s, %s, %d" % (s(sKO), s(sKO), R_KB))
    asm("s_lshl_b32 %s, %s, 11" % (s(sLK), s(sIk)))
    asm("s_add_u32 %s, %s, %d" % (s(sLK), s(sLK), L_K))
    for ii in range(4):
        asm("s_add_u32 m0, %s, %d" % (s(sLK), ii * 2048))
        asm("s_nop 0")
        asm("buffer_load_dwordx4 %s, %s, %s offen sc1 lds" % (v(vLin), s(SWS, 4), s(sKO)))
        asm("buffer_load_dwordx4 %s, %s, %s offen offset:1024 sc1 lds" % (v(vLin), s(SWS, 4), s(sKO)))
        if ii < 3: asm("s_add_u32 %s, %s, 40960" % (s(sKO), s(sKO)))
    asm.label("%s_nok" % N)
    q_loads()
    asm("s_waitcnt vmcnt(0)")
    lds_inc(W_K)
    asm("s_branch %s_kwait" % N)
    asm.label("%s_w67" % N)
    vDWO = 243
    sDA, sDM = 4, 5
    SWO = SA_
    decode3()
    asm("s_load_dwordx2 s[4:5], s[0:1], 16")
    asm("s_load_dwordx2 s[6:7], s[0:1], 40")
    asm("s_movk_i32 %s, 6554" % s(sT2))
    asm("s_movk_i32 %s, 1280" % s(sT3))
    for b in range(5):
        asm("v_add_u32 %s, %d, %s" % (v(vT), 64 * b, v(vL)))
        asm("v_mul_lo_u32 %s, %s, %s" % (v(vT + 1), v(vT), s(sT2)))
        asm("v_lshrrev_b32 %s, 16, %s" % (v(vT + 1), v(vT + 1)))
        asm("v_mul_u32_u24 %s, 10, %s" % (v(vT + 2), v(vT + 1)))
        asm("v_sub_u32 %s, %s, %s" % (v(vT), v(vT), v(vT + 2)))
        asm("v_lshlrev_b32 %s, 4, %s" % (v(vT), v(vT)))
        asm("v_mad_u32_u24 %s, %s, %s, %s" % (v(vDWO + b), v(vT + 1), s(sT3), v(vT)))
        if 0 < b < 4: asm("v_subrev_u32 %s, %d, %s" % (v(vDWO + b), b * 1024, v(vDWO + b)))
    asm("s_waitcnt lgkmcnt(0)")
    asm("s_cmp_eq_u32 %s, 0" % s(sBR3))
    asm("s_cselect_b32 s4, s4, s6")
    asm("s_cselect_b32 s5, s5, s7")
    asm("s_mul_i32 %s, %s, 160" % (s(sT0), s(sCB3)))
    asm("s_add_u32 s4, s4, %s" % s(sT0))
    asm("s_addc_u32 s5, s5, 0")
    asm("s_sub_u32 %s, %d, %s" % (s(sT1), 640 * 1280, s(sT0)))
    srd(asm, SWO, "s4", "s5", s(sT1))
    asm("s_and_b32 %s, %s, 1" % (s(sT0), s(sW)))
    asm("s_mul_i32 %s, %s, %d" % (s(sDA), s(sT0), 32 * 1280))
    asm("s_mul_i32 %s, %s, 5120" % (s(sDM), s(sT0)))
    def wo_group():
        asm("s_mov_b32 m0, %s" % s(sDM)); asm("s_nop 0")
        asm("buffer_load_dwordx4 %s, %s, %s offen lds" % (v(vDWO), s(SWO, 4), s(sDA)))
        for b in range(1, 4):
            asm("buffer_load_dwordx4 %s, %s, %s offen offset:%d lds" % (v(vDWO + b), s(SWO, 4), s(sDA), b * 1024))
        asm("s_add_u32 m0, %s, 4096" % s(sDM)); asm("s_nop 0")
        asm("buffer_load_dwordx4 %s, %s, %s offen lds" % (v(vDWO + 4), s(SWO, 4), s(sDA)))
        asm("s_add_u32 %s, %s, %d" % (s(sDA), s(sDA), 2 * 32 * 1280))
        asm("s_add_u32 %s, %s, %d" % (s(sDM), s(sDM), 2 * 5120))
    asm("s_cmp_ge_u32 %s, 30" % s(sSLOT))
    asm("s_cbranch_scc1 %s_wogo" % N)
    lds_wait(W_ISS, vT, vT + 1, atleast=4)
    asm.label("%s_wogo" % N)
    asm("s_mov_b32 s6, 0")
    asm.label("%s_woloop" % N)
    wo_group()
    asm("s_add_u32 s6, s6, 1")
    asm("s_cmp_lt_u32 s6, 10")
    asm("s_cbranch_scc1 %s_woloop" % N)
    lds_wait(W_S1, vT, vT + 1)
    asm("s_waitcnt vmcnt(30)")
    q_loads()
    asm("v_cmp_le_u32 vcc, 20, %s" % v(vL))
    asm("v_mov_b32 %s, 0" % v(vT))
    asm("v_mov_b32 %s, %d" % (v(vT + 1), 10240 - 320))
    asm("v_cndmask_b32 %s, %s, %s, vcc" % (v(vT), v(vT), v(vT + 1)))
    asm("v_add_u32 %s, %s, %s" % (v(vFo), v(vT), v(vLin)))
    asm("s_and_b32 %s, %s, 1" % (s(sIk), s(sW)))
    asm("s_lshl_b32 %s, %s, 3" % (s(sIk), s(sIk)))
    asm("s_or_b32 %s, %s, %s" % (s(sT0), s(sIk), s(sRB2)))
    asm("s_cmp_eq_u32 %s, 0" % s(sT0))
    asm("s_cbranch_scc1 %s_nov" % N)
    asm("s_lshl_b32 %s, %s, 3" % (s(sTK), s(sRB2)))
    asm("s_add_u32 %s, %s, %s" % (s(sTK), s(sTK), s(sIk)))
    asm("s_sub_u32 %s, %s, 8" % (s(sTK), s(sTK)))
    asm("s_mul_i32 %s, %s, 40960" % (s(sKO), s(sTK)))
    asm("s_mul_i32 %s, %s, 320" % (s(sT1), s(sHH)))
    asm("s_add_u32 %s, %s, %s" % (s(sKO), s(sKO), s(sT1)))
    asm("s_add_u32 %s, %s, %d" % (s(sKO), s(sKO), R_VB))
    asm("s_mul_i32 %s, %s, 1280" % (s(sLK), s(sIk)))
    asm("s_add_u32 %s, %s, %d" % (s(sLK), s(sLK), L_V))
    asm("s_mov_b64 exec, %s" % s(sM40, 2))
    for ii in range(8):
        asm("s_add_u32 m0, %s, %d" % (s(sLK), ii * 1280))
        asm("s_add_u32 %s, %s, %d" % (s(sT1), s(sKO), 20480 - 640))
        asm("buffer_load_dwordx4 %s, %s, %s offen sc1 lds" % (v(vFo), s(SWS, 4), s(sKO)))
        asm("buffer_load_dwordx4 %s, %s, %s offen offset:640 sc1 lds" % (v(vFo), s(SWS, 4), s(sT1)))
        if ii < 7: asm("s_add_u32 %s, %s, 40960" % (s(sKO), s(sKO)))
    asm("s_mov_b64 exec, -1")
    asm("s_waitcnt vmcnt(16)")
    asm("s_branch %s_kwait" % N)
    asm.label("%s_nov" % N)
    asm("s_waitcnt vmcnt(0)")
    asm("s_branch %s_kwait" % N)
    asm.label("%s_w5" % N)
    own_tile_wait()
    asm("s_add_u32 %s, %s, 7" % (s(sT0), s(sRB2)))
    asm("s_lshl_b32 %s, %s, 7" % (s(sT0), s(sT0)))
    asm("s_and_b32 %s, %s, %d" % (s(sT1), s(sP8) if REPL <= 8 else s(sHH), REPL - 1))
    asm("s_lshl_b32 %s, %s, 11" % (s(sT1), s(sT1)))
    asm("s_add_u32 %s, %s, %s" % (s(sT0), s(sT0), s(sT1)))
    asm("s_add_u32 %s, %s, %d" % (s(sPL), s(sT0), F1))
    if FINE:
        tile_masks()
        asm("s_lshl_b32 %s, %s, 5" % (s(sT3), s(sT1)))
        asm("s_lshl_b32 %s, %s, 10" % (s(sT2), s(sT2)))
        asm("s_or_b32 %s, %s, %s" % (s(sT3), s(sT3), s(sT2)))
        asm("s_or_b32 %s, %s, %s" % (s(sT1), s(sT1), s(sT3)))
        asm("s_lshl_b32 %s, %s, 16" % (s(sT1), s(sT1)))
        asm("s_cmp_eq_u32 %s, 0" % s(sRB2))
        asm("s_cselect_b32 %s, 0, %s" % (s(sT3), s(sT3)))
        asm("s_or_b32 %s, %s, %s" % (s(sT1), s(sT1), s(sT3)))
    else:
        asm("s_cmp_eq_u32 %s, 0" % s(sRB2))
        asm("s_cselect_b32 %s, 0, 0x7fe0" % s(sT1))
        asm("s_or_b32 %s, %s, 0x7fff0000" % (s(sT1), s(sT1)))
    if opts.get("ppoll", 0): ppoll(s(sPL), 32, [244, 246, 248], vL8, smask=s(sT1))
    else: poll(s(sPL), 32, vT, vL8, smask=s(sT1))
    lds_set(W_S1, vT, vT + 1)
    st(4)
    q_loads()
    asm("s_waitcnt vmcnt(0)")
    asm("s_branch %s_kwait" % N)
    asm.label("%s_aearly" % N)
    asm("v_lshrrev_b32 %s, 5, %s" % (v(vT), v(vL)))
    asm("v_mul_u32_u24 %s, 10240, %s" % (v(vT), v(vT)))
    asm("v_and_b32 %s, 31, %s" % (v(vU), v(vL)))
    asm("v_lshl_add_u32 %s, %s, 4, %s" % (v(vFo), v(vU), v(vT)))
    asm("v_mov_b32 %s, 0x3f803f80" % v(vT + 2))
    for r in range(64, 128): asm("v_mov_b32 %s, %s" % (v(r), v(vT + 2)))
    own_tile_wait()
    asm("s_lshl_b32 %s, %s, 7" % (s(sT0), s(sRB2)))
    asm("s_and_b32 %s, %s, %d" % (s(sT1), s(sP8) if REPL <= 8 else s(sHH), REPL - 1))
    asm("s_lshl_b32 %s, %s, 11" % (s(sT1), s(sT1)))
    asm("s_add_u32 %s, %s, %s" % (s(sT0), s(sT0), s(sT1)))
    asm("s_add_u32 %s, %s, %d" % (s(sPL), s(sT0), F1))
    if FINE:
        tile_masks()
        asm("s_lshl_b32 %s, %s, 5" % (s(sT3), s(sT2)))
        asm("s_lshl_b32 %s, %s, 10" % (s(sT2), s(sT2)))
        asm("s_or_b32 %s, %s, %s" % (s(sT1), s(sT1), s(sT3)))
        asm("s_or_b32 %s, %s, %s" % (s(sT1), s(sT1), s(sT2)))
        if opts.get("ppoll", 0): ppoll(s(sPL), 15, [244, 246, 248], vL8, smask=s(sT1))
        else: poll(s(sPL), 15, vT, vL8, smask=s(sT1))
    else:
        poll(s(sPL), 15, vT, vL8)
    lds_set(W_S1A, vT, vT + 1)
    st(4)
    asm("s_lshl_b32 %s, %s, 3" % (s(sT0), s(sRB2)))
    asm("s_mul_i32 %s, %s, 40960" % (s(sT0), s(sT0)))
    asm("s_mul_i32 %s, %s, 320" % (s(sT1), s(sHH)))
    asm("s_add_u32 %s, %s, %s" % (s(sT0), s(sT0), s(sT1)))
    asm("s_add_u32 %s, %s, %d" % (s(sT1), s(sT0), R_KA))
    asm("s_add_u32 %s, %s, %d" % (s(sT2), s(sT0), R_VA))
    asm("s_mov_b64 exec, %s" % s(sMSK, 2))
    for b in range(8):
        for m in range(2):
            asm("buffer_load_dwordx4 %s, %s, %s, %s offen sc1" % (v((b * 2 + m) * 4, 4), v(vFo), s(SWS, 4), s(sT1)))
            asm("buffer_load_dwordx4 %s, %s, %s, %s offen sc1" % (v(64 + (b * 2 + m) * 4, 4), v(vFo), s(SWS, 4), s(sT2)))
            asm("s_add_u32 %s, %s, 20480" % (s(sT1), s(sT1)))
            asm("s_add_u32 %s, %s, 20480" % (s(sT2), s(sT2)))
    asm("s_mov_b64 exec, -1")
    lds_wait(W_S1, vT, vT + 1)
    q_loads()
    for b in range(16):
        asm("s_waitcnt vmcnt(%d)" % (32 - 2 * b))
        c = "0" if b == 0 else v(O, 16)
        asm("v_mfma_f32_32x32x16_bf16 %s, %s, %s, %s" % (v(O, 16), v(b * 4, 4), v(64 + b * 4, 4), c))
    asm("s_lshl_b32 %s, %s, 3" % (s(sT0), s(sHH)))
    asm("s_add_u32 %s, %s, %s" % (s(sT0), s(sT0), s(sRB2)))
    asm("s_mul_i32 %s, %s, 3072" % (s(sT0), s(sT0)))
    asm("s_add_u32 %s, %s, %d" % (s(sT0), s(sT0), R_KVP))
    asm("s_nop 7"); asm("s_nop 1")
    for j in range(3):
        asm("buffer_store_dwordx4 %s, %s, %s, %s offen offset:%d sc1" % (v(O + 4 * j, 4), v(vLin), s(SWS, 4), s(sT0), j * 1024))
    asm("s_waitcnt vmcnt(3)")
    asm.label("%s_kwait" % N)
    lds_wait(W_K, vT, vT + 1, atleast=4)
    st(5)
    PRIO = opts.get("prio", 0)
    if PRIO:
        asm("s_cmp_%s_u32 %s, 4" % ("lt" if PRIO == 1 else "ge", s(sW)))
        asm("s_cbranch_scc0 %s_noprio" % N)
        asm("s_setprio 2")
        asm.label("%s_noprio" % N)
    def rdK(d, dst):
        for gg in range(2):
            asm("ds_read_b128 %s, %s offset:%d" % (v(dst + 4 * gg, 4), v(vKa), (8 - d) * 2048 + gg * 1024))
    def rdV(d, dst):
        asm("s_mov_b64 exec, %s" % s(sMSK, 2))
        for m in range(2):
            asm("ds_read_b128 %s, %s offset:%d" % (v(dst + 4 * m, 4), v(vVa), (8 - d) * 1280 + m * 640))
        asm("s_mov_b64 exec, -1")
    rdK(0, F[0])
    for gg in range(2):
        for p in range(2):
            k = gg * 2 + p
            for j in range(2):
                r = Q + 4 * gg + 2 * p + j
                asm("v_cndmask_b32 %s, 0, %s, %s" % (v(r), v(r), s(sQM + 2 * k, 2)))
    def maxes(d):
        b = S + 16 * d
        if d == 0:
            asm("v_max3_f32 %s, %s, %s, %s" % (v(vM), v(b), v(b + 1), v(b + 2)))
            for k in range(3, 15, 2):
                asm("v_max3_f32 %s, %s, %s, %s" % (v(vM), v(vM), v(b + k), v(b + k + 1)))
            asm("v_max_f32 %s, %s, %s" % (v(vM), v(vM), v(b + 15)))
        else:
            for k in range(0, 16, 2):
                asm("v_max3_f32 %s, %s, %s, %s" % (v(vM), v(vM), v(b + k), v(b + k + 1)))
    for d in range(9):
        cur, nxt = F[d & 1], F[(d + 1) & 1]
        asm("s_waitcnt lgkmcnt(0)")
        if d < 8: rdK(d + 1, nxt)
        if d > 0:
            asm("s_cmp_le_u32 %s, %d" % (s(sNT), d))
            asm("s_cbranch_scc1 %s_p1skip%d" % (N, d))
        else:
            asm("s_nop 1")
        c = v(CM8, 16) if d == 0 else (v(CM0, 16) if d == 8 else "0")
        b = v(S + 16 * d, 16)
        asm("v_mfma_f32_32x32x16_bf16 %s, %s, %s, %s" % (b, v(cur, 4), v(Q, 4), c))
        asm("v_mfma_f32_32x32x16_bf16 %s, %s, %s, %s" % (b, v(cur + 4, 4), v(Q + 4, 4), b))
        if d > 0:
            asm.label("%s_p1skip%d" % (N, d))
            if d == 1: asm("s_nop 7")
            maxes(d - 1)
            asm("s_cbranch_scc1 %s_p1end" % N)
    asm("s_nop 3")
    maxes(8)
    asm.label("%s_p1end" % N)
    st(6)
    SIGD = opts.get("sigd", 2)
    def a_signal():
        asm("s_cmp_lg_u32 %s, %d" % (s(sW), AW))
        asm("s_cbranch_scc1 %s_nosig" % N)
        asm("s_waitcnt vmcnt(0)")
        asm("s_lshl_b32 %s, %s, 4" % (s(sT0), s(sHH)))
        asm("s_add_u32 %s, %s, %s" % (s(sT0), s(sT0), s(sRB2)))
        asm("s_lshl_b32 %s, %s, 3" % (s(sT0), s(sT0)))
        asm("s_add_u32 %s, %s, %d" % (s(sT0), s(sT0), F2))
        flag_store(s(sT0), vT, vT + 2)
        asm.label("%s_nosig" % N)
    if SIGD < 0: a_signal()
    asm("s_cmp_lt_u32 %s, 6" % s(sW))
    asm("s_cbranch_scc1 %s_vw" % N)
    asm("s_waitcnt vmcnt(0)")
    lds_inc(W_V)
    asm.label("%s_vw" % N)
    lds_wait(W_V, vT, vT + 1, atleast=2)
    asm("s_waitcnt lgkmcnt(0)")
    asm("s_mov_b32 %s, 0x3f803f80" % s(sT0))
    for r in range(16): asm("v_mov_b32 %s, %s" % (v(VF[0] + r), s(sT0)))
    rdV(0, VF[0])
    asm("v_mov_b32 %s, %s" % (v(vT + 2), v(vM)))
    asm("v_mov_b32 %s, %s" % (v(vT + 3), v(vM)))
    asm("s_nop 1")
    asm("v_permlane32_swap_b32 %s, %s" % (v(vT + 2), v(vT + 3)))
    asm("s_nop 1")
    asm("v_max_f32 %s, %s, %s" % (v(vM), v(vT + 2), v(vT + 3)))
    asm("v_sub_f32 %s, 0, %s" % (v(vNM), v(vM)))
    asm("v_sub_f32 %s, 0, %s" % (v(vNM + 1), v(vM)))
    PQD = opts.get("pqd", 5)
    sPQ = 7
    asm("s_mov_b32 %s, 0" % s(sPQ))
    def pq_loads():
        lds_wait(W_S1A, vT + 4, vT + 5)
        asm("buffer_load_dwordx4 %s, %s, %s, %s offen sc1" % (v(Q, 4), v(vLin), s(SWS, 4), s(sOffQA)))
        asm("buffer_load_dwordx4 %s, %s, %s, %s offen offset:1024 sc1" % (v(Q + 4, 4), v(vLin), s(SWS, 4), s(sOffQA)))
    for d in range(9):
        cur, nxt = VF[d & 1], VF[(d + 1) & 1]
        b = S + 16 * d
        if d > 0:
            asm("s_cmp_le_u32 %s, %d" % (s(sNT), d))
            asm("s_cbranch_scc1 %s_p2end" % N)
        for k in range(8):
            asm("v_pk_add_f32 %s, %s, %s" % (v(b + 2 * k, 2), v(b + 2 * k, 2), v(vNM, 2)))
        for k in range(16):
            asm("v_exp_f32 %s, %s" % (v(b + k), v(b + k)))
        asm("s_waitcnt lgkmcnt(0)")
        if d < 8: rdV(d + 1, nxt)
        for k in range(8):
            asm("v_cvt_pk_bf16_f32 %s, %s, %s" % (v(b + k), v(b + 2 * k), v(b + 2 * k + 1)))
        asm("s_nop 1")
        asm("v_mfma_f32_32x32x16_bf16 %s, %s, %s, %s" % (v(O, 16), v(cur, 4), v(b, 4), "0" if d == 0 else v(O, 16)))
        asm("v_mfma_f32_32x32x16_bf16 %s, %s, %s, %s" % (v(O, 16), v(cur + 4, 4), v(b + 4, 4), v(O, 16)))
        if d == SIGD: a_signal()
        if d == PQD:
            pq_loads()
            asm("s_mov_b32 %s, 1" % s(sPQ))
    asm.label("%s_p2end" % N)
    if PRIO: asm("s_setprio 0")
    if PQD > 0:
        asm("s_cmp_lg_u32 %s, 0" % s(sPQ))
        asm("s_cbranch_scc1 %s_pqdone" % N)
        pq_loads()
        asm.label("%s_pqdone" % N)
    st(7)
    def normalize(dst, eps):
        asm("v_mov_b32 %s, %s" % (v(vT), v(O + 8)))
        asm("v_mov_b32 %s, %s" % (v(vT + 1), v(O + 8)))
        asm("s_nop 1")
        asm("v_permlane32_swap_b32 %s, %s" % (v(vT), v(vT + 1)))
        asm("s_nop 1")
        if eps: asm("v_add_f32 %s, %s, %s" % (v(vT + 1), s(sEPS), v(vT + 1)))
        asm("v_rcp_f32 %s, %s" % (v(vT + 1), v(vT + 1)))
        asm("s_nop 0")
        for k in range(12): asm("v_mul_f32 %s, %s, %s" % (v(O + k), v(vT + 1), v(O + k)))
        for k in range(6): asm("v_cvt_pk_bf16_f32 %s, %s, %s" % (v(dst + k), v(O + 2 * k), v(O + 2 * k + 1)))
    def store_o(src, region):
        asm("s_add_u32 %s, %s, %d" % (s(sT0), s(sOffO), region))
        asm("buffer_store_dwordx4 %s, %s, %s, %s offen%s" % (v(src, 4), v(vOm), s(SWS, 4), s(sT0), SC))
        asm("buffer_store_dwordx2 %s, %s, %s, %s offen%s" % (v(src + 4, 2), v(vOr), s(SWS, 4), s(sT0), SC))
    asm("s_mov_b32 %s, %s" % (s(sEPS), fhex(1e-6)))
    asm("s_cmp_ge_u32 %s, 4" % s(sW))
    asm("s_cbranch_scc1 %s_hiwaves" % N)
    asm("s_lshl_b32 %s, %s, 7" % (s(sPL), s(sHH)))
    asm("s_add_u32 %s, %s, %d" % (s(sPL), s(sPL), F2))
    asm("s_cmp_lg_u32 %s, 0" % s(sW))
    asm("s_cbranch_scc1 %s_w123" % N)
    poll_issue(s(sPL), vT + 4, vL8, 8)
    asm("s_nop 7"); asm("s_nop 3")
    normalize(PB, False)
    poll(s(sPL), 8, vT + 4, vL8, preissued=True)
    lds_set(W_S2, vT + 4, vT + 5)
    asm("s_branch %s_w0123" % N)
    asm.label("%s_w123" % N)
    asm("s_nop 7"); asm("s_nop 3")
    normalize(PB, False)
    lds_wait(W_S2, vT + 4, vT + 5)
    asm.label("%s_w0123" % N)
    asm("s_lshl_b32 %s, %s, 1" % (s(sT0), s(sW)))
    asm("s_sub_u32 %s, %s, %s" % (s(sT0), s(sT0), s(sDQ)))
    asm("v_lshrrev_b32 %s, 5, %s" % (v(vT), v(vL)))
    asm("v_add_u32 %s, %s, %s" % (v(vT), s(sT0), v(vT)))
    asm("v_and_b32 %s, 31, %s" % (v(vT + 1), v(vL)))
    asm("v_lshlrev_b32 %s, 4, %s" % (v(vT + 1), v(vT + 1)))
    asm("v_lshl_add_u32 %s, %s, 9, %s" % (v(vT + 1), v(vT), v(vT + 1)))
    asm("v_cmp_ge_u32 vcc, 4, %s" % v(vT))
    asm("v_mov_b32 %s, 0x%x" % (v(vT + 2), OOB))
    asm("s_nop 0")
    asm("v_cndmask_b32 %s, %s, %s, vcc" % (v(vU), v(vT + 2), v(vT + 1)))
    asm("s_lshl_b32 %s, %s, 3" % (s(sT0), s(sHH)))
    asm("s_mul_i32 %s, %s, 3072" % (s(sT0), s(sT0)))
    asm("s_add_u32 %s, %s, %d" % (s(sT0), s(sT0), R_KVP))
    for r in range(8):
        asm("buffer_load_dwordx4 %s, %s, %s, %s offen sc1" % (v(S + 4 * r, 4), v(vU), s(SWS, 4), s(sT0)))
        if r < 7: asm("s_add_u32 %s, %s, 3072" % (s(sT0), s(sT0)))
    store_o(PB, R_OB)
    asm("s_waitcnt vmcnt(2)")
    for r in range(1, 8):
        for k in range(4):
            asm("v_add_f32 %s, %s, %s" % (v(S + k), v(S + k), v(S + 4 * r + k)))
    asm("v_cvt_pk_bf16_f32 %s, %s, %s" % (v(vT), v(S), v(S + 1)))
    asm("v_cvt_pk_bf16_f32 %s, %s, %s" % (v(vT + 1), v(S + 2), v(S + 3)))
    asm("s_lshr_b32 %s, %s, 1" % (s(sT0), s(sW)))
    asm("s_lshl_b32 %s, %s, 10" % (s(sT0), s(sT0)))
    asm("s_and_b32 %s, %s, 1" % (s(sT1), s(sW)))
    asm("s_lshl_b32 %s, %s, 3" % (s(sT1), s(sT1)))
    asm("s_add_u32 %s, %s, %s" % (s(sT0), s(sT0), s(sT1)))
    asm("s_add_u32 %s, %s, %d" % (s(sT0), s(sT0), L_KVT))
    asm("v_add_u32 %s, %s, %s" % (v(vU), s(sT0), v(vLin)))
    asm("ds_write_b64 %s, %s" % (v(vU), v(vT, 2)))
    asm("s_branch %s_join" % N)
    asm.label("%s_hiwaves" % N)
    asm("s_nop 7"); asm("s_nop 3")
    normalize(PB, False)
    store_o(PB, R_OB)
    asm.label("%s_join" % N)
    asm("s_waitcnt lgkmcnt(0)")
    asm("s_barrier")
    st(8)
    asm("v_add_u32 %s, 0x%x, %s" % (v(vU), L_KVT, v(vLin)))
    asm("ds_read_b128 %s, %s" % (v(F[0], 4), v(vU)))
    asm("ds_read_b128 %s, %s offset:1024" % (v(F[0] + 4, 4), v(vU)))
    sF3 = 69
    asm("s_lshl_b32 %s, %s, 5" % (s(sF3), s(sRB2)))
    asm("s_add_u32 %s, %s, %s" % (s(sF3), s(sF3), s(sHH)))
    asm("s_lshl_b32 %s, %s, 3" % (s(sF3), s(sF3)))
    asm("s_add_u32 %s, %s, %d" % (s(sF3), s(sF3), F3))
    asm("s_waitcnt vmcnt(2) lgkmcnt(0)")
    asm("v_mfma_f32_32x32x16_bf16 %s, %s, %s, 0" % (v(O, 16), v(F[0], 4), v(Q, 4)))
    asm("v_mfma_f32_32x32x16_bf16 %s, %s, %s, %s" % (v(O, 16), v(F[0] + 4, 4), v(Q + 4, 4), v(O, 16)))
    asm("s_nop 7"); asm("s_nop 3")
    normalize(PA, True)
    store_o(PA, R_OA)
    asm("s_add_u32 %s, %s, %d" % (s(sT1), s(sF3), 8 * 256))
    asm("s_waitcnt vmcnt(2)")
    release()
    lds_arrive(W_CNT3B, 8, vT + 6, vT + 4, s(sT1))
    asm("s_waitcnt vmcnt(0)")
    release()
    lds_arrive(W_CNT3A, 8, vT + 6, vT + 4, s(sF3))
    st(9)
    asm("s_cmp_ge_u32 %s, 4" % s(sW))
    asm("s_cbranch_scc1 %s_fin" % N)
    OF = 0; ACC3 = 160; WF = [200, 220]
    vOM, vOR, vWm, vWm2, vWr, vWr2 = 245, 246, 247, 248, 249, 250
    p3L, p3T, p3U, p3X = 251, 252, 253, 254
    vDW3 = 240
    sTB3, sOffO3, sOM = 44, 45, 46
    SOUT = SB_
    decode3()
    asm("s_load_dwordx2 s[4:5], s[0:1], 48")
    asm("s_lshl_b32 %s, %s, 2" % (s(sTB3), s(sRB3)))
    asm("s_add_u32 %s, %s, %s" % (s(sTB3), s(sTB3), s(sW)))
    lane(p3L)
    asm("v_lshlrev_b32 %s, 3, %s" % (v(p3X), v(p3L)))
    asm("s_lshl_b32 %s, %s, 3" % (s(sT0), s(sBR3)))
    asm("s_lshr_b32 %s, %s, 1" % (s(sT1), s(sRB3)))
    asm("s_add_u32 %s, %s, %s" % (s(sT0), s(sT0), s(sT1)))
    asm("s_lshl_b32 %s, %s, 8" % (s(sT0), s(sT0)))
    asm("s_add_u32 %s, %s, %d" % (s(sPL), s(sT0), F3))
    asm("v_lshrrev_b32 %s, 4, %s" % (v(p3T), v(p3L)))
    asm("v_and_b32 %s, 15, %s" % (v(p3U), v(p3L)))
    asm("v_lshrrev_b32 %s, 1, %s" % (v(vWm2), v(p3T)))
    asm("v_mul_u32_u24 %s, 1280, %s" % (v(vOM), v(vWm2)))
    asm("v_and_b32 %s, 1, %s" % (v(vWm2), v(p3T)))
    asm("v_lshl_add_u32 %s, %s, 9, %s" % (v(vOM), v(vWm2), v(vOM)))
    asm("v_lshl_add_u32 %s, %s, 4, %s" % (v(vOM), v(p3U), v(vOM)))
    asm("v_mul_u32_u24 %s, 1280, %s" % (v(vOR), v(p3T)))
    asm("v_lshl_add_u32 %s, %s, 3, %s" % (v(vOR), v(p3U), v(vOR)))
    asm("v_add_u32 %s, 1024, %s" % (v(vOR), v(vOR)))
    asm("v_bfe_u32 %s, %s, 2, 2" % (v(p3U), v(p3L)))
    asm("v_lshrrev_b32 %s, 1, %s" % (v(vWm2), v(p3T)))
    asm("v_mul_u32_u24 %s, 20, %s" % (v(vWm), v(vWm2)))
    asm("v_and_b32 %s, 1, %s" % (v(vWm2), v(p3T)))
    asm("v_lshl_add_u32 %s, %s, 2, %s" % (v(vWm), v(vWm2), v(vWm)))
    asm("v_add_u32 %s, %s, %s" % (v(vWm), v(vWm), v(p3U)))
    asm("v_mul_u32_u24 %s, 160, %s" % (v(vWm), v(vWm)))
    asm("v_mul_u32_u24 %s, 20, %s" % (v(vWr), v(p3T)))
    asm("v_add_u32 %s, %s, %s" % (v(vWr), v(vWr), v(p3U)))
    asm("v_add_u32 %s, 16, %s" % (v(vWr), v(vWr)))
    asm("v_mul_u32_u24 %s, 160, %s" % (v(vWr), v(vWr)))
    asm("v_and_b32 %s, 3, %s" % (v(vWm2), v(p3L)))
    asm("v_lshl_add_u32 %s, %s, 3, %s" % (v(vWm), v(vWm2), v(vWm)))
    asm("v_lshl_add_u32 %s, %s, 3, %s" % (v(vWr), v(vWm2), v(vWr)))
    asm("v_add_u32 %s, 51200, %s" % (v(vWm2), v(vWm)))
    asm("v_add_u32 %s, 51200, %s" % (v(vWr2), v(vWr)))
    asm("s_mul_i32 %s, %s, %d" % (s(sOffO3), s(sBR3), REG))
    asm("s_add_u32 %s, %s, %d" % (s(sOffO3), s(sOffO3), R_OA))
    asm("s_mul_i32 %s, %s, 40960" % (s(sT0), s(sTB3)))
    asm("s_add_u32 %s, %s, %s" % (s(sOffO3), s(sOffO3), s(sT0)))
    asm("s_waitcnt lgkmcnt(0)")
    srd(asm, SOUT, "s4", "s5", 2048 * 2560)
    asm("s_cmp_lg_u32 %s, 0" % s(sW))
    asm("s_cbranch_scc1 %s_p3w" % N)
    if opts.get("ppoll", 0): ppoll(s(sPL), 32, [vDW3, vDW3 + 2], p3X)
    else: poll(s(sPL), 32, vDW3, p3X)
    lds_set(W_S3, p3T, p3U)
    asm("s_branch %s_p3go" % N)
    asm.label("%s_p3w" % N)
    lds_wait(W_S3, vDW3, vDW3 + 1)
    asm.label("%s_p3go" % N)
    st(10)
    def oloads(sidx):
        if sidx < 16:
            asm("s_add_u32 %s, %s, %d" % (s(sOM), s(sOffO3), 2560 * sidx))
            for rt in range(2):
                asm("buffer_load_dwordx4 %s, %s, %s, %s offen offset:%d%s" % (v(OF + (sidx * 2 + rt) * 4, 4), v(vOM), s(SWS, 4), s(sOM), rt * 256, LSC3))
        else:
            a_ = sidx - 16
            for half in range(2):
                asm("s_add_u32 %s, %s, %d" % (s(sOM), s(sOffO3), a_ * 8 * 1280 + half * 5120))
                for rt in range(2):
                    asm("buffer_load_dwordx2 %s, %s, %s, %s offen offset:%d%s" % (v(OF + ((16 + a_) * 2 + rt) * 4 + 2 * half, 2), v(vOR), s(SWS, 4), s(sOM), rt * 128, LSC3))
    def cum(k): return 2 * (k + 1) if k < 16 else 32 + 4 * (k - 15)
    PD = opts.get("pd", 5)
    for k in range(PD): oloads(k)
    def wreads(step, dst):
        ops = []
        for ct in range(5):
            for a_ in range(2):
                if step < 16:
                    base = vWm if step < 8 else vWm2
                    off = (step & 7) * 6400 + a_ * 1280 + ct * 32
                else:
                    ap = step - 16
                    base = vWr if ap < 2 else vWr2
                    off = (ap & 1) * 25600 + a_ * 12800 + ct * 32
                ops.append(lambda ct=ct, a_=a_, base=base, off=off: asm("ds_read_b64_tr_b16 %s, %s offset:%d" % (v(dst + 4 * ct + 2 * a_, 2), v(base), off)))
        return ops
    if opts.get("p3st"): st(1)
    for f in wreads(0, WF[0]): f()
    for sidx in range(20):
        cur = WF[sidx & 1]
        nxt_ops = wreads(sidx + 1, WF[(sidx + 1) & 1]) if sidx < 19 else []
        vm = cum(min(sidx + PD - 1, 19)) - cum(sidx)
        asm("s_waitcnt vmcnt(%d) lgkmcnt(0)" % vm)
        if opts.get("p3st") and sidx in (0, 8, 16): st({0: 2, 8: 3, 16: 4}[sidx])
        m = 0
        for ct in range(5):
            for rt in range(2):
                acc = v(ACC3 + (rt * 5 + ct) * 4, 4)
                c = "0" if sidx == 0 else acc
                asm("v_mfma_f32_16x16x32_bf16 %s, %s, %s, %s" % (acc, v(cur + 4 * ct, 4), v(OF + (sidx * 2 + rt) * 4, 4), c))
                if m < 5 and nxt_ops:
                    nxt_ops[2 * m](); nxt_ops[2 * m + 1]()
                if m == 5 and sidx + PD < 20: oloads(sidx + PD)
                m += 1
    st(11)
    asm("v_and_b32 %s, 15, %s" % (v(p3U), v(p3L)))
    asm("v_mul_u32_u24 %s, 160, %s" % (v(p3U), v(p3U)))
    asm("v_lshrrev_b32 %s, 4, %s" % (v(p3T), v(p3L)))
    asm("v_lshl_add_u32 %s, %s, 3, %s" % (v(p3U), v(p3T), v(p3U)))
    asm("s_mul_i32 %s, %s, 5120" % (s(sT0), s(sW)))
    asm("s_add_u32 %s, %s, %d" % (s(sT0), s(sT0), L_OUT))
    asm("v_add_u32 %s, %s, %s" % (v(p3U), s(sT0), v(p3U)))
    asm("v_lshlrev_b32 %s, 4, %s" % (v(p3X), v(p3L)))
    asm("v_add_u32 %s, %s, %s" % (v(p3X), s(sT0), v(p3X)))
    asm("s_nop 3")
    for rt in range(2):
        for ct in range(5):
            b = ACC3 + (rt * 5 + ct) * 4
            t = OF + (rt * 5 + ct) * 2
            asm("v_cvt_pk_bf16_f32 %s, %s, %s" % (v(t), v(b), v(b + 1)))
            asm("v_cvt_pk_bf16_f32 %s, %s, %s" % (v(t + 1), v(b + 2), v(b + 3)))
            asm("ds_write_b64 %s, %s offset:%d" % (v(p3U), v(t, 2), rt * 2560 + ct * 32))
    asm("s_movk_i32 %s, 6554" % s(sT2))
    asm("s_movk_i32 %s, 2560" % s(sT3))
    for b in range(5):
        asm("v_add_u32 %s, %d, %s" % (v(p3T), 64 * b, v(p3L)))
        asm("v_mul_lo_u32 %s, %s, %s" % (v(vWm), v(p3T), s(sT2)))
        asm("v_lshrrev_b32 %s, 16, %s" % (v(vWm), v(vWm)))
        asm("v_mul_u32_u24 %s, 10, %s" % (v(vWr), v(vWm)))
        asm("v_sub_u32 %s, %s, %s" % (v(p3T), v(p3T), v(vWr)))
        asm("v_lshlrev_b32 %s, 4, %s" % (v(p3T), v(p3T)))
        asm("v_mad_u32_u24 %s, %s, %s, %s" % (v(vDW3 + b), v(vWm), s(sT3), v(p3T)))
    asm("s_mul_i32 %s, %s, %d" % (s(sT0), s(sTB3), 32 * 2560))
    asm("s_mul_i32 %s, %s, 1280" % (s(sT1), s(sBR3)))
    asm("s_add_u32 %s, %s, %s" % (s(sT0), s(sT0), s(sT1)))
    asm("s_mul_i32 %s, %s, 160" % (s(sT1), s(sCB3)))
    asm("s_add_u32 %s, %s, %s" % (s(sT0), s(sT0), s(sT1)))
    asm("s_waitcnt lgkmcnt(0)")
    for b in range(5):
        asm("ds_read_b128 %s, %s offset:%d" % (v(32 + 4 * b, 4), v(p3X), b * 1024))
    for b in range(5):
        asm("s_waitcnt lgkmcnt(%d)" % (4 - b))
        asm("buffer_store_dwordx4 %s, %s, %s, %s offen%s" % (v(32 + 4 * b, 4), v(vDW3 + b), s(SOUT, 4), s(sT0), {0: "", 1: " sc1", 2: " nt", 3: " sc0 sc1"}[opts.get("outsc", 0)]))
    asm.label("%s_fin" % N)
    if stamp:
        asm("s_waitcnt vmcnt(0)")
        st(12)
        asm("s_waitcnt lgkmcnt(0)")
        asm("s_load_dwordx2 s[4:5], s[0:1], 64")
        asm("s_waitcnt lgkmcnt(0)")
        asm("s_add_u32 s4, s4, %d" % (R_STAMP + (opts.get("wsoff", 0) << 20)))
        asm("s_addc_u32 s5, s5, 0")
        srd(asm, SA_, "s4", "s5", 1 << 20)
        asm("s_lshl_b32 %s, s2, 3" % s(sT0))
        asm("s_add_u32 %s, %s, %s" % (s(sT0), s(sT0), s(sW)))
        asm("s_lshl_b32 %s, %s, 7" % (s(sT0), s(sT0)))
        asm("v_mov_b32 v1, %s" % s(sT0))
        for i in range(13):
            asm("v_mov_b32 v2, %s" % s(STB + 2 * i))
            asm("v_mov_b32 v3, %s" % s(STB + 2 * i + 1))
            asm("buffer_store_dwordx2 v[2:3], v1, %s, 0 offen offset:%d" % (s(SA_, 4), 8 * i))
            asm("s_nop 1")
    asm.label("%s_end" % N)
    asm("s_endpgm")
    return dict(name=N, vgpr=256, sgpr=100, grid=256, block=512, lds=LDS_BYTES)
HEADER = open("concat_heads__linear_attn_block__sliding_block__prompt.s.ref").read().split("; Override")[0]
def build(stamp=False, opts=None):
    body = A()
    i = gen(body, stamp=stamp, opts=opts)
    out = HEADER
    out += "; @launch grid=(%d,1,1) block=(%d,1,1) lds=%d\n" % (i["grid"], i["block"], i["lds"])
    out += '.amdgcn_target "amdgcn-amd-amdhsa--gfx950"\n.text\n'
    out += body.text()
    d = A()
    d('.section .rodata,"a"')
    kernel_desc(d, i["name"], i["vgpr"], i["sgpr"])
    out += d.text()
    return out
if __name__ == "__main__":
    import sys
    opts = {}
    for a_ in sys.argv[3:]:
        k, val = a_.split("="); opts[k] = int(val)
    open(sys.argv[1], "w").write(build(stamp=(len(sys.argv) > 2 and sys.argv[2] == "stamp"), opts=opts))
```

```python
from asmlib import *
import math
REG = 2621440
R_QA, R_KA, R_VA, R_QB, R_KB, R_VB, R_OA, R_OB, R_KVP, R_FLG = [i * REG for i in range(10)]
F1 = R_FLG
F2 = R_FLG + 65536
F3 = R_FLG + 65536 + 8192
WS_REC = R_FLG + 131072
R_STAMP = 10 * REG
LOG2E = 1.4426950408889634
QSCALE = LOG2E / math.sqrt(20.0)
BIG = -1.0e30
OOB = 0x40000000
L_WO, L_K, L_V, L_KVT = 0, 102400, 135168, 155648
L_OUT = L_K
L_SYNC = 157696
W_CNT1, W_S1, W_S1A, W_S2, W_CNT3B, W_CNT3A, W_S3, W_ISS, W_K, W_V = [L_SYNC + 4 * i for i in range(10)]
LDS_BYTES = 157696 + 64
SPIN_MAX = 0x40000
NAME = "concat_heads__linear_attn_block__sliding_block__prompt_kernel"
class G:
    pass
def gen(asm, stamp=False, name=NAME, opts=None):
    opts = opts or {}
    N = name
    D1 = opts.get("d1", 0)
    SC = " sc1" if D1 else ""
    SC = {0: SC, 1: " sc0 sc1", 2: " sc1 nt", 3: " sc0 sc1 nt"}[opts.get("scmode", 0)]
    REPL = opts.get("repl", 8)
    LSC3 = "" if opts.get("plain3") else " sc1"
    sW = 3
    SWS, SDBG = 8, 12
    sNON = 16
    sT0, sT1, sT2, sT3 = 18, 19, 20, 21
    sCNT, sPL = 22, 23
    SA_, SB_ = 24, 28
    sMASK = 32
    sPC = 34
    STB = 72
    sP8, sSLOT, sLOCAL, sXCC = 70, 71, 98, 99
    def st(k):
        if stamp:
            asm("s_memrealtime %s" % s(STB + 2 * k, 2))
    def lane(dst):
        asm("v_mbcnt_lo_u32_b32 %s, -1, 0" % v(dst))
        asm("v_mbcnt_hi_u32_b32 %s, -1, %s" % (v(dst), v(dst)))
    uid = [0]
    def lab(p):
        uid[0] += 1
        return "%s_%s%d" % (N, p, uid[0])
    def sync_issue(vd, vo):
        lane(vo)
        asm("s_lshl_b32 %s, %s, 3" % (s(sT0), s(sP8)))
        asm("s_add_u32 %s, %s, 64" % (s(sT0), s(sT0)))
        asm("v_cmp_eq_u32 vcc, 1, %s" % v(vo))
        asm("v_mov_b32 %s, %s" % (v(vd), s(sT0)))
        asm("v_mov_b32 %s, 0" % v(vo))
        asm("v_cndmask_b32 %s, %s, %s, vcc" % (v(vo), v(vo), v(vd)))
        asm("buffer_load_dwordx2 %s, %s, %s, 0 offen sc1" % (v(vd, 2), v(vo), s(SDBG, 4)))
    def get_sync(vd, vo, preissued=False):
        L, D = lab("non"), lab("nond")
        if not preissued: sync_issue(vd, vo)
        asm("s_mov_b32 %s, 0" % s(sCNT))
        asm.label(L)
        asm("s_waitcnt vmcnt(0)")
        asm("v_readlane_b32 %s, %s, 0" % (s(sNON), v(vd)))
        asm("v_readlane_b32 %s, %s, 0" % (s(sNON + 1), v(vd + 1)))
        asm("v_readlane_b32 %s, %s, 1" % (s(sPC), v(vd)))
        asm("v_readlane_b32 %s, %s, 1" % (s(sPC + 1), v(vd + 1)))
        asm("s_add_u32 %s, %s, 1" % (s(sCNT), s(sCNT)))
        asm("s_nop 2")
        asm("s_cmp_lg_u32 %s, 0" % s(sNON))
        asm("s_cbranch_scc1 %s" % D)
        asm("s_cmp_ge_u32 %s, 0x%x" % (s(sCNT), SPIN_MAX))
        asm("s_cbranch_scc1 %s" % D)
        asm("s_sleep 4")
        asm("buffer_load_dwordx2 %s, %s, %s, 0 offen sc1" % (v(vd, 2), v(vo), s(SDBG, 4)))
        asm("s_branch %s" % L)
        asm.label(D)
        asm("s_lshl_b32 %s, %s, 3" % (s(sT0), s(sXCC)))
        asm("s_lshl_b64 %s, 32, %s" % (s(sMASK, 2), s(sT0)))
        asm("s_cmp_eq_u64 %s, %s" % (s(sMASK, 2), s(sPC, 2)))
        asm("s_cselect_b32 %s, 1, 0" % s(sLOCAL))
        if opts.get("nolocal"): asm("s_mov_b32 %s, 0" % s(sLOCAL))
    def release():
        if D1: return
        D = lab("rel")
        asm("s_cmp_lg_u32 %s, 0" % s(sLOCAL))
        asm("s_cbranch_scc1 %s" % D)
        asm("buffer_wbl2 sc1")
        asm("s_waitcnt vmcnt(0)")
        asm.label(D)
    def lds_set(word, va, vd):
        asm("v_mov_b32 %s, 0x%x" % (v(va), word))
        asm("v_mov_b32 %s, 1" % v(vd))
        asm("ds_write_b32 %s, %s" % (v(va), v(vd)))
    def lds_wait(word, va, vd, atleast=1):
        L, D = lab("lw"), lab("lwd")
        asm("v_mov_b32 %s, 0x%x" % (v(va), word))
        asm("s_mov_b32 %s, 0" % s(sCNT))
        asm.label(L)
        asm("ds_read_b32 %s, %s" % (v(vd), v(va)))
        asm("s_waitcnt lgkmcnt(0)")
        asm("v_readfirstlane_b32 %s, %s" % (s(sT0), v(vd)))
        asm("s_add_u32 %s, %s, 1" % (s(sCNT), s(sCNT)))
        asm("s_nop 2")
        asm("s_cmp_ge_u32 %s, %d" % (s(sT0), atleast))
        asm("s_cbranch_scc1 %s" % D)
        asm("s_cmp_ge_u32 %s, 0x%x" % (s(sCNT), SPIN_MAX * 8))
        asm("s_cbranch_scc1 %s" % D)
        if opts.get("lsleep", 1): asm("s_sleep %d" % opts.get("lsleep", 1))
        asm("s_branch %s" % L)
        asm.label(D)
    def lds_arrive(word, n, va, vd, soff, replicas=1):
        D = lab("arr")
        asm("v_mov_b32 %s, 0x%x" % (v(va), word))
        asm("v_mov_b32 %s, 1" % v(vd))
        asm("s_mov_b64 exec, 1")
        asm("ds_add_rtn_u32 %s, %s, %s" % (v(vd), v(va), v(vd)))
        asm("s_waitcnt lgkmcnt(0)")
        asm("s_mov_b64 exec, -1")
        asm("v_readfirstlane_b32 %s, %s" % (s(sCNT), v(vd)))
        asm("s_nop 3")
        asm("s_cmp_lg_u32 %s, %d" % (s(sCNT), n - 1))
        asm("s_cbranch_scc1 %s" % D)
        flag_store(soff, vd, va, replicas)
        asm.label(D)
    def poll_issue(soff, vd, vo, n):
        asm("s_mov_b32 exec_lo, 0x%x" % ((1 << n) - 1))
        asm("s_mov_b32 exec_hi, 0")
        asm("buffer_load_dwordx2 %s, %s, %s, %s offen sc1" % (v(vd, 2), v(vo), s(SWS, 4), soff))
        asm("s_mov_b64 exec, -1")
    def poll(soff, n, vd, vo, preissued=False, lo=0, smask=None):
        L, D = lab("poll"), lab("polld")
        m = ((1 << n) - 1) & ~((1 << lo) - 1)
        asm("s_mov_b32 %s, %s" % (s(sMASK), smask if smask else "0x%x" % (m & 0xffffffff)))
        asm("s_mov_b32 %s, 0x%x" % (s(sMASK + 1), m >> 32))
        if not preissued: poll_issue(soff, vd, vo, n)
        asm("s_mov_b32 %s, 0" % s(sCNT))
        asm.label(L)
        asm("s_waitcnt vmcnt(0)")
        asm("v_cmp_eq_u32 vcc, %s, %s" % (s(sNON), v(vd)))
        asm("v_cmp_eq_u32 %s, %s, %s" % (s(sPC, 2), s(sNON + 1), v(vd + 1)))
        asm("s_add_u32 %s, %s, 1" % (s(sCNT), s(sCNT)))
        asm("s_nop 3")
        asm("s_and_b64 %s, %s, vcc" % (s(sPC, 2), s(sPC, 2)))
        asm("s_and_b64 %s, %s, %s" % (s(sPC, 2), s(sPC, 2), s(sMASK, 2)))
        asm("s_cmp_eq_u64 %s, %s" % (s(sPC, 2), s(sMASK, 2)))
        asm("s_cbranch_scc1 %s" % D)
        asm("s_cmp_ge_u32 %s, 0x%x" % (s(sCNT), SPIN_MAX))
        asm("s_cbranch_scc1 %s" % D)
        asm("s_sleep %d" % opts.get("sleep", 3))
        poll_issue(soff, vd, vo, n)
        asm("s_branch %s" % L)
        asm.label(D)
    def ppoll(soff, n, regs, vo, smask=None):
        k = len(regs)
        L, D = lab("pp"), lab("ppd")
        m = (1 << n) - 1
        asm("s_mov_b32 %s, %s" % (s(sMASK), smask if smask else "0x%x" % (m & 0xffffffff)))
        asm("s_mov_b32 %s, 0x%x" % (s(sMASK + 1), m >> 32))
        for i, r in enumerate(regs):
            poll_issue(soff, r, vo, n)
            if i + 1 < k: asm("s_sleep %d" % opts.get("pstag", 6))
        asm("s_mov_b32 %s, 0" % s(sCNT))
        asm.label(L)
        for i, r in enumerate(regs):
            asm("s_waitcnt vmcnt(%d)" % (k - 1))
            asm("v_cmp_eq_u32 vcc, %s, %s" % (s(sNON), v(r)))
            asm("v_cmp_eq_u32 %s, %s, %s" % (s(sPC, 2), s(sNON + 1), v(r + 1)))
            asm("s_add_u32 %s, %s, 1" % (s(sCNT), s(sCNT)))
            asm("s_nop 3")
            asm("s_and_b64 %s, %s, vcc" % (s(sPC, 2), s(sPC, 2)))
            asm("s_and_b64 %s, %s, %s" % (s(sPC, 2), s(sPC, 2), s(sMASK, 2)))
            asm("s_cmp_eq_u64 %s, %s" % (s(sPC, 2), s(sMASK, 2)))
            asm("s_cbranch_scc1 %s" % D)
            poll_issue(soff, r, vo, n)
        asm("s_cmp_lt_u32 %s, 0x%x" % (s(sCNT), SPIN_MAX * 3))
        asm("s_cbranch_scc1 %s" % L)
        asm.label(D)
    def flag_store(soff, vd, vo, replicas=1):
        if replicas > 1:
            lane(vo)
            asm("v_lshlrev_b32 %s, 11, %s" % (v(vo), v(vo)))
        else:
            asm("v_mov_b32 %s, 0" % v(vo))
        asm("v_mov_b32 %s, %s" % (v(vd), s(sNON)))
        asm("v_mov_b32 %s, %s" % (v(vd + 1), s(sNON + 1)))
        asm("s_mov_b64 exec, %d" % ((1 << replicas) - 1 if replicas <= 6 else -1) if replicas <= 6 else "s_mov_b32 exec_lo, 0x%x\n    s_mov_b32 exec_hi, 0" % ((1 << replicas) - 1))
        asm("buffer_store_dwordx2 %s, %s, %s, %s offen sc1" % (v(vd, 2), v(vo), s(SWS, 4), soff))
        asm("s_mov_b64 exec, -1")
    kernel_header(asm, N)
    asm("s_cmp_ge_u32 s2, 256")
    asm("s_cbranch_scc1 %s_end" % N)
    if stamp:
        for i in range(26): asm("s_mov_b32 %s, 0" % s(STB + i))
    st(0)
    asm("s_load_dwordx4 s[4:7], s[0:1], 56")
    asm("s_load_dwordx4 s[36:39], s[0:1], 0")
    asm("s_load_dwordx4 s[40:43], s[0:1], 24")
    asm("v_lshrrev_b32 v1, 6, v0")
    asm("s_nop 0")
    asm("v_readfirstlane_b32 %s, v1" % s(sW))
    sBR, sRB, sCB, sPART, sCBP, sW4, sWM, sWN = 44, 45, 46, 47, 48, 49, 50, 51
    asm("s_and_b32 %s, s2, 7" % s(sP8))
    asm("s_lshr_b32 %s, s2, 3" % s(sSLOT))
    asm("s_getreg_b32 %s, hwreg(HW_REG_XCC_ID, 0, 4)" % s(sXCC))
    asm("s_and_b32 %s, %s, 7" % (s(sXCC), s(sXCC)))
    if not D1:
        asm("s_cmp_ge_u32 %s, 15" % s(sSLOT))
        asm("s_cselect_b32 %s, 1, 0" % s(sBR))
        asm("s_cselect_b32 %s, 15, 0" % s(sT0))
        asm("s_sub_u32 %s, %s, %s" % (s(sCB), s(sSLOT), s(sT0)))
        asm("s_mov_b32 %s, %s" % (s(sRB), s(sP8)))
    else:
        asm("s_lshr_b32 %s, %s, 2" % (s(sBR), s(sP8)))
        asm("s_and_b32 %s, %s, 3" % (s(sT0), s(sP8)))
        asm("s_mul_i32 %s, %s, 30" % (s(sT0), s(sT0)))
        asm("s_add_u32 %s, %s, %s" % (s(sT0), s(sT0), s(sSLOT)))
        asm("s_cmp_ge_u32 %s, 60" % s(sT0))
        asm("s_cselect_b32 %s, 4, 0" % s(sT1))
        asm("s_cselect_b32 %s, 60, 0" % s(sT2))
        asm("s_sub_u32 %s, %s, %s" % (s(sT0), s(sT0), s(sT2)))
        asm("s_lshr_b32 %s, %s, 2" % (s(sCB), s(sT0)))
        asm("s_and_b32 %s, %s, 3" % (s(sT0), s(sT0)))
        asm("s_add_u32 %s, %s, %s" % (s(sRB), s(sT1), s(sT0)))
    asm("s_cmp_ge_u32 %s, 5" % s(sCB))
    asm("s_cselect_b32 %s, 1, 0" % s(sPART))
    asm("s_cmp_ge_u32 %s, 10" % s(sCB))
    asm("s_cselect_b32 %s, 2, %s" % (s(sPART), s(sPART)))
    asm("s_mul_i32 %s, %s, 5" % (s(sT0), s(sPART)))
    asm("s_sub_u32 %s, %s, %s" % (s(sCBP), s(sCB), s(sT0)))
    asm("s_and_b32 %s, %s, 3" % (s(sW4), s(sW)))
    asm("s_lshr_b32 %s, %s, 1" % (s(sWM), s(sW4)))
    asm("s_and_b32 %s, %s, 1" % (s(sWN), s(sW4)))
    asm("s_waitcnt lgkmcnt(0)")
    if opts.get("wsoff"):
        asm("s_add_u32 s6, s6, 0x%x" % (opts["wsoff"] << 20))
        asm("s_addc_u32 s7, s7, 0")
    srd(asm, SWS, "s6", "s7", WS_REC)
    srd(asm, SDBG, "s4", "s5", 256)
    asm("s_cmp_ge_u32 %s, 4" % s(sW))
    asm("s_cbranch_scc1 %s_p1h" % N)
    ACC = 0; FX = [128, 144]; FW = [160, 168]
    vXA, vWA = 176, 180
    vL, vT, vU, vV = 194, 195, 196, 197
    vSO = 198; TMP = 200; TE = 216; vN = 220
    sSTG, sDELTA, sRBUF, sNEG = 52, 53, 54, 55
    sTN, sGG, sSO = 56, 57, 58
    sC0, sC1 = 60, 62
    asm("s_or_b32 %s, s2, %s" % (s(sT0), s(sW)))
    asm("s_cmp_lg_u32 %s, 0" % s(sT0))
    asm("s_cbranch_scc1 %s_nonon" % N)
    asm("s_memrealtime %s" % s(sNON, 2))
    asm("s_waitcnt lgkmcnt(0)")
    asm("s_or_b32 %s, %s, 1" % (s(sNON), s(sNON)))
    asm("v_mov_b32 v2, %s" % s(sNON))
    asm("v_mov_b32 v3, %s" % s(sNON + 1))
    asm("v_mov_b32 v4, 0")
    asm("s_mov_b64 exec, 1")
    asm("buffer_store_dwordx2 v[2:3], v4, %s, 0 offen sc1" % s(SDBG, 4))
    asm("s_mov_b64 exec, -1")
    asm.label("%s_nonon" % N)
    asm("s_cmp_lg_u32 %s, 0" % s(sW))
    asm("s_cbranch_scc1 %s_noinit" % N)
    asm("s_lshl_b32 %s, %s, 3" % (s(sT0), s(sXCC)))
    asm("s_lshl_b64 s[4:5], 1, %s" % s(sT0))
    asm("s_lshl_b32 %s, %s, 3" % (s(sT0), s(sP8)))
    asm("s_add_u32 %s, %s, 64" % (s(sT0), s(sT0)))
    asm("v_mov_b32 v2, s4")
    asm("v_mov_b32 v3, s5")
    asm("v_mov_b32 v4, %s" % s(sT0))
    if not D1:
        asm("s_mov_b64 exec, 1")
        asm("buffer_atomic_add_x2 v[2:3], v4, %s, 0 offen" % s(SDBG, 4))
        asm("s_mov_b64 exec, -1")
    lane(5)
    asm("v_lshlrev_b32 v5, 2, v5")
    asm("v_add_u32 v5, 0x%x, v5" % L_SYNC)
    asm("v_mov_b32 v6, 0")
    asm("s_mov_b32 exec_lo, 0xffff")
    asm("s_mov_b32 exec_hi, 0")
    asm("ds_write_b32 v5, v6")
    asm("s_mov_b64 exec, -1")
    asm("s_waitcnt lgkmcnt(0)")
    asm.label("%s_noinit" % N)
    asm("s_cmp_ge_u32 %s, 30" % s(sSLOT))
    asm("s_cbranch_scc1 %s_p2c" % N)
    lane(vL)
    asm.c("X frag read addr")
    asm("v_and_b32 %s, 31, %s" % (v(vT), v(vL)))
    asm("s_lshl_b32 %s, %s, 7" % (s(sT0), s(sWM)))
    asm("v_add_u32 %s, %s, %s" % (v(vU), s(sT0), v(vT)))
    asm("v_lshlrev_b32 %s, 7, %s" % (v(vU), v(vU)))
    asm("v_bfe_u32 %s, %s, 1, 3" % (v(vT), v(vT)))
    asm("v_lshrrev_b32 %s, 5, %s" % (v(vV), v(vL)))
    for ks in range(4):
        asm("v_add_u32 %s, %d, %s" % (v(TMP), 2 * ks, v(vV)))
        asm("v_xor_b32 %s, %s, %s" % (v(TMP), v(TMP), v(vT)))
        asm("v_lshl_add_u32 %s, %s, 4, %s" % (v(vXA + ks), v(TMP), v(vU)))
    asm.c("W frag read addr")
    asm("v_bfe_u32 %s, %s, 2, 2" % (v(vT), v(vL)))
    asm("v_lshrrev_b32 %s, 5, %s" % (v(vU), v(vL)))
    asm("v_lshl_add_u32 %s, %s, 3, %s" % (v(vU), v(vU), v(vT)))
    asm("v_lshlrev_b32 %s, 8, %s" % (v(vU), v(vU)))
    asm("v_add_u32 %s, 32768, %s" % (v(vU), v(vU)))
    asm("v_and_b32 %s, 1, %s" % (v(vV), v(vL)))
    asm("v_lshl_add_u32 %s, %s, 3, %s" % (v(vU), v(vV), v(vU)))
    asm("v_bfe_u32 %s, %s, 4, 1" % (v(vV), v(vL)))
    asm("v_lshlrev_b32 %s, 1, %s" % (v(vV), v(vV)))
    asm("v_bfe_u32 %s, %s, 1, 1" % (v(TMP), v(vL)))
    asm("v_add_u32 %s, %s, %s" % (v(vV), v(vV), v(TMP)))
    asm("s_lshl_b32 %s, %s, 3" % (s(sT0), s(sWN)))
    asm("v_add_u32 %s, %s, %s" % (v(vV), s(sT0), v(vV)))
    asm("v_lshlrev_b32 %s, 2, %s" % (v(vT), v(vT)))
    for tn in range(2):
        asm("v_add_u32 %s, %d, %s" % (v(TMP), 4 * tn, v(vV)))
        asm("v_xor_b32 %s, %s, %s" % (v(TMP), v(TMP), v(vT)))
        asm("v_lshl_add_u32 %s, %s, 4, %s" % (v(vWA + tn), v(TMP), v(vU)))
    for i in range(128):
        asm("v_mov_b32 %s, 0" % v(ACC + i))
    asm("s_mul_i32 %s, %s, 3" % (s(sT0), s(sBR)))
    asm("s_add_u32 %s, %s, %s" % (s(sT0), s(sT0), s(sPART)))
    asm("s_mul_i32 %s, %s, %d" % (s(sT0), s(sT0), REG))
    asm("s_add_u32 s6, s6, %s" % s(sT0))
    asm("s_addc_u32 s7, s7, 0")
    SO = SA_
    srd(asm, SO, "s6", "s7", REG)
    def rdX(st_, tm, ks):
        asm("ds_read_b128 %s, %s offset:%d" % (v(FX[st_] + 4 * tm, 4), v(vXA + ks), tm * 4096))
    def rdW(st_, tn, a_, ks):
        asm("ds_read_b64_tr_b16 %s, %s offset:%d" % (v(FW[st_] + 4 * tn + 2 * a_, 2), v(vWA + tn), ks * 4096 + a_ * 1024))
    def reads(st_, ks):
        return [lambda: rdW(st_, 0, 0, ks), lambda: rdW(st_, 0, 1, ks), lambda: rdX(st_, 0, ks), lambda: rdX(st_, 1, ks),
                lambda: rdW(st_, 1, 0, ks), lambda: rdW(st_, 1, 1, ks), lambda: rdX(st_, 2, ks), lambda: rdX(st_, 3, ks)]
    MORD = [(0, 0), (1, 0), (0, 1), (1, 1), (2, 0), (2, 1), (3, 0), (3, 1)]
    def mfma(orient, st_, tm, tn):
        acc = v(ACC + (tm * 2 + tn) * 16, 16)
        x = v(FX[st_] + 4 * tm, 4); w = v(FW[st_] + 4 * tn, 4)
        if orient == "T": asm("v_mfma_f32_32x32x16_bf16 %s, %s, %s, %s" % (acc, w, x, acc))
        else: asm("v_mfma_f32_32x32x16_bf16 %s, %s, %s, %s" % (acc, x, w, acc))
    asm("s_lshl_b32 %s, %s, 3" % (s(sT0), s(sRB)))
    asm("s_lshl_b32 %s, %s, 2" % (s(sT1), s(sWM)))
    asm("s_add_u32 %s, %s, %s" % (s(sT3), s(sT0), s(sT1)))
    sVAR = 59
    asm("s_mov_b32 %s, %s" % (s(sVAR), s(sPART)))
    asm("s_cmp_eq_u32 %s, 0" % s(sBR))
    asm("s_cbranch_scc1 %s_varok" % N)
    asm("s_cmp_eq_u32 %s, 2" % s(sPART))
    asm("s_cselect_b32 %s, 2, 3" % s(sVAR))
    asm.label("%s_varok" % N)
    asm("s_cmp_eq_u32 %s, 0" % s(sVAR))
    asm("s_cbranch_scc1 %s_adrT" % N)
    asm("s_cmp_eq_u32 %s, 3" % s(sVAR))
    asm("s_cbranch_scc1 %s_adrT" % N)
    asm("s_mul_i32 %s, %s, 40960" % (s(sT0), s(sT3)))
    asm("s_lshl_b32 %s, %s, 11" % (s(sT1), s(sCBP)))
    asm("s_add_u32 %s, %s, %s" % (s(sT0), s(sT0), s(sT1)))
    asm("s_lshl_b32 %s, %s, 10" % (s(sT1), s(sWN)))
    asm("s_add_u32 %s, %s, %s" % (s(sT0), s(sT0), s(sT1)))
    asm("v_lshrrev_b32 %s, 5, %s" % (v(vT), v(vL)))
    asm("v_mul_u32_u24 %s, 10240, %s" % (v(vT), v(vT)))
    asm("v_and_b32 %s, 31, %s" % (v(vU), v(vL)))
    asm("v_lshl_add_u32 %s, %s, 4, %s" % (v(vSO), v(vU), v(vT)))
    asm("v_add_u32 %s, %s, %s" % (v(vSO), s(sT0), v(vSO)))
    asm("s_movk_i32 %s, 512" % s(sTN))
    asm("s_movk_i32 %s, 20480" % s(sGG))
    asm("s_branch %s_adrok" % N)
    asm.label("%s_adrT" % N)
    asm("s_mul_i32 %s, %s, 40" % (s(sT0), s(sT3)))
    asm("s_lshl_b32 %s, %s, 3" % (s(sT1), s(sCBP)))
    asm("s_add_u32 %s, %s, %s" % (s(sT0), s(sT0), s(sT1)))
    asm("s_lshl_b32 %s, %s, 2" % (s(sT1), s(sWN)))
    asm("s_add_u32 %s, %s, %s" % (s(sT0), s(sT0), s(sT1)))
    asm("s_lshl_b32 %s, %s, 10" % (s(sT0), s(sT0)))
    asm("v_lshlrev_b32 %s, 4, %s" % (v(vSO), v(vL)))
    asm("v_add_u32 %s, %s, %s" % (v(vSO), s(sT0), v(vSO)))
    asm("s_movk_i32 %s, 2048" % s(sTN))
    asm("s_movk_i32 %s, 1024" % s(sGG))
    asm.label("%s_adrok" % N)
    asm("s_cmp_lt_u32 %s, 2" % s(sVAR))
    asm("s_cselect_b32 %s, %s, 1.0" % (s(sC0), fhex(LOG2E)))
    asm("s_cmp_eq_u32 %s, 3" % s(sVAR))
    asm("s_cbranch_scc0 %s_c0ok" % N)
    asm("s_cmp_eq_u32 %s, 0" % s(sPART))
    asm("s_cselect_b32 %s, %s, 1.0" % (s(sC0), fhex(QSCALE)))
    asm.label("%s_c0ok" % N)
    asm("s_mov_b32 %s, %s" % (s(sC0 + 1), s(sC0)))
    asm("s_mov_b32 %s, %s" % (s(sC1), fhex(1e-6)))
    asm("s_mov_b32 %s, 0" % s(sSTG))
    asm("s_mov_b32 %s, 0" % s(sRBUF))
    asm("s_mov_b32 %s, 0x%x" % (s(sNEG), (-2 * 49152) & 0xffffffff))
    asm("s_barrier")
    st(1)
    for f in reads(0, 0): f()
    asm("s_cmp_eq_u32 %s, 0" % s(sVAR))
    asm("s_cbranch_scc1 %s_loopT" % N)
    asm("s_cmp_eq_u32 %s, 3" % s(sVAR))
    asm("s_cbranch_scc0 %s_loopF" % N)
    def loop(orient):
        L = "%s_loop%s" % (N, orient)
        asm(".p2align 4")
        asm.label(L)
        for ks in range(4):
            st_ = ks & 1; nst_ = st_ ^ 1
            if ks == 3:
                asm("s_cbranch_scc1 %s_final%s" % (N, orient))
            asm("s_waitcnt lgkmcnt(0)")
            if ks < 3:
                rs = reads(nst_, ks + 1)
                for m in range(8):
                    mfma(orient, st_, *MORD[m])
                    if m < 4:
                        rs[2 * m](); rs[2 * m + 1]()
                    if ks == 2 and m == 4:
                        asm("s_add_u32 %s, %s, 1" % (s(sRBUF), s(sRBUF)))
                        asm("s_cmp_eq_u32 %s, 3" % s(sRBUF))
                        asm("s_cselect_b32 %s, 0, %s" % (s(sRBUF), s(sRBUF)))
                        asm("s_cselect_b32 %s, %s, 49152" % (s(sDELTA), s(sNEG)))
                    if ks == 2 and m == 5:
                        for k in range(3): asm("v_add_u32 %s, %s, %s" % (v(vXA + k), s(sDELTA), v(vXA + k)))
                    if ks == 2 and m == 6:
                        asm("v_add_u32 %s, %s, %s" % (v(vXA + 3), s(sDELTA), v(vXA + 3)))
                        for k in range(2): asm("v_add_u32 %s, %s, %s" % (v(vWA + k), s(sDELTA), v(vWA + k)))
                        asm("s_add_u32 %s, %s, 1" % (s(sSTG), s(sSTG)))
                        asm("s_cmp_eq_u32 %s, 9" % s(sSTG))
            else:
                mfma(orient, st_, *MORD[0])
                mfma(orient, st_, *MORD[1])
                asm("s_barrier")
                rs = reads(nst_, 0)
                mfma(orient, st_, *MORD[2])
                rs[0](); rs[1](); rs[2]()
                mfma(orient, st_, *MORD[3])
                rs[3](); rs[4](); rs[5]()
                mfma(orient, st_, *MORD[4])
                rs[6](); rs[7]()
                mfma(orient, st_, *MORD[5])
                mfma(orient, st_, *MORD[6])
                mfma(orient, st_, *MORD[7])
        asm("s_branch %s" % L)
    loop("T")
    loop("F")
    WALL = 224
    XS = [FX[0], FX[1]]
    def epi_lines(kind, q):
        tm, tn = q >> 1, q & 1
        b = ACC + q * 16
        tb_ = TMP + 8 * (q & 1)
        L_ = []
        if kind == "phi":
            for qq in range(4):
                r0 = b + 4 * qq
                L_.append("v_pk_mul_f32 %s, %s, %s" % (v(TE, 2), v(r0, 2), s(sC0, 2)))
                L_.append("v_pk_mul_f32 %s, %s, %s" % (v(TE + 2, 2), v(r0 + 2, 2), s(sC0, 2)))
                for k in range(4): L_.append("v_exp_f32_e64 %s, %s clamp" % (v(TE + k), v(TE + k)))
                for k in range(4): L_.append("v_max_f32 %s, %s, %s" % (v(r0 + k), s(sC1), v(r0 + k)))
                L_.append("v_pk_add_f32 %s, %s, %s" % (v(r0, 2), v(r0, 2), v(TE, 2)))
                L_.append("v_pk_add_f32 %s, %s, %s" % (v(r0 + 2, 2), v(r0 + 2, 2), v(TE + 2, 2)))
                L_.append("v_cvt_pk_bf16_f32 %s, %s, %s" % (v(tb_ + 2 * qq), v(r0), v(r0 + 1)))
                L_.append("v_cvt_pk_bf16_f32 %s, %s, %s" % (v(tb_ + 2 * qq + 1), v(r0 + 2), v(r0 + 3)))
        else:
            if kind == "scale":
                for p_ in range(8): L_.append("v_pk_mul_f32 %s, %s, %s" % (v(b + 2 * p_, 2), v(b + 2 * p_, 2), s(sC0, 2)))
            for p_ in range(8): L_.append("v_cvt_pk_bf16_f32 %s, %s, %s" % (v(tb_ + p_), v(b + 2 * p_), v(b + 2 * p_ + 1)))
        L_.append("s_mul_i32 %s, %s, %d" % (s(sSO), s(sTN), tn))
        if tm: L_.append("s_add_u32 %s, %s, %d" % (s(sSO), s(sSO), tm * 40960))
        L_.append("buffer_store_dwordx4 %s, %s, %s, %s offen%s" % (v(tb_, 4), v(vSO), s(SO, 4), s(sSO), SC))
        L_.append("s_add_u32 %s, %s, %s" % (s(sSO), s(sSO), s(sGG)))
        L_.append("buffer_store_dwordx4 %s, %s, %s, %s offen%s" % (v(tb_ + 4, 4), v(vSO), s(SO, 4), s(sSO), SC))
        return L_
    def final(orient, kind, label):
        asm.label(label)
        sync_issue(vN, vN + 2)
        asm("s_waitcnt lgkmcnt(0)")
        mfma(orient, 1, *MORD[0])
        mfma(orient, 1, *MORD[1])
        asm("s_barrier")
        rd = []
        for ks in range(4):
            rd.append("ds_read_b128 %s, %s" % (v(XS[0] + 4 * ks, 4), v(vXA + ks)))
            for a_ in range(2):
                rd.append("ds_read_b64_tr_b16 %s, %s offset:%d" % (v(WALL + ks * 4 + 2 * a_, 2), v(vWA), ks * 4096 + a_ * 1024))
        for ks in range(4):
            for a_ in range(2):
                rd.append("ds_read_b64_tr_b16 %s, %s offset:%d" % (v(WALL + (4 + ks) * 4 + 2 * a_, 2), v(vWA + 1), ks * 4096 + a_ * 1024))
        per = [4, 4, 3, 3, 3, 3]
        pos = 0
        for m in range(2, 8):
            mfma(orient, 1, *MORD[m])
            for k in range(per[m - 2]):
                asm(rd[pos]); pos += 1
        assert pos == len(rd) == 20
        for q in range(8):
            tm, tn = q >> 1, q & 1
            xs = XS[tm & 1]
            if q == 0:
                asm("s_waitcnt lgkmcnt(8)")
            elif q == 1:
                asm("s_waitcnt lgkmcnt(4)")
            elif tn == 0:
                asm("s_waitcnt lgkmcnt(0)")
                if tm == 3: asm("s_barrier")
            ep = epi_lines(kind, q - 2) if q >= 2 else []
            if q == 2: ep = ["s_nop 7"] + ep
            chunk = (len(ep) + 3) // 4
            acc = v(ACC + q * 16, 16)
            for ks in range(4):
                x = v(xs + 4 * ks, 4); w = v(WALL + (tn * 4 + ks) * 4, 4)
                if orient == "T": asm("v_mfma_f32_32x32x16_bf16 %s, %s, %s, %s" % (acc, w, x, acc))
                else: asm("v_mfma_f32_32x32x16_bf16 %s, %s, %s, %s" % (acc, x, w, acc))
                if tn == 0 and tm < 3:
                    asm("ds_read_b128 %s, %s offset:%d" % (v(XS[(tm + 1) & 1] + 4 * ks, 4), v(vXA + ks), (tm + 1) * 4096))
                for ln in ep[ks * chunk:(ks + 1) * chunk]: asm(ln)
        st(2)
        for ln in epi_lines(kind, 6): asm(ln)
        for ln in epi_lines(kind, 7): asm(ln)
        asm("s_branch %s_fin1" % N)
    asm.label("%s_finalT" % N)
    asm("s_cmp_eq_u32 %s, 0" % s(sVAR))
    asm("s_cbranch_scc0 %s_fin_ts" % N)
    final("T", "phi", "%s_fin_tp" % N)
    final("T", "scale", "%s_fin_ts" % N)
    asm.label("%s_finalF" % N)
    asm("s_cmp_eq_u32 %s, 1" % s(sVAR))
    asm("s_cbranch_scc0 %s_fin_fn" % N)
    final("F", "phi", "%s_fin_fp" % N)
    final("F", "plain", "%s_fin_fn" % N)
    asm.label("%s_fin1" % N)
    asm("v_mov_b32 %s, 0x%x" % (v(vT), W_ISS))
    asm("v_mov_b32 %s, 1" % v(vU))
    asm("s_mov_b64 exec, 1")
    asm("ds_add_u32 %s, %s" % (v(vT), v(vU)))
    asm("s_mov_b64 exec, -1")
    st(3)
    get_sync(vN, vN + 2, preissued=True)
    release()
    asm("s_lshl_b32 %s, %s, 3" % (s(sT1), s(sBR)))
    asm("s_add_u32 %s, %s, %s" % (s(sT1), s(sT1), s(sRB)))
    asm("s_lshl_b32 %s, %s, 4" % (s(sT1), s(sT1)))
    asm("s_add_u32 %s, %s, %s" % (s(sT1), s(sT1), s(sCB)))
    asm("s_lshl_b32 %s, %s, 3" % (s(sT1), s(sT1)))
    asm("s_add_u32 %s, %s, %d" % (s(sT1), s(sT1), F1))
    lds_arrive(W_CNT1, 4, vN + 2, vN, s(sT1), replicas=REPL)
    st(4)
    asm("s_branch %s_p2setup" % N)
    asm.label("%s_p2c" % N)
    asm("s_barrier")
    get_sync(220, 222)
    asm("s_branch %s_p2setup" % N)

    asm.label("%s_p1h" % N)
    hL, hT, hU, hV = 2, 3, 4, 5
    vDX, vDW, hTMP = 8, 16, 20
    sXOFF, sWOFF, sM0X, sM0W, sDBUF, sHS = 52, 53, 54, 55, 56, 57
    SX, SWD = SA_, SB_
    asm("s_cmp_lt_u32 %s, 30" % s(sSLOT))
    asm("s_cbranch_scc1 %s_p1h2" % N)
    asm("s_barrier")
    asm("s_branch %s_p2h" % N)
    asm.label("%s_p1h2" % N)
    lane(hL)
    asm("v_lshrrev_b32 %s, 3, %s" % (v(hT), v(hL)))
    asm("s_lshl_b32 %s, %s, 6" % (s(sT0), s(sW4)))
    asm("v_add_u32 %s, %s, %s" % (v(hT), s(sT0), v(hT)))
    asm("s_movk_i32 %s, 1280" % s(sT1))
    asm("v_mul_lo_u32 %s, %s, %s" % (v(hT), v(hT), s(sT1)))
    asm("v_lshrrev_b32 %s, 4, %s" % (v(hU), v(hL)))
    asm("v_and_b32 %s, 7, %s" % (v(hV), v(hL)))
    for par in range(2):
        if par == 1: asm("v_add_u32 %s, 4, %s" % (v(hU), v(hU)))
        asm("v_xor_b32 %s, %s, %s" % (v(hTMP + par), v(hV), v(hU)))
        asm("v_lshl_add_u32 %s, %s, 4, %s" % (v(hTMP + par), v(hTMP + par), v(hT)))
    for i in range(8):
        asm("v_add_u32 %s, %d, %s" % (v(vDX + i), i * 8 * 1280 - (i & 3) * 1024, v(hTMP + (i & 1))))
    asm("v_lshrrev_b32 %s, 4, %s" % (v(hU), v(hL)))
    asm("s_lshl_b32 %s, %s, 4" % (s(sT0), s(sW4)))
    asm("v_add_u32 %s, %s, %s" % (v(hT), s(sT0), v(hU)))
    asm("s_movk_i32 %s, 3840" % s(sT1))
    asm("v_mul_lo_u32 %s, %s, %s" % (v(hT), v(hT), s(sT1)))
    asm("v_lshlrev_b32 %s, 2, %s" % (v(hU), v(hU)))
    asm("v_and_b32 %s, 15, %s" % (v(hV), v(hL)))
    asm("v_xor_b32 %s, %s, %s" % (v(hV), v(hV), v(hU)))
    asm("v_lshl_add_u32 %s, %s, 4, %s" % (v(hT), v(hV), v(hT)))
    for i in range(4):
        asm("v_add_u32 %s, %d, %s" % (v(vDW + i), i * 4 * 3840 - i * 1024, v(hT)))
    asm("s_cmp_eq_u32 %s, 0" % s(sBR))
    asm("s_cselect_b32 s36, s36, s40")
    asm("s_cselect_b32 s37, s37, s41")
    asm("s_cselect_b32 s38, s38, s42")
    asm("s_cselect_b32 s39, s39, s43")
    asm("s_mul_i32 %s, %s, %d" % (s(sT0), s(sRB), 256 * 1280))
    asm("s_add_u32 s36, s36, %s" % s(sT0))
    asm("s_addc_u32 s37, s37, 0")
    asm("s_lshl_b32 %s, %s, 8" % (s(sT0), s(sCB)))
    asm("s_add_u32 s38, s38, %s" % s(sT0))
    asm("s_addc_u32 s39, s39, 0")
    asm("s_sub_u32 %s, %d, %s" % (s(sT1), 640 * 3840, s(sT0)))
    srd(asm, SX, "s36", "s37", 256 * 1280)
    srd(asm, SWD, "s38", "s39", s(sT1))
    def dma_stage():
        asm("s_lshl_b32 %s, %s, 13" % (s(sT0), s(sW4)))
        asm("s_add_u32 %s, %s, %s" % (s(sM0X), s(sDBUF), s(sT0)))
        asm("s_lshl_b32 %s, %s, 12" % (s(sT0), s(sW4)))
        asm("s_add_u32 %s, %s, %s" % (s(sT0), s(sT0), s(sDBUF)))
        asm("s_add_u32 %s, %s, 32768" % (s(sM0W), s(sT0)))
        for idx in range(8):
            if idx == 0:
                asm("s_mov_b32 m0, %s" % s(sM0X)); asm("s_nop 0")
            if idx == 4:
                asm("s_add_u32 m0, %s, 4096" % s(sM0X)); asm("s_nop 0")
            asm("buffer_load_dwordx4 %s, %s, %s offen offset:%d lds" % (v(vDX + idx), s(SX, 4), s(sXOFF), (idx & 3) * 1024))
        asm("s_mov_b32 m0, %s" % s(sM0W)); asm("s_nop 0")
        for j in range(4):
            asm("buffer_load_dwordx4 %s, %s, %s offen offset:%d lds" % (v(vDW + j), s(SWD, 4), s(sWOFF), j * 1024))
        asm("s_add_u32 %s, %s, 128" % (s(sXOFF), s(sXOFF)))
        asm("s_add_u32 %s, %s, %d" % (s(sWOFF), s(sWOFF), 64 * 3840))
        asm("s_add_u32 %s, %s, 49152" % (s(sDBUF), s(sDBUF)))
        asm("s_cmp_ge_u32 %s, %d" % (s(sDBUF), 3 * 49152))
        asm("s_cselect_b32 %s, 0, %s" % (s(sDBUF), s(sDBUF)))
    WARM = opts.get("warm", 3)
    if WARM:
        asm("s_load_dwordx2 s[4:5], s[0:1], 16")
        asm("s_load_dwordx2 s[6:7], s[0:1], 40")
        asm("s_lshl_b32 s58, %s, 2" % s(sSLOT))
        asm("s_add_u32 s58, s58, %s" % s(sW4))
        asm("s_mul_i32 s58, s58, %d" % (54 * 128))
        asm("v_lshlrev_b32 v6, 7, %s" % v(hL))
    asm("s_mov_b32 %s, 0" % s(sXOFF))
    asm("s_mov_b32 %s, 0" % s(sWOFF))
    asm("s_mov_b32 %s, 0" % s(sDBUF))
    asm("s_mov_b32 %s, 0" % s(sHS))
    pro = opts.get("pro", 2)
    Lp = "%s_hpro" % N
    asm.label(Lp)
    dma_stage()
    asm("s_add_u32 %s, %s, 1" % (s(sHS), s(sHS)))
    asm("s_cmp_eq_u32 %s, %d" % (s(sHS), pro))
    asm("s_cbranch_scc0 %s_hpro_n" % N)
    st(3)
    asm("s_waitcnt vmcnt(%d)" % (12 * (pro - 1)))
    st(1)
    asm("s_barrier")
    asm.label("%s_hpro_n" % N)
    asm("s_cmp_lt_u32 %s, 3" % s(sHS))
    asm("s_cbranch_scc1 %s" % Lp)
    asm("s_mov_b32 %s, 0" % s(sHS))
    Lh = "%s_hloop" % N
    asm.label(Lh)
    asm("s_cmp_lt_u32 %s, 8" % s(sHS))
    asm("s_cbranch_scc1 %s_hw12" % N)
    asm("s_waitcnt vmcnt(0)")
    asm("s_branch %s_hw" % N)
    asm.label("%s_hw12" % N)
    asm("s_waitcnt vmcnt(12)")
    asm.label("%s_hw" % N)
    asm("s_barrier")
    asm("s_cmp_lt_u32 %s, 7" % s(sHS))
    asm("s_cbranch_scc0 %s_hnodma" % N)
    dma_stage()
    if WARM:
        asm("s_cmp_eq_u32 %s, %d" % (s(sHS), WARM - 1))
        asm("s_cbranch_scc0 %s_hnodma" % N)
        asm("s_waitcnt lgkmcnt(0)")
        asm("s_cmp_lt_u32 %s, 4" % s(sP8))
        asm("s_cselect_b32 s4, s4, s6")
        asm("s_cselect_b32 s5, s5, s7")
        srd(asm, 60, "s4", "s5", 640 * 1280)
        asm("s_mov_b32 exec_lo, -1")
        asm("s_mov_b32 exec_hi, 0x3fffff")
        asm("buffer_load_dword v7, v6, s[60:63], s58 offen")
        asm("s_mov_b64 exec, -1")
    asm.label("%s_hnodma" % N)
    asm("s_add_u32 %s, %s, 1" % (s(sHS), s(sHS)))
    asm("s_cmp_lt_u32 %s, 10" % s(sHS))
    asm("s_cbranch_scc1 %s" % Lh)
    asm.label("%s_p2h" % N)
    st(2)
    sBR3, sRB3, sCB3 = 64, 65, 66
    def decode3():
        if not D1:
            asm("s_lshr_b32 %s, %s, 4" % (s(sBR3), s(sSLOT)))
            asm("s_bfe_u32 %s, %s, 0x10003" % (s(sRB3), s(sSLOT)))
            asm("s_lshl_b32 %s, %s, 1" % (s(sT0), s(sP8)))
            asm("s_add_u32 %s, %s, %s" % (s(sRB3), s(sRB3), s(sT0)))
            asm("s_and_b32 %s, %s, 7" % (s(sCB3), s(sSLOT)))
        else:
            asm("s_lshr_b32 %s, %s, 2" % (s(sBR3), s(sP8)))
            asm("s_and_b32 %s, %s, 3" % (s(sT0), s(sP8)))
            asm("s_lshl_b32 %s, %s, 2" % (s(sT0), s(sT0)))
            asm("s_lshr_b32 %s, %s, 3" % (s(sRB3), s(sSLOT)))
            asm("s_add_u32 %s, %s, %s" % (s(sRB3), s(sRB3), s(sT0)))
            asm("s_and_b32 %s, %s, 7" % (s(sCB3), s(sSLOT)))
    get_sync(220, 222)
    sHH, sRB2, sG0, sDQ, sTB, sNT = 44, 45, 46, 47, 48, 49
    sMSK, sM40 = 50, 52
    sP = 36
    sQM = 54
    sOffO, sOffQA, sBIG, sEPS = 62, 63, 67, 68
    S = 0; O = 144; Q = 160; F = [168, 176]; CM8 = 184; CM0 = 200; VF = [184, 192]
    vM, vNM = 216, 218
    vT = 220
    vLin, vKa, vVa, vL = 228, 229, 230, 231
    vOm, vOr, vFo, vU = 232, 233, 234, 235
    PB = 236
    PA = 168
    vL8 = 242
    AW = 4
    asm.label("%s_p2setup" % N)
    if not D1:
        asm("s_mov_b32 %s, %s" % (s(sHH), s(sSLOT)))
        asm("s_mov_b32 %s, %s" % (s(sRB2), s(sP8)))
    else:
        asm("s_lshl_b32 %s, %s, 2" % (s(sT0), s(sP8)))
        asm("s_and_b32 %s, %s, 3" % (s(sHH), s(sSLOT)))
        asm("s_add_u32 %s, %s, %s" % (s(sHH), s(sHH), s(sT0)))
        asm("s_lshr_b32 %s, %s, 2" % (s(sRB2), s(sSLOT)))
    asm("s_mul_i32 %s, %s, 5" % (s(sT0), s(sHH)))
    asm("s_lshr_b32 %s, %s, 2" % (s(sG0), s(sT0)))
    asm("s_and_b32 %s, %s, 3" % (s(sDQ), s(sT0)))
    asm("s_lshl_b32 %s, %s, 3" % (s(sTB), s(sRB2)))
    asm("s_add_u32 %s, %s, %s" % (s(sTB), s(sTB), s(sW)))
    asm("s_add_u32 %s, %s, 1" % (s(sNT), s(sTB)))
    asm("s_min_u32 %s, %s, 9" % (s(sNT), s(sNT)))
    asm("s_mov_b32 %s, 0x000fffff" % s(sMSK)); asm("s_mov_b32 %s, 0x000fffff" % s(sMSK + 1))
    asm("s_mov_b32 %s, -1" % s(sM40)); asm("s_mov_b32 %s, 0xff" % s(sM40 + 1))
    lane(vL)
    asm("v_lshlrev_b32 %s, 3, %s" % (v(vL8), v(vL)))
    asm("v_lshlrev_b32 %s, 4, %s" % (v(vLin), v(vL)))
    asm("s_mov_b32 %s, %s" % (s(sBIG), fhex(BIG)))
    asm("v_and_b32 %s, 31, %s" % (v(vU), v(vL)))
    asm("v_lshrrev_b32 %s, 5, %s" % (v(vT + 4), v(vL)))
    asm("v_lshlrev_b32 %s, 2, %s" % (v(vT + 4), v(vT + 4)))
    asm("v_sub_u32 %s, %s, %s" % (v(vU), v(vU), v(vT + 4)))
    asm("v_mov_b32 %s, %s" % (v(vT + 5), s(sBIG)))
    asm("v_mov_b32 %s, 0" % v(vT + 6))
    for r0 in range(0, 16, 4):
        for k in range(4):
            r = r0 + k
            asm("v_cmp_le_i32 %s, %d, %s" % (s(sP + 2 * k, 2), 8 * (r >> 2) + (r & 3), v(vU)))
        asm("s_nop 1")
        for k in range(4):
            r = r0 + k
            asm("v_cndmask_b32 %s, %s, %s, %s" % (v(CM8 + r), v(vT + 5), v(vT + 6), s(sP + 2 * k, 2)))
            asm("v_cndmask_b32 %s, %s, %s, %s" % (v(CM0 + r), v(vT + 6), v(vT + 5), s(sP + 2 * k, 2)))
    for gg in range(2):
        for p in range(2):
            k = gg * 2 + p
            for h in range(2):
                asm("s_sub_u32 %s, %d, %s" % (s(sT0), 4 * gg + 2 * p + h, s(sDQ)))
                asm("s_cmp_le_u32 %s, 4" % s(sT0))
                asm("s_cselect_b32 %s, -1, 0" % s(sQM + 2 * k + h))
    asm("s_lshl_b32 %s, %s, 11" % (s(sT0), s(sW)))
    asm("s_add_u32 %s, %s, %d" % (s(sT0), s(sT0), L_K))
    asm("v_add_u32 %s, %s, %s" % (v(vKa), s(sT0), v(vLin)))
    asm("v_lshrrev_b32 %s, 5, %s" % (v(vT), v(vL)))
    asm("v_mul_u32_u24 %s, 20, %s" % (v(vT), v(vT)))
    asm("v_and_b32 %s, 31, %s" % (v(vU), v(vL)))
    asm("v_add_u32 %s, %s, %s" % (v(vT), v(vT), v(vU)))
    asm("v_lshlrev_b32 %s, 4, %s" % (v(vT), v(vT)))
    asm("s_mul_i32 %s, %s, 1280" % (s(sT0), s(sW)))
    asm("s_add_u32 %s, %s, %d" % (s(sT0), s(sT0), L_V))
    asm("v_add_u32 %s, %s, %s" % (v(vVa), s(sT0), v(vT)))
    asm("s_lshl_b32 %s, %s, 5" % (s(sT0), s(sTB)))
    asm("s_add_u32 %s, %s, %s" % (s(sT0), s(sT0), s(sHH)))
    asm("s_mul_i32 %s, %s, 1280" % (s(sOffO), s(sT0)))
    asm("v_mov_b32 %s, %s" % (v(vOm), v(vLin)))
    asm("v_add_u32 %s, 1024, %s" % (v(vOr), v(vL8)))
    asm("v_mov_b32 %s, 0x%x" % (v(vT + 4), OOB))
    asm("v_cmp_gt_u32 vcc, 32, %s" % v(vL))
    asm("s_nop 1")
    asm("v_cndmask_b32 %s, %s, %s, vcc" % (v(vOr), v(vT + 4), v(vOr)))
    asm("s_mul_i32 %s, %s, 40" % (s(sT2), s(sTB)))
    asm("s_add_u32 %s, %s, %s" % (s(sT2), s(sT2), s(sG0)))
    asm("s_lshl_b32 %s, %s, 10" % (s(sT2), s(sT2)))
    asm("s_add_u32 %s, %s, %d" % (s(sOffQA), s(sT2), R_QA))
    def q_loads():
        asm("s_add_u32 %s, %s, %d" % (s(sT3), s(sOffQA), R_QB - R_QA))
        asm("buffer_load_dwordx4 %s, %s, %s, %s offen sc1" % (v(Q, 4), v(vLin), s(SWS, 4), s(sT3)))
        asm("buffer_load_dwordx4 %s, %s, %s, %s offen offset:1024 sc1" % (v(Q + 4, 4), v(vLin), s(SWS, 4), s(sT3)))
    FINE = opts.get("fine", 1)
    def tile_masks():
        asm("s_lshr_b32 %s, %s, 3" % (s(sT1), s(sG0)))
        asm("s_lshl_b32 %s, 1, %s" % (s(sT1), s(sT1)))
        asm("s_add_u32 %s, %s, 1" % (s(sT2), s(sG0)))
        asm("s_lshr_b32 %s, %s, 3" % (s(sT2), s(sT2)))
        asm("s_lshl_b32 %s, 1, %s" % (s(sT2), s(sT2)))
        asm("s_or_b32 %s, %s, %s" % (s(sT1), s(sT1), s(sT2)))
        asm("s_mul_i32 %s, %s, 20" % (s(sT3), s(sHH)))
        asm("s_lshr_b32 %s, %s, 7" % (s(sT2), s(sT3)))
        asm("s_lshl_b32 %s, 1, %s" % (s(sT2), s(sT2)))
        asm("s_add_u32 %s, %s, 19" % (s(sT3), s(sT3)))
        asm("s_lshr_b32 %s, %s, 7" % (s(sT3), s(sT3)))
        asm("s_lshl_b32 %s, 1, %s" % (s(sT3), s(sT3)))
        asm("s_or_b32 %s, %s, %s" % (s(sT2), s(sT2), s(sT3)))
    def own_tile_wait():
        D = lab("otw")
        asm("s_cmp_ge_u32 %s, 30" % s(sSLOT))
        asm("s_cbranch_scc1 %s" % D)
        lds_wait(W_CNT1, vT, vT + 1, atleast=4)
        asm.label(D)
    def lds_inc(word):
        asm("v_mov_b32 %s, 0x%x" % (v(vT), word))
        asm("v_mov_b32 %s, 1" % v(vT + 1))
        asm("s_mov_b64 exec, 1")
        asm("ds_add_u32 %s, %s" % (v(vT), v(vT + 1)))
        asm("s_mov_b64 exec, -1")
    asm("s_cmp_eq_u32 %s, %d" % (s(sW), AW))
    asm("s_cbranch_scc1 %s_aearly" % N)
    asm("s_cmp_eq_u32 %s, 5" % s(sW))
    asm("s_cbranch_scc1 %s_w5" % N)
    asm("s_cmp_ge_u32 %s, 6" % s(sW))
    asm("s_cbranch_scc1 %s_w67" % N)
    sTK, sKO, sLK, sIk = 4, 5, 6, 7
    lds_wait(W_S1, vT, vT + 1)
    st(4) if opts.get("kvst") else None
    asm("s_lshl_b32 %s, %s, 2" % (s(sIk), s(sW)))
    asm("s_cmp_eq_u32 %s, 0" % s(sRB2))
    asm("s_cselect_b32 %s, 8, 0" % s(sT0))
    asm("s_cmp_lt_u32 %s, %s" % (s(sIk), s(sT0)))
    asm("s_cbranch_scc1 %s_nok" % N)
    asm("s_lshl_b32 %s, %s, 3" % (s(sTK), s(sRB2)))
    asm("s_add_u32 %s, %s, %s" % (s(sTK), s(sTK), s(sIk)))
    asm("s_sub_u32 %s, %s, 8" % (s(sTK), s(sTK)))
    asm("s_mul_i32 %s, %s, 40" % (s(sKO), s(sTK)))
    asm("s_add_u32 %s, %s, %s" % (s(sKO), s(sKO), s(sG0)))
    asm("s_lshl_b32 %s, %s, 10" % (s(sKO), s(sKO)))
    asm("s_add_u32 %s, %s, %d" % (s(sKO), s(sKO), R_KB))
    asm("s_lshl_b32 %s, %s, 11" % (s(sLK), s(sIk)))
    asm("s_add_u32 %s, %s, %d" % (s(sLK), s(sLK), L_K))
    for ii in range(4):
        asm("s_add_u32 m0, %s, %d" % (s(sLK), ii * 2048))
        asm("s_nop 0")
        asm("buffer_load_dwordx4 %s, %s, %s offen sc1 lds" % (v(vLin), s(SWS, 4), s(sKO)))
        asm("buffer_load_dwordx4 %s, %s, %s offen offset:1024 sc1 lds" % (v(vLin), s(SWS, 4), s(sKO)))
        if ii < 3: asm("s_add_u32 %s, %s, 40960" % (s(sKO), s(sKO)))
    asm.label("%s_nok" % N)
    q_loads()
    asm("s_waitcnt vmcnt(0)")
    lds_inc(W_K)
    asm("s_branch %s_kwait" % N)
    asm.label("%s_w67" % N)
    vDWO = 243
    sDA, sDM = 4, 5
    SWO = SA_
    decode3()
    asm("s_load_dwordx2 s[4:5], s[0:1], 16")
    asm("s_load_dwordx2 s[6:7], s[0:1], 40")
    asm("s_movk_i32 %s, 6554" % s(sT2))
    asm("s_movk_i32 %s, 1280" % s(sT3))
    for b in range(5):
        asm("v_add_u32 %s, %d, %s" % (v(vT), 64 * b, v(vL)))
        asm("v_mul_lo_u32 %s, %s, %s" % (v(vT + 1), v(vT), s(sT2)))
        asm("v_lshrrev_b32 %s, 16, %s" % (v(vT + 1), v(vT + 1)))
        asm("v_mul_u32_u24 %s, 10, %s" % (v(vT + 2), v(vT + 1)))
        asm("v_sub_u32 %s, %s, %s" % (v(vT), v(vT), v(vT + 2)))
        asm("v_lshlrev_b32 %s, 4, %s" % (v(vT), v(vT)))
        asm("v_mad_u32_u24 %s, %s, %s, %s" % (v(vDWO + b), v(vT + 1), s(sT3), v(vT)))
        if 0 < b < 4: asm("v_subrev_u32 %s, %d, %s" % (v(vDWO + b), b * 1024, v(vDWO + b)))
    asm("s_waitcnt lgkmcnt(0)")
    asm("s_cmp_eq_u32 %s, 0" % s(sBR3))
    asm("s_cselect_b32 s4, s4, s6")
    asm("s_cselect_b32 s5, s5, s7")
    asm("s_mul_i32 %s, %s, 160" % (s(sT0), s(sCB3)))
    asm("s_add_u32 s4, s4, %s" % s(sT0))
    asm("s_addc_u32 s5, s5, 0")
    asm("s_sub_u32 %s, %d, %s" % (s(sT1), 640 * 1280, s(sT0)))
    srd(asm, SWO, "s4", "s5", s(sT1))
    asm("s_and_b32 %s, %s, 1" % (s(sT0), s(sW)))
    asm("s_mul_i32 %s, %s, %d" % (s(sDA), s(sT0), 32 * 1280))
    asm("s_mul_i32 %s, %s, 5120" % (s(sDM), s(sT0)))
    def wo_group():
        asm("s_mov_b32 m0, %s" % s(sDM)); asm("s_nop 0")
        asm("buffer_load_dwordx4 %s, %s, %s offen lds" % (v(vDWO), s(SWO, 4), s(sDA)))
        for b in range(1, 4):
            asm("buffer_load_dwordx4 %s, %s, %s offen offset:%d lds" % (v(vDWO + b), s(SWO, 4), s(sDA), b * 1024))
        asm("s_add_u32 m0, %s, 4096" % s(sDM)); asm("s_nop 0")
        asm("buffer_load_dwordx4 %s, %s, %s offen lds" % (v(vDWO + 4), s(SWO, 4), s(sDA)))
        asm("s_add_u32 %s, %s, %d" % (s(sDA), s(sDA), 2 * 32 * 1280))
        asm("s_add_u32 %s, %s, %d" % (s(sDM), s(sDM), 2 * 5120))
    asm("s_cmp_ge_u32 %s, 30" % s(sSLOT))
    asm("s_cbranch_scc1 %s_wogo" % N)
    lds_wait(W_ISS, vT, vT + 1, atleast=4)
    asm.label("%s_wogo" % N)
    asm("s_mov_b32 s6, 0")
    asm.label("%s_woloop" % N)
    wo_group()
    asm("s_add_u32 s6, s6, 1")
    asm("s_cmp_lt_u32 s6, 10")
    asm("s_cbranch_scc1 %s_woloop" % N)
    lds_wait(W_S1, vT, vT + 1)
    asm("s_waitcnt vmcnt(30)")
    q_loads()
    asm("v_cmp_le_u32 vcc, 20, %s" % v(vL))
    asm("v_mov_b32 %s, 0" % v(vT))
    asm("v_mov_b32 %s, %d" % (v(vT + 1), 10240 - 320))
    asm("v_cndmask_b32 %s, %s, %s, vcc" % (v(vT), v(vT), v(vT + 1)))
    asm("v_add_u32 %s, %s, %s" % (v(vFo), v(vT), v(vLin)))
    asm("s_and_b32 %s, %s, 1" % (s(sIk), s(sW)))
    asm("s_lshl_b32 %s, %s, 3" % (s(sIk), s(sIk)))
    asm("s_or_b32 %s, %s, %s" % (s(sT0), s(sIk), s(sRB2)))
    asm("s_cmp_eq_u32 %s, 0" % s(sT0))
    asm("s_cbranch_scc1 %s_nov" % N)
    asm("s_lshl_b32 %s, %s, 3" % (s(sTK), s(sRB2)))
    asm("s_add_u32 %s, %s, %s" % (s(sTK), s(sTK), s(sIk)))
    asm("s_sub_u32 %s, %s, 8" % (s(sTK), s(sTK)))
    asm("s_mul_i32 %s, %s, 40960" % (s(sKO), s(sTK)))
    asm("s_mul_i32 %s, %s, 320" % (s(sT1), s(sHH)))
    asm("s_add_u32 %s, %s, %s" % (s(sKO), s(sKO), s(sT1)))
    asm("s_add_u32 %s, %s, %d" % (s(sKO), s(sKO), R_VB))
    asm("s_mul_i32 %s, %s, 1280" % (s(sLK), s(sIk)))
    asm("s_add_u32 %s, %s, %d" % (s(sLK), s(sLK), L_V))
    asm("s_mov_b64 exec, %s" % s(sM40, 2))
    for ii in range(8):
        asm("s_add_u32 m0, %s, %d" % (s(sLK), ii * 1280))
        asm("s_add_u32 %s, %s, %d" % (s(sT1), s(sKO), 20480 - 640))
        asm("buffer_load_dwordx4 %s, %s, %s offen sc1 lds" % (v(vFo), s(SWS, 4), s(sKO)))
        asm("buffer_load_dwordx4 %s, %s, %s offen offset:640 sc1 lds" % (v(vFo), s(SWS, 4), s(sT1)))
        if ii < 7: asm("s_add_u32 %s, %s, 40960" % (s(sKO), s(sKO)))
    asm("s_mov_b64 exec, -1")
    asm("s_waitcnt vmcnt(16)")
    asm("s_branch %s_kwait" % N)
    asm.label("%s_nov" % N)
    asm("s_waitcnt vmcnt(0)")
    asm("s_branch %s_kwait" % N)
    asm.label("%s_w5" % N)
    own_tile_wait()
    asm("s_add_u32 %s, %s, 7" % (s(sT0), s(sRB2)))
    asm("s_lshl_b32 %s, %s, 7" % (s(sT0), s(sT0)))
    asm("s_and_b32 %s, %s, %d" % (s(sT1), s(sP8) if REPL <= 8 else s(sHH), REPL - 1))
    asm("s_lshl_b32 %s, %s, 11" % (s(sT1), s(sT1)))
    asm("s_add_u32 %s, %s, %s" % (s(sT0), s(sT0), s(sT1)))
    asm("s_add_u32 %s, %s, %d" % (s(sPL), s(sT0), F1))
    if FINE:
        tile_masks()
        asm("s_lshl_b32 %s, %s, 5" % (s(sT3), s(sT1)))
        asm("s_lshl_b32 %s, %s, 10" % (s(sT2), s(sT2)))
        asm("s_or_b32 %s, %s, %s" % (s(sT3), s(sT3), s(sT2)))
        asm("s_or_b32 %s, %s, %s" % (s(sT1), s(sT1), s(sT3)))
        asm("s_lshl_b32 %s, %s, 16" % (s(sT1), s(sT1)))
        asm("s_cmp_eq_u32 %s, 0" % s(sRB2))
        asm("s_cselect_b32 %s, 0, %s" % (s(sT3), s(sT3)))
        asm("s_or_b32 %s, %s, %s" % (s(sT1), s(sT1), s(sT3)))
    else:
        asm("s_cmp_eq_u32 %s, 0" % s(sRB2))
        asm("s_cselect_b32 %s, 0, 0x7fe0" % s(sT1))
        asm("s_or_b32 %s, %s, 0x7fff0000" % (s(sT1), s(sT1)))
    if opts.get("ppoll", 0): ppoll(s(sPL), 32, [244, 246, 248], vL8, smask=s(sT1))
    else: poll(s(sPL), 32, vT, vL8, smask=s(sT1))
    lds_set(W_S1, vT, vT + 1)
    st(4)
    q_loads()
    asm("s_waitcnt vmcnt(0)")
    asm("s_branch %s_kwait" % N)
    asm.label("%s_aearly" % N)
    asm("v_lshrrev_b32 %s, 5, %s" % (v(vT), v(vL)))
    asm("v_mul_u32_u24 %s, 10240, %s" % (v(vT), v(vT)))
    asm("v_and_b32 %s, 31, %s" % (v(vU), v(vL)))
    asm("v_lshl_add_u32 %s, %s, 4, %s" % (v(vFo), v(vU), v(vT)))
    asm("v_mov_b32 %s, 0x3f803f80" % v(vT + 2))
    for r in range(64, 128): asm("v_mov_b32 %s, %s" % (v(r), v(vT + 2)))
    own_tile_wait()
    asm("s_lshl_b32 %s, %s, 7" % (s(sT0), s(sRB2)))
    asm("s_and_b32 %s, %s, %d" % (s(sT1), s(sP8) if REPL <= 8 else s(sHH), REPL - 1))
    asm("s_lshl_b32 %s, %s, 11" % (s(sT1), s(sT1)))
    asm("s_add_u32 %s, %s, %s" % (s(sT0), s(sT0), s(sT1)))
    asm("s_add_u32 %s, %s, %d" % (s(sPL), s(sT0), F1))
    if FINE:
        tile_masks()
        asm("s_lshl_b32 %s, %s, 5" % (s(sT3), s(sT2)))
        asm("s_lshl_b32 %s, %s, 10" % (s(sT2), s(sT2)))
        asm("s_or_b32 %s, %s, %s" % (s(sT1), s(sT1), s(sT3)))
        asm("s_or_b32 %s, %s, %s" % (s(sT1), s(sT1), s(sT2)))
        if opts.get("ppoll", 0): ppoll(s(sPL), 15, [244, 246, 248], vL8, smask=s(sT1))
        else: poll(s(sPL), 15, vT, vL8, smask=s(sT1))
    else:
        poll(s(sPL), 15, vT, vL8)
    lds_set(W_S1A, vT, vT + 1)
    st(4)
    asm("s_lshl_b32 %s, %s, 3" % (s(sT0), s(sRB2)))
    asm("s_mul_i32 %s, %s, 40960" % (s(sT0), s(sT0)))
    asm("s_mul_i32 %s, %s, 320" % (s(sT1), s(sHH)))
    asm("s_add_u32 %s, %s, %s" % (s(sT0), s(sT0), s(sT1)))
    asm("s_add_u32 %s, %s, %d" % (s(sT1), s(sT0), R_KA))
    asm("s_add_u32 %s, %s, %d" % (s(sT2), s(sT0), R_VA))
    asm("s_mov_b64 exec, %s" % s(sMSK, 2))
    for b in range(8):
        for m in range(2):
            asm("buffer_load_dwordx4 %s, %s, %s, %s offen sc1" % (v((b * 2 + m) * 4, 4), v(vFo), s(SWS, 4), s(sT1)))
            asm("buffer_load_dwordx4 %s, %s, %s, %s offen sc1" % (v(64 + (b * 2 + m) * 4, 4), v(vFo), s(SWS, 4), s(sT2)))
            asm("s_add_u32 %s, %s, 20480" % (s(sT1), s(sT1)))
            asm("s_add_u32 %s, %s, 20480" % (s(sT2), s(sT2)))
    asm("s_mov_b64 exec, -1")
    lds_wait(W_S1, vT, vT + 1)
    q_loads()
    for b in range(16):
        asm("s_waitcnt vmcnt(%d)" % (32 - 2 * b))
        c = "0" if b == 0 else v(O, 16)
        asm("v_mfma_f32_32x32x16_bf16 %s, %s, %s, %s" % (v(O, 16), v(b * 4, 4), v(64 + b * 4, 4), c))
    asm("s_lshl_b32 %s, %s, 3" % (s(sT0), s(sHH)))
    asm("s_add_u32 %s, %s, %s" % (s(sT0), s(sT0), s(sRB2)))
    asm("s_mul_i32 %s, %s, 3072" % (s(sT0), s(sT0)))
    asm("s_add_u32 %s, %s, %d" % (s(sT0), s(sT0), R_KVP))
    asm("s_nop 7"); asm("s_nop 1")
    for j in range(3):
        asm("buffer_store_dwordx4 %s, %s, %s, %s offen offset:%d sc1" % (v(O + 4 * j, 4), v(vLin), s(SWS, 4), s(sT0), j * 1024))
    asm("s_waitcnt vmcnt(3)")
    asm.label("%s_kwait" % N)
    lds_wait(W_K, vT, vT + 1, atleast=4)
    st(5)
    PRIO = opts.get("prio", 0)
    if PRIO:
        asm("s_cmp_%s_u32 %s, 4" % ("lt" if PRIO == 1 else "ge", s(sW)))
        asm("s_cbranch_scc0 %s_noprio" % N)
        asm("s_setprio 2")
        asm.label("%s_noprio" % N)
    def rdK(d, dst):
        for gg in range(2):
            asm("ds_read_b128 %s, %s offset:%d" % (v(dst + 4 * gg, 4), v(vKa), (8 - d) * 2048 + gg * 1024))
    def rdV(d, dst):
        asm("s_mov_b64 exec, %s" % s(sMSK, 2))
        for m in range(2):
            asm("ds_read_b128 %s, %s offset:%d" % (v(dst + 4 * m, 4), v(vVa), (8 - d) * 1280 + m * 640))
        asm("s_mov_b64 exec, -1")
    rdK(0, F[0])
    for gg in range(2):
        for p in range(2):
            k = gg * 2 + p
            for j in range(2):
                r = Q + 4 * gg + 2 * p + j
                asm("v_cndmask_b32 %s, 0, %s, %s" % (v(r), v(r), s(sQM + 2 * k, 2)))
    def maxes(d):
        b = S + 16 * d
        if d == 0:
            asm("v_max3_f32 %s, %s, %s, %s" % (v(vM), v(b), v(b + 1), v(b + 2)))
            for k in range(3, 15, 2):
                asm("v_max3_f32 %s, %s, %s, %s" % (v(vM), v(vM), v(b + k), v(b + k + 1)))
            asm("v_max_f32 %s, %s, %s" % (v(vM), v(vM), v(b + 15)))
        else:
            for k in range(0, 16, 2):
                asm("v_max3_f32 %s, %s, %s, %s" % (v(vM), v(vM), v(b + k), v(b + k + 1)))
    for d in range(9):
        cur, nxt = F[d & 1], F[(d + 1) & 1]
        asm("s_waitcnt lgkmcnt(0)")
        if d < 8: rdK(d + 1, nxt)
        if d > 0:
            asm("s_cmp_le_u32 %s, %d" % (s(sNT), d))
            asm("s_cbranch_scc1 %s_p1skip%d" % (N, d))
        else:
            asm("s_nop 1")
        c = v(CM8, 16) if d == 0 else (v(CM0, 16) if d == 8 else "0")
        b = v(S + 16 * d, 16)
        asm("v_mfma_f32_32x32x16_bf16 %s, %s, %s, %s" % (b, v(cur, 4), v(Q, 4), c))
        asm("v_mfma_f32_32x32x16_bf16 %s, %s, %s, %s" % (b, v(cur + 4, 4), v(Q + 4, 4), b))
        if d > 0:
            asm.label("%s_p1skip%d" % (N, d))
            if d == 1: asm("s_nop 7")
            maxes(d - 1)
            asm("s_cbranch_scc1 %s_p1end" % N)
    asm("s_nop 3")
    maxes(8)
    asm.label("%s_p1end" % N)
    st(6)
    SIGD = opts.get("sigd", 2)
    def a_signal():
        asm("s_cmp_lg_u32 %s, %d" % (s(sW), AW))
        asm("s_cbranch_scc1 %s_nosig" % N)
        asm("s_waitcnt vmcnt(0)")
        asm("s_lshl_b32 %s, %s, 4" % (s(sT0), s(sHH)))
        asm("s_add_u32 %s, %s, %s" % (s(sT0), s(sT0), s(sRB2)))
        asm("s_lshl_b32 %s, %s, 3" % (s(sT0), s(sT0)))
        asm("s_add_u32 %s, %s, %d" % (s(sT0), s(sT0), F2))
        flag_store(s(sT0), vT, vT + 2)
        asm.label("%s_nosig" % N)
    if SIGD < 0: a_signal()
    asm("s_cmp_lt_u32 %s, 6" % s(sW))
    asm("s_cbranch_scc1 %s_vw" % N)
    asm("s_waitcnt vmcnt(0)")
    lds_inc(W_V)
    asm.label("%s_vw" % N)
    lds_wait(W_V, vT, vT + 1, atleast=2)
    asm("s_waitcnt lgkmcnt(0)")
    asm("s_mov_b32 %s, 0x3f803f80" % s(sT0))
    for r in range(16): asm("v_mov_b32 %s, %s" % (v(VF[0] + r), s(sT0)))
    rdV(0, VF[0])
    asm("v_mov_b32 %s, %s" % (v(vT + 2), v(vM)))
    asm("v_mov_b32 %s, %s" % (v(vT + 3), v(vM)))
    asm("s_nop 1")
    asm("v_permlane32_swap_b32 %s, %s" % (v(vT + 2), v(vT + 3)))
    asm("s_nop 1")
    asm("v_max_f32 %s, %s, %s" % (v(vM), v(vT + 2), v(vT + 3)))
    asm("v_sub_f32 %s, 0, %s" % (v(vNM), v(vM)))
    asm("v_sub_f32 %s, 0, %s" % (v(vNM + 1), v(vM)))
    PQD = opts.get("pqd", 5)
    sPQ = 7
    asm("s_mov_b32 %s, 0" % s(sPQ))
    def pq_loads():
        lds_wait(W_S1A, vT + 4, vT + 5)
        asm("buffer_load_dwordx4 %s, %s, %s, %s offen sc1" % (v(Q, 4), v(vLin), s(SWS, 4), s(sOffQA)))
        asm("buffer_load_dwordx4 %s, %s, %s, %s offen offset:1024 sc1" % (v(Q + 4, 4), v(vLin), s(SWS, 4), s(sOffQA)))
    for d in range(9):
        cur, nxt = VF[d & 1], VF[(d + 1) & 1]
        b = S + 16 * d
        if d > 0:
            asm("s_cmp_le_u32 %s, %d" % (s(sNT), d))
            asm("s_cbranch_scc1 %s_p2end" % N)
        for k in range(8):
            asm("v_pk_add_f32 %s, %s, %s" % (v(b + 2 * k, 2), v(b + 2 * k, 2), v(vNM, 2)))
        for k in range(16):
            asm("v_exp_f32 %s, %s" % (v(b + k), v(b + k)))
        asm("s_waitcnt lgkmcnt(0)")
        if d < 8: rdV(d + 1, nxt)
        for k in range(8):
            asm("v_cvt_pk_bf16_f32 %s, %s, %s" % (v(b + k), v(b + 2 * k), v(b + 2 * k + 1)))
        asm("s_nop 1")
        asm("v_mfma_f32_32x32x16_bf16 %s, %s, %s, %s" % (v(O, 16), v(cur, 4), v(b, 4), "0" if d == 0 else v(O, 16)))
        asm("v_mfma_f32_32x32x16_bf16 %s, %s, %s, %s" % (v(O, 16), v(cur + 4, 4), v(b + 4, 4), v(O, 16)))
        if d == SIGD: a_signal()
        if d == PQD:
            pq_loads()
            asm("s_mov_b32 %s, 1" % s(sPQ))
    asm.label("%s_p2end" % N)
    if PRIO: asm("s_setprio 0")
    if PQD > 0:
        asm("s_cmp_lg_u32 %s, 0" % s(sPQ))
        asm("s_cbranch_scc1 %s_pqdone" % N)
        pq_loads()
        asm.label("%s_pqdone" % N)
    st(7)
    def normalize(dst, eps):
        asm("v_mov_b32 %s, %s" % (v(vT), v(O + 8)))
        asm("v_mov_b32 %s, %s" % (v(vT + 1), v(O + 8)))
        asm("s_nop 1")
        asm("v_permlane32_swap_b32 %s, %s" % (v(vT), v(vT + 1)))
        asm("s_nop 1")
        if eps: asm("v_add_f32 %s, %s, %s" % (v(vT + 1), s(sEPS), v(vT + 1)))
        asm("v_rcp_f32 %s, %s" % (v(vT + 1), v(vT + 1)))
        asm("s_nop 0")
        for k in range(12): asm("v_mul_f32 %s, %s, %s" % (v(O + k), v(vT + 1), v(O + k)))
        for k in range(6): asm("v_cvt_pk_bf16_f32 %s, %s, %s" % (v(dst + k), v(O + 2 * k), v(O + 2 * k + 1)))
    def store_o(src, region):
        asm("s_add_u32 %s, %s, %d" % (s(sT0), s(sOffO), region))
        asm("buffer_store_dwordx4 %s, %s, %s, %s offen%s" % (v(src, 4), v(vOm), s(SWS, 4), s(sT0), SC))
        asm("buffer_store_dwordx2 %s, %s, %s, %s offen%s" % (v(src + 4, 2), v(vOr), s(SWS, 4), s(sT0), SC))
    asm("s_mov_b32 %s, %s" % (s(sEPS), fhex(1e-6)))
    asm("s_cmp_ge_u32 %s, 4" % s(sW))
    asm("s_cbranch_scc1 %s_hiwaves" % N)
    asm("s_lshl_b32 %s, %s, 7" % (s(sPL), s(sHH)))
    asm("s_add_u32 %s, %s, %d" % (s(sPL), s(sPL), F2))
    asm("s_cmp_lg_u32 %s, 0" % s(sW))
    asm("s_cbranch_scc1 %s_w123" % N)
    poll_issue(s(sPL), vT + 4, vL8, 8)
    asm("s_nop 7"); asm("s_nop 3")
    normalize(PB, False)
    poll(s(sPL), 8, vT + 4, vL8, preissued=True)
    lds_set(W_S2, vT + 4, vT + 5)
    asm("s_branch %s_w0123" % N)
    asm.label("%s_w123" % N)
    asm("s_nop 7"); asm("s_nop 3")
    normalize(PB, False)
    lds_wait(W_S2, vT + 4, vT + 5)
    asm.label("%s_w0123" % N)
    asm("s_lshl_b32 %s, %s, 1" % (s(sT0), s(sW)))
    asm("s_sub_u32 %s, %s, %s" % (s(sT0), s(sT0), s(sDQ)))
    asm("v_lshrrev_b32 %s, 5, %s" % (v(vT), v(vL)))
    asm("v_add_u32 %s, %s, %s" % (v(vT), s(sT0), v(vT)))
    asm("v_and_b32 %s, 31, %s" % (v(vT + 1), v(vL)))
    asm("v_lshlrev_b32 %s, 4, %s" % (v(vT + 1), v(vT + 1)))
    asm("v_lshl_add_u32 %s, %s, 9, %s" % (v(vT + 1), v(vT), v(vT + 1)))
    asm("v_cmp_ge_u32 vcc, 4, %s" % v(vT))
    asm("v_mov_b32 %s, 0x%x" % (v(vT + 2), OOB))
    asm("s_nop 0")
    asm("v_cndmask_b32 %s, %s, %s, vcc" % (v(vU), v(vT + 2), v(vT + 1)))
    asm("s_lshl_b32 %s, %s, 3" % (s(sT0), s(sHH)))
    asm("s_mul_i32 %s, %s, 3072" % (s(sT0), s(sT0)))
    asm("s_add_u32 %s, %s, %d" % (s(sT0), s(sT0), R_KVP))
    for r in range(8):
        asm("buffer_load_dwordx4 %s, %s, %s, %s offen sc1" % (v(S + 4 * r, 4), v(vU), s(SWS, 4), s(sT0)))
        if r < 7: asm("s_add_u32 %s, %s, 3072" % (s(sT0), s(sT0)))
    store_o(PB, R_OB)
    asm("s_waitcnt vmcnt(2)")
    for r in range(1, 8):
        for k in range(4):
            asm("v_add_f32 %s, %s, %s" % (v(S + k), v(S + k), v(S + 4 * r + k)))
    asm("v_cvt_pk_bf16_f32 %s, %s, %s" % (v(vT), v(S), v(S + 1)))
    asm("v_cvt_pk_bf16_f32 %s, %s, %s" % (v(vT + 1), v(S + 2), v(S + 3)))
    asm("s_lshr_b32 %s, %s, 1" % (s(sT0), s(sW)))
    asm("s_lshl_b32 %s, %s, 10" % (s(sT0), s(sT0)))
    asm("s_and_b32 %s, %s, 1" % (s(sT1), s(sW)))
    asm("s_lshl_b32 %s, %s, 3" % (s(sT1), s(sT1)))
    asm("s_add_u32 %s, %s, %s" % (s(sT0), s(sT0), s(sT1)))
    asm("s_add_u32 %s, %s, %d" % (s(sT0), s(sT0), L_KVT))
    asm("v_add_u32 %s, %s, %s" % (v(vU), s(sT0), v(vLin)))
    asm("ds_write_b64 %s, %s" % (v(vU), v(vT, 2)))
    asm("s_branch %s_join" % N)
    asm.label("%s_hiwaves" % N)
    asm("s_nop 7"); asm("s_nop 3")
    normalize(PB, False)
    store_o(PB, R_OB)
    asm.label("%s_join" % N)
    asm("s_waitcnt lgkmcnt(0)")
    asm("s_barrier")
    st(8)
    asm("v_add_u32 %s, 0x%x, %s" % (v(vU), L_KVT, v(vLin)))
    asm("ds_read_b128 %s, %s" % (v(F[0], 4), v(vU)))
    asm("ds_read_b128 %s, %s offset:1024" % (v(F[0] + 4, 4), v(vU)))
    sF3 = 69
    asm("s_lshl_b32 %s, %s, 5" % (s(sF3), s(sRB2)))
    asm("s_add_u32 %s, %s, %s" % (s(sF3), s(sF3), s(sHH)))
    asm("s_lshl_b32 %s, %s, 3" % (s(sF3), s(sF3)))
    asm("s_add_u32 %s, %s, %d" % (s(sF3), s(sF3), F3))
    asm("s_waitcnt vmcnt(2) lgkmcnt(0)")
    asm("v_mfma_f32_32x32x16_bf16 %s, %s, %s, 0" % (v(O, 16), v(F[0], 4), v(Q, 4)))
    asm("v_mfma_f32_32x32x16_bf16 %s, %s, %s, %s" % (v(O, 16), v(F[0] + 4, 4), v(Q + 4, 4), v(O, 16)))
    asm("s_nop 7"); asm("s_nop 3")
    normalize(PA, True)
    store_o(PA, R_OA)
    asm("s_add_u32 %s, %s, %d" % (s(sT1), s(sF3), 8 * 256))
    asm("s_waitcnt vmcnt(2)")
    release()
    lds_arrive(W_CNT3B, 8, vT + 6, vT + 4, s(sT1))
    asm("s_waitcnt vmcnt(0)")
    release()
    lds_arrive(W_CNT3A, 8, vT + 6, vT + 4, s(sF3))
    st(9)
    asm("s_cmp_ge_u32 %s, 4" % s(sW))
    asm("s_cbranch_scc1 %s_fin" % N)
    OF = 0; ACC3 = 160; WF = [200, 220]
    vOM, vOR, vWm, vWm2, vWr, vWr2 = 245, 246, 247, 248, 249, 250
    p3L, p3T, p3U, p3X = 251, 252, 253, 254
    vDW3 = 240
    sTB3, sOffO3, sOM = 44, 45, 46
    SOUT = SB_
    decode3()
    asm("s_load_dwordx2 s[4:5], s[0:1], 48")
    asm("s_lshl_b32 %s, %s, 2" % (s(sTB3), s(sRB3)))
    asm("s_add_u32 %s, %s, %s" % (s(sTB3), s(sTB3), s(sW)))
    lane(p3L)
    asm("v_lshlrev_b32 %s, 3, %s" % (v(p3X), v(p3L)))
    asm("s_lshl_b32 %s, %s, 3" % (s(sT0), s(sBR3)))
    asm("s_lshr_b32 %s, %s, 1" % (s(sT1), s(sRB3)))
    asm("s_add_u32 %s, %s, %s" % (s(sT0), s(sT0), s(sT1)))
    asm("s_lshl_b32 %s, %s, 8" % (s(sT0), s(sT0)))
    asm("s_add_u32 %s, %s, %d" % (s(sPL), s(sT0), F3))
    asm("v_lshrrev_b32 %s, 4, %s" % (v(p3T), v(p3L)))
    asm("v_and_b32 %s, 15, %s" % (v(p3U), v(p3L)))
    asm("v_lshrrev_b32 %s, 1, %s" % (v(vWm2), v(p3T)))
    asm("v_mul_u32_u24 %s, 1280, %s" % (v(vOM), v(vWm2)))
    asm("v_and_b32 %s, 1, %s" % (v(vWm2), v(p3T)))
    asm("v_lshl_add_u32 %s, %s, 9, %s" % (v(vOM), v(vWm2), v(vOM)))
    asm("v_lshl_add_u32 %s, %s, 4, %s" % (v(vOM), v(p3U), v(vOM)))
    asm("v_mul_u32_u24 %s, 1280, %s" % (v(vOR), v(p3T)))
    asm("v_lshl_add_u32 %s, %s, 3, %s" % (v(vOR), v(p3U), v(vOR)))
    asm("v_add_u32 %s, 1024, %s" % (v(vOR), v(vOR)))
    asm("v_bfe_u32 %s, %s, 2, 2" % (v(p3U), v(p3L)))
    asm("v_lshrrev_b32 %s, 1, %s" % (v(vWm2), v(p3T)))
    asm("v_mul_u32_u24 %s, 20, %s" % (v(vWm), v(vWm2)))
    asm("v_and_b32 %s, 1, %s" % (v(vWm2), v(p3T)))
    asm("v_lshl_add_u32 %s, %s, 2, %s" % (v(vWm), v(vWm2), v(vWm)))
    asm("v_add_u32 %s, %s, %s" % (v(vWm), v(vWm), v(p3U)))
    asm("v_mul_u32_u24 %s, 160, %s" % (v(vWm), v(vWm)))
    asm("v_mul_u32_u24 %s, 20, %s" % (v(vWr), v(p3T)))
    asm("v_add_u32 %s, %s, %s" % (v(vWr), v(vWr), v(p3U)))
    asm("v_add_u32 %s, 16, %s" % (v(vWr), v(vWr)))
    asm("v_mul_u32_u24 %s, 160, %s" % (v(vWr), v(vWr)))
    asm("v_and_b32 %s, 3, %s" % (v(vWm2), v(p3L)))
    asm("v_lshl_add_u32 %s, %s, 3, %s" % (v(vWm), v(vWm2), v(vWm)))
    asm("v_lshl_add_u32 %s, %s, 3, %s" % (v(vWr), v(vWm2), v(vWr)))
    asm("v_add_u32 %s, 51200, %s" % (v(vWm2), v(vWm)))
    asm("v_add_u32 %s, 51200, %s" % (v(vWr2), v(vWr)))
    asm("s_mul_i32 %s, %s, %d" % (s(sOffO3), s(sBR3), REG))
    asm("s_add_u32 %s, %s, %d" % (s(sOffO3), s(sOffO3), R_OA))
    asm("s_mul_i32 %s, %s, 40960" % (s(sT0), s(sTB3)))
    asm("s_add_u32 %s, %s, %s" % (s(sOffO3), s(sOffO3), s(sT0)))
    asm("s_waitcnt lgkmcnt(0)")
    srd(asm, SOUT, "s4", "s5", 2048 * 2560)
    asm("s_cmp_lg_u32 %s, 0" % s(sW))
    asm("s_cbranch_scc1 %s_p3w" % N)
    if opts.get("ppoll", 0): ppoll(s(sPL), 32, [vDW3, vDW3 + 2], p3X)
    else: poll(s(sPL), 32, vDW3, p3X)
    lds_set(W_S3, p3T, p3U)
    asm("s_branch %s_p3go" % N)
    asm.label("%s_p3w" % N)
    lds_wait(W_S3, vDW3, vDW3 + 1)
    asm.label("%s_p3go" % N)
    st(10)
    def oloads(sidx):
        if sidx < 16:
            asm("s_add_u32 %s, %s, %d" % (s(sOM), s(sOffO3), 2560 * sidx))
            for rt in range(2):
                asm("buffer_load_dwordx4 %s, %s, %s, %s offen offset:%d%s" % (v(OF + (sidx * 2 + rt) * 4, 4), v(vOM), s(SWS, 4), s(sOM), rt * 256, LSC3))
        else:
            a_ = sidx - 16
            for half in range(2):
                asm("s_add_u32 %s, %s, %d" % (s(sOM), s(sOffO3), a_ * 8 * 1280 + half * 5120))
                for rt in range(2):
                    asm("buffer_load_dwordx2 %s, %s, %s, %s offen offset:%d%s" % (v(OF + ((16 + a_) * 2 + rt) * 4 + 2 * half, 2), v(vOR), s(SWS, 4), s(sOM), rt * 128, LSC3))
    def cum(k): return 2 * (k + 1) if k < 16 else 32 + 4 * (k - 15)
    PD = opts.get("pd", 5)
    for k in range(PD): oloads(k)
    def wreads(step, dst):
        ops = []
        for ct in range(5):
            for a_ in range(2):
                if step < 16:
                    base = vWm if step < 8 else vWm2
                    off = (step & 7) * 6400 + a_ * 1280 + ct * 32
                else:
                    ap = step - 16
                    base = vWr if ap < 2 else vWr2
                    off = (ap & 1) * 25600 + a_ * 12800 + ct * 32
                ops.append(lambda ct=ct, a_=a_, base=base, off=off: asm("ds_read_b64_tr_b16 %s, %s offset:%d" % (v(dst + 4 * ct + 2 * a_, 2), v(base), off)))
        return ops
    if opts.get("p3st"): st(1)
    for f in wreads(0, WF[0]): f()
    for sidx in range(20):
        cur = WF[sidx & 1]
        nxt_ops = wreads(sidx + 1, WF[(sidx + 1) & 1]) if sidx < 19 else []
        vm = cum(min(sidx + PD - 1, 19)) - cum(sidx)
        asm("s_waitcnt vmcnt(%d) lgkmcnt(0)" % vm)
        if opts.get("p3st") and sidx in (0, 8, 16): st({0: 2, 8: 3, 16: 4}[sidx])
        m = 0
        for ct in range(5):
            for rt in range(2):
                acc = v(ACC3 + (rt * 5 + ct) * 4, 4)
                c = "0" if sidx == 0 else acc
                asm("v_mfma_f32_16x16x32_bf16 %s, %s, %s, %s" % (acc, v(cur + 4 * ct, 4), v(OF + (sidx * 2 + rt) * 4, 4), c))
                if m < 5 and nxt_ops:
                    nxt_ops[2 * m](); nxt_ops[2 * m + 1]()
                if m == 5 and sidx + PD < 20: oloads(sidx + PD)
                m += 1
    st(11)
    asm("v_and_b32 %s, 15, %s" % (v(p3U), v(p3L)))
    asm("v_mul_u32_u24 %s, 160, %s" % (v(p3U), v(p3U)))
    asm("v_lshrrev_b32 %s, 4, %s" % (v(p3T), v(p3L)))
    asm("v_lshl_add_u32 %s, %s, 3, %s" % (v(p3U), v(p3T), v(p3U)))
    asm("s_mul_i32 %s, %s, 5120" % (s(sT0), s(sW)))
    asm("s_add_u32 %s, %s, %d" % (s(sT0), s(sT0), L_OUT))
    asm("v_add_u32 %s, %s, %s" % (v(p3U), s(sT0), v(p3U)))
    asm("v_lshlrev_b32 %s, 4, %s" % (v(p3X), v(p3L)))
    asm("v_add_u32 %s, %s, %s" % (v(p3X), s(sT0), v(p3X)))
    asm("s_nop 3")
    for rt in range(2):
        for ct in range(5):
            b = ACC3 + (rt * 5 + ct) * 4
            t = OF + (rt * 5 + ct) * 2
            asm("v_cvt_pk_bf16_f32 %s, %s, %s" % (v(t), v(b), v(b + 1)))
            asm("v_cvt_pk_bf16_f32 %s, %s, %s" % (v(t + 1), v(b + 2), v(b + 3)))
            asm("ds_write_b64 %s, %s offset:%d" % (v(p3U), v(t, 2), rt * 2560 + ct * 32))
    asm("s_movk_i32 %s, 6554" % s(sT2))
    asm("s_movk_i32 %s, 2560" % s(sT3))
    for b in range(5):
        asm("v_add_u32 %s, %d, %s" % (v(p3T), 64 * b, v(p3L)))
        asm("v_mul_lo_u32 %s, %s, %s" % (v(vWm), v(p3T), s(sT2)))
        asm("v_lshrrev_b32 %s, 16, %s" % (v(vWm), v(vWm)))
        asm("v_mul_u32_u24 %s, 10, %s" % (v(vWr), v(vWm)))
        asm("v_sub_u32 %s, %s, %s" % (v(p3T), v(p3T), v(vWr)))
        asm("v_lshlrev_b32 %s, 4, %s" % (v(p3T), v(p3T)))
        asm("v_mad_u32_u24 %s, %s, %s, %s" % (v(vDW3 + b), v(vWm), s(sT3), v(p3T)))
    asm("s_mul_i32 %s, %s, %d" % (s(sT0), s(sTB3), 32 * 2560))
    asm("s_mul_i32 %s, %s, 1280" % (s(sT1), s(sBR3)))
    asm("s_add_u32 %s, %s, %s" % (s(sT0), s(sT0), s(sT1)))
    asm("s_mul_i32 %s, %s, 160" % (s(sT1), s(sCB3)))
    asm("s_add_u32 %s, %s, %s" % (s(sT0), s(sT0), s(sT1)))
    asm("s_waitcnt lgkmcnt(0)")
    for b in range(5):
        asm("ds_read_b128 %s, %s offset:%d" % (v(32 + 4 * b, 4), v(p3X), b * 1024))
    for b in range(5):
        asm("s_waitcnt lgkmcnt(%d)" % (4 - b))
        asm("buffer_store_dwordx4 %s, %s, %s, %s offen%s" % (v(32 + 4 * b, 4), v(vDW3 + b), s(SOUT, 4), s(sT0), {0: "", 1: " sc1", 2: " nt", 3: " sc0 sc1"}[opts.get("outsc", 0)]))
    asm.label("%s_fin" % N)
    if stamp:
        asm("s_waitcnt vmcnt(0)")
        st(12)
        asm("s_waitcnt lgkmcnt(0)")
        asm("s_load_dwordx2 s[4:5], s[0:1], 64")
        asm("s_waitcnt lgkmcnt(0)")
        asm("s_add_u32 s4, s4, %d" % (R_STAMP + (opts.get("wsoff", 0) << 20)))
        asm("s_addc_u32 s5, s5, 0")
        srd(asm, SA_, "s4", "s5", 1 << 20)
        asm("s_lshl_b32 %s, s2, 3" % s(sT0))
        asm("s_add_u32 %s, %s, %s" % (s(sT0), s(sT0), s(sW)))
        asm("s_lshl_b32 %s, %s, 7" % (s(sT0), s(sT0)))
        asm("v_mov_b32 v1, %s" % s(sT0))
        for i in range(13):
            asm("v_mov_b32 v2, %s" % s(STB + 2 * i))
            asm("v_mov_b32 v3, %s" % s(STB + 2 * i + 1))
            asm("buffer_store_dwordx2 v[2:3], v1, %s, 0 offen offset:%d" % (s(SA_, 4), 8 * i))
            asm("s_nop 1")
        asm("s_getreg_b32 s4, hwreg(HW_REG_HW_ID)")
        asm("v_mov_b32 v2, %s" % s(sXCC))
        asm("v_mov_b32 v3, s4")
        asm("buffer_store_dwordx2 v[2:3], v1, %s, 0 offen offset:%d" % (s(SA_, 4), 8 * 13))
    asm.label("%s_end" % N)
    asm("s_endpgm")
    return dict(name=N, vgpr=256, sgpr=100, grid=256, block=512, lds=LDS_BYTES)
HEADER = open("concat_heads__linear_attn_block__sliding_block__prompt.s.ref").read().split("; Override")[0]
def build(stamp=False, opts=None):
    body = A()
    i = gen(body, stamp=stamp, opts=opts)
    out = HEADER
    out += "; @launch grid=(%d,1,1) block=(%d,1,1) lds=%d\n" % (i["grid"], i["block"], i["lds"])
    out += '.amdgcn_target "amdgcn-amd-amdhsa--gfx950"\n.text\n'
    out += body.text()
    d = A()
    d('.section .rodata,"a"')
    kernel_desc(d, i["name"], i["vgpr"], i["sgpr"])
    out += d.text()
    return out
if __name__ == "__main__":
    import sys
    opts = {}
    for a_ in sys.argv[3:]:
        k, val = a_.split("="); opts[k] = int(val)
    open(sys.argv[1], "w").write(build(stamp=(len(sys.argv) > 2 and sys.argv[2] == "stamp"), opts=opts))
```

```python
from asmlib import *
import math
REG = 2621440
R_QA, R_KA, R_VA, R_QB, R_KB, R_VB, R_OA, R_OB, R_KVP, R_FLG = [i * REG for i in range(10)]
F1 = R_FLG
F2 = R_FLG + 65536
F3 = R_FLG + 65536 + 8192
WS_REC = R_FLG + 131072
R_STAMP = 10 * REG
LOG2E = 1.4426950408889634
QSCALE = LOG2E / math.sqrt(20.0)
BIG = -1.0e30
OOB = 0x40000000
L_WO, L_K, L_V, L_KVT = 0, 102400, 135168, 155648
L_OUT = L_K
L_SYNC = 157696
W_CNT1, W_S1, W_S1A, W_S2, W_CNT3B, W_CNT3A, W_S3, W_ISS, W_K, W_V = [L_SYNC + 4 * i for i in range(10)]
LDS_BYTES = 157696 + 64
SPIN_MAX = 0x40000
NAME = "concat_heads__linear_attn_block__sliding_block__prompt_kernel"
class G:
    pass
def gen(asm, stamp=False, name=NAME, opts=None):
    opts = opts or {}
    N = name
    D1 = opts.get("d1", 0)
    SC = " sc1" if D1 else ""
    SC = {0: SC, 1: " sc0 sc1", 2: " sc1 nt", 3: " sc0 sc1 nt"}[opts.get("scmode", 0)]
    REPL = opts.get("repl", 8)
    LSC3 = "" if opts.get("plain3") else " sc1"
    sW = 3
    SWS, SDBG = 8, 12
    sNON = 16
    sT0, sT1, sT2, sT3 = 18, 19, 20, 21
    sCNT, sPL = 22, 23
    SA_, SB_ = 24, 28
    sMASK = 32
    sPC = 34
    STB = 72
    sP8, sSLOT, sLOCAL, sXCC = 70, 71, 98, 99
    def st(k):
        if stamp:
            asm("s_memrealtime %s" % s(STB + 2 * k, 2))
    def lane(dst):
        asm("v_mbcnt_lo_u32_b32 %s, -1, 0" % v(dst))
        asm("v_mbcnt_hi_u32_b32 %s, -1, %s" % (v(dst), v(dst)))
    uid = [0]
    def lab(p):
        uid[0] += 1
        return "%s_%s%d" % (N, p, uid[0])
    def sync_issue(vd, vo):
        lane(vo)
        asm("s_lshl_b32 %s, %s, 3" % (s(sT0), s(sP8)))
        asm("s_add_u32 %s, %s, 64" % (s(sT0), s(sT0)))
        asm("v_cmp_eq_u32 vcc, 1, %s" % v(vo))
        asm("v_mov_b32 %s, %s" % (v(vd), s(sT0)))
        asm("v_mov_b32 %s, 0" % v(vo))
        asm("v_cndmask_b32 %s, %s, %s, vcc" % (v(vo), v(vo), v(vd)))
        asm("buffer_load_dwordx2 %s, %s, %s, 0 offen sc1" % (v(vd, 2), v(vo), s(SDBG, 4)))
    def get_sync(vd, vo, preissued=False):
        L, D = lab("non"), lab("nond")
        if not preissued: sync_issue(vd, vo)
        asm("s_mov_b32 %s, 0" % s(sCNT))
        asm.label(L)
        asm("s_waitcnt vmcnt(0)")
        asm("v_readlane_b32 %s, %s, 0" % (s(sNON), v(vd)))
        asm("v_readlane_b32 %s, %s, 0" % (s(sNON + 1), v(vd + 1)))
        asm("v_readlane_b32 %s, %s, 1" % (s(sPC), v(vd)))
        asm("v_readlane_b32 %s, %s, 1" % (s(sPC + 1), v(vd + 1)))
        asm("s_add_u32 %s, %s, 1" % (s(sCNT), s(sCNT)))
        asm("s_nop 2")
        asm("s_cmp_lg_u32 %s, 0" % s(sNON))
        asm("s_cbranch_scc1 %s" % D)
        asm("s_cmp_ge_u32 %s, 0x%x" % (s(sCNT), SPIN_MAX))
        asm("s_cbranch_scc1 %s" % D)
        asm("s_sleep 4")
        asm("buffer_load_dwordx2 %s, %s, %s, 0 offen sc1" % (v(vd, 2), v(vo), s(SDBG, 4)))
        asm("s_branch %s" % L)
        asm.label(D)
        asm("s_lshl_b32 %s, %s, 3" % (s(sT0), s(sXCC)))
        asm("s_lshl_b64 %s, 32, %s" % (s(sMASK, 2), s(sT0)))
        asm("s_cmp_eq_u64 %s, %s" % (s(sMASK, 2), s(sPC, 2)))
        asm("s_cselect_b32 %s, 1, 0" % s(sLOCAL))
        if opts.get("nolocal"): asm("s_mov_b32 %s, 0" % s(sLOCAL))
    def release():
        if D1: return
        D = lab("rel")
        asm("s_cmp_lg_u32 %s, 0" % s(sLOCAL))
        asm("s_cbranch_scc1 %s" % D)
        asm("buffer_wbl2 sc1")
        asm("s_waitcnt vmcnt(0)")
        asm.label(D)
    def lds_set(word, va, vd):
        asm("v_mov_b32 %s, 0x%x" % (v(va), word))
        asm("v_mov_b32 %s, 1" % v(vd))
        asm("ds_write_b32 %s, %s" % (v(va), v(vd)))
    def lds_wait(word, va, vd, atleast=1):
        L, D = lab("lw"), lab("lwd")
        asm("v_mov_b32 %s, 0x%x" % (v(va), word))
        asm("s_mov_b32 %s, 0" % s(sCNT))
        asm.label(L)
        asm("ds_read_b32 %s, %s" % (v(vd), v(va)))
        asm("s_waitcnt lgkmcnt(0)")
        asm("v_readfirstlane_b32 %s, %s" % (s(sT0), v(vd)))
        asm("s_add_u32 %s, %s, 1" % (s(sCNT), s(sCNT)))
        asm("s_nop 2")
        asm("s_cmp_ge_u32 %s, %d" % (s(sT0), atleast))
        asm("s_cbranch_scc1 %s" % D)
        asm("s_cmp_ge_u32 %s, 0x%x" % (s(sCNT), SPIN_MAX * 8))
        asm("s_cbranch_scc1 %s" % D)
        if opts.get("lsleep", 1): asm("s_sleep %d" % opts.get("lsleep", 1))
        asm("s_branch %s" % L)
        asm.label(D)
    def lds_arrive(word, n, va, vd, soff, replicas=1):
        D = lab("arr")
        asm("v_mov_b32 %s, 0x%x" % (v(va), word))
        asm("v_mov_b32 %s, 1" % v(vd))
        asm("s_mov_b64 exec, 1")
        asm("ds_add_rtn_u32 %s, %s, %s" % (v(vd), v(va), v(vd)))
        asm("s_waitcnt lgkmcnt(0)")
        asm("s_mov_b64 exec, -1")
        asm("v_readfirstlane_b32 %s, %s" % (s(sCNT), v(vd)))
        asm("s_nop 3")
        asm("s_cmp_lg_u32 %s, %d" % (s(sCNT), n - 1))
        asm("s_cbranch_scc1 %s" % D)
        flag_store(soff, vd, va, replicas)
        asm.label(D)
    def poll_issue(soff, vd, vo, n):
        asm("s_mov_b32 exec_lo, 0x%x" % ((1 << n) - 1))
        asm("s_mov_b32 exec_hi, 0")
        asm("buffer_load_dwordx2 %s, %s, %s, %s offen sc1" % (v(vd, 2), v(vo), s(SWS, 4), soff))
        asm("s_mov_b64 exec, -1")
    def poll(soff, n, vd, vo, preissued=False, lo=0, smask=None):
        L, D = lab("poll"), lab("polld")
        m = ((1 << n) - 1) & ~((1 << lo) - 1)
        asm("s_mov_b32 %s, %s" % (s(sMASK), smask if smask else "0x%x" % (m & 0xffffffff)))
        asm("s_mov_b32 %s, 0x%x" % (s(sMASK + 1), m >> 32))
        if not preissued: poll_issue(soff, vd, vo, n)
        asm("s_mov_b32 %s, 0" % s(sCNT))
        asm.label(L)
        asm("s_waitcnt vmcnt(0)")
        asm("v_cmp_eq_u32 vcc, %s, %s" % (s(sNON), v(vd)))
        asm("v_cmp_eq_u32 %s, %s, %s" % (s(sPC, 2), s(sNON + 1), v(vd + 1)))
        asm("s_add_u32 %s, %s, 1" % (s(sCNT), s(sCNT)))
        asm("s_nop 3")
        asm("s_and_b64 %s, %s, vcc" % (s(sPC, 2), s(sPC, 2)))
        asm("s_and_b64 %s, %s, %s" % (s(sPC, 2), s(sPC, 2), s(sMASK, 2)))
        asm("s_cmp_eq_u64 %s, %s" % (s(sPC, 2), s(sMASK, 2)))
        asm("s_cbranch_scc1 %s" % D)
        asm("s_cmp_ge_u32 %s, 0x%x" % (s(sCNT), SPIN_MAX))
        asm("s_cbranch_scc1 %s" % D)
        asm("s_sleep %d" % opts.get("sleep", 3))
        poll_issue(soff, vd, vo, n)
        asm("s_branch %s" % L)
        asm.label(D)
    def ppoll(soff, n, regs, vo, smask=None):
        k = len(regs)
        L, D = lab("pp"), lab("ppd")
        m = (1 << n) - 1
        asm("s_mov_b32 %s, %s" % (s(sMASK), smask if smask else "0x%x" % (m & 0xffffffff)))
        asm("s_mov_b32 %s, 0x%x" % (s(sMASK + 1), m >> 32))
        for i, r in enumerate(regs):
            poll_issue(soff, r, vo, n)
            if i + 1 < k: asm("s_sleep %d" % opts.get("pstag", 6))
        asm("s_mov_b32 %s, 0" % s(sCNT))
        asm.label(L)
        for i, r in enumerate(regs):
            asm("s_waitcnt vmcnt(%d)" % (k - 1))
            asm("v_cmp_eq_u32 vcc, %s, %s" % (s(sNON), v(r)))
            asm("v_cmp_eq_u32 %s, %s, %s" % (s(sPC, 2), s(sNON + 1), v(r + 1)))
            asm("s_add_u32 %s, %s, 1" % (s(sCNT), s(sCNT)))
            asm("s_nop 3")
            asm("s_and_b64 %s, %s, vcc" % (s(sPC, 2), s(sPC, 2)))
            asm("s_and_b64 %s, %s, %s" % (s(sPC, 2), s(sPC, 2), s(sMASK, 2)))
            asm("s_cmp_eq_u64 %s, %s" % (s(sPC, 2), s(sMASK, 2)))
            asm("s_cbranch_scc1 %s" % D)
            poll_issue(soff, r, vo, n)
        asm("s_cmp_lt_u32 %s, 0x%x" % (s(sCNT), SPIN_MAX * 3))
        asm("s_cbranch_scc1 %s" % L)
        asm.label(D)
    def flag_store(soff, vd, vo, replicas=1):
        if replicas > 1:
            lane(vo)
            asm("v_lshlrev_b32 %s, 11, %s" % (v(vo), v(vo)))
        else:
            asm("v_mov_b32 %s, 0" % v(vo))
        asm("v_mov_b32 %s, %s" % (v(vd), s(sNON)))
        asm("v_mov_b32 %s, %s" % (v(vd + 1), s(sNON + 1)))
        asm("s_mov_b64 exec, %d" % ((1 << replicas) - 1 if replicas <= 6 else -1) if replicas <= 6 else "s_mov_b32 exec_lo, 0x%x\n    s_mov_b32 exec_hi, 0" % ((1 << replicas) - 1))
        asm("buffer_store_dwordx2 %s, %s, %s, %s offen sc1" % (v(vd, 2), v(vo), s(SWS, 4), soff))
        asm("s_mov_b64 exec, -1")
    kernel_header(asm, N)
    asm("s_cmp_ge_u32 s2, 256")
    asm("s_cbranch_scc1 %s_end" % N)
    if stamp:
        for i in range(26): asm("s_mov_b32 %s, 0" % s(STB + i))
    st(0)
    asm("s_load_dwordx4 s[4:7], s[0:1], 56")
    asm("s_load_dwordx4 s[36:39], s[0:1], 0")
    asm("s_load_dwordx4 s[40:43], s[0:1], 24")
    asm("v_lshrrev_b32 v1, 6, v0")
    asm("s_nop 0")
    asm("v_readfirstlane_b32 %s, v1" % s(sW))
    sBR, sRB, sCB, sPART, sCBP, sW4, sWM, sWN = 44, 45, 46, 47, 48, 49, 50, 51
    asm("s_and_b32 %s, s2, 7" % s(sP8))
    asm("s_lshr_b32 %s, s2, 3" % s(sSLOT))
    asm("s_getreg_b32 %s, hwreg(HW_REG_XCC_ID, 0, 4)" % s(sXCC))
    asm("s_and_b32 %s, %s, 7" % (s(sXCC), s(sXCC)))
    if not D1:
        asm("s_cmp_ge_u32 %s, 15" % s(sSLOT))
        asm("s_cselect_b32 %s, 1, 0" % s(sBR))
        asm("s_cselect_b32 %s, 15, 0" % s(sT0))
        asm("s_sub_u32 %s, %s, %s" % (s(sCB), s(sSLOT), s(sT0)))
        asm("s_mov_b32 %s, %s" % (s(sRB), s(sP8)))
    else:
        asm("s_lshr_b32 %s, %s, 2" % (s(sBR), s(sP8)))
        asm("s_and_b32 %s, %s, 3" % (s(sT0), s(sP8)))
        asm("s_mul_i32 %s, %s, 30" % (s(sT0), s(sT0)))
        asm("s_add_u32 %s, %s, %s" % (s(sT0), s(sT0), s(sSLOT)))
        asm("s_cmp_ge_u32 %s, 60" % s(sT0))
        asm("s_cselect_b32 %s, 4, 0" % s(sT1))
        asm("s_cselect_b32 %s, 60, 0" % s(sT2))
        asm("s_sub_u32 %s, %s, %s" % (s(sT0), s(sT0), s(sT2)))
        asm("s_lshr_b32 %s, %s, 2" % (s(sCB), s(sT0)))
        asm("s_and_b32 %s, %s, 3" % (s(sT0), s(sT0)))
        asm("s_add_u32 %s, %s, %s" % (s(sRB), s(sT1), s(sT0)))
    asm("s_cmp_ge_u32 %s, 5" % s(sCB))
    asm("s_cselect_b32 %s, 1, 0" % s(sPART))
    asm("s_cmp_ge_u32 %s, 10" % s(sCB))
    asm("s_cselect_b32 %s, 2, %s" % (s(sPART), s(sPART)))
    asm("s_mul_i32 %s, %s, 5" % (s(sT0), s(sPART)))
    asm("s_sub_u32 %s, %s, %s" % (s(sCBP), s(sCB), s(sT0)))
    asm("s_and_b32 %s, %s, 3" % (s(sW4), s(sW)))
    asm("s_lshr_b32 %s, %s, 1" % (s(sWM), s(sW4)))
    asm("s_and_b32 %s, %s, 1" % (s(sWN), s(sW4)))
    asm("s_waitcnt lgkmcnt(0)")
    if opts.get("wsoff"):
        asm("s_add_u32 s6, s6, 0x%x" % (opts["wsoff"] << 20))
        asm("s_addc_u32 s7, s7, 0")
    srd(asm, SWS, "s6", "s7", WS_REC)
    srd(asm, SDBG, "s4", "s5", 256)
    asm("s_cmp_ge_u32 %s, 4" % s(sW))
    asm("s_cbranch_scc1 %s_p1h" % N)
    ACC = 0; FX = [128, 144]; FW = [160, 168]
    vXA, vWA = 176, 180
    vL, vT, vU, vV = 194, 195, 196, 197
    vSO = 198; TMP = 200; TE = 216; vN = 220
    sSTG, sDELTA, sRBUF, sNEG = 52, 53, 54, 55
    sTN, sGG, sSO = 56, 57, 58
    sC0, sC1 = 60, 62
    asm("s_or_b32 %s, s2, %s" % (s(sT0), s(sW)))
    asm("s_cmp_lg_u32 %s, 0" % s(sT0))
    asm("s_cbranch_scc1 %s_nonon" % N)
    asm("s_memrealtime %s" % s(sNON, 2))
    asm("s_waitcnt lgkmcnt(0)")
    asm("s_or_b32 %s, %s, 1" % (s(sNON), s(sNON)))
    asm("v_mov_b32 v2, %s" % s(sNON))
    asm("v_mov_b32 v3, %s" % s(sNON + 1))
    asm("v_mov_b32 v4, 0")
    asm("s_mov_b64 exec, 1")
    asm("buffer_store_dwordx2 v[2:3], v4, %s, 0 offen sc1" % s(SDBG, 4))
    asm("s_mov_b64 exec, -1")
    asm.label("%s_nonon" % N)
    asm("s_cmp_lg_u32 %s, 0" % s(sW))
    asm("s_cbranch_scc1 %s_noinit" % N)
    asm("s_lshl_b32 %s, %s, 3" % (s(sT0), s(sXCC)))
    asm("s_lshl_b64 s[4:5], 1, %s" % s(sT0))
    asm("s_lshl_b32 %s, %s, 3" % (s(sT0), s(sP8)))
    asm("s_add_u32 %s, %s, 64" % (s(sT0), s(sT0)))
    asm("v_mov_b32 v2, s4")
    asm("v_mov_b32 v3, s5")
    asm("v_mov_b32 v4, %s" % s(sT0))
    if not D1:
        asm("s_mov_b64 exec, 1")
        asm("buffer_atomic_add_x2 v[2:3], v4, %s, 0 offen" % s(SDBG, 4))
        asm("s_mov_b64 exec, -1")
    lane(5)
    asm("v_lshlrev_b32 v5, 2, v5")
    asm("v_add_u32 v5, 0x%x, v5" % L_SYNC)
    asm("v_mov_b32 v6, 0")
    asm("s_mov_b32 exec_lo, 0xffff")
    asm("s_mov_b32 exec_hi, 0")
    asm("ds_write_b32 v5, v6")
    asm("s_mov_b64 exec, -1")
    asm("s_waitcnt lgkmcnt(0)")
    asm.label("%s_noinit" % N)
    asm("s_cmp_ge_u32 %s, 30" % s(sSLOT))
    asm("s_cbranch_scc1 %s_p2c" % N)
    lane(vL)
    asm.c("X frag read addr")
    asm("v_and_b32 %s, 31, %s" % (v(vT), v(vL)))
    asm("s_lshl_b32 %s, %s, 7" % (s(sT0), s(sWM)))
    asm("v_add_u32 %s, %s, %s" % (v(vU), s(sT0), v(vT)))
    asm("v_lshlrev_b32 %s, 7, %s" % (v(vU), v(vU)))
    asm("v_bfe_u32 %s, %s, 1, 3" % (v(vT), v(vT)))
    asm("v_lshrrev_b32 %s, 5, %s" % (v(vV), v(vL)))
    for ks in range(4):
        asm("v_add_u32 %s, %d, %s" % (v(TMP), 2 * ks, v(vV)))
        asm("v_xor_b32 %s, %s, %s" % (v(TMP), v(TMP), v(vT)))
        asm("v_lshl_add_u32 %s, %s, 4, %s" % (v(vXA + ks), v(TMP), v(vU)))
    asm.c("W frag read addr")
    asm("v_bfe_u32 %s, %s, 2, 2" % (v(vT), v(vL)))
    asm("v_lshrrev_b32 %s, 5, %s" % (v(vU), v(vL)))
    asm("v_lshl_add_u32 %s, %s, 3, %s" % (v(vU), v(vU), v(vT)))
    asm("v_lshlrev_b32 %s, 8, %s" % (v(vU), v(vU)))
    asm("v_add_u32 %s, 32768, %s" % (v(vU), v(vU)))
    asm("v_and_b32 %s, 1, %s" % (v(vV), v(vL)))
    asm("v_lshl_add_u32 %s, %s, 3, %s" % (v(vU), v(vV), v(vU)))
    asm("v_bfe_u32 %s, %s, 4, 1" % (v(vV), v(vL)))
    asm("v_lshlrev_b32 %s, 1, %s" % (v(vV), v(vV)))
    asm("v_bfe_u32 %s, %s, 1, 1" % (v(TMP), v(vL)))
    asm("v_add_u32 %s, %s, %s" % (v(vV), v(vV), v(TMP)))
    asm("s_lshl_b32 %s, %s, 3" % (s(sT0), s(sWN)))
    asm("v_add_u32 %s, %s, %s" % (v(vV), s(sT0), v(vV)))
    asm("v_lshlrev_b32 %s, 2, %s" % (v(vT), v(vT)))
    for tn in range(2):
        asm("v_add_u32 %s, %d, %s" % (v(TMP), 4 * tn, v(vV)))
        asm("v_xor_b32 %s, %s, %s" % (v(TMP), v(TMP), v(vT)))
        asm("v_lshl_add_u32 %s, %s, 4, %s" % (v(vWA + tn), v(TMP), v(vU)))
    for i in range(128):
        asm("v_mov_b32 %s, 0" % v(ACC + i))
    asm("s_mul_i32 %s, %s, 3" % (s(sT0), s(sBR)))
    asm("s_add_u32 %s, %s, %s" % (s(sT0), s(sT0), s(sPART)))
    asm("s_mul_i32 %s, %s, %d" % (s(sT0), s(sT0), REG))
    asm("s_add_u32 s6, s6, %s" % s(sT0))
    asm("s_addc_u32 s7, s7, 0")
    SO = SA_
    srd(asm, SO, "s6", "s7", REG)
    def rdX(st_, tm, ks):
        asm("ds_read_b128 %s, %s offset:%d" % (v(FX[st_] + 4 * tm, 4), v(vXA + ks), tm * 4096))
    def rdW(st_, tn, a_, ks):
        asm("ds_read_b64_tr_b16 %s, %s offset:%d" % (v(FW[st_] + 4 * tn + 2 * a_, 2), v(vWA + tn), ks * 4096 + a_ * 1024))
    def reads(st_, ks):
        return [lambda: rdW(st_, 0, 0, ks), lambda: rdW(st_, 0, 1, ks), lambda: rdX(st_, 0, ks), lambda: rdX(st_, 1, ks),
                lambda: rdW(st_, 1, 0, ks), lambda: rdW(st_, 1, 1, ks), lambda: rdX(st_, 2, ks), lambda: rdX(st_, 3, ks)]
    MORD = [(0, 0), (1, 0), (0, 1), (1, 1), (2, 0), (2, 1), (3, 0), (3, 1)]
    def mfma(orient, st_, tm, tn):
        acc = v(ACC + (tm * 2 + tn) * 16, 16)
        x = v(FX[st_] + 4 * tm, 4); w = v(FW[st_] + 4 * tn, 4)
        if orient == "T": asm("v_mfma_f32_32x32x16_bf16 %s, %s, %s, %s" % (acc, w, x, acc))
        else: asm("v_mfma_f32_32x32x16_bf16 %s, %s, %s, %s" % (acc, x, w, acc))
    PF = opts.get("pf", 0)
    if PF:
        nst_ = 10 - PF
        per = (1024 * nst_ + 119) // 120
        assert per <= 64
        asm("s_lshl_b32 %s, %s, 2" % (s(sT0), s(sSLOT)))
        asm("s_add_u32 %s, %s, %s" % (s(sT0), s(sT0), s(sW4)))
        asm("s_mul_i32 %s, %s, %d" % (s(sT0), s(sT0), per))
        asm("v_add_u32 %s, %s, %s" % (v(vT), s(sT0), v(vL)))
        asm("v_lshrrev_b32 %s, 10, %s" % (v(vU), v(vT)))
        asm("v_and_b32 %s, 1023, %s" % (v(vV), v(vT)))
        asm("s_lshr_b32 %s, %s, 1" % (s(sT1), s(sP8)))
        asm("s_and_b32 %s, %s, 1" % (s(sT1), s(sT1)))
        asm("s_lshl_b32 %s, %s, 10" % (s(sT1), s(sT1)))
        asm("v_add_u32 %s, %s, %s" % (v(vV), s(sT1), v(vV)))
        asm("v_mul_u32_u24 %s, 1280, %s" % (v(vV), v(vV)))
        asm("v_lshl_add_u32 %s, %s, 7, %s" % (v(vV), v(vU), v(vV)))
        asm("v_add_u32 %s, %d, %s" % (v(vV), PF * 128, v(vV)))
        asm("v_lshrrev_b32 %s, 4, %s" % (v(vU), v(vT)))
        asm("v_add_u32 %s, %d, %s" % (v(vU), 64 * PF, v(vU)))
        asm("v_mul_u32_u24 %s, 3840, %s" % (v(vU), v(vU)))
        asm("v_and_b32 %s, 15, %s" % (v(TMP), v(vT)))
        asm("v_lshl_add_u32 %s, %s, 7, %s" % (v(vU), v(TMP), v(vU)))
        asm("s_and_b32 %s, %s, 1" % (s(sT1), s(sP8)))
        asm("s_mul_i32 %s, %s, %d" % (s(sT1), s(sT1), 7 * 256))
        asm("v_add_u32 %s, %s, %s" % (v(vU), s(sT1), v(vU)))
        asm("v_mov_b32 %s, 0x%x" % (v(TMP), OOB))
        asm("v_cmp_gt_u32 vcc, %d, %s" % (1024 * nst_, v(vT)))
        asm("v_cmp_gt_u32 %s, %d, %s" % (s(sPC, 2), per, v(vL)))
        asm("s_nop 1")
        asm("s_and_b64 vcc, vcc, %s" % s(sPC, 2))
        asm("s_nop 1")
        asm("v_cndmask_b32 %s, %s, %s, vcc" % (v(vV), v(TMP), v(vV)))
        asm("v_cndmask_b32 %s, %s, %s, vcc" % (v(vU), v(TMP), v(vU)))
        asm("s_cmp_eq_u32 %s, 0" % s(sBR))
        asm("s_cselect_b32 s4, s36, s40")
        asm("s_cselect_b32 s5, s37, s41")
        srd(asm, SB_, "s4", "s5", 2048 * 1280)
        asm("buffer_load_dword v223, %s, %s, 0 offen" % (v(vV), s(SB_, 4)))
        asm("s_cmp_eq_u32 %s, 0" % s(sBR))
        asm("s_cselect_b32 s4, s38, s42")
        asm("s_cselect_b32 s5, s39, s43")
        srd(asm, SB_, "s4", "s5", 640 * 3840)
        asm("buffer_load_dword v223, %s, %s, 0 offen" % (v(vU), s(SB_, 4)))
    asm("s_lshl_b32 %s, %s, 3" % (s(sT0), s(sRB)))
    asm("s_lshl_b32 %s, %s, 2" % (s(sT1), s(sWM)))
    asm("s_add_u32 %s, %s, %s" % (s(sT3), s(sT0), s(sT1)))
    sVAR = 59
    asm("s_mov_b32 %s, %s" % (s(sVAR), s(sPART)))
    asm("s_cmp_eq_u32 %s, 0" % s(sBR))
    asm("s_cbranch_scc1 %s_varok" % N)
    asm("s_cmp_eq_u32 %s, 2" % s(sPART))
    asm("s_cselect_b32 %s, 2, 3" % s(sVAR))
    asm.label("%s_varok" % N)
    asm("s_cmp_eq_u32 %s, 0" % s(sVAR))
    asm("s_cbranch_scc1 %s_adrT" % N)
    asm("s_cmp_eq_u32 %s, 3" % s(sVAR))
    asm("s_cbranch_scc1 %s_adrT" % N)
    asm("s_mul_i32 %s, %s, 40960" % (s(sT0), s(sT3)))
    asm("s_lshl_b32 %s, %s, 11" % (s(sT1), s(sCBP)))
    asm("s_add_u32 %s, %s, %s" % (s(sT0), s(sT0), s(sT1)))
    asm("s_lshl_b32 %s, %s, 10" % (s(sT1), s(sWN)))
    asm("s_add_u32 %s, %s, %s" % (s(sT0), s(sT0), s(sT1)))
    asm("v_lshrrev_b32 %s, 5, %s" % (v(vT), v(vL)))
    asm("v_mul_u32_u24 %s, 10240, %s" % (v(vT), v(vT)))
    asm("v_and_b32 %s, 31, %s" % (v(vU), v(vL)))
    asm("v_lshl_add_u32 %s, %s, 4, %s" % (v(vSO), v(vU), v(vT)))
    asm("v_add_u32 %s, %s, %s" % (v(vSO), s(sT0), v(vSO)))
    asm("s_movk_i32 %s, 512" % s(sTN))
    asm("s_movk_i32 %s, 20480" % s(sGG))
    asm("s_branch %s_adrok" % N)
    asm.label("%s_adrT" % N)
    asm("s_mul_i32 %s, %s, 40" % (s(sT0), s(sT3)))
    asm("s_lshl_b32 %s, %s, 3" % (s(sT1), s(sCBP)))
    asm("s_add_u32 %s, %s, %s" % (s(sT0), s(sT0), s(sT1)))
    asm("s_lshl_b32 %s, %s, 2" % (s(sT1), s(sWN)))
    asm("s_add_u32 %s, %s, %s" % (s(sT0), s(sT0), s(sT1)))
    asm("s_lshl_b32 %s, %s, 10" % (s(sT0), s(sT0)))
    asm("v_lshlrev_b32 %s, 4, %s" % (v(vSO), v(vL)))
    asm("v_add_u32 %s, %s, %s" % (v(vSO), s(sT0), v(vSO)))
    asm("s_movk_i32 %s, 2048" % s(sTN))
    asm("s_movk_i32 %s, 1024" % s(sGG))
    asm.label("%s_adrok" % N)
    asm("s_cmp_lt_u32 %s, 2" % s(sVAR))
    asm("s_cselect_b32 %s, %s, 1.0" % (s(sC0), fhex(LOG2E)))
    asm("s_cmp_eq_u32 %s, 3" % s(sVAR))
    asm("s_cbranch_scc0 %s_c0ok" % N)
    asm("s_cmp_eq_u32 %s, 0" % s(sPART))
    asm("s_cselect_b32 %s, %s, 1.0" % (s(sC0), fhex(QSCALE)))
    asm.label("%s_c0ok" % N)
    asm("s_mov_b32 %s, %s" % (s(sC0 + 1), s(sC0)))
    asm("s_mov_b32 %s, %s" % (s(sC1), fhex(1e-6)))
    asm("s_mov_b32 %s, 0" % s(sSTG))
    asm("s_mov_b32 %s, 0" % s(sRBUF))
    asm("s_mov_b32 %s, 0x%x" % (s(sNEG), (-2 * 49152) & 0xffffffff))
    asm("s_barrier")
    st(1)
    for f in reads(0, 0): f()
    asm("s_cmp_eq_u32 %s, 0" % s(sVAR))
    asm("s_cbranch_scc1 %s_loopT" % N)
    asm("s_cmp_eq_u32 %s, 3" % s(sVAR))
    asm("s_cbranch_scc0 %s_loopF" % N)
    def loop(orient):
        L = "%s_loop%s" % (N, orient)
        asm(".p2align 4")
        asm.label(L)
        for ks in range(4):
            st_ = ks & 1; nst_ = st_ ^ 1
            if ks == 3:
                asm("s_cbranch_scc1 %s_final%s" % (N, orient))
            asm("s_waitcnt lgkmcnt(0)")
            if ks < 3:
                rs = reads(nst_, ks + 1)
                for m in range(8):
                    mfma(orient, st_, *MORD[m])
                    if m < 4:
                        rs[2 * m](); rs[2 * m + 1]()
                    if ks == 2 and m == 4:
                        asm("s_add_u32 %s, %s, 1" % (s(sRBUF), s(sRBUF)))
                        asm("s_cmp_eq_u32 %s, 3" % s(sRBUF))
                        asm("s_cselect_b32 %s, 0, %s" % (s(sRBUF), s(sRBUF)))
                        asm("s_cselect_b32 %s, %s, 49152" % (s(sDELTA), s(sNEG)))
                    if ks == 2 and m == 5:
                        for k in range(3): asm("v_add_u32 %s, %s, %s" % (v(vXA + k), s(sDELTA), v(vXA + k)))
                    if ks == 2 and m == 6:
                        asm("v_add_u32 %s, %s, %s" % (v(vXA + 3), s(sDELTA), v(vXA + 3)))
                        for k in range(2): asm("v_add_u32 %s, %s, %s" % (v(vWA + k), s(sDELTA), v(vWA + k)))
                        asm("s_add_u32 %s, %s, 1" % (s(sSTG), s(sSTG)))
                        asm("s_cmp_eq_u32 %s, 9" % s(sSTG))
            else:
                mfma(orient, st_, *MORD[0])
                mfma(orient, st_, *MORD[1])
                asm("s_barrier")
                rs = reads(nst_, 0)
                mfma(orient, st_, *MORD[2])
                rs[0](); rs[1](); rs[2]()
                mfma(orient, st_, *MORD[3])
                rs[3](); rs[4](); rs[5]()
                mfma(orient, st_, *MORD[4])
                rs[6](); rs[7]()
                mfma(orient, st_, *MORD[5])
                mfma(orient, st_, *MORD[6])
                mfma(orient, st_, *MORD[7])
        asm("s_branch %s" % L)
    loop("T")
    loop("F")
    WALL = 224
    XS = [FX[0], FX[1]]
    def epi_lines(kind, q):
        tm, tn = q >> 1, q & 1
        b = ACC + q * 16
        tb_ = TMP + 8 * (q & 1)
        L_ = []
        if kind == "phi":
            for qq in range(4):
                r0 = b + 4 * qq
                L_.append("v_pk_mul_f32 %s, %s, %s" % (v(TE, 2), v(r0, 2), s(sC0, 2)))
                L_.append("v_pk_mul_f32 %s, %s, %s" % (v(TE + 2, 2), v(r0 + 2, 2), s(sC0, 2)))
                for k in range(4): L_.append("v_exp_f32_e64 %s, %s clamp" % (v(TE + k), v(TE + k)))
                for k in range(4): L_.append("v_max_f32 %s, %s, %s" % (v(r0 + k), s(sC1), v(r0 + k)))
                L_.append("v_pk_add_f32 %s, %s, %s" % (v(r0, 2), v(r0, 2), v(TE, 2)))
                L_.append("v_pk_add_f32 %s, %s, %s" % (v(r0 + 2, 2), v(r0 + 2, 2), v(TE + 2, 2)))
                L_.append("v_cvt_pk_bf16_f32 %s, %s, %s" % (v(tb_ + 2 * qq), v(r0), v(r0 + 1)))
                L_.append("v_cvt_pk_bf16_f32 %s, %s, %s" % (v(tb_ + 2 * qq + 1), v(r0 + 2), v(r0 + 3)))
        else:
            if kind == "scale":
                for p_ in range(8): L_.append("v_pk_mul_f32 %s, %s, %s" % (v(b + 2 * p_, 2), v(b + 2 * p_, 2), s(sC0, 2)))
            for p_ in range(8): L_.append("v_cvt_pk_bf16_f32 %s, %s, %s" % (v(tb_ + p_), v(b + 2 * p_), v(b + 2 * p_ + 1)))
        L_.append("s_mul_i32 %s, %s, %d" % (s(sSO), s(sTN), tn))
        if tm: L_.append("s_add_u32 %s, %s, %d" % (s(sSO), s(sSO), tm * 40960))
        L_.append("buffer_store_dwordx4 %s, %s, %s, %s offen%s" % (v(tb_, 4), v(vSO), s(SO, 4), s(sSO), SC))
        L_.append("s_add_u32 %s, %s, %s" % (s(sSO), s(sSO), s(sGG)))
        L_.append("buffer_store_dwordx4 %s, %s, %s, %s offen%s" % (v(tb_ + 4, 4), v(vSO), s(SO, 4), s(sSO), SC))
        return L_
    def final(orient, kind, label):
        asm.label(label)
        sync_issue(vN, vN + 2)
        asm("s_waitcnt lgkmcnt(0)")
        mfma(orient, 1, *MORD[0])
        mfma(orient, 1, *MORD[1])
        asm("s_barrier")
        rd = []
        for ks in range(4):
            rd.append("ds_read_b128 %s, %s" % (v(XS[0] + 4 * ks, 4), v(vXA + ks)))
            for a_ in range(2):
                rd.append("ds_read_b64_tr_b16 %s, %s offset:%d" % (v(WALL + ks * 4 + 2 * a_, 2), v(vWA), ks * 4096 + a_ * 1024))
        for ks in range(4):
            for a_ in range(2):
                rd.append("ds_read_b64_tr_b16 %s, %s offset:%d" % (v(WALL + (4 + ks) * 4 + 2 * a_, 2), v(vWA + 1), ks * 4096 + a_ * 1024))
        per = [4, 4, 3, 3, 3, 3]
        pos = 0
        for m in range(2, 8):
            mfma(orient, 1, *MORD[m])
            for k in range(per[m - 2]):
                asm(rd[pos]); pos += 1
        assert pos == len(rd) == 20
        for q in range(8):
            tm, tn = q >> 1, q & 1
            xs = XS[tm & 1]
            if q == 0:
                asm("s_waitcnt lgkmcnt(8)")
            elif q == 1:
                asm("s_waitcnt lgkmcnt(4)")
            elif tn == 0:
                asm("s_waitcnt lgkmcnt(0)")
                if tm == 3: asm("s_barrier")
            ep = epi_lines(kind, q - 2) if q >= 2 else []
            if q == 2: ep = ["s_nop 7"] + ep
            chunk = (len(ep) + 3) // 4
            acc = v(ACC + q * 16, 16)
            for ks in range(4):
                x = v(xs + 4 * ks, 4); w = v(WALL + (tn * 4 + ks) * 4, 4)
                if orient == "T": asm("v_mfma_f32_32x32x16_bf16 %s, %s, %s, %s" % (acc, w, x, acc))
                else: asm("v_mfma_f32_32x32x16_bf16 %s, %s, %s, %s" % (acc, x, w, acc))
                if tn == 0 and tm < 3:
                    asm("ds_read_b128 %s, %s offset:%d" % (v(XS[(tm + 1) & 1] + 4 * ks, 4), v(vXA + ks), (tm + 1) * 4096))
                for ln in ep[ks * chunk:(ks + 1) * chunk]: asm(ln)
        st(2)
        for ln in epi_lines(kind, 6): asm(ln)
        for ln in epi_lines(kind, 7): asm(ln)
        asm("s_branch %s_fin1" % N)
    asm.label("%s_finalT" % N)
    asm("s_cmp_eq_u32 %s, 0" % s(sVAR))
    asm("s_cbranch_scc0 %s_fin_ts" % N)
    final("T", "phi", "%s_fin_tp" % N)
    final("T", "scale", "%s_fin_ts" % N)
    asm.label("%s_finalF" % N)
    asm("s_cmp_eq_u32 %s, 1" % s(sVAR))
    asm("s_cbranch_scc0 %s_fin_fn" % N)
    final("F", "phi", "%s_fin_fp" % N)
    final("F", "plain", "%s_fin_fn" % N)
    asm.label("%s_fin1" % N)
    asm("v_mov_b32 %s, 0x%x" % (v(vT), W_ISS))
    asm("v_mov_b32 %s, 1" % v(vU))
    asm("s_mov_b64 exec, 1")
    asm("ds_add_u32 %s, %s" % (v(vT), v(vU)))
    asm("s_mov_b64 exec, -1")
    st(3)
    get_sync(vN, vN + 2, preissued=True)
    release()
    asm("s_lshl_b32 %s, %s, 3" % (s(sT1), s(sBR)))
    asm("s_add_u32 %s, %s, %s" % (s(sT1), s(sT1), s(sRB)))
    asm("s_lshl_b32 %s, %s, 4" % (s(sT1), s(sT1)))
    asm("s_add_u32 %s, %s, %s" % (s(sT1), s(sT1), s(sCB)))
    asm("s_lshl_b32 %s, %s, 3" % (s(sT1), s(sT1)))
    asm("s_add_u32 %s, %s, %d" % (s(sT1), s(sT1), F1))
    lds_arrive(W_CNT1, 4, vN + 2, vN, s(sT1), replicas=REPL)
    st(4)
    asm("s_branch %s_p2setup" % N)
    asm.label("%s_p2c" % N)
    asm("s_barrier")
    get_sync(220, 222)
    asm("s_branch %s_p2setup" % N)

    asm.label("%s_p1h" % N)
    hL, hT, hU, hV = 2, 3, 4, 5
    vDX, vDW, hTMP = 8, 16, 20
    sXOFF, sWOFF, sM0X, sM0W, sDBUF, sHS = 52, 53, 54, 55, 56, 57
    SX, SWD = SA_, SB_
    asm("s_cmp_lt_u32 %s, 30" % s(sSLOT))
    asm("s_cbranch_scc1 %s_p1h2" % N)
    asm("s_barrier")
    asm("s_branch %s_p2h" % N)
    asm.label("%s_p1h2" % N)
    lane(hL)
    asm("v_lshrrev_b32 %s, 3, %s" % (v(hT), v(hL)))
    asm("s_lshl_b32 %s, %s, 6" % (s(sT0), s(sW4)))
    asm("v_add_u32 %s, %s, %s" % (v(hT), s(sT0), v(hT)))
    asm("s_movk_i32 %s, 1280" % s(sT1))
    asm("v_mul_lo_u32 %s, %s, %s" % (v(hT), v(hT), s(sT1)))
    asm("v_lshrrev_b32 %s, 4, %s" % (v(hU), v(hL)))
    asm("v_and_b32 %s, 7, %s" % (v(hV), v(hL)))
    for par in range(2):
        if par == 1: asm("v_add_u32 %s, 4, %s" % (v(hU), v(hU)))
        asm("v_xor_b32 %s, %s, %s" % (v(hTMP + par), v(hV), v(hU)))
        asm("v_lshl_add_u32 %s, %s, 4, %s" % (v(hTMP + par), v(hTMP + par), v(hT)))
    for i in range(8):
        asm("v_add_u32 %s, %d, %s" % (v(vDX + i), i * 8 * 1280 - (i & 3) * 1024, v(hTMP + (i & 1))))
    asm("v_lshrrev_b32 %s, 4, %s" % (v(hU), v(hL)))
    asm("s_lshl_b32 %s, %s, 4" % (s(sT0), s(sW4)))
    asm("v_add_u32 %s, %s, %s" % (v(hT), s(sT0), v(hU)))
    asm("s_movk_i32 %s, 3840" % s(sT1))
    asm("v_mul_lo_u32 %s, %s, %s" % (v(hT), v(hT), s(sT1)))
    asm("v_lshlrev_b32 %s, 2, %s" % (v(hU), v(hU)))
    asm("v_and_b32 %s, 15, %s" % (v(hV), v(hL)))
    asm("v_xor_b32 %s, %s, %s" % (v(hV), v(hV), v(hU)))
    asm("v_lshl_add_u32 %s, %s, 4, %s" % (v(hT), v(hV), v(hT)))
    for i in range(4):
        asm("v_add_u32 %s, %d, %s" % (v(vDW + i), i * 4 * 3840 - i * 1024, v(hT)))
    asm("s_cmp_eq_u32 %s, 0" % s(sBR))
    asm("s_cselect_b32 s36, s36, s40")
    asm("s_cselect_b32 s37, s37, s41")
    asm("s_cselect_b32 s38, s38, s42")
    asm("s_cselect_b32 s39, s39, s43")
    asm("s_mul_i32 %s, %s, %d" % (s(sT0), s(sRB), 256 * 1280))
    asm("s_add_u32 s36, s36, %s" % s(sT0))
    asm("s_addc_u32 s37, s37, 0")
    asm("s_lshl_b32 %s, %s, 8" % (s(sT0), s(sCB)))
    asm("s_add_u32 s38, s38, %s" % s(sT0))
    asm("s_addc_u32 s39, s39, 0")
    asm("s_sub_u32 %s, %d, %s" % (s(sT1), 640 * 3840, s(sT0)))
    srd(asm, SX, "s36", "s37", 256 * 1280)
    srd(asm, SWD, "s38", "s39", s(sT1))
    def dma_stage():
        asm("s_lshl_b32 %s, %s, 13" % (s(sT0), s(sW4)))
        asm("s_add_u32 %s, %s, %s" % (s(sM0X), s(sDBUF), s(sT0)))
        asm("s_lshl_b32 %s, %s, 12" % (s(sT0), s(sW4)))
        asm("s_add_u32 %s, %s, %s" % (s(sT0), s(sT0), s(sDBUF)))
        asm("s_add_u32 %s, %s, 32768" % (s(sM0W), s(sT0)))
        for idx in range(8):
            if idx == 0:
                asm("s_mov_b32 m0, %s" % s(sM0X)); asm("s_nop 0")
            if idx == 4:
                asm("s_add_u32 m0, %s, 4096" % s(sM0X)); asm("s_nop 0")
            asm("buffer_load_dwordx4 %s, %s, %s offen offset:%d lds" % (v(vDX + idx), s(SX, 4), s(sXOFF), (idx & 3) * 1024))
        asm("s_mov_b32 m0, %s" % s(sM0W)); asm("s_nop 0")
        for j in range(4):
            asm("buffer_load_dwordx4 %s, %s, %s offen offset:%d lds" % (v(vDW + j), s(SWD, 4), s(sWOFF), j * 1024))
        asm("s_add_u32 %s, %s, 128" % (s(sXOFF), s(sXOFF)))
        asm("s_add_u32 %s, %s, %d" % (s(sWOFF), s(sWOFF), 64 * 3840))
        asm("s_add_u32 %s, %s, 49152" % (s(sDBUF), s(sDBUF)))
        asm("s_cmp_ge_u32 %s, %d" % (s(sDBUF), 3 * 49152))
        asm("s_cselect_b32 %s, 0, %s" % (s(sDBUF), s(sDBUF)))
    WARM = opts.get("warm", 3)
    if WARM:
        asm("s_load_dwordx2 s[4:5], s[0:1], 16")
        asm("s_load_dwordx2 s[6:7], s[0:1], 40")
        asm("s_lshl_b32 s58, %s, 2" % s(sSLOT))
        asm("s_add_u32 s58, s58, %s" % s(sW4))
        asm("s_mul_i32 s58, s58, %d" % (54 * 128))
        asm("v_lshlrev_b32 v6, 7, %s" % v(hL))
    asm("s_mov_b32 %s, 0" % s(sXOFF))
    asm("s_mov_b32 %s, 0" % s(sWOFF))
    asm("s_mov_b32 %s, 0" % s(sDBUF))
    asm("s_mov_b32 %s, 0" % s(sHS))
    pro = opts.get("pro", 2)
    Lp = "%s_hpro" % N
    asm.label(Lp)
    dma_stage()
    asm("s_add_u32 %s, %s, 1" % (s(sHS), s(sHS)))
    asm("s_cmp_eq_u32 %s, %d" % (s(sHS), pro))
    asm("s_cbranch_scc0 %s_hpro_n" % N)
    st(3)
    asm("s_waitcnt vmcnt(%d)" % (12 * (pro - 1)))
    st(1)
    asm("s_barrier")
    asm.label("%s_hpro_n" % N)
    asm("s_cmp_lt_u32 %s, 3" % s(sHS))
    asm("s_cbranch_scc1 %s" % Lp)
    asm("s_mov_b32 %s, 0" % s(sHS))
    Lh = "%s_hloop" % N
    asm.label(Lh)
    asm("s_cmp_lt_u32 %s, 8" % s(sHS))
    asm("s_cbranch_scc1 %s_hw12" % N)
    asm("s_waitcnt vmcnt(0)")
    asm("s_branch %s_hw" % N)
    asm.label("%s_hw12" % N)
    asm("s_waitcnt vmcnt(12)")
    asm.label("%s_hw" % N)
    asm("s_barrier")
    asm("s_cmp_lt_u32 %s, 7" % s(sHS))
    asm("s_cbranch_scc0 %s_hnodma" % N)
    dma_stage()
    if WARM:
        asm("s_cmp_eq_u32 %s, %d" % (s(sHS), WARM - 1))
        asm("s_cbranch_scc0 %s_hnodma" % N)
        asm("s_waitcnt lgkmcnt(0)")
        asm("s_cmp_lt_u32 %s, 4" % s(sP8))
        asm("s_cselect_b32 s4, s4, s6")
        asm("s_cselect_b32 s5, s5, s7")
        srd(asm, 60, "s4", "s5", 640 * 1280)
        asm("s_mov_b32 exec_lo, -1")
        asm("s_mov_b32 exec_hi, 0x3fffff")
        asm("buffer_load_dword v7, v6, s[60:63], s58 offen")
        asm("s_mov_b64 exec, -1")
    asm.label("%s_hnodma" % N)
    asm("s_add_u32 %s, %s, 1" % (s(sHS), s(sHS)))
    asm("s_cmp_lt_u32 %s, 10" % s(sHS))
    asm("s_cbranch_scc1 %s" % Lh)
    asm.label("%s_p2h" % N)
    st(2)
    sBR3, sRB3, sCB3 = 64, 65, 66
    def decode3():
        if not D1:
            asm("s_lshr_b32 %s, %s, 4" % (s(sBR3), s(sSLOT)))
            asm("s_bfe_u32 %s, %s, 0x10003" % (s(sRB3), s(sSLOT)))
            asm("s_lshl_b32 %s, %s, 1" % (s(sT0), s(sP8)))
            asm("s_add_u32 %s, %s, %s" % (s(sRB3), s(sRB3), s(sT0)))
            asm("s_and_b32 %s, %s, 7" % (s(sCB3), s(sSLOT)))
        else:
            asm("s_lshr_b32 %s, %s, 2" % (s(sBR3), s(sP8)))
            asm("s_and_b32 %s, %s, 3" % (s(sT0), s(sP8)))
            asm("s_lshl_b32 %s, %s, 2" % (s(sT0), s(sT0)))
            asm("s_lshr_b32 %s, %s, 3" % (s(sRB3), s(sSLOT)))
            asm("s_add_u32 %s, %s, %s" % (s(sRB3), s(sRB3), s(sT0)))
            asm("s_and_b32 %s, %s, 7" % (s(sCB3), s(sSLOT)))
    get_sync(220, 222)
    sHH, sRB2, sG0, sDQ, sTB, sNT = 44, 45, 46, 47, 48, 49
    sMSK, sM40 = 50, 52
    sP = 36
    sQM = 54
    sOffO, sOffQA, sBIG, sEPS = 62, 63, 67, 68
    S = 0; O = 144; Q = 160; F = [168, 176]; CM8 = 184; CM0 = 200; VF = [184, 192]
    vM, vNM = 216, 218
    vT = 220
    vLin, vKa, vVa, vL = 228, 229, 230, 231
    vOm, vOr, vFo, vU = 232, 233, 234, 235
    PB = 236
    PA = 168
    vL8 = 242
    AW = 4
    asm.label("%s_p2setup" % N)
    if not D1:
        asm("s_mov_b32 %s, %s" % (s(sHH), s(sSLOT)))
        asm("s_mov_b32 %s, %s" % (s(sRB2), s(sP8)))
    else:
        asm("s_lshl_b32 %s, %s, 2" % (s(sT0), s(sP8)))
        asm("s_and_b32 %s, %s, 3" % (s(sHH), s(sSLOT)))
        asm("s_add_u32 %s, %s, %s" % (s(sHH), s(sHH), s(sT0)))
        asm("s_lshr_b32 %s, %s, 2" % (s(sRB2), s(sSLOT)))
    asm("s_mul_i32 %s, %s, 5" % (s(sT0), s(sHH)))
    asm("s_lshr_b32 %s, %s, 2" % (s(sG0), s(sT0)))
    asm("s_and_b32 %s, %s, 3" % (s(sDQ), s(sT0)))
    asm("s_lshl_b32 %s, %s, 3" % (s(sTB), s(sRB2)))
    asm("s_add_u32 %s, %s, %s" % (s(sTB), s(sTB), s(sW)))
    asm("s_add_u32 %s, %s, 1" % (s(sNT), s(sTB)))
    asm("s_min_u32 %s, %s, 9" % (s(sNT), s(sNT)))
    asm("s_mov_b32 %s, 0x000fffff" % s(sMSK)); asm("s_mov_b32 %s, 0x000fffff" % s(sMSK + 1))
    asm("s_mov_b32 %s, -1" % s(sM40)); asm("s_mov_b32 %s, 0xff" % s(sM40 + 1))
    lane(vL)
    asm("v_lshlrev_b32 %s, 3, %s" % (v(vL8), v(vL)))
    asm("v_lshlrev_b32 %s, 4, %s" % (v(vLin), v(vL)))
    asm("s_mov_b32 %s, %s" % (s(sBIG), fhex(BIG)))
    asm("v_and_b32 %s, 31, %s" % (v(vU), v(vL)))
    asm("v_lshrrev_b32 %s, 5, %s" % (v(vT + 4), v(vL)))
    asm("v_lshlrev_b32 %s, 2, %s" % (v(vT + 4), v(vT + 4)))
    asm("v_sub_u32 %s, %s, %s" % (v(vU), v(vU), v(vT + 4)))
    asm("v_mov_b32 %s, %s" % (v(vT + 5), s(sBIG)))
    asm("v_mov_b32 %s, 0" % v(vT + 6))
    for r0 in range(0, 16, 4):
        for k in range(4):
            r = r0 + k
            asm("v_cmp_le_i32 %s, %d, %s" % (s(sP + 2 * k, 2), 8 * (r >> 2) + (r & 3), v(vU)))
        asm("s_nop 1")
        for k in range(4):
            r = r0 + k
            asm("v_cndmask_b32 %s, %s, %s, %s" % (v(CM8 + r), v(vT + 5), v(vT + 6), s(sP + 2 * k, 2)))
            asm("v_cndmask_b32 %s, %s, %s, %s" % (v(CM0 + r), v(vT + 6), v(vT + 5), s(sP + 2 * k, 2)))
    for gg in range(2):
        for p in range(2):
            k = gg * 2 + p
            for h in range(2):
                asm("s_sub_u32 %s, %d, %s" % (s(sT0), 4 * gg + 2 * p + h, s(sDQ)))
                asm("s_cmp_le_u32 %s, 4" % s(sT0))
                asm("s_cselect_b32 %s, -1, 0" % s(sQM + 2 * k + h))
    asm("s_lshl_b32 %s, %s, 11" % (s(sT0), s(sW)))
    asm("s_add_u32 %s, %s, %d" % (s(sT0), s(sT0), L_K))
    asm("v_add_u32 %s, %s, %s" % (v(vKa), s(sT0), v(vLin)))
    asm("v_lshrrev_b32 %s, 5, %s" % (v(vT), v(vL)))
    asm("v_mul_u32_u24 %s, 20, %s" % (v(vT), v(vT)))
    asm("v_and_b32 %s, 31, %s" % (v(vU), v(vL)))
    asm("v_add_u32 %s, %s, %s" % (v(vT), v(vT), v(vU)))
    asm("v_lshlrev_b32 %s, 4, %s" % (v(vT), v(vT)))
    asm("s_mul_i32 %s, %s, 1280" % (s(sT0), s(sW)))
    asm("s_add_u32 %s, %s, %d" % (s(sT0), s(sT0), L_V))
    asm("v_add_u32 %s, %s, %s" % (v(vVa), s(sT0), v(vT)))
    asm("s_lshl_b32 %s, %s, 5" % (s(sT0), s(sTB)))
    asm("s_add_u32 %s, %s, %s" % (s(sT0), s(sT0), s(sHH)))
    asm("s_mul_i32 %s, %s, 1280" % (s(sOffO), s(sT0)))
    asm("v_mov_b32 %s, %s" % (v(vOm), v(vLin)))
    asm("v_add_u32 %s, 1024, %s" % (v(vOr), v(vL8)))
    asm("v_mov_b32 %s, 0x%x" % (v(vT + 4), OOB))
    asm("v_cmp_gt_u32 vcc, 32, %s" % v(vL))
    asm("s_nop 1")
    asm("v_cndmask_b32 %s, %s, %s, vcc" % (v(vOr), v(vT + 4), v(vOr)))
    asm("s_mul_i32 %s, %s, 40" % (s(sT2), s(sTB)))
    asm("s_add_u32 %s, %s, %s" % (s(sT2), s(sT2), s(sG0)))
    asm("s_lshl_b32 %s, %s, 10" % (s(sT2), s(sT2)))
    asm("s_add_u32 %s, %s, %d" % (s(sOffQA), s(sT2), R_QA))
    def q_loads():
        asm("s_add_u32 %s, %s, %d" % (s(sT3), s(sOffQA), R_QB - R_QA))
        asm("buffer_load_dwordx4 %s, %s, %s, %s offen sc1" % (v(Q, 4), v(vLin), s(SWS, 4), s(sT3)))
        asm("buffer_load_dwordx4 %s, %s, %s, %s offen offset:1024 sc1" % (v(Q + 4, 4), v(vLin), s(SWS, 4), s(sT3)))
    FINE = opts.get("fine", 1)
    def tile_masks():
        asm("s_lshr_b32 %s, %s, 3" % (s(sT1), s(sG0)))
        asm("s_lshl_b32 %s, 1, %s" % (s(sT1), s(sT1)))
        asm("s_add_u32 %s, %s, 1" % (s(sT2), s(sG0)))
        asm("s_lshr_b32 %s, %s, 3" % (s(sT2), s(sT2)))
        asm("s_lshl_b32 %s, 1, %s" % (s(sT2), s(sT2)))
        asm("s_or_b32 %s, %s, %s" % (s(sT1), s(sT1), s(sT2)))
        asm("s_mul_i32 %s, %s, 20" % (s(sT3), s(sHH)))
        asm("s_lshr_b32 %s, %s, 7" % (s(sT2), s(sT3)))
        asm("s_lshl_b32 %s, 1, %s" % (s(sT2), s(sT2)))
        asm("s_add_u32 %s, %s, 19" % (s(sT3), s(sT3)))
        asm("s_lshr_b32 %s, %s, 7" % (s(sT3), s(sT3)))
        asm("s_lshl_b32 %s, 1, %s" % (s(sT3), s(sT3)))
        asm("s_or_b32 %s, %s, %s" % (s(sT2), s(sT2), s(sT3)))
    def own_tile_wait():
        D = lab("otw")
        asm("s_cmp_ge_u32 %s, 30" % s(sSLOT))
        asm("s_cbranch_scc1 %s" % D)
        lds_wait(W_CNT1, vT, vT + 1, atleast=4)
        asm.label(D)
    def lds_inc(word):
        asm("v_mov_b32 %s, 0x%x" % (v(vT), word))
        asm("v_mov_b32 %s, 1" % v(vT + 1))
        asm("s_mov_b64 exec, 1")
        asm("ds_add_u32 %s, %s" % (v(vT), v(vT + 1)))
        asm("s_mov_b64 exec, -1")
    asm("s_cmp_eq_u32 %s, %d" % (s(sW), AW))
    asm("s_cbranch_scc1 %s_aearly" % N)
    asm("s_cmp_eq_u32 %s, 5" % s(sW))
    asm("s_cbranch_scc1 %s_w5" % N)
    asm("s_cmp_ge_u32 %s, 6" % s(sW))
    asm("s_cbranch_scc1 %s_w67" % N)
    sTK, sKO, sLK, sIk = 4, 5, 6, 7
    lds_wait(W_S1, vT, vT + 1)
    st(4) if opts.get("kvst") else None
    asm("s_lshl_b32 %s, %s, 2" % (s(sIk), s(sW)))
    asm("s_cmp_eq_u32 %s, 0" % s(sRB2))
    asm("s_cselect_b32 %s, 8, 0" % s(sT0))
    asm("s_cmp_lt_u32 %s, %s" % (s(sIk), s(sT0)))
    asm("s_cbranch_scc1 %s_nok" % N)
    asm("s_lshl_b32 %s, %s, 3" % (s(sTK), s(sRB2)))
    asm("s_add_u32 %s, %s, %s" % (s(sTK), s(sTK), s(sIk)))
    asm("s_sub_u32 %s, %s, 8" % (s(sTK), s(sTK)))
    asm("s_mul_i32 %s, %s, 40" % (s(sKO), s(sTK)))
    asm("s_add_u32 %s, %s, %s" % (s(sKO), s(sKO), s(sG0)))
    asm("s_lshl_b32 %s, %s, 10" % (s(sKO), s(sKO)))
    asm("s_add_u32 %s, %s, %d" % (s(sKO), s(sKO), R_KB))
    asm("s_lshl_b32 %s, %s, 11" % (s(sLK), s(sIk)))
    asm("s_add_u32 %s, %s, %d" % (s(sLK), s(sLK), L_K))
    for ii in range(4):
        asm("s_add_u32 m0, %s, %d" % (s(sLK), ii * 2048))
        asm("s_nop 0")
        asm("buffer_load_dwordx4 %s, %s, %s offen sc1 lds" % (v(vLin), s(SWS, 4), s(sKO)))
        asm("buffer_load_dwordx4 %s, %s, %s offen offset:1024 sc1 lds" % (v(vLin), s(SWS, 4), s(sKO)))
        if ii < 3: asm("s_add_u32 %s, %s, 40960" % (s(sKO), s(sKO)))
    asm.label("%s_nok" % N)
    q_loads()
    asm("s_waitcnt vmcnt(0)")
    lds_inc(W_K)
    asm("s_branch %s_kwait" % N)
    asm.label("%s_w67" % N)
    vDWO = 243
    sDA, sDM = 4, 5
    SWO = SA_
    decode3()
    asm("s_load_dwordx2 s[4:5], s[0:1], 16")
    asm("s_load_dwordx2 s[6:7], s[0:1], 40")
    asm("s_movk_i32 %s, 6554" % s(sT2))
    asm("s_movk_i32 %s, 1280" % s(sT3))
    for b in range(5):
        asm("v_add_u32 %s, %d, %s" % (v(vT), 64 * b, v(vL)))
        asm("v_mul_lo_u32 %s, %s, %s" % (v(vT + 1), v(vT), s(sT2)))
        asm("v_lshrrev_b32 %s, 16, %s" % (v(vT + 1), v(vT + 1)))
        asm("v_mul_u32_u24 %s, 10, %s" % (v(vT + 2), v(vT + 1)))
        asm("v_sub_u32 %s, %s, %s" % (v(vT), v(vT), v(vT + 2)))
        asm("v_lshlrev_b32 %s, 4, %s" % (v(vT), v(vT)))
        asm("v_mad_u32_u24 %s, %s, %s, %s" % (v(vDWO + b), v(vT + 1), s(sT3), v(vT)))
        if 0 < b < 4: asm("v_subrev_u32 %s, %d, %s" % (v(vDWO + b), b * 1024, v(vDWO + b)))
    asm("s_waitcnt lgkmcnt(0)")
    asm("s_cmp_eq_u32 %s, 0" % s(sBR3))
    asm("s_cselect_b32 s4, s4, s6")
    asm("s_cselect_b32 s5, s5, s7")
    asm("s_mul_i32 %s, %s, 160" % (s(sT0), s(sCB3)))
    asm("s_add_u32 s4, s4, %s" % s(sT0))
    asm("s_addc_u32 s5, s5, 0")
    asm("s_sub_u32 %s, %d, %s" % (s(sT1), 640 * 1280, s(sT0)))
    srd(asm, SWO, "s4", "s5", s(sT1))
    asm("s_and_b32 %s, %s, 1" % (s(sT0), s(sW)))
    asm("s_mul_i32 %s, %s, %d" % (s(sDA), s(sT0), 32 * 1280))
    asm("s_mul_i32 %s, %s, 5120" % (s(sDM), s(sT0)))
    def wo_group():
        asm("s_mov_b32 m0, %s" % s(sDM)); asm("s_nop 0")
        asm("buffer_load_dwordx4 %s, %s, %s offen lds" % (v(vDWO), s(SWO, 4), s(sDA)))
        for b in range(1, 4):
            asm("buffer_load_dwordx4 %s, %s, %s offen offset:%d lds" % (v(vDWO + b), s(SWO, 4), s(sDA), b * 1024))
        asm("s_add_u32 m0, %s, 4096" % s(sDM)); asm("s_nop 0")
        asm("buffer_load_dwordx4 %s, %s, %s offen lds" % (v(vDWO + 4), s(SWO, 4), s(sDA)))
        asm("s_add_u32 %s, %s, %d" % (s(sDA), s(sDA), 2 * 32 * 1280))
        asm("s_add_u32 %s, %s, %d" % (s(sDM), s(sDM), 2 * 5120))
    asm("s_cmp_ge_u32 %s, 30" % s(sSLOT))
    asm("s_cbranch_scc1 %s_wogo" % N)
    lds_wait(W_ISS, vT, vT + 1, atleast=4)
    asm.label("%s_wogo" % N)
    asm("s_mov_b32 s6, 0")
    asm.label("%s_woloop" % N)
    wo_group()
    asm("s_add_u32 s6, s6, 1")
    asm("s_cmp_lt_u32 s6, 10")
    asm("s_cbranch_scc1 %s_woloop" % N)
    lds_wait(W_S1, vT, vT + 1)
    asm("s_waitcnt vmcnt(30)")
    q_loads()
    asm("v_cmp_le_u32 vcc, 20, %s" % v(vL))
    asm("v_mov_b32 %s, 0" % v(vT))
    asm("v_mov_b32 %s, %d" % (v(vT + 1), 10240 - 320))
    asm("v_cndmask_b32 %s, %s, %s, vcc" % (v(vT), v(vT), v(vT + 1)))
    asm("v_add_u32 %s, %s, %s" % (v(vFo), v(vT), v(vLin)))
    asm("s_and_b32 %s, %s, 1" % (s(sIk), s(sW)))
    asm("s_lshl_b32 %s, %s, 3" % (s(sIk), s(sIk)))
    asm("s_or_b32 %s, %s, %s" % (s(sT0), s(sIk), s(sRB2)))
    asm("s_cmp_eq_u32 %s, 0" % s(sT0))
    asm("s_cbranch_scc1 %s_nov" % N)
    asm("s_lshl_b32 %s, %s, 3" % (s(sTK), s(sRB2)))
    asm("s_add_u32 %s, %s, %s" % (s(sTK), s(sTK), s(sIk)))
    asm("s_sub_u32 %s, %s, 8" % (s(sTK), s(sTK)))
    asm("s_mul_i32 %s, %s, 40960" % (s(sKO), s(sTK)))
    asm("s_mul_i32 %s, %s, 320" % (s(sT1), s(sHH)))
    asm("s_add_u32 %s, %s, %s" % (s(sKO), s(sKO), s(sT1)))
    asm("s_add_u32 %s, %s, %d" % (s(sKO), s(sKO), R_VB))
    asm("s_mul_i32 %s, %s, 1280" % (s(sLK), s(sIk)))
    asm("s_add_u32 %s, %s, %d" % (s(sLK), s(sLK), L_V))
    asm("s_mov_b64 exec, %s" % s(sM40, 2))
    for ii in range(8):
        asm("s_add_u32 m0, %s, %d" % (s(sLK), ii * 1280))
        asm("s_add_u32 %s, %s, %d" % (s(sT1), s(sKO), 20480 - 640))
        asm("buffer_load_dwordx4 %s, %s, %s offen sc1 lds" % (v(vFo), s(SWS, 4), s(sKO)))
        asm("buffer_load_dwordx4 %s, %s, %s offen offset:640 sc1 lds" % (v(vFo), s(SWS, 4), s(sT1)))
        if ii < 7: asm("s_add_u32 %s, %s, 40960" % (s(sKO), s(sKO)))
    asm("s_mov_b64 exec, -1")
    asm("s_waitcnt vmcnt(16)")
    asm("s_branch %s_kwait" % N)
    asm.label("%s_nov" % N)
    asm("s_waitcnt vmcnt(0)")
    asm("s_branch %s_kwait" % N)
    asm.label("%s_w5" % N)
    own_tile_wait()
    asm("s_add_u32 %s, %s, 7" % (s(sT0), s(sRB2)))
    asm("s_lshl_b32 %s, %s, 7" % (s(sT0), s(sT0)))
    asm("s_and_b32 %s, %s, %d" % (s(sT1), s(sP8) if REPL <= 8 else s(sHH), REPL - 1))
    asm("s_lshl_b32 %s, %s, 11" % (s(sT1), s(sT1)))
    asm("s_add_u32 %s, %s, %s" % (s(sT0), s(sT0), s(sT1)))
    asm("s_add_u32 %s, %s, %d" % (s(sPL), s(sT0), F1))
    if FINE:
        tile_masks()
        asm("s_lshl_b32 %s, %s, 5" % (s(sT3), s(sT1)))
        asm("s_lshl_b32 %s, %s, 10" % (s(sT2), s(sT2)))
        asm("s_or_b32 %s, %s, %s" % (s(sT3), s(sT3), s(sT2)))
        asm("s_or_b32 %s, %s, %s" % (s(sT1), s(sT1), s(sT3)))
        asm("s_lshl_b32 %s, %s, 16" % (s(sT1), s(sT1)))
        asm("s_cmp_eq_u32 %s, 0" % s(sRB2))
        asm("s_cselect_b32 %s, 0, %s" % (s(sT3), s(sT3)))
        asm("s_or_b32 %s, %s, %s" % (s(sT1), s(sT1), s(sT3)))
    else:
        asm("s_cmp_eq_u32 %s, 0" % s(sRB2))
        asm("s_cselect_b32 %s, 0, 0x7fe0" % s(sT1))
        asm("s_or_b32 %s, %s, 0x7fff0000" % (s(sT1), s(sT1)))
    if opts.get("ppoll", 0): ppoll(s(sPL), 32, [244, 246, 248], vL8, smask=s(sT1))
    else: poll(s(sPL), 32, vT, vL8, smask=s(sT1))
    lds_set(W_S1, vT, vT + 1)
    st(4)
    q_loads()
    asm("s_waitcnt vmcnt(0)")
    asm("s_branch %s_kwait" % N)
    asm.label("%s_aearly" % N)
    asm("v_lshrrev_b32 %s, 5, %s" % (v(vT), v(vL)))
    asm("v_mul_u32_u24 %s, 10240, %s" % (v(vT), v(vT)))
    asm("v_and_b32 %s, 31, %s" % (v(vU), v(vL)))
    asm("v_lshl_add_u32 %s, %s, 4, %s" % (v(vFo), v(vU), v(vT)))
    asm("v_mov_b32 %s, 0x3f803f80" % v(vT + 2))
    for r in range(64, 128): asm("v_mov_b32 %s, %s" % (v(r), v(vT + 2)))
    own_tile_wait()
    asm("s_lshl_b32 %s, %s, 7" % (s(sT0), s(sRB2)))
    asm("s_and_b32 %s, %s, %d" % (s(sT1), s(sP8) if REPL <= 8 else s(sHH), REPL - 1))
    asm("s_lshl_b32 %s, %s, 11" % (s(sT1), s(sT1)))
    asm("s_add_u32 %s, %s, %s" % (s(sT0), s(sT0), s(sT1)))
    asm("s_add_u32 %s, %s, %d" % (s(sPL), s(sT0), F1))
    if FINE:
        tile_masks()
        asm("s_lshl_b32 %s, %s, 5" % (s(sT3), s(sT2)))
        asm("s_lshl_b32 %s, %s, 10" % (s(sT2), s(sT2)))
        asm("s_or_b32 %s, %s, %s" % (s(sT1), s(sT1), s(sT3)))
        asm("s_or_b32 %s, %s, %s" % (s(sT1), s(sT1), s(sT2)))
        if opts.get("ppoll", 0): ppoll(s(sPL), 15, [244, 246, 248], vL8, smask=s(sT1))
        else: poll(s(sPL), 15, vT, vL8, smask=s(sT1))
    else:
        poll(s(sPL), 15, vT, vL8)
    lds_set(W_S1A, vT, vT + 1)
    st(4)
    asm("s_lshl_b32 %s, %s, 3" % (s(sT0), s(sRB2)))
    asm("s_mul_i32 %s, %s, 40960" % (s(sT0), s(sT0)))
    asm("s_mul_i32 %s, %s, 320" % (s(sT1), s(sHH)))
    asm("s_add_u32 %s, %s, %s" % (s(sT0), s(sT0), s(sT1)))
    asm("s_add_u32 %s, %s, %d" % (s(sT1), s(sT0), R_KA))
    asm("s_add_u32 %s, %s, %d" % (s(sT2), s(sT0), R_VA))
    asm("s_mov_b64 exec, %s" % s(sMSK, 2))
    for b in range(8):
        for m in range(2):
            asm("buffer_load_dwordx4 %s, %s, %s, %s offen sc1" % (v((b * 2 + m) * 4, 4), v(vFo), s(SWS, 4), s(sT1)))
            asm("buffer_load_dwordx4 %s, %s, %s, %s offen sc1" % (v(64 + (b * 2 + m) * 4, 4), v(vFo), s(SWS, 4), s(sT2)))
            asm("s_add_u32 %s, %s, 20480" % (s(sT1), s(sT1)))
            asm("s_add_u32 %s, %s, 20480" % (s(sT2), s(sT2)))
    asm("s_mov_b64 exec, -1")
    lds_wait(W_S1, vT, vT + 1)
    q_loads()
    for b in range(16):
        asm("s_waitcnt vmcnt(%d)" % (32 - 2 * b))
        c = "0" if b == 0 else v(O, 16)
        asm("v_mfma_f32_32x32x16_bf16 %s, %s, %s, %s" % (v(O, 16), v(b * 4, 4), v(64 + b * 4, 4), c))
    asm("s_lshl_b32 %s, %s, 3" % (s(sT0), s(sHH)))
    asm("s_add_u32 %s, %s, %s" % (s(sT0), s(sT0), s(sRB2)))
    asm("s_mul_i32 %s, %s, 3072" % (s(sT0), s(sT0)))
    asm("s_add_u32 %s, %s, %d" % (s(sT0), s(sT0), R_KVP))
    asm("s_nop 7"); asm("s_nop 1")
    for j in range(3):
        asm("buffer_store_dwordx4 %s, %s, %s, %s offen offset:%d sc1" % (v(O + 4 * j, 4), v(vLin), s(SWS, 4), s(sT0), j * 1024))
    asm("s_waitcnt vmcnt(3)")
    asm.label("%s_kwait" % N)
    lds_wait(W_K, vT, vT + 1, atleast=4)
    st(5)
    PRIO = opts.get("prio", 0)
    if PRIO:
        asm("s_cmp_%s_u32 %s, 4" % ("lt" if PRIO == 1 else "ge", s(sW)))
        asm("s_cbranch_scc0 %s_noprio" % N)
        asm("s_setprio 2")
        asm.label("%s_noprio" % N)
    def rdK(d, dst):
        for gg in range(2):
            asm("ds_read_b128 %s, %s offset:%d" % (v(dst + 4 * gg, 4), v(vKa), (8 - d) * 2048 + gg * 1024))
    def rdV(d, dst):
        asm("s_mov_b64 exec, %s" % s(sMSK, 2))
        for m in range(2):
            asm("ds_read_b128 %s, %s offset:%d" % (v(dst + 4 * m, 4), v(vVa), (8 - d) * 1280 + m * 640))
        asm("s_mov_b64 exec, -1")
    rdK(0, F[0])
    for gg in range(2):
        for p in range(2):
            k = gg * 2 + p
            for j in range(2):
                r = Q + 4 * gg + 2 * p + j
                asm("v_cndmask_b32 %s, 0, %s, %s" % (v(r), v(r), s(sQM + 2 * k, 2)))
    def maxes(d):
        b = S + 16 * d
        if d == 0:
            asm("v_max3_f32 %s, %s, %s, %s" % (v(vM), v(b), v(b + 1), v(b + 2)))
            for k in range(3, 15, 2):
                asm("v_max3_f32 %s, %s, %s, %s" % (v(vM), v(vM), v(b + k), v(b + k + 1)))
            asm("v_max_f32 %s, %s, %s" % (v(vM), v(vM), v(b + 15)))
        else:
            for k in range(0, 16, 2):
                asm("v_max3_f32 %s, %s, %s, %s" % (v(vM), v(vM), v(b + k), v(b + k + 1)))
    for d in range(9):
        cur, nxt = F[d & 1], F[(d + 1) & 1]
        asm("s_waitcnt lgkmcnt(0)")
        if d < 8: rdK(d + 1, nxt)
        if d > 0:
            asm("s_cmp_le_u32 %s, %d" % (s(sNT), d))
            asm("s_cbranch_scc1 %s_p1skip%d" % (N, d))
        else:
            asm("s_nop 1")
        c = v(CM8, 16) if d == 0 else (v(CM0, 16) if d == 8 else "0")
        b = v(S + 16 * d, 16)
        asm("v_mfma_f32_32x32x16_bf16 %s, %s, %s, %s" % (b, v(cur, 4), v(Q, 4), c))
        asm("v_mfma_f32_32x32x16_bf16 %s, %s, %s, %s" % (b, v(cur + 4, 4), v(Q + 4, 4), b))
        if d > 0:
            asm.label("%s_p1skip%d" % (N, d))
            if d == 1: asm("s_nop 7")
            maxes(d - 1)
            asm("s_cbranch_scc1 %s_p1end" % N)
    asm("s_nop 3")
    maxes(8)
    asm.label("%s_p1end" % N)
    st(6)
    SIGD = opts.get("sigd", 2)
    def a_signal():
        asm("s_cmp_lg_u32 %s, %d" % (s(sW), AW))
        asm("s_cbranch_scc1 %s_nosig" % N)
        asm("s_waitcnt vmcnt(0)")
        asm("s_lshl_b32 %s, %s, 4" % (s(sT0), s(sHH)))
        asm("s_add_u32 %s, %s, %s" % (s(sT0), s(sT0), s(sRB2)))
        asm("s_lshl_b32 %s, %s, 3" % (s(sT0), s(sT0)))
        asm("s_add_u32 %s, %s, %d" % (s(sT0), s(sT0), F2))
        flag_store(s(sT0), vT, vT + 2)
        asm.label("%s_nosig" % N)
    if SIGD < 0: a_signal()
    asm("s_cmp_lt_u32 %s, 6" % s(sW))
    asm("s_cbranch_scc1 %s_vw" % N)
    asm("s_waitcnt vmcnt(0)")
    lds_inc(W_V)
    asm.label("%s_vw" % N)
    lds_wait(W_V, vT, vT + 1, atleast=2)
    asm("s_waitcnt lgkmcnt(0)")
    asm("s_mov_b32 %s, 0x3f803f80" % s(sT0))
    for r in range(16): asm("v_mov_b32 %s, %s" % (v(VF[0] + r), s(sT0)))
    rdV(0, VF[0])
    asm("v_mov_b32 %s, %s" % (v(vT + 2), v(vM)))
    asm("v_mov_b32 %s, %s" % (v(vT + 3), v(vM)))
    asm("s_nop 1")
    asm("v_permlane32_swap_b32 %s, %s" % (v(vT + 2), v(vT + 3)))
    asm("s_nop 1")
    asm("v_max_f32 %s, %s, %s" % (v(vM), v(vT + 2), v(vT + 3)))
    asm("v_sub_f32 %s, 0, %s" % (v(vNM), v(vM)))
    asm("v_sub_f32 %s, 0, %s" % (v(vNM + 1), v(vM)))
    PQD = opts.get("pqd", 5)
    sPQ = 7
    asm("s_mov_b32 %s, 0" % s(sPQ))
    def pq_loads():
        lds_wait(W_S1A, vT + 4, vT + 5)
        asm("buffer_load_dwordx4 %s, %s, %s, %s offen sc1" % (v(Q, 4), v(vLin), s(SWS, 4), s(sOffQA)))
        asm("buffer_load_dwordx4 %s, %s, %s, %s offen offset:1024 sc1" % (v(Q + 4, 4), v(vLin), s(SWS, 4), s(sOffQA)))
    for d in range(9):
        cur, nxt = VF[d & 1], VF[(d + 1) & 1]
        b = S + 16 * d
        if d > 0:
            asm("s_cmp_le_u32 %s, %d" % (s(sNT), d))
            asm("s_cbranch_scc1 %s_p2end" % N)
        for k in range(8):
            asm("v_pk_add_f32 %s, %s, %s" % (v(b + 2 * k, 2), v(b + 2 * k, 2), v(vNM, 2)))
        for k in range(16):
            asm("v_exp_f32 %s, %s" % (v(b + k), v(b + k)))
        asm("s_waitcnt lgkmcnt(0)")
        if d < 8: rdV(d + 1, nxt)
        for k in range(8):
            asm("v_cvt_pk_bf16_f32 %s, %s, %s" % (v(b + k), v(b + 2 * k), v(b + 2 * k + 1)))
        asm("s_nop 1")
        asm("v_mfma_f32_32x32x16_bf16 %s, %s, %s, %s" % (v(O, 16), v(cur, 4), v(b, 4), "0" if d == 0 else v(O, 16)))
        asm("v_mfma_f32_32x32x16_bf16 %s, %s, %s, %s" % (v(O, 16), v(cur + 4, 4), v(b + 4, 4), v(O, 16)))
        if d == SIGD: a_signal()
        if d == PQD:
            pq_loads()
            asm("s_mov_b32 %s, 1" % s(sPQ))
    asm.label("%s_p2end" % N)
    if PRIO: asm("s_setprio 0")
    if PQD > 0:
        asm("s_cmp_lg_u32 %s, 0" % s(sPQ))
        asm("s_cbranch_scc1 %s_pqdone" % N)
        pq_loads()
        asm.label("%s_pqdone" % N)
    st(7)
    def normalize(dst, eps):
        asm("v_mov_b32 %s, %s" % (v(vT), v(O + 8)))
        asm("v_mov_b32 %s, %s" % (v(vT + 1), v(O + 8)))
        asm("s_nop 1")
        asm("v_permlane32_swap_b32 %s, %s" % (v(vT), v(vT + 1)))
        asm("s_nop 1")
        if eps: asm("v_add_f32 %s, %s, %s" % (v(vT + 1), s(sEPS), v(vT + 1)))
        asm("v_rcp_f32 %s, %s" % (v(vT + 1), v(vT + 1)))
        asm("s_nop 0")
        for k in range(12): asm("v_mul_f32 %s, %s, %s" % (v(O + k), v(vT + 1), v(O + k)))
        for k in range(6): asm("v_cvt_pk_bf16_f32 %s, %s, %s" % (v(dst + k), v(O + 2 * k), v(O + 2 * k + 1)))
    def store_o(src, region):
        asm("s_add_u32 %s, %s, %d" % (s(sT0), s(sOffO), region))
        asm("buffer_store_dwordx4 %s, %s, %s, %s offen%s" % (v(src, 4), v(vOm), s(SWS, 4), s(sT0), SC))
        asm("buffer_store_dwordx2 %s, %s, %s, %s offen%s" % (v(src + 4, 2), v(vOr), s(SWS, 4), s(sT0), SC))
    asm("s_mov_b32 %s, %s" % (s(sEPS), fhex(1e-6)))
    asm("s_cmp_ge_u32 %s, 4" % s(sW))
    asm("s_cbranch_scc1 %s_hiwaves" % N)
    asm("s_lshl_b32 %s, %s, 7" % (s(sPL), s(sHH)))
    asm("s_add_u32 %s, %s, %d" % (s(sPL), s(sPL), F2))
    asm("s_cmp_lg_u32 %s, 0" % s(sW))
    asm("s_cbranch_scc1 %s_w123" % N)
    poll_issue(s(sPL), vT + 4, vL8, 8)
    asm("s_nop 7"); asm("s_nop 3")
    normalize(PB, False)
    poll(s(sPL), 8, vT + 4, vL8, preissued=True)
    lds_set(W_S2, vT + 4, vT + 5)
    asm("s_branch %s_w0123" % N)
    asm.label("%s_w123" % N)
    asm("s_nop 7"); asm("s_nop 3")
    normalize(PB, False)
    lds_wait(W_S2, vT + 4, vT + 5)
    asm.label("%s_w0123" % N)
    asm("s_lshl_b32 %s, %s, 1" % (s(sT0), s(sW)))
    asm("s_sub_u32 %s, %s, %s" % (s(sT0), s(sT0), s(sDQ)))
    asm("v_lshrrev_b32 %s, 5, %s" % (v(vT), v(vL)))
    asm("v_add_u32 %s, %s, %s" % (v(vT), s(sT0), v(vT)))
    asm("v_and_b32 %s, 31, %s" % (v(vT + 1), v(vL)))
    asm("v_lshlrev_b32 %s, 4, %s" % (v(vT + 1), v(vT + 1)))
    asm("v_lshl_add_u32 %s, %s, 9, %s" % (v(vT + 1), v(vT), v(vT + 1)))
    asm("v_cmp_ge_u32 vcc, 4, %s" % v(vT))
    asm("v_mov_b32 %s, 0x%x" % (v(vT + 2), OOB))
    asm("s_nop 0")
    asm("v_cndmask_b32 %s, %s, %s, vcc" % (v(vU), v(vT + 2), v(vT + 1)))
    asm("s_lshl_b32 %s, %s, 3" % (s(sT0), s(sHH)))
    asm("s_mul_i32 %s, %s, 3072" % (s(sT0), s(sT0)))
    asm("s_add_u32 %s, %s, %d" % (s(sT0), s(sT0), R_KVP))
    for r in range(8):
        asm("buffer_load_dwordx4 %s, %s, %s, %s offen sc1" % (v(S + 4 * r, 4), v(vU), s(SWS, 4), s(sT0)))
        if r < 7: asm("s_add_u32 %s, %s, 3072" % (s(sT0), s(sT0)))
    store_o(PB, R_OB)
    asm("s_waitcnt vmcnt(2)")
    for r in range(1, 8):
        for k in range(4):
            asm("v_add_f32 %s, %s, %s" % (v(S + k), v(S + k), v(S + 4 * r + k)))
    asm("v_cvt_pk_bf16_f32 %s, %s, %s" % (v(vT), v(S), v(S + 1)))
    asm("v_cvt_pk_bf16_f32 %s, %s, %s" % (v(vT + 1), v(S + 2), v(S + 3)))
    asm("s_lshr_b32 %s, %s, 1" % (s(sT0), s(sW)))
    asm("s_lshl_b32 %s, %s, 10" % (s(sT0), s(sT0)))
    asm("s_and_b32 %s, %s, 1" % (s(sT1), s(sW)))
    asm("s_lshl_b32 %s, %s, 3" % (s(sT1), s(sT1)))
    asm("s_add_u32 %s, %s, %s" % (s(sT0), s(sT0), s(sT1)))
    asm("s_add_u32 %s, %s, %d" % (s(sT0), s(sT0), L_KVT))
    asm("v_add_u32 %s, %s, %s" % (v(vU), s(sT0), v(vLin)))
    asm("ds_write_b64 %s, %s" % (v(vU), v(vT, 2)))
    asm("s_branch %s_join" % N)
    asm.label("%s_hiwaves" % N)
    asm("s_nop 7"); asm("s_nop 3")
    normalize(PB, False)
    store_o(PB, R_OB)
    asm.label("%s_join" % N)
    asm("s_waitcnt lgkmcnt(0)")
    asm("s_barrier")
    st(8)
    asm("v_add_u32 %s, 0x%x, %s" % (v(vU), L_KVT, v(vLin)))
    asm("ds_read_b128 %s, %s" % (v(F[0], 4), v(vU)))
    asm("ds_read_b128 %s, %s offset:1024" % (v(F[0] + 4, 4), v(vU)))
    sF3 = 69
    asm("s_lshl_b32 %s, %s, 5" % (s(sF3), s(sRB2)))
    asm("s_add_u32 %s, %s, %s" % (s(sF3), s(sF3), s(sHH)))
    asm("s_lshl_b32 %s, %s, 3" % (s(sF3), s(sF3)))
    asm("s_add_u32 %s, %s, %d" % (s(sF3), s(sF3), F3))
    asm("s_waitcnt vmcnt(2) lgkmcnt(0)")
    asm("v_mfma_f32_32x32x16_bf16 %s, %s, %s, 0" % (v(O, 16), v(F[0], 4), v(Q, 4)))
    asm("v_mfma_f32_32x32x16_bf16 %s, %s, %s, %s" % (v(O, 16), v(F[0] + 4, 4), v(Q + 4, 4), v(O, 16)))
    asm("s_nop 7"); asm("s_nop 3")
    normalize(PA, True)
    store_o(PA, R_OA)
    asm("s_add_u32 %s, %s, %d" % (s(sT1), s(sF3), 8 * 256))
    asm("s_waitcnt vmcnt(2)")
    release()
    lds_arrive(W_CNT3B, 8, vT + 6, vT + 4, s(sT1))
    asm("s_waitcnt vmcnt(0)")
    release()
    lds_arrive(W_CNT3A, 8, vT + 6, vT + 4, s(sF3))
    st(9)
    asm("s_cmp_ge_u32 %s, 4" % s(sW))
    asm("s_cbranch_scc1 %s_fin" % N)
    OF = 0; ACC3 = 160; WF = [200, 220]
    vOM, vOR, vWm, vWm2, vWr, vWr2 = 245, 246, 247, 248, 249, 250
    p3L, p3T, p3U, p3X = 251, 252, 253, 254
    vDW3 = 240
    sTB3, sOffO3, sOM = 44, 45, 46
    SOUT = SB_
    decode3()
    asm("s_load_dwordx2 s[4:5], s[0:1], 48")
    asm("s_lshl_b32 %s, %s, 2" % (s(sTB3), s(sRB3)))
    asm("s_add_u32 %s, %s, %s" % (s(sTB3), s(sTB3), s(sW)))
    lane(p3L)
    asm("v_lshlrev_b32 %s, 3, %s" % (v(p3X), v(p3L)))
    asm("s_lshl_b32 %s, %s, 3" % (s(sT0), s(sBR3)))
    asm("s_lshr_b32 %s, %s, 1" % (s(sT1), s(sRB3)))
    asm("s_add_u32 %s, %s, %s" % (s(sT0), s(sT0), s(sT1)))
    asm("s_lshl_b32 %s, %s, 8" % (s(sT0), s(sT0)))
    asm("s_add_u32 %s, %s, %d" % (s(sPL), s(sT0), F3))
    asm("v_lshrrev_b32 %s, 4, %s" % (v(p3T), v(p3L)))
    asm("v_and_b32 %s, 15, %s" % (v(p3U), v(p3L)))
    asm("v_lshrrev_b32 %s, 1, %s" % (v(vWm2), v(p3T)))
    asm("v_mul_u32_u24 %s, 1280, %s" % (v(vOM), v(vWm2)))
    asm("v_and_b32 %s, 1, %s" % (v(vWm2), v(p3T)))
    asm("v_lshl_add_u32 %s, %s, 9, %s" % (v(vOM), v(vWm2), v(vOM)))
    asm("v_lshl_add_u32 %s, %s, 4, %s" % (v(vOM), v(p3U), v(vOM)))
    asm("v_mul_u32_u24 %s, 1280, %s" % (v(vOR), v(p3T)))
    asm("v_lshl_add_u32 %s, %s, 3, %s" % (v(vOR), v(p3U), v(vOR)))
    asm("v_add_u32 %s, 1024, %s" % (v(vOR), v(vOR)))
    asm("v_bfe_u32 %s, %s, 2, 2" % (v(p3U), v(p3L)))
    asm("v_lshrrev_b32 %s, 1, %s" % (v(vWm2), v(p3T)))
    asm("v_mul_u32_u24 %s, 20, %s" % (v(vWm), v(vWm2)))
    asm("v_and_b32 %s, 1, %s" % (v(vWm2), v(p3T)))
    asm("v_lshl_add_u32 %s, %s, 2, %s" % (v(vWm), v(vWm2), v(vWm)))
    asm("v_add_u32 %s, %s, %s" % (v(vWm), v(vWm), v(p3U)))
    asm("v_mul_u32_u24 %s, 160, %s" % (v(vWm), v(vWm)))
    asm("v_mul_u32_u24 %s, 20, %s" % (v(vWr), v(p3T)))
    asm("v_add_u32 %s, %s, %s" % (v(vWr), v(vWr), v(p3U)))
    asm("v_add_u32 %s, 16, %s" % (v(vWr), v(vWr)))
    asm("v_mul_u32_u24 %s, 160, %s" % (v(vWr), v(vWr)))
    asm("v_and_b32 %s, 3, %s" % (v(vWm2), v(p3L)))
    asm("v_lshl_add_u32 %s, %s, 3, %s" % (v(vWm), v(vWm2), v(vWm)))
    asm("v_lshl_add_u32 %s, %s, 3, %s" % (v(vWr), v(vWm2), v(vWr)))
    asm("v_add_u32 %s, 51200, %s" % (v(vWm2), v(vWm)))
    asm("v_add_u32 %s, 51200, %s" % (v(vWr2), v(vWr)))
    asm("s_mul_i32 %s, %s, %d" % (s(sOffO3), s(sBR3), REG))
    asm("s_add_u32 %s, %s, %d" % (s(sOffO3), s(sOffO3), R_OA))
    asm("s_mul_i32 %s, %s, 40960" % (s(sT0), s(sTB3)))
    asm("s_add_u32 %s, %s, %s" % (s(sOffO3), s(sOffO3), s(sT0)))
    asm("s_waitcnt lgkmcnt(0)")
    srd(asm, SOUT, "s4", "s5", 2048 * 2560)
    asm("s_cmp_lg_u32 %s, 0" % s(sW))
    asm("s_cbranch_scc1 %s_p3w" % N)
    if opts.get("ppoll", 0): ppoll(s(sPL), 32, [vDW3, vDW3 + 2], p3X)
    else: poll(s(sPL), 32, vDW3, p3X)
    lds_set(W_S3, p3T, p3U)
    asm("s_branch %s_p3go" % N)
    asm.label("%s_p3w" % N)
    lds_wait(W_S3, vDW3, vDW3 + 1)
    asm.label("%s_p3go" % N)
    st(10)
    def oloads(sidx):
        if sidx < 16:
            asm("s_add_u32 %s, %s, %d" % (s(sOM), s(sOffO3), 2560 * sidx))
            for rt in range(2):
                asm("buffer_load_dwordx4 %s, %s, %s, %s offen offset:%d%s" % (v(OF + (sidx * 2 + rt) * 4, 4), v(vOM), s(SWS, 4), s(sOM), rt * 256, LSC3))
        else:
            a_ = sidx - 16
            for half in range(2):
                asm("s_add_u32 %s, %s, %d" % (s(sOM), s(sOffO3), a_ * 8 * 1280 + half * 5120))
                for rt in range(2):
                    asm("buffer_load_dwordx2 %s, %s, %s, %s offen offset:%d%s" % (v(OF + ((16 + a_) * 2 + rt) * 4 + 2 * half, 2), v(vOR), s(SWS, 4), s(sOM), rt * 128, LSC3))
    def cum(k): return 2 * (k + 1) if k < 16 else 32 + 4 * (k - 15)
    PD = opts.get("pd", 5)
    for k in range(PD): oloads(k)
    def wreads(step, dst):
        ops = []
        for ct in range(5):
            for a_ in range(2):
                if step < 16:
                    base = vWm if step < 8 else vWm2
                    off = (step & 7) * 6400 + a_ * 1280 + ct * 32
                else:
                    ap = step - 16
                    base = vWr if ap < 2 else vWr2
                    off = (ap & 1) * 25600 + a_ * 12800 + ct * 32
                ops.append(lambda ct=ct, a_=a_, base=base, off=off: asm("ds_read_b64_tr_b16 %s, %s offset:%d" % (v(dst + 4 * ct + 2 * a_, 2), v(base), off)))
        return ops
    if opts.get("p3st"): st(1)
    for f in wreads(0, WF[0]): f()
    for sidx in range(20):
        cur = WF[sidx & 1]
        nxt_ops = wreads(sidx + 1, WF[(sidx + 1) & 1]) if sidx < 19 else []
        vm = cum(min(sidx + PD - 1, 19)) - cum(sidx)
        asm("s_waitcnt vmcnt(%d) lgkmcnt(0)" % vm)
        if opts.get("p3st") and sidx in (0, 8, 16): st({0: 2, 8: 3, 16: 4}[sidx])
        m = 0
        for ct in range(5):
            for rt in range(2):
                acc = v(ACC3 + (rt * 5 + ct) * 4, 4)
                c = "0" if sidx == 0 else acc
                asm("v_mfma_f32_16x16x32_bf16 %s, %s, %s, %s" % (acc, v(cur + 4 * ct, 4), v(OF + (sidx * 2 + rt) * 4, 4), c))
                if m < 5 and nxt_ops:
                    nxt_ops[2 * m](); nxt_ops[2 * m + 1]()
                if m == 5 and sidx + PD < 20: oloads(sidx + PD)
                m += 1
    st(11)
    asm("v_and_b32 %s, 15, %s" % (v(p3U), v(p3L)))
    asm("v_mul_u32_u24 %s, 160, %s" % (v(p3U), v(p3U)))
    asm("v_lshrrev_b32 %s, 4, %s" % (v(p3T), v(p3L)))
    asm("v_lshl_add_u32 %s, %s, 3, %s" % (v(p3U), v(p3T), v(p3U)))
    asm("s_mul_i32 %s, %s, 5120" % (s(sT0), s(sW)))
    asm("s_add_u32 %s, %s, %d" % (s(sT0), s(sT0), L_OUT))
    asm("v_add_u32 %s, %s, %s" % (v(p3U), s(sT0), v(p3U)))
    asm("v_lshlrev_b32 %s, 4, %s" % (v(p3X), v(p3L)))
    asm("v_add_u32 %s, %s, %s" % (v(p3X), s(sT0), v(p3X)))
    asm("s_nop 3")
    for rt in range(2):
        for ct in range(5):
            b = ACC3 + (rt * 5 + ct) * 4
            t = OF + (rt * 5 + ct) * 2
            asm("v_cvt_pk_bf16_f32 %s, %s, %s" % (v(t), v(b), v(b + 1)))
            asm("v_cvt_pk_bf16_f32 %s, %s, %s" % (v(t + 1), v(b + 2), v(b + 3)))
            asm("ds_write_b64 %s, %s offset:%d" % (v(p3U), v(t, 2), rt * 2560 + ct * 32))
    asm("s_movk_i32 %s, 6554" % s(sT2))
    asm("s_movk_i32 %s, 2560" % s(sT3))
    for b in range(5):
        asm("v_add_u32 %s, %d, %s" % (v(p3T), 64 * b, v(p3L)))
        asm("v_mul_lo_u32 %s, %s, %s" % (v(vWm), v(p3T), s(sT2)))
        asm("v_lshrrev_b32 %s, 16, %s" % (v(vWm), v(vWm)))
        asm("v_mul_u32_u24 %s, 10, %s" % (v(vWr), v(vWm)))
        asm("v_sub_u32 %s, %s, %s" % (v(p3T), v(p3T), v(vWr)))
        asm("v_lshlrev_b32 %s, 4, %s" % (v(p3T), v(p3T)))
        asm("v_mad_u32_u24 %s, %s, %s, %s" % (v(vDW3 + b), v(vWm), s(sT3), v(p3T)))
    asm("s_mul_i32 %s, %s, %d" % (s(sT0), s(sTB3), 32 * 2560))
    asm("s_mul_i32 %s, %s, 1280" % (s(sT1), s(sBR3)))
    asm("s_add_u32 %s, %s, %s" % (s(sT0), s(sT0), s(sT1)))
    asm("s_mul_i32 %s, %s, 160" % (s(sT1), s(sCB3)))
    asm("s_add_u32 %s, %s, %s" % (s(sT0), s(sT0), s(sT1)))
    asm("s_waitcnt lgkmcnt(0)")
    for b in range(5):
        asm("ds_read_b128 %s, %s offset:%d" % (v(32 + 4 * b, 4), v(p3X), b * 1024))
    for b in range(5):
        asm("s_waitcnt lgkmcnt(%d)" % (4 - b))
        asm("buffer_store_dwordx4 %s, %s, %s, %s offen%s" % (v(32 + 4 * b, 4), v(vDW3 + b), s(SOUT, 4), s(sT0), {0: "", 1: " sc1", 2: " nt", 3: " sc0 sc1"}[opts.get("outsc", 0)]))
    asm.label("%s_fin" % N)
    if stamp:
        asm("s_waitcnt vmcnt(0)")
        st(12)
        asm("s_waitcnt lgkmcnt(0)")
        asm("s_load_dwordx2 s[4:5], s[0:1], 64")
        asm("s_waitcnt lgkmcnt(0)")
        asm("s_add_u32 s4, s4, %d" % (R_STAMP + (opts.get("wsoff", 0) << 20)))
        asm("s_addc_u32 s5, s5, 0")
        srd(asm, SA_, "s4", "s5", 1 << 20)
        asm("s_lshl_b32 %s, s2, 3" % s(sT0))
        asm("s_add_u32 %s, %s, %s" % (s(sT0), s(sT0), s(sW)))
        asm("s_lshl_b32 %s, %s, 7" % (s(sT0), s(sT0)))
        asm("v_mov_b32 v1, %s" % s(sT0))
        for i in range(13):
            asm("v_mov_b32 v2, %s" % s(STB + 2 * i))
            asm("v_mov_b32 v3, %s" % s(STB + 2 * i + 1))
            asm("buffer_store_dwordx2 v[2:3], v1, %s, 0 offen offset:%d" % (s(SA_, 4), 8 * i))
            asm("s_nop 1")
        asm("s_getreg_b32 s4, hwreg(HW_REG_HW_ID)")
        asm("v_mov_b32 v2, %s" % s(sXCC))
        asm("v_mov_b32 v3, s4")
        asm("buffer_store_dwordx2 v[2:3], v1, %s, 0 offen offset:%d" % (s(SA_, 4), 8 * 13))
    asm.label("%s_end" % N)
    asm("s_endpgm")
    return dict(name=N, vgpr=256, sgpr=100, grid=256, block=512, lds=LDS_BYTES)
HEADER = open("concat_heads__linear_attn_block__sliding_block__prompt.s.ref").read().split("; Override")[0]
def build(stamp=False, opts=None):
    body = A()
    i = gen(body, stamp=stamp, opts=opts)
    out = HEADER
    out += "; @launch grid=(%d,1,1) block=(%d,1,1) lds=%d\n" % (i["grid"], i["block"], i["lds"])
    out += '.amdgcn_target "amdgcn-amd-amdhsa--gfx950"\n.text\n'
    out += body.text()
    d = A()
    d('.section .rodata,"a"')
    kernel_desc(d, i["name"], i["vgpr"], i["sgpr"])
    out += d.text()
    return out
if __name__ == "__main__":
    import sys
    opts = {}
    for a_ in sys.argv[3:]:
        k, val = a_.split("="); opts[k] = int(val)
    open(sys.argv[1], "w").write(build(stamp=(len(sys.argv) > 2 and sys.argv[2] == "stamp"), opts=opts))
```

```python
from asmlib import *
import math
REG = 2621440
R_QA, R_KA, R_VA, R_QB, R_KB, R_VB, R_OA, R_OB, R_KVP, R_FLG = [i * REG for i in range(10)]
F1 = R_FLG
F2 = R_FLG + 65536
F3 = R_FLG + 65536 + 8192
WS_REC = R_FLG + 131072
R_STAMP = 10 * REG
LOG2E = 1.4426950408889634
QSCALE = LOG2E / math.sqrt(20.0)
BIG = -1.0e30
OOB = 0x40000000
L_WO, L_K, L_V, L_KVT = 0, 102400, 135168, 155648
L_OUT = L_K
L_SYNC = 157696
W_CNT1, W_S1, W_S1A, W_S2, W_CNT3B, W_CNT3A, W_S3, W_ISS, W_K, W_V = [L_SYNC + 4 * i for i in range(10)]
LDS_BYTES = 157696 + 64
SPIN_MAX = 0x40000
NAME = "concat_heads__linear_attn_block__sliding_block__prompt_kernel"
class G:
    pass
def gen(asm, stamp=False, name=NAME, opts=None):
    opts = opts or {}
    N = name
    D1 = opts.get("d1", 0)
    SC = " sc1" if D1 else ""
    SC = {0: SC, 1: " sc0 sc1", 2: " sc1 nt", 3: " sc0 sc1 nt"}[opts.get("scmode", 0)]
    REPL = opts.get("repl", 8)
    LSC3 = "" if opts.get("plain3") else " sc1"
    sW = 3
    SWS, SDBG = 8, 12
    sNON = 16
    sT0, sT1, sT2, sT3 = 18, 19, 20, 21
    sCNT, sPL = 22, 23
    SA_, SB_ = 24, 28
    sMASK = 32
    sPC = 34
    STB = 72
    sP8, sSLOT, sLOCAL, sXCC = 70, 71, 98, 99
    def st(k):
        if stamp:
            asm("s_memrealtime %s" % s(STB + 2 * k, 2))
    def lane(dst):
        asm("v_mbcnt_lo_u32_b32 %s, -1, 0" % v(dst))
        asm("v_mbcnt_hi_u32_b32 %s, -1, %s" % (v(dst), v(dst)))
    uid = [0]
    def lab(p):
        uid[0] += 1
        return "%s_%s%d" % (N, p, uid[0])
    def sync_issue(vd, vo):
        lane(vo)
        asm("s_lshl_b32 %s, %s, 3" % (s(sT0), s(sP8)))
        asm("s_add_u32 %s, %s, 64" % (s(sT0), s(sT0)))
        asm("v_cmp_eq_u32 vcc, 1, %s" % v(vo))
        asm("v_mov_b32 %s, %s" % (v(vd), s(sT0)))
        asm("v_mov_b32 %s, 0" % v(vo))
        asm("v_cndmask_b32 %s, %s, %s, vcc" % (v(vo), v(vo), v(vd)))
        asm("buffer_load_dwordx2 %s, %s, %s, 0 offen sc1" % (v(vd, 2), v(vo), s(SDBG, 4)))
    def get_sync(vd, vo, preissued=False):
        L, D = lab("non"), lab("nond")
        if not preissued: sync_issue(vd, vo)
        asm("s_mov_b32 %s, 0" % s(sCNT))
        asm.label(L)
        asm("s_waitcnt vmcnt(0)")
        asm("v_readlane_b32 %s, %s, 0" % (s(sNON), v(vd)))
        asm("v_readlane_b32 %s, %s, 0" % (s(sNON + 1), v(vd + 1)))
        asm("v_readlane_b32 %s, %s, 1" % (s(sPC), v(vd)))
        asm("v_readlane_b32 %s, %s, 1" % (s(sPC + 1), v(vd + 1)))
        asm("s_add_u32 %s, %s, 1" % (s(sCNT), s(sCNT)))
        asm("s_nop 2")
        asm("s_cmp_lg_u32 %s, 0" % s(sNON))
        asm("s_cbranch_scc1 %s" % D)
        asm("s_cmp_ge_u32 %s, 0x%x" % (s(sCNT), SPIN_MAX))
        asm("s_cbranch_scc1 %s" % D)
        asm("s_sleep 4")
        asm("buffer_load_dwordx2 %s, %s, %s, 0 offen sc1" % (v(vd, 2), v(vo), s(SDBG, 4)))
        asm("s_branch %s" % L)
        asm.label(D)
        asm("s_lshl_b32 %s, %s, 3" % (s(sT0), s(sXCC)))
        asm("s_lshl_b64 %s, 32, %s" % (s(sMASK, 2), s(sT0)))
        asm("s_cmp_eq_u64 %s, %s" % (s(sMASK, 2), s(sPC, 2)))
        asm("s_cselect_b32 %s, 1, 0" % s(sLOCAL))
        if opts.get("nolocal"): asm("s_mov_b32 %s, 0" % s(sLOCAL))
    def release():
        if D1: return
        D = lab("rel")
        asm("s_cmp_lg_u32 %s, 0" % s(sLOCAL))
        asm("s_cbranch_scc1 %s" % D)
        asm("buffer_wbl2 sc1")
        asm("s_waitcnt vmcnt(0)")
        asm.label(D)
    def lds_set(word, va, vd):
        asm("v_mov_b32 %s, 0x%x" % (v(va), word))
        asm("v_mov_b32 %s, 1" % v(vd))
        asm("ds_write_b32 %s, %s" % (v(va), v(vd)))
    def lds_wait(word, va, vd, atleast=1):
        L, D = lab("lw"), lab("lwd")
        asm("v_mov_b32 %s, 0x%x" % (v(va), word))
        asm("s_mov_b32 %s, 0" % s(sCNT))
        asm.label(L)
        asm("ds_read_b32 %s, %s" % (v(vd), v(va)))
        asm("s_waitcnt lgkmcnt(0)")
        asm("v_readfirstlane_b32 %s, %s" % (s(sT0), v(vd)))
        asm("s_add_u32 %s, %s, 1" % (s(sCNT), s(sCNT)))
        asm("s_nop 2")
        asm("s_cmp_ge_u32 %s, %d" % (s(sT0), atleast))
        asm("s_cbranch_scc1 %s" % D)
        asm("s_cmp_ge_u32 %s, 0x%x" % (s(sCNT), SPIN_MAX * 8))
        asm("s_cbranch_scc1 %s" % D)
        if opts.get("lsleep", 1): asm("s_sleep %d" % opts.get("lsleep", 1))
        asm("s_branch %s" % L)
        asm.label(D)
    def lds_arrive(word, n, va, vd, soff, replicas=1):
        D = lab("arr")
        asm("v_mov_b32 %s, 0x%x" % (v(va), word))
        asm("v_mov_b32 %s, 1" % v(vd))
        asm("s_mov_b64 exec, 1")
        asm("ds_add_rtn_u32 %s, %s, %s" % (v(vd), v(va), v(vd)))
        asm("s_waitcnt lgkmcnt(0)")
        asm("s_mov_b64 exec, -1")
        asm("v_readfirstlane_b32 %s, %s" % (s(sCNT), v(vd)))
        asm("s_nop 3")
        asm("s_cmp_lg_u32 %s, %d" % (s(sCNT), n - 1))
        asm("s_cbranch_scc1 %s" % D)
        flag_store(soff, vd, va, replicas)
        asm.label(D)
    def poll_issue(soff, vd, vo, n):
        asm("s_mov_b32 exec_lo, 0x%x" % ((1 << n) - 1))
        asm("s_mov_b32 exec_hi, 0")
        asm("buffer_load_dwordx2 %s, %s, %s, %s offen sc1" % (v(vd, 2), v(vo), s(SWS, 4), soff))
        asm("s_mov_b64 exec, -1")
    def poll(soff, n, vd, vo, preissued=False, lo=0, smask=None):
        L, D = lab("poll"), lab("polld")
        m = ((1 << n) - 1) & ~((1 << lo) - 1)
        asm("s_mov_b32 %s, %s" % (s(sMASK), smask if smask else "0x%x" % (m & 0xffffffff)))
        asm("s_mov_b32 %s, 0x%x" % (s(sMASK + 1), m >> 32))
        if not preissued: poll_issue(soff, vd, vo, n)
        asm("s_mov_b32 %s, 0" % s(sCNT))
        asm.label(L)
        asm("s_waitcnt vmcnt(0)")
        asm("v_cmp_eq_u32 vcc, %s, %s" % (s(sNON), v(vd)))
        asm("v_cmp_eq_u32 %s, %s, %s" % (s(sPC, 2), s(sNON + 1), v(vd + 1)))
        asm("s_add_u32 %s, %s, 1" % (s(sCNT), s(sCNT)))
        asm("s_nop 3")
        asm("s_and_b64 %s, %s, vcc" % (s(sPC, 2), s(sPC, 2)))
        asm("s_and_b64 %s, %s, %s" % (s(sPC, 2), s(sPC, 2), s(sMASK, 2)))
        asm("s_cmp_eq_u64 %s, %s" % (s(sPC, 2), s(sMASK, 2)))
        asm("s_cbranch_scc1 %s" % D)
        asm("s_cmp_ge_u32 %s, 0x%x" % (s(sCNT), SPIN_MAX))
        asm("s_cbranch_scc1 %s" % D)
        asm("s_sleep %d" % opts.get("sleep", 3))
        poll_issue(soff, vd, vo, n)
        asm("s_branch %s" % L)
        asm.label(D)
    def ppoll(soff, n, regs, vo, smask=None):
        k = len(regs)
        L, D = lab("pp"), lab("ppd")
        m = (1 << n) - 1
        asm("s_mov_b32 %s, %s" % (s(sMASK), smask if smask else "0x%x" % (m & 0xffffffff)))
        asm("s_mov_b32 %s, 0x%x" % (s(sMASK + 1), m >> 32))
        for i, r in enumerate(regs):
            poll_issue(soff, r, vo, n)
            if i + 1 < k: asm("s_sleep %d" % opts.get("pstag", 6))
        asm("s_mov_b32 %s, 0" % s(sCNT))
        asm.label(L)
        for i, r in enumerate(regs):
            asm("s_waitcnt vmcnt(%d)" % (k - 1))
            asm("v_cmp_eq_u32 vcc, %s, %s" % (s(sNON), v(r)))
            asm("v_cmp_eq_u32 %s, %s, %s" % (s(sPC, 2), s(sNON + 1), v(r + 1)))
            asm("s_add_u32 %s, %s, 1" % (s(sCNT), s(sCNT)))
            asm("s_nop 3")
            asm("s_and_b64 %s, %s, vcc" % (s(sPC, 2), s(sPC, 2)))
            asm("s_and_b64 %s, %s, %s" % (s(sPC, 2), s(sPC, 2), s(sMASK, 2)))
            asm("s_cmp_eq_u64 %s, %s" % (s(sPC, 2), s(sMASK, 2)))
            asm("s_cbranch_scc1 %s" % D)
            poll_issue(soff, r, vo, n)
        asm("s_cmp_lt_u32 %s, 0x%x" % (s(sCNT), SPIN_MAX * 3))
        asm("s_cbranch_scc1 %s" % L)
        asm.label(D)
    def flag_store(soff, vd, vo, replicas=1):
        if replicas > 1:
            lane(vo)
            asm("v_lshlrev_b32 %s, 11, %s" % (v(vo), v(vo)))
        else:
            asm("v_mov_b32 %s, 0" % v(vo))
        asm("v_mov_b32 %s, %s" % (v(vd), s(sNON)))
        asm("v_mov_b32 %s, %s" % (v(vd + 1), s(sNON + 1)))
        asm("s_mov_b64 exec, %d" % ((1 << replicas) - 1 if replicas <= 6 else -1) if replicas <= 6 else "s_mov_b32 exec_lo, 0x%x\n    s_mov_b32 exec_hi, 0" % ((1 << replicas) - 1))
        asm("buffer_store_dwordx2 %s, %s, %s, %s offen sc1" % (v(vd, 2), v(vo), s(SWS, 4), soff))
        asm("s_mov_b64 exec, -1")
    kernel_header(asm, N)
    asm("s_cmp_ge_u32 s2, 256")
    asm("s_cbranch_scc1 %s_end" % N)
    if stamp:
        for i in range(26): asm("s_mov_b32 %s, 0" % s(STB + i))
    st(0)
    asm("s_load_dwordx4 s[4:7], s[0:1], 56")
    asm("s_load_dwordx4 s[36:39], s[0:1], 0")
    asm("s_load_dwordx4 s[40:43], s[0:1], 24")
    asm("v_lshrrev_b32 v1, 6, v0")
    asm("s_nop 0")
    asm("v_readfirstlane_b32 %s, v1" % s(sW))
    sBR, sRB, sCB, sPART, sCBP, sW4, sWM, sWN = 44, 45, 46, 47, 48, 49, 50, 51
    asm("s_and_b32 %s, s2, 7" % s(sP8))
    asm("s_lshr_b32 %s, s2, 3" % s(sSLOT))
    asm("s_getreg_b32 %s, hwreg(HW_REG_XCC_ID, 0, 4)" % s(sXCC))
    asm("s_and_b32 %s, %s, 7" % (s(sXCC), s(sXCC)))
    if not D1:
        asm("s_cmp_ge_u32 %s, 15" % s(sSLOT))
        asm("s_cselect_b32 %s, 1, 0" % s(sBR))
        asm("s_cselect_b32 %s, 15, 0" % s(sT0))
        asm("s_sub_u32 %s, %s, %s" % (s(sCB), s(sSLOT), s(sT0)))
        asm("s_mov_b32 %s, %s" % (s(sRB), s(sP8)))
    else:
        asm("s_lshr_b32 %s, %s, 2" % (s(sBR), s(sP8)))
        asm("s_and_b32 %s, %s, 3" % (s(sT0), s(sP8)))
        asm("s_mul_i32 %s, %s, 30" % (s(sT0), s(sT0)))
        asm("s_add_u32 %s, %s, %s" % (s(sT0), s(sT0), s(sSLOT)))
        asm("s_cmp_ge_u32 %s, 60" % s(sT0))
        asm("s_cselect_b32 %s, 4, 0" % s(sT1))
        asm("s_cselect_b32 %s, 60, 0" % s(sT2))
        asm("s_sub_u32 %s, %s, %s" % (s(sT0), s(sT0), s(sT2)))
        asm("s_lshr_b32 %s, %s, 2" % (s(sCB), s(sT0)))
        asm("s_and_b32 %s, %s, 3" % (s(sT0), s(sT0)))
        asm("s_add_u32 %s, %s, %s" % (s(sRB), s(sT1), s(sT0)))
    asm("s_cmp_ge_u32 %s, 5" % s(sCB))
    asm("s_cselect_b32 %s, 1, 0" % s(sPART))
    asm("s_cmp_ge_u32 %s, 10" % s(sCB))
    asm("s_cselect_b32 %s, 2, %s" % (s(sPART), s(sPART)))
    asm("s_mul_i32 %s, %s, 5" % (s(sT0), s(sPART)))
    asm("s_sub_u32 %s, %s, %s" % (s(sCBP), s(sCB), s(sT0)))
    asm("s_and_b32 %s, %s, 3" % (s(sW4), s(sW)))
    asm("s_lshr_b32 %s, %s, 1" % (s(sWM), s(sW4)))
    asm("s_and_b32 %s, %s, 1" % (s(sWN), s(sW4)))
    asm("s_waitcnt lgkmcnt(0)")
    if opts.get("wsoff"):
        asm("s_add_u32 s6, s6, 0x%x" % (opts["wsoff"] << 20))
        asm("s_addc_u32 s7, s7, 0")
    srd(asm, SWS, "s6", "s7", WS_REC)
    srd(asm, SDBG, "s4", "s5", 256)
    asm("s_cmp_ge_u32 %s, 4" % s(sW))
    asm("s_cbranch_scc1 %s_p1h" % N)
    ACC = 0; FX = [128, 144]; FW = [160, 168]
    vXA, vWA = 176, 180
    vL, vT, vU, vV = 194, 195, 196, 197
    vSO = 198; TMP = 200; TE = 216; vN = 220
    sSTG, sDELTA, sRBUF, sNEG = 52, 53, 54, 55
    sTN, sGG, sSO = 56, 57, 58
    sC0, sC1 = 60, 62
    asm("s_or_b32 %s, s2, %s" % (s(sT0), s(sW)))
    asm("s_cmp_lg_u32 %s, 0" % s(sT0))
    asm("s_cbranch_scc1 %s_nonon" % N)
    asm("s_memrealtime %s" % s(sNON, 2))
    asm("s_waitcnt lgkmcnt(0)")
    asm("s_or_b32 %s, %s, 1" % (s(sNON), s(sNON)))
    asm("v_mov_b32 v2, %s" % s(sNON))
    asm("v_mov_b32 v3, %s" % s(sNON + 1))
    asm("v_mov_b32 v4, 0")
    asm("s_mov_b64 exec, 1")
    asm("buffer_store_dwordx2 v[2:3], v4, %s, 0 offen sc1" % s(SDBG, 4))
    asm("s_mov_b64 exec, -1")
    asm.label("%s_nonon" % N)
    asm("s_cmp_lg_u32 %s, 0" % s(sW))
    asm("s_cbranch_scc1 %s_noinit" % N)
    asm("s_lshl_b32 %s, %s, 3" % (s(sT0), s(sXCC)))
    asm("s_lshl_b64 s[4:5], 1, %s" % s(sT0))
    asm("s_lshl_b32 %s, %s, 3" % (s(sT0), s(sP8)))
    asm("s_add_u32 %s, %s, 64" % (s(sT0), s(sT0)))
    asm("v_mov_b32 v2, s4")
    asm("v_mov_b32 v3, s5")
    asm("v_mov_b32 v4, %s" % s(sT0))
    if not D1:
        asm("s_mov_b64 exec, 1")
        asm("buffer_atomic_add_x2 v[2:3], v4, %s, 0 offen" % s(SDBG, 4))
        asm("s_mov_b64 exec, -1")
    lane(5)
    asm("v_lshlrev_b32 v5, 2, v5")
    asm("v_add_u32 v5, 0x%x, v5" % L_SYNC)
    asm("v_mov_b32 v6, 0")
    asm("s_mov_b32 exec_lo, 0xffff")
    asm("s_mov_b32 exec_hi, 0")
    asm("ds_write_b32 v5, v6")
    asm("s_mov_b64 exec, -1")
    asm("s_waitcnt lgkmcnt(0)")
    if opts.get("ft", 0):
        lane(5)
        asm("s_lshl_b32 %s, %s, 2" % (s(sT0), s(sP8)))
        asm("s_and_b32 %s, %s, 3" % (s(sT1), s(sSLOT)))
        asm("s_add_u32 %s, %s, %s" % (s(sT0), s(sT0), s(sT1)))
        asm("s_lshl_b32 %s, %s, 7" % (s(sT0), s(sT0)))
        asm("s_add_u32 %s, %s, %d" % (s(sT0), s(sT0), F2))
        asm("s_lshr_b32 %s, %s, 2" % (s(sT1), s(sP8)))
        asm("s_lshl_b32 %s, %s, 3" % (s(sT1), s(sT1)))
        asm("s_and_b32 %s, %s, 3" % (s(sT2), s(sP8)))
        asm("s_lshl_b32 %s, %s, 1" % (s(sT2), s(sT2)))
        asm("s_lshr_b32 %s, %s, 4" % (s(sT3), s(sSLOT)))
        asm("s_add_u32 %s, %s, %s" % (s(sT2), s(sT2), s(sT3)))
        asm("s_add_u32 %s, %s, %s" % (s(sT1), s(sT1), s(sT2)))
        asm("s_lshl_b32 %s, %s, 8" % (s(sT1), s(sT1)))
        asm("s_add_u32 %s, %s, %d" % (s(sT1), s(sT1), F3 - 128))
        asm("v_lshlrev_b32 v6, 3, v5")
        asm("v_add_u32 v7, %s, v6" % s(sT0))
        asm("v_add_u32 v6, %s, v6" % s(sT1))
        asm("v_cmp_gt_u32 vcc, 16, v5")
        asm("s_nop 1")
        asm("v_cndmask_b32 v6, v6, v7, vcc")
        asm("s_mov_b32 exec_lo, -1")
        asm("s_mov_b32 exec_hi, 0xffff")
        asm("buffer_load_dword v223, v6, %s, 0 offen sc1" % s(SWS, 4))
        asm("s_mov_b64 exec, -1")
    asm.label("%s_noinit" % N)
    asm("s_cmp_ge_u32 %s, 30" % s(sSLOT))
    asm("s_cbranch_scc1 %s_p2c" % N)
    lane(vL)
    asm.c("X frag read addr")
    asm("v_and_b32 %s, 31, %s" % (v(vT), v(vL)))
    asm("s_lshl_b32 %s, %s, 7" % (s(sT0), s(sWM)))
    asm("v_add_u32 %s, %s, %s" % (v(vU), s(sT0), v(vT)))
    asm("v_lshlrev_b32 %s, 7, %s" % (v(vU), v(vU)))
    asm("v_bfe_u32 %s, %s, 1, 3" % (v(vT), v(vT)))
    asm("v_lshrrev_b32 %s, 5, %s" % (v(vV), v(vL)))
    for ks in range(4):
        asm("v_add_u32 %s, %d, %s" % (v(TMP), 2 * ks, v(vV)))
        asm("v_xor_b32 %s, %s, %s" % (v(TMP), v(TMP), v(vT)))
        asm("v_lshl_add_u32 %s, %s, 4, %s" % (v(vXA + ks), v(TMP), v(vU)))
    asm.c("W frag read addr")
    asm("v_bfe_u32 %s, %s, 2, 2" % (v(vT), v(vL)))
    asm("v_lshrrev_b32 %s, 5, %s" % (v(vU), v(vL)))
    asm("v_lshl_add_u32 %s, %s, 3, %s" % (v(vU), v(vU), v(vT)))
    asm("v_lshlrev_b32 %s, 8, %s" % (v(vU), v(vU)))
    asm("v_add_u32 %s, 32768, %s" % (v(vU), v(vU)))
    asm("v_and_b32 %s, 1, %s" % (v(vV), v(vL)))
    asm("v_lshl_add_u32 %s, %s, 3, %s" % (v(vU), v(vV), v(vU)))
    asm("v_bfe_u32 %s, %s, 4, 1" % (v(vV), v(vL)))
    asm("v_lshlrev_b32 %s, 1, %s" % (v(vV), v(vV)))
    asm("v_bfe_u32 %s, %s, 1, 1" % (v(TMP), v(vL)))
    asm("v_add_u32 %s, %s, %s" % (v(vV), v(vV), v(TMP)))
    asm("s_lshl_b32 %s, %s, 3" % (s(sT0), s(sWN)))
    asm("v_add_u32 %s, %s, %s" % (v(vV), s(sT0), v(vV)))
    asm("v_lshlrev_b32 %s, 2, %s" % (v(vT), v(vT)))
    for tn in range(2):
        asm("v_add_u32 %s, %d, %s" % (v(TMP), 4 * tn, v(vV)))
        asm("v_xor_b32 %s, %s, %s" % (v(TMP), v(TMP), v(vT)))
        asm("v_lshl_add_u32 %s, %s, 4, %s" % (v(vWA + tn), v(TMP), v(vU)))
    for i in range(128):
        asm("v_mov_b32 %s, 0" % v(ACC + i))
    asm("s_mul_i32 %s, %s, 3" % (s(sT0), s(sBR)))
    asm("s_add_u32 %s, %s, %s" % (s(sT0), s(sT0), s(sPART)))
    asm("s_mul_i32 %s, %s, %d" % (s(sT0), s(sT0), REG))
    asm("s_add_u32 s6, s6, %s" % s(sT0))
    asm("s_addc_u32 s7, s7, 0")
    SO = SA_
    srd(asm, SO, "s6", "s7", REG)
    def rdX(st_, tm, ks):
        asm("ds_read_b128 %s, %s offset:%d" % (v(FX[st_] + 4 * tm, 4), v(vXA + ks), tm * 4096))
    def rdW(st_, tn, a_, ks):
        asm("ds_read_b64_tr_b16 %s, %s offset:%d" % (v(FW[st_] + 4 * tn + 2 * a_, 2), v(vWA + tn), ks * 4096 + a_ * 1024))
    def reads(st_, ks):
        return [lambda: rdW(st_, 0, 0, ks), lambda: rdW(st_, 0, 1, ks), lambda: rdX(st_, 0, ks), lambda: rdX(st_, 1, ks),
                lambda: rdW(st_, 1, 0, ks), lambda: rdW(st_, 1, 1, ks), lambda: rdX(st_, 2, ks), lambda: rdX(st_, 3, ks)]
    MORD = [(0, 0), (1, 0), (0, 1), (1, 1), (2, 0), (2, 1), (3, 0), (3, 1)]
    def mfma(orient, st_, tm, tn):
        acc = v(ACC + (tm * 2 + tn) * 16, 16)
        x = v(FX[st_] + 4 * tm, 4); w = v(FW[st_] + 4 * tn, 4)
        if orient == "T": asm("v_mfma_f32_32x32x16_bf16 %s, %s, %s, %s" % (acc, w, x, acc))
        else: asm("v_mfma_f32_32x32x16_bf16 %s, %s, %s, %s" % (acc, x, w, acc))
    PF = opts.get("pf", 0)
    if PF:
        nst_ = 10 - PF
        per = (1024 * nst_ + 119) // 120
        assert per <= 64
        asm("s_lshl_b32 %s, %s, 2" % (s(sT0), s(sSLOT)))
        asm("s_add_u32 %s, %s, %s" % (s(sT0), s(sT0), s(sW4)))
        asm("s_mul_i32 %s, %s, %d" % (s(sT0), s(sT0), per))
        asm("v_add_u32 %s, %s, %s" % (v(vT), s(sT0), v(vL)))
        asm("v_lshrrev_b32 %s, 10, %s" % (v(vU), v(vT)))
        asm("v_and_b32 %s, 1023, %s" % (v(vV), v(vT)))
        asm("s_lshr_b32 %s, %s, 1" % (s(sT1), s(sP8)))
        asm("s_and_b32 %s, %s, 1" % (s(sT1), s(sT1)))
        asm("s_lshl_b32 %s, %s, 10" % (s(sT1), s(sT1)))
        asm("v_add_u32 %s, %s, %s" % (v(vV), s(sT1), v(vV)))
        asm("v_mul_u32_u24 %s, 1280, %s" % (v(vV), v(vV)))
        asm("v_lshl_add_u32 %s, %s, 7, %s" % (v(vV), v(vU), v(vV)))
        asm("v_add_u32 %s, %d, %s" % (v(vV), PF * 128, v(vV)))
        asm("v_lshrrev_b32 %s, 4, %s" % (v(vU), v(vT)))
        asm("v_add_u32 %s, %d, %s" % (v(vU), 64 * PF, v(vU)))
        asm("v_mul_u32_u24 %s, 3840, %s" % (v(vU), v(vU)))
        asm("v_and_b32 %s, 15, %s" % (v(TMP), v(vT)))
        asm("v_lshl_add_u32 %s, %s, 7, %s" % (v(vU), v(TMP), v(vU)))
        asm("s_and_b32 %s, %s, 1" % (s(sT1), s(sP8)))
        asm("s_mul_i32 %s, %s, %d" % (s(sT1), s(sT1), 7 * 256))
        asm("v_add_u32 %s, %s, %s" % (v(vU), s(sT1), v(vU)))
        asm("v_mov_b32 %s, 0x%x" % (v(TMP), OOB))
        asm("v_cmp_gt_u32 vcc, %d, %s" % (1024 * nst_, v(vT)))
        asm("v_cmp_gt_u32 %s, %d, %s" % (s(sPC, 2), per, v(vL)))
        asm("s_nop 1")
        asm("s_and_b64 vcc, vcc, %s" % s(sPC, 2))
        asm("s_nop 1")
        asm("v_cndmask_b32 %s, %s, %s, vcc" % (v(vV), v(TMP), v(vV)))
        asm("v_cndmask_b32 %s, %s, %s, vcc" % (v(vU), v(TMP), v(vU)))
        asm("s_cmp_eq_u32 %s, 0" % s(sBR))
        asm("s_cselect_b32 s4, s36, s40")
        asm("s_cselect_b32 s5, s37, s41")
        srd(asm, SB_, "s4", "s5", 2048 * 1280)
        asm("buffer_load_dword v223, %s, %s, 0 offen" % (v(vV), s(SB_, 4)))
        asm("s_cmp_eq_u32 %s, 0" % s(sBR))
        asm("s_cselect_b32 s4, s38, s42")
        asm("s_cselect_b32 s5, s39, s43")
        srd(asm, SB_, "s4", "s5", 640 * 3840)
        asm("buffer_load_dword v223, %s, %s, 0 offen" % (v(vU), s(SB_, 4)))
    asm("s_lshl_b32 %s, %s, 3" % (s(sT0), s(sRB)))
    asm("s_lshl_b32 %s, %s, 2" % (s(sT1), s(sWM)))
    asm("s_add_u32 %s, %s, %s" % (s(sT3), s(sT0), s(sT1)))
    sVAR = 59
    asm("s_mov_b32 %s, %s" % (s(sVAR), s(sPART)))
    asm("s_cmp_eq_u32 %s, 0" % s(sBR))
    asm("s_cbranch_scc1 %s_varok" % N)
    asm("s_cmp_eq_u32 %s, 2" % s(sPART))
    asm("s_cselect_b32 %s, 2, 3" % s(sVAR))
    asm.label("%s_varok" % N)
    asm("s_cmp_eq_u32 %s, 0" % s(sVAR))
    asm("s_cbranch_scc1 %s_adrT" % N)
    asm("s_cmp_eq_u32 %s, 3" % s(sVAR))
    asm("s_cbranch_scc1 %s_adrT" % N)
    asm("s_mul_i32 %s, %s, 40960" % (s(sT0), s(sT3)))
    asm("s_lshl_b32 %s, %s, 11" % (s(sT1), s(sCBP)))
    asm("s_add_u32 %s, %s, %s" % (s(sT0), s(sT0), s(sT1)))
    asm("s_lshl_b32 %s, %s, 10" % (s(sT1), s(sWN)))
    asm("s_add_u32 %s, %s, %s" % (s(sT0), s(sT0), s(sT1)))
    asm("v_lshrrev_b32 %s, 5, %s" % (v(vT), v(vL)))
    asm("v_mul_u32_u24 %s, 10240, %s" % (v(vT), v(vT)))
    asm("v_and_b32 %s, 31, %s" % (v(vU), v(vL)))
    asm("v_lshl_add_u32 %s, %s, 4, %s" % (v(vSO), v(vU), v(vT)))
    asm("v_add_u32 %s, %s, %s" % (v(vSO), s(sT0), v(vSO)))
    asm("s_movk_i32 %s, 512" % s(sTN))
    asm("s_movk_i32 %s, 20480" % s(sGG))
    asm("s_branch %s_adrok" % N)
    asm.label("%s_adrT" % N)
    asm("s_mul_i32 %s, %s, 40" % (s(sT0), s(sT3)))
    asm("s_lshl_b32 %s, %s, 3" % (s(sT1), s(sCBP)))
    asm("s_add_u32 %s, %s, %s" % (s(sT0), s(sT0), s(sT1)))
    asm("s_lshl_b32 %s, %s, 2" % (s(sT1), s(sWN)))
    asm("s_add_u32 %s, %s, %s" % (s(sT0), s(sT0), s(sT1)))
    asm("s_lshl_b32 %s, %s, 10" % (s(sT0), s(sT0)))
    asm("v_lshlrev_b32 %s, 4, %s" % (v(vSO), v(vL)))
    asm("v_add_u32 %s, %s, %s" % (v(vSO), s(sT0), v(vSO)))
    asm("s_movk_i32 %s, 2048" % s(sTN))
    asm("s_movk_i32 %s, 1024" % s(sGG))
    asm.label("%s_adrok" % N)
    asm("s_cmp_lt_u32 %s, 2" % s(sVAR))
    asm("s_cselect_b32 %s, %s, 1.0" % (s(sC0), fhex(LOG2E)))
    asm("s_cmp_eq_u32 %s, 3" % s(sVAR))
    asm("s_cbranch_scc0 %s_c0ok" % N)
    asm("s_cmp_eq_u32 %s, 0" % s(sPART))
    asm("s_cselect_b32 %s, %s, 1.0" % (s(sC0), fhex(QSCALE)))
    asm.label("%s_c0ok" % N)
    asm("s_mov_b32 %s, %s" % (s(sC0 + 1), s(sC0)))
    asm("s_mov_b32 %s, %s" % (s(sC1), fhex(1e-6)))
    asm("s_mov_b32 %s, 0" % s(sSTG))
    asm("s_mov_b32 %s, 0" % s(sRBUF))
    asm("s_mov_b32 %s, 0x%x" % (s(sNEG), (-2 * 49152) & 0xffffffff))
    asm("s_barrier")
    st(1)
    for f in reads(0, 0): f()
    asm("s_cmp_eq_u32 %s, 0" % s(sVAR))
    asm("s_cbranch_scc1 %s_loopT" % N)
    asm("s_cmp_eq_u32 %s, 3" % s(sVAR))
    asm("s_cbranch_scc0 %s_loopF" % N)
    def loop(orient):
        L = "%s_loop%s" % (N, orient)
        asm(".p2align 4")
        asm.label(L)
        for ks in range(4):
            st_ = ks & 1; nst_ = st_ ^ 1
            if ks == 3:
                asm("s_cbranch_scc1 %s_final%s" % (N, orient))
            asm("s_waitcnt lgkmcnt(0)")
            if ks < 3:
                rs = reads(nst_, ks + 1)
                for m in range(8):
                    mfma(orient, st_, *MORD[m])
                    if m < 4:
                        rs[2 * m](); rs[2 * m + 1]()
                    if ks == 2 and m == 4:
                        asm("s_add_u32 %s, %s, 1" % (s(sRBUF), s(sRBUF)))
                        asm("s_cmp_eq_u32 %s, 3" % s(sRBUF))
                        asm("s_cselect_b32 %s, 0, %s" % (s(sRBUF), s(sRBUF)))
                        asm("s_cselect_b32 %s, %s, 49152" % (s(sDELTA), s(sNEG)))
                    if ks == 2 and m == 5:
                        for k in range(3): asm("v_add_u32 %s, %s, %s" % (v(vXA + k), s(sDELTA), v(vXA + k)))
                    if ks == 2 and m == 6:
                        asm("v_add_u32 %s, %s, %s" % (v(vXA + 3), s(sDELTA), v(vXA + 3)))
                        for k in range(2): asm("v_add_u32 %s, %s, %s" % (v(vWA + k), s(sDELTA), v(vWA + k)))
                        asm("s_add_u32 %s, %s, 1" % (s(sSTG), s(sSTG)))
                        asm("s_cmp_eq_u32 %s, 9" % s(sSTG))
            else:
                mfma(orient, st_, *MORD[0])
                mfma(orient, st_, *MORD[1])
                asm("s_barrier")
                rs = reads(nst_, 0)
                mfma(orient, st_, *MORD[2])
                rs[0](); rs[1](); rs[2]()
                mfma(orient, st_, *MORD[3])
                rs[3](); rs[4](); rs[5]()
                mfma(orient, st_, *MORD[4])
                rs[6](); rs[7]()
                mfma(orient, st_, *MORD[5])
                mfma(orient, st_, *MORD[6])
                mfma(orient, st_, *MORD[7])
        asm("s_branch %s" % L)
    loop("T")
    loop("F")
    WALL = 224
    XS = [FX[0], FX[1]]
    def epi_lines(kind, q):
        tm, tn = q >> 1, q & 1
        b = ACC + q * 16
        tb_ = TMP + 8 * (q & 1)
        L_ = []
        if kind == "phi":
            for qq in range(4):
                r0 = b + 4 * qq
                L_.append("v_pk_mul_f32 %s, %s, %s" % (v(TE, 2), v(r0, 2), s(sC0, 2)))
                L_.append("v_pk_mul_f32 %s, %s, %s" % (v(TE + 2, 2), v(r0 + 2, 2), s(sC0, 2)))
                for k in range(4): L_.append("v_exp_f32_e64 %s, %s clamp" % (v(TE + k), v(TE + k)))
                for k in range(4): L_.append("v_max_f32 %s, %s, %s" % (v(r0 + k), s(sC1), v(r0 + k)))
                L_.append("v_pk_add_f32 %s, %s, %s" % (v(r0, 2), v(r0, 2), v(TE, 2)))
                L_.append("v_pk_add_f32 %s, %s, %s" % (v(r0 + 2, 2), v(r0 + 2, 2), v(TE + 2, 2)))
                L_.append("v_cvt_pk_bf16_f32 %s, %s, %s" % (v(tb_ + 2 * qq), v(r0), v(r0 + 1)))
                L_.append("v_cvt_pk_bf16_f32 %s, %s, %s" % (v(tb_ + 2 * qq + 1), v(r0 + 2), v(r0 + 3)))
        else:
            if kind == "scale":
                for p_ in range(8): L_.append("v_pk_mul_f32 %s, %s, %s" % (v(b + 2 * p_, 2), v(b + 2 * p_, 2), s(sC0, 2)))
            for p_ in range(8): L_.append("v_cvt_pk_bf16_f32 %s, %s, %s" % (v(tb_ + p_), v(b + 2 * p_), v(b + 2 * p_ + 1)))
        L_.append("s_mul_i32 %s, %s, %d" % (s(sSO), s(sTN), tn))
        if tm: L_.append("s_add_u32 %s, %s, %d" % (s(sSO), s(sSO), tm * 40960))
        L_.append("buffer_store_dwordx4 %s, %s, %s, %s offen%s" % (v(tb_, 4), v(vSO), s(SO, 4), s(sSO), SC))
        L_.append("s_add_u32 %s, %s, %s" % (s(sSO), s(sSO), s(sGG)))
        L_.append("buffer_store_dwordx4 %s, %s, %s, %s offen%s" % (v(tb_ + 4, 4), v(vSO), s(SO, 4), s(sSO), SC))
        return L_
    def final(orient, kind, label):
        asm.label(label)
        sync_issue(vN, vN + 2)
        asm("s_waitcnt lgkmcnt(0)")
        mfma(orient, 1, *MORD[0])
        mfma(orient, 1, *MORD[1])
        asm("s_barrier")
        rd = []
        for ks in range(4):
            rd.append("ds_read_b128 %s, %s" % (v(XS[0] + 4 * ks, 4), v(vXA + ks)))
            for a_ in range(2):
                rd.append("ds_read_b64_tr_b16 %s, %s offset:%d" % (v(WALL + ks * 4 + 2 * a_, 2), v(vWA), ks * 4096 + a_ * 1024))
        for ks in range(4):
            for a_ in range(2):
                rd.append("ds_read_b64_tr_b16 %s, %s offset:%d" % (v(WALL + (4 + ks) * 4 + 2 * a_, 2), v(vWA + 1), ks * 4096 + a_ * 1024))
        per = [4, 4, 3, 3, 3, 3]
        pos = 0
        for m in range(2, 8):
            mfma(orient, 1, *MORD[m])
            for k in range(per[m - 2]):
                asm(rd[pos]); pos += 1
        assert pos == len(rd) == 20
        for q in range(8):
            tm, tn = q >> 1, q & 1
            xs = XS[tm & 1]
            if q == 0:
                asm("s_waitcnt lgkmcnt(8)")
            elif q == 1:
                asm("s_waitcnt lgkmcnt(4)")
            elif tn == 0:
                asm("s_waitcnt lgkmcnt(0)")
                if tm == 3: asm("s_barrier")
            ep = epi_lines(kind, q - 2) if q >= 2 else []
            if q == 2: ep = ["s_nop 7"] + ep
            chunk = (len(ep) + 3) // 4
            acc = v(ACC + q * 16, 16)
            for ks in range(4):
                x = v(xs + 4 * ks, 4); w = v(WALL + (tn * 4 + ks) * 4, 4)
                if orient == "T": asm("v_mfma_f32_32x32x16_bf16 %s, %s, %s, %s" % (acc, w, x, acc))
                else: asm("v_mfma_f32_32x32x16_bf16 %s, %s, %s, %s" % (acc, x, w, acc))
                if tn == 0 and tm < 3:
                    asm("ds_read_b128 %s, %s offset:%d" % (v(XS[(tm + 1) & 1] + 4 * ks, 4), v(vXA + ks), (tm + 1) * 4096))
                for ln in ep[ks * chunk:(ks + 1) * chunk]: asm(ln)
        st(2)
        for ln in epi_lines(kind, 6): asm(ln)
        for ln in epi_lines(kind, 7): asm(ln)
        asm("s_branch %s_fin1" % N)
    asm.label("%s_finalT" % N)
    asm("s_cmp_eq_u32 %s, 0" % s(sVAR))
    asm("s_cbranch_scc0 %s_fin_ts" % N)
    final("T", "phi", "%s_fin_tp" % N)
    final("T", "scale", "%s_fin_ts" % N)
    asm.label("%s_finalF" % N)
    asm("s_cmp_eq_u32 %s, 1" % s(sVAR))
    asm("s_cbranch_scc0 %s_fin_fn" % N)
    final("F", "phi", "%s_fin_fp" % N)
    final("F", "plain", "%s_fin_fn" % N)
    asm.label("%s_fin1" % N)
    asm("v_mov_b32 %s, 0x%x" % (v(vT), W_ISS))
    asm("v_mov_b32 %s, 1" % v(vU))
    asm("s_mov_b64 exec, 1")
    asm("ds_add_u32 %s, %s" % (v(vT), v(vU)))
    asm("s_mov_b64 exec, -1")
    st(3)
    get_sync(vN, vN + 2, preissued=True)
    release()
    asm("s_lshl_b32 %s, %s, 3" % (s(sT1), s(sBR)))
    asm("s_add_u32 %s, %s, %s" % (s(sT1), s(sT1), s(sRB)))
    asm("s_lshl_b32 %s, %s, 4" % (s(sT1), s(sT1)))
    asm("s_add_u32 %s, %s, %s" % (s(sT1), s(sT1), s(sCB)))
    asm("s_lshl_b32 %s, %s, 3" % (s(sT1), s(sT1)))
    asm("s_add_u32 %s, %s, %d" % (s(sT1), s(sT1), F1))
    lds_arrive(W_CNT1, 4, vN + 2, vN, s(sT1), replicas=REPL)
    st(4)
    asm("s_branch %s_p2setup" % N)
    asm.label("%s_p2c" % N)
    asm("s_barrier")
    get_sync(220, 222)
    asm("s_branch %s_p2setup" % N)

    asm.label("%s_p1h" % N)
    hL, hT, hU, hV = 2, 3, 4, 5
    vDX, vDW, hTMP = 8, 16, 20
    sXOFF, sWOFF, sM0X, sM0W, sDBUF, sHS = 52, 53, 54, 55, 56, 57
    SX, SWD = SA_, SB_
    asm("s_cmp_lt_u32 %s, 30" % s(sSLOT))
    asm("s_cbranch_scc1 %s_p1h2" % N)
    asm("s_barrier")
    asm("s_branch %s_p2h" % N)
    asm.label("%s_p1h2" % N)
    lane(hL)
    asm("v_lshrrev_b32 %s, 3, %s" % (v(hT), v(hL)))
    asm("s_lshl_b32 %s, %s, 6" % (s(sT0), s(sW4)))
    asm("v_add_u32 %s, %s, %s" % (v(hT), s(sT0), v(hT)))
    asm("s_movk_i32 %s, 1280" % s(sT1))
    asm("v_mul_lo_u32 %s, %s, %s" % (v(hT), v(hT), s(sT1)))
    asm("v_lshrrev_b32 %s, 4, %s" % (v(hU), v(hL)))
    asm("v_and_b32 %s, 7, %s" % (v(hV), v(hL)))
    for par in range(2):
        if par == 1: asm("v_add_u32 %s, 4, %s" % (v(hU), v(hU)))
        asm("v_xor_b32 %s, %s, %s" % (v(hTMP + par), v(hV), v(hU)))
        asm("v_lshl_add_u32 %s, %s, 4, %s" % (v(hTMP + par), v(hTMP + par), v(hT)))
    for i in range(8):
        asm("v_add_u32 %s, %d, %s" % (v(vDX + i), i * 8 * 1280 - (i & 3) * 1024, v(hTMP + (i & 1))))
    asm("v_lshrrev_b32 %s, 4, %s" % (v(hU), v(hL)))
    asm("s_lshl_b32 %s, %s, 4" % (s(sT0), s(sW4)))
    asm("v_add_u32 %s, %s, %s" % (v(hT), s(sT0), v(hU)))
    asm("s_movk_i32 %s, 3840" % s(sT1))
    asm("v_mul_lo_u32 %s, %s, %s" % (v(hT), v(hT), s(sT1)))
    asm("v_lshlrev_b32 %s, 2, %s" % (v(hU), v(hU)))
    asm("v_and_b32 %s, 15, %s" % (v(hV), v(hL)))
    asm("v_xor_b32 %s, %s, %s" % (v(hV), v(hV), v(hU)))
    asm("v_lshl_add_u32 %s, %s, 4, %s" % (v(hT), v(hV), v(hT)))
    for i in range(4):
        asm("v_add_u32 %s, %d, %s" % (v(vDW + i), i * 4 * 3840 - i * 1024, v(hT)))
    asm("s_cmp_eq_u32 %s, 0" % s(sBR))
    asm("s_cselect_b32 s36, s36, s40")
    asm("s_cselect_b32 s37, s37, s41")
    asm("s_cselect_b32 s38, s38, s42")
    asm("s_cselect_b32 s39, s39, s43")
    asm("s_mul_i32 %s, %s, %d" % (s(sT0), s(sRB), 256 * 1280))
    asm("s_add_u32 s36, s36, %s" % s(sT0))
    asm("s_addc_u32 s37, s37, 0")
    asm("s_lshl_b32 %s, %s, 8" % (s(sT0), s(sCB)))
    asm("s_add_u32 s38, s38, %s" % s(sT0))
    asm("s_addc_u32 s39, s39, 0")
    asm("s_sub_u32 %s, %d, %s" % (s(sT1), 640 * 3840, s(sT0)))
    srd(asm, SX, "s36", "s37", 256 * 1280)
    srd(asm, SWD, "s38", "s39", s(sT1))
    def dma_stage():
        asm("s_lshl_b32 %s, %s, 13" % (s(sT0), s(sW4)))
        asm("s_add_u32 %s, %s, %s" % (s(sM0X), s(sDBUF), s(sT0)))
        asm("s_lshl_b32 %s, %s, 12" % (s(sT0), s(sW4)))
        asm("s_add_u32 %s, %s, %s" % (s(sT0), s(sT0), s(sDBUF)))
        asm("s_add_u32 %s, %s, 32768" % (s(sM0W), s(sT0)))
        for idx in range(8):
            if idx == 0:
                asm("s_mov_b32 m0, %s" % s(sM0X)); asm("s_nop 0")
            if idx == 4:
                asm("s_add_u32 m0, %s, 4096" % s(sM0X)); asm("s_nop 0")
            asm("buffer_load_dwordx4 %s, %s, %s offen offset:%d lds" % (v(vDX + idx), s(SX, 4), s(sXOFF), (idx & 3) * 1024))
        asm("s_mov_b32 m0, %s" % s(sM0W)); asm("s_nop 0")
        for j in range(4):
            asm("buffer_load_dwordx4 %s, %s, %s offen offset:%d lds" % (v(vDW + j), s(SWD, 4), s(sWOFF), j * 1024))
        asm("s_add_u32 %s, %s, 128" % (s(sXOFF), s(sXOFF)))
        asm("s_add_u32 %s, %s, %d" % (s(sWOFF), s(sWOFF), 64 * 3840))
        asm("s_add_u32 %s, %s, 49152" % (s(sDBUF), s(sDBUF)))
        asm("s_cmp_ge_u32 %s, %d" % (s(sDBUF), 3 * 49152))
        asm("s_cselect_b32 %s, 0, %s" % (s(sDBUF), s(sDBUF)))
    WARM = opts.get("warm", 3)
    if WARM:
        asm("s_load_dwordx2 s[4:5], s[0:1], 16")
        asm("s_load_dwordx2 s[6:7], s[0:1], 40")
        asm("s_lshl_b32 s58, %s, 2" % s(sSLOT))
        asm("s_add_u32 s58, s58, %s" % s(sW4))
        asm("s_mul_i32 s58, s58, %d" % (54 * 128))
        asm("v_lshlrev_b32 v6, 7, %s" % v(hL))
    asm("s_mov_b32 %s, 0" % s(sXOFF))
    asm("s_mov_b32 %s, 0" % s(sWOFF))
    asm("s_mov_b32 %s, 0" % s(sDBUF))
    asm("s_mov_b32 %s, 0" % s(sHS))
    pro = opts.get("pro", 2)
    Lp = "%s_hpro" % N
    asm.label(Lp)
    dma_stage()
    asm("s_add_u32 %s, %s, 1" % (s(sHS), s(sHS)))
    asm("s_cmp_eq_u32 %s, %d" % (s(sHS), pro))
    asm("s_cbranch_scc0 %s_hpro_n" % N)
    st(3)
    asm("s_waitcnt vmcnt(%d)" % (12 * (pro - 1)))
    st(1)
    asm("s_barrier")
    asm.label("%s_hpro_n" % N)
    asm("s_cmp_lt_u32 %s, 3" % s(sHS))
    asm("s_cbranch_scc1 %s" % Lp)
    asm("s_mov_b32 %s, 0" % s(sHS))
    Lh = "%s_hloop" % N
    asm.label(Lh)
    asm("s_cmp_lt_u32 %s, 8" % s(sHS))
    asm("s_cbranch_scc1 %s_hw12" % N)
    asm("s_waitcnt vmcnt(0)")
    asm("s_branch %s_hw" % N)
    asm.label("%s_hw12" % N)
    asm("s_waitcnt vmcnt(12)")
    asm.label("%s_hw" % N)
    asm("s_barrier")
    asm("s_cmp_lt_u32 %s, 7" % s(sHS))
    asm("s_cbranch_scc0 %s_hnodma" % N)
    dma_stage()
    if WARM:
        asm("s_cmp_eq_u32 %s, %d" % (s(sHS), WARM - 1))
        asm("s_cbranch_scc0 %s_hnodma" % N)
        asm("s_waitcnt lgkmcnt(0)")
        asm("s_cmp_lt_u32 %s, 4" % s(sP8))
        asm("s_cselect_b32 s4, s4, s6")
        asm("s_cselect_b32 s5, s5, s7")
        srd(asm, 60, "s4", "s5", 640 * 1280)
        asm("s_mov_b32 exec_lo, -1")
        asm("s_mov_b32 exec_hi, 0x3fffff")
        asm("buffer_load_dword v7, v6, s[60:63], s58 offen")
        asm("s_mov_b64 exec, -1")
        if opts.get("ft", 0):
            asm("s_cmp_eq_u32 %s, 0" % s(sW4))
            asm("s_cbranch_scc0 %s_hnodma" % N)
            asm("s_lshl_b32 %s, %s, 2" % (s(sT0), s(sP8)))
            asm("s_and_b32 %s, %s, 3" % (s(sT1), s(sSLOT)))
            asm("s_add_u32 %s, %s, %s" % (s(sT0), s(sT0), s(sT1)))
            asm("s_and_b32 %s, %s, %d" % (s(sT0), s(sT0) if opts.get("repl", 8) > 8 else s(sP8), opts.get("repl", 8) - 1))
            asm("s_lshl_b32 %s, %s, 11" % (s(sT0), s(sT0)))
            asm("s_add_u32 %s, %s, %d" % (s(sT0), s(sT0), F1))
            asm("s_lshr_b32 %s, %s, 2" % (s(sT1), s(sSLOT)))
            asm("s_lshl_b32 %s, %s, 7" % (s(sT1), s(sT1)))
            asm("s_add_u32 %s, %s, %s" % (s(sT0), s(sT0), s(sT1)))
            asm("v_lshlrev_b32 v23, 3, %s" % v(hL))
            asm("v_add_u32 v22, %s, v23" % s(sT0))
            asm("v_subrev_u32 v22, 256, v22")
            asm("s_add_u32 %s, %s, %d" % (s(sT0), s(sT0), 7 * 128))
            asm("v_add_u32 v23, %s, v23" % s(sT0))
            asm("v_cmp_gt_u32 vcc, 32, %s" % v(hL))
            asm("s_nop 1")
            asm("v_cndmask_b32 v23, v22, v23, vcc")
            asm("s_mov_b32 exec_lo, -1")
            asm("s_mov_b32 exec_hi, 0xffff")
            asm("buffer_load_dword v24, v23, %s, 0 offen sc1" % s(SWS, 4))
            asm("s_mov_b64 exec, -1")
    asm.label("%s_hnodma" % N)
    asm("s_add_u32 %s, %s, 1" % (s(sHS), s(sHS)))
    asm("s_cmp_lt_u32 %s, 10" % s(sHS))
    asm("s_cbranch_scc1 %s" % Lh)
    asm.label("%s_p2h" % N)
    st(2)
    sBR3, sRB3, sCB3 = 64, 65, 66
    def decode3():
        if not D1:
            asm("s_lshr_b32 %s, %s, 4" % (s(sBR3), s(sSLOT)))
            asm("s_bfe_u32 %s, %s, 0x10003" % (s(sRB3), s(sSLOT)))
            asm("s_lshl_b32 %s, %s, 1" % (s(sT0), s(sP8)))
            asm("s_add_u32 %s, %s, %s" % (s(sRB3), s(sRB3), s(sT0)))
            asm("s_and_b32 %s, %s, 7" % (s(sCB3), s(sSLOT)))
        else:
            asm("s_lshr_b32 %s, %s, 2" % (s(sBR3), s(sP8)))
            asm("s_and_b32 %s, %s, 3" % (s(sT0), s(sP8)))
            asm("s_lshl_b32 %s, %s, 2" % (s(sT0), s(sT0)))
            asm("s_lshr_b32 %s, %s, 3" % (s(sRB3), s(sSLOT)))
            asm("s_add_u32 %s, %s, %s" % (s(sRB3), s(sRB3), s(sT0)))
            asm("s_and_b32 %s, %s, 7" % (s(sCB3), s(sSLOT)))
    get_sync(220, 222)
    sHH, sRB2, sG0, sDQ, sTB, sNT = 44, 45, 46, 47, 48, 49
    sMSK, sM40 = 50, 52
    sP = 36
    sQM = 54
    sOffO, sOffQA, sBIG, sEPS = 62, 63, 67, 68
    S = 0; O = 144; Q = 160; F = [168, 176]; CM8 = 184; CM0 = 200; VF = [184, 192]
    vM, vNM = 216, 218
    vT = 220
    vLin, vKa, vVa, vL = 228, 229, 230, 231
    vOm, vOr, vFo, vU = 232, 233, 234, 235
    PB = 236
    PA = 168
    vL8 = 242
    AW = 4
    asm.label("%s_p2setup" % N)
    if not D1:
        asm("s_mov_b32 %s, %s" % (s(sHH), s(sSLOT)))
        asm("s_mov_b32 %s, %s" % (s(sRB2), s(sP8)))
    else:
        asm("s_lshl_b32 %s, %s, 2" % (s(sT0), s(sP8)))
        asm("s_and_b32 %s, %s, 3" % (s(sHH), s(sSLOT)))
        asm("s_add_u32 %s, %s, %s" % (s(sHH), s(sHH), s(sT0)))
        asm("s_lshr_b32 %s, %s, 2" % (s(sRB2), s(sSLOT)))
    asm("s_mul_i32 %s, %s, 5" % (s(sT0), s(sHH)))
    asm("s_lshr_b32 %s, %s, 2" % (s(sG0), s(sT0)))
    asm("s_and_b32 %s, %s, 3" % (s(sDQ), s(sT0)))
    asm("s_lshl_b32 %s, %s, 3" % (s(sTB), s(sRB2)))
    asm("s_add_u32 %s, %s, %s" % (s(sTB), s(sTB), s(sW)))
    asm("s_add_u32 %s, %s, 1" % (s(sNT), s(sTB)))
    asm("s_min_u32 %s, %s, 9" % (s(sNT), s(sNT)))
    asm("s_mov_b32 %s, 0x000fffff" % s(sMSK)); asm("s_mov_b32 %s, 0x000fffff" % s(sMSK + 1))
    asm("s_mov_b32 %s, -1" % s(sM40)); asm("s_mov_b32 %s, 0xff" % s(sM40 + 1))
    lane(vL)
    asm("v_lshlrev_b32 %s, 3, %s" % (v(vL8), v(vL)))
    asm("v_lshlrev_b32 %s, 4, %s" % (v(vLin), v(vL)))
    asm("s_mov_b32 %s, %s" % (s(sBIG), fhex(BIG)))
    asm("v_and_b32 %s, 31, %s" % (v(vU), v(vL)))
    asm("v_lshrrev_b32 %s, 5, %s" % (v(vT + 4), v(vL)))
    asm("v_lshlrev_b32 %s, 2, %s" % (v(vT + 4), v(vT + 4)))
    asm("v_sub_u32 %s, %s, %s" % (v(vU), v(vU), v(vT + 4)))
    asm("v_mov_b32 %s, %s" % (v(vT + 5), s(sBIG)))
    asm("v_mov_b32 %s, 0" % v(vT + 6))
    for r0 in range(0, 16, 4):
        for k in range(4):
            r = r0 + k
            asm("v_cmp_le_i32 %s, %d, %s" % (s(sP + 2 * k, 2), 8 * (r >> 2) + (r & 3), v(vU)))
        asm("s_nop 1")
        for k in range(4):
            r = r0 + k
            asm("v_cndmask_b32 %s, %s, %s, %s" % (v(CM8 + r), v(vT + 5), v(vT + 6), s(sP + 2 * k, 2)))
            asm("v_cndmask_b32 %s, %s, %s, %s" % (v(CM0 + r), v(vT + 6), v(vT + 5), s(sP + 2 * k, 2)))
    for gg in range(2):
        for p in range(2):
            k = gg * 2 + p
            for h in range(2):
                asm("s_sub_u32 %s, %d, %s" % (s(sT0), 4 * gg + 2 * p + h, s(sDQ)))
                asm("s_cmp_le_u32 %s, 4" % s(sT0))
                asm("s_cselect_b32 %s, -1, 0" % s(sQM + 2 * k + h))
    asm("s_lshl_b32 %s, %s, 11" % (s(sT0), s(sW)))
    asm("s_add_u32 %s, %s, %d" % (s(sT0), s(sT0), L_K))
    asm("v_add_u32 %s, %s, %s" % (v(vKa), s(sT0), v(vLin)))
    asm("v_lshrrev_b32 %s, 5, %s" % (v(vT), v(vL)))
    asm("v_mul_u32_u24 %s, 20, %s" % (v(vT), v(vT)))
    asm("v_and_b32 %s, 31, %s" % (v(vU), v(vL)))
    asm("v_add_u32 %s, %s, %s" % (v(vT), v(vT), v(vU)))
    asm("v_lshlrev_b32 %s, 4, %s" % (v(vT), v(vT)))
    asm("s_mul_i32 %s, %s, 1280" % (s(sT0), s(sW)))
    asm("s_add_u32 %s, %s, %d" % (s(sT0), s(sT0), L_V))
    asm("v_add_u32 %s, %s, %s" % (v(vVa), s(sT0), v(vT)))
    asm("s_lshl_b32 %s, %s, 5" % (s(sT0), s(sTB)))
    asm("s_add_u32 %s, %s, %s" % (s(sT0), s(sT0), s(sHH)))
    asm("s_mul_i32 %s, %s, 1280" % (s(sOffO), s(sT0)))
    asm("v_mov_b32 %s, %s" % (v(vOm), v(vLin)))
    asm("v_add_u32 %s, 1024, %s" % (v(vOr), v(vL8)))
    asm("v_mov_b32 %s, 0x%x" % (v(vT + 4), OOB))
    asm("v_cmp_gt_u32 vcc, 32, %s" % v(vL))
    asm("s_nop 1")
    asm("v_cndmask_b32 %s, %s, %s, vcc" % (v(vOr), v(vT + 4), v(vOr)))
    asm("s_mul_i32 %s, %s, 40" % (s(sT2), s(sTB)))
    asm("s_add_u32 %s, %s, %s" % (s(sT2), s(sT2), s(sG0)))
    asm("s_lshl_b32 %s, %s, 10" % (s(sT2), s(sT2)))
    asm("s_add_u32 %s, %s, %d" % (s(sOffQA), s(sT2), R_QA))
    def q_loads():
        asm("s_add_u32 %s, %s, %d" % (s(sT3), s(sOffQA), R_QB - R_QA))
        asm("buffer_load_dwordx4 %s, %s, %s, %s offen sc1" % (v(Q, 4), v(vLin), s(SWS, 4), s(sT3)))
        asm("buffer_load_dwordx4 %s, %s, %s, %s offen offset:1024 sc1" % (v(Q + 4, 4), v(vLin), s(SWS, 4), s(sT3)))
    FINE = opts.get("fine", 1)
    def tile_masks():
        asm("s_lshr_b32 %s, %s, 3" % (s(sT1), s(sG0)))
        asm("s_lshl_b32 %s, 1, %s" % (s(sT1), s(sT1)))
        asm("s_add_u32 %s, %s, 1" % (s(sT2), s(sG0)))
        asm("s_lshr_b32 %s, %s, 3" % (s(sT2), s(sT2)))
        asm("s_lshl_b32 %s, 1, %s" % (s(sT2), s(sT2)))
        asm("s_or_b32 %s, %s, %s" % (s(sT1), s(sT1), s(sT2)))
        asm("s_mul_i32 %s, %s, 20" % (s(sT3), s(sHH)))
        asm("s_lshr_b32 %s, %s, 7" % (s(sT2), s(sT3)))
        asm("s_lshl_b32 %s, 1, %s" % (s(sT2), s(sT2)))
        asm("s_add_u32 %s, %s, 19" % (s(sT3), s(sT3)))
        asm("s_lshr_b32 %s, %s, 7" % (s(sT3), s(sT3)))
        asm("s_lshl_b32 %s, 1, %s" % (s(sT3), s(sT3)))
        asm("s_or_b32 %s, %s, %s" % (s(sT2), s(sT2), s(sT3)))
    def own_tile_wait():
        D = lab("otw")
        asm("s_cmp_ge_u32 %s, 30" % s(sSLOT))
        asm("s_cbranch_scc1 %s" % D)
        lds_wait(W_CNT1, vT, vT + 1, atleast=4)
        asm.label(D)
    def lds_inc(word):
        asm("v_mov_b32 %s, 0x%x" % (v(vT), word))
        asm("v_mov_b32 %s, 1" % v(vT + 1))
        asm("s_mov_b64 exec, 1")
        asm("ds_add_u32 %s, %s" % (v(vT), v(vT + 1)))
        asm("s_mov_b64 exec, -1")
    asm("s_cmp_eq_u32 %s, %d" % (s(sW), AW))
    asm("s_cbranch_scc1 %s_aearly" % N)
    asm("s_cmp_eq_u32 %s, 5" % s(sW))
    asm("s_cbranch_scc1 %s_w5" % N)
    asm("s_cmp_ge_u32 %s, 6" % s(sW))
    asm("s_cbranch_scc1 %s_w67" % N)
    sTK, sKO, sLK, sIk = 4, 5, 6, 7
    lds_wait(W_S1, vT, vT + 1)
    st(4) if opts.get("kvst") else None
    asm("s_lshl_b32 %s, %s, 2" % (s(sIk), s(sW)))
    asm("s_cmp_eq_u32 %s, 0" % s(sRB2))
    asm("s_cselect_b32 %s, 8, 0" % s(sT0))
    asm("s_cmp_lt_u32 %s, %s" % (s(sIk), s(sT0)))
    asm("s_cbranch_scc1 %s_nok" % N)
    asm("s_lshl_b32 %s, %s, 3" % (s(sTK), s(sRB2)))
    asm("s_add_u32 %s, %s, %s" % (s(sTK), s(sTK), s(sIk)))
    asm("s_sub_u32 %s, %s, 8" % (s(sTK), s(sTK)))
    asm("s_mul_i32 %s, %s, 40" % (s(sKO), s(sTK)))
    asm("s_add_u32 %s, %s, %s" % (s(sKO), s(sKO), s(sG0)))
    asm("s_lshl_b32 %s, %s, 10" % (s(sKO), s(sKO)))
    asm("s_add_u32 %s, %s, %d" % (s(sKO), s(sKO), R_KB))
    asm("s_lshl_b32 %s, %s, 11" % (s(sLK), s(sIk)))
    asm("s_add_u32 %s, %s, %d" % (s(sLK), s(sLK), L_K))
    for ii in range(4):
        asm("s_add_u32 m0, %s, %d" % (s(sLK), ii * 2048))
        asm("s_nop 0")
        asm("buffer_load_dwordx4 %s, %s, %s offen sc1 lds" % (v(vLin), s(SWS, 4), s(sKO)))
        asm("buffer_load_dwordx4 %s, %s, %s offen offset:1024 sc1 lds" % (v(vLin), s(SWS, 4), s(sKO)))
        if ii < 3: asm("s_add_u32 %s, %s, 40960" % (s(sKO), s(sKO)))
    asm.label("%s_nok" % N)
    q_loads()
    asm("s_waitcnt vmcnt(0)")
    lds_inc(W_K)
    asm("s_branch %s_kwait" % N)
    asm.label("%s_w67" % N)
    vDWO = 243
    sDA, sDM = 4, 5
    SWO = SA_
    decode3()
    asm("s_load_dwordx2 s[4:5], s[0:1], 16")
    asm("s_load_dwordx2 s[6:7], s[0:1], 40")
    asm("s_movk_i32 %s, 6554" % s(sT2))
    asm("s_movk_i32 %s, 1280" % s(sT3))
    for b in range(5):
        asm("v_add_u32 %s, %d, %s" % (v(vT), 64 * b, v(vL)))
        asm("v_mul_lo_u32 %s, %s, %s" % (v(vT + 1), v(vT), s(sT2)))
        asm("v_lshrrev_b32 %s, 16, %s" % (v(vT + 1), v(vT + 1)))
        asm("v_mul_u32_u24 %s, 10, %s" % (v(vT + 2), v(vT + 1)))
        asm("v_sub_u32 %s, %s, %s" % (v(vT), v(vT), v(vT + 2)))
        asm("v_lshlrev_b32 %s, 4, %s" % (v(vT), v(vT)))
        asm("v_mad_u32_u24 %s, %s, %s, %s" % (v(vDWO + b), v(vT + 1), s(sT3), v(vT)))
        if 0 < b < 4: asm("v_subrev_u32 %s, %d, %s" % (v(vDWO + b), b * 1024, v(vDWO + b)))
    asm("s_waitcnt lgkmcnt(0)")
    asm("s_cmp_eq_u32 %s, 0" % s(sBR3))
    asm("s_cselect_b32 s4, s4, s6")
    asm("s_cselect_b32 s5, s5, s7")
    asm("s_mul_i32 %s, %s, 160" % (s(sT0), s(sCB3)))
    asm("s_add_u32 s4, s4, %s" % s(sT0))
    asm("s_addc_u32 s5, s5, 0")
    asm("s_sub_u32 %s, %d, %s" % (s(sT1), 640 * 1280, s(sT0)))
    srd(asm, SWO, "s4", "s5", s(sT1))
    asm("s_and_b32 %s, %s, 1" % (s(sT0), s(sW)))
    asm("s_mul_i32 %s, %s, %d" % (s(sDA), s(sT0), 32 * 1280))
    asm("s_mul_i32 %s, %s, 5120" % (s(sDM), s(sT0)))
    def wo_group():
        asm("s_mov_b32 m0, %s" % s(sDM)); asm("s_nop 0")
        asm("buffer_load_dwordx4 %s, %s, %s offen lds" % (v(vDWO), s(SWO, 4), s(sDA)))
        for b in range(1, 4):
            asm("buffer_load_dwordx4 %s, %s, %s offen offset:%d lds" % (v(vDWO + b), s(SWO, 4), s(sDA), b * 1024))
        asm("s_add_u32 m0, %s, 4096" % s(sDM)); asm("s_nop 0")
        asm("buffer_load_dwordx4 %s, %s, %s offen lds" % (v(vDWO + 4), s(SWO, 4), s(sDA)))
        asm("s_add_u32 %s, %s, %d" % (s(sDA), s(sDA), 2 * 32 * 1280))
        asm("s_add_u32 %s, %s, %d" % (s(sDM), s(sDM), 2 * 5120))
    asm("s_cmp_ge_u32 %s, 30" % s(sSLOT))
    asm("s_cbranch_scc1 %s_wogo" % N)
    lds_wait(W_ISS, vT, vT + 1, atleast=4)
    asm.label("%s_wogo" % N)
    asm("s_mov_b32 s6, 0")
    asm.label("%s_woloop" % N)
    wo_group()
    asm("s_add_u32 s6, s6, 1")
    asm("s_cmp_lt_u32 s6, 10")
    asm("s_cbranch_scc1 %s_woloop" % N)
    lds_wait(W_S1, vT, vT + 1)
    asm("s_waitcnt vmcnt(30)")
    q_loads()
    asm("v_cmp_le_u32 vcc, 20, %s" % v(vL))
    asm("v_mov_b32 %s, 0" % v(vT))
    asm("v_mov_b32 %s, %d" % (v(vT + 1), 10240 - 320))
    asm("v_cndmask_b32 %s, %s, %s, vcc" % (v(vT), v(vT), v(vT + 1)))
    asm("v_add_u32 %s, %s, %s" % (v(vFo), v(vT), v(vLin)))
    asm("s_and_b32 %s, %s, 1" % (s(sIk), s(sW)))
    asm("s_lshl_b32 %s, %s, 3" % (s(sIk), s(sIk)))
    asm("s_or_b32 %s, %s, %s" % (s(sT0), s(sIk), s(sRB2)))
    asm("s_cmp_eq_u32 %s, 0" % s(sT0))
    asm("s_cbranch_scc1 %s_nov" % N)
    asm("s_lshl_b32 %s, %s, 3" % (s(sTK), s(sRB2)))
    asm("s_add_u32 %s, %s, %s" % (s(sTK), s(sTK), s(sIk)))
    asm("s_sub_u32 %s, %s, 8" % (s(sTK), s(sTK)))
    asm("s_mul_i32 %s, %s, 40960" % (s(sKO), s(sTK)))
    asm("s_mul_i32 %s, %s, 320" % (s(sT1), s(sHH)))
    asm("s_add_u32 %s, %s, %s" % (s(sKO), s(sKO), s(sT1)))
    asm("s_add_u32 %s, %s, %d" % (s(sKO), s(sKO), R_VB))
    asm("s_mul_i32 %s, %s, 1280" % (s(sLK), s(sIk)))
    asm("s_add_u32 %s, %s, %d" % (s(sLK), s(sLK), L_V))
    asm("s_mov_b64 exec, %s" % s(sM40, 2))
    for ii in range(8):
        asm("s_add_u32 m0, %s, %d" % (s(sLK), ii * 1280))
        asm("s_add_u32 %s, %s, %d" % (s(sT1), s(sKO), 20480 - 640))
        asm("buffer_load_dwordx4 %s, %s, %s offen sc1 lds" % (v(vFo), s(SWS, 4), s(sKO)))
        asm("buffer_load_dwordx4 %s, %s, %s offen offset:640 sc1 lds" % (v(vFo), s(SWS, 4), s(sT1)))
        if ii < 7: asm("s_add_u32 %s, %s, 40960" % (s(sKO), s(sKO)))
    asm("s_mov_b64 exec, -1")
    asm("s_waitcnt vmcnt(16)")
    asm("s_branch %s_kwait" % N)
    asm.label("%s_nov" % N)
    asm("s_waitcnt vmcnt(0)")
    asm("s_branch %s_kwait" % N)
    asm.label("%s_w5" % N)
    own_tile_wait()
    asm("s_add_u32 %s, %s, 7" % (s(sT0), s(sRB2)))
    asm("s_lshl_b32 %s, %s, 7" % (s(sT0), s(sT0)))
    asm("s_and_b32 %s, %s, %d" % (s(sT1), s(sP8) if REPL <= 8 else s(sHH), REPL - 1))
    asm("s_lshl_b32 %s, %s, 11" % (s(sT1), s(sT1)))
    asm("s_add_u32 %s, %s, %s" % (s(sT0), s(sT0), s(sT1)))
    asm("s_add_u32 %s, %s, %d" % (s(sPL), s(sT0), F1))
    if FINE:
        tile_masks()
        asm("s_lshl_b32 %s, %s, 5" % (s(sT3), s(sT1)))
        asm("s_lshl_b32 %s, %s, 10" % (s(sT2), s(sT2)))
        asm("s_or_b32 %s, %s, %s" % (s(sT3), s(sT3), s(sT2)))
        asm("s_or_b32 %s, %s, %s" % (s(sT1), s(sT1), s(sT3)))
        asm("s_lshl_b32 %s, %s, 16" % (s(sT1), s(sT1)))
        asm("s_cmp_eq_u32 %s, 0" % s(sRB2))
        asm("s_cselect_b32 %s, 0, %s" % (s(sT3), s(sT3)))
        asm("s_or_b32 %s, %s, %s" % (s(sT1), s(sT1), s(sT3)))
    else:
        asm("s_cmp_eq_u32 %s, 0" % s(sRB2))
        asm("s_cselect_b32 %s, 0, 0x7fe0" % s(sT1))
        asm("s_or_b32 %s, %s, 0x7fff0000" % (s(sT1), s(sT1)))
    if opts.get("ppoll", 0): ppoll(s(sPL), 32, [244, 246, 248], vL8, smask=s(sT1))
    else: poll(s(sPL), 32, vT, vL8, smask=s(sT1))
    lds_set(W_S1, vT, vT + 1)
    st(4)
    q_loads()
    asm("s_waitcnt vmcnt(0)")
    asm("s_branch %s_kwait" % N)
    asm.label("%s_aearly" % N)
    asm("v_lshrrev_b32 %s, 5, %s" % (v(vT), v(vL)))
    asm("v_mul_u32_u24 %s, 10240, %s" % (v(vT), v(vT)))
    asm("v_and_b32 %s, 31, %s" % (v(vU), v(vL)))
    asm("v_lshl_add_u32 %s, %s, 4, %s" % (v(vFo), v(vU), v(vT)))
    asm("v_mov_b32 %s, 0x3f803f80" % v(vT + 2))
    for r in range(64, 128): asm("v_mov_b32 %s, %s" % (v(r), v(vT + 2)))
    own_tile_wait()
    asm("s_lshl_b32 %s, %s, 7" % (s(sT0), s(sRB2)))
    asm("s_and_b32 %s, %s, %d" % (s(sT1), s(sP8) if REPL <= 8 else s(sHH), REPL - 1))
    asm("s_lshl_b32 %s, %s, 11" % (s(sT1), s(sT1)))
    asm("s_add_u32 %s, %s, %s" % (s(sT0), s(sT0), s(sT1)))
    asm("s_add_u32 %s, %s, %d" % (s(sPL), s(sT0), F1))
    if FINE:
        tile_masks()
        asm("s_lshl_b32 %s, %s, 5" % (s(sT3), s(sT2)))
        asm("s_lshl_b32 %s, %s, 10" % (s(sT2), s(sT2)))
        asm("s_or_b32 %s, %s, %s" % (s(sT1), s(sT1), s(sT3)))
        asm("s_or_b32 %s, %s, %s" % (s(sT1), s(sT1), s(sT2)))
        if opts.get("ppoll", 0): ppoll(s(sPL), 15, [244, 246, 248], vL8, smask=s(sT1))
        else: poll(s(sPL), 15, vT, vL8, smask=s(sT1))
    else:
        poll(s(sPL), 15, vT, vL8)
    lds_set(W_S1A, vT, vT + 1)
    st(4)
    asm("s_lshl_b32 %s, %s, 3" % (s(sT0), s(sRB2)))
    asm("s_mul_i32 %s, %s, 40960" % (s(sT0), s(sT0)))
    asm("s_mul_i32 %s, %s, 320" % (s(sT1), s(sHH)))
    asm("s_add_u32 %s, %s, %s" % (s(sT0), s(sT0), s(sT1)))
    asm("s_add_u32 %s, %s, %d" % (s(sT1), s(sT0), R_KA))
    asm("s_add_u32 %s, %s, %d" % (s(sT2), s(sT0), R_VA))
    asm("s_mov_b64 exec, %s" % s(sMSK, 2))
    for b in range(8):
        for m in range(2):
            asm("buffer_load_dwordx4 %s, %s, %s, %s offen sc1" % (v((b * 2 + m) * 4, 4), v(vFo), s(SWS, 4), s(sT1)))
            asm("buffer_load_dwordx4 %s, %s, %s, %s offen sc1" % (v(64 + (b * 2 + m) * 4, 4), v(vFo), s(SWS, 4), s(sT2)))
            asm("s_add_u32 %s, %s, 20480" % (s(sT1), s(sT1)))
            asm("s_add_u32 %s, %s, 20480" % (s(sT2), s(sT2)))
    asm("s_mov_b64 exec, -1")
    lds_wait(W_S1, vT, vT + 1)
    q_loads()
    for b in range(16):
        asm("s_waitcnt vmcnt(%d)" % (32 - 2 * b))
        c = "0" if b == 0 else v(O, 16)
        asm("v_mfma_f32_32x32x16_bf16 %s, %s, %s, %s" % (v(O, 16), v(b * 4, 4), v(64 + b * 4, 4), c))
    asm("s_lshl_b32 %s, %s, 3" % (s(sT0), s(sHH)))
    asm("s_add_u32 %s, %s, %s" % (s(sT0), s(sT0), s(sRB2)))
    asm("s_mul_i32 %s, %s, 3072" % (s(sT0), s(sT0)))
    asm("s_add_u32 %s, %s, %d" % (s(sT0), s(sT0), R_KVP))
    asm("s_nop 7"); asm("s_nop 1")
    for j in range(3):
        asm("buffer_store_dwordx4 %s, %s, %s, %s offen offset:%d sc1" % (v(O + 4 * j, 4), v(vLin), s(SWS, 4), s(sT0), j * 1024))
    asm("s_waitcnt vmcnt(3)")
    asm.label("%s_kwait" % N)
    lds_wait(W_K, vT, vT + 1, atleast=4)
    st(5)
    PRIO = opts.get("prio", 0)
    if PRIO:
        asm("s_cmp_%s_u32 %s, 4" % ("lt" if PRIO == 1 else "ge", s(sW)))
        asm("s_cbranch_scc0 %s_noprio" % N)
        asm("s_setprio 2")
        asm.label("%s_noprio" % N)
    def rdK(d, dst):
        for gg in range(2):
            asm("ds_read_b128 %s, %s offset:%d" % (v(dst + 4 * gg, 4), v(vKa), (8 - d) * 2048 + gg * 1024))
    def rdV(d, dst):
        asm("s_mov_b64 exec, %s" % s(sMSK, 2))
        for m in range(2):
            asm("ds_read_b128 %s, %s offset:%d" % (v(dst + 4 * m, 4), v(vVa), (8 - d) * 1280 + m * 640))
        asm("s_mov_b64 exec, -1")
    rdK(0, F[0])
    for gg in range(2):
        for p in range(2):
            k = gg * 2 + p
            for j in range(2):
                r = Q + 4 * gg + 2 * p + j
                asm("v_cndmask_b32 %s, 0, %s, %s" % (v(r), v(r), s(sQM + 2 * k, 2)))
    def maxes(d):
        b = S + 16 * d
        if d == 0:
            asm("v_max3_f32 %s, %s, %s, %s" % (v(vM), v(b), v(b + 1), v(b + 2)))
            for k in range(3, 15, 2):
                asm("v_max3_f32 %s, %s, %s, %s" % (v(vM), v(vM), v(b + k), v(b + k + 1)))
            asm("v_max_f32 %s, %s, %s" % (v(vM), v(vM), v(b + 15)))
        else:
            for k in range(0, 16, 2):
                asm("v_max3_f32 %s, %s, %s, %s" % (v(vM), v(vM), v(b + k), v(b + k + 1)))
    for d in range(9):
        cur, nxt = F[d & 1], F[(d + 1) & 1]
        asm("s_waitcnt lgkmcnt(0)")
        if d < 8: rdK(d + 1, nxt)
        if d > 0:
            asm("s_cmp_le_u32 %s, %d" % (s(sNT), d))
            asm("s_cbranch_scc1 %s_p1skip%d" % (N, d))
        else:
            asm("s_nop 1")
        c = v(CM8, 16) if d == 0 else (v(CM0, 16) if d == 8 else "0")
        b = v(S + 16 * d, 16)
        asm("v_mfma_f32_32x32x16_bf16 %s, %s, %s, %s" % (b, v(cur, 4), v(Q, 4), c))
        asm("v_mfma_f32_32x32x16_bf16 %s, %s, %s, %s" % (b, v(cur + 4, 4), v(Q + 4, 4), b))
        if d > 0:
            asm.label("%s_p1skip%d" % (N, d))
            if d == 1: asm("s_nop 7")
            maxes(d - 1)
            asm("s_cbranch_scc1 %s_p1end" % N)
    asm("s_nop 3")
    maxes(8)
    asm.label("%s_p1end" % N)
    st(6)
    SIGD = opts.get("sigd", 2)
    def a_signal():
        asm("s_cmp_lg_u32 %s, %d" % (s(sW), AW))
        asm("s_cbranch_scc1 %s_nosig" % N)
        asm("s_waitcnt vmcnt(0)")
        asm("s_lshl_b32 %s, %s, 4" % (s(sT0), s(sHH)))
        asm("s_add_u32 %s, %s, %s" % (s(sT0), s(sT0), s(sRB2)))
        asm("s_lshl_b32 %s, %s, 3" % (s(sT0), s(sT0)))
        asm("s_add_u32 %s, %s, %d" % (s(sT0), s(sT0), F2))
        flag_store(s(sT0), vT, vT + 2)
        asm.label("%s_nosig" % N)
    if SIGD < 0: a_signal()
    asm("s_cmp_lt_u32 %s, 6" % s(sW))
    asm("s_cbranch_scc1 %s_vw" % N)
    asm("s_waitcnt vmcnt(0)")
    lds_inc(W_V)
    asm.label("%s_vw" % N)
    lds_wait(W_V, vT, vT + 1, atleast=2)
    asm("s_waitcnt lgkmcnt(0)")
    asm("s_mov_b32 %s, 0x3f803f80" % s(sT0))
    for r in range(16): asm("v_mov_b32 %s, %s" % (v(VF[0] + r), s(sT0)))
    rdV(0, VF[0])
    asm("v_mov_b32 %s, %s" % (v(vT + 2), v(vM)))
    asm("v_mov_b32 %s, %s" % (v(vT + 3), v(vM)))
    asm("s_nop 1")
    asm("v_permlane32_swap_b32 %s, %s" % (v(vT + 2), v(vT + 3)))
    asm("s_nop 1")
    asm("v_max_f32 %s, %s, %s" % (v(vM), v(vT + 2), v(vT + 3)))
    asm("v_sub_f32 %s, 0, %s" % (v(vNM), v(vM)))
    asm("v_sub_f32 %s, 0, %s" % (v(vNM + 1), v(vM)))
    PQD = opts.get("pqd", 5)
    sPQ = 7
    asm("s_mov_b32 %s, 0" % s(sPQ))
    def pq_loads():
        lds_wait(W_S1A, vT + 4, vT + 5)
        asm("buffer_load_dwordx4 %s, %s, %s, %s offen sc1" % (v(Q, 4), v(vLin), s(SWS, 4), s(sOffQA)))
        asm("buffer_load_dwordx4 %s, %s, %s, %s offen offset:1024 sc1" % (v(Q + 4, 4), v(vLin), s(SWS, 4), s(sOffQA)))
    for d in range(9):
        cur, nxt = VF[d & 1], VF[(d + 1) & 1]
        b = S + 16 * d
        if d > 0:
            asm("s_cmp_le_u32 %s, %d" % (s(sNT), d))
            asm("s_cbranch_scc1 %s_p2end" % N)
        for k in range(8):
            asm("v_pk_add_f32 %s, %s, %s" % (v(b + 2 * k, 2), v(b + 2 * k, 2), v(vNM, 2)))
        for k in range(16):
            asm("v_exp_f32 %s, %s" % (v(b + k), v(b + k)))
        asm("s_waitcnt lgkmcnt(0)")
        if d < 8: rdV(d + 1, nxt)
        for k in range(8):
            asm("v_cvt_pk_bf16_f32 %s, %s, %s" % (v(b + k), v(b + 2 * k), v(b + 2 * k + 1)))
        asm("s_nop 1")
        asm("v_mfma_f32_32x32x16_bf16 %s, %s, %s, %s" % (v(O, 16), v(cur, 4), v(b, 4), "0" if d == 0 else v(O, 16)))
        asm("v_mfma_f32_32x32x16_bf16 %s, %s, %s, %s" % (v(O, 16), v(cur + 4, 4), v(b + 4, 4), v(O, 16)))
        if d == SIGD: a_signal()
        if d == PQD:
            pq_loads()
            asm("s_mov_b32 %s, 1" % s(sPQ))
    asm.label("%s_p2end" % N)
    if PRIO: asm("s_setprio 0")
    if PQD > 0:
        asm("s_cmp_lg_u32 %s, 0" % s(sPQ))
        asm("s_cbranch_scc1 %s_pqdone" % N)
        pq_loads()
        asm.label("%s_pqdone" % N)
    st(7)
    def normalize(dst, eps):
        asm("v_mov_b32 %s, %s" % (v(vT), v(O + 8)))
        asm("v_mov_b32 %s, %s" % (v(vT + 1), v(O + 8)))
        asm("s_nop 1")
        asm("v_permlane32_swap_b32 %s, %s" % (v(vT), v(vT + 1)))
        asm("s_nop 1")
        if eps: asm("v_add_f32 %s, %s, %s" % (v(vT + 1), s(sEPS), v(vT + 1)))
        asm("v_rcp_f32 %s, %s" % (v(vT + 1), v(vT + 1)))
        asm("s_nop 0")
        for k in range(12): asm("v_mul_f32 %s, %s, %s" % (v(O + k), v(vT + 1), v(O + k)))
        for k in range(6): asm("v_cvt_pk_bf16_f32 %s, %s, %s" % (v(dst + k), v(O + 2 * k), v(O + 2 * k + 1)))
    def store_o(src, region):
        asm("s_add_u32 %s, %s, %d" % (s(sT0), s(sOffO), region))
        asm("buffer_store_dwordx4 %s, %s, %s, %s offen%s" % (v(src, 4), v(vOm), s(SWS, 4), s(sT0), SC))
        asm("buffer_store_dwordx2 %s, %s, %s, %s offen%s" % (v(src + 4, 2), v(vOr), s(SWS, 4), s(sT0), SC))
    asm("s_mov_b32 %s, %s" % (s(sEPS), fhex(1e-6)))
    asm("s_cmp_ge_u32 %s, 4" % s(sW))
    asm("s_cbranch_scc1 %s_hiwaves" % N)
    asm("s_lshl_b32 %s, %s, 7" % (s(sPL), s(sHH)))
    asm("s_add_u32 %s, %s, %d" % (s(sPL), s(sPL), F2))
    asm("s_cmp_lg_u32 %s, 0" % s(sW))
    asm("s_cbranch_scc1 %s_w123" % N)
    poll_issue(s(sPL), vT + 4, vL8, 8)
    asm("s_nop 7"); asm("s_nop 3")
    normalize(PB, False)
    poll(s(sPL), 8, vT + 4, vL8, preissued=True)
    lds_set(W_S2, vT + 4, vT + 5)
    asm("s_branch %s_w0123" % N)
    asm.label("%s_w123" % N)
    asm("s_nop 7"); asm("s_nop 3")
    normalize(PB, False)
    lds_wait(W_S2, vT + 4, vT + 5)
    asm.label("%s_w0123" % N)
    asm("s_lshl_b32 %s, %s, 1" % (s(sT0), s(sW)))
    asm("s_sub_u32 %s, %s, %s" % (s(sT0), s(sT0), s(sDQ)))
    asm("v_lshrrev_b32 %s, 5, %s" % (v(vT), v(vL)))
    asm("v_add_u32 %s, %s, %s" % (v(vT), s(sT0), v(vT)))
    asm("v_and_b32 %s, 31, %s" % (v(vT + 1), v(vL)))
    asm("v_lshlrev_b32 %s, 4, %s" % (v(vT + 1), v(vT + 1)))
    asm("v_lshl_add_u32 %s, %s, 9, %s" % (v(vT + 1), v(vT), v(vT + 1)))
    asm("v_cmp_ge_u32 vcc, 4, %s" % v(vT))
    asm("v_mov_b32 %s, 0x%x" % (v(vT + 2), OOB))
    asm("s_nop 0")
    asm("v_cndmask_b32 %s, %s, %s, vcc" % (v(vU), v(vT + 2), v(vT + 1)))
    asm("s_lshl_b32 %s, %s, 3" % (s(sT0), s(sHH)))
    asm("s_mul_i32 %s, %s, 3072" % (s(sT0), s(sT0)))
    asm("s_add_u32 %s, %s, %d" % (s(sT0), s(sT0), R_KVP))
    for r in range(8):
        asm("buffer_load_dwordx4 %s, %s, %s, %s offen sc1" % (v(S + 4 * r, 4), v(vU), s(SWS, 4), s(sT0)))
        if r < 7: asm("s_add_u32 %s, %s, 3072" % (s(sT0), s(sT0)))
    store_o(PB, R_OB)
    asm("s_waitcnt vmcnt(2)")
    for r in range(1, 8):
        for k in range(4):
            asm("v_add_f32 %s, %s, %s" % (v(S + k), v(S + k), v(S + 4 * r + k)))
    asm("v_cvt_pk_bf16_f32 %s, %s, %s" % (v(vT), v(S), v(S + 1)))
    asm("v_cvt_pk_bf16_f32 %s, %s, %s" % (v(vT + 1), v(S + 2), v(S + 3)))
    asm("s_lshr_b32 %s, %s, 1" % (s(sT0), s(sW)))
    asm("s_lshl_b32 %s, %s, 10" % (s(sT0), s(sT0)))
    asm("s_and_b32 %s, %s, 1" % (s(sT1), s(sW)))
    asm("s_lshl_b32 %s, %s, 3" % (s(sT1), s(sT1)))
    asm("s_add_u32 %s, %s, %s" % (s(sT0), s(sT0), s(sT1)))
    asm("s_add_u32 %s, %s, %d" % (s(sT0), s(sT0), L_KVT))
    asm("v_add_u32 %s, %s, %s" % (v(vU), s(sT0), v(vLin)))
    asm("ds_write_b64 %s, %s" % (v(vU), v(vT, 2)))
    asm("s_branch %s_join" % N)
    asm.label("%s_hiwaves" % N)
    asm("s_nop 7"); asm("s_nop 3")
    normalize(PB, False)
    store_o(PB, R_OB)
    asm.label("%s_join" % N)
    asm("s_waitcnt lgkmcnt(0)")
    asm("s_barrier")
    st(8)
    asm("v_add_u32 %s, 0x%x, %s" % (v(vU), L_KVT, v(vLin)))
    asm("ds_read_b128 %s, %s" % (v(F[0], 4), v(vU)))
    asm("ds_read_b128 %s, %s offset:1024" % (v(F[0] + 4, 4), v(vU)))
    sF3 = 69
    asm("s_lshl_b32 %s, %s, 5" % (s(sF3), s(sRB2)))
    asm("s_add_u32 %s, %s, %s" % (s(sF3), s(sF3), s(sHH)))
    asm("s_lshl_b32 %s, %s, 3" % (s(sF3), s(sF3)))
    asm("s_add_u32 %s, %s, %d" % (s(sF3), s(sF3), F3))
    asm("s_waitcnt vmcnt(2) lgkmcnt(0)")
    asm("v_mfma_f32_32x32x16_bf16 %s, %s, %s, 0" % (v(O, 16), v(F[0], 4), v(Q, 4)))
    asm("v_mfma_f32_32x32x16_bf16 %s, %s, %s, %s" % (v(O, 16), v(F[0] + 4, 4), v(Q + 4, 4), v(O, 16)))
    asm("s_nop 7"); asm("s_nop 3")
    normalize(PA, True)
    store_o(PA, R_OA)
    asm("s_add_u32 %s, %s, %d" % (s(sT1), s(sF3), 8 * 256))
    asm("s_waitcnt vmcnt(2)")
    release()
    lds_arrive(W_CNT3B, 8, vT + 6, vT + 4, s(sT1))
    asm("s_waitcnt vmcnt(0)")
    release()
    lds_arrive(W_CNT3A, 8, vT + 6, vT + 4, s(sF3))
    st(9)
    asm("s_cmp_ge_u32 %s, 4" % s(sW))
    asm("s_cbranch_scc1 %s_fin" % N)
    OF = 0; ACC3 = 160; WF = [200, 220]
    vOM, vOR, vWm, vWm2, vWr, vWr2 = 245, 246, 247, 248, 249, 250
    p3L, p3T, p3U, p3X = 251, 252, 253, 254
    vDW3 = 240
    sTB3, sOffO3, sOM = 44, 45, 46
    SOUT = SB_
    decode3()
    asm("s_load_dwordx2 s[4:5], s[0:1], 48")
    asm("s_lshl_b32 %s, %s, 2" % (s(sTB3), s(sRB3)))
    asm("s_add_u32 %s, %s, %s" % (s(sTB3), s(sTB3), s(sW)))
    lane(p3L)
    asm("v_lshlrev_b32 %s, 3, %s" % (v(p3X), v(p3L)))
    asm("s_lshl_b32 %s, %s, 3" % (s(sT0), s(sBR3)))
    asm("s_lshr_b32 %s, %s, 1" % (s(sT1), s(sRB3)))
    asm("s_add_u32 %s, %s, %s" % (s(sT0), s(sT0), s(sT1)))
    asm("s_lshl_b32 %s, %s, 8" % (s(sT0), s(sT0)))
    asm("s_add_u32 %s, %s, %d" % (s(sPL), s(sT0), F3))
    asm("v_lshrrev_b32 %s, 4, %s" % (v(p3T), v(p3L)))
    asm("v_and_b32 %s, 15, %s" % (v(p3U), v(p3L)))
    asm("v_lshrrev_b32 %s, 1, %s" % (v(vWm2), v(p3T)))
    asm("v_mul_u32_u24 %s, 1280, %s" % (v(vOM), v(vWm2)))
    asm("v_and_b32 %s, 1, %s" % (v(vWm2), v(p3T)))
    asm("v_lshl_add_u32 %s, %s, 9, %s" % (v(vOM), v(vWm2), v(vOM)))
    asm("v_lshl_add_u32 %s, %s, 4, %s" % (v(vOM), v(p3U), v(vOM)))
    asm("v_mul_u32_u24 %s, 1280, %s" % (v(vOR), v(p3T)))
    asm("v_lshl_add_u32 %s, %s, 3, %s" % (v(vOR), v(p3U), v(vOR)))
    asm("v_add_u32 %s, 1024, %s" % (v(vOR), v(vOR)))
    asm("v_bfe_u32 %s, %s, 2, 2" % (v(p3U), v(p3L)))
    asm("v_lshrrev_b32 %s, 1, %s" % (v(vWm2), v(p3T)))
    asm("v_mul_u32_u24 %s, 20, %s" % (v(vWm), v(vWm2)))
    asm("v_and_b32 %s, 1, %s" % (v(vWm2), v(p3T)))
    asm("v_lshl_add_u32 %s, %s, 2, %s" % (v(vWm), v(vWm2), v(vWm)))
    asm("v_add_u32 %s, %s, %s" % (v(vWm), v(vWm), v(p3U)))
    asm("v_mul_u32_u24 %s, 160, %s" % (v(vWm), v(vWm)))
    asm("v_mul_u32_u24 %s, 20, %s" % (v(vWr), v(p3T)))
    asm("v_add_u32 %s, %s, %s" % (v(vWr), v(vWr), v(p3U)))
    asm("v_add_u32 %s, 16, %s" % (v(vWr), v(vWr)))
    asm("v_mul_u32_u24 %s, 160, %s" % (v(vWr), v(vWr)))
    asm("v_and_b32 %s, 3, %s" % (v(vWm2), v(p3L)))
    asm("v_lshl_add_u32 %s, %s, 3, %s" % (v(vWm), v(vWm2), v(vWm)))
    asm("v_lshl_add_u32 %s, %s, 3, %s" % (v(vWr), v(vWm2), v(vWr)))
    asm("v_add_u32 %s, 51200, %s" % (v(vWm2), v(vWm)))
    asm("v_add_u32 %s, 51200, %s" % (v(vWr2), v(vWr)))
    asm("s_mul_i32 %s, %s, %d" % (s(sOffO3), s(sBR3), REG))
    asm("s_add_u32 %s, %s, %d" % (s(sOffO3), s(sOffO3), R_OA))
    asm("s_mul_i32 %s, %s, 40960" % (s(sT0), s(sTB3)))
    asm("s_add_u32 %s, %s, %s" % (s(sOffO3), s(sOffO3), s(sT0)))
    asm("s_waitcnt lgkmcnt(0)")
    srd(asm, SOUT, "s4", "s5", 2048 * 2560)
    asm("s_cmp_lg_u32 %s, 0" % s(sW))
    asm("s_cbranch_scc1 %s_p3w" % N)
    if opts.get("ppoll", 0): ppoll(s(sPL), 32, [vDW3, vDW3 + 2], p3X)
    else: poll(s(sPL), 32, vDW3, p3X)
    lds_set(W_S3, p3T, p3U)
    asm("s_branch %s_p3go" % N)
    asm.label("%s_p3w" % N)
    lds_wait(W_S3, vDW3, vDW3 + 1)
    asm.label("%s_p3go" % N)
    st(10)
    def oloads(sidx):
        if sidx < 16:
            asm("s_add_u32 %s, %s, %d" % (s(sOM), s(sOffO3), 2560 * sidx))
            for rt in range(2):
                asm("buffer_load_dwordx4 %s, %s, %s, %s offen offset:%d%s" % (v(OF + (sidx * 2 + rt) * 4, 4), v(vOM), s(SWS, 4), s(sOM), rt * 256, LSC3))
        else:
            a_ = sidx - 16
            for half in range(2):
                asm("s_add_u32 %s, %s, %d" % (s(sOM), s(sOffO3), a_ * 8 * 1280 + half * 5120))
                for rt in range(2):
                    asm("buffer_load_dwordx2 %s, %s, %s, %s offen offset:%d%s" % (v(OF + ((16 + a_) * 2 + rt) * 4 + 2 * half, 2), v(vOR), s(SWS, 4), s(sOM), rt * 128, LSC3))
    def cum(k): return 2 * (k + 1) if k < 16 else 32 + 4 * (k - 15)
    PD = opts.get("pd", 5)
    for k in range(PD): oloads(k)
    def wreads(step, dst):
        ops = []
        for ct in range(5):
            for a_ in range(2):
                if step < 16:
                    base = vWm if step < 8 else vWm2
                    off = (step & 7) * 6400 + a_ * 1280 + ct * 32
                else:
                    ap = step - 16
                    base = vWr if ap < 2 else vWr2
                    off = (ap & 1) * 25600 + a_ * 12800 + ct * 32
                ops.append(lambda ct=ct, a_=a_, base=base, off=off: asm("ds_read_b64_tr_b16 %s, %s offset:%d" % (v(dst + 4 * ct + 2 * a_, 2), v(base), off)))
        return ops
    if opts.get("p3st"): st(1)
    for f in wreads(0, WF[0]): f()
    for sidx in range(20):
        cur = WF[sidx & 1]
        nxt_ops = wreads(sidx + 1, WF[(sidx + 1) & 1]) if sidx < 19 else []
        vm = cum(min(sidx + PD - 1, 19)) - cum(sidx)
        asm("s_waitcnt vmcnt(%d) lgkmcnt(0)" % vm)
        if opts.get("p3st") and sidx in (0, 8, 16): st({0: 2, 8: 3, 16: 4}[sidx])
        m = 0
        for ct in range(5):
            for rt in range(2):
                acc = v(ACC3 + (rt * 5 + ct) * 4, 4)
                c = "0" if sidx == 0 else acc
                asm("v_mfma_f32_16x16x32_bf16 %s, %s, %s, %s" % (acc, v(cur + 4 * ct, 4), v(OF + (sidx * 2 + rt) * 4, 4), c))
                if m < 5 and nxt_ops:
                    nxt_ops[2 * m](); nxt_ops[2 * m + 1]()
                if m == 5 and sidx + PD < 20: oloads(sidx + PD)
                m += 1
    st(11)
    asm("v_and_b32 %s, 15, %s" % (v(p3U), v(p3L)))
    asm("v_mul_u32_u24 %s, 160, %s" % (v(p3U), v(p3U)))
    asm("v_lshrrev_b32 %s, 4, %s" % (v(p3T), v(p3L)))
    asm("v_lshl_add_u32 %s, %s, 3, %s" % (v(p3U), v(p3T), v(p3U)))
    asm("s_mul_i32 %s, %s, 5120" % (s(sT0), s(sW)))
    asm("s_add_u32 %s, %s, %d" % (s(sT0), s(sT0), L_OUT))
    asm("v_add_u32 %s, %s, %s" % (v(p3U), s(sT0), v(p3U)))
    asm("v_lshlrev_b32 %s, 4, %s" % (v(p3X), v(p3L)))
    asm("v_add_u32 %s, %s, %s" % (v(p3X), s(sT0), v(p3X)))
    asm("s_nop 3")
    for rt in range(2):
        for ct in range(5):
            b = ACC3 + (rt * 5 + ct) * 4
            t = OF + (rt * 5 + ct) * 2
            asm("v_cvt_pk_bf16_f32 %s, %s, %s" % (v(t), v(b), v(b + 1)))
            asm("v_cvt_pk_bf16_f32 %s, %s, %s" % (v(t + 1), v(b + 2), v(b + 3)))
            asm("ds_write_b64 %s, %s offset:%d" % (v(p3U), v(t, 2), rt * 2560 + ct * 32))
    asm("s_movk_i32 %s, 6554" % s(sT2))
    asm("s_movk_i32 %s, 2560" % s(sT3))
    for b in range(5):
        asm("v_add_u32 %s, %d, %s" % (v(p3T), 64 * b, v(p3L)))
        asm("v_mul_lo_u32 %s, %s, %s" % (v(vWm), v(p3T), s(sT2)))
        asm("v_lshrrev_b32 %s, 16, %s" % (v(vWm), v(vWm)))
        asm("v_mul_u32_u24 %s, 10, %s" % (v(vWr), v(vWm)))
        asm("v_sub_u32 %s, %s, %s" % (v(p3T), v(p3T), v(vWr)))
        asm("v_lshlrev_b32 %s, 4, %s" % (v(p3T), v(p3T)))
        asm("v_mad_u32_u24 %s, %s, %s, %s" % (v(vDW3 + b), v(vWm), s(sT3), v(p3T)))
    asm("s_mul_i32 %s, %s, %d" % (s(sT0), s(sTB3), 32 * 2560))
    asm("s_mul_i32 %s, %s, 1280" % (s(sT1), s(sBR3)))
    asm("s_add_u32 %s, %s, %s" % (s(sT0), s(sT0), s(sT1)))
    asm("s_mul_i32 %s, %s, 160" % (s(sT1), s(sCB3)))
    asm("s_add_u32 %s, %s, %s" % (s(sT0), s(sT0), s(sT1)))
    asm("s_waitcnt lgkmcnt(0)")
    for b in range(5):
        asm("ds_read_b128 %s, %s offset:%d" % (v(32 + 4 * b, 4), v(p3X), b * 1024))
    for b in range(5):
        asm("s_waitcnt lgkmcnt(%d)" % (4 - b))
        asm("buffer_store_dwordx4 %s, %s, %s, %s offen%s" % (v(32 + 4 * b, 4), v(vDW3 + b), s(SOUT, 4), s(sT0), {0: "", 1: " sc1", 2: " nt", 3: " sc0 sc1"}[opts.get("outsc", 0)]))
    asm.label("%s_fin" % N)
    if stamp:
        asm("s_waitcnt vmcnt(0)")
        st(12)
        asm("s_waitcnt lgkmcnt(0)")
        asm("s_load_dwordx2 s[4:5], s[0:1], 64")
        asm("s_waitcnt lgkmcnt(0)")
        asm("s_add_u32 s4, s4, %d" % (R_STAMP + (opts.get("wsoff", 0) << 20)))
        asm("s_addc_u32 s5, s5, 0")
        srd(asm, SA_, "s4", "s5", 1 << 20)
        asm("s_lshl_b32 %s, s2, 3" % s(sT0))
        asm("s_add_u32 %s, %s, %s" % (s(sT0), s(sT0), s(sW)))
        asm("s_lshl_b32 %s, %s, 7" % (s(sT0), s(sT0)))
        asm("v_mov_b32 v1, %s" % s(sT0))
        for i in range(13):
            asm("v_mov_b32 v2, %s" % s(STB + 2 * i))
            asm("v_mov_b32 v3, %s" % s(STB + 2 * i + 1))
            asm("buffer_store_dwordx2 v[2:3], v1, %s, 0 offen offset:%d" % (s(SA_, 4), 8 * i))
            asm("s_nop 1")
        asm("s_getreg_b32 s4, hwreg(HW_REG_HW_ID)")
        asm("v_mov_b32 v2, %s" % s(sXCC))
        asm("v_mov_b32 v3, s4")
        asm("buffer_store_dwordx2 v[2:3], v1, %s, 0 offen offset:%d" % (s(SA_, 4), 8 * 13))
    asm.label("%s_end" % N)
    asm("s_endpgm")
    return dict(name=N, vgpr=256, sgpr=100, grid=256, block=512, lds=LDS_BYTES)
HEADER = open("concat_heads__linear_attn_block__sliding_block__prompt.s.ref").read().split("; Override")[0]
def build(stamp=False, opts=None):
    body = A()
    i = gen(body, stamp=stamp, opts=opts)
    out = HEADER
    out += "; @launch grid=(%d,1,1) block=(%d,1,1) lds=%d\n" % (i["grid"], i["block"], i["lds"])
    out += '.amdgcn_target "amdgcn-amd-amdhsa--gfx950"\n.text\n'
    out += body.text()
    d = A()
    d('.section .rodata,"a"')
    kernel_desc(d, i["name"], i["vgpr"], i["sgpr"])
    out += d.text()
    return out
if __name__ == "__main__":
    import sys
    opts = {}
    for a_ in sys.argv[3:]:
        k, val = a_.split("="); opts[k] = int(val)
    open(sys.argv[1], "w").write(build(stamp=(len(sys.argv) > 2 and sys.argv[2] == "stamp"), opts=opts))
```

```python
from asmlib import *
import math
REG = 2621440
R_QA, R_KA, R_VA, R_QB, R_KB, R_VB, R_OA, R_OB, R_KVP, R_FLG = [i * REG for i in range(10)]
F1 = R_FLG
F2 = R_FLG + 65536
F3 = R_FLG + 65536 + 8192
WS_REC = R_FLG + 131072
R_STAMP = 10 * REG
LOG2E = 1.4426950408889634
QSCALE = LOG2E / math.sqrt(20.0)
BIG = -1.0e30
OOB = 0x40000000
L_WO, L_K, L_V, L_KVT = 0, 102400, 135168, 155648
L_OUT = L_K
L_SYNC = 157696
W_CNT1, W_S1, W_S1A, W_S2, W_CNT3B, W_CNT3A, W_S3, W_ISS, W_K, W_V = [L_SYNC + 4 * i for i in range(10)]
LDS_BYTES = 157696 + 64
SPIN_MAX = 0x40000
NAME = "concat_heads__linear_attn_block__sliding_block__prompt_kernel"
class G:
    pass
def gen(asm, stamp=False, name=NAME, opts=None):
    opts = opts or {}
    N = name
    D1 = opts.get("d1", 0)
    SC = " sc1" if D1 else ""
    SC = {0: SC, 1: " sc0 sc1", 2: " sc1 nt", 3: " sc0 sc1 nt"}[opts.get("scmode", 0)]
    REPL = opts.get("repl", 8)
    LSC3 = "" if opts.get("plain3") else " sc1"
    sW = 3
    SWS, SDBG = 8, 12
    sNON = 16
    sT0, sT1, sT2, sT3 = 18, 19, 20, 21
    sCNT, sPL = 22, 23
    SA_, SB_ = 24, 28
    sMASK = 32
    sPC = 34
    STB = 72
    sP8, sSLOT, sLOCAL, sXCC = 70, 71, 98, 99
    def st(k):
        if stamp:
            asm("s_memrealtime %s" % s(STB + 2 * k, 2))
    def lane(dst):
        asm("v_mbcnt_lo_u32_b32 %s, -1, 0" % v(dst))
        asm("v_mbcnt_hi_u32_b32 %s, -1, %s" % (v(dst), v(dst)))
    uid = [0]
    def lab(p):
        uid[0] += 1
        return "%s_%s%d" % (N, p, uid[0])
    def sync_issue(vd, vo):
        lane(vo)
        asm("s_lshl_b32 %s, %s, 3" % (s(sT0), s(sP8)))
        asm("s_add_u32 %s, %s, 64" % (s(sT0), s(sT0)))
        asm("v_cmp_eq_u32 vcc, 1, %s" % v(vo))
        asm("v_mov_b32 %s, %s" % (v(vd), s(sT0)))
        asm("v_mov_b32 %s, 0" % v(vo))
        asm("v_cndmask_b32 %s, %s, %s, vcc" % (v(vo), v(vo), v(vd)))
        asm("buffer_load_dwordx2 %s, %s, %s, 0 offen sc1" % (v(vd, 2), v(vo), s(SDBG, 4)))
    def get_sync(vd, vo, preissued=False):
        L, D = lab("non"), lab("nond")
        if not preissued: sync_issue(vd, vo)
        asm("s_mov_b32 %s, 0" % s(sCNT))
        asm.label(L)
        asm("s_waitcnt vmcnt(0)")
        asm("v_readlane_b32 %s, %s, 0" % (s(sNON), v(vd)))
        asm("v_readlane_b32 %s, %s, 0" % (s(sNON + 1), v(vd + 1)))
        asm("v_readlane_b32 %s, %s, 1" % (s(sPC), v(vd)))
        asm("v_readlane_b32 %s, %s, 1" % (s(sPC + 1), v(vd + 1)))
        asm("s_add_u32 %s, %s, 1" % (s(sCNT), s(sCNT)))
        asm("s_nop 2")
        asm("s_cmp_lg_u32 %s, 0" % s(sNON))
        asm("s_cbranch_scc1 %s" % D)
        asm("s_cmp_ge_u32 %s, 0x%x" % (s(sCNT), SPIN_MAX))
        asm("s_cbranch_scc1 %s" % D)
        asm("s_sleep 4")
        asm("buffer_load_dwordx2 %s, %s, %s, 0 offen sc1" % (v(vd, 2), v(vo), s(SDBG, 4)))
        asm("s_branch %s" % L)
        asm.label(D)
        asm("s_lshl_b32 %s, %s, 3" % (s(sT0), s(sXCC)))
        asm("s_lshl_b64 %s, 32, %s" % (s(sMASK, 2), s(sT0)))
        asm("s_cmp_eq_u64 %s, %s" % (s(sMASK, 2), s(sPC, 2)))
        asm("s_cselect_b32 %s, 1, 0" % s(sLOCAL))
        if opts.get("nolocal"): asm("s_mov_b32 %s, 0" % s(sLOCAL))
    def release():
        if D1: return
        D = lab("rel")
        asm("s_cmp_lg_u32 %s, 0" % s(sLOCAL))
        asm("s_cbranch_scc1 %s" % D)
        asm("buffer_wbl2 sc1")
        asm("s_waitcnt vmcnt(0)")
        asm.label(D)
    def lds_set(word, va, vd):
        asm("v_mov_b32 %s, 0x%x" % (v(va), word))
        asm("v_mov_b32 %s, 1" % v(vd))
        asm("ds_write_b32 %s, %s" % (v(va), v(vd)))
    def lds_wait(word, va, vd, atleast=1):
        L, D = lab("lw"), lab("lwd")
        asm("v_mov_b32 %s, 0x%x" % (v(va), word))
        asm("s_mov_b32 %s, 0" % s(sCNT))
        asm.label(L)
        asm("ds_read_b32 %s, %s" % (v(vd), v(va)))
        asm("s_waitcnt lgkmcnt(0)")
        asm("v_readfirstlane_b32 %s, %s" % (s(sT0), v(vd)))
        asm("s_add_u32 %s, %s, 1" % (s(sCNT), s(sCNT)))
        asm("s_nop 2")
        asm("s_cmp_ge_u32 %s, %d" % (s(sT0), atleast))
        asm("s_cbranch_scc1 %s" % D)
        asm("s_cmp_ge_u32 %s, 0x%x" % (s(sCNT), SPIN_MAX * 8))
        asm("s_cbranch_scc1 %s" % D)
        if opts.get("lsleep", 1): asm("s_sleep %d" % opts.get("lsleep", 1))
        asm("s_branch %s" % L)
        asm.label(D)
    def lds_arrive(word, n, va, vd, soff, replicas=1):
        D = lab("arr")
        asm("v_mov_b32 %s, 0x%x" % (v(va), word))
        asm("v_mov_b32 %s, 1" % v(vd))
        asm("s_mov_b64 exec, 1")
        asm("ds_add_rtn_u32 %s, %s, %s" % (v(vd), v(va), v(vd)))
        asm("s_waitcnt lgkmcnt(0)")
        asm("s_mov_b64 exec, -1")
        asm("v_readfirstlane_b32 %s, %s" % (s(sCNT), v(vd)))
        asm("s_nop 3")
        asm("s_cmp_lg_u32 %s, %d" % (s(sCNT), n - 1))
        asm("s_cbranch_scc1 %s" % D)
        flag_store(soff, vd, va, replicas)
        asm.label(D)
    def poll_issue(soff, vd, vo, n):
        asm("s_mov_b32 exec_lo, 0x%x" % ((1 << n) - 1))
        asm("s_mov_b32 exec_hi, 0")
        asm("buffer_load_dwordx2 %s, %s, %s, %s offen sc1" % (v(vd, 2), v(vo), s(SWS, 4), soff))
        asm("s_mov_b64 exec, -1")
    def poll(soff, n, vd, vo, preissued=False, lo=0, smask=None):
        L, D = lab("poll"), lab("polld")
        m = ((1 << n) - 1) & ~((1 << lo) - 1)
        asm("s_mov_b32 %s, %s" % (s(sMASK), smask if smask else "0x%x" % (m & 0xffffffff)))
        asm("s_mov_b32 %s, 0x%x" % (s(sMASK + 1), m >> 32))
        if not preissued: poll_issue(soff, vd, vo, n)
        asm("s_mov_b32 %s, 0" % s(sCNT))
        asm.label(L)
        asm("s_waitcnt vmcnt(0)")
        asm("v_cmp_eq_u32 vcc, %s, %s" % (s(sNON), v(vd)))
        asm("v_cmp_eq_u32 %s, %s, %s" % (s(sPC, 2), s(sNON + 1), v(vd + 1)))
        asm("s_add_u32 %s, %s, 1" % (s(sCNT), s(sCNT)))
        asm("s_nop 3")
        asm("s_and_b64 %s, %s, vcc" % (s(sPC, 2), s(sPC, 2)))
        asm("s_and_b64 %s, %s, %s" % (s(sPC, 2), s(sPC, 2), s(sMASK, 2)))
        asm("s_cmp_eq_u64 %s, %s" % (s(sPC, 2), s(sMASK, 2)))
        asm("s_cbranch_scc1 %s" % D)
        asm("s_cmp_ge_u32 %s, 0x%x" % (s(sCNT), SPIN_MAX))
        asm("s_cbranch_scc1 %s" % D)
        asm("s_sleep %d" % opts.get("sleep", 3))
        poll_issue(soff, vd, vo, n)
        asm("s_branch %s" % L)
        asm.label(D)
    def ppoll(soff, n, regs, vo, smask=None):
        k = len(regs)
        L, D = lab("pp"), lab("ppd")
        m = (1 << n) - 1
        asm("s_mov_b32 %s, %s" % (s(sMASK), smask if smask else "0x%x" % (m & 0xffffffff)))
        asm("s_mov_b32 %s, 0x%x" % (s(sMASK + 1), m >> 32))
        for i, r in enumerate(regs):
            poll_issue(soff, r, vo, n)
            if i + 1 < k: asm("s_sleep %d" % opts.get("pstag", 6))
        asm("s_mov_b32 %s, 0" % s(sCNT))
        asm.label(L)
        for i, r in enumerate(regs):
            asm("s_waitcnt vmcnt(%d)" % (k - 1))
            asm("v_cmp_eq_u32 vcc, %s, %s" % (s(sNON), v(r)))
            asm("v_cmp_eq_u32 %s, %s, %s" % (s(sPC, 2), s(sNON + 1), v(r + 1)))
            asm("s_add_u32 %s, %s, 1" % (s(sCNT), s(sCNT)))
            asm("s_nop 3")
            asm("s_and_b64 %s, %s, vcc" % (s(sPC, 2), s(sPC, 2)))
            asm("s_and_b64 %s, %s, %s" % (s(sPC, 2), s(sPC, 2), s(sMASK, 2)))
            asm("s_cmp_eq_u64 %s, %s" % (s(sPC, 2), s(sMASK, 2)))
            asm("s_cbranch_scc1 %s" % D)
            poll_issue(soff, r, vo, n)
        asm("s_cmp_lt_u32 %s, 0x%x" % (s(sCNT), SPIN_MAX * 3))
        asm("s_cbranch_scc1 %s" % L)
        asm.label(D)
    def flag_store(soff, vd, vo, replicas=1):
        if replicas > 1:
            lane(vo)
            asm("v_lshlrev_b32 %s, 11, %s" % (v(vo), v(vo)))
        else:
            asm("v_mov_b32 %s, 0" % v(vo))
        asm("v_mov_b32 %s, %s" % (v(vd), s(sNON)))
        asm("v_mov_b32 %s, %s" % (v(vd + 1), s(sNON + 1)))
        asm("s_mov_b64 exec, %d" % ((1 << replicas) - 1 if replicas <= 6 else -1) if replicas <= 6 else "s_mov_b32 exec_lo, 0x%x\n    s_mov_b32 exec_hi, 0" % ((1 << replicas) - 1))
        asm("buffer_store_dwordx2 %s, %s, %s, %s offen sc1" % (v(vd, 2), v(vo), s(SWS, 4), soff))
        asm("s_mov_b64 exec, -1")
    kernel_header(asm, N)
    asm("s_cmp_ge_u32 s2, 256")
    asm("s_cbranch_scc1 %s_end" % N)
    if stamp:
        for i in range(26): asm("s_mov_b32 %s, 0" % s(STB + i))
    st(0)
    asm("s_load_dwordx4 s[4:7], s[0:1], 56")
    asm("s_load_dwordx4 s[36:39], s[0:1], 0")
    asm("s_load_dwordx4 s[40:43], s[0:1], 24")
    asm("v_lshrrev_b32 v1, 6, v0")
    asm("s_nop 0")
    asm("v_readfirstlane_b32 %s, v1" % s(sW))
    sBR, sRB, sCB, sPART, sCBP, sW4, sWM, sWN = 44, 45, 46, 47, 48, 49, 50, 51
    asm("s_and_b32 %s, s2, 7" % s(sP8))
    asm("s_lshr_b32 %s, s2, 3" % s(sSLOT))
    asm("s_getreg_b32 %s, hwreg(HW_REG_XCC_ID, 0, 4)" % s(sXCC))
    asm("s_and_b32 %s, %s, 7" % (s(sXCC), s(sXCC)))
    if not D1:
        asm("s_cmp_ge_u32 %s, 15" % s(sSLOT))
        asm("s_cselect_b32 %s, 1, 0" % s(sBR))
        asm("s_cselect_b32 %s, 15, 0" % s(sT0))
        asm("s_sub_u32 %s, %s, %s" % (s(sCB), s(sSLOT), s(sT0)))
        asm("s_mov_b32 %s, %s" % (s(sRB), s(sP8)))
    else:
        asm("s_lshr_b32 %s, %s, 2" % (s(sBR), s(sP8)))
        asm("s_and_b32 %s, %s, 3" % (s(sT0), s(sP8)))
        asm("s_mul_i32 %s, %s, 30" % (s(sT0), s(sT0)))
        asm("s_add_u32 %s, %s, %s" % (s(sT0), s(sT0), s(sSLOT)))
        asm("s_cmp_ge_u32 %s, 60" % s(sT0))
        asm("s_cselect_b32 %s, 4, 0" % s(sT1))
        asm("s_cselect_b32 %s, 60, 0" % s(sT2))
        asm("s_sub_u32 %s, %s, %s" % (s(sT0), s(sT0), s(sT2)))
        asm("s_lshr_b32 %s, %s, 2" % (s(sCB), s(sT0)))
        asm("s_and_b32 %s, %s, 3" % (s(sT0), s(sT0)))
        asm("s_add_u32 %s, %s, %s" % (s(sRB), s(sT1), s(sT0)))
    asm("s_cmp_ge_u32 %s, 5" % s(sCB))
    asm("s_cselect_b32 %s, 1, 0" % s(sPART))
    asm("s_cmp_ge_u32 %s, 10" % s(sCB))
    asm("s_cselect_b32 %s, 2, %s" % (s(sPART), s(sPART)))
    asm("s_mul_i32 %s, %s, 5" % (s(sT0), s(sPART)))
    asm("s_sub_u32 %s, %s, %s" % (s(sCBP), s(sCB), s(sT0)))
    asm("s_and_b32 %s, %s, 3" % (s(sW4), s(sW)))
    asm("s_lshr_b32 %s, %s, 1" % (s(sWM), s(sW4)))
    asm("s_and_b32 %s, %s, 1" % (s(sWN), s(sW4)))
    asm("s_waitcnt lgkmcnt(0)")
    if opts.get("wsoff"):
        asm("s_add_u32 s6, s6, 0x%x" % (opts["wsoff"] << 20))
        asm("s_addc_u32 s7, s7, 0")
    srd(asm, SWS, "s6", "s7", WS_REC)
    srd(asm, SDBG, "s4", "s5", 256)
    asm("s_cmp_ge_u32 %s, 4" % s(sW))
    asm("s_cbranch_scc1 %s_p1h" % N)
    ACC = 0; FX = [128, 144]; FW = [160, 168]
    vXA, vWA = 176, 180
    vL, vT, vU, vV = 194, 195, 196, 197
    vSO = 198; TMP = 200; TE = 216; vN = 220
    sSTG, sDELTA, sRBUF, sNEG = 52, 53, 54, 55
    sTN, sGG, sSO = 56, 57, 58
    sC0, sC1 = 60, 62
    asm("s_or_b32 %s, s2, %s" % (s(sT0), s(sW)))
    asm("s_cmp_lg_u32 %s, 0" % s(sT0))
    asm("s_cbranch_scc1 %s_nonon" % N)
    asm("s_memrealtime %s" % s(sNON, 2))
    asm("s_waitcnt lgkmcnt(0)")
    asm("s_or_b32 %s, %s, 1" % (s(sNON), s(sNON)))
    asm("v_mov_b32 v2, %s" % s(sNON))
    asm("v_mov_b32 v3, %s" % s(sNON + 1))
    asm("v_mov_b32 v4, 0")
    asm("s_mov_b64 exec, 1")
    asm("buffer_store_dwordx2 v[2:3], v4, %s, 0 offen sc1" % s(SDBG, 4))
    asm("s_mov_b64 exec, -1")
    asm.label("%s_nonon" % N)
    if opts.get("cpf", 0):
        asm("s_cmp_lg_u32 %s, 1" % s(sW))
        asm("s_cbranch_scc1 %s_nocpf" % N)
        asm("s_getpc_b64 s[4:5]")
        asm.label("%s_cpfpc" % N)
        asm("s_sub_u32 s4, s4, (%s_cpfpc - %s)" % (N, N))
        asm("s_subb_u32 s5, s5, 0")
        lane(5)
        asm("s_and_b32 %s, %s, 7" % (s(sT0), s(sSLOT)))
        asm("s_lshl_b32 %s, %s, 6" % (s(sT0), s(sT0)))
        asm("v_add_u32 v5, %s, v5" % s(sT0))
        asm("v_lshlrev_b32 v5, 6, v5")
        asm("s_mov_b32 %s, s4" % s(SB_))
        asm("s_and_b32 %s, s5, 0xffff" % s(SB_ + 1))
        asm("s_mov_b32 %s, (%s_end - %s)" % (s(SB_ + 2), N, N))
        asm("s_mov_b32 %s, 0x20000" % s(SB_ + 3))
        asm("v_lshlrev_b32 v5, 1, v5")
        asm("buffer_load_dword v223, v5, %s, 0 offen" % s(SB_, 4))
        asm.label("%s_nocpf" % N)
    asm("s_cmp_lg_u32 %s, 0" % s(sW))
    asm("s_cbranch_scc1 %s_noinit" % N)
    asm("s_lshl_b32 %s, %s, 3" % (s(sT0), s(sXCC)))
    asm("s_lshl_b64 s[4:5], 1, %s" % s(sT0))
    asm("s_lshl_b32 %s, %s, 3" % (s(sT0), s(sP8)))
    asm("s_add_u32 %s, %s, 64" % (s(sT0), s(sT0)))
    asm("v_mov_b32 v2, s4")
    asm("v_mov_b32 v3, s5")
    asm("v_mov_b32 v4, %s" % s(sT0))
    if not D1:
        asm("s_mov_b64 exec, 1")
        asm("buffer_atomic_add_x2 v[2:3], v4, %s, 0 offen" % s(SDBG, 4))
        asm("s_mov_b64 exec, -1")
    lane(5)
    asm("v_lshlrev_b32 v5, 2, v5")
    asm("v_add_u32 v5, 0x%x, v5" % L_SYNC)
    asm("v_mov_b32 v6, 0")
    asm("s_mov_b32 exec_lo, 0xffff")
    asm("s_mov_b32 exec_hi, 0")
    asm("ds_write_b32 v5, v6")
    asm("s_mov_b64 exec, -1")
    asm("s_waitcnt lgkmcnt(0)")
    if opts.get("ft", 0):
        lane(5)
        asm("s_lshl_b32 %s, %s, 2" % (s(sT0), s(sP8)))
        asm("s_and_b32 %s, %s, 3" % (s(sT1), s(sSLOT)))
        asm("s_add_u32 %s, %s, %s" % (s(sT0), s(sT0), s(sT1)))
        asm("s_lshl_b32 %s, %s, 7" % (s(sT0), s(sT0)))
        asm("s_add_u32 %s, %s, %d" % (s(sT0), s(sT0), F2))
        asm("s_lshr_b32 %s, %s, 2" % (s(sT1), s(sP8)))
        asm("s_lshl_b32 %s, %s, 3" % (s(sT1), s(sT1)))
        asm("s_and_b32 %s, %s, 3" % (s(sT2), s(sP8)))
        asm("s_lshl_b32 %s, %s, 1" % (s(sT2), s(sT2)))
        asm("s_lshr_b32 %s, %s, 4" % (s(sT3), s(sSLOT)))
        asm("s_add_u32 %s, %s, %s" % (s(sT2), s(sT2), s(sT3)))
        asm("s_add_u32 %s, %s, %s" % (s(sT1), s(sT1), s(sT2)))
        asm("s_lshl_b32 %s, %s, 8" % (s(sT1), s(sT1)))
        asm("s_add_u32 %s, %s, %d" % (s(sT1), s(sT1), F3 - 128))
        asm("v_lshlrev_b32 v6, 3, v5")
        asm("v_add_u32 v7, %s, v6" % s(sT0))
        asm("v_add_u32 v6, %s, v6" % s(sT1))
        asm("v_cmp_gt_u32 vcc, 16, v5")
        asm("s_nop 1")
        asm("v_cndmask_b32 v6, v6, v7, vcc")
        asm("s_mov_b32 exec_lo, -1")
        asm("s_mov_b32 exec_hi, 0xffff")
        asm("buffer_load_dword v223, v6, %s, 0 offen sc1" % s(SWS, 4))
        asm("s_mov_b64 exec, -1")
    asm.label("%s_noinit" % N)
    asm("s_cmp_ge_u32 %s, 30" % s(sSLOT))
    asm("s_cbranch_scc1 %s_p2c" % N)
    lane(vL)
    asm.c("X frag read addr")
    asm("v_and_b32 %s, 31, %s" % (v(vT), v(vL)))
    asm("s_lshl_b32 %s, %s, 7" % (s(sT0), s(sWM)))
    asm("v_add_u32 %s, %s, %s" % (v(vU), s(sT0), v(vT)))
    asm("v_lshlrev_b32 %s, 7, %s" % (v(vU), v(vU)))
    asm("v_bfe_u32 %s, %s, 1, 3" % (v(vT), v(vT)))
    asm("v_lshrrev_b32 %s, 5, %s" % (v(vV), v(vL)))
    for ks in range(4):
        asm("v_add_u32 %s, %d, %s" % (v(TMP), 2 * ks, v(vV)))
        asm("v_xor_b32 %s, %s, %s" % (v(TMP), v(TMP), v(vT)))
        asm("v_lshl_add_u32 %s, %s, 4, %s" % (v(vXA + ks), v(TMP), v(vU)))
    asm.c("W frag read addr")
    asm("v_bfe_u32 %s, %s, 2, 2" % (v(vT), v(vL)))
    asm("v_lshrrev_b32 %s, 5, %s" % (v(vU), v(vL)))
    asm("v_lshl_add_u32 %s, %s, 3, %s" % (v(vU), v(vU), v(vT)))
    asm("v_lshlrev_b32 %s, 8, %s" % (v(vU), v(vU)))
    asm("v_add_u32 %s, 32768, %s" % (v(vU), v(vU)))
    asm("v_and_b32 %s, 1, %s" % (v(vV), v(vL)))
    asm("v_lshl_add_u32 %s, %s, 3, %s" % (v(vU), v(vV), v(vU)))
    asm("v_bfe_u32 %s, %s, 4, 1" % (v(vV), v(vL)))
    asm("v_lshlrev_b32 %s, 1, %s" % (v(vV), v(vV)))
    asm("v_bfe_u32 %s, %s, 1, 1" % (v(TMP), v(vL)))
    asm("v_add_u32 %s, %s, %s" % (v(vV), v(vV), v(TMP)))
    asm("s_lshl_b32 %s, %s, 3" % (s(sT0), s(sWN)))
    asm("v_add_u32 %s, %s, %s" % (v(vV), s(sT0), v(vV)))
    asm("v_lshlrev_b32 %s, 2, %s" % (v(vT), v(vT)))
    for tn in range(2):
        asm("v_add_u32 %s, %d, %s" % (v(TMP), 4 * tn, v(vV)))
        asm("v_xor_b32 %s, %s, %s" % (v(TMP), v(TMP), v(vT)))
        asm("v_lshl_add_u32 %s, %s, 4, %s" % (v(vWA + tn), v(TMP), v(vU)))
    for i in range(128):
        asm("v_mov_b32 %s, 0" % v(ACC + i))
    asm("s_mul_i32 %s, %s, 3" % (s(sT0), s(sBR)))
    asm("s_add_u32 %s, %s, %s" % (s(sT0), s(sT0), s(sPART)))
    asm("s_mul_i32 %s, %s, %d" % (s(sT0), s(sT0), REG))
    asm("s_add_u32 s6, s6, %s" % s(sT0))
    asm("s_addc_u32 s7, s7, 0")
    SO = SA_
    srd(asm, SO, "s6", "s7", REG)
    def rdX(st_, tm, ks):
        asm("ds_read_b128 %s, %s offset:%d" % (v(FX[st_] + 4 * tm, 4), v(vXA + ks), tm * 4096))
    def rdW(st_, tn, a_, ks):
        asm("ds_read_b64_tr_b16 %s, %s offset:%d" % (v(FW[st_] + 4 * tn + 2 * a_, 2), v(vWA + tn), ks * 4096 + a_ * 1024))
    def reads(st_, ks):
        return [lambda: rdW(st_, 0, 0, ks), lambda: rdW(st_, 0, 1, ks), lambda: rdX(st_, 0, ks), lambda: rdX(st_, 1, ks),
                lambda: rdW(st_, 1, 0, ks), lambda: rdW(st_, 1, 1, ks), lambda: rdX(st_, 2, ks), lambda: rdX(st_, 3, ks)]
    MORD = [(0, 0), (1, 0), (0, 1), (1, 1), (2, 0), (2, 1), (3, 0), (3, 1)]
    def mfma(orient, st_, tm, tn):
        acc = v(ACC + (tm * 2 + tn) * 16, 16)
        x = v(FX[st_] + 4 * tm, 4); w = v(FW[st_] + 4 * tn, 4)
        if orient == "T": asm("v_mfma_f32_32x32x16_bf16 %s, %s, %s, %s" % (acc, w, x, acc))
        else: asm("v_mfma_f32_32x32x16_bf16 %s, %s, %s, %s" % (acc, x, w, acc))
    PF = opts.get("pf", 0)
    if PF:
        nst_ = 10 - PF
        per = (1024 * nst_ + 119) // 120
        assert per <= 64
        asm("s_lshl_b32 %s, %s, 2" % (s(sT0), s(sSLOT)))
        asm("s_add_u32 %s, %s, %s" % (s(sT0), s(sT0), s(sW4)))
        asm("s_mul_i32 %s, %s, %d" % (s(sT0), s(sT0), per))
        asm("v_add_u32 %s, %s, %s" % (v(vT), s(sT0), v(vL)))
        asm("v_lshrrev_b32 %s, 10, %s" % (v(vU), v(vT)))
        asm("v_and_b32 %s, 1023, %s" % (v(vV), v(vT)))
        asm("s_lshr_b32 %s, %s, 1" % (s(sT1), s(sP8)))
        asm("s_and_b32 %s, %s, 1" % (s(sT1), s(sT1)))
        asm("s_lshl_b32 %s, %s, 10" % (s(sT1), s(sT1)))
        asm("v_add_u32 %s, %s, %s" % (v(vV), s(sT1), v(vV)))
        asm("v_mul_u32_u24 %s, 1280, %s" % (v(vV), v(vV)))
        asm("v_lshl_add_u32 %s, %s, 7, %s" % (v(vV), v(vU), v(vV)))
        asm("v_add_u32 %s, %d, %s" % (v(vV), PF * 128, v(vV)))
        asm("v_lshrrev_b32 %s, 4, %s" % (v(vU), v(vT)))
        asm("v_add_u32 %s, %d, %s" % (v(vU), 64 * PF, v(vU)))
        asm("v_mul_u32_u24 %s, 3840, %s" % (v(vU), v(vU)))
        asm("v_and_b32 %s, 15, %s" % (v(TMP), v(vT)))
        asm("v_lshl_add_u32 %s, %s, 7, %s" % (v(vU), v(TMP), v(vU)))
        asm("s_and_b32 %s, %s, 1" % (s(sT1), s(sP8)))
        asm("s_mul_i32 %s, %s, %d" % (s(sT1), s(sT1), 7 * 256))
        asm("v_add_u32 %s, %s, %s" % (v(vU), s(sT1), v(vU)))
        asm("v_mov_b32 %s, 0x%x" % (v(TMP), OOB))
        asm("v_cmp_gt_u32 vcc, %d, %s" % (1024 * nst_, v(vT)))
        asm("v_cmp_gt_u32 %s, %d, %s" % (s(sPC, 2), per, v(vL)))
        asm("s_nop 1")
        asm("s_and_b64 vcc, vcc, %s" % s(sPC, 2))
        asm("s_nop 1")
        asm("v_cndmask_b32 %s, %s, %s, vcc" % (v(vV), v(TMP), v(vV)))
        asm("v_cndmask_b32 %s, %s, %s, vcc" % (v(vU), v(TMP), v(vU)))
        asm("s_cmp_eq_u32 %s, 0" % s(sBR))
        asm("s_cselect_b32 s4, s36, s40")
        asm("s_cselect_b32 s5, s37, s41")
        srd(asm, SB_, "s4", "s5", 2048 * 1280)
        asm("buffer_load_dword v223, %s, %s, 0 offen" % (v(vV), s(SB_, 4)))
        asm("s_cmp_eq_u32 %s, 0" % s(sBR))
        asm("s_cselect_b32 s4, s38, s42")
        asm("s_cselect_b32 s5, s39, s43")
        srd(asm, SB_, "s4", "s5", 640 * 3840)
        asm("buffer_load_dword v223, %s, %s, 0 offen" % (v(vU), s(SB_, 4)))
    asm("s_lshl_b32 %s, %s, 3" % (s(sT0), s(sRB)))
    asm("s_lshl_b32 %s, %s, 2" % (s(sT1), s(sWM)))
    asm("s_add_u32 %s, %s, %s" % (s(sT3), s(sT0), s(sT1)))
    sVAR = 59
    asm("s_mov_b32 %s, %s" % (s(sVAR), s(sPART)))
    asm("s_cmp_eq_u32 %s, 0" % s(sBR))
    asm("s_cbranch_scc1 %s_varok" % N)
    asm("s_cmp_eq_u32 %s, 2" % s(sPART))
    asm("s_cselect_b32 %s, 2, 3" % s(sVAR))
    asm.label("%s_varok" % N)
    asm("s_cmp_eq_u32 %s, 0" % s(sVAR))
    asm("s_cbranch_scc1 %s_adrT" % N)
    asm("s_cmp_eq_u32 %s, 3" % s(sVAR))
    asm("s_cbranch_scc1 %s_adrT" % N)
    asm("s_mul_i32 %s, %s, 40960" % (s(sT0), s(sT3)))
    asm("s_lshl_b32 %s, %s, 11" % (s(sT1), s(sCBP)))
    asm("s_add_u32 %s, %s, %s" % (s(sT0), s(sT0), s(sT1)))
    asm("s_lshl_b32 %s, %s, 10" % (s(sT1), s(sWN)))
    asm("s_add_u32 %s, %s, %s" % (s(sT0), s(sT0), s(sT1)))
    asm("v_lshrrev_b32 %s, 5, %s" % (v(vT), v(vL)))
    asm("v_mul_u32_u24 %s, 10240, %s" % (v(vT), v(vT)))
    asm("v_and_b32 %s, 31, %s" % (v(vU), v(vL)))
    asm("v_lshl_add_u32 %s, %s, 4, %s" % (v(vSO), v(vU), v(vT)))
    asm("v_add_u32 %s, %s, %s" % (v(vSO), s(sT0), v(vSO)))
    asm("s_movk_i32 %s, 512" % s(sTN))
    asm("s_movk_i32 %s, 20480" % s(sGG))
    asm("s_branch %s_adrok" % N)
    asm.label("%s_adrT" % N)
    asm("s_mul_i32 %s, %s, 40" % (s(sT0), s(sT3)))
    asm("s_lshl_b32 %s, %s, 3" % (s(sT1), s(sCBP)))
    asm("s_add_u32 %s, %s, %s" % (s(sT0), s(sT0), s(sT1)))
    asm("s_lshl_b32 %s, %s, 2" % (s(sT1), s(sWN)))
    asm("s_add_u32 %s, %s, %s" % (s(sT0), s(sT0), s(sT1)))
    asm("s_lshl_b32 %s, %s, 10" % (s(sT0), s(sT0)))
    asm("v_lshlrev_b32 %s, 4, %s" % (v(vSO), v(vL)))
    asm("v_add_u32 %s, %s, %s" % (v(vSO), s(sT0), v(vSO)))
    asm("s_movk_i32 %s, 2048" % s(sTN))
    asm("s_movk_i32 %s, 1024" % s(sGG))
    asm.label("%s_adrok" % N)
    asm("s_cmp_lt_u32 %s, 2" % s(sVAR))
    asm("s_cselect_b32 %s, %s, 1.0" % (s(sC0), fhex(LOG2E)))
    asm("s_cmp_eq_u32 %s, 3" % s(sVAR))
    asm("s_cbranch_scc0 %s_c0ok" % N)
    asm("s_cmp_eq_u32 %s, 0" % s(sPART))
    asm("s_cselect_b32 %s, %s, 1.0" % (s(sC0), fhex(QSCALE)))
    asm.label("%s_c0ok" % N)
    asm("s_mov_b32 %s, %s" % (s(sC0 + 1), s(sC0)))
    asm("s_mov_b32 %s, %s" % (s(sC1), fhex(1e-6)))
    asm("s_mov_b32 %s, 0" % s(sSTG))
    asm("s_mov_b32 %s, 0" % s(sRBUF))
    asm("s_mov_b32 %s, 0x%x" % (s(sNEG), (-2 * 49152) & 0xffffffff))
    asm("s_barrier")
    st(1)
    for f in reads(0, 0): f()
    asm("s_cmp_eq_u32 %s, 0" % s(sVAR))
    asm("s_cbranch_scc1 %s_loopT" % N)
    asm("s_cmp_eq_u32 %s, 3" % s(sVAR))
    asm("s_cbranch_scc0 %s_loopF" % N)
    def loop(orient):
        L = "%s_loop%s" % (N, orient)
        asm(".p2align 4")
        asm.label(L)
        for ks in range(4):
            st_ = ks & 1; nst_ = st_ ^ 1
            if ks == 3:
                asm("s_cbranch_scc1 %s_final%s" % (N, orient))
            asm("s_waitcnt lgkmcnt(0)")
            if ks < 3:
                rs = reads(nst_, ks + 1)
                for m in range(8):
                    mfma(orient, st_, *MORD[m])
                    if m < 4:
                        rs[2 * m](); rs[2 * m + 1]()
                    if ks == 2 and m == 4:
                        asm("s_add_u32 %s, %s, 1" % (s(sRBUF), s(sRBUF)))
                        asm("s_cmp_eq_u32 %s, 3" % s(sRBUF))
                        asm("s_cselect_b32 %s, 0, %s" % (s(sRBUF), s(sRBUF)))
                        asm("s_cselect_b32 %s, %s, 49152" % (s(sDELTA), s(sNEG)))
                    if ks == 2 and m == 5:
                        for k in range(3): asm("v_add_u32 %s, %s, %s" % (v(vXA + k), s(sDELTA), v(vXA + k)))
                    if ks == 2 and m == 6:
                        asm("v_add_u32 %s, %s, %s" % (v(vXA + 3), s(sDELTA), v(vXA + 3)))
                        for k in range(2): asm("v_add_u32 %s, %s, %s" % (v(vWA + k), s(sDELTA), v(vWA + k)))
                        asm("s_add_u32 %s, %s, 1" % (s(sSTG), s(sSTG)))
                        asm("s_cmp_eq_u32 %s, 9" % s(sSTG))
            else:
                mfma(orient, st_, *MORD[0])
                mfma(orient, st_, *MORD[1])
                asm("s_barrier")
                rs = reads(nst_, 0)
                mfma(orient, st_, *MORD[2])
                rs[0](); rs[1](); rs[2]()
                mfma(orient, st_, *MORD[3])
                rs[3](); rs[4](); rs[5]()
                mfma(orient, st_, *MORD[4])
                rs[6](); rs[7]()
                mfma(orient, st_, *MORD[5])
                mfma(orient, st_, *MORD[6])
                mfma(orient, st_, *MORD[7])
        asm("s_branch %s" % L)
    loop("T")
    loop("F")
    WALL = 224
    XS = [FX[0], FX[1]]
    def epi_lines(kind, q):
        tm, tn = q >> 1, q & 1
        b = ACC + q * 16
        tb_ = TMP + 8 * (q & 1)
        L_ = []
        if kind == "phi":
            for qq in range(4):
                r0 = b + 4 * qq
                L_.append("v_pk_mul_f32 %s, %s, %s" % (v(TE, 2), v(r0, 2), s(sC0, 2)))
                L_.append("v_pk_mul_f32 %s, %s, %s" % (v(TE + 2, 2), v(r0 + 2, 2), s(sC0, 2)))
                for k in range(4): L_.append("v_exp_f32_e64 %s, %s clamp" % (v(TE + k), v(TE + k)))
                for k in range(4): L_.append("v_max_f32 %s, %s, %s" % (v(r0 + k), s(sC1), v(r0 + k)))
                L_.append("v_pk_add_f32 %s, %s, %s" % (v(r0, 2), v(r0, 2), v(TE, 2)))
                L_.append("v_pk_add_f32 %s, %s, %s" % (v(r0 + 2, 2), v(r0 + 2, 2), v(TE + 2, 2)))
                L_.append("v_cvt_pk_bf16_f32 %s, %s, %s" % (v(tb_ + 2 * qq), v(r0), v(r0 + 1)))
                L_.append("v_cvt_pk_bf16_f32 %s, %s, %s" % (v(tb_ + 2 * qq + 1), v(r0 + 2), v(r0 + 3)))
        else:
            if kind == "scale":
                for p_ in range(8): L_.append("v_pk_mul_f32 %s, %s, %s" % (v(b + 2 * p_, 2), v(b + 2 * p_, 2), s(sC0, 2)))
            for p_ in range(8): L_.append("v_cvt_pk_bf16_f32 %s, %s, %s" % (v(tb_ + p_), v(b + 2 * p_), v(b + 2 * p_ + 1)))
        L_.append("s_mul_i32 %s, %s, %d" % (s(sSO), s(sTN), tn))
        if tm: L_.append("s_add_u32 %s, %s, %d" % (s(sSO), s(sSO), tm * 40960))
        L_.append("buffer_store_dwordx4 %s, %s, %s, %s offen%s" % (v(tb_, 4), v(vSO), s(SO, 4), s(sSO), SC))
        L_.append("s_add_u32 %s, %s, %s" % (s(sSO), s(sSO), s(sGG)))
        L_.append("buffer_store_dwordx4 %s, %s, %s, %s offen%s" % (v(tb_ + 4, 4), v(vSO), s(SO, 4), s(sSO), SC))
        return L_
    def final(orient, kind, label):
        asm.label(label)
        sync_issue(vN, vN + 2)
        asm("s_waitcnt lgkmcnt(0)")
        mfma(orient, 1, *MORD[0])
        mfma(orient, 1, *MORD[1])
        asm("s_barrier")
        rd = []
        for ks in range(4):
            rd.append("ds_read_b128 %s, %s" % (v(XS[0] + 4 * ks, 4), v(vXA + ks)))
            for a_ in range(2):
                rd.append("ds_read_b64_tr_b16 %s, %s offset:%d" % (v(WALL + ks * 4 + 2 * a_, 2), v(vWA), ks * 4096 + a_ * 1024))
        for ks in range(4):
            for a_ in range(2):
                rd.append("ds_read_b64_tr_b16 %s, %s offset:%d" % (v(WALL + (4 + ks) * 4 + 2 * a_, 2), v(vWA + 1), ks * 4096 + a_ * 1024))
        per = [4, 4, 3, 3, 3, 3]
        pos = 0
        for m in range(2, 8):
            mfma(orient, 1, *MORD[m])
            for k in range(per[m - 2]):
                asm(rd[pos]); pos += 1
        assert pos == len(rd) == 20
        for q in range(8):
            tm, tn = q >> 1, q & 1
            xs = XS[tm & 1]
            if q == 0:
                asm("s_waitcnt lgkmcnt(8)")
            elif q == 1:
                asm("s_waitcnt lgkmcnt(4)")
            elif tn == 0:
                asm("s_waitcnt lgkmcnt(0)")
                if tm == 3: asm("s_barrier")
            ep = epi_lines(kind, q - 2) if q >= 2 else []
            if q == 2: ep = ["s_nop 7"] + ep
            chunk = (len(ep) + 3) // 4
            acc = v(ACC + q * 16, 16)
            for ks in range(4):
                x = v(xs + 4 * ks, 4); w = v(WALL + (tn * 4 + ks) * 4, 4)
                if orient == "T": asm("v_mfma_f32_32x32x16_bf16 %s, %s, %s, %s" % (acc, w, x, acc))
                else: asm("v_mfma_f32_32x32x16_bf16 %s, %s, %s, %s" % (acc, x, w, acc))
                if tn == 0 and tm < 3:
                    asm("ds_read_b128 %s, %s offset:%d" % (v(XS[(tm + 1) & 1] + 4 * ks, 4), v(vXA + ks), (tm + 1) * 4096))
                for ln in ep[ks * chunk:(ks + 1) * chunk]: asm(ln)
        st(2)
        for ln in epi_lines(kind, 6): asm(ln)
        for ln in epi_lines(kind, 7): asm(ln)
        asm("s_branch %s_fin1" % N)
    asm.label("%s_finalT" % N)
    asm("s_cmp_eq_u32 %s, 0" % s(sVAR))
    asm("s_cbranch_scc0 %s_fin_ts" % N)
    final("T", "phi", "%s_fin_tp" % N)
    final("T", "scale", "%s_fin_ts" % N)
    asm.label("%s_finalF" % N)
    asm("s_cmp_eq_u32 %s, 1" % s(sVAR))
    asm("s_cbranch_scc0 %s_fin_fn" % N)
    final("F", "phi", "%s_fin_fp" % N)
    final("F", "plain", "%s_fin_fn" % N)
    asm.label("%s_fin1" % N)
    asm("v_mov_b32 %s, 0x%x" % (v(vT), W_ISS))
    asm("v_mov_b32 %s, 1" % v(vU))
    asm("s_mov_b64 exec, 1")
    asm("ds_add_u32 %s, %s" % (v(vT), v(vU)))
    asm("s_mov_b64 exec, -1")
    st(3)
    get_sync(vN, vN + 2, preissued=True)
    release()
    asm("s_lshl_b32 %s, %s, 3" % (s(sT1), s(sBR)))
    asm("s_add_u32 %s, %s, %s" % (s(sT1), s(sT1), s(sRB)))
    asm("s_lshl_b32 %s, %s, 4" % (s(sT1), s(sT1)))
    asm("s_add_u32 %s, %s, %s" % (s(sT1), s(sT1), s(sCB)))
    asm("s_lshl_b32 %s, %s, 3" % (s(sT1), s(sT1)))
    asm("s_add_u32 %s, %s, %d" % (s(sT1), s(sT1), F1))
    lds_arrive(W_CNT1, 4, vN + 2, vN, s(sT1), replicas=REPL)
    st(4)
    asm("s_branch %s_p2setup" % N)
    asm.label("%s_p2c" % N)
    asm("s_barrier")
    get_sync(220, 222)
    asm("s_branch %s_p2setup" % N)

    asm.label("%s_p1h" % N)
    hL, hT, hU, hV = 2, 3, 4, 5
    vDX, vDW, hTMP = 8, 16, 20
    sXOFF, sWOFF, sM0X, sM0W, sDBUF, sHS = 52, 53, 54, 55, 56, 57
    SX, SWD = SA_, SB_
    asm("s_cmp_lt_u32 %s, 30" % s(sSLOT))
    asm("s_cbranch_scc1 %s_p1h2" % N)
    asm("s_barrier")
    asm("s_branch %s_p2h" % N)
    asm.label("%s_p1h2" % N)
    lane(hL)
    asm("v_lshrrev_b32 %s, 3, %s" % (v(hT), v(hL)))
    asm("s_lshl_b32 %s, %s, 6" % (s(sT0), s(sW4)))
    asm("v_add_u32 %s, %s, %s" % (v(hT), s(sT0), v(hT)))
    asm("s_movk_i32 %s, 1280" % s(sT1))
    asm("v_mul_lo_u32 %s, %s, %s" % (v(hT), v(hT), s(sT1)))
    asm("v_lshrrev_b32 %s, 4, %s" % (v(hU), v(hL)))
    asm("v_and_b32 %s, 7, %s" % (v(hV), v(hL)))
    for par in range(2):
        if par == 1: asm("v_add_u32 %s, 4, %s" % (v(hU), v(hU)))
        asm("v_xor_b32 %s, %s, %s" % (v(hTMP + par), v(hV), v(hU)))
        asm("v_lshl_add_u32 %s, %s, 4, %s" % (v(hTMP + par), v(hTMP + par), v(hT)))
    for i in range(8):
        asm("v_add_u32 %s, %d, %s" % (v(vDX + i), i * 8 * 1280 - (i & 3) * 1024, v(hTMP + (i & 1))))
    asm("v_lshrrev_b32 %s, 4, %s" % (v(hU), v(hL)))
    asm("s_lshl_b32 %s, %s, 4" % (s(sT0), s(sW4)))
    asm("v_add_u32 %s, %s, %s" % (v(hT), s(sT0), v(hU)))
    asm("s_movk_i32 %s, 3840" % s(sT1))
    asm("v_mul_lo_u32 %s, %s, %s" % (v(hT), v(hT), s(sT1)))
    asm("v_lshlrev_b32 %s, 2, %s" % (v(hU), v(hU)))
    asm("v_and_b32 %s, 15, %s" % (v(hV), v(hL)))
    asm("v_xor_b32 %s, %s, %s" % (v(hV), v(hV), v(hU)))
    asm("v_lshl_add_u32 %s, %s, 4, %s" % (v(hT), v(hV), v(hT)))
    for i in range(4):
        asm("v_add_u32 %s, %d, %s" % (v(vDW + i), i * 4 * 3840 - i * 1024, v(hT)))
    asm("s_cmp_eq_u32 %s, 0" % s(sBR))
    asm("s_cselect_b32 s36, s36, s40")
    asm("s_cselect_b32 s37, s37, s41")
    asm("s_cselect_b32 s38, s38, s42")
    asm("s_cselect_b32 s39, s39, s43")
    asm("s_mul_i32 %s, %s, %d" % (s(sT0), s(sRB), 256 * 1280))
    asm("s_add_u32 s36, s36, %s" % s(sT0))
    asm("s_addc_u32 s37, s37, 0")
    asm("s_lshl_b32 %s, %s, 8" % (s(sT0), s(sCB)))
    asm("s_add_u32 s38, s38, %s" % s(sT0))
    asm("s_addc_u32 s39, s39, 0")
    asm("s_sub_u32 %s, %d, %s" % (s(sT1), 640 * 3840, s(sT0)))
    srd(asm, SX, "s36", "s37", 256 * 1280)
    srd(asm, SWD, "s38", "s39", s(sT1))
    def dma_stage():
        asm("s_lshl_b32 %s, %s, 13" % (s(sT0), s(sW4)))
        asm("s_add_u32 %s, %s, %s" % (s(sM0X), s(sDBUF), s(sT0)))
        asm("s_lshl_b32 %s, %s, 12" % (s(sT0), s(sW4)))
        asm("s_add_u32 %s, %s, %s" % (s(sT0), s(sT0), s(sDBUF)))
        asm("s_add_u32 %s, %s, 32768" % (s(sM0W), s(sT0)))
        for idx in range(8):
            if idx == 0:
                asm("s_mov_b32 m0, %s" % s(sM0X)); asm("s_nop 0")
            if idx == 4:
                asm("s_add_u32 m0, %s, 4096" % s(sM0X)); asm("s_nop 0")
            asm("buffer_load_dwordx4 %s, %s, %s offen offset:%d lds" % (v(vDX + idx), s(SX, 4), s(sXOFF), (idx & 3) * 1024))
        asm("s_mov_b32 m0, %s" % s(sM0W)); asm("s_nop 0")
        for j in range(4):
            asm("buffer_load_dwordx4 %s, %s, %s offen offset:%d lds" % (v(vDW + j), s(SWD, 4), s(sWOFF), j * 1024))
        asm("s_add_u32 %s, %s, 128" % (s(sXOFF), s(sXOFF)))
        asm("s_add_u32 %s, %s, %d" % (s(sWOFF), s(sWOFF), 64 * 3840))
        asm("s_add_u32 %s, %s, 49152" % (s(sDBUF), s(sDBUF)))
        asm("s_cmp_ge_u32 %s, %d" % (s(sDBUF), 3 * 49152))
        asm("s_cselect_b32 %s, 0, %s" % (s(sDBUF), s(sDBUF)))
    WARM = opts.get("warm", 3)
    if WARM:
        asm("s_load_dwordx2 s[4:5], s[0:1], 16")
        asm("s_load_dwordx2 s[6:7], s[0:1], 40")
        asm("s_lshl_b32 s58, %s, 2" % s(sSLOT))
        asm("s_add_u32 s58, s58, %s" % s(sW4))
        asm("s_mul_i32 s58, s58, %d" % (54 * 128))
        asm("v_lshlrev_b32 v6, 7, %s" % v(hL))
    asm("s_mov_b32 %s, 0" % s(sXOFF))
    asm("s_mov_b32 %s, 0" % s(sWOFF))
    asm("s_mov_b32 %s, 0" % s(sDBUF))
    asm("s_mov_b32 %s, 0" % s(sHS))
    pro = opts.get("pro", 2)
    Lp = "%s_hpro" % N
    asm.label(Lp)
    dma_stage()
    asm("s_add_u32 %s, %s, 1" % (s(sHS), s(sHS)))
    asm("s_cmp_eq_u32 %s, %d" % (s(sHS), pro))
    asm("s_cbranch_scc0 %s_hpro_n" % N)
    st(3)
    asm("s_waitcnt vmcnt(%d)" % (12 * (pro - 1)))
    st(1)
    asm("s_barrier")
    asm.label("%s_hpro_n" % N)
    asm("s_cmp_lt_u32 %s, 3" % s(sHS))
    asm("s_cbranch_scc1 %s" % Lp)
    asm("s_mov_b32 %s, 0" % s(sHS))
    Lh = "%s_hloop" % N
    asm.label(Lh)
    asm("s_cmp_lt_u32 %s, 8" % s(sHS))
    asm("s_cbranch_scc1 %s_hw12" % N)
    asm("s_waitcnt vmcnt(0)")
    asm("s_branch %s_hw" % N)
    asm.label("%s_hw12" % N)
    asm("s_waitcnt vmcnt(12)")
    asm.label("%s_hw" % N)
    asm("s_barrier")
    asm("s_cmp_lt_u32 %s, 7" % s(sHS))
    asm("s_cbranch_scc0 %s_hnodma" % N)
    dma_stage()
    if WARM:
        asm("s_cmp_eq_u32 %s, %d" % (s(sHS), WARM - 1))
        asm("s_cbranch_scc0 %s_hnodma" % N)
        asm("s_waitcnt lgkmcnt(0)")
        asm("s_cmp_lt_u32 %s, 4" % s(sP8))
        asm("s_cselect_b32 s4, s4, s6")
        asm("s_cselect_b32 s5, s5, s7")
        srd(asm, 60, "s4", "s5", 640 * 1280)
        asm("s_mov_b32 exec_lo, -1")
        asm("s_mov_b32 exec_hi, 0x3fffff")
        asm("buffer_load_dword v7, v6, s[60:63], s58 offen")
        asm("s_mov_b64 exec, -1")
        if opts.get("ft", 0):
            asm("s_cmp_eq_u32 %s, 0" % s(sW4))
            asm("s_cbranch_scc0 %s_hnodma" % N)
            asm("s_lshl_b32 %s, %s, 2" % (s(sT0), s(sP8)))
            asm("s_and_b32 %s, %s, 3" % (s(sT1), s(sSLOT)))
            asm("s_add_u32 %s, %s, %s" % (s(sT0), s(sT0), s(sT1)))
            asm("s_and_b32 %s, %s, %d" % (s(sT0), s(sT0) if opts.get("repl", 8) > 8 else s(sP8), opts.get("repl", 8) - 1))
            asm("s_lshl_b32 %s, %s, 11" % (s(sT0), s(sT0)))
            asm("s_add_u32 %s, %s, %d" % (s(sT0), s(sT0), F1))
            asm("s_lshr_b32 %s, %s, 2" % (s(sT1), s(sSLOT)))
            asm("s_lshl_b32 %s, %s, 7" % (s(sT1), s(sT1)))
            asm("s_add_u32 %s, %s, %s" % (s(sT0), s(sT0), s(sT1)))
            asm("v_lshlrev_b32 v23, 3, %s" % v(hL))
            asm("v_add_u32 v22, %s, v23" % s(sT0))
            asm("v_subrev_u32 v22, 256, v22")
            asm("s_add_u32 %s, %s, %d" % (s(sT0), s(sT0), 7 * 128))
            asm("v_add_u32 v23, %s, v23" % s(sT0))
            asm("v_cmp_gt_u32 vcc, 32, %s" % v(hL))
            asm("s_nop 1")
            asm("v_cndmask_b32 v23, v22, v23, vcc")
            asm("s_mov_b32 exec_lo, -1")
            asm("s_mov_b32 exec_hi, 0xffff")
            asm("buffer_load_dword v24, v23, %s, 0 offen sc1" % s(SWS, 4))
            asm("s_mov_b64 exec, -1")
    asm.label("%s_hnodma" % N)
    asm("s_add_u32 %s, %s, 1" % (s(sHS), s(sHS)))
    asm("s_cmp_lt_u32 %s, 10" % s(sHS))
    asm("s_cbranch_scc1 %s" % Lh)
    asm.label("%s_p2h" % N)
    st(2)
    sBR3, sRB3, sCB3 = 64, 65, 66
    def decode3():
        if not D1:
            asm("s_lshr_b32 %s, %s, 4" % (s(sBR3), s(sSLOT)))
            asm("s_bfe_u32 %s, %s, 0x10003" % (s(sRB3), s(sSLOT)))
            asm("s_lshl_b32 %s, %s, 1" % (s(sT0), s(sP8)))
            asm("s_add_u32 %s, %s, %s" % (s(sRB3), s(sRB3), s(sT0)))
            asm("s_and_b32 %s, %s, 7" % (s(sCB3), s(sSLOT)))
        else:
            asm("s_lshr_b32 %s, %s, 2" % (s(sBR3), s(sP8)))
            asm("s_and_b32 %s, %s, 3" % (s(sT0), s(sP8)))
            asm("s_lshl_b32 %s, %s, 2" % (s(sT0), s(sT0)))
            asm("s_lshr_b32 %s, %s, 3" % (s(sRB3), s(sSLOT)))
            asm("s_add_u32 %s, %s, %s" % (s(sRB3), s(sRB3), s(sT0)))
            asm("s_and_b32 %s, %s, 7" % (s(sCB3), s(sSLOT)))
    get_sync(220, 222)
    sHH, sRB2, sG0, sDQ, sTB, sNT = 44, 45, 46, 47, 48, 49
    sMSK, sM40 = 50, 52
    sP = 36
    sQM = 54
    sOffO, sOffQA, sBIG, sEPS = 62, 63, 67, 68
    S = 0; O = 144; Q = 160; F = [168, 176]; CM8 = 184; CM0 = 200; VF = [184, 192]
    vM, vNM = 216, 218
    vT = 220
    vLin, vKa, vVa, vL = 228, 229, 230, 231
    vOm, vOr, vFo, vU = 232, 233, 234, 235
    PB = 236
    PA = 168
    vL8 = 242
    AW = 4
    asm.label("%s_p2setup" % N)
    if not D1:
        asm("s_mov_b32 %s, %s" % (s(sHH), s(sSLOT)))
        asm("s_mov_b32 %s, %s" % (s(sRB2), s(sP8)))
    else:
        asm("s_lshl_b32 %s, %s, 2" % (s(sT0), s(sP8)))
        asm("s_and_b32 %s, %s, 3" % (s(sHH), s(sSLOT)))
        asm("s_add_u32 %s, %s, %s" % (s(sHH), s(sHH), s(sT0)))
        asm("s_lshr_b32 %s, %s, 2" % (s(sRB2), s(sSLOT)))
    asm("s_mul_i32 %s, %s, 5" % (s(sT0), s(sHH)))
    asm("s_lshr_b32 %s, %s, 2" % (s(sG0), s(sT0)))
    asm("s_and_b32 %s, %s, 3" % (s(sDQ), s(sT0)))
    asm("s_lshl_b32 %s, %s, 3" % (s(sTB), s(sRB2)))
    asm("s_add_u32 %s, %s, %s" % (s(sTB), s(sTB), s(sW)))
    asm("s_add_u32 %s, %s, 1" % (s(sNT), s(sTB)))
    asm("s_min_u32 %s, %s, 9" % (s(sNT), s(sNT)))
    asm("s_mov_b32 %s, 0x000fffff" % s(sMSK)); asm("s_mov_b32 %s, 0x000fffff" % s(sMSK + 1))
    asm("s_mov_b32 %s, -1" % s(sM40)); asm("s_mov_b32 %s, 0xff" % s(sM40 + 1))
    lane(vL)
    asm("v_lshlrev_b32 %s, 3, %s" % (v(vL8), v(vL)))
    asm("v_lshlrev_b32 %s, 4, %s" % (v(vLin), v(vL)))
    asm("s_mov_b32 %s, %s" % (s(sBIG), fhex(BIG)))
    asm("v_and_b32 %s, 31, %s" % (v(vU), v(vL)))
    asm("v_lshrrev_b32 %s, 5, %s" % (v(vT + 4), v(vL)))
    asm("v_lshlrev_b32 %s, 2, %s" % (v(vT + 4), v(vT + 4)))
    asm("v_sub_u32 %s, %s, %s" % (v(vU), v(vU), v(vT + 4)))
    asm("v_mov_b32 %s, %s" % (v(vT + 5), s(sBIG)))
    asm("v_mov_b32 %s, 0" % v(vT + 6))
    for r0 in range(0, 16, 4):
        for k in range(4):
            r = r0 + k
            asm("v_cmp_le_i32 %s, %d, %s" % (s(sP + 2 * k, 2), 8 * (r >> 2) + (r & 3), v(vU)))
        asm("s_nop 1")
        for k in range(4):
            r = r0 + k
            asm("v_cndmask_b32 %s, %s, %s, %s" % (v(CM8 + r), v(vT + 5), v(vT + 6), s(sP + 2 * k, 2)))
            asm("v_cndmask_b32 %s, %s, %s, %s" % (v(CM0 + r), v(vT + 6), v(vT + 5), s(sP + 2 * k, 2)))
    for gg in range(2):
        for p in range(2):
            k = gg * 2 + p
            for h in range(2):
                asm("s_sub_u32 %s, %d, %s" % (s(sT0), 4 * gg + 2 * p + h, s(sDQ)))
                asm("s_cmp_le_u32 %s, 4" % s(sT0))
                asm("s_cselect_b32 %s, -1, 0" % s(sQM + 2 * k + h))
    asm("s_lshl_b32 %s, %s, 11" % (s(sT0), s(sW)))
    asm("s_add_u32 %s, %s, %d" % (s(sT0), s(sT0), L_K))
    asm("v_add_u32 %s, %s, %s" % (v(vKa), s(sT0), v(vLin)))
    asm("v_lshrrev_b32 %s, 5, %s" % (v(vT), v(vL)))
    asm("v_mul_u32_u24 %s, 20, %s" % (v(vT), v(vT)))
    asm("v_and_b32 %s, 31, %s" % (v(vU), v(vL)))
    asm("v_add_u32 %s, %s, %s" % (v(vT), v(vT), v(vU)))
    asm("v_lshlrev_b32 %s, 4, %s" % (v(vT), v(vT)))
    asm("s_mul_i32 %s, %s, 1280" % (s(sT0), s(sW)))
    asm("s_add_u32 %s, %s, %d" % (s(sT0), s(sT0), L_V))
    asm("v_add_u32 %s, %s, %s" % (v(vVa), s(sT0), v(vT)))
    asm("s_lshl_b32 %s, %s, 5" % (s(sT0), s(sTB)))
    asm("s_add_u32 %s, %s, %s" % (s(sT0), s(sT0), s(sHH)))
    asm("s_mul_i32 %s, %s, 1280" % (s(sOffO), s(sT0)))
    asm("v_mov_b32 %s, %s" % (v(vOm), v(vLin)))
    asm("v_add_u32 %s, 1024, %s" % (v(vOr), v(vL8)))
    asm("v_mov_b32 %s, 0x%x" % (v(vT + 4), OOB))
    asm("v_cmp_gt_u32 vcc, 32, %s" % v(vL))
    asm("s_nop 1")
    asm("v_cndmask_b32 %s, %s, %s, vcc" % (v(vOr), v(vT + 4), v(vOr)))
    asm("s_mul_i32 %s, %s, 40" % (s(sT2), s(sTB)))
    asm("s_add_u32 %s, %s, %s" % (s(sT2), s(sT2), s(sG0)))
    asm("s_lshl_b32 %s, %s, 10" % (s(sT2), s(sT2)))
    asm("s_add_u32 %s, %s, %d" % (s(sOffQA), s(sT2), R_QA))
    def q_loads():
        asm("s_add_u32 %s, %s, %d" % (s(sT3), s(sOffQA), R_QB - R_QA))
        asm("buffer_load_dwordx4 %s, %s, %s, %s offen sc1" % (v(Q, 4), v(vLin), s(SWS, 4), s(sT3)))
        asm("buffer_load_dwordx4 %s, %s, %s, %s offen offset:1024 sc1" % (v(Q + 4, 4), v(vLin), s(SWS, 4), s(sT3)))
    FINE = opts.get("fine", 1)
    def tile_masks():
        asm("s_lshr_b32 %s, %s, 3" % (s(sT1), s(sG0)))
        asm("s_lshl_b32 %s, 1, %s" % (s(sT1), s(sT1)))
        asm("s_add_u32 %s, %s, 1" % (s(sT2), s(sG0)))
        asm("s_lshr_b32 %s, %s, 3" % (s(sT2), s(sT2)))
        asm("s_lshl_b32 %s, 1, %s" % (s(sT2), s(sT2)))
        asm("s_or_b32 %s, %s, %s" % (s(sT1), s(sT1), s(sT2)))
        asm("s_mul_i32 %s, %s, 20" % (s(sT3), s(sHH)))
        asm("s_lshr_b32 %s, %s, 7" % (s(sT2), s(sT3)))
        asm("s_lshl_b32 %s, 1, %s" % (s(sT2), s(sT2)))
        asm("s_add_u32 %s, %s, 19" % (s(sT3), s(sT3)))
        asm("s_lshr_b32 %s, %s, 7" % (s(sT3), s(sT3)))
        asm("s_lshl_b32 %s, 1, %s" % (s(sT3), s(sT3)))
        asm("s_or_b32 %s, %s, %s" % (s(sT2), s(sT2), s(sT3)))
    def own_tile_wait():
        D = lab("otw")
        asm("s_cmp_ge_u32 %s, 30" % s(sSLOT))
        asm("s_cbranch_scc1 %s" % D)
        lds_wait(W_CNT1, vT, vT + 1, atleast=4)
        asm.label(D)
    def lds_inc(word):
        asm("v_mov_b32 %s, 0x%x" % (v(vT), word))
        asm("v_mov_b32 %s, 1" % v(vT + 1))
        asm("s_mov_b64 exec, 1")
        asm("ds_add_u32 %s, %s" % (v(vT), v(vT + 1)))
        asm("s_mov_b64 exec, -1")
    asm("s_cmp_eq_u32 %s, %d" % (s(sW), AW))
    asm("s_cbranch_scc1 %s_aearly" % N)
    asm("s_cmp_eq_u32 %s, 5" % s(sW))
    asm("s_cbranch_scc1 %s_w5" % N)
    asm("s_cmp_ge_u32 %s, 6" % s(sW))
    asm("s_cbranch_scc1 %s_w67" % N)
    sTK, sKO, sLK, sIk = 4, 5, 6, 7
    lds_wait(W_S1, vT, vT + 1)
    st(4) if opts.get("kvst") else None
    asm("s_lshl_b32 %s, %s, 2" % (s(sIk), s(sW)))
    asm("s_cmp_eq_u32 %s, 0" % s(sRB2))
    asm("s_cselect_b32 %s, 8, 0" % s(sT0))
    asm("s_cmp_lt_u32 %s, %s" % (s(sIk), s(sT0)))
    asm("s_cbranch_scc1 %s_nok" % N)
    asm("s_lshl_b32 %s, %s, 3" % (s(sTK), s(sRB2)))
    asm("s_add_u32 %s, %s, %s" % (s(sTK), s(sTK), s(sIk)))
    asm("s_sub_u32 %s, %s, 8" % (s(sTK), s(sTK)))
    asm("s_mul_i32 %s, %s, 40" % (s(sKO), s(sTK)))
    asm("s_add_u32 %s, %s, %s" % (s(sKO), s(sKO), s(sG0)))
    asm("s_lshl_b32 %s, %s, 10" % (s(sKO), s(sKO)))
    asm("s_add_u32 %s, %s, %d" % (s(sKO), s(sKO), R_KB))
    asm("s_lshl_b32 %s, %s, 11" % (s(sLK), s(sIk)))
    asm("s_add_u32 %s, %s, %d" % (s(sLK), s(sLK), L_K))
    for ii in range(4):
        asm("s_add_u32 m0, %s, %d" % (s(sLK), ii * 2048))
        asm("s_nop 0")
        asm("buffer_load_dwordx4 %s, %s, %s offen sc1 lds" % (v(vLin), s(SWS, 4), s(sKO)))
        asm("buffer_load_dwordx4 %s, %s, %s offen offset:1024 sc1 lds" % (v(vLin), s(SWS, 4), s(sKO)))
        if ii < 3: asm("s_add_u32 %s, %s, 40960" % (s(sKO), s(sKO)))
    asm.label("%s_nok" % N)
    q_loads()
    asm("s_waitcnt vmcnt(0)")
    lds_inc(W_K)
    asm("s_branch %s_kwait" % N)
    asm.label("%s_w67" % N)
    vDWO = 243
    sDA, sDM = 4, 5
    SWO = SA_
    decode3()
    asm("s_load_dwordx2 s[4:5], s[0:1], 16")
    asm("s_load_dwordx2 s[6:7], s[0:1], 40")
    asm("s_movk_i32 %s, 6554" % s(sT2))
    asm("s_movk_i32 %s, 1280" % s(sT3))
    for b in range(5):
        asm("v_add_u32 %s, %d, %s" % (v(vT), 64 * b, v(vL)))
        asm("v_mul_lo_u32 %s, %s, %s" % (v(vT + 1), v(vT), s(sT2)))
        asm("v_lshrrev_b32 %s, 16, %s" % (v(vT + 1), v(vT + 1)))
        asm("v_mul_u32_u24 %s, 10, %s" % (v(vT + 2), v(vT + 1)))
        asm("v_sub_u32 %s, %s, %s" % (v(vT), v(vT), v(vT + 2)))
        asm("v_lshlrev_b32 %s, 4, %s" % (v(vT), v(vT)))
        asm("v_mad_u32_u24 %s, %s, %s, %s" % (v(vDWO + b), v(vT + 1), s(sT3), v(vT)))
        if 0 < b < 4: asm("v_subrev_u32 %s, %d, %s" % (v(vDWO + b), b * 1024, v(vDWO + b)))
    asm("s_waitcnt lgkmcnt(0)")
    asm("s_cmp_eq_u32 %s, 0" % s(sBR3))
    asm("s_cselect_b32 s4, s4, s6")
    asm("s_cselect_b32 s5, s5, s7")
    asm("s_mul_i32 %s, %s, 160" % (s(sT0), s(sCB3)))
    asm("s_add_u32 s4, s4, %s" % s(sT0))
    asm("s_addc_u32 s5, s5, 0")
    asm("s_sub_u32 %s, %d, %s" % (s(sT1), 640 * 1280, s(sT0)))
    srd(asm, SWO, "s4", "s5", s(sT1))
    asm("s_and_b32 %s, %s, 1" % (s(sT0), s(sW)))
    asm("s_mul_i32 %s, %s, %d" % (s(sDA), s(sT0), 32 * 1280))
    asm("s_mul_i32 %s, %s, 5120" % (s(sDM), s(sT0)))
    def wo_group():
        asm("s_mov_b32 m0, %s" % s(sDM)); asm("s_nop 0")
        asm("buffer_load_dwordx4 %s, %s, %s offen lds" % (v(vDWO), s(SWO, 4), s(sDA)))
        for b in range(1, 4):
            asm("buffer_load_dwordx4 %s, %s, %s offen offset:%d lds" % (v(vDWO + b), s(SWO, 4), s(sDA), b * 1024))
        asm("s_add_u32 m0, %s, 4096" % s(sDM)); asm("s_nop 0")
        asm("buffer_load_dwordx4 %s, %s, %s offen lds" % (v(vDWO + 4), s(SWO, 4), s(sDA)))
        asm("s_add_u32 %s, %s, %d" % (s(sDA), s(sDA), 2 * 32 * 1280))
        asm("s_add_u32 %s, %s, %d" % (s(sDM), s(sDM), 2 * 5120))
    asm("s_cmp_ge_u32 %s, 30" % s(sSLOT))
    asm("s_cbranch_scc1 %s_wogo" % N)
    lds_wait(W_ISS, vT, vT + 1, atleast=4)
    asm.label("%s_wogo" % N)
    asm("s_mov_b32 s6, 0")
    asm.label("%s_woloop" % N)
    wo_group()
    asm("s_add_u32 s6, s6, 1")
    asm("s_cmp_lt_u32 s6, 10")
    asm("s_cbranch_scc1 %s_woloop" % N)
    lds_wait(W_S1, vT, vT + 1)
    asm("s_waitcnt vmcnt(30)")
    q_loads()
    asm("v_cmp_le_u32 vcc, 20, %s" % v(vL))
    asm("v_mov_b32 %s, 0" % v(vT))
    asm("v_mov_b32 %s, %d" % (v(vT + 1), 10240 - 320))
    asm("v_cndmask_b32 %s, %s, %s, vcc" % (v(vT), v(vT), v(vT + 1)))
    asm("v_add_u32 %s, %s, %s" % (v(vFo), v(vT), v(vLin)))
    asm("s_and_b32 %s, %s, 1" % (s(sIk), s(sW)))
    asm("s_lshl_b32 %s, %s, 3" % (s(sIk), s(sIk)))
    asm("s_or_b32 %s, %s, %s" % (s(sT0), s(sIk), s(sRB2)))
    asm("s_cmp_eq_u32 %s, 0" % s(sT0))
    asm("s_cbranch_scc1 %s_nov" % N)
    asm("s_lshl_b32 %s, %s, 3" % (s(sTK), s(sRB2)))
    asm("s_add_u32 %s, %s, %s" % (s(sTK), s(sTK), s(sIk)))
    asm("s_sub_u32 %s, %s, 8" % (s(sTK), s(sTK)))
    asm("s_mul_i32 %s, %s, 40960" % (s(sKO), s(sTK)))
    asm("s_mul_i32 %s, %s, 320" % (s(sT1), s(sHH)))
    asm("s_add_u32 %s, %s, %s" % (s(sKO), s(sKO), s(sT1)))
    asm("s_add_u32 %s, %s, %d" % (s(sKO), s(sKO), R_VB))
    asm("s_mul_i32 %s, %s, 1280" % (s(sLK), s(sIk)))
    asm("s_add_u32 %s, %s, %d" % (s(sLK), s(sLK), L_V))
    asm("s_mov_b64 exec, %s" % s(sM40, 2))
    for ii in range(8):
        asm("s_add_u32 m0, %s, %d" % (s(sLK), ii * 1280))
        asm("s_add_u32 %s, %s, %d" % (s(sT1), s(sKO), 20480 - 640))
        asm("buffer_load_dwordx4 %s, %s, %s offen sc1 lds" % (v(vFo), s(SWS, 4), s(sKO)))
        asm("buffer_load_dwordx4 %s, %s, %s offen offset:640 sc1 lds" % (v(vFo), s(SWS, 4), s(sT1)))
        if ii < 7: asm("s_add_u32 %s, %s, 40960" % (s(sKO), s(sKO)))
    asm("s_mov_b64 exec, -1")
    asm("s_waitcnt vmcnt(16)")
    asm("s_branch %s_kwait" % N)
    asm.label("%s_nov" % N)
    asm("s_waitcnt vmcnt(0)")
    asm("s_branch %s_kwait" % N)
    asm.label("%s_w5" % N)
    own_tile_wait()
    asm("s_add_u32 %s, %s, 7" % (s(sT0), s(sRB2)))
    asm("s_lshl_b32 %s, %s, 7" % (s(sT0), s(sT0)))
    asm("s_and_b32 %s, %s, %d" % (s(sT1), s(sP8) if REPL <= 8 else s(sHH), REPL - 1))
    asm("s_lshl_b32 %s, %s, 11" % (s(sT1), s(sT1)))
    asm("s_add_u32 %s, %s, %s" % (s(sT0), s(sT0), s(sT1)))
    asm("s_add_u32 %s, %s, %d" % (s(sPL), s(sT0), F1))
    if FINE:
        tile_masks()
        asm("s_lshl_b32 %s, %s, 5" % (s(sT3), s(sT1)))
        asm("s_lshl_b32 %s, %s, 10" % (s(sT2), s(sT2)))
        asm("s_or_b32 %s, %s, %s" % (s(sT3), s(sT3), s(sT2)))
        asm("s_or_b32 %s, %s, %s" % (s(sT1), s(sT1), s(sT3)))
        asm("s_lshl_b32 %s, %s, 16" % (s(sT1), s(sT1)))
        asm("s_cmp_eq_u32 %s, 0" % s(sRB2))
        asm("s_cselect_b32 %s, 0, %s" % (s(sT3), s(sT3)))
        asm("s_or_b32 %s, %s, %s" % (s(sT1), s(sT1), s(sT3)))
    else:
        asm("s_cmp_eq_u32 %s, 0" % s(sRB2))
        asm("s_cselect_b32 %s, 0, 0x7fe0" % s(sT1))
        asm("s_or_b32 %s, %s, 0x7fff0000" % (s(sT1), s(sT1)))
    if opts.get("ppoll", 0): ppoll(s(sPL), 32, [244, 246, 248], vL8, smask=s(sT1))
    else: poll(s(sPL), 32, vT, vL8, smask=s(sT1))
    lds_set(W_S1, vT, vT + 1)
    st(4)
    q_loads()
    asm("s_waitcnt vmcnt(0)")
    asm("s_branch %s_kwait" % N)
    asm.label("%s_aearly" % N)
    asm("v_lshrrev_b32 %s, 5, %s" % (v(vT), v(vL)))
    asm("v_mul_u32_u24 %s, 10240, %s" % (v(vT), v(vT)))
    asm("v_and_b32 %s, 31, %s" % (v(vU), v(vL)))
    asm("v_lshl_add_u32 %s, %s, 4, %s" % (v(vFo), v(vU), v(vT)))
    asm("v_mov_b32 %s, 0x3f803f80" % v(vT + 2))
    for r in range(64, 128): asm("v_mov_b32 %s, %s" % (v(r), v(vT + 2)))
    own_tile_wait()
    asm("s_lshl_b32 %s, %s, 7" % (s(sT0), s(sRB2)))
    asm("s_and_b32 %s, %s, %d" % (s(sT1), s(sP8) if REPL <= 8 else s(sHH), REPL - 1))
    asm("s_lshl_b32 %s, %s, 11" % (s(sT1), s(sT1)))
    asm("s_add_u32 %s, %s, %s" % (s(sT0), s(sT0), s(sT1)))
    asm("s_add_u32 %s, %s, %d" % (s(sPL), s(sT0), F1))
    if FINE:
        tile_masks()
        asm("s_lshl_b32 %s, %s, 5" % (s(sT3), s(sT2)))
        asm("s_lshl_b32 %s, %s, 10" % (s(sT2), s(sT2)))
        asm("s_or_b32 %s, %s, %s" % (s(sT1), s(sT1), s(sT3)))
        asm("s_or_b32 %s, %s, %s" % (s(sT1), s(sT1), s(sT2)))
        if opts.get("ppoll", 0): ppoll(s(sPL), 15, [244, 246, 248], vL8, smask=s(sT1))
        else: poll(s(sPL), 15, vT, vL8, smask=s(sT1))
    else:
        poll(s(sPL), 15, vT, vL8)
    lds_set(W_S1A, vT, vT + 1)
    st(4)
    asm("s_lshl_b32 %s, %s, 3" % (s(sT0), s(sRB2)))
    asm("s_mul_i32 %s, %s, 40960" % (s(sT0), s(sT0)))
    asm("s_mul_i32 %s, %s, 320" % (s(sT1), s(sHH)))
    asm("s_add_u32 %s, %s, %s" % (s(sT0), s(sT0), s(sT1)))
    asm("s_add_u32 %s, %s, %d" % (s(sT1), s(sT0), R_KA))
    asm("s_add_u32 %s, %s, %d" % (s(sT2), s(sT0), R_VA))
    asm("s_mov_b64 exec, %s" % s(sMSK, 2))
    for b in range(8):
        for m in range(2):
            asm("buffer_load_dwordx4 %s, %s, %s, %s offen sc1" % (v((b * 2 + m) * 4, 4), v(vFo), s(SWS, 4), s(sT1)))
            asm("buffer_load_dwordx4 %s, %s, %s, %s offen sc1" % (v(64 + (b * 2 + m) * 4, 4), v(vFo), s(SWS, 4), s(sT2)))
            asm("s_add_u32 %s, %s, 20480" % (s(sT1), s(sT1)))
            asm("s_add_u32 %s, %s, 20480" % (s(sT2), s(sT2)))
    asm("s_mov_b64 exec, -1")
    lds_wait(W_S1, vT, vT + 1)
    q_loads()
    for b in range(16):
        asm("s_waitcnt vmcnt(%d)" % (32 - 2 * b))
        c = "0" if b == 0 else v(O, 16)
        asm("v_mfma_f32_32x32x16_bf16 %s, %s, %s, %s" % (v(O, 16), v(b * 4, 4), v(64 + b * 4, 4), c))
    asm("s_lshl_b32 %s, %s, 3" % (s(sT0), s(sHH)))
    asm("s_add_u32 %s, %s, %s" % (s(sT0), s(sT0), s(sRB2)))
    asm("s_mul_i32 %s, %s, 3072" % (s(sT0), s(sT0)))
    asm("s_add_u32 %s, %s, %d" % (s(sT0), s(sT0), R_KVP))
    asm("s_nop 7"); asm("s_nop 1")
    for j in range(3):
        asm("buffer_store_dwordx4 %s, %s, %s, %s offen offset:%d sc1" % (v(O + 4 * j, 4), v(vLin), s(SWS, 4), s(sT0), j * 1024))
    asm("s_waitcnt vmcnt(3)")
    asm.label("%s_kwait" % N)
    lds_wait(W_K, vT, vT + 1, atleast=4)
    st(5)
    PRIO = opts.get("prio", 0)
    if PRIO:
        asm("s_cmp_%s_u32 %s, 4" % ("lt" if PRIO == 1 else "ge", s(sW)))
        asm("s_cbranch_scc0 %s_noprio" % N)
        asm("s_setprio 2")
        asm.label("%s_noprio" % N)
    def rdK(d, dst):
        for gg in range(2):
            asm("ds_read_b128 %s, %s offset:%d" % (v(dst + 4 * gg, 4), v(vKa), (8 - d) * 2048 + gg * 1024))
    def rdV(d, dst):
        asm("s_mov_b64 exec, %s" % s(sMSK, 2))
        for m in range(2):
            asm("ds_read_b128 %s, %s offset:%d" % (v(dst + 4 * m, 4), v(vVa), (8 - d) * 1280 + m * 640))
        asm("s_mov_b64 exec, -1")
    rdK(0, F[0])
    for gg in range(2):
        for p in range(2):
            k = gg * 2 + p
            for j in range(2):
                r = Q + 4 * gg + 2 * p + j
                asm("v_cndmask_b32 %s, 0, %s, %s" % (v(r), v(r), s(sQM + 2 * k, 2)))
    def maxes(d):
        b = S + 16 * d
        if d == 0:
            asm("v_max3_f32 %s, %s, %s, %s" % (v(vM), v(b), v(b + 1), v(b + 2)))
            for k in range(3, 15, 2):
                asm("v_max3_f32 %s, %s, %s, %s" % (v(vM), v(vM), v(b + k), v(b + k + 1)))
            asm("v_max_f32 %s, %s, %s" % (v(vM), v(vM), v(b + 15)))
        else:
            for k in range(0, 16, 2):
                asm("v_max3_f32 %s, %s, %s, %s" % (v(vM), v(vM), v(b + k), v(b + k + 1)))
    for d in range(9):
        cur, nxt = F[d & 1], F[(d + 1) & 1]
        asm("s_waitcnt lgkmcnt(0)")
        if d < 8: rdK(d + 1, nxt)
        if d > 0:
            asm("s_cmp_le_u32 %s, %d" % (s(sNT), d))
            asm("s_cbranch_scc1 %s_p1skip%d" % (N, d))
        else:
            asm("s_nop 1")
        c = v(CM8, 16) if d == 0 else (v(CM0, 16) if d == 8 else "0")
        b = v(S + 16 * d, 16)
        asm("v_mfma_f32_32x32x16_bf16 %s, %s, %s, %s" % (b, v(cur, 4), v(Q, 4), c))
        asm("v_mfma_f32_32x32x16_bf16 %s, %s, %s, %s" % (b, v(cur + 4, 4), v(Q + 4, 4), b))
        if d > 0:
            asm.label("%s_p1skip%d" % (N, d))
            if d == 1: asm("s_nop 7")
            maxes(d - 1)
            asm("s_cbranch_scc1 %s_p1end" % N)
    asm("s_nop 3")
    maxes(8)
    asm.label("%s_p1end" % N)
    st(6)
    SIGD = opts.get("sigd", 2)
    def a_signal():
        asm("s_cmp_lg_u32 %s, %d" % (s(sW), AW))
        asm("s_cbranch_scc1 %s_nosig" % N)
        asm("s_waitcnt vmcnt(0)")
        asm("s_lshl_b32 %s, %s, 4" % (s(sT0), s(sHH)))
        asm("s_add_u32 %s, %s, %s" % (s(sT0), s(sT0), s(sRB2)))
        asm("s_lshl_b32 %s, %s, 3" % (s(sT0), s(sT0)))
        asm("s_add_u32 %s, %s, %d" % (s(sT0), s(sT0), F2))
        flag_store(s(sT0), vT, vT + 2)
        asm.label("%s_nosig" % N)
    if SIGD < 0: a_signal()
    asm("s_cmp_lt_u32 %s, 6" % s(sW))
    asm("s_cbranch_scc1 %s_vw" % N)
    asm("s_waitcnt vmcnt(0)")
    lds_inc(W_V)
    asm.label("%s_vw" % N)
    lds_wait(W_V, vT, vT + 1, atleast=2)
    asm("s_waitcnt lgkmcnt(0)")
    asm("s_mov_b32 %s, 0x3f803f80" % s(sT0))
    for r in range(16): asm("v_mov_b32 %s, %s" % (v(VF[0] + r), s(sT0)))
    rdV(0, VF[0])
    asm("v_mov_b32 %s, %s" % (v(vT + 2), v(vM)))
    asm("v_mov_b32 %s, %s" % (v(vT + 3), v(vM)))
    asm("s_nop 1")
    asm("v_permlane32_swap_b32 %s, %s" % (v(vT + 2), v(vT + 3)))
    asm("s_nop 1")
    asm("v_max_f32 %s, %s, %s" % (v(vM), v(vT + 2), v(vT + 3)))
    asm("v_sub_f32 %s, 0, %s" % (v(vNM), v(vM)))
    asm("v_sub_f32 %s, 0, %s" % (v(vNM + 1), v(vM)))
    PQD = opts.get("pqd", 5)
    sPQ = 7
    asm("s_mov_b32 %s, 0" % s(sPQ))
    def pq_loads():
        lds_wait(W_S1A, vT + 4, vT + 5)
        asm("buffer_load_dwordx4 %s, %s, %s, %s offen sc1" % (v(Q, 4), v(vLin), s(SWS, 4), s(sOffQA)))
        asm("buffer_load_dwordx4 %s, %s, %s, %s offen offset:1024 sc1" % (v(Q + 4, 4), v(vLin), s(SWS, 4), s(sOffQA)))
    for d in range(9):
        cur, nxt = VF[d & 1], VF[(d + 1) & 1]
        b = S + 16 * d
        if d > 0:
            asm("s_cmp_le_u32 %s, %d" % (s(sNT), d))
            asm("s_cbranch_scc1 %s_p2end" % N)
        for k in range(8):
            asm("v_pk_add_f32 %s, %s, %s" % (v(b + 2 * k, 2), v(b + 2 * k, 2), v(vNM, 2)))
        for k in range(16):
            asm("v_exp_f32 %s, %s" % (v(b + k), v(b + k)))
        asm("s_waitcnt lgkmcnt(0)")
        if d < 8: rdV(d + 1, nxt)
        for k in range(8):
            asm("v_cvt_pk_bf16_f32 %s, %s, %s" % (v(b + k), v(b + 2 * k), v(b + 2 * k + 1)))
        asm("s_nop 1")
        asm("v_mfma_f32_32x32x16_bf16 %s, %s, %s, %s" % (v(O, 16), v(cur, 4), v(b, 4), "0" if d == 0 else v(O, 16)))
        asm("v_mfma_f32_32x32x16_bf16 %s, %s, %s, %s" % (v(O, 16), v(cur + 4, 4), v(b + 4, 4), v(O, 16)))
        if d == SIGD: a_signal()
        if d == PQD:
            pq_loads()
            asm("s_mov_b32 %s, 1" % s(sPQ))
    asm.label("%s_p2end" % N)
    if PRIO: asm("s_setprio 0")
    if PQD > 0:
        asm("s_cmp_lg_u32 %s, 0" % s(sPQ))
        asm("s_cbranch_scc1 %s_pqdone" % N)
        pq_loads()
        asm.label("%s_pqdone" % N)
    st(7)
    def normalize(dst, eps):
        asm("v_mov_b32 %s, %s" % (v(vT), v(O + 8)))
        asm("v_mov_b32 %s, %s" % (v(vT + 1), v(O + 8)))
        asm("s_nop 1")
        asm("v_permlane32_swap_b32 %s, %s" % (v(vT), v(vT + 1)))
        asm("s_nop 1")
        if eps: asm("v_add_f32 %s, %s, %s" % (v(vT + 1), s(sEPS), v(vT + 1)))
        asm("v_rcp_f32 %s, %s" % (v(vT + 1), v(vT + 1)))
        asm("s_nop 0")
        for k in range(12): asm("v_mul_f32 %s, %s, %s" % (v(O + k), v(vT + 1), v(O + k)))
        for k in range(6): asm("v_cvt_pk_bf16_f32 %s, %s, %s" % (v(dst + k), v(O + 2 * k), v(O + 2 * k + 1)))
    def store_o(src, region):
        asm("s_add_u32 %s, %s, %d" % (s(sT0), s(sOffO), region))
        asm("buffer_store_dwordx4 %s, %s, %s, %s offen%s" % (v(src, 4), v(vOm), s(SWS, 4), s(sT0), SC))
        asm("buffer_store_dwordx2 %s, %s, %s, %s offen%s" % (v(src + 4, 2), v(vOr), s(SWS, 4), s(sT0), SC))
    asm("s_mov_b32 %s, %s" % (s(sEPS), fhex(1e-6)))
    asm("s_cmp_ge_u32 %s, 4" % s(sW))
    asm("s_cbranch_scc1 %s_hiwaves" % N)
    asm("s_lshl_b32 %s, %s, 7" % (s(sPL), s(sHH)))
    asm("s_add_u32 %s, %s, %d" % (s(sPL), s(sPL), F2))
    asm("s_cmp_lg_u32 %s, 0" % s(sW))
    asm("s_cbranch_scc1 %s_w123" % N)
    poll_issue(s(sPL), vT + 4, vL8, 8)
    asm("s_nop 7"); asm("s_nop 3")
    normalize(PB, False)
    poll(s(sPL), 8, vT + 4, vL8, preissued=True)
    lds_set(W_S2, vT + 4, vT + 5)
    asm("s_branch %s_w0123" % N)
    asm.label("%s_w123" % N)
    asm("s_nop 7"); asm("s_nop 3")
    normalize(PB, False)
    lds_wait(W_S2, vT + 4, vT + 5)
    asm.label("%s_w0123" % N)
    asm("s_lshl_b32 %s, %s, 1" % (s(sT0), s(sW)))
    asm("s_sub_u32 %s, %s, %s" % (s(sT0), s(sT0), s(sDQ)))
    asm("v_lshrrev_b32 %s, 5, %s" % (v(vT), v(vL)))
    asm("v_add_u32 %s, %s, %s" % (v(vT), s(sT0), v(vT)))
    asm("v_and_b32 %s, 31, %s" % (v(vT + 1), v(vL)))
    asm("v_lshlrev_b32 %s, 4, %s" % (v(vT + 1), v(vT + 1)))
    asm("v_lshl_add_u32 %s, %s, 9, %s" % (v(vT + 1), v(vT), v(vT + 1)))
    asm("v_cmp_ge_u32 vcc, 4, %s" % v(vT))
    asm("v_mov_b32 %s, 0x%x" % (v(vT + 2), OOB))
    asm("s_nop 0")
    asm("v_cndmask_b32 %s, %s, %s, vcc" % (v(vU), v(vT + 2), v(vT + 1)))
    asm("s_lshl_b32 %s, %s, 3" % (s(sT0), s(sHH)))
    asm("s_mul_i32 %s, %s, 3072" % (s(sT0), s(sT0)))
    asm("s_add_u32 %s, %s, %d" % (s(sT0), s(sT0), R_KVP))
    for r in range(8):
        asm("buffer_load_dwordx4 %s, %s, %s, %s offen sc1" % (v(S + 4 * r, 4), v(vU), s(SWS, 4), s(sT0)))
        if r < 7: asm("s_add_u32 %s, %s, 3072" % (s(sT0), s(sT0)))
    store_o(PB, R_OB)
    asm("s_waitcnt vmcnt(2)")
    for r in range(1, 8):
        for k in range(4):
            asm("v_add_f32 %s, %s, %s" % (v(S + k), v(S + k), v(S + 4 * r + k)))
    asm("v_cvt_pk_bf16_f32 %s, %s, %s" % (v(vT), v(S), v(S + 1)))
    asm("v_cvt_pk_bf16_f32 %s, %s, %s" % (v(vT + 1), v(S + 2), v(S + 3)))
    asm("s_lshr_b32 %s, %s, 1" % (s(sT0), s(sW)))
    asm("s_lshl_b32 %s, %s, 10" % (s(sT0), s(sT0)))
    asm("s_and_b32 %s, %s, 1" % (s(sT1), s(sW)))
    asm("s_lshl_b32 %s, %s, 3" % (s(sT1), s(sT1)))
    asm("s_add_u32 %s, %s, %s" % (s(sT0), s(sT0), s(sT1)))
    asm("s_add_u32 %s, %s, %d" % (s(sT0), s(sT0), L_KVT))
    asm("v_add_u32 %s, %s, %s" % (v(vU), s(sT0), v(vLin)))
    asm("ds_write_b64 %s, %s" % (v(vU), v(vT, 2)))
    asm("s_branch %s_join" % N)
    asm.label("%s_hiwaves" % N)
    asm("s_nop 7"); asm("s_nop 3")
    normalize(PB, False)
    store_o(PB, R_OB)
    asm.label("%s_join" % N)
    asm("s_waitcnt lgkmcnt(0)")
    asm("s_barrier")
    st(8)
    asm("v_add_u32 %s, 0x%x, %s" % (v(vU), L_KVT, v(vLin)))
    asm("ds_read_b128 %s, %s" % (v(F[0], 4), v(vU)))
    asm("ds_read_b128 %s, %s offset:1024" % (v(F[0] + 4, 4), v(vU)))
    sF3 = 69
    asm("s_lshl_b32 %s, %s, 5" % (s(sF3), s(sRB2)))
    asm("s_add_u32 %s, %s, %s" % (s(sF3), s(sF3), s(sHH)))
    asm("s_lshl_b32 %s, %s, 3" % (s(sF3), s(sF3)))
    asm("s_add_u32 %s, %s, %d" % (s(sF3), s(sF3), F3))
    asm("s_waitcnt vmcnt(2) lgkmcnt(0)")
    asm("v_mfma_f32_32x32x16_bf16 %s, %s, %s, 0" % (v(O, 16), v(F[0], 4), v(Q, 4)))
    asm("v_mfma_f32_32x32x16_bf16 %s, %s, %s, %s" % (v(O, 16), v(F[0] + 4, 4), v(Q + 4, 4), v(O, 16)))
    asm("s_nop 7"); asm("s_nop 3")
    normalize(PA, True)
    store_o(PA, R_OA)
    asm("s_add_u32 %s, %s, %d" % (s(sT1), s(sF3), 8 * 256))
    asm("s_waitcnt vmcnt(2)")
    release()
    lds_arrive(W_CNT3B, 8, vT + 6, vT + 4, s(sT1))
    asm("s_waitcnt vmcnt(0)")
    release()
    lds_arrive(W_CNT3A, 8, vT + 6, vT + 4, s(sF3))
    st(9)
    asm("s_cmp_ge_u32 %s, 4" % s(sW))
    asm("s_cbranch_scc1 %s_fin" % N)
    OF = 0; ACC3 = 160; WF = [200, 220]
    vOM, vOR, vWm, vWm2, vWr, vWr2 = 245, 246, 247, 248, 249, 250
    p3L, p3T, p3U, p3X = 251, 252, 253, 254
    vDW3 = 240
    sTB3, sOffO3, sOM = 44, 45, 46
    SOUT = SB_
    decode3()
    asm("s_load_dwordx2 s[4:5], s[0:1], 48")
    asm("s_lshl_b32 %s, %s, 2" % (s(sTB3), s(sRB3)))
    asm("s_add_u32 %s, %s, %s" % (s(sTB3), s(sTB3), s(sW)))
    lane(p3L)
    asm("v_lshlrev_b32 %s, 3, %s" % (v(p3X), v(p3L)))
    asm("s_lshl_b32 %s, %s, 3" % (s(sT0), s(sBR3)))
    asm("s_lshr_b32 %s, %s, 1" % (s(sT1), s(sRB3)))
    asm("s_add_u32 %s, %s, %s" % (s(sT0), s(sT0), s(sT1)))
    asm("s_lshl_b32 %s, %s, 8" % (s(sT0), s(sT0)))
    asm("s_add_u32 %s, %s, %d" % (s(sPL), s(sT0), F3))
    asm("v_lshrrev_b32 %s, 4, %s" % (v(p3T), v(p3L)))
    asm("v_and_b32 %s, 15, %s" % (v(p3U), v(p3L)))
    asm("v_lshrrev_b32 %s, 1, %s" % (v(vWm2), v(p3T)))
    asm("v_mul_u32_u24 %s, 1280, %s" % (v(vOM), v(vWm2)))
    asm("v_and_b32 %s, 1, %s" % (v(vWm2), v(p3T)))
    asm("v_lshl_add_u32 %s, %s, 9, %s" % (v(vOM), v(vWm2), v(vOM)))
    asm("v_lshl_add_u32 %s, %s, 4, %s" % (v(vOM), v(p3U), v(vOM)))
    asm("v_mul_u32_u24 %s, 1280, %s" % (v(vOR), v(p3T)))
    asm("v_lshl_add_u32 %s, %s, 3, %s" % (v(vOR), v(p3U), v(vOR)))
    asm("v_add_u32 %s, 1024, %s" % (v(vOR), v(vOR)))
    asm("v_bfe_u32 %s, %s, 2, 2" % (v(p3U), v(p3L)))
    asm("v_lshrrev_b32 %s, 1, %s" % (v(vWm2), v(p3T)))
    asm("v_mul_u32_u24 %s, 20, %s" % (v(vWm), v(vWm2)))
    asm("v_and_b32 %s, 1, %s" % (v(vWm2), v(p3T)))
    asm("v_lshl_add_u32 %s, %s, 2, %s" % (v(vWm), v(vWm2), v(vWm)))
    asm("v_add_u32 %s, %s, %s" % (v(vWm), v(vWm), v(p3U)))
    asm("v_mul_u32_u24 %s, 160, %s" % (v(vWm), v(vWm)))
    asm("v_mul_u32_u24 %s, 20, %s" % (v(vWr), v(p3T)))
    asm("v_add_u32 %s, %s, %s" % (v(vWr), v(vWr), v(p3U)))
    asm("v_add_u32 %s, 16, %s" % (v(vWr), v(vWr)))
    asm("v_mul_u32_u24 %s, 160, %s" % (v(vWr), v(vWr)))
    asm("v_and_b32 %s, 3, %s" % (v(vWm2), v(p3L)))
    asm("v_lshl_add_u32 %s, %s, 3, %s" % (v(vWm), v(vWm2), v(vWm)))
    asm("v_lshl_add_u32 %s, %s, 3, %s" % (v(vWr), v(vWm2), v(vWr)))
    asm("v_add_u32 %s, 51200, %s" % (v(vWm2), v(vWm)))
    asm("v_add_u32 %s, 51200, %s" % (v(vWr2), v(vWr)))
    asm("s_mul_i32 %s, %s, %d" % (s(sOffO3), s(sBR3), REG))
    asm("s_add_u32 %s, %s, %d" % (s(sOffO3), s(sOffO3), R_OA))
    asm("s_mul_i32 %s, %s, 40960" % (s(sT0), s(sTB3)))
    asm("s_add_u32 %s, %s, %s" % (s(sOffO3), s(sOffO3), s(sT0)))
    asm("s_waitcnt lgkmcnt(0)")
    srd(asm, SOUT, "s4", "s5", 2048 * 2560)
    asm("s_cmp_lg_u32 %s, 0" % s(sW))
    asm("s_cbranch_scc1 %s_p3w" % N)
    if opts.get("ppoll", 0): ppoll(s(sPL), 32, [vDW3, vDW3 + 2], p3X)
    else: poll(s(sPL), 32, vDW3, p3X)
    lds_set(W_S3, p3T, p3U)
    asm("s_branch %s_p3go" % N)
    asm.label("%s_p3w" % N)
    lds_wait(W_S3, vDW3, vDW3 + 1)
    asm.label("%s_p3go" % N)
    st(10)
    def oloads(sidx):
        if sidx < 16:
            asm("s_add_u32 %s, %s, %d" % (s(sOM), s(sOffO3), 2560 * sidx))
            for rt in range(2):
                asm("buffer_load_dwordx4 %s, %s, %s, %s offen offset:%d%s" % (v(OF + (sidx * 2 + rt) * 4, 4), v(vOM), s(SWS, 4), s(sOM), rt * 256, LSC3))
        else:
            a_ = sidx - 16
            for half in range(2):
                asm("s_add_u32 %s, %s, %d" % (s(sOM), s(sOffO3), a_ * 8 * 1280 + half * 5120))
                for rt in range(2):
                    asm("buffer_load_dwordx2 %s, %s, %s, %s offen offset:%d%s" % (v(OF + ((16 + a_) * 2 + rt) * 4 + 2 * half, 2), v(vOR), s(SWS, 4), s(sOM), rt * 128, LSC3))
    def cum(k): return 2 * (k + 1) if k < 16 else 32 + 4 * (k - 15)
    PD = opts.get("pd", 5)
    for k in range(PD): oloads(k)
    def wreads(step, dst):
        ops = []
        for ct in range(5):
            for a_ in range(2):
                if step < 16:
                    base = vWm if step < 8 else vWm2
                    off = (step & 7) * 6400 + a_ * 1280 + ct * 32
                else:
                    ap = step - 16
                    base = vWr if ap < 2 else vWr2
                    off = (ap & 1) * 25600 + a_ * 12800 + ct * 32
                ops.append(lambda ct=ct, a_=a_, base=base, off=off: asm("ds_read_b64_tr_b16 %s, %s offset:%d" % (v(dst + 4 * ct + 2 * a_, 2), v(base), off)))
        return ops
    if opts.get("p3st"): st(1)
    for f in wreads(0, WF[0]): f()
    for sidx in range(20):
        cur = WF[sidx & 1]
        nxt_ops = wreads(sidx + 1, WF[(sidx + 1) & 1]) if sidx < 19 else []
        vm = cum(min(sidx + PD - 1, 19)) - cum(sidx)
        asm("s_waitcnt vmcnt(%d) lgkmcnt(0)" % vm)
        if opts.get("p3st") and sidx in (0, 8, 16): st({0: 2, 8: 3, 16: 4}[sidx])
        m = 0
        for ct in range(5):
            for rt in range(2):
                acc = v(ACC3 + (rt * 5 + ct) * 4, 4)
                c = "0" if sidx == 0 else acc
                asm("v_mfma_f32_16x16x32_bf16 %s, %s, %s, %s" % (acc, v(cur + 4 * ct, 4), v(OF + (sidx * 2 + rt) * 4, 4), c))
                if m < 5 and nxt_ops:
                    nxt_ops[2 * m](); nxt_ops[2 * m + 1]()
                if m == 5 and sidx + PD < 20: oloads(sidx + PD)
                m += 1
    st(11)
    asm("v_and_b32 %s, 15, %s" % (v(p3U), v(p3L)))
    asm("v_mul_u32_u24 %s, 160, %s" % (v(p3U), v(p3U)))
    asm("v_lshrrev_b32 %s, 4, %s" % (v(p3T), v(p3L)))
    asm("v_lshl_add_u32 %s, %s, 3, %s" % (v(p3U), v(p3T), v(p3U)))
    asm("s_mul_i32 %s, %s, 5120" % (s(sT0), s(sW)))
    asm("s_add_u32 %s, %s, %d" % (s(sT0), s(sT0), L_OUT))
    asm("v_add_u32 %s, %s, %s" % (v(p3U), s(sT0), v(p3U)))
    asm("v_lshlrev_b32 %s, 4, %s" % (v(p3X), v(p3L)))
    asm("v_add_u32 %s, %s, %s" % (v(p3X), s(sT0), v(p3X)))
    asm("s_nop 3")
    for rt in range(2):
        for ct in range(5):
            b = ACC3 + (rt * 5 + ct) * 4
            t = OF + (rt * 5 + ct) * 2
            asm("v_cvt_pk_bf16_f32 %s, %s, %s" % (v(t), v(b), v(b + 1)))
            asm("v_cvt_pk_bf16_f32 %s, %s, %s" % (v(t + 1), v(b + 2), v(b + 3)))
            asm("ds_write_b64 %s, %s offset:%d" % (v(p3U), v(t, 2), rt * 2560 + ct * 32))
    asm("s_movk_i32 %s, 6554" % s(sT2))
    asm("s_movk_i32 %s, 2560" % s(sT3))
    for b in range(5):
        asm("v_add_u32 %s, %d, %s" % (v(p3T), 64 * b, v(p3L)))
        asm("v_mul_lo_u32 %s, %s, %s" % (v(vWm), v(p3T), s(sT2)))
        asm("v_lshrrev_b32 %s, 16, %s" % (v(vWm), v(vWm)))
        asm("v_mul_u32_u24 %s, 10, %s" % (v(vWr), v(vWm)))
        asm("v_sub_u32 %s, %s, %s" % (v(p3T), v(p3T), v(vWr)))
        asm("v_lshlrev_b32 %s, 4, %s" % (v(p3T), v(p3T)))
        asm("v_mad_u32_u24 %s, %s, %s, %s" % (v(vDW3 + b), v(vWm), s(sT3), v(p3T)))
    asm("s_mul_i32 %s, %s, %d" % (s(sT0), s(sTB3), 32 * 2560))
    asm("s_mul_i32 %s, %s, 1280" % (s(sT1), s(sBR3)))
    asm("s_add_u32 %s, %s, %s" % (s(sT0), s(sT0), s(sT1)))
    asm("s_mul_i32 %s, %s, 160" % (s(sT1), s(sCB3)))
    asm("s_add_u32 %s, %s, %s" % (s(sT0), s(sT0), s(sT1)))
    asm("s_waitcnt lgkmcnt(0)")
    for b in range(5):
        asm("ds_read_b128 %s, %s offset:%d" % (v(32 + 4 * b, 4), v(p3X), b * 1024))
    for b in range(5):
        asm("s_waitcnt lgkmcnt(%d)" % (4 - b))
        asm("buffer_store_dwordx4 %s, %s, %s, %s offen%s" % (v(32 + 4 * b, 4), v(vDW3 + b), s(SOUT, 4), s(sT0), {0: "", 1: " sc1", 2: " nt", 3: " sc0 sc1"}[opts.get("outsc", 0)]))
    asm.label("%s_fin" % N)
    if stamp:
        asm("s_waitcnt vmcnt(0)")
        st(12)
        asm("s_waitcnt lgkmcnt(0)")
        asm("s_load_dwordx2 s[4:5], s[0:1], 64")
        asm("s_waitcnt lgkmcnt(0)")
        asm("s_add_u32 s4, s4, %d" % (R_STAMP + (opts.get("wsoff", 0) << 20)))
        asm("s_addc_u32 s5, s5, 0")
        srd(asm, SA_, "s4", "s5", 1 << 20)
        asm("s_lshl_b32 %s, s2, 3" % s(sT0))
        asm("s_add_u32 %s, %s, %s" % (s(sT0), s(sT0), s(sW)))
        asm("s_lshl_b32 %s, %s, 7" % (s(sT0), s(sT0)))
        asm("v_mov_b32 v1, %s" % s(sT0))
        for i in range(13):
            asm("v_mov_b32 v2, %s" % s(STB + 2 * i))
            asm("v_mov_b32 v3, %s" % s(STB + 2 * i + 1))
            asm("buffer_store_dwordx2 v[2:3], v1, %s, 0 offen offset:%d" % (s(SA_, 4), 8 * i))
            asm("s_nop 1")
        asm("s_getreg_b32 s4, hwreg(HW_REG_HW_ID)")
        asm("v_mov_b32 v2, %s" % s(sXCC))
        asm("v_mov_b32 v3, s4")
        asm("buffer_store_dwordx2 v[2:3], v1, %s, 0 offen offset:%d" % (s(SA_, 4), 8 * 13))
    asm.label("%s_end" % N)
    asm("s_endpgm")
    return dict(name=N, vgpr=256, sgpr=100, grid=256, block=512, lds=LDS_BYTES)
HEADER = open("concat_heads__linear_attn_block__sliding_block__prompt.s.ref").read().split("; Override")[0]
def build(stamp=False, opts=None):
    body = A()
    i = gen(body, stamp=stamp, opts=opts)
    out = HEADER
    out += "; @launch grid=(%d,1,1) block=(%d,1,1) lds=%d\n" % (i["grid"], i["block"], i["lds"])
    out += '.amdgcn_target "amdgcn-amd-amdhsa--gfx950"\n.text\n'
    out += body.text()
    d = A()
    d('.section .rodata,"a"')
    kernel_desc(d, i["name"], i["vgpr"], i["sgpr"])
    out += d.text()
    return out
if __name__ == "__main__":
    import sys
    opts = {}
    for a_ in sys.argv[3:]:
        k, val = a_.split("="); opts[k] = int(val)
    open(sys.argv[1], "w").write(build(stamp=(len(sys.argv) > 2 and sys.argv[2] == "stamp"), opts=opts))
```

```python
from asmlib import *
import math
REG = 2621440
R_QA, R_KA, R_VA, R_QB, R_KB, R_VB, R_OA, R_OB, R_KVP, R_FLG = [i * REG for i in range(10)]
F1 = R_FLG
F2 = R_FLG + 65536
F3 = R_FLG + 65536 + 8192
WS_REC = R_FLG + 131072
R_STAMP = 10 * REG
LOG2E = 1.4426950408889634
QSCALE = LOG2E / math.sqrt(20.0)
BIG = -1.0e30
OOB = 0x40000000
L_WO, L_K, L_V, L_KVT = 0, 102400, 135168, 155648
L_OUT = L_K
L_SYNC = 157696
W_CNT1, W_S1, W_S1A, W_S2, W_CNT3B, W_CNT3A, W_S3, W_ISS, W_K, W_V = [L_SYNC + 4 * i for i in range(10)]
LDS_BYTES = 157696 + 64
SPIN_MAX = 0x40000
NAME = "concat_heads__linear_attn_block__sliding_block__prompt_kernel"
class G:
    pass
def gen(asm, stamp=False, name=NAME, opts=None):
    opts = opts or {}
    N = name
    D1 = opts.get("d1", 0)
    SC = " sc1" if D1 else ""
    SC = {0: SC, 1: " sc0 sc1", 2: " sc1 nt", 3: " sc0 sc1 nt"}[opts.get("scmode", 0)]
    REPL = opts.get("repl", 8)
    LSC3 = "" if opts.get("plain3") else " sc1"
    sW = 3
    SWS, SDBG = 8, 12
    sNON = 16
    sT0, sT1, sT2, sT3 = 18, 19, 20, 21
    sCNT, sPL = 22, 23
    SA_, SB_ = 24, 28
    sMASK = 32
    sPC = 34
    STB = 72
    sP8, sSLOT, sLOCAL, sXCC = 70, 71, 98, 99
    def st(k):
        if stamp:
            asm("s_memrealtime %s" % s(STB + 2 * k, 2))
    def lane(dst):
        asm("v_mbcnt_lo_u32_b32 %s, -1, 0" % v(dst))
        asm("v_mbcnt_hi_u32_b32 %s, -1, %s" % (v(dst), v(dst)))
    uid = [0]
    def lab(p):
        uid[0] += 1
        return "%s_%s%d" % (N, p, uid[0])
    def sync_issue(vd, vo):
        lane(vo)
        asm("s_lshl_b32 %s, %s, 3" % (s(sT0), s(sP8)))
        asm("s_add_u32 %s, %s, 64" % (s(sT0), s(sT0)))
        asm("v_cmp_eq_u32 vcc, 1, %s" % v(vo))
        asm("v_mov_b32 %s, %s" % (v(vd), s(sT0)))
        asm("v_mov_b32 %s, 0" % v(vo))
        asm("v_cndmask_b32 %s, %s, %s, vcc" % (v(vo), v(vo), v(vd)))
        asm("buffer_load_dwordx2 %s, %s, %s, 0 offen sc1" % (v(vd, 2), v(vo), s(SDBG, 4)))
    def get_sync(vd, vo, preissued=False):
        L, D = lab("non"), lab("nond")
        if not preissued: sync_issue(vd, vo)
        asm("s_mov_b32 %s, 0" % s(sCNT))
        asm.label(L)
        asm("s_waitcnt vmcnt(0)")
        asm("v_readlane_b32 %s, %s, 0" % (s(sNON), v(vd)))
        asm("v_readlane_b32 %s, %s, 0" % (s(sNON + 1), v(vd + 1)))
        asm("v_readlane_b32 %s, %s, 1" % (s(sPC), v(vd)))
        asm("v_readlane_b32 %s, %s, 1" % (s(sPC + 1), v(vd + 1)))
        asm("s_add_u32 %s, %s, 1" % (s(sCNT), s(sCNT)))
        asm("s_nop 2")
        asm("s_cmp_lg_u32 %s, 0" % s(sNON))
        asm("s_cbranch_scc1 %s" % D)
        asm("s_cmp_ge_u32 %s, 0x%x" % (s(sCNT), SPIN_MAX))
        asm("s_cbranch_scc1 %s" % D)
        asm("s_sleep 4")
        asm("buffer_load_dwordx2 %s, %s, %s, 0 offen sc1" % (v(vd, 2), v(vo), s(SDBG, 4)))
        asm("s_branch %s" % L)
        asm.label(D)
        asm("s_lshl_b32 %s, %s, 3" % (s(sT0), s(sXCC)))
        asm("s_lshl_b64 %s, 32, %s" % (s(sMASK, 2), s(sT0)))
        asm("s_cmp_eq_u64 %s, %s" % (s(sMASK, 2), s(sPC, 2)))
        asm("s_cselect_b32 %s, 1, 0" % s(sLOCAL))
        if opts.get("nolocal"): asm("s_mov_b32 %s, 0" % s(sLOCAL))
    def release():
        if D1: return
        D = lab("rel")
        asm("s_cmp_lg_u32 %s, 0" % s(sLOCAL))
        asm("s_cbranch_scc1 %s" % D)
        asm("buffer_wbl2 sc1")
        asm("s_waitcnt vmcnt(0)")
        asm.label(D)
    def lds_set(word, va, vd):
        asm("v_mov_b32 %s, 0x%x" % (v(va), word))
        asm("v_mov_b32 %s, 1" % v(vd))
        asm("ds_write_b32 %s, %s" % (v(va), v(vd)))
    def lds_wait(word, va, vd, atleast=1):
        L, D = lab("lw"), lab("lwd")
        asm("v_mov_b32 %s, 0x%x" % (v(va), word))
        asm("s_mov_b32 %s, 0" % s(sCNT))
        asm.label(L)
        asm("ds_read_b32 %s, %s" % (v(vd), v(va)))
        asm("s_waitcnt lgkmcnt(0)")
        asm("v_readfirstlane_b32 %s, %s" % (s(sT0), v(vd)))
        asm("s_add_u32 %s, %s, 1" % (s(sCNT), s(sCNT)))
        asm("s_nop 2")
        asm("s_cmp_ge_u32 %s, %d" % (s(sT0), atleast))
        asm("s_cbranch_scc1 %s" % D)
        asm("s_cmp_ge_u32 %s, 0x%x" % (s(sCNT), SPIN_MAX * 8))
        asm("s_cbranch_scc1 %s" % D)
        if opts.get("lsleep", 1): asm("s_sleep %d" % opts.get("lsleep", 1))
        asm("s_branch %s" % L)
        asm.label(D)
    def lds_arrive(word, n, va, vd, soff, replicas=1):
        D = lab("arr")
        asm("v_mov_b32 %s, 0x%x" % (v(va), word))
        asm("v_mov_b32 %s, 1" % v(vd))
        asm("s_mov_b64 exec, 1")
        asm("ds_add_rtn_u32 %s, %s, %s" % (v(vd), v(va), v(vd)))
        asm("s_waitcnt lgkmcnt(0)")
        asm("s_mov_b64 exec, -1")
        asm("v_readfirstlane_b32 %s, %s" % (s(sCNT), v(vd)))
        asm("s_nop 3")
        asm("s_cmp_lg_u32 %s, %d" % (s(sCNT), n - 1))
        asm("s_cbranch_scc1 %s" % D)
        flag_store(soff, vd, va, replicas)
        asm.label(D)
    def poll_issue(soff, vd, vo, n):
        asm("s_mov_b32 exec_lo, 0x%x" % ((1 << n) - 1))
        asm("s_mov_b32 exec_hi, 0")
        asm("buffer_load_dwordx2 %s, %s, %s, %s offen sc1" % (v(vd, 2), v(vo), s(SWS, 4), soff))
        asm("s_mov_b64 exec, -1")
    def poll(soff, n, vd, vo, preissued=False, lo=0, smask=None):
        L, D = lab("poll"), lab("polld")
        m = ((1 << n) - 1) & ~((1 << lo) - 1)
        asm("s_mov_b32 %s, %s" % (s(sMASK), smask if smask else "0x%x" % (m & 0xffffffff)))
        asm("s_mov_b32 %s, 0x%x" % (s(sMASK + 1), m >> 32))
        if not preissued: poll_issue(soff, vd, vo, n)
        asm("s_mov_b32 %s, 0" % s(sCNT))
        asm.label(L)
        asm("s_waitcnt vmcnt(0)")
        asm("v_cmp_eq_u32 vcc, %s, %s" % (s(sNON), v(vd)))
        asm("v_cmp_eq_u32 %s, %s, %s" % (s(sPC, 2), s(sNON + 1), v(vd + 1)))
        asm("s_add_u32 %s, %s, 1" % (s(sCNT), s(sCNT)))
        asm("s_nop 3")
        asm("s_and_b64 %s, %s, vcc" % (s(sPC, 2), s(sPC, 2)))
        asm("s_and_b64 %s, %s, %s" % (s(sPC, 2), s(sPC, 2), s(sMASK, 2)))
        asm("s_cmp_eq_u64 %s, %s" % (s(sPC, 2), s(sMASK, 2)))
        asm("s_cbranch_scc1 %s" % D)
        asm("s_cmp_ge_u32 %s, 0x%x" % (s(sCNT), SPIN_MAX))
        asm("s_cbranch_scc1 %s" % D)
        asm("s_sleep %d" % opts.get("sleep", 3))
        poll_issue(soff, vd, vo, n)
        asm("s_branch %s" % L)
        asm.label(D)
    def ppoll(soff, n, regs, vo, smask=None):
        k = len(regs)
        L, D = lab("pp"), lab("ppd")
        m = (1 << n) - 1
        asm("s_mov_b32 %s, %s" % (s(sMASK), smask if smask else "0x%x" % (m & 0xffffffff)))
        asm("s_mov_b32 %s, 0x%x" % (s(sMASK + 1), m >> 32))
        for i, r in enumerate(regs):
            poll_issue(soff, r, vo, n)
            if i + 1 < k: asm("s_sleep %d" % opts.get("pstag", 6))
        asm("s_mov_b32 %s, 0" % s(sCNT))
        asm.label(L)
        for i, r in enumerate(regs):
            asm("s_waitcnt vmcnt(%d)" % (k - 1))
            asm("v_cmp_eq_u32 vcc, %s, %s" % (s(sNON), v(r)))
            asm("v_cmp_eq_u32 %s, %s, %s" % (s(sPC, 2), s(sNON + 1), v(r + 1)))
            asm("s_add_u32 %s, %s, 1" % (s(sCNT), s(sCNT)))
            asm("s_nop 3")
            asm("s_and_b64 %s, %s, vcc" % (s(sPC, 2), s(sPC, 2)))
            asm("s_and_b64 %s, %s, %s" % (s(sPC, 2), s(sPC, 2), s(sMASK, 2)))
            asm("s_cmp_eq_u64 %s, %s" % (s(sPC, 2), s(sMASK, 2)))
            asm("s_cbranch_scc1 %s" % D)
            poll_issue(soff, r, vo, n)
        asm("s_cmp_lt_u32 %s, 0x%x" % (s(sCNT), SPIN_MAX * 3))
        asm("s_cbranch_scc1 %s" % L)
        asm.label(D)
    def flag_store(soff, vd, vo, replicas=1):
        if replicas > 1:
            lane(vo)
            asm("v_lshlrev_b32 %s, 11, %s" % (v(vo), v(vo)))
        else:
            asm("v_mov_b32 %s, 0" % v(vo))
        asm("v_mov_b32 %s, %s" % (v(vd), s(sNON)))
        asm("v_mov_b32 %s, %s" % (v(vd + 1), s(sNON + 1)))
        asm("s_mov_b64 exec, %d" % ((1 << replicas) - 1 if replicas <= 6 else -1) if replicas <= 6 else "s_mov_b32 exec_lo, 0x%x\n    s_mov_b32 exec_hi, 0" % ((1 << replicas) - 1))
        asm("buffer_store_dwordx2 %s, %s, %s, %s offen sc1" % (v(vd, 2), v(vo), s(SWS, 4), soff))
        asm("s_mov_b64 exec, -1")
    kernel_header(asm, N)
    asm("s_cmp_ge_u32 s2, 256")
    asm("s_cbranch_scc1 %s_end" % N)
    if stamp:
        for i in range(26): asm("s_mov_b32 %s, 0" % s(STB + i))
    st(0)
    asm("s_load_dwordx4 s[4:7], s[0:1], 56")
    asm("s_load_dwordx4 s[36:39], s[0:1], 0")
    asm("s_load_dwordx4 s[40:43], s[0:1], 24")
    asm("v_lshrrev_b32 v1, 6, v0")
    asm("s_nop 0")
    asm("v_readfirstlane_b32 %s, v1" % s(sW))
    CPF = opts.get("cpf", 0)
    if CPF:
        asm("s_lshr_b32 %s, s2, 3" % s(sT0))
        asm("s_nop 1")
        asm("s_cmp_lg_u32 %s, %d" % (s(sW), CPF))
        asm("s_cbranch_scc1 %s_nocpf" % N)
        asm("s_getpc_b64 s[24:25]")
        asm.label("%s_cpfpc" % N)
        asm("s_sub_u32 s24, s24, (%s_cpfpc - %s)" % (N, N))
        asm("s_subb_u32 s25, s25, 0")
        asm("s_and_b32 s25, s25, 0xffff")
        asm("s_mov_b32 s26, (%s_end - %s)" % (N, N))
        asm("s_mov_b32 s27, 0x20000")
        lane(5)
        asm("s_and_b32 %s, %s, 3" % (s(sT0), s(sT0)))
        asm("s_lshl_b32 %s, %s, 6" % (s(sT0), s(sT0)))
        asm("v_add_u32 v5, %s, v5" % s(sT0))
        asm("v_lshlrev_b32 v5, 7, v5")
        asm("buffer_load_dword v223, v5, s[24:27], 0 offen")
        asm.label("%s_nocpf" % N)
    sBR, sRB, sCB, sPART, sCBP, sW4, sWM, sWN = 44, 45, 46, 47, 48, 49, 50, 51
    asm("s_and_b32 %s, s2, 7" % s(sP8))
    asm("s_lshr_b32 %s, s2, 3" % s(sSLOT))
    asm("s_getreg_b32 %s, hwreg(HW_REG_XCC_ID, 0, 4)" % s(sXCC))
    asm("s_and_b32 %s, %s, 7" % (s(sXCC), s(sXCC)))
    if not D1:
        asm("s_cmp_ge_u32 %s, 15" % s(sSLOT))
        asm("s_cselect_b32 %s, 1, 0" % s(sBR))
        asm("s_cselect_b32 %s, 15, 0" % s(sT0))
        asm("s_sub_u32 %s, %s, %s" % (s(sCB), s(sSLOT), s(sT0)))
        asm("s_mov_b32 %s, %s" % (s(sRB), s(sP8)))
    else:
        asm("s_lshr_b32 %s, %s, 2" % (s(sBR), s(sP8)))
        asm("s_and_b32 %s, %s, 3" % (s(sT0), s(sP8)))
        asm("s_mul_i32 %s, %s, 30" % (s(sT0), s(sT0)))
        asm("s_add_u32 %s, %s, %s" % (s(sT0), s(sT0), s(sSLOT)))
        asm("s_cmp_ge_u32 %s, 60" % s(sT0))
        asm("s_cselect_b32 %s, 4, 0" % s(sT1))
        asm("s_cselect_b32 %s, 60, 0" % s(sT2))
        asm("s_sub_u32 %s, %s, %s" % (s(sT0), s(sT0), s(sT2)))
        asm("s_lshr_b32 %s, %s, 2" % (s(sCB), s(sT0)))
        asm("s_and_b32 %s, %s, 3" % (s(sT0), s(sT0)))
        asm("s_add_u32 %s, %s, %s" % (s(sRB), s(sT1), s(sT0)))
    asm("s_cmp_ge_u32 %s, 5" % s(sCB))
    asm("s_cselect_b32 %s, 1, 0" % s(sPART))
    asm("s_cmp_ge_u32 %s, 10" % s(sCB))
    asm("s_cselect_b32 %s, 2, %s" % (s(sPART), s(sPART)))
    asm("s_mul_i32 %s, %s, 5" % (s(sT0), s(sPART)))
    asm("s_sub_u32 %s, %s, %s" % (s(sCBP), s(sCB), s(sT0)))
    asm("s_and_b32 %s, %s, 3" % (s(sW4), s(sW)))
    asm("s_lshr_b32 %s, %s, 1" % (s(sWM), s(sW4)))
    asm("s_and_b32 %s, %s, 1" % (s(sWN), s(sW4)))
    asm("s_waitcnt lgkmcnt(0)")
    if opts.get("wsoff"):
        asm("s_add_u32 s6, s6, 0x%x" % (opts["wsoff"] << 20))
        asm("s_addc_u32 s7, s7, 0")
    srd(asm, SWS, "s6", "s7", WS_REC)
    srd(asm, SDBG, "s4", "s5", 256)
    asm("s_cmp_ge_u32 %s, 4" % s(sW))
    asm("s_cbranch_scc1 %s_p1h" % N)
    ACC = 0; FX = [128, 144]; FW = [160, 168]
    vXA, vWA = 176, 180
    vL, vT, vU, vV = 194, 195, 196, 197
    vSO = 198; TMP = 200; TE = 216; vN = 220
    sSTG, sDELTA, sRBUF, sNEG = 52, 53, 54, 55
    sTN, sGG, sSO = 56, 57, 58
    sC0, sC1 = 60, 62
    asm("s_or_b32 %s, s2, %s" % (s(sT0), s(sW)))
    asm("s_cmp_lg_u32 %s, 0" % s(sT0))
    asm("s_cbranch_scc1 %s_nonon" % N)
    asm("s_memrealtime %s" % s(sNON, 2))
    asm("s_waitcnt lgkmcnt(0)")
    asm("s_or_b32 %s, %s, 1" % (s(sNON), s(sNON)))
    asm("v_mov_b32 v2, %s" % s(sNON))
    asm("v_mov_b32 v3, %s" % s(sNON + 1))
    asm("v_mov_b32 v4, 0")
    asm("s_mov_b64 exec, 1")
    asm("buffer_store_dwordx2 v[2:3], v4, %s, 0 offen sc1" % s(SDBG, 4))
    asm("s_mov_b64 exec, -1")
    asm.label("%s_nonon" % N)
    asm("s_cmp_lg_u32 %s, 0" % s(sW))
    asm("s_cbranch_scc1 %s_noinit" % N)
    asm("s_lshl_b32 %s, %s, 3" % (s(sT0), s(sXCC)))
    asm("s_lshl_b64 s[4:5], 1, %s" % s(sT0))
    asm("s_lshl_b32 %s, %s, 3" % (s(sT0), s(sP8)))
    asm("s_add_u32 %s, %s, 64" % (s(sT0), s(sT0)))
    asm("v_mov_b32 v2, s4")
    asm("v_mov_b32 v3, s5")
    asm("v_mov_b32 v4, %s" % s(sT0))
    if not D1:
        asm("s_mov_b64 exec, 1")
        asm("buffer_atomic_add_x2 v[2:3], v4, %s, 0 offen" % s(SDBG, 4))
        asm("s_mov_b64 exec, -1")
    lane(5)
    asm("v_lshlrev_b32 v5, 2, v5")
    asm("v_add_u32 v5, 0x%x, v5" % L_SYNC)
    asm("v_mov_b32 v6, 0")
    asm("s_mov_b32 exec_lo, 0xffff")
    asm("s_mov_b32 exec_hi, 0")
    asm("ds_write_b32 v5, v6")
    asm("s_mov_b64 exec, -1")
    asm("s_waitcnt lgkmcnt(0)")
    if opts.get("ft", 0):
        lane(5)
        asm("s_lshl_b32 %s, %s, 2" % (s(sT0), s(sP8)))
        asm("s_and_b32 %s, %s, 3" % (s(sT1), s(sSLOT)))
        asm("s_add_u32 %s, %s, %s" % (s(sT0), s(sT0), s(sT1)))
        asm("s_lshl_b32 %s, %s, 7" % (s(sT0), s(sT0)))
        asm("s_add_u32 %s, %s, %d" % (s(sT0), s(sT0), F2))
        asm("s_lshr_b32 %s, %s, 2" % (s(sT1), s(sP8)))
        asm("s_lshl_b32 %s, %s, 3" % (s(sT1), s(sT1)))
        asm("s_and_b32 %s, %s, 3" % (s(sT2), s(sP8)))
        asm("s_lshl_b32 %s, %s, 1" % (s(sT2), s(sT2)))
        asm("s_lshr_b32 %s, %s, 4" % (s(sT3), s(sSLOT)))
        asm("s_add_u32 %s, %s, %s" % (s(sT2), s(sT2), s(sT3)))
        asm("s_add_u32 %s, %s, %s" % (s(sT1), s(sT1), s(sT2)))
        asm("s_lshl_b32 %s, %s, 8" % (s(sT1), s(sT1)))
        asm("s_add_u32 %s, %s, %d" % (s(sT1), s(sT1), F3 - 128))
        asm("v_lshlrev_b32 v6, 3, v5")
        asm("v_add_u32 v7, %s, v6" % s(sT0))
        asm("v_add_u32 v6, %s, v6" % s(sT1))
        asm("v_cmp_gt_u32 vcc, 16, v5")
        asm("s_nop 1")
        asm("v_cndmask_b32 v6, v6, v7, vcc")
        asm("s_mov_b32 exec_lo, -1")
        asm("s_mov_b32 exec_hi, 0xffff")
        asm("buffer_load_dword v223, v6, %s, 0 offen sc1" % s(SWS, 4))
        asm("s_mov_b64 exec, -1")
    asm.label("%s_noinit" % N)
    asm("s_cmp_ge_u32 %s, 30" % s(sSLOT))
    asm("s_cbranch_scc1 %s_p2c" % N)
    lane(vL)
    asm.c("X frag read addr")
    asm("v_and_b32 %s, 31, %s" % (v(vT), v(vL)))
    asm("s_lshl_b32 %s, %s, 7" % (s(sT0), s(sWM)))
    asm("v_add_u32 %s, %s, %s" % (v(vU), s(sT0), v(vT)))
    asm("v_lshlrev_b32 %s, 7, %s" % (v(vU), v(vU)))
    asm("v_bfe_u32 %s, %s, 1, 3" % (v(vT), v(vT)))
    asm("v_lshrrev_b32 %s, 5, %s" % (v(vV), v(vL)))
    for ks in range(4):
        asm("v_add_u32 %s, %d, %s" % (v(TMP), 2 * ks, v(vV)))
        asm("v_xor_b32 %s, %s, %s" % (v(TMP), v(TMP), v(vT)))
        asm("v_lshl_add_u32 %s, %s, 4, %s" % (v(vXA + ks), v(TMP), v(vU)))
    asm.c("W frag read addr")
    asm("v_bfe_u32 %s, %s, 2, 2" % (v(vT), v(vL)))
    asm("v_lshrrev_b32 %s, 5, %s" % (v(vU), v(vL)))
    asm("v_lshl_add_u32 %s, %s, 3, %s" % (v(vU), v(vU), v(vT)))
    asm("v_lshlrev_b32 %s, 8, %s" % (v(vU), v(vU)))
    asm("v_add_u32 %s, 32768, %s" % (v(vU), v(vU)))
    asm("v_and_b32 %s, 1, %s" % (v(vV), v(vL)))
    asm("v_lshl_add_u32 %s, %s, 3, %s" % (v(vU), v(vV), v(vU)))
    asm("v_bfe_u32 %s, %s, 4, 1" % (v(vV), v(vL)))
    asm("v_lshlrev_b32 %s, 1, %s" % (v(vV), v(vV)))
    asm("v_bfe_u32 %s, %s, 1, 1" % (v(TMP), v(vL)))
    asm("v_add_u32 %s, %s, %s" % (v(vV), v(vV), v(TMP)))
    asm("s_lshl_b32 %s, %s, 3" % (s(sT0), s(sWN)))
    asm("v_add_u32 %s, %s, %s" % (v(vV), s(sT0), v(vV)))
    asm("v_lshlrev_b32 %s, 2, %s" % (v(vT), v(vT)))
    for tn in range(2):
        asm("v_add_u32 %s, %d, %s" % (v(TMP), 4 * tn, v(vV)))
        asm("v_xor_b32 %s, %s, %s" % (v(TMP), v(TMP), v(vT)))
        asm("v_lshl_add_u32 %s, %s, 4, %s" % (v(vWA + tn), v(TMP), v(vU)))
    for i in range(128):
        asm("v_mov_b32 %s, 0" % v(ACC + i))
    asm("s_mul_i32 %s, %s, 3" % (s(sT0), s(sBR)))
    asm("s_add_u32 %s, %s, %s" % (s(sT0), s(sT0), s(sPART)))
    asm("s_mul_i32 %s, %s, %d" % (s(sT0), s(sT0), REG))
    asm("s_add_u32 s6, s6, %s" % s(sT0))
    asm("s_addc_u32 s7, s7, 0")
    SO = SA_
    srd(asm, SO, "s6", "s7", REG)
    def rdX(st_, tm, ks):
        asm("ds_read_b128 %s, %s offset:%d" % (v(FX[st_] + 4 * tm, 4), v(vXA + ks), tm * 4096))
    def rdW(st_, tn, a_, ks):
        asm("ds_read_b64_tr_b16 %s, %s offset:%d" % (v(FW[st_] + 4 * tn + 2 * a_, 2), v(vWA + tn), ks * 4096 + a_ * 1024))
    def reads(st_, ks):
        return [lambda: rdW(st_, 0, 0, ks), lambda: rdW(st_, 0, 1, ks), lambda: rdX(st_, 0, ks), lambda: rdX(st_, 1, ks),
                lambda: rdW(st_, 1, 0, ks), lambda: rdW(st_, 1, 1, ks), lambda: rdX(st_, 2, ks), lambda: rdX(st_, 3, ks)]
    MORD = [(0, 0), (1, 0), (0, 1), (1, 1), (2, 0), (2, 1), (3, 0), (3, 1)]
    def mfma(orient, st_, tm, tn):
        acc = v(ACC + (tm * 2 + tn) * 16, 16)
        x = v(FX[st_] + 4 * tm, 4); w = v(FW[st_] + 4 * tn, 4)
        if orient == "T": asm("v_mfma_f32_32x32x16_bf16 %s, %s, %s, %s" % (acc, w, x, acc))
        else: asm("v_mfma_f32_32x32x16_bf16 %s, %s, %s, %s" % (acc, x, w, acc))
    PF = opts.get("pf", 0)
    if PF:
        nst_ = 10 - PF
        per = (1024 * nst_ + 119) // 120
        assert per <= 64
        asm("s_lshl_b32 %s, %s, 2" % (s(sT0), s(sSLOT)))
        asm("s_add_u32 %s, %s, %s" % (s(sT0), s(sT0), s(sW4)))
        asm("s_mul_i32 %s, %s, %d" % (s(sT0), s(sT0), per))
        asm("v_add_u32 %s, %s, %s" % (v(vT), s(sT0), v(vL)))
        asm("v_lshrrev_b32 %s, 10, %s" % (v(vU), v(vT)))
        asm("v_and_b32 %s, 1023, %s" % (v(vV), v(vT)))
        asm("s_lshr_b32 %s, %s, 1" % (s(sT1), s(sP8)))
        asm("s_and_b32 %s, %s, 1" % (s(sT1), s(sT1)))
        asm("s_lshl_b32 %s, %s, 10" % (s(sT1), s(sT1)))
        asm("v_add_u32 %s, %s, %s" % (v(vV), s(sT1), v(vV)))
        asm("v_mul_u32_u24 %s, 1280, %s" % (v(vV), v(vV)))
        asm("v_lshl_add_u32 %s, %s, 7, %s" % (v(vV), v(vU), v(vV)))
        asm("v_add_u32 %s, %d, %s" % (v(vV), PF * 128, v(vV)))
        asm("v_lshrrev_b32 %s, 4, %s" % (v(vU), v(vT)))
        asm("v_add_u32 %s, %d, %s" % (v(vU), 64 * PF, v(vU)))
        asm("v_mul_u32_u24 %s, 3840, %s" % (v(vU), v(vU)))
        asm("v_and_b32 %s, 15, %s" % (v(TMP), v(vT)))
        asm("v_lshl_add_u32 %s, %s, 7, %s" % (v(vU), v(TMP), v(vU)))
        asm("s_and_b32 %s, %s, 1" % (s(sT1), s(sP8)))
        asm("s_mul_i32 %s, %s, %d" % (s(sT1), s(sT1), 7 * 256))
        asm("v_add_u32 %s, %s, %s" % (v(vU), s(sT1), v(vU)))
        asm("v_mov_b32 %s, 0x%x" % (v(TMP), OOB))
        asm("v_cmp_gt_u32 vcc, %d, %s" % (1024 * nst_, v(vT)))
        asm("v_cmp_gt_u32 %s, %d, %s" % (s(sPC, 2), per, v(vL)))
        asm("s_nop 1")
        asm("s_and_b64 vcc, vcc, %s" % s(sPC, 2))
        asm("s_nop 1")
        asm("v_cndmask_b32 %s, %s, %s, vcc" % (v(vV), v(TMP), v(vV)))
        asm("v_cndmask_b32 %s, %s, %s, vcc" % (v(vU), v(TMP), v(vU)))
        asm("s_cmp_eq_u32 %s, 0" % s(sBR))
        asm("s_cselect_b32 s4, s36, s40")
        asm("s_cselect_b32 s5, s37, s41")
        srd(asm, SB_, "s4", "s5", 2048 * 1280)
        asm("buffer_load_dword v223, %s, %s, 0 offen" % (v(vV), s(SB_, 4)))
        asm("s_cmp_eq_u32 %s, 0" % s(sBR))
        asm("s_cselect_b32 s4, s38, s42")
        asm("s_cselect_b32 s5, s39, s43")
        srd(asm, SB_, "s4", "s5", 640 * 3840)
        asm("buffer_load_dword v223, %s, %s, 0 offen" % (v(vU), s(SB_, 4)))
    asm("s_lshl_b32 %s, %s, 3" % (s(sT0), s(sRB)))
    asm("s_lshl_b32 %s, %s, 2" % (s(sT1), s(sWM)))
    asm("s_add_u32 %s, %s, %s" % (s(sT3), s(sT0), s(sT1)))
    sVAR = 59
    asm("s_mov_b32 %s, %s" % (s(sVAR), s(sPART)))
    asm("s_cmp_eq_u32 %s, 0" % s(sBR))
    asm("s_cbranch_scc1 %s_varok" % N)
    asm("s_cmp_eq_u32 %s, 2" % s(sPART))
    asm("s_cselect_b32 %s, 2, 3" % s(sVAR))
    asm.label("%s_varok" % N)
    asm("s_cmp_eq_u32 %s, 0" % s(sVAR))
    asm("s_cbranch_scc1 %s_adrT" % N)
    asm("s_cmp_eq_u32 %s, 3" % s(sVAR))
    asm("s_cbranch_scc1 %s_adrT" % N)
    asm("s_mul_i32 %s, %s, 40960" % (s(sT0), s(sT3)))
    asm("s_lshl_b32 %s, %s, 11" % (s(sT1), s(sCBP)))
    asm("s_add_u32 %s, %s, %s" % (s(sT0), s(sT0), s(sT1)))
    asm("s_lshl_b32 %s, %s, 10" % (s(sT1), s(sWN)))
    asm("s_add_u32 %s, %s, %s" % (s(sT0), s(sT0), s(sT1)))
    asm("v_lshrrev_b32 %s, 5, %s" % (v(vT), v(vL)))
    asm("v_mul_u32_u24 %s, 10240, %s" % (v(vT), v(vT)))
    asm("v_and_b32 %s, 31, %s" % (v(vU), v(vL)))
    asm("v_lshl_add_u32 %s, %s, 4, %s" % (v(vSO), v(vU), v(vT)))
    asm("v_add_u32 %s, %s, %s" % (v(vSO), s(sT0), v(vSO)))
    asm("s_movk_i32 %s, 512" % s(sTN))
    asm("s_movk_i32 %s, 20480" % s(sGG))
    asm("s_branch %s_adrok" % N)
    asm.label("%s_adrT" % N)
    asm("s_mul_i32 %s, %s, 40" % (s(sT0), s(sT3)))
    asm("s_lshl_b32 %s, %s, 3" % (s(sT1), s(sCBP)))
    asm("s_add_u32 %s, %s, %s" % (s(sT0), s(sT0), s(sT1)))
    asm("s_lshl_b32 %s, %s, 2" % (s(sT1), s(sWN)))
    asm("s_add_u32 %s, %s, %s" % (s(sT0), s(sT0), s(sT1)))
    asm("s_lshl_b32 %s, %s, 10" % (s(sT0), s(sT0)))
    asm("v_lshlrev_b32 %s, 4, %s" % (v(vSO), v(vL)))
    asm("v_add_u32 %s, %s, %s" % (v(vSO), s(sT0), v(vSO)))
    asm("s_movk_i32 %s, 2048" % s(sTN))
    asm("s_movk_i32 %s, 1024" % s(sGG))
    asm.label("%s_adrok" % N)
    asm("s_cmp_lt_u32 %s, 2" % s(sVAR))
    asm("s_cselect_b32 %s, %s, 1.0" % (s(sC0), fhex(LOG2E)))
    asm("s_cmp_eq_u32 %s, 3" % s(sVAR))
    asm("s_cbranch_scc0 %s_c0ok" % N)
    asm("s_cmp_eq_u32 %s, 0" % s(sPART))
    asm("s_cselect_b32 %s, %s, 1.0" % (s(sC0), fhex(QSCALE)))
    asm.label("%s_c0ok" % N)
    asm("s_mov_b32 %s, %s" % (s(sC0 + 1), s(sC0)))
    asm("s_mov_b32 %s, %s" % (s(sC1), fhex(1e-6)))
    asm("s_mov_b32 %s, 0" % s(sSTG))
    asm("s_mov_b32 %s, 0" % s(sRBUF))
    asm("s_mov_b32 %s, 0x%x" % (s(sNEG), (-2 * 49152) & 0xffffffff))
    asm("s_barrier")
    st(1)
    for f in reads(0, 0): f()
    asm("s_cmp_eq_u32 %s, 0" % s(sVAR))
    asm("s_cbranch_scc1 %s_loopT" % N)
    asm("s_cmp_eq_u32 %s, 3" % s(sVAR))
    asm("s_cbranch_scc0 %s_loopF" % N)
    def loop(orient):
        L = "%s_loop%s" % (N, orient)
        asm(".p2align 4")
        asm.label(L)
        for ks in range(4):
            st_ = ks & 1; nst_ = st_ ^ 1
            if ks == 3:
                asm("s_cbranch_scc1 %s_final%s" % (N, orient))
            asm("s_waitcnt lgkmcnt(0)")
            if ks < 3:
                rs = reads(nst_, ks + 1)
                for m in range(8):
                    mfma(orient, st_, *MORD[m])
                    if m < 4:
                        rs[2 * m](); rs[2 * m + 1]()
                    if ks == 2 and m == 4:
                        asm("s_add_u32 %s, %s, 1" % (s(sRBUF), s(sRBUF)))
                        asm("s_cmp_eq_u32 %s, 3" % s(sRBUF))
                        asm("s_cselect_b32 %s, 0, %s" % (s(sRBUF), s(sRBUF)))
                        asm("s_cselect_b32 %s, %s, 49152" % (s(sDELTA), s(sNEG)))
                    if ks == 2 and m == 5:
                        for k in range(3): asm("v_add_u32 %s, %s, %s" % (v(vXA + k), s(sDELTA), v(vXA + k)))
                    if ks == 2 and m == 6:
                        asm("v_add_u32 %s, %s, %s" % (v(vXA + 3), s(sDELTA), v(vXA + 3)))
                        for k in range(2): asm("v_add_u32 %s, %s, %s" % (v(vWA + k), s(sDELTA), v(vWA + k)))
                        asm("s_add_u32 %s, %s, 1" % (s(sSTG), s(sSTG)))
                        asm("s_cmp_eq_u32 %s, 9" % s(sSTG))
            else:
                mfma(orient, st_, *MORD[0])
                mfma(orient, st_, *MORD[1])
                asm("s_barrier")
                rs = reads(nst_, 0)
                mfma(orient, st_, *MORD[2])
                rs[0](); rs[1](); rs[2]()
                mfma(orient, st_, *MORD[3])
                rs[3](); rs[4](); rs[5]()
                mfma(orient, st_, *MORD[4])
                rs[6](); rs[7]()
                mfma(orient, st_, *MORD[5])
                mfma(orient, st_, *MORD[6])
                mfma(orient, st_, *MORD[7])
        asm("s_branch %s" % L)
    loop("T")
    loop("F")
    WALL = 224
    XS = [FX[0], FX[1]]
    def epi_lines(kind, q):
        tm, tn = q >> 1, q & 1
        b = ACC + q * 16
        tb_ = TMP + 8 * (q & 1)
        L_ = []
        if kind == "phi":
            for qq in range(4):
                r0 = b + 4 * qq
                L_.append("v_pk_mul_f32 %s, %s, %s" % (v(TE, 2), v(r0, 2), s(sC0, 2)))
                L_.append("v_pk_mul_f32 %s, %s, %s" % (v(TE + 2, 2), v(r0 + 2, 2), s(sC0, 2)))
                for k in range(4): L_.append("v_exp_f32_e64 %s, %s clamp" % (v(TE + k), v(TE + k)))
                for k in range(4): L_.append("v_max_f32 %s, %s, %s" % (v(r0 + k), s(sC1), v(r0 + k)))
                L_.append("v_pk_add_f32 %s, %s, %s" % (v(r0, 2), v(r0, 2), v(TE, 2)))
                L_.append("v_pk_add_f32 %s, %s, %s" % (v(r0 + 2, 2), v(r0 + 2, 2), v(TE + 2, 2)))
                L_.append("v_cvt_pk_bf16_f32 %s, %s, %s" % (v(tb_ + 2 * qq), v(r0), v(r0 + 1)))
                L_.append("v_cvt_pk_bf16_f32 %s, %s, %s" % (v(tb_ + 2 * qq + 1), v(r0 + 2), v(r0 + 3)))
        else:
            if kind == "scale":
                for p_ in range(8): L_.append("v_pk_mul_f32 %s, %s, %s" % (v(b + 2 * p_, 2), v(b + 2 * p_, 2), s(sC0, 2)))
            for p_ in range(8): L_.append("v_cvt_pk_bf16_f32 %s, %s, %s" % (v(tb_ + p_), v(b + 2 * p_), v(b + 2 * p_ + 1)))
        L_.append("s_mul_i32 %s, %s, %d" % (s(sSO), s(sTN), tn))
        if tm: L_.append("s_add_u32 %s, %s, %d" % (s(sSO), s(sSO), tm * 40960))
        L_.append("buffer_store_dwordx4 %s, %s, %s, %s offen%s" % (v(tb_, 4), v(vSO), s(SO, 4), s(sSO), SC))
        L_.append("s_add_u32 %s, %s, %s" % (s(sSO), s(sSO), s(sGG)))
        L_.append("buffer_store_dwordx4 %s, %s, %s, %s offen%s" % (v(tb_ + 4, 4), v(vSO), s(SO, 4), s(sSO), SC))
        return L_
    def final(orient, kind, label):
        asm.label(label)
        sync_issue(vN, vN + 2)
        asm("s_waitcnt lgkmcnt(0)")
        mfma(orient, 1, *MORD[0])
        mfma(orient, 1, *MORD[1])
        asm("s_barrier")
        rd = []
        for ks in range(4):
            rd.append("ds_read_b128 %s, %s" % (v(XS[0] + 4 * ks, 4), v(vXA + ks)))
            for a_ in range(2):
                rd.append("ds_read_b64_tr_b16 %s, %s offset:%d" % (v(WALL + ks * 4 + 2 * a_, 2), v(vWA), ks * 4096 + a_ * 1024))
        for ks in range(4):
            for a_ in range(2):
                rd.append("ds_read_b64_tr_b16 %s, %s offset:%d" % (v(WALL + (4 + ks) * 4 + 2 * a_, 2), v(vWA + 1), ks * 4096 + a_ * 1024))
        per = [4, 4, 3, 3, 3, 3]
        pos = 0
        for m in range(2, 8):
            mfma(orient, 1, *MORD[m])
            for k in range(per[m - 2]):
                asm(rd[pos]); pos += 1
        assert pos == len(rd) == 20
        for q in range(8):
            tm, tn = q >> 1, q & 1
            xs = XS[tm & 1]
            if q == 0:
                asm("s_waitcnt lgkmcnt(8)")
            elif q == 1:
                asm("s_waitcnt lgkmcnt(4)")
            elif tn == 0:
                asm("s_waitcnt lgkmcnt(0)")
                if tm == 3: asm("s_barrier")
            ep = epi_lines(kind, q - 2) if q >= 2 else []
            if q == 2: ep = ["s_nop 7"] + ep
            chunk = (len(ep) + 3) // 4
            acc = v(ACC + q * 16, 16)
            for ks in range(4):
                x = v(xs + 4 * ks, 4); w = v(WALL + (tn * 4 + ks) * 4, 4)
                if orient == "T": asm("v_mfma_f32_32x32x16_bf16 %s, %s, %s, %s" % (acc, w, x, acc))
                else: asm("v_mfma_f32_32x32x16_bf16 %s, %s, %s, %s" % (acc, x, w, acc))
                if tn == 0 and tm < 3:
                    asm("ds_read_b128 %s, %s offset:%d" % (v(XS[(tm + 1) & 1] + 4 * ks, 4), v(vXA + ks), (tm + 1) * 4096))
                for ln in ep[ks * chunk:(ks + 1) * chunk]: asm(ln)
        st(2)
        for ln in epi_lines(kind, 6): asm(ln)
        for ln in epi_lines(kind, 7): asm(ln)
        asm("s_branch %s_fin1" % N)
    asm.label("%s_finalT" % N)
    asm("s_cmp_eq_u32 %s, 0" % s(sVAR))
    asm("s_cbranch_scc0 %s_fin_ts" % N)
    final("T", "phi", "%s_fin_tp" % N)
    final("T", "scale", "%s_fin_ts" % N)
    asm.label("%s_finalF" % N)
    asm("s_cmp_eq_u32 %s, 1" % s(sVAR))
    asm("s_cbranch_scc0 %s_fin_fn" % N)
    final("F", "phi", "%s_fin_fp" % N)
    final("F", "plain", "%s_fin_fn" % N)
    asm.label("%s_fin1" % N)
    asm("v_mov_b32 %s, 0x%x" % (v(vT), W_ISS))
    asm("v_mov_b32 %s, 1" % v(vU))
    asm("s_mov_b64 exec, 1")
    asm("ds_add_u32 %s, %s" % (v(vT), v(vU)))
    asm("s_mov_b64 exec, -1")
    st(3)
    get_sync(vN, vN + 2, preissued=True)
    release()
    asm("s_lshl_b32 %s, %s, 3" % (s(sT1), s(sBR)))
    asm("s_add_u32 %s, %s, %s" % (s(sT1), s(sT1), s(sRB)))
    asm("s_lshl_b32 %s, %s, 4" % (s(sT1), s(sT1)))
    asm("s_add_u32 %s, %s, %s" % (s(sT1), s(sT1), s(sCB)))
    asm("s_lshl_b32 %s, %s, 3" % (s(sT1), s(sT1)))
    asm("s_add_u32 %s, %s, %d" % (s(sT1), s(sT1), F1))
    lds_arrive(W_CNT1, 4, vN + 2, vN, s(sT1), replicas=REPL)
    st(4)
    asm("s_branch %s_p2setup" % N)
    asm.label("%s_p2c" % N)
    asm("s_barrier")
    get_sync(220, 222)
    asm("s_branch %s_p2setup" % N)

    asm.label("%s_p1h" % N)
    hL, hT, hU, hV = 2, 3, 4, 5
    vDX, vDW, hTMP = 8, 16, 20
    sXOFF, sWOFF, sM0X, sM0W, sDBUF, sHS = 52, 53, 54, 55, 56, 57
    SX, SWD = SA_, SB_
    asm("s_cmp_lt_u32 %s, 30" % s(sSLOT))
    asm("s_cbranch_scc1 %s_p1h2" % N)
    asm("s_barrier")
    asm("s_branch %s_p2h" % N)
    asm.label("%s_p1h2" % N)
    lane(hL)
    asm("v_lshrrev_b32 %s, 3, %s" % (v(hT), v(hL)))
    asm("s_lshl_b32 %s, %s, 6" % (s(sT0), s(sW4)))
    asm("v_add_u32 %s, %s, %s" % (v(hT), s(sT0), v(hT)))
    asm("s_movk_i32 %s, 1280" % s(sT1))
    asm("v_mul_lo_u32 %s, %s, %s" % (v(hT), v(hT), s(sT1)))
    asm("v_lshrrev_b32 %s, 4, %s" % (v(hU), v(hL)))
    asm("v_and_b32 %s, 7, %s" % (v(hV), v(hL)))
    for par in range(2):
        if par == 1: asm("v_add_u32 %s, 4, %s" % (v(hU), v(hU)))
        asm("v_xor_b32 %s, %s, %s" % (v(hTMP + par), v(hV), v(hU)))
        asm("v_lshl_add_u32 %s, %s, 4, %s" % (v(hTMP + par), v(hTMP + par), v(hT)))
    for i in range(8):
        asm("v_add_u32 %s, %d, %s" % (v(vDX + i), i * 8 * 1280 - (i & 3) * 1024, v(hTMP + (i & 1))))
    asm("v_lshrrev_b32 %s, 4, %s" % (v(hU), v(hL)))
    asm("s_lshl_b32 %s, %s, 4" % (s(sT0), s(sW4)))
    asm("v_add_u32 %s, %s, %s" % (v(hT), s(sT0), v(hU)))
    asm("s_movk_i32 %s, 3840" % s(sT1))
    asm("v_mul_lo_u32 %s, %s, %s" % (v(hT), v(hT), s(sT1)))
    asm("v_lshlrev_b32 %s, 2, %s" % (v(hU), v(hU)))
    asm("v_and_b32 %s, 15, %s" % (v(hV), v(hL)))
    asm("v_xor_b32 %s, %s, %s" % (v(hV), v(hV), v(hU)))
    asm("v_lshl_add_u32 %s, %s, 4, %s" % (v(hT), v(hV), v(hT)))
    for i in range(4):
        asm("v_add_u32 %s, %d, %s" % (v(vDW + i), i * 4 * 3840 - i * 1024, v(hT)))
    asm("s_cmp_eq_u32 %s, 0" % s(sBR))
    asm("s_cselect_b32 s36, s36, s40")
    asm("s_cselect_b32 s37, s37, s41")
    asm("s_cselect_b32 s38, s38, s42")
    asm("s_cselect_b32 s39, s39, s43")
    asm("s_mul_i32 %s, %s, %d" % (s(sT0), s(sRB), 256 * 1280))
    asm("s_add_u32 s36, s36, %s" % s(sT0))
    asm("s_addc_u32 s37, s37, 0")
    asm("s_lshl_b32 %s, %s, 8" % (s(sT0), s(sCB)))
    asm("s_add_u32 s38, s38, %s" % s(sT0))
    asm("s_addc_u32 s39, s39, 0")
    asm("s_sub_u32 %s, %d, %s" % (s(sT1), 640 * 3840, s(sT0)))
    srd(asm, SX, "s36", "s37", 256 * 1280)
    srd(asm, SWD, "s38", "s39", s(sT1))
    def dma_stage():
        asm("s_lshl_b32 %s, %s, 13" % (s(sT0), s(sW4)))
        asm("s_add_u32 %s, %s, %s" % (s(sM0X), s(sDBUF), s(sT0)))
        asm("s_lshl_b32 %s, %s, 12" % (s(sT0), s(sW4)))
        asm("s_add_u32 %s, %s, %s" % (s(sT0), s(sT0), s(sDBUF)))
        asm("s_add_u32 %s, %s, 32768" % (s(sM0W), s(sT0)))
        for idx in range(8):
            if idx == 0:
                asm("s_mov_b32 m0, %s" % s(sM0X)); asm("s_nop 0")
            if idx == 4:
                asm("s_add_u32 m0, %s, 4096" % s(sM0X)); asm("s_nop 0")
            asm("buffer_load_dwordx4 %s, %s, %s offen offset:%d lds" % (v(vDX + idx), s(SX, 4), s(sXOFF), (idx & 3) * 1024))
        asm("s_mov_b32 m0, %s" % s(sM0W)); asm("s_nop 0")
        for j in range(4):
            asm("buffer_load_dwordx4 %s, %s, %s offen offset:%d lds" % (v(vDW + j), s(SWD, 4), s(sWOFF), j * 1024))
        asm("s_add_u32 %s, %s, 128" % (s(sXOFF), s(sXOFF)))
        asm("s_add_u32 %s, %s, %d" % (s(sWOFF), s(sWOFF), 64 * 3840))
        asm("s_add_u32 %s, %s, 49152" % (s(sDBUF), s(sDBUF)))
        asm("s_cmp_ge_u32 %s, %d" % (s(sDBUF), 3 * 49152))
        asm("s_cselect_b32 %s, 0, %s" % (s(sDBUF), s(sDBUF)))
    WARM = opts.get("warm", 3)
    if WARM:
        asm("s_load_dwordx2 s[4:5], s[0:1], 16")
        asm("s_load_dwordx2 s[6:7], s[0:1], 40")
        asm("s_lshl_b32 s58, %s, 2" % s(sSLOT))
        asm("s_add_u32 s58, s58, %s" % s(sW4))
        asm("s_mul_i32 s58, s58, %d" % (54 * 128))
        asm("v_lshlrev_b32 v6, 7, %s" % v(hL))
    asm("s_mov_b32 %s, 0" % s(sXOFF))
    asm("s_mov_b32 %s, 0" % s(sWOFF))
    asm("s_mov_b32 %s, 0" % s(sDBUF))
    asm("s_mov_b32 %s, 0" % s(sHS))
    pro = opts.get("pro", 2)
    Lp = "%s_hpro" % N
    asm.label(Lp)
    dma_stage()
    asm("s_add_u32 %s, %s, 1" % (s(sHS), s(sHS)))
    asm("s_cmp_eq_u32 %s, %d" % (s(sHS), pro))
    asm("s_cbranch_scc0 %s_hpro_n" % N)
    st(3)
    asm("s_waitcnt vmcnt(%d)" % (12 * (pro - 1)))
    st(1)
    asm("s_barrier")
    asm.label("%s_hpro_n" % N)
    asm("s_cmp_lt_u32 %s, 3" % s(sHS))
    asm("s_cbranch_scc1 %s" % Lp)
    asm("s_mov_b32 %s, 0" % s(sHS))
    Lh = "%s_hloop" % N
    asm.label(Lh)
    asm("s_cmp_lt_u32 %s, 8" % s(sHS))
    asm("s_cbranch_scc1 %s_hw12" % N)
    asm("s_waitcnt vmcnt(0)")
    asm("s_branch %s_hw" % N)
    asm.label("%s_hw12" % N)
    asm("s_waitcnt vmcnt(12)")
    asm.label("%s_hw" % N)
    asm("s_barrier")
    asm("s_cmp_lt_u32 %s, 7" % s(sHS))
    asm("s_cbranch_scc0 %s_hnodma" % N)
    dma_stage()
    if WARM:
        asm("s_cmp_eq_u32 %s, %d" % (s(sHS), WARM - 1))
        asm("s_cbranch_scc0 %s_hnodma" % N)
        asm("s_waitcnt lgkmcnt(0)")
        asm("s_cmp_lt_u32 %s, 4" % s(sP8))
        asm("s_cselect_b32 s4, s4, s6")
        asm("s_cselect_b32 s5, s5, s7")
        srd(asm, 60, "s4", "s5", 640 * 1280)
        asm("s_mov_b32 exec_lo, -1")
        asm("s_mov_b32 exec_hi, 0x3fffff")
        asm("buffer_load_dword v7, v6, s[60:63], s58 offen")
        asm("s_mov_b64 exec, -1")
        if opts.get("ft", 0):
            asm("s_cmp_eq_u32 %s, 0" % s(sW4))
            asm("s_cbranch_scc0 %s_hnodma" % N)
            asm("s_lshl_b32 %s, %s, 2" % (s(sT0), s(sP8)))
            asm("s_and_b32 %s, %s, 3" % (s(sT1), s(sSLOT)))
            asm("s_add_u32 %s, %s, %s" % (s(sT0), s(sT0), s(sT1)))
            asm("s_and_b32 %s, %s, %d" % (s(sT0), s(sT0) if opts.get("repl", 8) > 8 else s(sP8), opts.get("repl", 8) - 1))
            asm("s_lshl_b32 %s, %s, 11" % (s(sT0), s(sT0)))
            asm("s_add_u32 %s, %s, %d" % (s(sT0), s(sT0), F1))
            asm("s_lshr_b32 %s, %s, 2" % (s(sT1), s(sSLOT)))
            asm("s_lshl_b32 %s, %s, 7" % (s(sT1), s(sT1)))
            asm("s_add_u32 %s, %s, %s" % (s(sT0), s(sT0), s(sT1)))
            asm("v_lshlrev_b32 v23, 3, %s" % v(hL))
            asm("v_add_u32 v22, %s, v23" % s(sT0))
            asm("v_subrev_u32 v22, 256, v22")
            asm("s_add_u32 %s, %s, %d" % (s(sT0), s(sT0), 7 * 128))
            asm("v_add_u32 v23, %s, v23" % s(sT0))
            asm("v_cmp_gt_u32 vcc, 32, %s" % v(hL))
            asm("s_nop 1")
            asm("v_cndmask_b32 v23, v22, v23, vcc")
            asm("s_mov_b32 exec_lo, -1")
            asm("s_mov_b32 exec_hi, 0xffff")
            asm("buffer_load_dword v24, v23, %s, 0 offen sc1" % s(SWS, 4))
            asm("s_mov_b64 exec, -1")
    asm.label("%s_hnodma" % N)
    asm("s_add_u32 %s, %s, 1" % (s(sHS), s(sHS)))
    asm("s_cmp_lt_u32 %s, 10" % s(sHS))
    asm("s_cbranch_scc1 %s" % Lh)
    asm.label("%s_p2h" % N)
    st(2)
    sBR3, sRB3, sCB3 = 64, 65, 66
    def decode3():
        if not D1:
            asm("s_lshr_b32 %s, %s, 4" % (s(sBR3), s(sSLOT)))
            asm("s_bfe_u32 %s, %s, 0x10003" % (s(sRB3), s(sSLOT)))
            asm("s_lshl_b32 %s, %s, 1" % (s(sT0), s(sP8)))
            asm("s_add_u32 %s, %s, %s" % (s(sRB3), s(sRB3), s(sT0)))
            asm("s_and_b32 %s, %s, 7" % (s(sCB3), s(sSLOT)))
        else:
            asm("s_lshr_b32 %s, %s, 2" % (s(sBR3), s(sP8)))
            asm("s_and_b32 %s, %s, 3" % (s(sT0), s(sP8)))
            asm("s_lshl_b32 %s, %s, 2" % (s(sT0), s(sT0)))
            asm("s_lshr_b32 %s, %s, 3" % (s(sRB3), s(sSLOT)))
            asm("s_add_u32 %s, %s, %s" % (s(sRB3), s(sRB3), s(sT0)))
            asm("s_and_b32 %s, %s, 7" % (s(sCB3), s(sSLOT)))
    get_sync(220, 222)
    sHH, sRB2, sG0, sDQ, sTB, sNT = 44, 45, 46, 47, 48, 49
    sMSK, sM40 = 50, 52
    sP = 36
    sQM = 54
    sOffO, sOffQA, sBIG, sEPS = 62, 63, 67, 68
    S = 0; O = 144; Q = 160; F = [168, 176]; CM8 = 184; CM0 = 200; VF = [184, 192]
    vM, vNM = 216, 218
    vT = 220
    vLin, vKa, vVa, vL = 228, 229, 230, 231
    vOm, vOr, vFo, vU = 232, 233, 234, 235
    PB = 236
    PA = 168
    vL8 = 242
    AW = 4
    asm.label("%s_p2setup" % N)
    if not D1:
        asm("s_mov_b32 %s, %s" % (s(sHH), s(sSLOT)))
        asm("s_mov_b32 %s, %s" % (s(sRB2), s(sP8)))
    else:
        asm("s_lshl_b32 %s, %s, 2" % (s(sT0), s(sP8)))
        asm("s_and_b32 %s, %s, 3" % (s(sHH), s(sSLOT)))
        asm("s_add_u32 %s, %s, %s" % (s(sHH), s(sHH), s(sT0)))
        asm("s_lshr_b32 %s, %s, 2" % (s(sRB2), s(sSLOT)))
    asm("s_mul_i32 %s, %s, 5" % (s(sT0), s(sHH)))
    asm("s_lshr_b32 %s, %s, 2" % (s(sG0), s(sT0)))
    asm("s_and_b32 %s, %s, 3" % (s(sDQ), s(sT0)))
    asm("s_lshl_b32 %s, %s, 3" % (s(sTB), s(sRB2)))
    asm("s_add_u32 %s, %s, %s" % (s(sTB), s(sTB), s(sW)))
    asm("s_add_u32 %s, %s, 1" % (s(sNT), s(sTB)))
    asm("s_min_u32 %s, %s, 9" % (s(sNT), s(sNT)))
    asm("s_mov_b32 %s, 0x000fffff" % s(sMSK)); asm("s_mov_b32 %s, 0x000fffff" % s(sMSK + 1))
    asm("s_mov_b32 %s, -1" % s(sM40)); asm("s_mov_b32 %s, 0xff" % s(sM40 + 1))
    lane(vL)
    asm("v_lshlrev_b32 %s, 3, %s" % (v(vL8), v(vL)))
    asm("v_lshlrev_b32 %s, 4, %s" % (v(vLin), v(vL)))
    asm("s_mov_b32 %s, %s" % (s(sBIG), fhex(BIG)))
    asm("v_and_b32 %s, 31, %s" % (v(vU), v(vL)))
    asm("v_lshrrev_b32 %s, 5, %s" % (v(vT + 4), v(vL)))
    asm("v_lshlrev_b32 %s, 2, %s" % (v(vT + 4), v(vT + 4)))
    asm("v_sub_u32 %s, %s, %s" % (v(vU), v(vU), v(vT + 4)))
    asm("v_mov_b32 %s, %s" % (v(vT + 5), s(sBIG)))
    asm("v_mov_b32 %s, 0" % v(vT + 6))
    for r0 in range(0, 16, 4):
        for k in range(4):
            r = r0 + k
            asm("v_cmp_le_i32 %s, %d, %s" % (s(sP + 2 * k, 2), 8 * (r >> 2) + (r & 3), v(vU)))
        asm("s_nop 1")
        for k in range(4):
            r = r0 + k
            asm("v_cndmask_b32 %s, %s, %s, %s" % (v(CM8 + r), v(vT + 5), v(vT + 6), s(sP + 2 * k, 2)))
            asm("v_cndmask_b32 %s, %s, %s, %s" % (v(CM0 + r), v(vT + 6), v(vT + 5), s(sP + 2 * k, 2)))
    for gg in range(2):
        for p in range(2):
            k = gg * 2 + p
            for h in range(2):
                asm("s_sub_u32 %s, %d, %s" % (s(sT0), 4 * gg + 2 * p + h, s(sDQ)))
                asm("s_cmp_le_u32 %s, 4" % s(sT0))
                asm("s_cselect_b32 %s, -1, 0" % s(sQM + 2 * k + h))
    asm("s_lshl_b32 %s, %s, 11" % (s(sT0), s(sW)))
    asm("s_add_u32 %s, %s, %d" % (s(sT0), s(sT0), L_K))
    asm("v_add_u32 %s, %s, %s" % (v(vKa), s(sT0), v(vLin)))
    asm("v_lshrrev_b32 %s, 5, %s" % (v(vT), v(vL)))
    asm("v_mul_u32_u24 %s, 20, %s" % (v(vT), v(vT)))
    asm("v_and_b32 %s, 31, %s" % (v(vU), v(vL)))
    asm("v_add_u32 %s, %s, %s" % (v(vT), v(vT), v(vU)))
    asm("v_lshlrev_b32 %s, 4, %s" % (v(vT), v(vT)))
    asm("s_mul_i32 %s, %s, 1280" % (s(sT0), s(sW)))
    asm("s_add_u32 %s, %s, %d" % (s(sT0), s(sT0), L_V))
    asm("v_add_u32 %s, %s, %s" % (v(vVa), s(sT0), v(vT)))
    asm("s_lshl_b32 %s, %s, 5" % (s(sT0), s(sTB)))
    asm("s_add_u32 %s, %s, %s" % (s(sT0), s(sT0), s(sHH)))
    asm("s_mul_i32 %s, %s, 1280" % (s(sOffO), s(sT0)))
    asm("v_mov_b32 %s, %s" % (v(vOm), v(vLin)))
    asm("v_add_u32 %s, 1024, %s" % (v(vOr), v(vL8)))
    asm("v_mov_b32 %s, 0x%x" % (v(vT + 4), OOB))
    asm("v_cmp_gt_u32 vcc, 32, %s" % v(vL))
    asm("s_nop 1")
    asm("v_cndmask_b32 %s, %s, %s, vcc" % (v(vOr), v(vT + 4), v(vOr)))
    asm("s_mul_i32 %s, %s, 40" % (s(sT2), s(sTB)))
    asm("s_add_u32 %s, %s, %s" % (s(sT2), s(sT2), s(sG0)))
    asm("s_lshl_b32 %s, %s, 10" % (s(sT2), s(sT2)))
    asm("s_add_u32 %s, %s, %d" % (s(sOffQA), s(sT2), R_QA))
    def q_loads():
        asm("s_add_u32 %s, %s, %d" % (s(sT3), s(sOffQA), R_QB - R_QA))
        asm("buffer_load_dwordx4 %s, %s, %s, %s offen sc1" % (v(Q, 4), v(vLin), s(SWS, 4), s(sT3)))
        asm("buffer_load_dwordx4 %s, %s, %s, %s offen offset:1024 sc1" % (v(Q + 4, 4), v(vLin), s(SWS, 4), s(sT3)))
    FINE = opts.get("fine", 1)
    def tile_masks():
        asm("s_lshr_b32 %s, %s, 3" % (s(sT1), s(sG0)))
        asm("s_lshl_b32 %s, 1, %s" % (s(sT1), s(sT1)))
        asm("s_add_u32 %s, %s, 1" % (s(sT2), s(sG0)))
        asm("s_lshr_b32 %s, %s, 3" % (s(sT2), s(sT2)))
        asm("s_lshl_b32 %s, 1, %s" % (s(sT2), s(sT2)))
        asm("s_or_b32 %s, %s, %s" % (s(sT1), s(sT1), s(sT2)))
        asm("s_mul_i32 %s, %s, 20" % (s(sT3), s(sHH)))
        asm("s_lshr_b32 %s, %s, 7" % (s(sT2), s(sT3)))
        asm("s_lshl_b32 %s, 1, %s" % (s(sT2), s(sT2)))
        asm("s_add_u32 %s, %s, 19" % (s(sT3), s(sT3)))
        asm("s_lshr_b32 %s, %s, 7" % (s(sT3), s(sT3)))
        asm("s_lshl_b32 %s, 1, %s" % (s(sT3), s(sT3)))
        asm("s_or_b32 %s, %s, %s" % (s(sT2), s(sT2), s(sT3)))
    def own_tile_wait():
        D = lab("otw")
        asm("s_cmp_ge_u32 %s, 30" % s(sSLOT))
        asm("s_cbranch_scc1 %s" % D)
        lds_wait(W_CNT1, vT, vT + 1, atleast=4)
        asm.label(D)
    def lds_inc(word):
        asm("v_mov_b32 %s, 0x%x" % (v(vT), word))
        asm("v_mov_b32 %s, 1" % v(vT + 1))
        asm("s_mov_b64 exec, 1")
        asm("ds_add_u32 %s, %s" % (v(vT), v(vT + 1)))
        asm("s_mov_b64 exec, -1")
    asm("s_cmp_eq_u32 %s, %d" % (s(sW), AW))
    asm("s_cbranch_scc1 %s_aearly" % N)
    asm("s_cmp_eq_u32 %s, 5" % s(sW))
    asm("s_cbranch_scc1 %s_w5" % N)
    asm("s_cmp_ge_u32 %s, 6" % s(sW))
    asm("s_cbranch_scc1 %s_w67" % N)
    sTK, sKO, sLK, sIk = 4, 5, 6, 7
    lds_wait(W_S1, vT, vT + 1)
    st(4) if opts.get("kvst") else None
    asm("s_lshl_b32 %s, %s, 2" % (s(sIk), s(sW)))
    asm("s_cmp_eq_u32 %s, 0" % s(sRB2))
    asm("s_cselect_b32 %s, 8, 0" % s(sT0))
    asm("s_cmp_lt_u32 %s, %s" % (s(sIk), s(sT0)))
    asm("s_cbranch_scc1 %s_nok" % N)
    asm("s_lshl_b32 %s, %s, 3" % (s(sTK), s(sRB2)))
    asm("s_add_u32 %s, %s, %s" % (s(sTK), s(sTK), s(sIk)))
    asm("s_sub_u32 %s, %s, 8" % (s(sTK), s(sTK)))
    asm("s_mul_i32 %s, %s, 40" % (s(sKO), s(sTK)))
    asm("s_add_u32 %s, %s, %s" % (s(sKO), s(sKO), s(sG0)))
    asm("s_lshl_b32 %s, %s, 10" % (s(sKO), s(sKO)))
    asm("s_add_u32 %s, %s, %d" % (s(sKO), s(sKO), R_KB))
    asm("s_lshl_b32 %s, %s, 11" % (s(sLK), s(sIk)))
    asm("s_add_u32 %s, %s, %d" % (s(sLK), s(sLK), L_K))
    for ii in range(4):
        asm("s_add_u32 m0, %s, %d" % (s(sLK), ii * 2048))
        asm("s_nop 0")
        asm("buffer_load_dwordx4 %s, %s, %s offen sc1 lds" % (v(vLin), s(SWS, 4), s(sKO)))
        asm("buffer_load_dwordx4 %s, %s, %s offen offset:1024 sc1 lds" % (v(vLin), s(SWS, 4), s(sKO)))
        if ii < 3: asm("s_add_u32 %s, %s, 40960" % (s(sKO), s(sKO)))
    asm.label("%s_nok" % N)
    q_loads()
    asm("s_waitcnt vmcnt(0)")
    lds_inc(W_K)
    asm("s_branch %s_kwait" % N)
    asm.label("%s_w67" % N)
    vDWO = 243
    sDA, sDM = 4, 5
    SWO = SA_
    decode3()
    asm("s_load_dwordx2 s[4:5], s[0:1], 16")
    asm("s_load_dwordx2 s[6:7], s[0:1], 40")
    asm("s_movk_i32 %s, 6554" % s(sT2))
    asm("s_movk_i32 %s, 1280" % s(sT3))
    for b in range(5):
        asm("v_add_u32 %s, %d, %s" % (v(vT), 64 * b, v(vL)))
        asm("v_mul_lo_u32 %s, %s, %s" % (v(vT + 1), v(vT), s(sT2)))
        asm("v_lshrrev_b32 %s, 16, %s" % (v(vT + 1), v(vT + 1)))
        asm("v_mul_u32_u24 %s, 10, %s" % (v(vT + 2), v(vT + 1)))
        asm("v_sub_u32 %s, %s, %s" % (v(vT), v(vT), v(vT + 2)))
        asm("v_lshlrev_b32 %s, 4, %s" % (v(vT), v(vT)))
        asm("v_mad_u32_u24 %s, %s, %s, %s" % (v(vDWO + b), v(vT + 1), s(sT3), v(vT)))
        if 0 < b < 4: asm("v_subrev_u32 %s, %d, %s" % (v(vDWO + b), b * 1024, v(vDWO + b)))
    asm("s_waitcnt lgkmcnt(0)")
    asm("s_cmp_eq_u32 %s, 0" % s(sBR3))
    asm("s_cselect_b32 s4, s4, s6")
    asm("s_cselect_b32 s5, s5, s7")
    asm("s_mul_i32 %s, %s, 160" % (s(sT0), s(sCB3)))
    asm("s_add_u32 s4, s4, %s" % s(sT0))
    asm("s_addc_u32 s5, s5, 0")
    asm("s_sub_u32 %s, %d, %s" % (s(sT1), 640 * 1280, s(sT0)))
    srd(asm, SWO, "s4", "s5", s(sT1))
    asm("s_and_b32 %s, %s, 1" % (s(sT0), s(sW)))
    asm("s_mul_i32 %s, %s, %d" % (s(sDA), s(sT0), 32 * 1280))
    asm("s_mul_i32 %s, %s, 5120" % (s(sDM), s(sT0)))
    def wo_group():
        asm("s_mov_b32 m0, %s" % s(sDM)); asm("s_nop 0")
        asm("buffer_load_dwordx4 %s, %s, %s offen lds" % (v(vDWO), s(SWO, 4), s(sDA)))
        for b in range(1, 4):
            asm("buffer_load_dwordx4 %s, %s, %s offen offset:%d lds" % (v(vDWO + b), s(SWO, 4), s(sDA), b * 1024))
        asm("s_add_u32 m0, %s, 4096" % s(sDM)); asm("s_nop 0")
        asm("buffer_load_dwordx4 %s, %s, %s offen lds" % (v(vDWO + 4), s(SWO, 4), s(sDA)))
        asm("s_add_u32 %s, %s, %d" % (s(sDA), s(sDA), 2 * 32 * 1280))
        asm("s_add_u32 %s, %s, %d" % (s(sDM), s(sDM), 2 * 5120))
    asm("s_cmp_ge_u32 %s, 30" % s(sSLOT))
    asm("s_cbranch_scc1 %s_wogo" % N)
    lds_wait(W_ISS, vT, vT + 1, atleast=4)
    asm.label("%s_wogo" % N)
    asm("s_mov_b32 s6, 0")
    asm.label("%s_woloop" % N)
    wo_group()
    asm("s_add_u32 s6, s6, 1")
    asm("s_cmp_lt_u32 s6, 10")
    asm("s_cbranch_scc1 %s_woloop" % N)
    lds_wait(W_S1, vT, vT + 1)
    asm("s_waitcnt vmcnt(30)")
    q_loads()
    asm("v_cmp_le_u32 vcc, 20, %s" % v(vL))
    asm("v_mov_b32 %s, 0" % v(vT))
    asm("v_mov_b32 %s, %d" % (v(vT + 1), 10240 - 320))
    asm("v_cndmask_b32 %s, %s, %s, vcc" % (v(vT), v(vT), v(vT + 1)))
    asm("v_add_u32 %s, %s, %s" % (v(vFo), v(vT), v(vLin)))
    asm("s_and_b32 %s, %s, 1" % (s(sIk), s(sW)))
    asm("s_lshl_b32 %s, %s, 3" % (s(sIk), s(sIk)))
    asm("s_or_b32 %s, %s, %s" % (s(sT0), s(sIk), s(sRB2)))
    asm("s_cmp_eq_u32 %s, 0" % s(sT0))
    asm("s_cbranch_scc1 %s_nov" % N)
    asm("s_lshl_b32 %s, %s, 3" % (s(sTK), s(sRB2)))
    asm("s_add_u32 %s, %s, %s" % (s(sTK), s(sTK), s(sIk)))
    asm("s_sub_u32 %s, %s, 8" % (s(sTK), s(sTK)))
    asm("s_mul_i32 %s, %s, 40960" % (s(sKO), s(sTK)))
    asm("s_mul_i32 %s, %s, 320" % (s(sT1), s(sHH)))
    asm("s_add_u32 %s, %s, %s" % (s(sKO), s(sKO), s(sT1)))
    asm("s_add_u32 %s, %s, %d" % (s(sKO), s(sKO), R_VB))
    asm("s_mul_i32 %s, %s, 1280" % (s(sLK), s(sIk)))
    asm("s_add_u32 %s, %s, %d" % (s(sLK), s(sLK), L_V))
    asm("s_mov_b64 exec, %s" % s(sM40, 2))
    for ii in range(8):
        asm("s_add_u32 m0, %s, %d" % (s(sLK), ii * 1280))
        asm("s_add_u32 %s, %s, %d" % (s(sT1), s(sKO), 20480 - 640))
        asm("buffer_load_dwordx4 %s, %s, %s offen sc1 lds" % (v(vFo), s(SWS, 4), s(sKO)))
        asm("buffer_load_dwordx4 %s, %s, %s offen offset:640 sc1 lds" % (v(vFo), s(SWS, 4), s(sT1)))
        if ii < 7: asm("s_add_u32 %s, %s, 40960" % (s(sKO), s(sKO)))
    asm("s_mov_b64 exec, -1")
    asm("s_waitcnt vmcnt(16)")
    asm("s_branch %s_kwait" % N)
    asm.label("%s_nov" % N)
    asm("s_waitcnt vmcnt(0)")
    asm("s_branch %s_kwait" % N)
    asm.label("%s_w5" % N)
    own_tile_wait()
    asm("s_add_u32 %s, %s, 7" % (s(sT0), s(sRB2)))
    asm("s_lshl_b32 %s, %s, 7" % (s(sT0), s(sT0)))
    asm("s_and_b32 %s, %s, %d" % (s(sT1), s(sP8) if REPL <= 8 else s(sHH), REPL - 1))
    asm("s_lshl_b32 %s, %s, 11" % (s(sT1), s(sT1)))
    asm("s_add_u32 %s, %s, %s" % (s(sT0), s(sT0), s(sT1)))
    asm("s_add_u32 %s, %s, %d" % (s(sPL), s(sT0), F1))
    if FINE:
        tile_masks()
        asm("s_lshl_b32 %s, %s, 5" % (s(sT3), s(sT1)))
        asm("s_lshl_b32 %s, %s, 10" % (s(sT2), s(sT2)))
        asm("s_or_b32 %s, %s, %s" % (s(sT3), s(sT3), s(sT2)))
        asm("s_or_b32 %s, %s, %s" % (s(sT1), s(sT1), s(sT3)))
        asm("s_lshl_b32 %s, %s, 16" % (s(sT1), s(sT1)))
        asm("s_cmp_eq_u32 %s, 0" % s(sRB2))
        asm("s_cselect_b32 %s, 0, %s" % (s(sT3), s(sT3)))
        asm("s_or_b32 %s, %s, %s" % (s(sT1), s(sT1), s(sT3)))
    else:
        asm("s_cmp_eq_u32 %s, 0" % s(sRB2))
        asm("s_cselect_b32 %s, 0, 0x7fe0" % s(sT1))
        asm("s_or_b32 %s, %s, 0x7fff0000" % (s(sT1), s(sT1)))
    if opts.get("ppoll", 0): ppoll(s(sPL), 32, [244, 246, 248], vL8, smask=s(sT1))
    else: poll(s(sPL), 32, vT, vL8, smask=s(sT1))
    lds_set(W_S1, vT, vT + 1)
    st(4)
    q_loads()
    asm("s_waitcnt vmcnt(0)")
    asm("s_branch %s_kwait" % N)
    asm.label("%s_aearly" % N)
    asm("v_lshrrev_b32 %s, 5, %s" % (v(vT), v(vL)))
    asm("v_mul_u32_u24 %s, 10240, %s" % (v(vT), v(vT)))
    asm("v_and_b32 %s, 31, %s" % (v(vU), v(vL)))
    asm("v_lshl_add_u32 %s, %s, 4, %s" % (v(vFo), v(vU), v(vT)))
    asm("v_mov_b32 %s, 0x3f803f80" % v(vT + 2))
    for r in range(64, 128): asm("v_mov_b32 %s, %s" % (v(r), v(vT + 2)))
    own_tile_wait()
    asm("s_lshl_b32 %s, %s, 7" % (s(sT0), s(sRB2)))
    asm("s_and_b32 %s, %s, %d" % (s(sT1), s(sP8) if REPL <= 8 else s(sHH), REPL - 1))
    asm("s_lshl_b32 %s, %s, 11" % (s(sT1), s(sT1)))
    asm("s_add_u32 %s, %s, %s" % (s(sT0), s(sT0), s(sT1)))
    asm("s_add_u32 %s, %s, %d" % (s(sPL), s(sT0), F1))
    if FINE:
        tile_masks()
        asm("s_lshl_b32 %s, %s, 5" % (s(sT3), s(sT2)))
        asm("s_lshl_b32 %s, %s, 10" % (s(sT2), s(sT2)))
        asm("s_or_b32 %s, %s, %s" % (s(sT1), s(sT1), s(sT3)))
        asm("s_or_b32 %s, %s, %s" % (s(sT1), s(sT1), s(sT2)))
        if opts.get("ppoll", 0): ppoll(s(sPL), 15, [244, 246, 248], vL8, smask=s(sT1))
        else: poll(s(sPL), 15, vT, vL8, smask=s(sT1))
    else:
        poll(s(sPL), 15, vT, vL8)
    lds_set(W_S1A, vT, vT + 1)
    st(4)
    asm("s_lshl_b32 %s, %s, 3" % (s(sT0), s(sRB2)))
    asm("s_mul_i32 %s, %s, 40960" % (s(sT0), s(sT0)))
    asm("s_mul_i32 %s, %s, 320" % (s(sT1), s(sHH)))
    asm("s_add_u32 %s, %s, %s" % (s(sT0), s(sT0), s(sT1)))
    asm("s_add_u32 %s, %s, %d" % (s(sT1), s(sT0), R_KA))
    asm("s_add_u32 %s, %s, %d" % (s(sT2), s(sT0), R_VA))
    asm("s_mov_b64 exec, %s" % s(sMSK, 2))
    for b in range(8):
        for m in range(2):
            asm("buffer_load_dwordx4 %s, %s, %s, %s offen sc1" % (v((b * 2 + m) * 4, 4), v(vFo), s(SWS, 4), s(sT1)))
            asm("buffer_load_dwordx4 %s, %s, %s, %s offen sc1" % (v(64 + (b * 2 + m) * 4, 4), v(vFo), s(SWS, 4), s(sT2)))
            asm("s_add_u32 %s, %s, 20480" % (s(sT1), s(sT1)))
            asm("s_add_u32 %s, %s, 20480" % (s(sT2), s(sT2)))
    asm("s_mov_b64 exec, -1")
    lds_wait(W_S1, vT, vT + 1)
    q_loads()
    for b in range(16):
        asm("s_waitcnt vmcnt(%d)" % (32 - 2 * b))
        c = "0" if b == 0 else v(O, 16)
        asm("v_mfma_f32_32x32x16_bf16 %s, %s, %s, %s" % (v(O, 16), v(b * 4, 4), v(64 + b * 4, 4), c))
    asm("s_lshl_b32 %s, %s, 3" % (s(sT0), s(sHH)))
    asm("s_add_u32 %s, %s, %s" % (s(sT0), s(sT0), s(sRB2)))
    asm("s_mul_i32 %s, %s, 3072" % (s(sT0), s(sT0)))
    asm("s_add_u32 %s, %s, %d" % (s(sT0), s(sT0), R_KVP))
    asm("s_nop 7"); asm("s_nop 1")
    for j in range(3):
        asm("buffer_store_dwordx4 %s, %s, %s, %s offen offset:%d sc1" % (v(O + 4 * j, 4), v(vLin), s(SWS, 4), s(sT0), j * 1024))
    asm("s_waitcnt vmcnt(3)")
    asm.label("%s_kwait" % N)
    lds_wait(W_K, vT, vT + 1, atleast=4)
    st(5)
    PRIO = opts.get("prio", 0)
    if PRIO:
        asm("s_cmp_%s_u32 %s, 4" % ("lt" if PRIO == 1 else "ge", s(sW)))
        asm("s_cbranch_scc0 %s_noprio" % N)
        asm("s_setprio 2")
        asm.label("%s_noprio" % N)
    def rdK(d, dst):
        for gg in range(2):
            asm("ds_read_b128 %s, %s offset:%d" % (v(dst + 4 * gg, 4), v(vKa), (8 - d) * 2048 + gg * 1024))
    def rdV(d, dst):
        asm("s_mov_b64 exec, %s" % s(sMSK, 2))
        for m in range(2):
            asm("ds_read_b128 %s, %s offset:%d" % (v(dst + 4 * m, 4), v(vVa), (8 - d) * 1280 + m * 640))
        asm("s_mov_b64 exec, -1")
    rdK(0, F[0])
    for gg in range(2):
        for p in range(2):
            k = gg * 2 + p
            for j in range(2):
                r = Q + 4 * gg + 2 * p + j
                asm("v_cndmask_b32 %s, 0, %s, %s" % (v(r), v(r), s(sQM + 2 * k, 2)))
    def maxes(d):
        b = S + 16 * d
        if d == 0:
            asm("v_max3_f32 %s, %s, %s, %s" % (v(vM), v(b), v(b + 1), v(b + 2)))
            for k in range(3, 15, 2):
                asm("v_max3_f32 %s, %s, %s, %s" % (v(vM), v(vM), v(b + k), v(b + k + 1)))
            asm("v_max_f32 %s, %s, %s" % (v(vM), v(vM), v(b + 15)))
        else:
            for k in range(0, 16, 2):
                asm("v_max3_f32 %s, %s, %s, %s" % (v(vM), v(vM), v(b + k), v(b + k + 1)))
    for d in range(9):
        cur, nxt = F[d & 1], F[(d + 1) & 1]
        asm("s_waitcnt lgkmcnt(0)")
        if d < 8: rdK(d + 1, nxt)
        if d > 0:
            asm("s_cmp_le_u32 %s, %d" % (s(sNT), d))
            asm("s_cbranch_scc1 %s_p1skip%d" % (N, d))
        else:
            asm("s_nop 1")
        c = v(CM8, 16) if d == 0 else (v(CM0, 16) if d == 8 else "0")
        b = v(S + 16 * d, 16)
        asm("v_mfma_f32_32x32x16_bf16 %s, %s, %s, %s" % (b, v(cur, 4), v(Q, 4), c))
        asm("v_mfma_f32_32x32x16_bf16 %s, %s, %s, %s" % (b, v(cur + 4, 4), v(Q + 4, 4), b))
        if d > 0:
            asm.label("%s_p1skip%d" % (N, d))
            if d == 1: asm("s_nop 7")
            maxes(d - 1)
            asm("s_cbranch_scc1 %s_p1end" % N)
    asm("s_nop 3")
    maxes(8)
    asm.label("%s_p1end" % N)
    st(6)
    SIGD = opts.get("sigd", 2)
    def a_signal():
        asm("s_cmp_lg_u32 %s, %d" % (s(sW), AW))
        asm("s_cbranch_scc1 %s_nosig" % N)
        asm("s_waitcnt vmcnt(0)")
        asm("s_lshl_b32 %s, %s, 4" % (s(sT0), s(sHH)))
        asm("s_add_u32 %s, %s, %s" % (s(sT0), s(sT0), s(sRB2)))
        asm("s_lshl_b32 %s, %s, 3" % (s(sT0), s(sT0)))
        asm("s_add_u32 %s, %s, %d" % (s(sT0), s(sT0), F2))
        flag_store(s(sT0), vT, vT + 2)
        asm.label("%s_nosig" % N)
    if SIGD < 0: a_signal()
    asm("s_cmp_lt_u32 %s, 6" % s(sW))
    asm("s_cbranch_scc1 %s_vw" % N)
    asm("s_waitcnt vmcnt(0)")
    lds_inc(W_V)
    asm.label("%s_vw" % N)
    lds_wait(W_V, vT, vT + 1, atleast=2)
    asm("s_waitcnt lgkmcnt(0)")
    asm("s_mov_b32 %s, 0x3f803f80" % s(sT0))
    for r in range(16): asm("v_mov_b32 %s, %s" % (v(VF[0] + r), s(sT0)))
    rdV(0, VF[0])
    asm("v_mov_b32 %s, %s" % (v(vT + 2), v(vM)))
    asm("v_mov_b32 %s, %s" % (v(vT + 3), v(vM)))
    asm("s_nop 1")
    asm("v_permlane32_swap_b32 %s, %s" % (v(vT + 2), v(vT + 3)))
    asm("s_nop 1")
    asm("v_max_f32 %s, %s, %s" % (v(vM), v(vT + 2), v(vT + 3)))
    asm("v_sub_f32 %s, 0, %s" % (v(vNM), v(vM)))
    asm("v_sub_f32 %s, 0, %s" % (v(vNM + 1), v(vM)))
    PQD = opts.get("pqd", 5)
    sPQ = 7
    asm("s_mov_b32 %s, 0" % s(sPQ))
    def pq_loads():
        lds_wait(W_S1A, vT + 4, vT + 5)
        asm("buffer_load_dwordx4 %s, %s, %s, %s offen sc1" % (v(Q, 4), v(vLin), s(SWS, 4), s(sOffQA)))
        asm("buffer_load_dwordx4 %s, %s, %s, %s offen offset:1024 sc1" % (v(Q + 4, 4), v(vLin), s(SWS, 4), s(sOffQA)))
    for d in range(9):
        cur, nxt = VF[d & 1], VF[(d + 1) & 1]
        b = S + 16 * d
        if d > 0:
            asm("s_cmp_le_u32 %s, %d" % (s(sNT), d))
            asm("s_cbranch_scc1 %s_p2end" % N)
        for k in range(8):
            asm("v_pk_add_f32 %s, %s, %s" % (v(b + 2 * k, 2), v(b + 2 * k, 2), v(vNM, 2)))
        for k in range(16):
            asm("v_exp_f32 %s, %s" % (v(b + k), v(b + k)))
        asm("s_waitcnt lgkmcnt(0)")
        if d < 8: rdV(d + 1, nxt)
        for k in range(8):
            asm("v_cvt_pk_bf16_f32 %s, %s, %s" % (v(b + k), v(b + 2 * k), v(b + 2 * k + 1)))
        asm("s_nop 1")
        asm("v_mfma_f32_32x32x16_bf16 %s, %s, %s, %s" % (v(O, 16), v(cur, 4), v(b, 4), "0" if d == 0 else v(O, 16)))
        asm("v_mfma_f32_32x32x16_bf16 %s, %s, %s, %s" % (v(O, 16), v(cur + 4, 4), v(b + 4, 4), v(O, 16)))
        if d == SIGD: a_signal()
        if d == PQD:
            pq_loads()
            asm("s_mov_b32 %s, 1" % s(sPQ))
    asm.label("%s_p2end" % N)
    if PRIO: asm("s_setprio 0")
    if PQD > 0:
        asm("s_cmp_lg_u32 %s, 0" % s(sPQ))
        asm("s_cbranch_scc1 %s_pqdone" % N)
        pq_loads()
        asm.label("%s_pqdone" % N)
    st(7)
    def normalize(dst, eps):
        asm("v_mov_b32 %s, %s" % (v(vT), v(O + 8)))
        asm("v_mov_b32 %s, %s" % (v(vT + 1), v(O + 8)))
        asm("s_nop 1")
        asm("v_permlane32_swap_b32 %s, %s" % (v(vT), v(vT + 1)))
        asm("s_nop 1")
        if eps: asm("v_add_f32 %s, %s, %s" % (v(vT + 1), s(sEPS), v(vT + 1)))
        asm("v_rcp_f32 %s, %s" % (v(vT + 1), v(vT + 1)))
        asm("s_nop 0")
        for k in range(12): asm("v_mul_f32 %s, %s, %s" % (v(O + k), v(vT + 1), v(O + k)))
        for k in range(6): asm("v_cvt_pk_bf16_f32 %s, %s, %s" % (v(dst + k), v(O + 2 * k), v(O + 2 * k + 1)))
    def store_o(src, region):
        asm("s_add_u32 %s, %s, %d" % (s(sT0), s(sOffO), region))
        asm("buffer_store_dwordx4 %s, %s, %s, %s offen%s" % (v(src, 4), v(vOm), s(SWS, 4), s(sT0), SC))
        asm("buffer_store_dwordx2 %s, %s, %s, %s offen%s" % (v(src + 4, 2), v(vOr), s(SWS, 4), s(sT0), SC))
    asm("s_mov_b32 %s, %s" % (s(sEPS), fhex(1e-6)))
    asm("s_cmp_ge_u32 %s, 4" % s(sW))
    asm("s_cbranch_scc1 %s_hiwaves" % N)
    asm("s_lshl_b32 %s, %s, 7" % (s(sPL), s(sHH)))
    asm("s_add_u32 %s, %s, %d" % (s(sPL), s(sPL), F2))
    asm("s_cmp_lg_u32 %s, 0" % s(sW))
    asm("s_cbranch_scc1 %s_w123" % N)
    poll_issue(s(sPL), vT + 4, vL8, 8)
    asm("s_nop 7"); asm("s_nop 3")
    normalize(PB, False)
    poll(s(sPL), 8, vT + 4, vL8, preissued=True)
    lds_set(W_S2, vT + 4, vT + 5)
    asm("s_branch %s_w0123" % N)
    asm.label("%s_w123" % N)
    asm("s_nop 7"); asm("s_nop 3")
    normalize(PB, False)
    lds_wait(W_S2, vT + 4, vT + 5)
    asm.label("%s_w0123" % N)
    asm("s_lshl_b32 %s, %s, 1" % (s(sT0), s(sW)))
    asm("s_sub_u32 %s, %s, %s" % (s(sT0), s(sT0), s(sDQ)))
    asm("v_lshrrev_b32 %s, 5, %s" % (v(vT), v(vL)))
    asm("v_add_u32 %s, %s, %s" % (v(vT), s(sT0), v(vT)))
    asm("v_and_b32 %s, 31, %s" % (v(vT + 1), v(vL)))
    asm("v_lshlrev_b32 %s, 4, %s" % (v(vT + 1), v(vT + 1)))
    asm("v_lshl_add_u32 %s, %s, 9, %s" % (v(vT + 1), v(vT), v(vT + 1)))
    asm("v_cmp_ge_u32 vcc, 4, %s" % v(vT))
    asm("v_mov_b32 %s, 0x%x" % (v(vT + 2), OOB))
    asm("s_nop 0")
    asm("v_cndmask_b32 %s, %s, %s, vcc" % (v(vU), v(vT + 2), v(vT + 1)))
    asm("s_lshl_b32 %s, %s, 3" % (s(sT0), s(sHH)))
    asm("s_mul_i32 %s, %s, 3072" % (s(sT0), s(sT0)))
    asm("s_add_u32 %s, %s, %d" % (s(sT0), s(sT0), R_KVP))
    for r in range(8):
        asm("buffer_load_dwordx4 %s, %s, %s, %s offen sc1" % (v(S + 4 * r, 4), v(vU), s(SWS, 4), s(sT0)))
        if r < 7: asm("s_add_u32 %s, %s, 3072" % (s(sT0), s(sT0)))
    store_o(PB, R_OB)
    asm("s_waitcnt vmcnt(2)")
    for r in range(1, 8):
        for k in range(4):
            asm("v_add_f32 %s, %s, %s" % (v(S + k), v(S + k), v(S + 4 * r + k)))
    asm("v_cvt_pk_bf16_f32 %s, %s, %s" % (v(vT), v(S), v(S + 1)))
    asm("v_cvt_pk_bf16_f32 %s, %s, %s" % (v(vT + 1), v(S + 2), v(S + 3)))
    asm("s_lshr_b32 %s, %s, 1" % (s(sT0), s(sW)))
    asm("s_lshl_b32 %s, %s, 10" % (s(sT0), s(sT0)))
    asm("s_and_b32 %s, %s, 1" % (s(sT1), s(sW)))
    asm("s_lshl_b32 %s, %s, 3" % (s(sT1), s(sT1)))
    asm("s_add_u32 %s, %s, %s" % (s(sT0), s(sT0), s(sT1)))
    asm("s_add_u32 %s, %s, %d" % (s(sT0), s(sT0), L_KVT))
    asm("v_add_u32 %s, %s, %s" % (v(vU), s(sT0), v(vLin)))
    asm("ds_write_b64 %s, %s" % (v(vU), v(vT, 2)))
    asm("s_branch %s_join" % N)
    asm.label("%s_hiwaves" % N)
    asm("s_nop 7"); asm("s_nop 3")
    normalize(PB, False)
    store_o(PB, R_OB)
    asm.label("%s_join" % N)
    asm("s_waitcnt lgkmcnt(0)")
    asm("s_barrier")
    st(8)
    asm("v_add_u32 %s, 0x%x, %s" % (v(vU), L_KVT, v(vLin)))
    asm("ds_read_b128 %s, %s" % (v(F[0], 4), v(vU)))
    asm("ds_read_b128 %s, %s offset:1024" % (v(F[0] + 4, 4), v(vU)))
    sF3 = 69
    asm("s_lshl_b32 %s, %s, 5" % (s(sF3), s(sRB2)))
    asm("s_add_u32 %s, %s, %s" % (s(sF3), s(sF3), s(sHH)))
    asm("s_lshl_b32 %s, %s, 3" % (s(sF3), s(sF3)))
    asm("s_add_u32 %s, %s, %d" % (s(sF3), s(sF3), F3))
    asm("s_waitcnt vmcnt(2) lgkmcnt(0)")
    asm("v_mfma_f32_32x32x16_bf16 %s, %s, %s, 0" % (v(O, 16), v(F[0], 4), v(Q, 4)))
    asm("v_mfma_f32_32x32x16_bf16 %s, %s, %s, %s" % (v(O, 16), v(F[0] + 4, 4), v(Q + 4, 4), v(O, 16)))
    asm("s_nop 7"); asm("s_nop 3")
    normalize(PA, True)
    store_o(PA, R_OA)
    asm("s_add_u32 %s, %s, %d" % (s(sT1), s(sF3), 8 * 256))
    asm("s_waitcnt vmcnt(2)")
    release()
    lds_arrive(W_CNT3B, 8, vT + 6, vT + 4, s(sT1))
    asm("s_waitcnt vmcnt(0)")
    release()
    lds_arrive(W_CNT3A, 8, vT + 6, vT + 4, s(sF3))
    st(9)
    asm("s_cmp_ge_u32 %s, 4" % s(sW))
    asm("s_cbranch_scc1 %s_fin" % N)
    OF = 0; ACC3 = 160; WF = [200, 220]
    vOM, vOR, vWm, vWm2, vWr, vWr2 = 245, 246, 247, 248, 249, 250
    p3L, p3T, p3U, p3X = 251, 252, 253, 254
    vDW3 = 240
    sTB3, sOffO3, sOM = 44, 45, 46
    SOUT = SB_
    decode3()
    asm("s_load_dwordx2 s[4:5], s[0:1], 48")
    asm("s_lshl_b32 %s, %s, 2" % (s(sTB3), s(sRB3)))
    asm("s_add_u32 %s, %s, %s" % (s(sTB3), s(sTB3), s(sW)))
    lane(p3L)
    asm("v_lshlrev_b32 %s, 3, %s" % (v(p3X), v(p3L)))
    asm("s_lshl_b32 %s, %s, 3" % (s(sT0), s(sBR3)))
    asm("s_lshr_b32 %s, %s, 1" % (s(sT1), s(sRB3)))
    asm("s_add_u32 %s, %s, %s" % (s(sT0), s(sT0), s(sT1)))
    asm("s_lshl_b32 %s, %s, 8" % (s(sT0), s(sT0)))
    asm("s_add_u32 %s, %s, %d" % (s(sPL), s(sT0), F3))
    asm("v_lshrrev_b32 %s, 4, %s" % (v(p3T), v(p3L)))
    asm("v_and_b32 %s, 15, %s" % (v(p3U), v(p3L)))
    asm("v_lshrrev_b32 %s, 1, %s" % (v(vWm2), v(p3T)))
    asm("v_mul_u32_u24 %s, 1280, %s" % (v(vOM), v(vWm2)))
    asm("v_and_b32 %s, 1, %s" % (v(vWm2), v(p3T)))
    asm("v_lshl_add_u32 %s, %s, 9, %s" % (v(vOM), v(vWm2), v(vOM)))
    asm("v_lshl_add_u32 %s, %s, 4, %s" % (v(vOM), v(p3U), v(vOM)))
    asm("v_mul_u32_u24 %s, 1280, %s" % (v(vOR), v(p3T)))
    asm("v_lshl_add_u32 %s, %s, 3, %s" % (v(vOR), v(p3U), v(vOR)))
    asm("v_add_u32 %s, 1024, %s" % (v(vOR), v(vOR)))
    asm("v_bfe_u32 %s, %s, 2, 2" % (v(p3U), v(p3L)))
    asm("v_lshrrev_b32 %s, 1, %s" % (v(vWm2), v(p3T)))
    asm("v_mul_u32_u24 %s, 20, %s" % (v(vWm), v(vWm2)))
    asm("v_and_b32 %s, 1, %s" % (v(vWm2), v(p3T)))
    asm("v_lshl_add_u32 %s, %s, 2, %s" % (v(vWm), v(vWm2), v(vWm)))
    asm("v_add_u32 %s, %s, %s" % (v(vWm), v(vWm), v(p3U)))
    asm("v_mul_u32_u24 %s, 160, %s" % (v(vWm), v(vWm)))
    asm("v_mul_u32_u24 %s, 20, %s" % (v(vWr), v(p3T)))
    asm("v_add_u32 %s, %s, %s" % (v(vWr), v(vWr), v(p3U)))
    asm("v_add_u32 %s, 16, %s" % (v(vWr), v(vWr)))
    asm("v_mul_u32_u24 %s, 160, %s" % (v(vWr), v(vWr)))
    asm("v_and_b32 %s, 3, %s" % (v(vWm2), v(p3L)))
    asm("v_lshl_add_u32 %s, %s, 3, %s" % (v(vWm), v(vWm2), v(vWm)))
    asm("v_lshl_add_u32 %s, %s, 3, %s" % (v(vWr), v(vWm2), v(vWr)))
    asm("v_add_u32 %s, 51200, %s" % (v(vWm2), v(vWm)))
    asm("v_add_u32 %s, 51200, %s" % (v(vWr2), v(vWr)))
    asm("s_mul_i32 %s, %s, %d" % (s(sOffO3), s(sBR3), REG))
    asm("s_add_u32 %s, %s, %d" % (s(sOffO3), s(sOffO3), R_OA))
    asm("s_mul_i32 %s, %s, 40960" % (s(sT0), s(sTB3)))
    asm("s_add_u32 %s, %s, %s" % (s(sOffO3), s(sOffO3), s(sT0)))
    asm("s_waitcnt lgkmcnt(0)")
    srd(asm, SOUT, "s4", "s5", 2048 * 2560)
    asm("s_cmp_lg_u32 %s, 0" % s(sW))
    asm("s_cbranch_scc1 %s_p3w" % N)
    if opts.get("ppoll", 0): ppoll(s(sPL), 32, [vDW3, vDW3 + 2], p3X)
    else: poll(s(sPL), 32, vDW3, p3X)
    lds_set(W_S3, p3T, p3U)
    asm("s_branch %s_p3go" % N)
    asm.label("%s_p3w" % N)
    lds_wait(W_S3, vDW3, vDW3 + 1)
    asm.label("%s_p3go" % N)
    st(10)
    def oloads(sidx):
        if sidx < 16:
            asm("s_add_u32 %s, %s, %d" % (s(sOM), s(sOffO3), 2560 * sidx))
            for rt in range(2):
                asm("buffer_load_dwordx4 %s, %s, %s, %s offen offset:%d%s" % (v(OF + (sidx * 2 + rt) * 4, 4), v(vOM), s(SWS, 4), s(sOM), rt * 256, LSC3))
        else:
            a_ = sidx - 16
            for half in range(2):
                asm("s_add_u32 %s, %s, %d" % (s(sOM), s(sOffO3), a_ * 8 * 1280 + half * 5120))
                for rt in range(2):
                    asm("buffer_load_dwordx2 %s, %s, %s, %s offen offset:%d%s" % (v(OF + ((16 + a_) * 2 + rt) * 4 + 2 * half, 2), v(vOR), s(SWS, 4), s(sOM), rt * 128, LSC3))
    def cum(k): return 2 * (k + 1) if k < 16 else 32 + 4 * (k - 15)
    PD = opts.get("pd", 5)
    for k in range(PD): oloads(k)
    def wreads(step, dst):
        ops = []
        for ct in range(5):
            for a_ in range(2):
                if step < 16:
                    base = vWm if step < 8 else vWm2
                    off = (step & 7) * 6400 + a_ * 1280 + ct * 32
                else:
                    ap = step - 16
                    base = vWr if ap < 2 else vWr2
                    off = (ap & 1) * 25600 + a_ * 12800 + ct * 32
                ops.append(lambda ct=ct, a_=a_, base=base, off=off: asm("ds_read_b64_tr_b16 %s, %s offset:%d" % (v(dst + 4 * ct + 2 * a_, 2), v(base), off)))
        return ops
    if opts.get("p3st"): st(1)
    for f in wreads(0, WF[0]): f()
    for sidx in range(20):
        cur = WF[sidx & 1]
        nxt_ops = wreads(sidx + 1, WF[(sidx + 1) & 1]) if sidx < 19 else []
        vm = cum(min(sidx + PD - 1, 19)) - cum(sidx)
        asm("s_waitcnt vmcnt(%d) lgkmcnt(0)" % vm)
        if opts.get("p3st") and sidx in (0, 8, 16): st({0: 2, 8: 3, 16: 4}[sidx])
        m = 0
        for ct in range(5):
            for rt in range(2):
                acc = v(ACC3 + (rt * 5 + ct) * 4, 4)
                c = "0" if sidx == 0 else acc
                asm("v_mfma_f32_16x16x32_bf16 %s, %s, %s, %s" % (acc, v(cur + 4 * ct, 4), v(OF + (sidx * 2 + rt) * 4, 4), c))
                if m < 5 and nxt_ops:
                    nxt_ops[2 * m](); nxt_ops[2 * m + 1]()
                if m == 5 and sidx + PD < 20: oloads(sidx + PD)
                m += 1
    st(11)
    asm("v_and_b32 %s, 15, %s" % (v(p3U), v(p3L)))
    asm("v_mul_u32_u24 %s, 160, %s" % (v(p3U), v(p3U)))
    asm("v_lshrrev_b32 %s, 4, %s" % (v(p3T), v(p3L)))
    asm("v_lshl_add_u32 %s, %s, 3, %s" % (v(p3U), v(p3T), v(p3U)))
    asm("s_mul_i32 %s, %s, 5120" % (s(sT0), s(sW)))
    asm("s_add_u32 %s, %s, %d" % (s(sT0), s(sT0), L_OUT))
    asm("v_add_u32 %s, %s, %s" % (v(p3U), s(sT0), v(p3U)))
    asm("v_lshlrev_b32 %s, 4, %s" % (v(p3X), v(p3L)))
    asm("v_add_u32 %s, %s, %s" % (v(p3X), s(sT0), v(p3X)))
    asm("s_nop 3")
    for rt in range(2):
        for ct in range(5):
            b = ACC3 + (rt * 5 + ct) * 4
            t = OF + (rt * 5 + ct) * 2
            asm("v_cvt_pk_bf16_f32 %s, %s, %s" % (v(t), v(b), v(b + 1)))
            asm("v_cvt_pk_bf16_f32 %s, %s, %s" % (v(t + 1), v(b + 2), v(b + 3)))
            asm("ds_write_b64 %s, %s offset:%d" % (v(p3U), v(t, 2), rt * 2560 + ct * 32))
    asm("s_movk_i32 %s, 6554" % s(sT2))
    asm("s_movk_i32 %s, 2560" % s(sT3))
    for b in range(5):
        asm("v_add_u32 %s, %d, %s" % (v(p3T), 64 * b, v(p3L)))
        asm("v_mul_lo_u32 %s, %s, %s" % (v(vWm), v(p3T), s(sT2)))
        asm("v_lshrrev_b32 %s, 16, %s" % (v(vWm), v(vWm)))
        asm("v_mul_u32_u24 %s, 10, %s" % (v(vWr), v(vWm)))
        asm("v_sub_u32 %s, %s, %s" % (v(p3T), v(p3T), v(vWr)))
        asm("v_lshlrev_b32 %s, 4, %s" % (v(p3T), v(p3T)))
        asm("v_mad_u32_u24 %s, %s, %s, %s" % (v(vDW3 + b), v(vWm), s(sT3), v(p3T)))
    asm("s_mul_i32 %s, %s, %d" % (s(sT0), s(sTB3), 32 * 2560))
    asm("s_mul_i32 %s, %s, 1280" % (s(sT1), s(sBR3)))
    asm("s_add_u32 %s, %s, %s" % (s(sT0), s(sT0), s(sT1)))
    asm("s_mul_i32 %s, %s, 160" % (s(sT1), s(sCB3)))
    asm("s_add_u32 %s, %s, %s" % (s(sT0), s(sT0), s(sT1)))
    asm("s_waitcnt lgkmcnt(0)")
    for b in range(5):
        asm("ds_read_b128 %s, %s offset:%d" % (v(32 + 4 * b, 4), v(p3X), b * 1024))
    for b in range(5):
        asm("s_waitcnt lgkmcnt(%d)" % (4 - b))
        asm("buffer_store_dwordx4 %s, %s, %s, %s offen%s" % (v(32 + 4 * b, 4), v(vDW3 + b), s(SOUT, 4), s(sT0), {0: "", 1: " sc1", 2: " nt", 3: " sc0 sc1"}[opts.get("outsc", 0)]))
    asm.label("%s_fin" % N)
    if stamp:
        asm("s_waitcnt vmcnt(0)")
        st(12)
        asm("s_waitcnt lgkmcnt(0)")
        asm("s_load_dwordx2 s[4:5], s[0:1], 64")
        asm("s_waitcnt lgkmcnt(0)")
        asm("s_add_u32 s4, s4, %d" % (R_STAMP + (opts.get("wsoff", 0) << 20)))
        asm("s_addc_u32 s5, s5, 0")
        srd(asm, SA_, "s4", "s5", 1 << 20)
        asm("s_lshl_b32 %s, s2, 3" % s(sT0))
        asm("s_add_u32 %s, %s, %s" % (s(sT0), s(sT0), s(sW)))
        asm("s_lshl_b32 %s, %s, 7" % (s(sT0), s(sT0)))
        asm("v_mov_b32 v1, %s" % s(sT0))
        for i in range(13):
            asm("v_mov_b32 v2, %s" % s(STB + 2 * i))
            asm("v_mov_b32 v3, %s" % s(STB + 2 * i + 1))
            asm("buffer_store_dwordx2 v[2:3], v1, %s, 0 offen offset:%d" % (s(SA_, 4), 8 * i))
            asm("s_nop 1")
        asm("s_getreg_b32 s4, hwreg(HW_REG_HW_ID)")
        asm("v_mov_b32 v2, %s" % s(sXCC))
        asm("v_mov_b32 v3, s4")
        asm("buffer_store_dwordx2 v[2:3], v1, %s, 0 offen offset:%d" % (s(SA_, 4), 8 * 13))
    asm.label("%s_end" % N)
    asm("s_endpgm")
    return dict(name=N, vgpr=256, sgpr=100, grid=256, block=512, lds=LDS_BYTES)
HEADER = open("concat_heads__linear_attn_block__sliding_block__prompt.s.ref").read().split("; Override")[0]
def build(stamp=False, opts=None):
    body = A()
    i = gen(body, stamp=stamp, opts=opts)
    out = HEADER
    out += "; @launch grid=(%d,1,1) block=(%d,1,1) lds=%d\n" % (i["grid"], i["block"], i["lds"])
    out += '.amdgcn_target "amdgcn-amd-amdhsa--gfx950"\n.text\n'
    out += body.text()
    d = A()
    d('.section .rodata,"a"')
    kernel_desc(d, i["name"], i["vgpr"], i["sgpr"])
    out += d.text()
    return out
if __name__ == "__main__":
    import sys
    opts = {}
    for a_ in sys.argv[3:]:
        k, val = a_.split("="); opts[k] = int(val)
    open(sys.argv[1], "w").write(build(stamp=(len(sys.argv) > 2 and sys.argv[2] == "stamp"), opts=opts))
```

```python
from asmlib import *
import math
REG = 2621440
R_QA, R_KA, R_VA, R_QB, R_KB, R_VB, R_OA, R_OB, R_KVP, R_FLG = [i * REG for i in range(10)]
F1 = R_FLG
F2 = R_FLG + 65536
F3 = R_FLG + 65536 + 8192
WS_REC = R_FLG + 131072
R_STAMP = 10 * REG
LOG2E = 1.4426950408889634
QSCALE = LOG2E / math.sqrt(20.0)
BIG = -1.0e30
OOB = 0x40000000
L_WO, L_K, L_V, L_KVT = 0, 102400, 135168, 155648
L_OUT = L_K
L_SYNC = 157696
W_CNT1, W_S1, W_S1A, W_S2, W_CNT3B, W_CNT3A, W_S3, W_ISS, W_K, W_V = [L_SYNC + 4 * i for i in range(10)]
LDS_BYTES = 157696 + 64
SPIN_MAX = 0x40000
NAME = "concat_heads__linear_attn_block__sliding_block__prompt_kernel"
class G:
    pass
def gen(asm, stamp=False, name=NAME, opts=None):
    opts = opts or {}
    N = name
    D1 = opts.get("d1", 0)
    SC = " sc1" if D1 else ""
    SC = {0: SC, 1: " sc0 sc1", 2: " sc1 nt", 3: " sc0 sc1 nt"}[opts.get("scmode", 0)]
    REPL = opts.get("repl", 8)
    LSC3 = "" if opts.get("plain3") else " sc1"
    sW = 3
    SWS, SDBG = 8, 12
    sNON = 16
    sT0, sT1, sT2, sT3 = 18, 19, 20, 21
    sCNT, sPL = 22, 23
    SA_, SB_ = 24, 28
    sMASK = 32
    sPC = 34
    STB = 72
    sP8, sSLOT, sLOCAL, sXCC = 70, 71, 98, 99
    def st(k):
        if stamp:
            asm("s_memrealtime %s" % s(STB + 2 * k, 2))
    def lane(dst):
        asm("v_mbcnt_lo_u32_b32 %s, -1, 0" % v(dst))
        asm("v_mbcnt_hi_u32_b32 %s, -1, %s" % (v(dst), v(dst)))
    uid = [0]
    def lab(p):
        uid[0] += 1
        return "%s_%s%d" % (N, p, uid[0])
    def sync_issue(vd, vo):
        lane(vo)
        asm("s_lshl_b32 %s, %s, 3" % (s(sT0), s(sP8)))
        asm("s_add_u32 %s, %s, 64" % (s(sT0), s(sT0)))
        asm("v_cmp_eq_u32 vcc, 1, %s" % v(vo))
        asm("v_mov_b32 %s, %s" % (v(vd), s(sT0)))
        asm("v_mov_b32 %s, 0" % v(vo))
        asm("v_cndmask_b32 %s, %s, %s, vcc" % (v(vo), v(vo), v(vd)))
        asm("buffer_load_dwordx2 %s, %s, %s, 0 offen sc1" % (v(vd, 2), v(vo), s(SDBG, 4)))
    def get_sync(vd, vo, preissued=False):
        L, D = lab("non"), lab("nond")
        if not preissued: sync_issue(vd, vo)
        asm("s_mov_b32 %s, 0" % s(sCNT))
        asm.label(L)
        asm("s_waitcnt vmcnt(0)")
        asm("v_readlane_b32 %s, %s, 0" % (s(sNON), v(vd)))
        asm("v_readlane_b32 %s, %s, 0" % (s(sNON + 1), v(vd + 1)))
        asm("v_readlane_b32 %s, %s, 1" % (s(sPC), v(vd)))
        asm("v_readlane_b32 %s, %s, 1" % (s(sPC + 1), v(vd + 1)))
        asm("s_add_u32 %s, %s, 1" % (s(sCNT), s(sCNT)))
        asm("s_nop 2")
        asm("s_cmp_lg_u32 %s, 0" % s(sNON))
        asm("s_cbranch_scc1 %s" % D)
        asm("s_cmp_ge_u32 %s, 0x%x" % (s(sCNT), SPIN_MAX))
        asm("s_cbranch_scc1 %s" % D)
        asm("s_sleep 4")
        asm("buffer_load_dwordx2 %s, %s, %s, 0 offen sc1" % (v(vd, 2), v(vo), s(SDBG, 4)))
        asm("s_branch %s" % L)
        asm.label(D)
        asm("s_lshl_b32 %s, %s, 3" % (s(sT0), s(sXCC)))
        asm("s_lshl_b64 %s, 32, %s" % (s(sMASK, 2), s(sT0)))
        asm("s_cmp_eq_u64 %s, %s" % (s(sMASK, 2), s(sPC, 2)))
        asm("s_cselect_b32 %s, 1, 0" % s(sLOCAL))
        if opts.get("nolocal"): asm("s_mov_b32 %s, 0" % s(sLOCAL))
    def release():
        if D1: return
        D = lab("rel")
        asm("s_cmp_lg_u32 %s, 0" % s(sLOCAL))
        asm("s_cbranch_scc1 %s" % D)
        asm("buffer_wbl2 sc1")
        asm("s_waitcnt vmcnt(0)")
        asm.label(D)
    def lds_set(word, va, vd):
        asm("v_mov_b32 %s, 0x%x" % (v(va), word))
        asm("v_mov_b32 %s, 1" % v(vd))
        asm("ds_write_b32 %s, %s" % (v(va), v(vd)))
    def lds_wait(word, va, vd, atleast=1):
        L, D = lab("lw"), lab("lwd")
        asm("v_mov_b32 %s, 0x%x" % (v(va), word))
        asm("s_mov_b32 %s, 0" % s(sCNT))
        asm.label(L)
        asm("ds_read_b32 %s, %s" % (v(vd), v(va)))
        asm("s_waitcnt lgkmcnt(0)")
        asm("v_readfirstlane_b32 %s, %s" % (s(sT0), v(vd)))
        asm("s_add_u32 %s, %s, 1" % (s(sCNT), s(sCNT)))
        asm("s_nop 2")
        asm("s_cmp_ge_u32 %s, %d" % (s(sT0), atleast))
        asm("s_cbranch_scc1 %s" % D)
        asm("s_cmp_ge_u32 %s, 0x%x" % (s(sCNT), SPIN_MAX * 8))
        asm("s_cbranch_scc1 %s" % D)
        if opts.get("lsleep", 1): asm("s_sleep %d" % opts.get("lsleep", 1))
        asm("s_branch %s" % L)
        asm.label(D)
    def lds_arrive(word, n, va, vd, soff, replicas=1):
        D = lab("arr")
        asm("v_mov_b32 %s, 0x%x" % (v(va), word))
        asm("v_mov_b32 %s, 1" % v(vd))
        asm("s_mov_b64 exec, 1")
        asm("ds_add_rtn_u32 %s, %s, %s" % (v(vd), v(va), v(vd)))
        asm("s_waitcnt lgkmcnt(0)")
        asm("s_mov_b64 exec, -1")
        asm("v_readfirstlane_b32 %s, %s" % (s(sCNT), v(vd)))
        asm("s_nop 3")
        asm("s_cmp_lg_u32 %s, %d" % (s(sCNT), n - 1))
        asm("s_cbranch_scc1 %s" % D)
        flag_store(soff, vd, va, replicas)
        asm.label(D)
    def poll_issue(soff, vd, vo, n):
        asm("s_mov_b32 exec_lo, 0x%x" % ((1 << n) - 1))
        asm("s_mov_b32 exec_hi, 0")
        asm("buffer_load_dwordx2 %s, %s, %s, %s offen sc1" % (v(vd, 2), v(vo), s(SWS, 4), soff))
        asm("s_mov_b64 exec, -1")
    def poll(soff, n, vd, vo, preissued=False, lo=0, smask=None):
        L, D = lab("poll"), lab("polld")
        m = ((1 << n) - 1) & ~((1 << lo) - 1)
        asm("s_mov_b32 %s, %s" % (s(sMASK), smask if smask else "0x%x" % (m & 0xffffffff)))
        asm("s_mov_b32 %s, 0x%x" % (s(sMASK + 1), m >> 32))
        if not preissued: poll_issue(soff, vd, vo, n)
        asm("s_mov_b32 %s, 0" % s(sCNT))
        asm.label(L)
        asm("s_waitcnt vmcnt(0)")
        asm("v_cmp_eq_u32 vcc, %s, %s" % (s(sNON), v(vd)))
        asm("v_cmp_eq_u32 %s, %s, %s" % (s(sPC, 2), s(sNON + 1), v(vd + 1)))
        asm("s_add_u32 %s, %s, 1" % (s(sCNT), s(sCNT)))
        asm("s_nop 3")
        asm("s_and_b64 %s, %s, vcc" % (s(sPC, 2), s(sPC, 2)))
        asm("s_and_b64 %s, %s, %s" % (s(sPC, 2), s(sPC, 2), s(sMASK, 2)))
        asm("s_cmp_eq_u64 %s, %s" % (s(sPC, 2), s(sMASK, 2)))
        asm("s_cbranch_scc1 %s" % D)
        asm("s_cmp_ge_u32 %s, 0x%x" % (s(sCNT), SPIN_MAX))
        asm("s_cbranch_scc1 %s" % D)
        asm("s_sleep %d" % opts.get("sleep", 3))
        poll_issue(soff, vd, vo, n)
        asm("s_branch %s" % L)
        asm.label(D)
    def ppoll(soff, n, regs, vo, smask=None):
        k = len(regs)
        L, D = lab("pp"), lab("ppd")
        m = (1 << n) - 1
        asm("s_mov_b32 %s, %s" % (s(sMASK), smask if smask else "0x%x" % (m & 0xffffffff)))
        asm("s_mov_b32 %s, 0x%x" % (s(sMASK + 1), m >> 32))
        for i, r in enumerate(regs):
            poll_issue(soff, r, vo, n)
            if i + 1 < k: asm("s_sleep %d" % opts.get("pstag", 6))
        asm("s_mov_b32 %s, 0" % s(sCNT))
        asm.label(L)
        for i, r in enumerate(regs):
            asm("s_waitcnt vmcnt(%d)" % (k - 1))
            asm("v_cmp_eq_u32 vcc, %s, %s" % (s(sNON), v(r)))
            asm("v_cmp_eq_u32 %s, %s, %s" % (s(sPC, 2), s(sNON + 1), v(r + 1)))
            asm("s_add_u32 %s, %s, 1" % (s(sCNT), s(sCNT)))
            asm("s_nop 3")
            asm("s_and_b64 %s, %s, vcc" % (s(sPC, 2), s(sPC, 2)))
            asm("s_and_b64 %s, %s, %s" % (s(sPC, 2), s(sPC, 2), s(sMASK, 2)))
            asm("s_cmp_eq_u64 %s, %s" % (s(sPC, 2), s(sMASK, 2)))
            asm("s_cbranch_scc1 %s" % D)
            poll_issue(soff, r, vo, n)
        asm("s_cmp_lt_u32 %s, 0x%x" % (s(sCNT), SPIN_MAX * 3))
        asm("s_cbranch_scc1 %s" % L)
        asm.label(D)
    def flag_store(soff, vd, vo, replicas=1):
        if replicas > 1:
            lane(vo)
            asm("v_lshlrev_b32 %s, 11, %s" % (v(vo), v(vo)))
        else:
            asm("v_mov_b32 %s, 0" % v(vo))
        asm("v_mov_b32 %s, %s" % (v(vd), s(sNON)))
        asm("v_mov_b32 %s, %s" % (v(vd + 1), s(sNON + 1)))
        asm("s_mov_b64 exec, %d" % ((1 << replicas) - 1 if replicas <= 6 else -1) if replicas <= 6 else "s_mov_b32 exec_lo, 0x%x\n    s_mov_b32 exec_hi, 0" % ((1 << replicas) - 1))
        asm("buffer_store_dwordx2 %s, %s, %s, %s offen sc1" % (v(vd, 2), v(vo), s(SWS, 4), soff))
        asm("s_mov_b64 exec, -1")
    kernel_header(asm, N)
    asm("s_cmp_ge_u32 s2, 256")
    asm("s_cbranch_scc1 %s_end" % N)
    if stamp:
        for i in range(26): asm("s_mov_b32 %s, 0" % s(STB + i))
    st(0)
    asm("s_load_dwordx4 s[4:7], s[0:1], 56")
    asm("s_load_dwordx4 s[36:39], s[0:1], 0")
    asm("s_load_dwordx4 s[40:43], s[0:1], 24")
    asm("v_lshrrev_b32 v1, 6, v0")
    asm("s_nop 0")
    asm("v_readfirstlane_b32 %s, v1" % s(sW))
    CPF = opts.get("cpf", 0)
    if CPF:
        asm("s_lshr_b32 %s, s2, 3" % s(sT0))
        asm("s_nop 1")
        asm("s_cmp_lg_u32 %s, %d" % (s(sW), CPF))
        asm("s_cbranch_scc1 %s_nocpf" % N)
        asm("s_getpc_b64 s[24:25]")
        asm.label("%s_cpfpc" % N)
        asm("s_sub_u32 s24, s24, (%s_cpfpc - %s)" % (N, N))
        asm("s_subb_u32 s25, s25, 0")
        asm("s_and_b32 s25, s25, 0xffff")
        asm("s_mov_b32 s26, (%s_end - %s)" % (N, N))
        asm("s_mov_b32 s27, 0x20000")
        lane(5)
        asm("s_and_b32 %s, %s, 3" % (s(sT0), s(sT0)))
        asm("s_lshl_b32 %s, %s, 6" % (s(sT0), s(sT0)))
        asm("v_add_u32 v5, %s, v5" % s(sT0))
        asm("v_lshlrev_b32 v5, 7, v5")
        asm("buffer_load_dword v223, v5, s[24:27], 0 offen")
        asm.label("%s_nocpf" % N)
    sBR, sRB, sCB, sPART, sCBP, sW4, sWM, sWN = 44, 45, 46, 47, 48, 49, 50, 51
    asm("s_and_b32 %s, s2, 7" % s(sP8))
    asm("s_lshr_b32 %s, s2, 3" % s(sSLOT))
    asm("s_getreg_b32 %s, hwreg(HW_REG_XCC_ID, 0, 4)" % s(sXCC))
    asm("s_and_b32 %s, %s, 7" % (s(sXCC), s(sXCC)))
    if not D1:
        asm("s_cmp_ge_u32 %s, 15" % s(sSLOT))
        asm("s_cselect_b32 %s, 1, 0" % s(sBR))
        asm("s_cselect_b32 %s, 15, 0" % s(sT0))
        asm("s_sub_u32 %s, %s, %s" % (s(sCB), s(sSLOT), s(sT0)))
        asm("s_mov_b32 %s, %s" % (s(sRB), s(sP8)))
    else:
        asm("s_lshr_b32 %s, %s, 2" % (s(sBR), s(sP8)))
        asm("s_and_b32 %s, %s, 3" % (s(sT0), s(sP8)))
        asm("s_mul_i32 %s, %s, 30" % (s(sT0), s(sT0)))
        asm("s_add_u32 %s, %s, %s" % (s(sT0), s(sT0), s(sSLOT)))
        asm("s_cmp_ge_u32 %s, 60" % s(sT0))
        asm("s_cselect_b32 %s, 4, 0" % s(sT1))
        asm("s_cselect_b32 %s, 60, 0" % s(sT2))
        asm("s_sub_u32 %s, %s, %s" % (s(sT0), s(sT0), s(sT2)))
        asm("s_lshr_b32 %s, %s, 2" % (s(sCB), s(sT0)))
        asm("s_and_b32 %s, %s, 3" % (s(sT0), s(sT0)))
        asm("s_add_u32 %s, %s, %s" % (s(sRB), s(sT1), s(sT0)))
    asm("s_cmp_ge_u32 %s, 5" % s(sCB))
    asm("s_cselect_b32 %s, 1, 0" % s(sPART))
    asm("s_cmp_ge_u32 %s, 10" % s(sCB))
    asm("s_cselect_b32 %s, 2, %s" % (s(sPART), s(sPART)))
    asm("s_mul_i32 %s, %s, 5" % (s(sT0), s(sPART)))
    asm("s_sub_u32 %s, %s, %s" % (s(sCBP), s(sCB), s(sT0)))
    asm("s_and_b32 %s, %s, 3" % (s(sW4), s(sW)))
    asm("s_lshr_b32 %s, %s, 1" % (s(sWM), s(sW4)))
    asm("s_and_b32 %s, %s, 1" % (s(sWN), s(sW4)))
    asm("s_waitcnt lgkmcnt(0)")
    if opts.get("wsoff"):
        asm("s_add_u32 s6, s6, 0x%x" % (opts["wsoff"] << 20))
        asm("s_addc_u32 s7, s7, 0")
    srd(asm, SWS, "s6", "s7", WS_REC)
    srd(asm, SDBG, "s4", "s5", 256)
    asm("s_cmp_ge_u32 %s, 4" % s(sW))
    asm("s_cbranch_scc1 %s_p1h" % N)
    ACC = 0; FX = [128, 144]; FW = [160, 168]
    vXA, vWA = 176, 180
    vL, vT, vU, vV = 194, 195, 196, 197
    vSO = 198; TMP = 200; TE = 216; vN = 220
    sSTG, sDELTA, sRBUF, sNEG = 52, 53, 54, 55
    sTN, sGG, sSO = 56, 57, 58
    sC0, sC1 = 60, 62
    asm("s_or_b32 %s, s2, %s" % (s(sT0), s(sW)))
    asm("s_cmp_lg_u32 %s, 0" % s(sT0))
    asm("s_cbranch_scc1 %s_nonon" % N)
    asm("s_memrealtime %s" % s(sNON, 2))
    asm("s_waitcnt lgkmcnt(0)")
    asm("s_or_b32 %s, %s, 1" % (s(sNON), s(sNON)))
    asm("v_mov_b32 v2, %s" % s(sNON))
    asm("v_mov_b32 v3, %s" % s(sNON + 1))
    asm("v_mov_b32 v4, 0")
    asm("s_mov_b64 exec, 1")
    asm("buffer_store_dwordx2 v[2:3], v4, %s, 0 offen sc1" % s(SDBG, 4))
    asm("s_mov_b64 exec, -1")
    asm.label("%s_nonon" % N)
    asm("s_cmp_lg_u32 %s, 0" % s(sW))
    asm("s_cbranch_scc1 %s_noinit" % N)
    asm("s_lshl_b32 %s, %s, 3" % (s(sT0), s(sXCC)))
    asm("s_lshl_b64 s[4:5], 1, %s" % s(sT0))
    asm("s_lshl_b32 %s, %s, 3" % (s(sT0), s(sP8)))
    asm("s_add_u32 %s, %s, 64" % (s(sT0), s(sT0)))
    asm("v_mov_b32 v2, s4")
    asm("v_mov_b32 v3, s5")
    asm("v_mov_b32 v4, %s" % s(sT0))
    if not D1:
        asm("s_mov_b64 exec, 1")
        asm("buffer_atomic_add_x2 v[2:3], v4, %s, 0 offen" % s(SDBG, 4))
        asm("s_mov_b64 exec, -1")
    lane(5)
    asm("v_lshlrev_b32 v5, 2, v5")
    asm("v_add_u32 v5, 0x%x, v5" % L_SYNC)
    asm("v_mov_b32 v6, 0")
    asm("s_mov_b32 exec_lo, 0xffff")
    asm("s_mov_b32 exec_hi, 0")
    asm("ds_write_b32 v5, v6")
    asm("s_mov_b64 exec, -1")
    asm("s_waitcnt lgkmcnt(0)")
    if opts.get("ft", 0):
        lane(5)
        asm("s_lshl_b32 %s, %s, 2" % (s(sT0), s(sP8)))
        asm("s_and_b32 %s, %s, 3" % (s(sT1), s(sSLOT)))
        asm("s_add_u32 %s, %s, %s" % (s(sT0), s(sT0), s(sT1)))
        asm("s_lshl_b32 %s, %s, 7" % (s(sT0), s(sT0)))
        asm("s_add_u32 %s, %s, %d" % (s(sT0), s(sT0), F2))
        asm("s_lshr_b32 %s, %s, 2" % (s(sT1), s(sP8)))
        asm("s_lshl_b32 %s, %s, 3" % (s(sT1), s(sT1)))
        asm("s_and_b32 %s, %s, 3" % (s(sT2), s(sP8)))
        asm("s_lshl_b32 %s, %s, 1" % (s(sT2), s(sT2)))
        asm("s_lshr_b32 %s, %s, 4" % (s(sT3), s(sSLOT)))
        asm("s_add_u32 %s, %s, %s" % (s(sT2), s(sT2), s(sT3)))
        asm("s_add_u32 %s, %s, %s" % (s(sT1), s(sT1), s(sT2)))
        asm("s_lshl_b32 %s, %s, 8" % (s(sT1), s(sT1)))
        asm("s_add_u32 %s, %s, %d" % (s(sT1), s(sT1), F3 - 128))
        asm("v_lshlrev_b32 v6, 3, v5")
        asm("v_add_u32 v7, %s, v6" % s(sT0))
        asm("v_add_u32 v6, %s, v6" % s(sT1))
        asm("v_cmp_gt_u32 vcc, 16, v5")
        asm("s_nop 1")
        asm("v_cndmask_b32 v6, v6, v7, vcc")
        asm("s_mov_b32 exec_lo, -1")
        asm("s_mov_b32 exec_hi, 0xffff")
        asm("buffer_load_dword v223, v6, %s, 0 offen sc1" % s(SWS, 4))
        asm("s_mov_b64 exec, -1")
    asm.label("%s_noinit" % N)
    asm("s_cmp_ge_u32 %s, 30" % s(sSLOT))
    asm("s_cbranch_scc1 %s_p2c" % N)
    lane(vL)
    asm.c("X frag read addr")
    asm("v_and_b32 %s, 31, %s" % (v(vT), v(vL)))
    asm("s_lshl_b32 %s, %s, 7" % (s(sT0), s(sWM)))
    asm("v_add_u32 %s, %s, %s" % (v(vU), s(sT0), v(vT)))
    asm("v_lshlrev_b32 %s, 7, %s" % (v(vU), v(vU)))
    asm("v_bfe_u32 %s, %s, 1, 3" % (v(vT), v(vT)))
    asm("v_lshrrev_b32 %s, 5, %s" % (v(vV), v(vL)))
    for ks in range(4):
        asm("v_add_u32 %s, %d, %s" % (v(TMP), 2 * ks, v(vV)))
        asm("v_xor_b32 %s, %s, %s" % (v(TMP), v(TMP), v(vT)))
        asm("v_lshl_add_u32 %s, %s, 4, %s" % (v(vXA + ks), v(TMP), v(vU)))
    asm.c("W frag read addr")
    asm("v_bfe_u32 %s, %s, 2, 2" % (v(vT), v(vL)))
    asm("v_lshrrev_b32 %s, 5, %s" % (v(vU), v(vL)))
    asm("v_lshl_add_u32 %s, %s, 3, %s" % (v(vU), v(vU), v(vT)))
    asm("v_lshlrev_b32 %s, 8, %s" % (v(vU), v(vU)))
    asm("v_add_u32 %s, 32768, %s" % (v(vU), v(vU)))
    asm("v_and_b32 %s, 1, %s" % (v(vV), v(vL)))
    asm("v_lshl_add_u32 %s, %s, 3, %s" % (v(vU), v(vV), v(vU)))
    asm("v_bfe_u32 %s, %s, 4, 1" % (v(vV), v(vL)))
    asm("v_lshlrev_b32 %s, 1, %s" % (v(vV), v(vV)))
    asm("v_bfe_u32 %s, %s, 1, 1" % (v(TMP), v(vL)))
    asm("v_add_u32 %s, %s, %s" % (v(vV), v(vV), v(TMP)))
    asm("s_lshl_b32 %s, %s, 3" % (s(sT0), s(sWN)))
    asm("v_add_u32 %s, %s, %s" % (v(vV), s(sT0), v(vV)))
    asm("v_lshlrev_b32 %s, 2, %s" % (v(vT), v(vT)))
    for tn in range(2):
        asm("v_add_u32 %s, %d, %s" % (v(TMP), 4 * tn, v(vV)))
        asm("v_xor_b32 %s, %s, %s" % (v(TMP), v(TMP), v(vT)))
        asm("v_lshl_add_u32 %s, %s, 4, %s" % (v(vWA + tn), v(TMP), v(vU)))
    for i in range(128):
        asm("v_mov_b32 %s, 0" % v(ACC + i))
    asm("s_mul_i32 %s, %s, 3" % (s(sT0), s(sBR)))
    asm("s_add_u32 %s, %s, %s" % (s(sT0), s(sT0), s(sPART)))
    asm("s_mul_i32 %s, %s, %d" % (s(sT0), s(sT0), REG))
    asm("s_add_u32 s6, s6, %s" % s(sT0))
    asm("s_addc_u32 s7, s7, 0")
    SO = SA_
    srd(asm, SO, "s6", "s7", REG)
    def rdX(st_, tm, ks):
        asm("ds_read_b128 %s, %s offset:%d" % (v(FX[st_] + 4 * tm, 4), v(vXA + ks), tm * 4096))
    def rdW(st_, tn, a_, ks):
        asm("ds_read_b64_tr_b16 %s, %s offset:%d" % (v(FW[st_] + 4 * tn + 2 * a_, 2), v(vWA + tn), ks * 4096 + a_ * 1024))
    def reads(st_, ks):
        return [lambda: rdW(st_, 0, 0, ks), lambda: rdW(st_, 0, 1, ks), lambda: rdX(st_, 0, ks), lambda: rdX(st_, 1, ks),
                lambda: rdW(st_, 1, 0, ks), lambda: rdW(st_, 1, 1, ks), lambda: rdX(st_, 2, ks), lambda: rdX(st_, 3, ks)]
    MORD = [(0, 0), (1, 0), (0, 1), (1, 1), (2, 0), (2, 1), (3, 0), (3, 1)]
    def mfma(orient, st_, tm, tn):
        acc = v(ACC + (tm * 2 + tn) * 16, 16)
        x = v(FX[st_] + 4 * tm, 4); w = v(FW[st_] + 4 * tn, 4)
        if orient == "T": asm("v_mfma_f32_32x32x16_bf16 %s, %s, %s, %s" % (acc, w, x, acc))
        else: asm("v_mfma_f32_32x32x16_bf16 %s, %s, %s, %s" % (acc, x, w, acc))
    PF = opts.get("pf", 0)
    if PF:
        nst_ = 10 - PF
        per = (1024 * nst_ + 119) // 120
        assert per <= 64
        asm("s_lshl_b32 %s, %s, 2" % (s(sT0), s(sSLOT)))
        asm("s_add_u32 %s, %s, %s" % (s(sT0), s(sT0), s(sW4)))
        asm("s_mul_i32 %s, %s, %d" % (s(sT0), s(sT0), per))
        asm("v_add_u32 %s, %s, %s" % (v(vT), s(sT0), v(vL)))
        asm("v_lshrrev_b32 %s, 10, %s" % (v(vU), v(vT)))
        asm("v_and_b32 %s, 1023, %s" % (v(vV), v(vT)))
        asm("s_lshr_b32 %s, %s, 1" % (s(sT1), s(sP8)))
        asm("s_and_b32 %s, %s, 1" % (s(sT1), s(sT1)))
        asm("s_lshl_b32 %s, %s, 10" % (s(sT1), s(sT1)))
        asm("v_add_u32 %s, %s, %s" % (v(vV), s(sT1), v(vV)))
        asm("v_mul_u32_u24 %s, 1280, %s" % (v(vV), v(vV)))
        asm("v_lshl_add_u32 %s, %s, 7, %s" % (v(vV), v(vU), v(vV)))
        asm("v_add_u32 %s, %d, %s" % (v(vV), PF * 128, v(vV)))
        asm("v_lshrrev_b32 %s, 4, %s" % (v(vU), v(vT)))
        asm("v_add_u32 %s, %d, %s" % (v(vU), 64 * PF, v(vU)))
        asm("v_mul_u32_u24 %s, 3840, %s" % (v(vU), v(vU)))
        asm("v_and_b32 %s, 15, %s" % (v(TMP), v(vT)))
        asm("v_lshl_add_u32 %s, %s, 7, %s" % (v(vU), v(TMP), v(vU)))
        asm("s_and_b32 %s, %s, 1" % (s(sT1), s(sP8)))
        asm("s_mul_i32 %s, %s, %d" % (s(sT1), s(sT1), 7 * 256))
        asm("v_add_u32 %s, %s, %s" % (v(vU), s(sT1), v(vU)))
        asm("v_mov_b32 %s, 0x%x" % (v(TMP), OOB))
        asm("v_cmp_gt_u32 vcc, %d, %s" % (1024 * nst_, v(vT)))
        asm("v_cmp_gt_u32 %s, %d, %s" % (s(sPC, 2), per, v(vL)))
        asm("s_nop 1")
        asm("s_and_b64 vcc, vcc, %s" % s(sPC, 2))
        asm("s_nop 1")
        asm("v_cndmask_b32 %s, %s, %s, vcc" % (v(vV), v(TMP), v(vV)))
        asm("v_cndmask_b32 %s, %s, %s, vcc" % (v(vU), v(TMP), v(vU)))
        asm("s_cmp_eq_u32 %s, 0" % s(sBR))
        asm("s_cselect_b32 s4, s36, s40")
        asm("s_cselect_b32 s5, s37, s41")
        srd(asm, SB_, "s4", "s5", 2048 * 1280)
        asm("buffer_load_dword v223, %s, %s, 0 offen" % (v(vV), s(SB_, 4)))
        asm("s_cmp_eq_u32 %s, 0" % s(sBR))
        asm("s_cselect_b32 s4, s38, s42")
        asm("s_cselect_b32 s5, s39, s43")
        srd(asm, SB_, "s4", "s5", 640 * 3840)
        asm("buffer_load_dword v223, %s, %s, 0 offen" % (v(vU), s(SB_, 4)))
    asm("s_lshl_b32 %s, %s, 3" % (s(sT0), s(sRB)))
    asm("s_lshl_b32 %s, %s, 2" % (s(sT1), s(sWM)))
    asm("s_add_u32 %s, %s, %s" % (s(sT3), s(sT0), s(sT1)))
    sVAR = 59
    asm("s_mov_b32 %s, %s" % (s(sVAR), s(sPART)))
    asm("s_cmp_eq_u32 %s, 0" % s(sBR))
    asm("s_cbranch_scc1 %s_varok" % N)
    asm("s_cmp_eq_u32 %s, 2" % s(sPART))
    asm("s_cselect_b32 %s, 2, 3" % s(sVAR))
    asm.label("%s_varok" % N)
    asm("s_cmp_eq_u32 %s, 0" % s(sVAR))
    asm("s_cbranch_scc1 %s_adrT" % N)
    asm("s_cmp_eq_u32 %s, 3" % s(sVAR))
    asm("s_cbranch_scc1 %s_adrT" % N)
    asm("s_mul_i32 %s, %s, 40960" % (s(sT0), s(sT3)))
    asm("s_lshl_b32 %s, %s, 11" % (s(sT1), s(sCBP)))
    asm("s_add_u32 %s, %s, %s" % (s(sT0), s(sT0), s(sT1)))
    asm("s_lshl_b32 %s, %s, 10" % (s(sT1), s(sWN)))
    asm("s_add_u32 %s, %s, %s" % (s(sT0), s(sT0), s(sT1)))
    asm("v_lshrrev_b32 %s, 5, %s" % (v(vT), v(vL)))
    asm("v_mul_u32_u24 %s, 10240, %s" % (v(vT), v(vT)))
    asm("v_and_b32 %s, 31, %s" % (v(vU), v(vL)))
    asm("v_lshl_add_u32 %s, %s, 4, %s" % (v(vSO), v(vU), v(vT)))
    asm("v_add_u32 %s, %s, %s" % (v(vSO), s(sT0), v(vSO)))
    asm("s_movk_i32 %s, 512" % s(sTN))
    asm("s_movk_i32 %s, 20480" % s(sGG))
    asm("s_branch %s_adrok" % N)
    asm.label("%s_adrT" % N)
    asm("s_mul_i32 %s, %s, 40" % (s(sT0), s(sT3)))
    asm("s_lshl_b32 %s, %s, 3" % (s(sT1), s(sCBP)))
    asm("s_add_u32 %s, %s, %s" % (s(sT0), s(sT0), s(sT1)))
    asm("s_lshl_b32 %s, %s, 2" % (s(sT1), s(sWN)))
    asm("s_add_u32 %s, %s, %s" % (s(sT0), s(sT0), s(sT1)))
    asm("s_lshl_b32 %s, %s, 10" % (s(sT0), s(sT0)))
    asm("v_lshlrev_b32 %s, 4, %s" % (v(vSO), v(vL)))
    asm("v_add_u32 %s, %s, %s" % (v(vSO), s(sT0), v(vSO)))
    asm("s_movk_i32 %s, 2048" % s(sTN))
    asm("s_movk_i32 %s, 1024" % s(sGG))
    asm.label("%s_adrok" % N)
    asm("s_cmp_lt_u32 %s, 2" % s(sVAR))
    asm("s_cselect_b32 %s, %s, 1.0" % (s(sC0), fhex(LOG2E)))
    asm("s_cmp_eq_u32 %s, 3" % s(sVAR))
    asm("s_cbranch_scc0 %s_c0ok" % N)
    asm("s_cmp_eq_u32 %s, 0" % s(sPART))
    asm("s_cselect_b32 %s, %s, 1.0" % (s(sC0), fhex(QSCALE)))
    asm.label("%s_c0ok" % N)
    asm("s_mov_b32 %s, %s" % (s(sC0 + 1), s(sC0)))
    asm("s_mov_b32 %s, %s" % (s(sC1), fhex(1e-6)))
    asm("s_mov_b32 %s, 0" % s(sSTG))
    asm("s_mov_b32 %s, 0" % s(sRBUF))
    asm("s_mov_b32 %s, 0x%x" % (s(sNEG), (-2 * 49152) & 0xffffffff))
    asm("s_barrier")
    st(1)
    for f in reads(0, 0): f()
    asm("s_cmp_eq_u32 %s, 0" % s(sVAR))
    asm("s_cbranch_scc1 %s_loopT" % N)
    asm("s_cmp_eq_u32 %s, 3" % s(sVAR))
    asm("s_cbranch_scc0 %s_loopF" % N)
    def loop(orient):
        L = "%s_loop%s" % (N, orient)
        asm(".p2align 4")
        asm.label(L)
        for ks in range(4):
            st_ = ks & 1; nst_ = st_ ^ 1
            if ks == 3:
                asm("s_cbranch_scc1 %s_final%s" % (N, orient))
            asm("s_waitcnt lgkmcnt(0)")
            if ks < 3:
                rs = reads(nst_, ks + 1)
                for m in range(8):
                    mfma(orient, st_, *MORD[m])
                    if m < 4:
                        rs[2 * m](); rs[2 * m + 1]()
                    if ks == 2 and m == 4:
                        asm("s_add_u32 %s, %s, 1" % (s(sRBUF), s(sRBUF)))
                        asm("s_cmp_eq_u32 %s, 3" % s(sRBUF))
                        asm("s_cselect_b32 %s, 0, %s" % (s(sRBUF), s(sRBUF)))
                        asm("s_cselect_b32 %s, %s, 49152" % (s(sDELTA), s(sNEG)))
                    if ks == 2 and m == 5:
                        for k in range(3): asm("v_add_u32 %s, %s, %s" % (v(vXA + k), s(sDELTA), v(vXA + k)))
                    if ks == 2 and m == 6:
                        asm("v_add_u32 %s, %s, %s" % (v(vXA + 3), s(sDELTA), v(vXA + 3)))
                        for k in range(2): asm("v_add_u32 %s, %s, %s" % (v(vWA + k), s(sDELTA), v(vWA + k)))
                        asm("s_add_u32 %s, %s, 1" % (s(sSTG), s(sSTG)))
                        asm("s_cmp_eq_u32 %s, 9" % s(sSTG))
            else:
                mfma(orient, st_, *MORD[0])
                mfma(orient, st_, *MORD[1])
                asm("s_barrier")
                rs = reads(nst_, 0)
                mfma(orient, st_, *MORD[2])
                rs[0](); rs[1](); rs[2]()
                mfma(orient, st_, *MORD[3])
                rs[3](); rs[4](); rs[5]()
                mfma(orient, st_, *MORD[4])
                rs[6](); rs[7]()
                mfma(orient, st_, *MORD[5])
                mfma(orient, st_, *MORD[6])
                mfma(orient, st_, *MORD[7])
        asm("s_branch %s" % L)
    loop("T")
    loop("F")
    WALL = 224
    XS = [FX[0], FX[1]]
    def epi_lines(kind, q):
        tm, tn = q >> 1, q & 1
        b = ACC + q * 16
        tb_ = TMP + 8 * (q & 1)
        L_ = []
        if kind == "phi":
            for qq in range(4):
                r0 = b + 4 * qq
                L_.append("v_pk_mul_f32 %s, %s, %s" % (v(TE, 2), v(r0, 2), s(sC0, 2)))
                L_.append("v_pk_mul_f32 %s, %s, %s" % (v(TE + 2, 2), v(r0 + 2, 2), s(sC0, 2)))
                for k in range(4): L_.append("v_exp_f32_e64 %s, %s clamp" % (v(TE + k), v(TE + k)))
                for k in range(4): L_.append("v_max_f32 %s, %s, %s" % (v(r0 + k), s(sC1), v(r0 + k)))
                L_.append("v_pk_add_f32 %s, %s, %s" % (v(r0, 2), v(r0, 2), v(TE, 2)))
                L_.append("v_pk_add_f32 %s, %s, %s" % (v(r0 + 2, 2), v(r0 + 2, 2), v(TE + 2, 2)))
                L_.append("v_cvt_pk_bf16_f32 %s, %s, %s" % (v(tb_ + 2 * qq), v(r0), v(r0 + 1)))
                L_.append("v_cvt_pk_bf16_f32 %s, %s, %s" % (v(tb_ + 2 * qq + 1), v(r0 + 2), v(r0 + 3)))
        else:
            if kind == "scale":
                for p_ in range(8): L_.append("v_pk_mul_f32 %s, %s, %s" % (v(b + 2 * p_, 2), v(b + 2 * p_, 2), s(sC0, 2)))
            for p_ in range(8): L_.append("v_cvt_pk_bf16_f32 %s, %s, %s" % (v(tb_ + p_), v(b + 2 * p_), v(b + 2 * p_ + 1)))
        L_.append("s_mul_i32 %s, %s, %d" % (s(sSO), s(sTN), tn))
        if tm: L_.append("s_add_u32 %s, %s, %d" % (s(sSO), s(sSO), tm * 40960))
        L_.append("buffer_store_dwordx4 %s, %s, %s, %s offen%s" % (v(tb_, 4), v(vSO), s(SO, 4), s(sSO), SC))
        L_.append("s_add_u32 %s, %s, %s" % (s(sSO), s(sSO), s(sGG)))
        L_.append("buffer_store_dwordx4 %s, %s, %s, %s offen%s" % (v(tb_ + 4, 4), v(vSO), s(SO, 4), s(sSO), SC))
        return L_
    def final(orient, kind, label):
        asm.label(label)
        sync_issue(vN, vN + 2)
        asm("s_waitcnt lgkmcnt(0)")
        mfma(orient, 1, *MORD[0])
        mfma(orient, 1, *MORD[1])
        asm("s_barrier")
        rd = []
        for ks in range(4):
            rd.append("ds_read_b128 %s, %s" % (v(XS[0] + 4 * ks, 4), v(vXA + ks)))
            for a_ in range(2):
                rd.append("ds_read_b64_tr_b16 %s, %s offset:%d" % (v(WALL + ks * 4 + 2 * a_, 2), v(vWA), ks * 4096 + a_ * 1024))
        for ks in range(4):
            for a_ in range(2):
                rd.append("ds_read_b64_tr_b16 %s, %s offset:%d" % (v(WALL + (4 + ks) * 4 + 2 * a_, 2), v(vWA + 1), ks * 4096 + a_ * 1024))
        per = [4, 4, 3, 3, 3, 3]
        pos = 0
        for m in range(2, 8):
            mfma(orient, 1, *MORD[m])
            for k in range(per[m - 2]):
                asm(rd[pos]); pos += 1
        assert pos == len(rd) == 20
        for q in range(8):
            tm, tn = q >> 1, q & 1
            xs = XS[tm & 1]
            if q == 0:
                asm("s_waitcnt lgkmcnt(8)")
            elif q == 1:
                asm("s_waitcnt lgkmcnt(4)")
            elif tn == 0:
                asm("s_waitcnt lgkmcnt(0)")
                if tm == 3: asm("s_barrier")
            ep = epi_lines(kind, q - 2) if q >= 2 else []
            if q == 2: ep = ["s_nop 7"] + ep
            chunk = (len(ep) + 3) // 4
            acc = v(ACC + q * 16, 16)
            for ks in range(4):
                x = v(xs + 4 * ks, 4); w = v(WALL + (tn * 4 + ks) * 4, 4)
                if orient == "T": asm("v_mfma_f32_32x32x16_bf16 %s, %s, %s, %s" % (acc, w, x, acc))
                else: asm("v_mfma_f32_32x32x16_bf16 %s, %s, %s, %s" % (acc, x, w, acc))
                if tn == 0 and tm < 3:
                    asm("ds_read_b128 %s, %s offset:%d" % (v(XS[(tm + 1) & 1] + 4 * ks, 4), v(vXA + ks), (tm + 1) * 4096))
                for ln in ep[ks * chunk:(ks + 1) * chunk]: asm(ln)
        st(2)
        for ln in epi_lines(kind, 6): asm(ln)
        for ln in epi_lines(kind, 7): asm(ln)
        asm("s_branch %s_fin1" % N)
    asm.label("%s_finalT" % N)
    asm("s_cmp_eq_u32 %s, 0" % s(sVAR))
    asm("s_cbranch_scc0 %s_fin_ts" % N)
    final("T", "phi", "%s_fin_tp" % N)
    final("T", "scale", "%s_fin_ts" % N)
    asm.label("%s_finalF" % N)
    asm("s_cmp_eq_u32 %s, 1" % s(sVAR))
    asm("s_cbranch_scc0 %s_fin_fn" % N)
    final("F", "phi", "%s_fin_fp" % N)
    final("F", "plain", "%s_fin_fn" % N)
    asm.label("%s_fin1" % N)
    asm("v_mov_b32 %s, 0x%x" % (v(vT), W_ISS))
    asm("v_mov_b32 %s, 1" % v(vU))
    asm("s_mov_b64 exec, 1")
    asm("ds_add_u32 %s, %s" % (v(vT), v(vU)))
    asm("s_mov_b64 exec, -1")
    st(3)
    get_sync(vN, vN + 2, preissued=True)
    release()
    asm("s_lshl_b32 %s, %s, 3" % (s(sT1), s(sBR)))
    asm("s_add_u32 %s, %s, %s" % (s(sT1), s(sT1), s(sRB)))
    asm("s_lshl_b32 %s, %s, 4" % (s(sT1), s(sT1)))
    asm("s_add_u32 %s, %s, %s" % (s(sT1), s(sT1), s(sCB)))
    asm("s_lshl_b32 %s, %s, 3" % (s(sT1), s(sT1)))
    asm("s_add_u32 %s, %s, %d" % (s(sT1), s(sT1), F1))
    lds_arrive(W_CNT1, 4, vN + 2, vN, s(sT1), replicas=REPL)
    st(4)
    asm("s_branch %s_p2setup" % N)
    asm.label("%s_p2c" % N)
    asm("s_barrier")
    get_sync(220, 222)
    asm("s_branch %s_p2setup" % N)

    asm.label("%s_p1h" % N)
    hL, hT, hU, hV = 2, 3, 4, 5
    vDX, vDW, hTMP = 8, 16, 20
    sXOFF, sWOFF, sM0X, sM0W, sDBUF, sHS = 52, 53, 54, 55, 56, 57
    SX, SWD = SA_, SB_
    asm("s_cmp_lt_u32 %s, 30" % s(sSLOT))
    asm("s_cbranch_scc1 %s_p1h2" % N)
    asm("s_barrier")
    asm("s_branch %s_p2h" % N)
    asm.label("%s_p1h2" % N)
    lane(hL)
    asm("v_lshrrev_b32 %s, 3, %s" % (v(hT), v(hL)))
    asm("s_lshl_b32 %s, %s, 6" % (s(sT0), s(sW4)))
    asm("v_add_u32 %s, %s, %s" % (v(hT), s(sT0), v(hT)))
    asm("s_movk_i32 %s, 1280" % s(sT1))
    asm("v_mul_lo_u32 %s, %s, %s" % (v(hT), v(hT), s(sT1)))
    asm("v_lshrrev_b32 %s, 4, %s" % (v(hU), v(hL)))
    asm("v_and_b32 %s, 7, %s" % (v(hV), v(hL)))
    for par in range(2):
        if par == 1: asm("v_add_u32 %s, 4, %s" % (v(hU), v(hU)))
        asm("v_xor_b32 %s, %s, %s" % (v(hTMP + par), v(hV), v(hU)))
        asm("v_lshl_add_u32 %s, %s, 4, %s" % (v(hTMP + par), v(hTMP + par), v(hT)))
    for i in range(8):
        asm("v_add_u32 %s, %d, %s" % (v(vDX + i), i * 8 * 1280 - (i & 3) * 1024, v(hTMP + (i & 1))))
    asm("v_lshrrev_b32 %s, 4, %s" % (v(hU), v(hL)))
    asm("s_lshl_b32 %s, %s, 4" % (s(sT0), s(sW4)))
    asm("v_add_u32 %s, %s, %s" % (v(hT), s(sT0), v(hU)))
    asm("s_movk_i32 %s, 3840" % s(sT1))
    asm("v_mul_lo_u32 %s, %s, %s" % (v(hT), v(hT), s(sT1)))
    asm("v_lshlrev_b32 %s, 2, %s" % (v(hU), v(hU)))
    asm("v_and_b32 %s, 15, %s" % (v(hV), v(hL)))
    asm("v_xor_b32 %s, %s, %s" % (v(hV), v(hV), v(hU)))
    asm("v_lshl_add_u32 %s, %s, 4, %s" % (v(hT), v(hV), v(hT)))
    for i in range(4):
        asm("v_add_u32 %s, %d, %s" % (v(vDW + i), i * 4 * 3840 - i * 1024, v(hT)))
    asm("s_cmp_eq_u32 %s, 0" % s(sBR))
    asm("s_cselect_b32 s36, s36, s40")
    asm("s_cselect_b32 s37, s37, s41")
    asm("s_cselect_b32 s38, s38, s42")
    asm("s_cselect_b32 s39, s39, s43")
    asm("s_mul_i32 %s, %s, %d" % (s(sT0), s(sRB), 256 * 1280))
    asm("s_add_u32 s36, s36, %s" % s(sT0))
    asm("s_addc_u32 s37, s37, 0")
    asm("s_lshl_b32 %s, %s, 8" % (s(sT0), s(sCB)))
    asm("s_add_u32 s38, s38, %s" % s(sT0))
    asm("s_addc_u32 s39, s39, 0")
    asm("s_sub_u32 %s, %d, %s" % (s(sT1), 640 * 3840, s(sT0)))
    srd(asm, SX, "s36", "s37", 256 * 1280)
    srd(asm, SWD, "s38", "s39", s(sT1))
    def dma_stage():
        asm("s_lshl_b32 %s, %s, 13" % (s(sT0), s(sW4)))
        asm("s_add_u32 %s, %s, %s" % (s(sM0X), s(sDBUF), s(sT0)))
        asm("s_lshl_b32 %s, %s, 12" % (s(sT0), s(sW4)))
        asm("s_add_u32 %s, %s, %s" % (s(sT0), s(sT0), s(sDBUF)))
        asm("s_add_u32 %s, %s, 32768" % (s(sM0W), s(sT0)))
        for idx in range(8):
            if idx == 0:
                asm("s_mov_b32 m0, %s" % s(sM0X)); asm("s_nop 0")
            if idx == 4:
                asm("s_add_u32 m0, %s, 4096" % s(sM0X)); asm("s_nop 0")
            asm("buffer_load_dwordx4 %s, %s, %s offen offset:%d lds" % (v(vDX + idx), s(SX, 4), s(sXOFF), (idx & 3) * 1024))
        asm("s_mov_b32 m0, %s" % s(sM0W)); asm("s_nop 0")
        for j in range(4):
            asm("buffer_load_dwordx4 %s, %s, %s offen offset:%d lds" % (v(vDW + j), s(SWD, 4), s(sWOFF), j * 1024))
        asm("s_add_u32 %s, %s, 128" % (s(sXOFF), s(sXOFF)))
        asm("s_add_u32 %s, %s, %d" % (s(sWOFF), s(sWOFF), 64 * 3840))
        asm("s_add_u32 %s, %s, 49152" % (s(sDBUF), s(sDBUF)))
        asm("s_cmp_ge_u32 %s, %d" % (s(sDBUF), 3 * 49152))
        asm("s_cselect_b32 %s, 0, %s" % (s(sDBUF), s(sDBUF)))
    WARM = opts.get("warm", 3)
    if WARM:
        asm("s_load_dwordx2 s[4:5], s[0:1], 16")
        asm("s_load_dwordx2 s[6:7], s[0:1], 40")
        asm("s_lshl_b32 s58, %s, 2" % s(sSLOT))
        asm("s_add_u32 s58, s58, %s" % s(sW4))
        asm("s_mul_i32 s58, s58, %d" % (54 * 128))
        asm("v_lshlrev_b32 v6, 7, %s" % v(hL))
    asm("s_mov_b32 %s, 0" % s(sXOFF))
    asm("s_mov_b32 %s, 0" % s(sWOFF))
    asm("s_mov_b32 %s, 0" % s(sDBUF))
    asm("s_mov_b32 %s, 0" % s(sHS))
    pro = opts.get("pro", 2)
    Lp = "%s_hpro" % N
    asm.label(Lp)
    dma_stage()
    asm("s_add_u32 %s, %s, 1" % (s(sHS), s(sHS)))
    asm("s_cmp_eq_u32 %s, %d" % (s(sHS), pro))
    asm("s_cbranch_scc0 %s_hpro_n" % N)
    st(3)
    asm("s_waitcnt vmcnt(%d)" % (12 * (pro - 1)))
    st(1)
    asm("s_barrier")
    asm.label("%s_hpro_n" % N)
    asm("s_cmp_lt_u32 %s, 3" % s(sHS))
    asm("s_cbranch_scc1 %s" % Lp)
    asm("s_mov_b32 %s, 0" % s(sHS))
    Lh = "%s_hloop" % N
    asm.label(Lh)
    asm("s_cmp_lt_u32 %s, 8" % s(sHS))
    asm("s_cbranch_scc1 %s_hw12" % N)
    asm("s_waitcnt vmcnt(0)")
    asm("s_branch %s_hw" % N)
    asm.label("%s_hw12" % N)
    asm("s_waitcnt vmcnt(12)")
    asm.label("%s_hw" % N)
    asm("s_barrier")
    asm("s_cmp_lt_u32 %s, 7" % s(sHS))
    asm("s_cbranch_scc0 %s_hnodma" % N)
    dma_stage()
    if WARM:
        asm("s_cmp_eq_u32 %s, %d" % (s(sHS), WARM - 1))
        asm("s_cbranch_scc0 %s_hnodma" % N)
        asm("s_waitcnt lgkmcnt(0)")
        asm("s_cmp_lt_u32 %s, 4" % s(sP8))
        asm("s_cselect_b32 s4, s4, s6")
        asm("s_cselect_b32 s5, s5, s7")
        srd(asm, 60, "s4", "s5", 640 * 1280)
        asm("s_mov_b32 exec_lo, -1")
        asm("s_mov_b32 exec_hi, 0x3fffff")
        asm("buffer_load_dword v7, v6, s[60:63], s58 offen")
        asm("s_mov_b64 exec, -1")
        if opts.get("ft", 0):
            asm("s_cmp_eq_u32 %s, 0" % s(sW4))
            asm("s_cbranch_scc0 %s_hnodma" % N)
            asm("s_lshl_b32 %s, %s, 2" % (s(sT0), s(sP8)))
            asm("s_and_b32 %s, %s, 3" % (s(sT1), s(sSLOT)))
            asm("s_add_u32 %s, %s, %s" % (s(sT0), s(sT0), s(sT1)))
            asm("s_and_b32 %s, %s, %d" % (s(sT0), s(sT0) if opts.get("repl", 8) > 8 else s(sP8), opts.get("repl", 8) - 1))
            asm("s_lshl_b32 %s, %s, 11" % (s(sT0), s(sT0)))
            asm("s_add_u32 %s, %s, %d" % (s(sT0), s(sT0), F1))
            asm("s_lshr_b32 %s, %s, 2" % (s(sT1), s(sSLOT)))
            asm("s_lshl_b32 %s, %s, 7" % (s(sT1), s(sT1)))
            asm("s_add_u32 %s, %s, %s" % (s(sT0), s(sT0), s(sT1)))
            asm("v_lshlrev_b32 v23, 3, %s" % v(hL))
            asm("v_add_u32 v22, %s, v23" % s(sT0))
            asm("v_subrev_u32 v22, 256, v22")
            asm("s_add_u32 %s, %s, %d" % (s(sT0), s(sT0), 7 * 128))
            asm("v_add_u32 v23, %s, v23" % s(sT0))
            asm("v_cmp_gt_u32 vcc, 32, %s" % v(hL))
            asm("s_nop 1")
            asm("v_cndmask_b32 v23, v22, v23, vcc")
            asm("s_mov_b32 exec_lo, -1")
            asm("s_mov_b32 exec_hi, 0xffff")
            asm("buffer_load_dword v24, v23, %s, 0 offen sc1" % s(SWS, 4))
            asm("s_mov_b64 exec, -1")
    asm.label("%s_hnodma" % N)
    asm("s_add_u32 %s, %s, 1" % (s(sHS), s(sHS)))
    asm("s_cmp_lt_u32 %s, 10" % s(sHS))
    asm("s_cbranch_scc1 %s" % Lh)
    asm.label("%s_p2h" % N)
    st(2)
    sBR3, sRB3, sCB3 = 64, 65, 66
    def decode3():
        if not D1:
            asm("s_lshr_b32 %s, %s, 4" % (s(sBR3), s(sSLOT)))
            asm("s_bfe_u32 %s, %s, 0x10003" % (s(sRB3), s(sSLOT)))
            asm("s_lshl_b32 %s, %s, 1" % (s(sT0), s(sP8)))
            asm("s_add_u32 %s, %s, %s" % (s(sRB3), s(sRB3), s(sT0)))
            asm("s_and_b32 %s, %s, 7" % (s(sCB3), s(sSLOT)))
        else:
            asm("s_lshr_b32 %s, %s, 2" % (s(sBR3), s(sP8)))
            asm("s_and_b32 %s, %s, 3" % (s(sT0), s(sP8)))
            asm("s_lshl_b32 %s, %s, 2" % (s(sT0), s(sT0)))
            asm("s_lshr_b32 %s, %s, 3" % (s(sRB3), s(sSLOT)))
            asm("s_add_u32 %s, %s, %s" % (s(sRB3), s(sRB3), s(sT0)))
            asm("s_and_b32 %s, %s, 7" % (s(sCB3), s(sSLOT)))
    get_sync(220, 222)
    sHH, sRB2, sG0, sDQ, sTB, sNT = 44, 45, 46, 47, 48, 49
    sMSK, sM40 = 50, 52
    sP = 36
    sQM = 54
    sOffO, sOffQA, sBIG, sEPS = 62, 63, 67, 68
    S = 0; O = 144; Q = 160; F = [168, 176]; CM8 = 184; CM0 = 200; VF = [184, 192]
    vM, vNM = 216, 218
    vT = 220
    vLin, vKa, vVa, vL = 228, 229, 230, 231
    vOm, vOr, vFo, vU = 232, 233, 234, 235
    PB = 236
    PA = 168
    vL8 = 242
    AW = 4
    asm.label("%s_p2setup" % N)
    if not D1:
        asm("s_mov_b32 %s, %s" % (s(sHH), s(sSLOT)))
        asm("s_mov_b32 %s, %s" % (s(sRB2), s(sP8)))
    else:
        asm("s_lshl_b32 %s, %s, 2" % (s(sT0), s(sP8)))
        asm("s_and_b32 %s, %s, 3" % (s(sHH), s(sSLOT)))
        asm("s_add_u32 %s, %s, %s" % (s(sHH), s(sHH), s(sT0)))
        asm("s_lshr_b32 %s, %s, 2" % (s(sRB2), s(sSLOT)))
    asm("s_mul_i32 %s, %s, 5" % (s(sT0), s(sHH)))
    asm("s_lshr_b32 %s, %s, 2" % (s(sG0), s(sT0)))
    asm("s_and_b32 %s, %s, 3" % (s(sDQ), s(sT0)))
    asm("s_lshl_b32 %s, %s, 3" % (s(sTB), s(sRB2)))
    asm("s_add_u32 %s, %s, %s" % (s(sTB), s(sTB), s(sW)))
    asm("s_add_u32 %s, %s, 1" % (s(sNT), s(sTB)))
    asm("s_min_u32 %s, %s, 9" % (s(sNT), s(sNT)))
    asm("s_mov_b32 %s, 0x000fffff" % s(sMSK)); asm("s_mov_b32 %s, 0x000fffff" % s(sMSK + 1))
    asm("s_mov_b32 %s, -1" % s(sM40)); asm("s_mov_b32 %s, 0xff" % s(sM40 + 1))
    lane(vL)
    asm("v_lshlrev_b32 %s, 3, %s" % (v(vL8), v(vL)))
    asm("v_lshlrev_b32 %s, 4, %s" % (v(vLin), v(vL)))
    asm("s_mov_b32 %s, %s" % (s(sBIG), fhex(BIG)))
    asm("v_and_b32 %s, 31, %s" % (v(vU), v(vL)))
    asm("v_lshrrev_b32 %s, 5, %s" % (v(vT + 4), v(vL)))
    asm("v_lshlrev_b32 %s, 2, %s" % (v(vT + 4), v(vT + 4)))
    asm("v_sub_u32 %s, %s, %s" % (v(vU), v(vU), v(vT + 4)))
    asm("v_mov_b32 %s, %s" % (v(vT + 5), s(sBIG)))
    asm("v_mov_b32 %s, 0" % v(vT + 6))
    for r0 in range(0, 16, 4):
        for k in range(4):
            r = r0 + k
            asm("v_cmp_le_i32 %s, %d, %s" % (s(sP + 2 * k, 2), 8 * (r >> 2) + (r & 3), v(vU)))
        asm("s_nop 1")
        for k in range(4):
            r = r0 + k
            asm("v_cndmask_b32 %s, %s, %s, %s" % (v(CM8 + r), v(vT + 5), v(vT + 6), s(sP + 2 * k, 2)))
            asm("v_cndmask_b32 %s, %s, %s, %s" % (v(CM0 + r), v(vT + 6), v(vT + 5), s(sP + 2 * k, 2)))
    for gg in range(2):
        for p in range(2):
            k = gg * 2 + p
            for h in range(2):
                asm("s_sub_u32 %s, %d, %s" % (s(sT0), 4 * gg + 2 * p + h, s(sDQ)))
                asm("s_cmp_le_u32 %s, 4" % s(sT0))
                asm("s_cselect_b32 %s, -1, 0" % s(sQM + 2 * k + h))
    asm("s_lshl_b32 %s, %s, 11" % (s(sT0), s(sW)))
    asm("s_add_u32 %s, %s, %d" % (s(sT0), s(sT0), L_K))
    asm("v_add_u32 %s, %s, %s" % (v(vKa), s(sT0), v(vLin)))
    asm("v_lshrrev_b32 %s, 5, %s" % (v(vT), v(vL)))
    asm("v_mul_u32_u24 %s, 20, %s" % (v(vT), v(vT)))
    asm("v_and_b32 %s, 31, %s" % (v(vU), v(vL)))
    asm("v_add_u32 %s, %s, %s" % (v(vT), v(vT), v(vU)))
    asm("v_lshlrev_b32 %s, 4, %s" % (v(vT), v(vT)))
    asm("s_mul_i32 %s, %s, 1280" % (s(sT0), s(sW)))
    asm("s_add_u32 %s, %s, %d" % (s(sT0), s(sT0), L_V))
    asm("v_add_u32 %s, %s, %s" % (v(vVa), s(sT0), v(vT)))
    asm("s_lshl_b32 %s, %s, 5" % (s(sT0), s(sTB)))
    asm("s_add_u32 %s, %s, %s" % (s(sT0), s(sT0), s(sHH)))
    asm("s_mul_i32 %s, %s, 1280" % (s(sOffO), s(sT0)))
    asm("v_mov_b32 %s, %s" % (v(vOm), v(vLin)))
    asm("v_add_u32 %s, 1024, %s" % (v(vOr), v(vL8)))
    asm("v_mov_b32 %s, 0x%x" % (v(vT + 4), OOB))
    asm("v_cmp_gt_u32 vcc, 32, %s" % v(vL))
    asm("s_nop 1")
    asm("v_cndmask_b32 %s, %s, %s, vcc" % (v(vOr), v(vT + 4), v(vOr)))
    asm("s_mul_i32 %s, %s, 40" % (s(sT2), s(sTB)))
    asm("s_add_u32 %s, %s, %s" % (s(sT2), s(sT2), s(sG0)))
    asm("s_lshl_b32 %s, %s, 10" % (s(sT2), s(sT2)))
    asm("s_add_u32 %s, %s, %d" % (s(sOffQA), s(sT2), R_QA))
    def q_loads():
        asm("s_add_u32 %s, %s, %d" % (s(sT3), s(sOffQA), R_QB - R_QA))
        asm("buffer_load_dwordx4 %s, %s, %s, %s offen sc1" % (v(Q, 4), v(vLin), s(SWS, 4), s(sT3)))
        asm("buffer_load_dwordx4 %s, %s, %s, %s offen offset:1024 sc1" % (v(Q + 4, 4), v(vLin), s(SWS, 4), s(sT3)))
    FINE = opts.get("fine", 1)
    def tile_masks():
        asm("s_lshr_b32 %s, %s, 3" % (s(sT1), s(sG0)))
        asm("s_lshl_b32 %s, 1, %s" % (s(sT1), s(sT1)))
        asm("s_add_u32 %s, %s, 1" % (s(sT2), s(sG0)))
        asm("s_lshr_b32 %s, %s, 3" % (s(sT2), s(sT2)))
        asm("s_lshl_b32 %s, 1, %s" % (s(sT2), s(sT2)))
        asm("s_or_b32 %s, %s, %s" % (s(sT1), s(sT1), s(sT2)))
        asm("s_mul_i32 %s, %s, 20" % (s(sT3), s(sHH)))
        asm("s_lshr_b32 %s, %s, 7" % (s(sT2), s(sT3)))
        asm("s_lshl_b32 %s, 1, %s" % (s(sT2), s(sT2)))
        asm("s_add_u32 %s, %s, 19" % (s(sT3), s(sT3)))
        asm("s_lshr_b32 %s, %s, 7" % (s(sT3), s(sT3)))
        asm("s_lshl_b32 %s, 1, %s" % (s(sT3), s(sT3)))
        asm("s_or_b32 %s, %s, %s" % (s(sT2), s(sT2), s(sT3)))
    def own_tile_wait():
        D = lab("otw")
        asm("s_cmp_ge_u32 %s, 30" % s(sSLOT))
        asm("s_cbranch_scc1 %s" % D)
        lds_wait(W_CNT1, vT, vT + 1, atleast=4)
        asm.label(D)
    def lds_inc(word):
        asm("v_mov_b32 %s, 0x%x" % (v(vT), word))
        asm("v_mov_b32 %s, 1" % v(vT + 1))
        asm("s_mov_b64 exec, 1")
        asm("ds_add_u32 %s, %s" % (v(vT), v(vT + 1)))
        asm("s_mov_b64 exec, -1")
    if opts.get("pad", 0):
        asm("s_mov_b64 exec, 0")
        for k in range(8):
            asm("s_cmp_eq_u32 %s, %d" % (s(sW), (k + 4) & 7))
            asm("s_cbranch_scc1 %s_padseg%d" % (N, k))
        asm.label("%s_walkret" % N)
        asm("s_mov_b64 exec, -1")
    asm("s_cmp_eq_u32 %s, %d" % (s(sW), AW))
    asm("s_cbranch_scc1 %s_aearly" % N)
    asm("s_cmp_eq_u32 %s, 5" % s(sW))
    asm("s_cbranch_scc1 %s_w5" % N)
    asm("s_cmp_ge_u32 %s, 6" % s(sW))
    asm("s_cbranch_scc1 %s_w67" % N)
    sTK, sKO, sLK, sIk = 4, 5, 6, 7
    lds_wait(W_S1, vT, vT + 1)
    st(4) if opts.get("kvst") else None
    asm("s_lshl_b32 %s, %s, 2" % (s(sIk), s(sW)))
    asm("s_cmp_eq_u32 %s, 0" % s(sRB2))
    asm("s_cselect_b32 %s, 8, 0" % s(sT0))
    asm("s_cmp_lt_u32 %s, %s" % (s(sIk), s(sT0)))
    asm("s_cbranch_scc1 %s_nok" % N)
    asm("s_lshl_b32 %s, %s, 3" % (s(sTK), s(sRB2)))
    asm("s_add_u32 %s, %s, %s" % (s(sTK), s(sTK), s(sIk)))
    asm("s_sub_u32 %s, %s, 8" % (s(sTK), s(sTK)))
    asm("s_mul_i32 %s, %s, 40" % (s(sKO), s(sTK)))
    asm("s_add_u32 %s, %s, %s" % (s(sKO), s(sKO), s(sG0)))
    asm("s_lshl_b32 %s, %s, 10" % (s(sKO), s(sKO)))
    asm("s_add_u32 %s, %s, %d" % (s(sKO), s(sKO), R_KB))
    asm("s_lshl_b32 %s, %s, 11" % (s(sLK), s(sIk)))
    asm("s_add_u32 %s, %s, %d" % (s(sLK), s(sLK), L_K))
    for ii in range(4):
        asm("s_add_u32 m0, %s, %d" % (s(sLK), ii * 2048))
        asm("s_nop 0")
        asm("buffer_load_dwordx4 %s, %s, %s offen sc1 lds" % (v(vLin), s(SWS, 4), s(sKO)))
        asm("buffer_load_dwordx4 %s, %s, %s offen offset:1024 sc1 lds" % (v(vLin), s(SWS, 4), s(sKO)))
        if ii < 3: asm("s_add_u32 %s, %s, 40960" % (s(sKO), s(sKO)))
    asm.label("%s_nok" % N)
    q_loads()
    asm("s_waitcnt vmcnt(0)")
    lds_inc(W_K)
    asm("s_branch %s_kwait" % N)
    asm.label("%s_w67" % N)
    vDWO = 243
    sDA, sDM = 4, 5
    SWO = SA_
    decode3()
    asm("s_load_dwordx2 s[4:5], s[0:1], 16")
    asm("s_load_dwordx2 s[6:7], s[0:1], 40")
    asm("s_movk_i32 %s, 6554" % s(sT2))
    asm("s_movk_i32 %s, 1280" % s(sT3))
    for b in range(5):
        asm("v_add_u32 %s, %d, %s" % (v(vT), 64 * b, v(vL)))
        asm("v_mul_lo_u32 %s, %s, %s" % (v(vT + 1), v(vT), s(sT2)))
        asm("v_lshrrev_b32 %s, 16, %s" % (v(vT + 1), v(vT + 1)))
        asm("v_mul_u32_u24 %s, 10, %s" % (v(vT + 2), v(vT + 1)))
        asm("v_sub_u32 %s, %s, %s" % (v(vT), v(vT), v(vT + 2)))
        asm("v_lshlrev_b32 %s, 4, %s" % (v(vT), v(vT)))
        asm("v_mad_u32_u24 %s, %s, %s, %s" % (v(vDWO + b), v(vT + 1), s(sT3), v(vT)))
        if 0 < b < 4: asm("v_subrev_u32 %s, %d, %s" % (v(vDWO + b), b * 1024, v(vDWO + b)))
    asm("s_waitcnt lgkmcnt(0)")
    asm("s_cmp_eq_u32 %s, 0" % s(sBR3))
    asm("s_cselect_b32 s4, s4, s6")
    asm("s_cselect_b32 s5, s5, s7")
    asm("s_mul_i32 %s, %s, 160" % (s(sT0), s(sCB3)))
    asm("s_add_u32 s4, s4, %s" % s(sT0))
    asm("s_addc_u32 s5, s5, 0")
    asm("s_sub_u32 %s, %d, %s" % (s(sT1), 640 * 1280, s(sT0)))
    srd(asm, SWO, "s4", "s5", s(sT1))
    asm("s_and_b32 %s, %s, 1" % (s(sT0), s(sW)))
    asm("s_mul_i32 %s, %s, %d" % (s(sDA), s(sT0), 32 * 1280))
    asm("s_mul_i32 %s, %s, 5120" % (s(sDM), s(sT0)))
    def wo_group():
        asm("s_mov_b32 m0, %s" % s(sDM)); asm("s_nop 0")
        asm("buffer_load_dwordx4 %s, %s, %s offen lds" % (v(vDWO), s(SWO, 4), s(sDA)))
        for b in range(1, 4):
            asm("buffer_load_dwordx4 %s, %s, %s offen offset:%d lds" % (v(vDWO + b), s(SWO, 4), s(sDA), b * 1024))
        asm("s_add_u32 m0, %s, 4096" % s(sDM)); asm("s_nop 0")
        asm("buffer_load_dwordx4 %s, %s, %s offen lds" % (v(vDWO + 4), s(SWO, 4), s(sDA)))
        asm("s_add_u32 %s, %s, %d" % (s(sDA), s(sDA), 2 * 32 * 1280))
        asm("s_add_u32 %s, %s, %d" % (s(sDM), s(sDM), 2 * 5120))
    asm("s_cmp_ge_u32 %s, 30" % s(sSLOT))
    asm("s_cbranch_scc1 %s_wogo" % N)
    lds_wait(W_ISS, vT, vT + 1, atleast=4)
    asm.label("%s_wogo" % N)
    asm("s_mov_b32 s6, 0")
    asm.label("%s_woloop" % N)
    wo_group()
    asm("s_add_u32 s6, s6, 1")
    asm("s_cmp_lt_u32 s6, 10")
    asm("s_cbranch_scc1 %s_woloop" % N)
    lds_wait(W_S1, vT, vT + 1)
    asm("s_waitcnt vmcnt(30)")
    q_loads()
    asm("v_cmp_le_u32 vcc, 20, %s" % v(vL))
    asm("v_mov_b32 %s, 0" % v(vT))
    asm("v_mov_b32 %s, %d" % (v(vT + 1), 10240 - 320))
    asm("v_cndmask_b32 %s, %s, %s, vcc" % (v(vT), v(vT), v(vT + 1)))
    asm("v_add_u32 %s, %s, %s" % (v(vFo), v(vT), v(vLin)))
    asm("s_and_b32 %s, %s, 1" % (s(sIk), s(sW)))
    asm("s_lshl_b32 %s, %s, 3" % (s(sIk), s(sIk)))
    asm("s_or_b32 %s, %s, %s" % (s(sT0), s(sIk), s(sRB2)))
    asm("s_cmp_eq_u32 %s, 0" % s(sT0))
    asm("s_cbranch_scc1 %s_nov" % N)
    asm("s_lshl_b32 %s, %s, 3" % (s(sTK), s(sRB2)))
    asm("s_add_u32 %s, %s, %s" % (s(sTK), s(sTK), s(sIk)))
    asm("s_sub_u32 %s, %s, 8" % (s(sTK), s(sTK)))
    asm("s_mul_i32 %s, %s, 40960" % (s(sKO), s(sTK)))
    asm("s_mul_i32 %s, %s, 320" % (s(sT1), s(sHH)))
    asm("s_add_u32 %s, %s, %s" % (s(sKO), s(sKO), s(sT1)))
    asm("s_add_u32 %s, %s, %d" % (s(sKO), s(sKO), R_VB))
    asm("s_mul_i32 %s, %s, 1280" % (s(sLK), s(sIk)))
    asm("s_add_u32 %s, %s, %d" % (s(sLK), s(sLK), L_V))
    asm("s_mov_b64 exec, %s" % s(sM40, 2))
    for ii in range(8):
        asm("s_add_u32 m0, %s, %d" % (s(sLK), ii * 1280))
        asm("s_add_u32 %s, %s, %d" % (s(sT1), s(sKO), 20480 - 640))
        asm("buffer_load_dwordx4 %s, %s, %s offen sc1 lds" % (v(vFo), s(SWS, 4), s(sKO)))
        asm("buffer_load_dwordx4 %s, %s, %s offen offset:640 sc1 lds" % (v(vFo), s(SWS, 4), s(sT1)))
        if ii < 7: asm("s_add_u32 %s, %s, 40960" % (s(sKO), s(sKO)))
    asm("s_mov_b64 exec, -1")
    asm("s_waitcnt vmcnt(16)")
    asm("s_branch %s_kwait" % N)
    asm.label("%s_nov" % N)
    asm("s_waitcnt vmcnt(0)")
    asm("s_branch %s_kwait" % N)
    asm.label("%s_w5" % N)
    own_tile_wait()
    asm("s_add_u32 %s, %s, 7" % (s(sT0), s(sRB2)))
    asm("s_lshl_b32 %s, %s, 7" % (s(sT0), s(sT0)))
    asm("s_and_b32 %s, %s, %d" % (s(sT1), s(sP8) if REPL <= 8 else s(sHH), REPL - 1))
    asm("s_lshl_b32 %s, %s, 11" % (s(sT1), s(sT1)))
    asm("s_add_u32 %s, %s, %s" % (s(sT0), s(sT0), s(sT1)))
    asm("s_add_u32 %s, %s, %d" % (s(sPL), s(sT0), F1))
    if FINE:
        tile_masks()
        asm("s_lshl_b32 %s, %s, 5" % (s(sT3), s(sT1)))
        asm("s_lshl_b32 %s, %s, 10" % (s(sT2), s(sT2)))
        asm("s_or_b32 %s, %s, %s" % (s(sT3), s(sT3), s(sT2)))
        asm("s_or_b32 %s, %s, %s" % (s(sT1), s(sT1), s(sT3)))
        asm("s_lshl_b32 %s, %s, 16" % (s(sT1), s(sT1)))
        asm("s_cmp_eq_u32 %s, 0" % s(sRB2))
        asm("s_cselect_b32 %s, 0, %s" % (s(sT3), s(sT3)))
        asm("s_or_b32 %s, %s, %s" % (s(sT1), s(sT1), s(sT3)))
    else:
        asm("s_cmp_eq_u32 %s, 0" % s(sRB2))
        asm("s_cselect_b32 %s, 0, 0x7fe0" % s(sT1))
        asm("s_or_b32 %s, %s, 0x7fff0000" % (s(sT1), s(sT1)))
    if opts.get("ppoll", 0): ppoll(s(sPL), 32, [244, 246, 248], vL8, smask=s(sT1))
    else: poll(s(sPL), 32, vT, vL8, smask=s(sT1))
    lds_set(W_S1, vT, vT + 1)
    st(4)
    q_loads()
    asm("s_waitcnt vmcnt(0)")
    asm("s_branch %s_kwait" % N)
    asm.label("%s_aearly" % N)
    asm("v_lshrrev_b32 %s, 5, %s" % (v(vT), v(vL)))
    asm("v_mul_u32_u24 %s, 10240, %s" % (v(vT), v(vT)))
    asm("v_and_b32 %s, 31, %s" % (v(vU), v(vL)))
    asm("v_lshl_add_u32 %s, %s, 4, %s" % (v(vFo), v(vU), v(vT)))
    asm("v_mov_b32 %s, 0x3f803f80" % v(vT + 2))
    for r in range(64, 128): asm("v_mov_b32 %s, %s" % (v(r), v(vT + 2)))
    own_tile_wait()
    asm("s_lshl_b32 %s, %s, 7" % (s(sT0), s(sRB2)))
    asm("s_and_b32 %s, %s, %d" % (s(sT1), s(sP8) if REPL <= 8 else s(sHH), REPL - 1))
    asm("s_lshl_b32 %s, %s, 11" % (s(sT1), s(sT1)))
    asm("s_add_u32 %s, %s, %s" % (s(sT0), s(sT0), s(sT1)))
    asm("s_add_u32 %s, %s, %d" % (s(sPL), s(sT0), F1))
    if FINE:
        tile_masks()
        asm("s_lshl_b32 %s, %s, 5" % (s(sT3), s(sT2)))
        asm("s_lshl_b32 %s, %s, 10" % (s(sT2), s(sT2)))
        asm("s_or_b32 %s, %s, %s" % (s(sT1), s(sT1), s(sT3)))
        asm("s_or_b32 %s, %s, %s" % (s(sT1), s(sT1), s(sT2)))
        if opts.get("ppoll", 0): ppoll(s(sPL), 15, [244, 246, 248], vL8, smask=s(sT1))
        else: poll(s(sPL), 15, vT, vL8, smask=s(sT1))
    else:
        poll(s(sPL), 15, vT, vL8)
    lds_set(W_S1A, vT, vT + 1)
    st(4)
    asm("s_lshl_b32 %s, %s, 3" % (s(sT0), s(sRB2)))
    asm("s_mul_i32 %s, %s, 40960" % (s(sT0), s(sT0)))
    asm("s_mul_i32 %s, %s, 320" % (s(sT1), s(sHH)))
    asm("s_add_u32 %s, %s, %s" % (s(sT0), s(sT0), s(sT1)))
    asm("s_add_u32 %s, %s, %d" % (s(sT1), s(sT0), R_KA))
    asm("s_add_u32 %s, %s, %d" % (s(sT2), s(sT0), R_VA))
    asm("s_mov_b64 exec, %s" % s(sMSK, 2))
    for b in range(8):
        for m in range(2):
            asm("buffer_load_dwordx4 %s, %s, %s, %s offen sc1" % (v((b * 2 + m) * 4, 4), v(vFo), s(SWS, 4), s(sT1)))
            asm("buffer_load_dwordx4 %s, %s, %s, %s offen sc1" % (v(64 + (b * 2 + m) * 4, 4), v(vFo), s(SWS, 4), s(sT2)))
            asm("s_add_u32 %s, %s, 20480" % (s(sT1), s(sT1)))
            asm("s_add_u32 %s, %s, 20480" % (s(sT2), s(sT2)))
    asm("s_mov_b64 exec, -1")
    lds_wait(W_S1, vT, vT + 1)
    q_loads()
    for b in range(16):
        asm("s_waitcnt vmcnt(%d)" % (32 - 2 * b))
        c = "0" if b == 0 else v(O, 16)
        asm("v_mfma_f32_32x32x16_bf16 %s, %s, %s, %s" % (v(O, 16), v(b * 4, 4), v(64 + b * 4, 4), c))
    asm("s_lshl_b32 %s, %s, 3" % (s(sT0), s(sHH)))
    asm("s_add_u32 %s, %s, %s" % (s(sT0), s(sT0), s(sRB2)))
    asm("s_mul_i32 %s, %s, 3072" % (s(sT0), s(sT0)))
    asm("s_add_u32 %s, %s, %d" % (s(sT0), s(sT0), R_KVP))
    asm("s_nop 7"); asm("s_nop 1")
    for j in range(3):
        asm("buffer_store_dwordx4 %s, %s, %s, %s offen offset:%d sc1" % (v(O + 4 * j, 4), v(vLin), s(SWS, 4), s(sT0), j * 1024))
    asm("s_waitcnt vmcnt(3)")
    asm.label("%s_kwait" % N)
    asm(";PADBEGIN")
    lds_wait(W_K, vT, vT + 1, atleast=4)
    st(5)
    PRIO = opts.get("prio", 0)
    if PRIO:
        asm("s_cmp_%s_u32 %s, 4" % ("lt" if PRIO == 1 else "ge", s(sW)))
        asm("s_cbranch_scc0 %s_noprio" % N)
        asm("s_setprio 2")
        asm.label("%s_noprio" % N)
    def rdK(d, dst):
        for gg in range(2):
            asm("ds_read_b128 %s, %s offset:%d" % (v(dst + 4 * gg, 4), v(vKa), (8 - d) * 2048 + gg * 1024))
    def rdV(d, dst):
        asm("s_mov_b64 exec, %s" % s(sMSK, 2))
        for m in range(2):
            asm("ds_read_b128 %s, %s offset:%d" % (v(dst + 4 * m, 4), v(vVa), (8 - d) * 1280 + m * 640))
        asm("s_mov_b64 exec, -1")
    rdK(0, F[0])
    for gg in range(2):
        for p in range(2):
            k = gg * 2 + p
            for j in range(2):
                r = Q + 4 * gg + 2 * p + j
                asm("v_cndmask_b32 %s, 0, %s, %s" % (v(r), v(r), s(sQM + 2 * k, 2)))
    def maxes(d):
        b = S + 16 * d
        if d == 0:
            asm("v_max3_f32 %s, %s, %s, %s" % (v(vM), v(b), v(b + 1), v(b + 2)))
            for k in range(3, 15, 2):
                asm("v_max3_f32 %s, %s, %s, %s" % (v(vM), v(vM), v(b + k), v(b + k + 1)))
            asm("v_max_f32 %s, %s, %s" % (v(vM), v(vM), v(b + 15)))
        else:
            for k in range(0, 16, 2):
                asm("v_max3_f32 %s, %s, %s, %s" % (v(vM), v(vM), v(b + k), v(b + k + 1)))
    for d in range(9):
        cur, nxt = F[d & 1], F[(d + 1) & 1]
        asm("s_waitcnt lgkmcnt(0)")
        if d < 8: rdK(d + 1, nxt)
        if d > 0:
            asm("s_cmp_le_u32 %s, %d" % (s(sNT), d))
            asm("s_cbranch_scc1 %s_p1skip%d" % (N, d))
        else:
            asm("s_nop 1")
        c = v(CM8, 16) if d == 0 else (v(CM0, 16) if d == 8 else "0")
        b = v(S + 16 * d, 16)
        asm("v_mfma_f32_32x32x16_bf16 %s, %s, %s, %s" % (b, v(cur, 4), v(Q, 4), c))
        asm("v_mfma_f32_32x32x16_bf16 %s, %s, %s, %s" % (b, v(cur + 4, 4), v(Q + 4, 4), b))
        if d > 0:
            asm.label("%s_p1skip%d" % (N, d))
            if d == 1: asm("s_nop 7")
            maxes(d - 1)
            asm("s_cbranch_scc1 %s_p1end" % N)
    asm("s_nop 3")
    maxes(8)
    asm.label("%s_p1end" % N)
    st(6)
    SIGD = opts.get("sigd", 2)
    def a_signal():
        asm("s_cmp_lg_u32 %s, %d" % (s(sW), AW))
        asm("s_cbranch_scc1 %s_nosig" % N)
        asm("s_waitcnt vmcnt(0)")
        asm("s_lshl_b32 %s, %s, 4" % (s(sT0), s(sHH)))
        asm("s_add_u32 %s, %s, %s" % (s(sT0), s(sT0), s(sRB2)))
        asm("s_lshl_b32 %s, %s, 3" % (s(sT0), s(sT0)))
        asm("s_add_u32 %s, %s, %d" % (s(sT0), s(sT0), F2))
        flag_store(s(sT0), vT, vT + 2)
        asm.label("%s_nosig" % N)
    if SIGD < 0: a_signal()
    asm("s_cmp_lt_u32 %s, 6" % s(sW))
    asm("s_cbranch_scc1 %s_vw" % N)
    asm("s_waitcnt vmcnt(0)")
    lds_inc(W_V)
    asm.label("%s_vw" % N)
    lds_wait(W_V, vT, vT + 1, atleast=2)
    asm("s_waitcnt lgkmcnt(0)")
    asm("s_mov_b32 %s, 0x3f803f80" % s(sT0))
    for r in range(16): asm("v_mov_b32 %s, %s" % (v(VF[0] + r), s(sT0)))
    rdV(0, VF[0])
    asm("v_mov_b32 %s, %s" % (v(vT + 2), v(vM)))
    asm("v_mov_b32 %s, %s" % (v(vT + 3), v(vM)))
    asm("s_nop 1")
    asm("v_permlane32_swap_b32 %s, %s" % (v(vT + 2), v(vT + 3)))
    asm("s_nop 1")
    asm("v_max_f32 %s, %s, %s" % (v(vM), v(vT + 2), v(vT + 3)))
    asm("v_sub_f32 %s, 0, %s" % (v(vNM), v(vM)))
    asm("v_sub_f32 %s, 0, %s" % (v(vNM + 1), v(vM)))
    PQD = opts.get("pqd", 5)
    sPQ = 7
    asm("s_mov_b32 %s, 0" % s(sPQ))
    def pq_loads():
        lds_wait(W_S1A, vT + 4, vT + 5)
        asm("buffer_load_dwordx4 %s, %s, %s, %s offen sc1" % (v(Q, 4), v(vLin), s(SWS, 4), s(sOffQA)))
        asm("buffer_load_dwordx4 %s, %s, %s, %s offen offset:1024 sc1" % (v(Q + 4, 4), v(vLin), s(SWS, 4), s(sOffQA)))
    for d in range(9):
        cur, nxt = VF[d & 1], VF[(d + 1) & 1]
        b = S + 16 * d
        if d > 0:
            asm("s_cmp_le_u32 %s, %d" % (s(sNT), d))
            asm("s_cbranch_scc1 %s_p2end" % N)
        for k in range(8):
            asm("v_pk_add_f32 %s, %s, %s" % (v(b + 2 * k, 2), v(b + 2 * k, 2), v(vNM, 2)))
        for k in range(16):
            asm("v_exp_f32 %s, %s" % (v(b + k), v(b + k)))
        asm("s_waitcnt lgkmcnt(0)")
        if d < 8: rdV(d + 1, nxt)
        for k in range(8):
            asm("v_cvt_pk_bf16_f32 %s, %s, %s" % (v(b + k), v(b + 2 * k), v(b + 2 * k + 1)))
        asm("s_nop 1")
        asm("v_mfma_f32_32x32x16_bf16 %s, %s, %s, %s" % (v(O, 16), v(cur, 4), v(b, 4), "0" if d == 0 else v(O, 16)))
        asm("v_mfma_f32_32x32x16_bf16 %s, %s, %s, %s" % (v(O, 16), v(cur + 4, 4), v(b + 4, 4), v(O, 16)))
        if d == SIGD: a_signal()
        if d == PQD:
            pq_loads()
            asm("s_mov_b32 %s, 1" % s(sPQ))
    asm.label("%s_p2end" % N)
    if PRIO: asm("s_setprio 0")
    if PQD > 0:
        asm("s_cmp_lg_u32 %s, 0" % s(sPQ))
        asm("s_cbranch_scc1 %s_pqdone" % N)
        pq_loads()
        asm.label("%s_pqdone" % N)
    st(7)
    def normalize(dst, eps):
        asm("v_mov_b32 %s, %s" % (v(vT), v(O + 8)))
        asm("v_mov_b32 %s, %s" % (v(vT + 1), v(O + 8)))
        asm("s_nop 1")
        asm("v_permlane32_swap_b32 %s, %s" % (v(vT), v(vT + 1)))
        asm("s_nop 1")
        if eps: asm("v_add_f32 %s, %s, %s" % (v(vT + 1), s(sEPS), v(vT + 1)))
        asm("v_rcp_f32 %s, %s" % (v(vT + 1), v(vT + 1)))
        asm("s_nop 0")
        for k in range(12): asm("v_mul_f32 %s, %s, %s" % (v(O + k), v(vT + 1), v(O + k)))
        for k in range(6): asm("v_cvt_pk_bf16_f32 %s, %s, %s" % (v(dst + k), v(O + 2 * k), v(O + 2 * k + 1)))
    def store_o(src, region):
        asm("s_add_u32 %s, %s, %d" % (s(sT0), s(sOffO), region))
        asm("buffer_store_dwordx4 %s, %s, %s, %s offen%s" % (v(src, 4), v(vOm), s(SWS, 4), s(sT0), SC))
        asm("buffer_store_dwordx2 %s, %s, %s, %s offen%s" % (v(src + 4, 2), v(vOr), s(SWS, 4), s(sT0), SC))
    asm("s_mov_b32 %s, %s" % (s(sEPS), fhex(1e-6)))
    asm("s_cmp_ge_u32 %s, 4" % s(sW))
    asm("s_cbranch_scc1 %s_hiwaves" % N)
    asm("s_lshl_b32 %s, %s, 7" % (s(sPL), s(sHH)))
    asm("s_add_u32 %s, %s, %d" % (s(sPL), s(sPL), F2))
    asm("s_cmp_lg_u32 %s, 0" % s(sW))
    asm("s_cbranch_scc1 %s_w123" % N)
    poll_issue(s(sPL), vT + 4, vL8, 8)
    asm("s_nop 7"); asm("s_nop 3")
    normalize(PB, False)
    poll(s(sPL), 8, vT + 4, vL8, preissued=True)
    lds_set(W_S2, vT + 4, vT + 5)
    asm("s_branch %s_w0123" % N)
    asm.label("%s_w123" % N)
    asm("s_nop 7"); asm("s_nop 3")
    normalize(PB, False)
    lds_wait(W_S2, vT + 4, vT + 5)
    asm.label("%s_w0123" % N)
    asm("s_lshl_b32 %s, %s, 1" % (s(sT0), s(sW)))
    asm("s_sub_u32 %s, %s, %s" % (s(sT0), s(sT0), s(sDQ)))
    asm("v_lshrrev_b32 %s, 5, %s" % (v(vT), v(vL)))
    asm("v_add_u32 %s, %s, %s" % (v(vT), s(sT0), v(vT)))
    asm("v_and_b32 %s, 31, %s" % (v(vT + 1), v(vL)))
    asm("v_lshlrev_b32 %s, 4, %s" % (v(vT + 1), v(vT + 1)))
    asm("v_lshl_add_u32 %s, %s, 9, %s" % (v(vT + 1), v(vT), v(vT + 1)))
    asm("v_cmp_ge_u32 vcc, 4, %s" % v(vT))
    asm("v_mov_b32 %s, 0x%x" % (v(vT + 2), OOB))
    asm("s_nop 0")
    asm("v_cndmask_b32 %s, %s, %s, vcc" % (v(vU), v(vT + 2), v(vT + 1)))
    asm("s_lshl_b32 %s, %s, 3" % (s(sT0), s(sHH)))
    asm("s_mul_i32 %s, %s, 3072" % (s(sT0), s(sT0)))
    asm("s_add_u32 %s, %s, %d" % (s(sT0), s(sT0), R_KVP))
    for r in range(8):
        asm("buffer_load_dwordx4 %s, %s, %s, %s offen sc1" % (v(S + 4 * r, 4), v(vU), s(SWS, 4), s(sT0)))
        if r < 7: asm("s_add_u32 %s, %s, 3072" % (s(sT0), s(sT0)))
    store_o(PB, R_OB)
    asm("s_waitcnt vmcnt(2)")
    for r in range(1, 8):
        for k in range(4):
            asm("v_add_f32 %s, %s, %s" % (v(S + k), v(S + k), v(S + 4 * r + k)))
    asm("v_cvt_pk_bf16_f32 %s, %s, %s" % (v(vT), v(S), v(S + 1)))
    asm("v_cvt_pk_bf16_f32 %s, %s, %s" % (v(vT + 1), v(S + 2), v(S + 3)))
    asm("s_lshr_b32 %s, %s, 1" % (s(sT0), s(sW)))
    asm("s_lshl_b32 %s, %s, 10" % (s(sT0), s(sT0)))
    asm("s_and_b32 %s, %s, 1" % (s(sT1), s(sW)))
    asm("s_lshl_b32 %s, %s, 3" % (s(sT1), s(sT1)))
    asm("s_add_u32 %s, %s, %s" % (s(sT0), s(sT0), s(sT1)))
    asm("s_add_u32 %s, %s, %d" % (s(sT0), s(sT0), L_KVT))
    asm("v_add_u32 %s, %s, %s" % (v(vU), s(sT0), v(vLin)))
    asm("ds_write_b64 %s, %s" % (v(vU), v(vT, 2)))
    asm("s_branch %s_join" % N)
    asm.label("%s_hiwaves" % N)
    asm("s_nop 7"); asm("s_nop 3")
    normalize(PB, False)
    store_o(PB, R_OB)
    asm.label("%s_join" % N)
    asm("s_waitcnt lgkmcnt(0)")
    asm("s_barrier")
    st(8)
    asm("v_add_u32 %s, 0x%x, %s" % (v(vU), L_KVT, v(vLin)))
    asm("ds_read_b128 %s, %s" % (v(F[0], 4), v(vU)))
    asm("ds_read_b128 %s, %s offset:1024" % (v(F[0] + 4, 4), v(vU)))
    sF3 = 69
    asm("s_lshl_b32 %s, %s, 5" % (s(sF3), s(sRB2)))
    asm("s_add_u32 %s, %s, %s" % (s(sF3), s(sF3), s(sHH)))
    asm("s_lshl_b32 %s, %s, 3" % (s(sF3), s(sF3)))
    asm("s_add_u32 %s, %s, %d" % (s(sF3), s(sF3), F3))
    asm("s_waitcnt vmcnt(2) lgkmcnt(0)")
    asm("v_mfma_f32_32x32x16_bf16 %s, %s, %s, 0" % (v(O, 16), v(F[0], 4), v(Q, 4)))
    asm("v_mfma_f32_32x32x16_bf16 %s, %s, %s, %s" % (v(O, 16), v(F[0] + 4, 4), v(Q + 4, 4), v(O, 16)))
    asm("s_nop 7"); asm("s_nop 3")
    normalize(PA, True)
    store_o(PA, R_OA)
    asm("s_add_u32 %s, %s, %d" % (s(sT1), s(sF3), 8 * 256))
    asm("s_waitcnt vmcnt(2)")
    release()
    lds_arrive(W_CNT3B, 8, vT + 6, vT + 4, s(sT1))
    asm("s_waitcnt vmcnt(0)")
    release()
    lds_arrive(W_CNT3A, 8, vT + 6, vT + 4, s(sF3))
    st(9)
    asm("s_cmp_ge_u32 %s, 4" % s(sW))
    asm("s_cbranch_scc1 %s_fin" % N)
    OF = 0; ACC3 = 160; WF = [200, 220]
    vOM, vOR, vWm, vWm2, vWr, vWr2 = 245, 246, 247, 248, 249, 250
    p3L, p3T, p3U, p3X = 251, 252, 253, 254
    vDW3 = 240
    sTB3, sOffO3, sOM = 44, 45, 46
    SOUT = SB_
    decode3()
    asm("s_load_dwordx2 s[4:5], s[0:1], 48")
    asm("s_lshl_b32 %s, %s, 2" % (s(sTB3), s(sRB3)))
    asm("s_add_u32 %s, %s, %s" % (s(sTB3), s(sTB3), s(sW)))
    lane(p3L)
    asm("v_lshlrev_b32 %s, 3, %s" % (v(p3X), v(p3L)))
    asm("s_lshl_b32 %s, %s, 3" % (s(sT0), s(sBR3)))
    asm("s_lshr_b32 %s, %s, 1" % (s(sT1), s(sRB3)))
    asm("s_add_u32 %s, %s, %s" % (s(sT0), s(sT0), s(sT1)))
    asm("s_lshl_b32 %s, %s, 8" % (s(sT0), s(sT0)))
    asm("s_add_u32 %s, %s, %d" % (s(sPL), s(sT0), F3))
    asm("v_lshrrev_b32 %s, 4, %s" % (v(p3T), v(p3L)))
    asm("v_and_b32 %s, 15, %s" % (v(p3U), v(p3L)))
    asm("v_lshrrev_b32 %s, 1, %s" % (v(vWm2), v(p3T)))
    asm("v_mul_u32_u24 %s, 1280, %s" % (v(vOM), v(vWm2)))
    asm("v_and_b32 %s, 1, %s" % (v(vWm2), v(p3T)))
    asm("v_lshl_add_u32 %s, %s, 9, %s" % (v(vOM), v(vWm2), v(vOM)))
    asm("v_lshl_add_u32 %s, %s, 4, %s" % (v(vOM), v(p3U), v(vOM)))
    asm("v_mul_u32_u24 %s, 1280, %s" % (v(vOR), v(p3T)))
    asm("v_lshl_add_u32 %s, %s, 3, %s" % (v(vOR), v(p3U), v(vOR)))
    asm("v_add_u32 %s, 1024, %s" % (v(vOR), v(vOR)))
    asm("v_bfe_u32 %s, %s, 2, 2" % (v(p3U), v(p3L)))
    asm("v_lshrrev_b32 %s, 1, %s" % (v(vWm2), v(p3T)))
    asm("v_mul_u32_u24 %s, 20, %s" % (v(vWm), v(vWm2)))
    asm("v_and_b32 %s, 1, %s" % (v(vWm2), v(p3T)))
    asm("v_lshl_add_u32 %s, %s, 2, %s" % (v(vWm), v(vWm2), v(vWm)))
    asm("v_add_u32 %s, %s, %s" % (v(vWm), v(vWm), v(p3U)))
    asm("v_mul_u32_u24 %s, 160, %s" % (v(vWm), v(vWm)))
    asm("v_mul_u32_u24 %s, 20, %s" % (v(vWr), v(p3T)))
    asm("v_add_u32 %s, %s, %s" % (v(vWr), v(vWr), v(p3U)))
    asm("v_add_u32 %s, 16, %s" % (v(vWr), v(vWr)))
    asm("v_mul_u32_u24 %s, 160, %s" % (v(vWr), v(vWr)))
    asm("v_and_b32 %s, 3, %s" % (v(vWm2), v(p3L)))
    asm("v_lshl_add_u32 %s, %s, 3, %s" % (v(vWm), v(vWm2), v(vWm)))
    asm("v_lshl_add_u32 %s, %s, 3, %s" % (v(vWr), v(vWm2), v(vWr)))
    asm("v_add_u32 %s, 51200, %s" % (v(vWm2), v(vWm)))
    asm("v_add_u32 %s, 51200, %s" % (v(vWr2), v(vWr)))
    asm("s_mul_i32 %s, %s, %d" % (s(sOffO3), s(sBR3), REG))
    asm("s_add_u32 %s, %s, %d" % (s(sOffO3), s(sOffO3), R_OA))
    asm("s_mul_i32 %s, %s, 40960" % (s(sT0), s(sTB3)))
    asm("s_add_u32 %s, %s, %s" % (s(sOffO3), s(sOffO3), s(sT0)))
    asm("s_waitcnt lgkmcnt(0)")
    srd(asm, SOUT, "s4", "s5", 2048 * 2560)
    asm("s_cmp_lg_u32 %s, 0" % s(sW))
    asm("s_cbranch_scc1 %s_p3w" % N)
    if opts.get("ppoll", 0): ppoll(s(sPL), 32, [vDW3, vDW3 + 2], p3X)
    else: poll(s(sPL), 32, vDW3, p3X)
    lds_set(W_S3, p3T, p3U)
    asm("s_branch %s_p3go" % N)
    asm.label("%s_p3w" % N)
    lds_wait(W_S3, vDW3, vDW3 + 1)
    asm.label("%s_p3go" % N)
    st(10)
    def oloads(sidx):
        if sidx < 16:
            asm("s_add_u32 %s, %s, %d" % (s(sOM), s(sOffO3), 2560 * sidx))
            for rt in range(2):
                asm("buffer_load_dwordx4 %s, %s, %s, %s offen offset:%d%s" % (v(OF + (sidx * 2 + rt) * 4, 4), v(vOM), s(SWS, 4), s(sOM), rt * 256, LSC3))
        else:
            a_ = sidx - 16
            for half in range(2):
                asm("s_add_u32 %s, %s, %d" % (s(sOM), s(sOffO3), a_ * 8 * 1280 + half * 5120))
                for rt in range(2):
                    asm("buffer_load_dwordx2 %s, %s, %s, %s offen offset:%d%s" % (v(OF + ((16 + a_) * 2 + rt) * 4 + 2 * half, 2), v(vOR), s(SWS, 4), s(sOM), rt * 128, LSC3))
    def cum(k): return 2 * (k + 1) if k < 16 else 32 + 4 * (k - 15)
    PD = opts.get("pd", 5)
    for k in range(PD): oloads(k)
    def wreads(step, dst):
        ops = []
        for ct in range(5):
            for a_ in range(2):
                if step < 16:
                    base = vWm if step < 8 else vWm2
                    off = (step & 7) * 6400 + a_ * 1280 + ct * 32
                else:
                    ap = step - 16
                    base = vWr if ap < 2 else vWr2
                    off = (ap & 1) * 25600 + a_ * 12800 + ct * 32
                ops.append(lambda ct=ct, a_=a_, base=base, off=off: asm("ds_read_b64_tr_b16 %s, %s offset:%d" % (v(dst + 4 * ct + 2 * a_, 2), v(base), off)))
        return ops
    if opts.get("p3st"): st(1)
    for f in wreads(0, WF[0]): f()
    for sidx in range(20):
        cur = WF[sidx & 1]
        nxt_ops = wreads(sidx + 1, WF[(sidx + 1) & 1]) if sidx < 19 else []
        vm = cum(min(sidx + PD - 1, 19)) - cum(sidx)
        asm("s_waitcnt vmcnt(%d) lgkmcnt(0)" % vm)
        if opts.get("p3st") and sidx in (0, 8, 16): st({0: 2, 8: 3, 16: 4}[sidx])
        m = 0
        for ct in range(5):
            for rt in range(2):
                acc = v(ACC3 + (rt * 5 + ct) * 4, 4)
                c = "0" if sidx == 0 else acc
                asm("v_mfma_f32_16x16x32_bf16 %s, %s, %s, %s" % (acc, v(cur + 4 * ct, 4), v(OF + (sidx * 2 + rt) * 4, 4), c))
                if m < 5 and nxt_ops:
                    nxt_ops[2 * m](); nxt_ops[2 * m + 1]()
                if m == 5 and sidx + PD < 20: oloads(sidx + PD)
                m += 1
    st(11)
    asm("v_and_b32 %s, 15, %s" % (v(p3U), v(p3L)))
    asm("v_mul_u32_u24 %s, 160, %s" % (v(p3U), v(p3U)))
    asm("v_lshrrev_b32 %s, 4, %s" % (v(p3T), v(p3L)))
    asm("v_lshl_add_u32 %s, %s, 3, %s" % (v(p3U), v(p3T), v(p3U)))
    asm("s_mul_i32 %s, %s, 5120" % (s(sT0), s(sW)))
    asm("s_add_u32 %s, %s, %d" % (s(sT0), s(sT0), L_OUT))
    asm("v_add_u32 %s, %s, %s" % (v(p3U), s(sT0), v(p3U)))
    asm("v_lshlrev_b32 %s, 4, %s" % (v(p3X), v(p3L)))
    asm("v_add_u32 %s, %s, %s" % (v(p3X), s(sT0), v(p3X)))
    asm("s_nop 3")
    for rt in range(2):
        for ct in range(5):
            b = ACC3 + (rt * 5 + ct) * 4
            t = OF + (rt * 5 + ct) * 2
            asm("v_cvt_pk_bf16_f32 %s, %s, %s" % (v(t), v(b), v(b + 1)))
            asm("v_cvt_pk_bf16_f32 %s, %s, %s" % (v(t + 1), v(b + 2), v(b + 3)))
            asm("ds_write_b64 %s, %s offset:%d" % (v(p3U), v(t, 2), rt * 2560 + ct * 32))
    asm("s_movk_i32 %s, 6554" % s(sT2))
    asm("s_movk_i32 %s, 2560" % s(sT3))
    for b in range(5):
        asm("v_add_u32 %s, %d, %s" % (v(p3T), 64 * b, v(p3L)))
        asm("v_mul_lo_u32 %s, %s, %s" % (v(vWm), v(p3T), s(sT2)))
        asm("v_lshrrev_b32 %s, 16, %s" % (v(vWm), v(vWm)))
        asm("v_mul_u32_u24 %s, 10, %s" % (v(vWr), v(vWm)))
        asm("v_sub_u32 %s, %s, %s" % (v(p3T), v(p3T), v(vWr)))
        asm("v_lshlrev_b32 %s, 4, %s" % (v(p3T), v(p3T)))
        asm("v_mad_u32_u24 %s, %s, %s, %s" % (v(vDW3 + b), v(vWm), s(sT3), v(p3T)))
    asm("s_mul_i32 %s, %s, %d" % (s(sT0), s(sTB3), 32 * 2560))
    asm("s_mul_i32 %s, %s, 1280" % (s(sT1), s(sBR3)))
    asm("s_add_u32 %s, %s, %s" % (s(sT0), s(sT0), s(sT1)))
    asm("s_mul_i32 %s, %s, 160" % (s(sT1), s(sCB3)))
    asm("s_add_u32 %s, %s, %s" % (s(sT0), s(sT0), s(sT1)))
    asm("s_waitcnt lgkmcnt(0)")
    for b in range(5):
        asm("ds_read_b128 %s, %s offset:%d" % (v(32 + 4 * b, 4), v(p3X), b * 1024))
    for b in range(5):
        asm("s_waitcnt lgkmcnt(%d)" % (4 - b))
        asm("buffer_store_dwordx4 %s, %s, %s, %s offen%s" % (v(32 + 4 * b, 4), v(vDW3 + b), s(SOUT, 4), s(sT0), {0: "", 1: " sc1", 2: " nt", 3: " sc0 sc1"}[opts.get("outsc", 0)]))
    asm(";PADEND")
    asm.label("%s_fin" % N)
    if stamp:
        asm("s_waitcnt vmcnt(0)")
        st(12)
        asm("s_waitcnt lgkmcnt(0)")
        asm("s_load_dwordx2 s[4:5], s[0:1], 64")
        asm("s_waitcnt lgkmcnt(0)")
        asm("s_add_u32 s4, s4, %d" % (R_STAMP + (opts.get("wsoff", 0) << 20)))
        asm("s_addc_u32 s5, s5, 0")
        srd(asm, SA_, "s4", "s5", 1 << 20)
        asm("s_lshl_b32 %s, s2, 3" % s(sT0))
        asm("s_add_u32 %s, %s, %s" % (s(sT0), s(sT0), s(sW)))
        asm("s_lshl_b32 %s, %s, 7" % (s(sT0), s(sT0)))
        asm("v_mov_b32 v1, %s" % s(sT0))
        for i in range(13):
            asm("v_mov_b32 v2, %s" % s(STB + 2 * i))
            asm("v_mov_b32 v3, %s" % s(STB + 2 * i + 1))
            asm("buffer_store_dwordx2 v[2:3], v1, %s, 0 offen offset:%d" % (s(SA_, 4), 8 * i))
            asm("s_nop 1")
        asm("s_getreg_b32 s4, hwreg(HW_REG_HW_ID)")
        asm("v_mov_b32 v2, %s" % s(sXCC))
        asm("v_mov_b32 v3, s4")
        asm("buffer_store_dwordx2 v[2:3], v1, %s, 0 offen offset:%d" % (s(SA_, 4), 8 * 13))
    asm.label("%s_end" % N)
    asm("s_endpgm")
    return dict(name=N, vgpr=256, sgpr=100, grid=256, block=512, lds=LDS_BYTES)
HEADER = open("concat_heads__linear_attn_block__sliding_block__prompt.s.ref").read().split("; Override")[0]
def insert_pads(lines, every, nseg, N):
    b = lines.index(";PADBEGIN"); e = lines.index(";PADEND")
    pos = []; cnt = every; partial = False
    for k in range(b + 1, e):
        ln = lines[k].strip()
        if not ln or ln.endswith(":") or ln.startswith(";") or ln.startswith("."): continue
        if ln.startswith("s_mov_b64 exec") or ln.startswith("s_mov_b32 exec_"):
            partial = not ln.endswith("exec, -1")
            cnt += 1
            continue
        if cnt >= every and not partial:
            pos.append(k); cnt = 0
        cnt += 1
    n = len(pos); per = (n + nseg - 1) // nseg
    out = list(lines[:pos[0]])
    for i_, k in enumerate(pos):
        seg, j = divmod(i_, per)
        name = "%s_padseg%d" % (N, seg) if j == 0 else "%s_pad%d" % (N, i_)
        last = (j == per - 1) or (i_ == n - 1)
        nxt = "%s_walkret" % N if last else "%s_pad%d" % (N, i_ + 1)
        out.append(name + ":")
        out.append("s_cbranch_execz %s" % nxt)
        out += lines[k:(pos[i_ + 1] if i_ + 1 < n else len(lines))]
    nsegs = (n + per - 1) // per
    assert nsegs == nseg, (n, per, nsegs)
    return out, n
def build(stamp=False, opts=None):
    body = A()
    i = gen(body, stamp=stamp, opts=opts)
    if opts and opts.get("pad", 0):
        body.L, npads = insert_pads(body.L, opts["pad"], 8, i["name"])
        print("pads:", npads)
    else:
        body.L = [l for l in body.L if l not in (";PADBEGIN", ";PADEND")]
    out = HEADER
    out += "; @launch grid=(%d,1,1) block=(%d,1,1) lds=%d\n" % (i["grid"], i["block"], i["lds"])
    out += '.amdgcn_target "amdgcn-amd-amdhsa--gfx950"\n.text\n'
    out += body.text()
    d = A()
    d('.section .rodata,"a"')
    kernel_desc(d, i["name"], i["vgpr"], i["sgpr"])
    out += d.text()
    return out
if __name__ == "__main__":
    import sys
    opts = {}
    for a_ in sys.argv[3:]:
        k, val = a_.split("="); opts[k] = int(val)
    open(sys.argv[1], "w").write(build(stamp=(len(sys.argv) > 2 and sys.argv[2] == "stamp"), opts=opts))
```

```python
from asmlib import *
import math
REG = 2621440
R_QA, R_KA, R_VA, R_QB, R_KB, R_VB, R_OA, R_OB, R_KVP, R_FLG = [i * REG for i in range(10)]
F1 = R_FLG
F2 = R_FLG + 65536
F3 = R_FLG + 65536 + 8192
WS_REC = R_FLG + 131072
R_STAMP = 10 * REG
LOG2E = 1.4426950408889634
QSCALE = LOG2E / math.sqrt(20.0)
BIG = -1.0e30
OOB = 0x40000000
L_WO, L_K, L_V, L_KVT = 0, 102400, 135168, 155648
L_OUT = L_K
L_SYNC = 157696
W_CNT1, W_S1, W_S1A, W_S2, W_CNT3B, W_CNT3A, W_S3, W_ISS, W_K, W_V = [L_SYNC + 4 * i for i in range(10)]
LDS_BYTES = 157696 + 64
SPIN_MAX = 0x40000
NAME = "concat_heads__linear_attn_block__sliding_block__prompt_kernel"
class G:
    pass
def gen(asm, stamp=False, name=NAME, opts=None):
    opts = opts or {}
    N = name
    D1 = opts.get("d1", 0)
    SC = " sc1" if D1 else ""
    SC = {0: SC, 1: " sc0 sc1", 2: " sc1 nt", 3: " sc0 sc1 nt"}[opts.get("scmode", 0)]
    REPL = opts.get("repl", 8)
    LSC3 = "" if opts.get("plain3") else " sc1"
    sW = 3
    SWS, SDBG = 8, 12
    sNON = 16
    sT0, sT1, sT2, sT3 = 18, 19, 20, 21
    sCNT, sPL = 22, 23
    SA_, SB_ = 24, 28
    sMASK = 32
    sPC = 34
    STB = 72
    sP8, sSLOT, sLOCAL, sXCC = 70, 71, 98, 99
    def st(k):
        if stamp:
            asm("s_memrealtime %s" % s(STB + 2 * k, 2))
    def lane(dst):
        asm("v_mbcnt_lo_u32_b32 %s, -1, 0" % v(dst))
        asm("v_mbcnt_hi_u32_b32 %s, -1, %s" % (v(dst), v(dst)))
    uid = [0]
    def lab(p):
        uid[0] += 1
        return "%s_%s%d" % (N, p, uid[0])
    def sync_issue(vd, vo):
        lane(vo)
        asm("s_lshl_b32 %s, %s, 3" % (s(sT0), s(sP8)))
        asm("s_add_u32 %s, %s, 64" % (s(sT0), s(sT0)))
        asm("v_cmp_eq_u32 vcc, 1, %s" % v(vo))
        asm("v_mov_b32 %s, %s" % (v(vd), s(sT0)))
        asm("v_mov_b32 %s, 0" % v(vo))
        asm("v_cndmask_b32 %s, %s, %s, vcc" % (v(vo), v(vo), v(vd)))
        asm("buffer_load_dwordx2 %s, %s, %s, 0 offen sc1" % (v(vd, 2), v(vo), s(SDBG, 4)))
    def get_sync(vd, vo, preissued=False):
        L, D = lab("non"), lab("nond")
        if not preissued: sync_issue(vd, vo)
        asm("s_mov_b32 %s, 0" % s(sCNT))
        asm.label(L)
        asm("s_waitcnt vmcnt(0)")
        asm("v_readlane_b32 %s, %s, 0" % (s(sNON), v(vd)))
        asm("v_readlane_b32 %s, %s, 0" % (s(sNON + 1), v(vd + 1)))
        asm("v_readlane_b32 %s, %s, 1" % (s(sPC), v(vd)))
        asm("v_readlane_b32 %s, %s, 1" % (s(sPC + 1), v(vd + 1)))
        asm("s_add_u32 %s, %s, 1" % (s(sCNT), s(sCNT)))
        asm("s_nop 2")
        asm("s_cmp_lg_u32 %s, 0" % s(sNON))
        asm("s_cbranch_scc1 %s" % D)
        asm("s_cmp_ge_u32 %s, 0x%x" % (s(sCNT), SPIN_MAX))
        asm("s_cbranch_scc1 %s" % D)
        asm("s_sleep 4")
        asm("buffer_load_dwordx2 %s, %s, %s, 0 offen sc1" % (v(vd, 2), v(vo), s(SDBG, 4)))
        asm("s_branch %s" % L)
        asm.label(D)
        asm("s_lshl_b32 %s, %s, 3" % (s(sT0), s(sXCC)))
        asm("s_lshl_b64 %s, 32, %s" % (s(sMASK, 2), s(sT0)))
        asm("s_cmp_eq_u64 %s, %s" % (s(sMASK, 2), s(sPC, 2)))
        asm("s_cselect_b32 %s, 1, 0" % s(sLOCAL))
        if opts.get("nolocal"): asm("s_mov_b32 %s, 0" % s(sLOCAL))
    def release():
        if D1: return
        D = lab("rel")
        asm("s_cmp_lg_u32 %s, 0" % s(sLOCAL))
        asm("s_cbranch_scc1 %s" % D)
        asm("buffer_wbl2 sc1")
        asm("s_waitcnt vmcnt(0)")
        asm.label(D)
    def lds_set(word, va, vd):
        asm("v_mov_b32 %s, 0x%x" % (v(va), word))
        asm("v_mov_b32 %s, 1" % v(vd))
        asm("ds_write_b32 %s, %s" % (v(va), v(vd)))
    def lds_wait(word, va, vd, atleast=1):
        L, D = lab("lw"), lab("lwd")
        asm("v_mov_b32 %s, 0x%x" % (v(va), word))
        asm("s_mov_b32 %s, 0" % s(sCNT))
        asm.label(L)
        asm("ds_read_b32 %s, %s" % (v(vd), v(va)))
        asm("s_waitcnt lgkmcnt(0)")
        asm("v_readfirstlane_b32 %s, %s" % (s(sT0), v(vd)))
        asm("s_add_u32 %s, %s, 1" % (s(sCNT), s(sCNT)))
        asm("s_nop 2")
        asm("s_cmp_ge_u32 %s, %d" % (s(sT0), atleast))
        asm("s_cbranch_scc1 %s" % D)
        asm("s_cmp_ge_u32 %s, 0x%x" % (s(sCNT), SPIN_MAX * 8))
        asm("s_cbranch_scc1 %s" % D)
        if opts.get("lsleep", 1): asm("s_sleep %d" % opts.get("lsleep", 1))
        asm("s_branch %s" % L)
        asm.label(D)
    def lds_arrive(word, n, va, vd, soff, replicas=1):
        D = lab("arr")
        asm("v_mov_b32 %s, 0x%x" % (v(va), word))
        asm("v_mov_b32 %s, 1" % v(vd))
        asm("s_mov_b64 exec, 1")
        asm("ds_add_rtn_u32 %s, %s, %s" % (v(vd), v(va), v(vd)))
        asm("s_waitcnt lgkmcnt(0)")
        asm("s_mov_b64 exec, -1")
        asm("v_readfirstlane_b32 %s, %s" % (s(sCNT), v(vd)))
        asm("s_nop 3")
        asm("s_cmp_lg_u32 %s, %d" % (s(sCNT), n - 1))
        asm("s_cbranch_scc1 %s" % D)
        flag_store(soff, vd, va, replicas)
        asm.label(D)
    def poll_issue(soff, vd, vo, n):
        asm("s_mov_b32 exec_lo, 0x%x" % ((1 << n) - 1))
        asm("s_mov_b32 exec_hi, 0")
        asm("buffer_load_dwordx2 %s, %s, %s, %s offen sc1" % (v(vd, 2), v(vo), s(SWS, 4), soff))
        asm("s_mov_b64 exec, -1")
    def poll(soff, n, vd, vo, preissued=False, lo=0, smask=None):
        L, D = lab("poll"), lab("polld")
        m = ((1 << n) - 1) & ~((1 << lo) - 1)
        asm("s_mov_b32 %s, %s" % (s(sMASK), smask if smask else "0x%x" % (m & 0xffffffff)))
        asm("s_mov_b32 %s, 0x%x" % (s(sMASK + 1), m >> 32))
        if not preissued: poll_issue(soff, vd, vo, n)
        asm("s_mov_b32 %s, 0" % s(sCNT))
        asm.label(L)
        asm("s_waitcnt vmcnt(0)")
        asm("v_cmp_eq_u32 vcc, %s, %s" % (s(sNON), v(vd)))
        asm("v_cmp_eq_u32 %s, %s, %s" % (s(sPC, 2), s(sNON + 1), v(vd + 1)))
        asm("s_add_u32 %s, %s, 1" % (s(sCNT), s(sCNT)))
        asm("s_nop 3")
        asm("s_and_b64 %s, %s, vcc" % (s(sPC, 2), s(sPC, 2)))
        asm("s_and_b64 %s, %s, %s" % (s(sPC, 2), s(sPC, 2), s(sMASK, 2)))
        asm("s_cmp_eq_u64 %s, %s" % (s(sPC, 2), s(sMASK, 2)))
        asm("s_cbranch_scc1 %s" % D)
        asm("s_cmp_ge_u32 %s, 0x%x" % (s(sCNT), SPIN_MAX))
        asm("s_cbranch_scc1 %s" % D)
        asm("s_sleep %d" % opts.get("sleep", 3))
        poll_issue(soff, vd, vo, n)
        asm("s_branch %s" % L)
        asm.label(D)
    def ppoll(soff, n, regs, vo, smask=None):
        k = len(regs)
        L, D = lab("pp"), lab("ppd")
        m = (1 << n) - 1
        asm("s_mov_b32 %s, %s" % (s(sMASK), smask if smask else "0x%x" % (m & 0xffffffff)))
        asm("s_mov_b32 %s, 0x%x" % (s(sMASK + 1), m >> 32))
        for i, r in enumerate(regs):
            poll_issue(soff, r, vo, n)
            if i + 1 < k: asm("s_sleep %d" % opts.get("pstag", 6))
        asm("s_mov_b32 %s, 0" % s(sCNT))
        asm.label(L)
        for i, r in enumerate(regs):
            asm("s_waitcnt vmcnt(%d)" % (k - 1))
            asm("v_cmp_eq_u32 vcc, %s, %s" % (s(sNON), v(r)))
            asm("v_cmp_eq_u32 %s, %s, %s" % (s(sPC, 2), s(sNON + 1), v(r + 1)))
            asm("s_add_u32 %s, %s, 1" % (s(sCNT), s(sCNT)))
            asm("s_nop 3")
            asm("s_and_b64 %s, %s, vcc" % (s(sPC, 2), s(sPC, 2)))
            asm("s_and_b64 %s, %s, %s" % (s(sPC, 2), s(sPC, 2), s(sMASK, 2)))
            asm("s_cmp_eq_u64 %s, %s" % (s(sPC, 2), s(sMASK, 2)))
            asm("s_cbranch_scc1 %s" % D)
            poll_issue(soff, r, vo, n)
        asm("s_cmp_lt_u32 %s, 0x%x" % (s(sCNT), SPIN_MAX * 3))
        asm("s_cbranch_scc1 %s" % L)
        asm.label(D)
    def flag_store(soff, vd, vo, replicas=1):
        if replicas > 1:
            lane(vo)
            asm("v_lshlrev_b32 %s, 11, %s" % (v(vo), v(vo)))
        else:
            asm("v_mov_b32 %s, 0" % v(vo))
        asm("v_mov_b32 %s, %s" % (v(vd), s(sNON)))
        asm("v_mov_b32 %s, %s" % (v(vd + 1), s(sNON + 1)))
        asm("s_mov_b64 exec, %d" % ((1 << replicas) - 1 if replicas <= 6 else -1) if replicas <= 6 else "s_mov_b32 exec_lo, 0x%x\n    s_mov_b32 exec_hi, 0" % ((1 << replicas) - 1))
        asm("buffer_store_dwordx2 %s, %s, %s, %s offen sc1" % (v(vd, 2), v(vo), s(SWS, 4), soff))
        asm("s_mov_b64 exec, -1")
    kernel_header(asm, N)
    asm("s_cmp_ge_u32 s2, 256")
    asm("s_cbranch_scc1 %s_end" % N)
    if stamp:
        for i in range(26): asm("s_mov_b32 %s, 0" % s(STB + i))
    st(0)
    asm("s_load_dwordx4 s[4:7], s[0:1], 56")
    asm("s_load_dwordx4 s[36:39], s[0:1], 0")
    asm("s_load_dwordx4 s[40:43], s[0:1], 24")
    asm("v_lshrrev_b32 v1, 6, v0")
    asm("s_nop 0")
    asm("v_readfirstlane_b32 %s, v1" % s(sW))
    CPF = opts.get("cpf", 0)
    if CPF:
        asm("s_lshr_b32 %s, s2, 3" % s(sT0))
        asm("s_nop 1")
        asm("s_cmp_lg_u32 %s, %d" % (s(sW), CPF))
        asm("s_cbranch_scc1 %s_nocpf" % N)
        asm("s_getpc_b64 s[24:25]")
        asm.label("%s_cpfpc" % N)
        asm("s_sub_u32 s24, s24, (%s_cpfpc - %s)" % (N, N))
        asm("s_subb_u32 s25, s25, 0")
        asm("s_and_b32 s25, s25, 0xffff")
        asm("s_mov_b32 s26, (%s_end - %s)" % (N, N))
        asm("s_mov_b32 s27, 0x20000")
        lane(5)
        asm("s_and_b32 %s, %s, 3" % (s(sT0), s(sT0)))
        asm("s_lshl_b32 %s, %s, 6" % (s(sT0), s(sT0)))
        asm("v_add_u32 v5, %s, v5" % s(sT0))
        asm("v_lshlrev_b32 v5, 7, v5")
        asm("buffer_load_dword v223, v5, s[24:27], 0 offen")
        asm.label("%s_nocpf" % N)
    sBR, sRB, sCB, sPART, sCBP, sW4, sWM, sWN = 44, 45, 46, 47, 48, 49, 50, 51
    asm("s_and_b32 %s, s2, 7" % s(sP8))
    asm("s_lshr_b32 %s, s2, 3" % s(sSLOT))
    asm("s_getreg_b32 %s, hwreg(HW_REG_XCC_ID, 0, 4)" % s(sXCC))
    asm("s_and_b32 %s, %s, 7" % (s(sXCC), s(sXCC)))
    if not D1:
        asm("s_cmp_ge_u32 %s, 15" % s(sSLOT))
        asm("s_cselect_b32 %s, 1, 0" % s(sBR))
        asm("s_cselect_b32 %s, 15, 0" % s(sT0))
        asm("s_sub_u32 %s, %s, %s" % (s(sCB), s(sSLOT), s(sT0)))
        asm("s_mov_b32 %s, %s" % (s(sRB), s(sP8)))
    else:
        asm("s_lshr_b32 %s, %s, 2" % (s(sBR), s(sP8)))
        asm("s_and_b32 %s, %s, 3" % (s(sT0), s(sP8)))
        asm("s_mul_i32 %s, %s, 30" % (s(sT0), s(sT0)))
        asm("s_add_u32 %s, %s, %s" % (s(sT0), s(sT0), s(sSLOT)))
        asm("s_cmp_ge_u32 %s, 60" % s(sT0))
        asm("s_cselect_b32 %s, 4, 0" % s(sT1))
        asm("s_cselect_b32 %s, 60, 0" % s(sT2))
        asm("s_sub_u32 %s, %s, %s" % (s(sT0), s(sT0), s(sT2)))
        asm("s_lshr_b32 %s, %s, 2" % (s(sCB), s(sT0)))
        asm("s_and_b32 %s, %s, 3" % (s(sT0), s(sT0)))
        asm("s_add_u32 %s, %s, %s" % (s(sRB), s(sT1), s(sT0)))
    asm("s_cmp_ge_u32 %s, 5" % s(sCB))
    asm("s_cselect_b32 %s, 1, 0" % s(sPART))
    asm("s_cmp_ge_u32 %s, 10" % s(sCB))
    asm("s_cselect_b32 %s, 2, %s" % (s(sPART), s(sPART)))
    asm("s_mul_i32 %s, %s, 5" % (s(sT0), s(sPART)))
    asm("s_sub_u32 %s, %s, %s" % (s(sCBP), s(sCB), s(sT0)))
    asm("s_and_b32 %s, %s, 3" % (s(sW4), s(sW)))
    asm("s_lshr_b32 %s, %s, 1" % (s(sWM), s(sW4)))
    asm("s_and_b32 %s, %s, 1" % (s(sWN), s(sW4)))
    asm("s_waitcnt lgkmcnt(0)")
    if opts.get("wsoff"):
        asm("s_add_u32 s6, s6, 0x%x" % (opts["wsoff"] << 20))
        asm("s_addc_u32 s7, s7, 0")
    srd(asm, SWS, "s6", "s7", WS_REC)
    srd(asm, SDBG, "s4", "s5", 256)
    asm("s_cmp_ge_u32 %s, 4" % s(sW))
    asm("s_cbranch_scc1 %s_p1h" % N)
    ACC = 0; FX = [128, 144]; FW = [160, 168]
    vXA, vWA = 176, 180
    vL, vT, vU, vV = 194, 195, 196, 197
    vSO = 198; TMP = 200; TE = 216; vN = 220
    sSTG, sDELTA, sRBUF, sNEG = 52, 53, 54, 55
    sTN, sGG, sSO = 56, 57, 58
    sC0, sC1 = 60, 62
    asm("s_or_b32 %s, s2, %s" % (s(sT0), s(sW)))
    asm("s_cmp_lg_u32 %s, 0" % s(sT0))
    asm("s_cbranch_scc1 %s_nonon" % N)
    asm("s_memrealtime %s" % s(sNON, 2))
    asm("s_waitcnt lgkmcnt(0)")
    asm("s_or_b32 %s, %s, 1" % (s(sNON), s(sNON)))
    asm("v_mov_b32 v2, %s" % s(sNON))
    asm("v_mov_b32 v3, %s" % s(sNON + 1))
    asm("v_mov_b32 v4, 0")
    asm("s_mov_b64 exec, 1")
    asm("buffer_store_dwordx2 v[2:3], v4, %s, 0 offen sc1" % s(SDBG, 4))
    asm("s_mov_b64 exec, -1")
    asm.label("%s_nonon" % N)
    TLBW = opts.get("tlbw", 0)
    if TLBW:
        asm("s_cmp_lg_u32 %s, 2" % s(sW))
        asm("s_cbranch_scc1 %s_notlb" % N)
        asm("s_load_dwordx2 s[4:5], s[0:1], 48")
        lane(5)
        asm("v_lshlrev_b32 v5, %d, v5" % TLBW)
        asm("buffer_load_dword v223, v5, %s, 0 offen sc1" % s(SWS, 4))
        asm("s_waitcnt lgkmcnt(0)")
        srd(asm, SB_, "s4", "s5", 2048 * 2560)
        asm("buffer_load_dword v223, v5, %s, 0 offen sc1" % s(SB_, 4))
        asm("v_mov_b32 v5, 128")
        asm("buffer_load_dword v223, v5, %s, 0 offen sc1" % s(SDBG, 4))
        asm.label("%s_notlb" % N)
    asm("s_cmp_lg_u32 %s, 0" % s(sW))
    asm("s_cbranch_scc1 %s_noinit" % N)
    asm("s_lshl_b32 %s, %s, 3" % (s(sT0), s(sXCC)))
    asm("s_lshl_b64 s[4:5], 1, %s" % s(sT0))
    asm("s_lshl_b32 %s, %s, 3" % (s(sT0), s(sP8)))
    asm("s_add_u32 %s, %s, 64" % (s(sT0), s(sT0)))
    asm("v_mov_b32 v2, s4")
    asm("v_mov_b32 v3, s5")
    asm("v_mov_b32 v4, %s" % s(sT0))
    if not D1:
        asm("s_mov_b64 exec, 1")
        asm("buffer_atomic_add_x2 v[2:3], v4, %s, 0 offen" % s(SDBG, 4))
        asm("s_mov_b64 exec, -1")
    lane(5)
    asm("v_lshlrev_b32 v5, 2, v5")
    asm("v_add_u32 v5, 0x%x, v5" % L_SYNC)
    asm("v_mov_b32 v6, 0")
    asm("s_mov_b32 exec_lo, 0xffff")
    asm("s_mov_b32 exec_hi, 0")
    asm("ds_write_b32 v5, v6")
    asm("s_mov_b64 exec, -1")
    asm("s_waitcnt lgkmcnt(0)")
    if opts.get("ft", 0):
        lane(5)
        asm("s_lshl_b32 %s, %s, 2" % (s(sT0), s(sP8)))
        asm("s_and_b32 %s, %s, 3" % (s(sT1), s(sSLOT)))
        asm("s_add_u32 %s, %s, %s" % (s(sT0), s(sT0), s(sT1)))
        asm("s_lshl_b32 %s, %s, 7" % (s(sT0), s(sT0)))
        asm("s_add_u32 %s, %s, %d" % (s(sT0), s(sT0), F2))
        asm("s_lshr_b32 %s, %s, 2" % (s(sT1), s(sP8)))
        asm("s_lshl_b32 %s, %s, 3" % (s(sT1), s(sT1)))
        asm("s_and_b32 %s, %s, 3" % (s(sT2), s(sP8)))
        asm("s_lshl_b32 %s, %s, 1" % (s(sT2), s(sT2)))
        asm("s_lshr_b32 %s, %s, 4" % (s(sT3), s(sSLOT)))
        asm("s_add_u32 %s, %s, %s" % (s(sT2), s(sT2), s(sT3)))
        asm("s_add_u32 %s, %s, %s" % (s(sT1), s(sT1), s(sT2)))
        asm("s_lshl_b32 %s, %s, 8" % (s(sT1), s(sT1)))
        asm("s_add_u32 %s, %s, %d" % (s(sT1), s(sT1), F3 - 128))
        asm("v_lshlrev_b32 v6, 3, v5")
        asm("v_add_u32 v7, %s, v6" % s(sT0))
        asm("v_add_u32 v6, %s, v6" % s(sT1))
        asm("v_cmp_gt_u32 vcc, 16, v5")
        asm("s_nop 1")
        asm("v_cndmask_b32 v6, v6, v7, vcc")
        asm("s_mov_b32 exec_lo, -1")
        asm("s_mov_b32 exec_hi, 0xffff")
        asm("buffer_load_dword v223, v6, %s, 0 offen sc1" % s(SWS, 4))
        asm("s_mov_b64 exec, -1")
    asm.label("%s_noinit" % N)
    asm("s_cmp_ge_u32 %s, 30" % s(sSLOT))
    asm("s_cbranch_scc1 %s_p2c" % N)
    lane(vL)
    asm.c("X frag read addr")
    asm("v_and_b32 %s, 31, %s" % (v(vT), v(vL)))
    asm("s_lshl_b32 %s, %s, 7" % (s(sT0), s(sWM)))
    asm("v_add_u32 %s, %s, %s" % (v(vU), s(sT0), v(vT)))
    asm("v_lshlrev_b32 %s, 7, %s" % (v(vU), v(vU)))
    asm("v_bfe_u32 %s, %s, 1, 3" % (v(vT), v(vT)))
    asm("v_lshrrev_b32 %s, 5, %s" % (v(vV), v(vL)))
    for ks in range(4):
        asm("v_add_u32 %s, %d, %s" % (v(TMP), 2 * ks, v(vV)))
        asm("v_xor_b32 %s, %s, %s" % (v(TMP), v(TMP), v(vT)))
        asm("v_lshl_add_u32 %s, %s, 4, %s" % (v(vXA + ks), v(TMP), v(vU)))
    asm.c("W frag read addr")
    asm("v_bfe_u32 %s, %s, 2, 2" % (v(vT), v(vL)))
    asm("v_lshrrev_b32 %s, 5, %s" % (v(vU), v(vL)))
    asm("v_lshl_add_u32 %s, %s, 3, %s" % (v(vU), v(vU), v(vT)))
    asm("v_lshlrev_b32 %s, 8, %s" % (v(vU), v(vU)))
    asm("v_add_u32 %s, 32768, %s" % (v(vU), v(vU)))
    asm("v_and_b32 %s, 1, %s" % (v(vV), v(vL)))
    asm("v_lshl_add_u32 %s, %s, 3, %s" % (v(vU), v(vV), v(vU)))
    asm("v_bfe_u32 %s, %s, 4, 1" % (v(vV), v(vL)))
    asm("v_lshlrev_b32 %s, 1, %s" % (v(vV), v(vV)))
    asm("v_bfe_u32 %s, %s, 1, 1" % (v(TMP), v(vL)))
    asm("v_add_u32 %s, %s, %s" % (v(vV), v(vV), v(TMP)))
    asm("s_lshl_b32 %s, %s, 3" % (s(sT0), s(sWN)))
    asm("v_add_u32 %s, %s, %s" % (v(vV), s(sT0), v(vV)))
    asm("v_lshlrev_b32 %s, 2, %s" % (v(vT), v(vT)))
    for tn in range(2):
        asm("v_add_u32 %s, %d, %s" % (v(TMP), 4 * tn, v(vV)))
        asm("v_xor_b32 %s, %s, %s" % (v(TMP), v(TMP), v(vT)))
        asm("v_lshl_add_u32 %s, %s, 4, %s" % (v(vWA + tn), v(TMP), v(vU)))
    for i in range(128):
        asm("v_mov_b32 %s, 0" % v(ACC + i))
    asm("s_mul_i32 %s, %s, 3" % (s(sT0), s(sBR)))
    asm("s_add_u32 %s, %s, %s" % (s(sT0), s(sT0), s(sPART)))
    asm("s_mul_i32 %s, %s, %d" % (s(sT0), s(sT0), REG))
    asm("s_add_u32 s6, s6, %s" % s(sT0))
    asm("s_addc_u32 s7, s7, 0")
    SO = SA_
    srd(asm, SO, "s6", "s7", REG)
    def rdX(st_, tm, ks):
        asm("ds_read_b128 %s, %s offset:%d" % (v(FX[st_] + 4 * tm, 4), v(vXA + ks), tm * 4096))
    def rdW(st_, tn, a_, ks):
        asm("ds_read_b64_tr_b16 %s, %s offset:%d" % (v(FW[st_] + 4 * tn + 2 * a_, 2), v(vWA + tn), ks * 4096 + a_ * 1024))
    def reads(st_, ks):
        return [lambda: rdW(st_, 0, 0, ks), lambda: rdW(st_, 0, 1, ks), lambda: rdX(st_, 0, ks), lambda: rdX(st_, 1, ks),
                lambda: rdW(st_, 1, 0, ks), lambda: rdW(st_, 1, 1, ks), lambda: rdX(st_, 2, ks), lambda: rdX(st_, 3, ks)]
    MORD = [(0, 0), (1, 0), (0, 1), (1, 1), (2, 0), (2, 1), (3, 0), (3, 1)]
    def mfma(orient, st_, tm, tn):
        acc = v(ACC + (tm * 2 + tn) * 16, 16)
        x = v(FX[st_] + 4 * tm, 4); w = v(FW[st_] + 4 * tn, 4)
        if orient == "T": asm("v_mfma_f32_32x32x16_bf16 %s, %s, %s, %s" % (acc, w, x, acc))
        else: asm("v_mfma_f32_32x32x16_bf16 %s, %s, %s, %s" % (acc, x, w, acc))
    PF = opts.get("pf", 0)
    if PF:
        nst_ = 10 - PF
        per = (1024 * nst_ + 119) // 120
        assert per <= 64
        asm("s_lshl_b32 %s, %s, 2" % (s(sT0), s(sSLOT)))
        asm("s_add_u32 %s, %s, %s" % (s(sT0), s(sT0), s(sW4)))
        asm("s_mul_i32 %s, %s, %d" % (s(sT0), s(sT0), per))
        asm("v_add_u32 %s, %s, %s" % (v(vT), s(sT0), v(vL)))
        asm("v_lshrrev_b32 %s, 10, %s" % (v(vU), v(vT)))
        asm("v_and_b32 %s, 1023, %s" % (v(vV), v(vT)))
        asm("s_lshr_b32 %s, %s, 1" % (s(sT1), s(sP8)))
        asm("s_and_b32 %s, %s, 1" % (s(sT1), s(sT1)))
        asm("s_lshl_b32 %s, %s, 10" % (s(sT1), s(sT1)))
        asm("v_add_u32 %s, %s, %s" % (v(vV), s(sT1), v(vV)))
        asm("v_mul_u32_u24 %s, 1280, %s" % (v(vV), v(vV)))
        asm("v_lshl_add_u32 %s, %s, 7, %s" % (v(vV), v(vU), v(vV)))
        asm("v_add_u32 %s, %d, %s" % (v(vV), PF * 128, v(vV)))
        asm("v_lshrrev_b32 %s, 4, %s" % (v(vU), v(vT)))
        asm("v_add_u32 %s, %d, %s" % (v(vU), 64 * PF, v(vU)))
        asm("v_mul_u32_u24 %s, 3840, %s" % (v(vU), v(vU)))
        asm("v_and_b32 %s, 15, %s" % (v(TMP), v(vT)))
        asm("v_lshl_add_u32 %s, %s, 7, %s" % (v(vU), v(TMP), v(vU)))
        asm("s_and_b32 %s, %s, 1" % (s(sT1), s(sP8)))
        asm("s_mul_i32 %s, %s, %d" % (s(sT1), s(sT1), 7 * 256))
        asm("v_add_u32 %s, %s, %s" % (v(vU), s(sT1), v(vU)))
        asm("v_mov_b32 %s, 0x%x" % (v(TMP), OOB))
        asm("v_cmp_gt_u32 vcc, %d, %s" % (1024 * nst_, v(vT)))
        asm("v_cmp_gt_u32 %s, %d, %s" % (s(sPC, 2), per, v(vL)))
        asm("s_nop 1")
        asm("s_and_b64 vcc, vcc, %s" % s(sPC, 2))
        asm("s_nop 1")
        asm("v_cndmask_b32 %s, %s, %s, vcc" % (v(vV), v(TMP), v(vV)))
        asm("v_cndmask_b32 %s, %s, %s, vcc" % (v(vU), v(TMP), v(vU)))
        asm("s_cmp_eq_u32 %s, 0" % s(sBR))
        asm("s_cselect_b32 s4, s36, s40")
        asm("s_cselect_b32 s5, s37, s41")
        srd(asm, SB_, "s4", "s5", 2048 * 1280)
        asm("buffer_load_dword v223, %s, %s, 0 offen" % (v(vV), s(SB_, 4)))
        asm("s_cmp_eq_u32 %s, 0" % s(sBR))
        asm("s_cselect_b32 s4, s38, s42")
        asm("s_cselect_b32 s5, s39, s43")
        srd(asm, SB_, "s4", "s5", 640 * 3840)
        asm("buffer_load_dword v223, %s, %s, 0 offen" % (v(vU), s(SB_, 4)))
    asm("s_lshl_b32 %s, %s, 3" % (s(sT0), s(sRB)))
    asm("s_lshl_b32 %s, %s, 2" % (s(sT1), s(sWM)))
    asm("s_add_u32 %s, %s, %s" % (s(sT3), s(sT0), s(sT1)))
    sVAR = 59
    asm("s_mov_b32 %s, %s" % (s(sVAR), s(sPART)))
    asm("s_cmp_eq_u32 %s, 0" % s(sBR))
    asm("s_cbranch_scc1 %s_varok" % N)
    asm("s_cmp_eq_u32 %s, 2" % s(sPART))
    asm("s_cselect_b32 %s, 2, 3" % s(sVAR))
    asm.label("%s_varok" % N)
    asm("s_cmp_eq_u32 %s, 0" % s(sVAR))
    asm("s_cbranch_scc1 %s_adrT" % N)
    asm("s_cmp_eq_u32 %s, 3" % s(sVAR))
    asm("s_cbranch_scc1 %s_adrT" % N)
    asm("s_mul_i32 %s, %s, 40960" % (s(sT0), s(sT3)))
    asm("s_lshl_b32 %s, %s, 11" % (s(sT1), s(sCBP)))
    asm("s_add_u32 %s, %s, %s" % (s(sT0), s(sT0), s(sT1)))
    asm("s_lshl_b32 %s, %s, 10" % (s(sT1), s(sWN)))
    asm("s_add_u32 %s, %s, %s" % (s(sT0), s(sT0), s(sT1)))
    asm("v_lshrrev_b32 %s, 5, %s" % (v(vT), v(vL)))
    asm("v_mul_u32_u24 %s, 10240, %s" % (v(vT), v(vT)))
    asm("v_and_b32 %s, 31, %s" % (v(vU), v(vL)))
    asm("v_lshl_add_u32 %s, %s, 4, %s" % (v(vSO), v(vU), v(vT)))
    asm("v_add_u32 %s, %s, %s" % (v(vSO), s(sT0), v(vSO)))
    asm("s_movk_i32 %s, 512" % s(sTN))
    asm("s_movk_i32 %s, 20480" % s(sGG))
    asm("s_branch %s_adrok" % N)
    asm.label("%s_adrT" % N)
    asm("s_mul_i32 %s, %s, 40" % (s(sT0), s(sT3)))
    asm("s_lshl_b32 %s, %s, 3" % (s(sT1), s(sCBP)))
    asm("s_add_u32 %s, %s, %s" % (s(sT0), s(sT0), s(sT1)))
    asm("s_lshl_b32 %s, %s, 2" % (s(sT1), s(sWN)))
    asm("s_add_u32 %s, %s, %s" % (s(sT0), s(sT0), s(sT1)))
    asm("s_lshl_b32 %s, %s, 10" % (s(sT0), s(sT0)))
    asm("v_lshlrev_b32 %s, 4, %s" % (v(vSO), v(vL)))
    asm("v_add_u32 %s, %s, %s" % (v(vSO), s(sT0), v(vSO)))
    asm("s_movk_i32 %s, 2048" % s(sTN))
    asm("s_movk_i32 %s, 1024" % s(sGG))
    asm.label("%s_adrok" % N)
    asm("s_cmp_lt_u32 %s, 2" % s(sVAR))
    asm("s_cselect_b32 %s, %s, 1.0" % (s(sC0), fhex(LOG2E)))
    asm("s_cmp_eq_u32 %s, 3" % s(sVAR))
    asm("s_cbranch_scc0 %s_c0ok" % N)
    asm("s_cmp_eq_u32 %s, 0" % s(sPART))
    asm("s_cselect_b32 %s, %s, 1.0" % (s(sC0), fhex(QSCALE)))
    asm.label("%s_c0ok" % N)
    asm("s_mov_b32 %s, %s" % (s(sC0 + 1), s(sC0)))
    asm("s_mov_b32 %s, %s" % (s(sC1), fhex(1e-6)))
    asm("s_mov_b32 %s, 0" % s(sSTG))
    asm("s_mov_b32 %s, 0" % s(sRBUF))
    asm("s_mov_b32 %s, 0x%x" % (s(sNEG), (-2 * 49152) & 0xffffffff))
    asm("s_barrier")
    st(1)
    for f in reads(0, 0): f()
    asm("s_cmp_eq_u32 %s, 0" % s(sVAR))
    asm("s_cbranch_scc1 %s_loopT" % N)
    asm("s_cmp_eq_u32 %s, 3" % s(sVAR))
    asm("s_cbranch_scc0 %s_loopF" % N)
    def loop(orient):
        L = "%s_loop%s" % (N, orient)
        asm(".p2align 4")
        asm.label(L)
        for ks in range(4):
            st_ = ks & 1; nst_ = st_ ^ 1
            if ks == 3:
                asm("s_cbranch_scc1 %s_final%s" % (N, orient))
            asm("s_waitcnt lgkmcnt(0)")
            if ks < 3:
                rs = reads(nst_, ks + 1)
                for m in range(8):
                    mfma(orient, st_, *MORD[m])
                    if m < 4:
                        rs[2 * m](); rs[2 * m + 1]()
                    if ks == 2 and m == 4:
                        asm("s_add_u32 %s, %s, 1" % (s(sRBUF), s(sRBUF)))
                        asm("s_cmp_eq_u32 %s, 3" % s(sRBUF))
                        asm("s_cselect_b32 %s, 0, %s" % (s(sRBUF), s(sRBUF)))
                        asm("s_cselect_b32 %s, %s, 49152" % (s(sDELTA), s(sNEG)))
                    if ks == 2 and m == 5:
                        for k in range(3): asm("v_add_u32 %s, %s, %s" % (v(vXA + k), s(sDELTA), v(vXA + k)))
                    if ks == 2 and m == 6:
                        asm("v_add_u32 %s, %s, %s" % (v(vXA + 3), s(sDELTA), v(vXA + 3)))
                        for k in range(2): asm("v_add_u32 %s, %s, %s" % (v(vWA + k), s(sDELTA), v(vWA + k)))
                        asm("s_add_u32 %s, %s, 1" % (s(sSTG), s(sSTG)))
                        asm("s_cmp_eq_u32 %s, 9" % s(sSTG))
            else:
                mfma(orient, st_, *MORD[0])
                mfma(orient, st_, *MORD[1])
                asm("s_barrier")
                rs = reads(nst_, 0)
                mfma(orient, st_, *MORD[2])
                rs[0](); rs[1](); rs[2]()
                mfma(orient, st_, *MORD[3])
                rs[3](); rs[4](); rs[5]()
                mfma(orient, st_, *MORD[4])
                rs[6](); rs[7]()
                mfma(orient, st_, *MORD[5])
                mfma(orient, st_, *MORD[6])
                mfma(orient, st_, *MORD[7])
        asm("s_branch %s" % L)
    loop("T")
    loop("F")
    WALL = 224
    XS = [FX[0], FX[1]]
    def epi_lines(kind, q):
        tm, tn = q >> 1, q & 1
        b = ACC + q * 16
        tb_ = TMP + 8 * (q & 1)
        L_ = []
        if kind == "phi":
            for qq in range(4):
                r0 = b + 4 * qq
                L_.append("v_pk_mul_f32 %s, %s, %s" % (v(TE, 2), v(r0, 2), s(sC0, 2)))
                L_.append("v_pk_mul_f32 %s, %s, %s" % (v(TE + 2, 2), v(r0 + 2, 2), s(sC0, 2)))
                for k in range(4): L_.append("v_exp_f32_e64 %s, %s clamp" % (v(TE + k), v(TE + k)))
                for k in range(4): L_.append("v_max_f32 %s, %s, %s" % (v(r0 + k), s(sC1), v(r0 + k)))
                L_.append("v_pk_add_f32 %s, %s, %s" % (v(r0, 2), v(r0, 2), v(TE, 2)))
                L_.append("v_pk_add_f32 %s, %s, %s" % (v(r0 + 2, 2), v(r0 + 2, 2), v(TE + 2, 2)))
                L_.append("v_cvt_pk_bf16_f32 %s, %s, %s" % (v(tb_ + 2 * qq), v(r0), v(r0 + 1)))
                L_.append("v_cvt_pk_bf16_f32 %s, %s, %s" % (v(tb_ + 2 * qq + 1), v(r0 + 2), v(r0 + 3)))
        else:
            if kind == "scale":
                for p_ in range(8): L_.append("v_pk_mul_f32 %s, %s, %s" % (v(b + 2 * p_, 2), v(b + 2 * p_, 2), s(sC0, 2)))
            for p_ in range(8): L_.append("v_cvt_pk_bf16_f32 %s, %s, %s" % (v(tb_ + p_), v(b + 2 * p_), v(b + 2 * p_ + 1)))
        L_.append("s_mul_i32 %s, %s, %d" % (s(sSO), s(sTN), tn))
        if tm: L_.append("s_add_u32 %s, %s, %d" % (s(sSO), s(sSO), tm * 40960))
        L_.append("buffer_store_dwordx4 %s, %s, %s, %s offen%s" % (v(tb_, 4), v(vSO), s(SO, 4), s(sSO), SC))
        L_.append("s_add_u32 %s, %s, %s" % (s(sSO), s(sSO), s(sGG)))
        L_.append("buffer_store_dwordx4 %s, %s, %s, %s offen%s" % (v(tb_ + 4, 4), v(vSO), s(SO, 4), s(sSO), SC))
        return L_
    def final(orient, kind, label):
        asm.label(label)
        sync_issue(vN, vN + 2)
        asm("s_waitcnt lgkmcnt(0)")
        mfma(orient, 1, *MORD[0])
        mfma(orient, 1, *MORD[1])
        asm("s_barrier")
        rd = []
        for ks in range(4):
            rd.append("ds_read_b128 %s, %s" % (v(XS[0] + 4 * ks, 4), v(vXA + ks)))
            for a_ in range(2):
                rd.append("ds_read_b64_tr_b16 %s, %s offset:%d" % (v(WALL + ks * 4 + 2 * a_, 2), v(vWA), ks * 4096 + a_ * 1024))
        for ks in range(4):
            for a_ in range(2):
                rd.append("ds_read_b64_tr_b16 %s, %s offset:%d" % (v(WALL + (4 + ks) * 4 + 2 * a_, 2), v(vWA + 1), ks * 4096 + a_ * 1024))
        per = [4, 4, 3, 3, 3, 3]
        pos = 0
        for m in range(2, 8):
            mfma(orient, 1, *MORD[m])
            for k in range(per[m - 2]):
                asm(rd[pos]); pos += 1
        assert pos == len(rd) == 20
        for q in range(8):
            tm, tn = q >> 1, q & 1
            xs = XS[tm & 1]
            if q == 0:
                asm("s_waitcnt lgkmcnt(8)")
            elif q == 1:
                asm("s_waitcnt lgkmcnt(4)")
            elif tn == 0:
                asm("s_waitcnt lgkmcnt(0)")
                if tm == 3: asm("s_barrier")
            ep = epi_lines(kind, q - 2) if q >= 2 else []
            if q == 2: ep = ["s_nop 7"] + ep
            chunk = (len(ep) + 3) // 4
            acc = v(ACC + q * 16, 16)
            for ks in range(4):
                x = v(xs + 4 * ks, 4); w = v(WALL + (tn * 4 + ks) * 4, 4)
                if orient == "T": asm("v_mfma_f32_32x32x16_bf16 %s, %s, %s, %s" % (acc, w, x, acc))
                else: asm("v_mfma_f32_32x32x16_bf16 %s, %s, %s, %s" % (acc, x, w, acc))
                if tn == 0 and tm < 3:
                    asm("ds_read_b128 %s, %s offset:%d" % (v(XS[(tm + 1) & 1] + 4 * ks, 4), v(vXA + ks), (tm + 1) * 4096))
                for ln in ep[ks * chunk:(ks + 1) * chunk]: asm(ln)
        st(2)
        for ln in epi_lines(kind, 6): asm(ln)
        for ln in epi_lines(kind, 7): asm(ln)
        asm("s_branch %s_fin1" % N)
    asm.label("%s_finalT" % N)
    asm("s_cmp_eq_u32 %s, 0" % s(sVAR))
    asm("s_cbranch_scc0 %s_fin_ts" % N)
    final("T", "phi", "%s_fin_tp" % N)
    final("T", "scale", "%s_fin_ts" % N)
    asm.label("%s_finalF" % N)
    asm("s_cmp_eq_u32 %s, 1" % s(sVAR))
    asm("s_cbranch_scc0 %s_fin_fn" % N)
    final("F", "phi", "%s_fin_fp" % N)
    final("F", "plain", "%s_fin_fn" % N)
    asm.label("%s_fin1" % N)
    asm("v_mov_b32 %s, 0x%x" % (v(vT), W_ISS))
    asm("v_mov_b32 %s, 1" % v(vU))
    asm("s_mov_b64 exec, 1")
    asm("ds_add_u32 %s, %s" % (v(vT), v(vU)))
    asm("s_mov_b64 exec, -1")
    st(3)
    get_sync(vN, vN + 2, preissued=True)
    release()
    asm("s_lshl_b32 %s, %s, 3" % (s(sT1), s(sBR)))
    asm("s_add_u32 %s, %s, %s" % (s(sT1), s(sT1), s(sRB)))
    asm("s_lshl_b32 %s, %s, 4" % (s(sT1), s(sT1)))
    asm("s_add_u32 %s, %s, %s" % (s(sT1), s(sT1), s(sCB)))
    asm("s_lshl_b32 %s, %s, 3" % (s(sT1), s(sT1)))
    asm("s_add_u32 %s, %s, %d" % (s(sT1), s(sT1), F1))
    lds_arrive(W_CNT1, 4, vN + 2, vN, s(sT1), replicas=REPL)
    st(4)
    asm("s_branch %s_p2setup" % N)
    asm.label("%s_p2c" % N)
    asm("s_barrier")
    get_sync(220, 222)
    asm("s_branch %s_p2setup" % N)

    asm.label("%s_p1h" % N)
    hL, hT, hU, hV = 2, 3, 4, 5
    vDX, vDW, hTMP = 8, 16, 20
    sXOFF, sWOFF, sM0X, sM0W, sDBUF, sHS = 52, 53, 54, 55, 56, 57
    SX, SWD = SA_, SB_
    asm("s_cmp_lt_u32 %s, 30" % s(sSLOT))
    asm("s_cbranch_scc1 %s_p1h2" % N)
    asm("s_barrier")
    asm("s_branch %s_p2h" % N)
    asm.label("%s_p1h2" % N)
    lane(hL)
    asm("v_lshrrev_b32 %s, 3, %s" % (v(hT), v(hL)))
    asm("s_lshl_b32 %s, %s, 6" % (s(sT0), s(sW4)))
    asm("v_add_u32 %s, %s, %s" % (v(hT), s(sT0), v(hT)))
    asm("s_movk_i32 %s, 1280" % s(sT1))
    asm("v_mul_lo_u32 %s, %s, %s" % (v(hT), v(hT), s(sT1)))
    asm("v_lshrrev_b32 %s, 4, %s" % (v(hU), v(hL)))
    asm("v_and_b32 %s, 7, %s" % (v(hV), v(hL)))
    for par in range(2):
        if par == 1: asm("v_add_u32 %s, 4, %s" % (v(hU), v(hU)))
        asm("v_xor_b32 %s, %s, %s" % (v(hTMP + par), v(hV), v(hU)))
        asm("v_lshl_add_u32 %s, %s, 4, %s" % (v(hTMP + par), v(hTMP + par), v(hT)))
    for i in range(8):
        asm("v_add_u32 %s, %d, %s" % (v(vDX + i), i * 8 * 1280 - (i & 3) * 1024, v(hTMP + (i & 1))))
    asm("v_lshrrev_b32 %s, 4, %s" % (v(hU), v(hL)))
    asm("s_lshl_b32 %s, %s, 4" % (s(sT0), s(sW4)))
    asm("v_add_u32 %s, %s, %s" % (v(hT), s(sT0), v(hU)))
    asm("s_movk_i32 %s, 3840" % s(sT1))
    asm("v_mul_lo_u32 %s, %s, %s" % (v(hT), v(hT), s(sT1)))
    asm("v_lshlrev_b32 %s, 2, %s" % (v(hU), v(hU)))
    asm("v_and_b32 %s, 15, %s" % (v(hV), v(hL)))
    asm("v_xor_b32 %s, %s, %s" % (v(hV), v(hV), v(hU)))
    asm("v_lshl_add_u32 %s, %s, 4, %s" % (v(hT), v(hV), v(hT)))
    for i in range(4):
        asm("v_add_u32 %s, %d, %s" % (v(vDW + i), i * 4 * 3840 - i * 1024, v(hT)))
    asm("s_cmp_eq_u32 %s, 0" % s(sBR))
    asm("s_cselect_b32 s36, s36, s40")
    asm("s_cselect_b32 s37, s37, s41")
    asm("s_cselect_b32 s38, s38, s42")
    asm("s_cselect_b32 s39, s39, s43")
    asm("s_mul_i32 %s, %s, %d" % (s(sT0), s(sRB), 256 * 1280))
    asm("s_add_u32 s36, s36, %s" % s(sT0))
    asm("s_addc_u32 s37, s37, 0")
    asm("s_lshl_b32 %s, %s, 8" % (s(sT0), s(sCB)))
    asm("s_add_u32 s38, s38, %s" % s(sT0))
    asm("s_addc_u32 s39, s39, 0")
    asm("s_sub_u32 %s, %d, %s" % (s(sT1), 640 * 3840, s(sT0)))
    srd(asm, SX, "s36", "s37", 256 * 1280)
    srd(asm, SWD, "s38", "s39", s(sT1))
    def dma_stage():
        asm("s_lshl_b32 %s, %s, 13" % (s(sT0), s(sW4)))
        asm("s_add_u32 %s, %s, %s" % (s(sM0X), s(sDBUF), s(sT0)))
        asm("s_lshl_b32 %s, %s, 12" % (s(sT0), s(sW4)))
        asm("s_add_u32 %s, %s, %s" % (s(sT0), s(sT0), s(sDBUF)))
        asm("s_add_u32 %s, %s, 32768" % (s(sM0W), s(sT0)))
        for idx in range(8):
            if idx == 0:
                asm("s_mov_b32 m0, %s" % s(sM0X)); asm("s_nop 0")
            if idx == 4:
                asm("s_add_u32 m0, %s, 4096" % s(sM0X)); asm("s_nop 0")
            asm("buffer_load_dwordx4 %s, %s, %s offen offset:%d lds" % (v(vDX + idx), s(SX, 4), s(sXOFF), (idx & 3) * 1024))
        asm("s_mov_b32 m0, %s" % s(sM0W)); asm("s_nop 0")
        for j in range(4):
            asm("buffer_load_dwordx4 %s, %s, %s offen offset:%d lds" % (v(vDW + j), s(SWD, 4), s(sWOFF), j * 1024))
        asm("s_add_u32 %s, %s, 128" % (s(sXOFF), s(sXOFF)))
        asm("s_add_u32 %s, %s, %d" % (s(sWOFF), s(sWOFF), 64 * 3840))
        asm("s_add_u32 %s, %s, 49152" % (s(sDBUF), s(sDBUF)))
        asm("s_cmp_ge_u32 %s, %d" % (s(sDBUF), 3 * 49152))
        asm("s_cselect_b32 %s, 0, %s" % (s(sDBUF), s(sDBUF)))
    WARM = opts.get("warm", 3)
    if WARM:
        asm("s_load_dwordx2 s[4:5], s[0:1], 16")
        asm("s_load_dwordx2 s[6:7], s[0:1], 40")
        asm("s_lshl_b32 s58, %s, 2" % s(sSLOT))
        asm("s_add_u32 s58, s58, %s" % s(sW4))
        asm("s_mul_i32 s58, s58, %d" % (54 * 128))
        asm("v_lshlrev_b32 v6, 7, %s" % v(hL))
    asm("s_mov_b32 %s, 0" % s(sXOFF))
    asm("s_mov_b32 %s, 0" % s(sWOFF))
    asm("s_mov_b32 %s, 0" % s(sDBUF))
    asm("s_mov_b32 %s, 0" % s(sHS))
    pro = opts.get("pro", 2)
    Lp = "%s_hpro" % N
    asm.label(Lp)
    dma_stage()
    asm("s_add_u32 %s, %s, 1" % (s(sHS), s(sHS)))
    asm("s_cmp_eq_u32 %s, %d" % (s(sHS), pro))
    asm("s_cbranch_scc0 %s_hpro_n" % N)
    st(3)
    asm("s_waitcnt vmcnt(%d)" % (12 * (pro - 1)))
    st(1)
    asm("s_barrier")
    asm.label("%s_hpro_n" % N)
    asm("s_cmp_lt_u32 %s, 3" % s(sHS))
    asm("s_cbranch_scc1 %s" % Lp)
    asm("s_mov_b32 %s, 0" % s(sHS))
    Lh = "%s_hloop" % N
    asm.label(Lh)
    asm("s_cmp_lt_u32 %s, 8" % s(sHS))
    asm("s_cbranch_scc1 %s_hw12" % N)
    asm("s_waitcnt vmcnt(0)")
    asm("s_branch %s_hw" % N)
    asm.label("%s_hw12" % N)
    asm("s_waitcnt vmcnt(12)")
    asm.label("%s_hw" % N)
    asm("s_barrier")
    asm("s_cmp_lt_u32 %s, 7" % s(sHS))
    asm("s_cbranch_scc0 %s_hnodma" % N)
    dma_stage()
    if WARM:
        asm("s_cmp_eq_u32 %s, %d" % (s(sHS), WARM - 1))
        asm("s_cbranch_scc0 %s_hnodma" % N)
        asm("s_waitcnt lgkmcnt(0)")
        asm("s_cmp_lt_u32 %s, 4" % s(sP8))
        asm("s_cselect_b32 s4, s4, s6")
        asm("s_cselect_b32 s5, s5, s7")
        srd(asm, 60, "s4", "s5", 640 * 1280)
        asm("s_mov_b32 exec_lo, -1")
        asm("s_mov_b32 exec_hi, 0x3fffff")
        asm("buffer_load_dword v7, v6, s[60:63], s58 offen")
        asm("s_mov_b64 exec, -1")
        if opts.get("ft", 0):
            asm("s_cmp_eq_u32 %s, 0" % s(sW4))
            asm("s_cbranch_scc0 %s_hnodma" % N)
            asm("s_lshl_b32 %s, %s, 2" % (s(sT0), s(sP8)))
            asm("s_and_b32 %s, %s, 3" % (s(sT1), s(sSLOT)))
            asm("s_add_u32 %s, %s, %s" % (s(sT0), s(sT0), s(sT1)))
            asm("s_and_b32 %s, %s, %d" % (s(sT0), s(sT0) if opts.get("repl", 8) > 8 else s(sP8), opts.get("repl", 8) - 1))
            asm("s_lshl_b32 %s, %s, 11" % (s(sT0), s(sT0)))
            asm("s_add_u32 %s, %s, %d" % (s(sT0), s(sT0), F1))
            asm("s_lshr_b32 %s, %s, 2" % (s(sT1), s(sSLOT)))
            asm("s_lshl_b32 %s, %s, 7" % (s(sT1), s(sT1)))
            asm("s_add_u32 %s, %s, %s" % (s(sT0), s(sT0), s(sT1)))
            asm("v_lshlrev_b32 v23, 3, %s" % v(hL))
            asm("v_add_u32 v22, %s, v23" % s(sT0))
            asm("v_subrev_u32 v22, 256, v22")
            asm("s_add_u32 %s, %s, %d" % (s(sT0), s(sT0), 7 * 128))
            asm("v_add_u32 v23, %s, v23" % s(sT0))
            asm("v_cmp_gt_u32 vcc, 32, %s" % v(hL))
            asm("s_nop 1")
            asm("v_cndmask_b32 v23, v22, v23, vcc")
            asm("s_mov_b32 exec_lo, -1")
            asm("s_mov_b32 exec_hi, 0xffff")
            asm("buffer_load_dword v24, v23, %s, 0 offen sc1" % s(SWS, 4))
            asm("s_mov_b64 exec, -1")
    asm.label("%s_hnodma" % N)
    asm("s_add_u32 %s, %s, 1" % (s(sHS), s(sHS)))
    asm("s_cmp_lt_u32 %s, 10" % s(sHS))
    asm("s_cbranch_scc1 %s" % Lh)
    asm.label("%s_p2h" % N)
    st(2)
    sBR3, sRB3, sCB3 = 64, 65, 66
    def decode3():
        if not D1:
            asm("s_lshr_b32 %s, %s, 4" % (s(sBR3), s(sSLOT)))
            asm("s_bfe_u32 %s, %s, 0x10003" % (s(sRB3), s(sSLOT)))
            asm("s_lshl_b32 %s, %s, 1" % (s(sT0), s(sP8)))
            asm("s_add_u32 %s, %s, %s" % (s(sRB3), s(sRB3), s(sT0)))
            asm("s_and_b32 %s, %s, 7" % (s(sCB3), s(sSLOT)))
        else:
            asm("s_lshr_b32 %s, %s, 2" % (s(sBR3), s(sP8)))
            asm("s_and_b32 %s, %s, 3" % (s(sT0), s(sP8)))
            asm("s_lshl_b32 %s, %s, 2" % (s(sT0), s(sT0)))
            asm("s_lshr_b32 %s, %s, 3" % (s(sRB3), s(sSLOT)))
            asm("s_add_u32 %s, %s, %s" % (s(sRB3), s(sRB3), s(sT0)))
            asm("s_and_b32 %s, %s, 7" % (s(sCB3), s(sSLOT)))
    get_sync(220, 222)
    sHH, sRB2, sG0, sDQ, sTB, sNT = 44, 45, 46, 47, 48, 49
    sMSK, sM40 = 50, 52
    sP = 36
    sQM = 54
    sOffO, sOffQA, sBIG, sEPS = 62, 63, 67, 68
    S = 0; O = 144; Q = 160; F = [168, 176]; CM8 = 184; CM0 = 200; VF = [184, 192]
    vM, vNM = 216, 218
    vT = 220
    vLin, vKa, vVa, vL = 228, 229, 230, 231
    vOm, vOr, vFo, vU = 232, 233, 234, 235
    PB = 236
    PA = 168
    vL8 = 242
    AW = 4
    asm.label("%s_p2setup" % N)
    if not D1:
        asm("s_mov_b32 %s, %s" % (s(sHH), s(sSLOT)))
        asm("s_mov_b32 %s, %s" % (s(sRB2), s(sP8)))
    else:
        asm("s_lshl_b32 %s, %s, 2" % (s(sT0), s(sP8)))
        asm("s_and_b32 %s, %s, 3" % (s(sHH), s(sSLOT)))
        asm("s_add_u32 %s, %s, %s" % (s(sHH), s(sHH), s(sT0)))
        asm("s_lshr_b32 %s, %s, 2" % (s(sRB2), s(sSLOT)))
    asm("s_mul_i32 %s, %s, 5" % (s(sT0), s(sHH)))
    asm("s_lshr_b32 %s, %s, 2" % (s(sG0), s(sT0)))
    asm("s_and_b32 %s, %s, 3" % (s(sDQ), s(sT0)))
    asm("s_lshl_b32 %s, %s, 3" % (s(sTB), s(sRB2)))
    asm("s_add_u32 %s, %s, %s" % (s(sTB), s(sTB), s(sW)))
    asm("s_add_u32 %s, %s, 1" % (s(sNT), s(sTB)))
    asm("s_min_u32 %s, %s, 9" % (s(sNT), s(sNT)))
    asm("s_mov_b32 %s, 0x000fffff" % s(sMSK)); asm("s_mov_b32 %s, 0x000fffff" % s(sMSK + 1))
    asm("s_mov_b32 %s, -1" % s(sM40)); asm("s_mov_b32 %s, 0xff" % s(sM40 + 1))
    lane(vL)
    asm("v_lshlrev_b32 %s, 3, %s" % (v(vL8), v(vL)))
    asm("v_lshlrev_b32 %s, 4, %s" % (v(vLin), v(vL)))
    asm("s_mov_b32 %s, %s" % (s(sBIG), fhex(BIG)))
    asm("v_and_b32 %s, 31, %s" % (v(vU), v(vL)))
    asm("v_lshrrev_b32 %s, 5, %s" % (v(vT + 4), v(vL)))
    asm("v_lshlrev_b32 %s, 2, %s" % (v(vT + 4), v(vT + 4)))
    asm("v_sub_u32 %s, %s, %s" % (v(vU), v(vU), v(vT + 4)))
    asm("v_mov_b32 %s, %s" % (v(vT + 5), s(sBIG)))
    asm("v_mov_b32 %s, 0" % v(vT + 6))
    for r0 in range(0, 16, 4):
        for k in range(4):
            r = r0 + k
            asm("v_cmp_le_i32 %s, %d, %s" % (s(sP + 2 * k, 2), 8 * (r >> 2) + (r & 3), v(vU)))
        asm("s_nop 1")
        for k in range(4):
            r = r0 + k
            asm("v_cndmask_b32 %s, %s, %s, %s" % (v(CM8 + r), v(vT + 5), v(vT + 6), s(sP + 2 * k, 2)))
            asm("v_cndmask_b32 %s, %s, %s, %s" % (v(CM0 + r), v(vT + 6), v(vT + 5), s(sP + 2 * k, 2)))
    for gg in range(2):
        for p in range(2):
            k = gg * 2 + p
            for h in range(2):
                asm("s_sub_u32 %s, %d, %s" % (s(sT0), 4 * gg + 2 * p + h, s(sDQ)))
                asm("s_cmp_le_u32 %s, 4" % s(sT0))
                asm("s_cselect_b32 %s, -1, 0" % s(sQM + 2 * k + h))
    asm("s_lshl_b32 %s, %s, 11" % (s(sT0), s(sW)))
    asm("s_add_u32 %s, %s, %d" % (s(sT0), s(sT0), L_K))
    asm("v_add_u32 %s, %s, %s" % (v(vKa), s(sT0), v(vLin)))
    asm("v_lshrrev_b32 %s, 5, %s" % (v(vT), v(vL)))
    asm("v_mul_u32_u24 %s, 20, %s" % (v(vT), v(vT)))
    asm("v_and_b32 %s, 31, %s" % (v(vU), v(vL)))
    asm("v_add_u32 %s, %s, %s" % (v(vT), v(vT), v(vU)))
    asm("v_lshlrev_b32 %s, 4, %s" % (v(vT), v(vT)))
    asm("s_mul_i32 %s, %s, 1280" % (s(sT0), s(sW)))
    asm("s_add_u32 %s, %s, %d" % (s(sT0), s(sT0), L_V))
    asm("v_add_u32 %s, %s, %s" % (v(vVa), s(sT0), v(vT)))
    asm("s_lshl_b32 %s, %s, 5" % (s(sT0), s(sTB)))
    asm("s_add_u32 %s, %s, %s" % (s(sT0), s(sT0), s(sHH)))
    asm("s_mul_i32 %s, %s, 1280" % (s(sOffO), s(sT0)))
    asm("v_mov_b32 %s, %s" % (v(vOm), v(vLin)))
    asm("v_add_u32 %s, 1024, %s" % (v(vOr), v(vL8)))
    asm("v_mov_b32 %s, 0x%x" % (v(vT + 4), OOB))
    asm("v_cmp_gt_u32 vcc, 32, %s" % v(vL))
    asm("s_nop 1")
    asm("v_cndmask_b32 %s, %s, %s, vcc" % (v(vOr), v(vT + 4), v(vOr)))
    asm("s_mul_i32 %s, %s, 40" % (s(sT2), s(sTB)))
    asm("s_add_u32 %s, %s, %s" % (s(sT2), s(sT2), s(sG0)))
    asm("s_lshl_b32 %s, %s, 10" % (s(sT2), s(sT2)))
    asm("s_add_u32 %s, %s, %d" % (s(sOffQA), s(sT2), R_QA))
    def q_loads():
        asm("s_add_u32 %s, %s, %d" % (s(sT3), s(sOffQA), R_QB - R_QA))
        asm("buffer_load_dwordx4 %s, %s, %s, %s offen sc1" % (v(Q, 4), v(vLin), s(SWS, 4), s(sT3)))
        asm("buffer_load_dwordx4 %s, %s, %s, %s offen offset:1024 sc1" % (v(Q + 4, 4), v(vLin), s(SWS, 4), s(sT3)))
    FINE = opts.get("fine", 1)
    def tile_masks():
        asm("s_lshr_b32 %s, %s, 3" % (s(sT1), s(sG0)))
        asm("s_lshl_b32 %s, 1, %s" % (s(sT1), s(sT1)))
        asm("s_add_u32 %s, %s, 1" % (s(sT2), s(sG0)))
        asm("s_lshr_b32 %s, %s, 3" % (s(sT2), s(sT2)))
        asm("s_lshl_b32 %s, 1, %s" % (s(sT2), s(sT2)))
        asm("s_or_b32 %s, %s, %s" % (s(sT1), s(sT1), s(sT2)))
        asm("s_mul_i32 %s, %s, 20" % (s(sT3), s(sHH)))
        asm("s_lshr_b32 %s, %s, 7" % (s(sT2), s(sT3)))
        asm("s_lshl_b32 %s, 1, %s" % (s(sT2), s(sT2)))
        asm("s_add_u32 %s, %s, 19" % (s(sT3), s(sT3)))
        asm("s_lshr_b32 %s, %s, 7" % (s(sT3), s(sT3)))
        asm("s_lshl_b32 %s, 1, %s" % (s(sT3), s(sT3)))
        asm("s_or_b32 %s, %s, %s" % (s(sT2), s(sT2), s(sT3)))
    def own_tile_wait():
        D = lab("otw")
        asm("s_cmp_ge_u32 %s, 30" % s(sSLOT))
        asm("s_cbranch_scc1 %s" % D)
        lds_wait(W_CNT1, vT, vT + 1, atleast=4)
        asm.label(D)
    def lds_inc(word):
        asm("v_mov_b32 %s, 0x%x" % (v(vT), word))
        asm("v_mov_b32 %s, 1" % v(vT + 1))
        asm("s_mov_b64 exec, 1")
        asm("ds_add_u32 %s, %s" % (v(vT), v(vT + 1)))
        asm("s_mov_b64 exec, -1")
    if opts.get("pad", 0):
        asm("s_mov_b64 exec, 0")
        for k in range(8):
            asm("s_cmp_eq_u32 %s, %d" % (s(sW), (k + 4) & 7))
            asm("s_cbranch_scc1 %s_padseg%d" % (N, k))
        asm.label("%s_walkret" % N)
        asm("s_mov_b64 exec, -1")
    asm("s_cmp_eq_u32 %s, %d" % (s(sW), AW))
    asm("s_cbranch_scc1 %s_aearly" % N)
    asm("s_cmp_eq_u32 %s, 5" % s(sW))
    asm("s_cbranch_scc1 %s_w5" % N)
    asm("s_cmp_ge_u32 %s, 6" % s(sW))
    asm("s_cbranch_scc1 %s_w67" % N)
    sTK, sKO, sLK, sIk = 4, 5, 6, 7
    lds_wait(W_S1, vT, vT + 1)
    st(4) if opts.get("kvst") else None
    asm("s_lshl_b32 %s, %s, 2" % (s(sIk), s(sW)))
    asm("s_cmp_eq_u32 %s, 0" % s(sRB2))
    asm("s_cselect_b32 %s, 8, 0" % s(sT0))
    asm("s_cmp_lt_u32 %s, %s" % (s(sIk), s(sT0)))
    asm("s_cbranch_scc1 %s_nok" % N)
    asm("s_lshl_b32 %s, %s, 3" % (s(sTK), s(sRB2)))
    asm("s_add_u32 %s, %s, %s" % (s(sTK), s(sTK), s(sIk)))
    asm("s_sub_u32 %s, %s, 8" % (s(sTK), s(sTK)))
    asm("s_mul_i32 %s, %s, 40" % (s(sKO), s(sTK)))
    asm("s_add_u32 %s, %s, %s" % (s(sKO), s(sKO), s(sG0)))
    asm("s_lshl_b32 %s, %s, 10" % (s(sKO), s(sKO)))
    asm("s_add_u32 %s, %s, %d" % (s(sKO), s(sKO), R_KB))
    asm("s_lshl_b32 %s, %s, 11" % (s(sLK), s(sIk)))
    asm("s_add_u32 %s, %s, %d" % (s(sLK), s(sLK), L_K))
    for ii in range(4):
        asm("s_add_u32 m0, %s, %d" % (s(sLK), ii * 2048))
        asm("s_nop 0")
        asm("buffer_load_dwordx4 %s, %s, %s offen sc1 lds" % (v(vLin), s(SWS, 4), s(sKO)))
        asm("buffer_load_dwordx4 %s, %s, %s offen offset:1024 sc1 lds" % (v(vLin), s(SWS, 4), s(sKO)))
        if ii < 3: asm("s_add_u32 %s, %s, 40960" % (s(sKO), s(sKO)))
    asm.label("%s_nok" % N)
    q_loads()
    asm("s_waitcnt vmcnt(0)")
    lds_inc(W_K)
    asm("s_branch %s_kwait" % N)
    asm.label("%s_w67" % N)
    vDWO = 243
    sDA, sDM = 4, 5
    SWO = SA_
    decode3()
    asm("s_load_dwordx2 s[4:5], s[0:1], 16")
    asm("s_load_dwordx2 s[6:7], s[0:1], 40")
    asm("s_movk_i32 %s, 6554" % s(sT2))
    asm("s_movk_i32 %s, 1280" % s(sT3))
    for b in range(5):
        asm("v_add_u32 %s, %d, %s" % (v(vT), 64 * b, v(vL)))
        asm("v_mul_lo_u32 %s, %s, %s" % (v(vT + 1), v(vT), s(sT2)))
        asm("v_lshrrev_b32 %s, 16, %s" % (v(vT + 1), v(vT + 1)))
        asm("v_mul_u32_u24 %s, 10, %s" % (v(vT + 2), v(vT + 1)))
        asm("v_sub_u32 %s, %s, %s" % (v(vT), v(vT), v(vT + 2)))
        asm("v_lshlrev_b32 %s, 4, %s" % (v(vT), v(vT)))
        asm("v_mad_u32_u24 %s, %s, %s, %s" % (v(vDWO + b), v(vT + 1), s(sT3), v(vT)))
        if 0 < b < 4: asm("v_subrev_u32 %s, %d, %s" % (v(vDWO + b), b * 1024, v(vDWO + b)))
    asm("s_waitcnt lgkmcnt(0)")
    asm("s_cmp_eq_u32 %s, 0" % s(sBR3))
    asm("s_cselect_b32 s4, s4, s6")
    asm("s_cselect_b32 s5, s5, s7")
    asm("s_mul_i32 %s, %s, 160" % (s(sT0), s(sCB3)))
    asm("s_add_u32 s4, s4, %s" % s(sT0))
    asm("s_addc_u32 s5, s5, 0")
    asm("s_sub_u32 %s, %d, %s" % (s(sT1), 640 * 1280, s(sT0)))
    srd(asm, SWO, "s4", "s5", s(sT1))
    asm("s_and_b32 %s, %s, 1" % (s(sT0), s(sW)))
    asm("s_mul_i32 %s, %s, %d" % (s(sDA), s(sT0), 32 * 1280))
    asm("s_mul_i32 %s, %s, 5120" % (s(sDM), s(sT0)))
    def wo_group():
        asm("s_mov_b32 m0, %s" % s(sDM)); asm("s_nop 0")
        asm("buffer_load_dwordx4 %s, %s, %s offen lds" % (v(vDWO), s(SWO, 4), s(sDA)))
        for b in range(1, 4):
            asm("buffer_load_dwordx4 %s, %s, %s offen offset:%d lds" % (v(vDWO + b), s(SWO, 4), s(sDA), b * 1024))
        asm("s_add_u32 m0, %s, 4096" % s(sDM)); asm("s_nop 0")
        asm("buffer_load_dwordx4 %s, %s, %s offen lds" % (v(vDWO + 4), s(SWO, 4), s(sDA)))
        asm("s_add_u32 %s, %s, %d" % (s(sDA), s(sDA), 2 * 32 * 1280))
        asm("s_add_u32 %s, %s, %d" % (s(sDM), s(sDM), 2 * 5120))
    asm("s_cmp_ge_u32 %s, 30" % s(sSLOT))
    asm("s_cbranch_scc1 %s_wogo" % N)
    lds_wait(W_ISS, vT, vT + 1, atleast=4)
    asm.label("%s_wogo" % N)
    asm("s_mov_b32 s6, 0")
    asm.label("%s_woloop" % N)
    wo_group()
    asm("s_add_u32 s6, s6, 1")
    asm("s_cmp_lt_u32 s6, 10")
    asm("s_cbranch_scc1 %s_woloop" % N)
    lds_wait(W_S1, vT, vT + 1)
    asm("s_waitcnt vmcnt(30)")
    q_loads()
    asm("v_cmp_le_u32 vcc, 20, %s" % v(vL))
    asm("v_mov_b32 %s, 0" % v(vT))
    asm("v_mov_b32 %s, %d" % (v(vT + 1), 10240 - 320))
    asm("v_cndmask_b32 %s, %s, %s, vcc" % (v(vT), v(vT), v(vT + 1)))
    asm("v_add_u32 %s, %s, %s" % (v(vFo), v(vT), v(vLin)))
    asm("s_and_b32 %s, %s, 1" % (s(sIk), s(sW)))
    asm("s_lshl_b32 %s, %s, 3" % (s(sIk), s(sIk)))
    asm("s_or_b32 %s, %s, %s" % (s(sT0), s(sIk), s(sRB2)))
    asm("s_cmp_eq_u32 %s, 0" % s(sT0))
    asm("s_cbranch_scc1 %s_nov" % N)
    asm("s_lshl_b32 %s, %s, 3" % (s(sTK), s(sRB2)))
    asm("s_add_u32 %s, %s, %s" % (s(sTK), s(sTK), s(sIk)))
    asm("s_sub_u32 %s, %s, 8" % (s(sTK), s(sTK)))
    asm("s_mul_i32 %s, %s, 40960" % (s(sKO), s(sTK)))
    asm("s_mul_i32 %s, %s, 320" % (s(sT1), s(sHH)))
    asm("s_add_u32 %s, %s, %s" % (s(sKO), s(sKO), s(sT1)))
    asm("s_add_u32 %s, %s, %d" % (s(sKO), s(sKO), R_VB))
    asm("s_mul_i32 %s, %s, 1280" % (s(sLK), s(sIk)))
    asm("s_add_u32 %s, %s, %d" % (s(sLK), s(sLK), L_V))
    asm("s_mov_b64 exec, %s" % s(sM40, 2))
    for ii in range(8):
        asm("s_add_u32 m0, %s, %d" % (s(sLK), ii * 1280))
        asm("s_add_u32 %s, %s, %d" % (s(sT1), s(sKO), 20480 - 640))
        asm("buffer_load_dwordx4 %s, %s, %s offen sc1 lds" % (v(vFo), s(SWS, 4), s(sKO)))
        asm("buffer_load_dwordx4 %s, %s, %s offen offset:640 sc1 lds" % (v(vFo), s(SWS, 4), s(sT1)))
        if ii < 7: asm("s_add_u32 %s, %s, 40960" % (s(sKO), s(sKO)))
    asm("s_mov_b64 exec, -1")
    asm("s_waitcnt vmcnt(16)")
    asm("s_branch %s_kwait" % N)
    asm.label("%s_nov" % N)
    asm("s_waitcnt vmcnt(0)")
    asm("s_branch %s_kwait" % N)
    asm.label("%s_w5" % N)
    own_tile_wait()
    asm("s_add_u32 %s, %s, 7" % (s(sT0), s(sRB2)))
    asm("s_lshl_b32 %s, %s, 7" % (s(sT0), s(sT0)))
    asm("s_and_b32 %s, %s, %d" % (s(sT1), s(sP8) if REPL <= 8 else s(sHH), REPL - 1))
    asm("s_lshl_b32 %s, %s, 11" % (s(sT1), s(sT1)))
    asm("s_add_u32 %s, %s, %s" % (s(sT0), s(sT0), s(sT1)))
    asm("s_add_u32 %s, %s, %d" % (s(sPL), s(sT0), F1))
    if FINE:
        tile_masks()
        asm("s_lshl_b32 %s, %s, 5" % (s(sT3), s(sT1)))
        asm("s_lshl_b32 %s, %s, 10" % (s(sT2), s(sT2)))
        asm("s_or_b32 %s, %s, %s" % (s(sT3), s(sT3), s(sT2)))
        asm("s_or_b32 %s, %s, %s" % (s(sT1), s(sT1), s(sT3)))
        asm("s_lshl_b32 %s, %s, 16" % (s(sT1), s(sT1)))
        asm("s_cmp_eq_u32 %s, 0" % s(sRB2))
        asm("s_cselect_b32 %s, 0, %s" % (s(sT3), s(sT3)))
        asm("s_or_b32 %s, %s, %s" % (s(sT1), s(sT1), s(sT3)))
    else:
        asm("s_cmp_eq_u32 %s, 0" % s(sRB2))
        asm("s_cselect_b32 %s, 0, 0x7fe0" % s(sT1))
        asm("s_or_b32 %s, %s, 0x7fff0000" % (s(sT1), s(sT1)))
    if opts.get("ppoll", 0): ppoll(s(sPL), 32, [244, 246, 248], vL8, smask=s(sT1))
    else: poll(s(sPL), 32, vT, vL8, smask=s(sT1))
    lds_set(W_S1, vT, vT + 1)
    st(4)
    q_loads()
    asm("s_waitcnt vmcnt(0)")
    asm("s_branch %s_kwait" % N)
    asm.label("%s_aearly" % N)
    asm("v_lshrrev_b32 %s, 5, %s" % (v(vT), v(vL)))
    asm("v_mul_u32_u24 %s, 10240, %s" % (v(vT), v(vT)))
    asm("v_and_b32 %s, 31, %s" % (v(vU), v(vL)))
    asm("v_lshl_add_u32 %s, %s, 4, %s" % (v(vFo), v(vU), v(vT)))
    asm("v_mov_b32 %s, 0x3f803f80" % v(vT + 2))
    for r in range(64, 128): asm("v_mov_b32 %s, %s" % (v(r), v(vT + 2)))
    own_tile_wait()
    asm("s_lshl_b32 %s, %s, 7" % (s(sT0), s(sRB2)))
    asm("s_and_b32 %s, %s, %d" % (s(sT1), s(sP8) if REPL <= 8 else s(sHH), REPL - 1))
    asm("s_lshl_b32 %s, %s, 11" % (s(sT1), s(sT1)))
    asm("s_add_u32 %s, %s, %s" % (s(sT0), s(sT0), s(sT1)))
    asm("s_add_u32 %s, %s, %d" % (s(sPL), s(sT0), F1))
    if FINE:
        tile_masks()
        asm("s_lshl_b32 %s, %s, 5" % (s(sT3), s(sT2)))
        asm("s_lshl_b32 %s, %s, 10" % (s(sT2), s(sT2)))
        asm("s_or_b32 %s, %s, %s" % (s(sT1), s(sT1), s(sT3)))
        asm("s_or_b32 %s, %s, %s" % (s(sT1), s(sT1), s(sT2)))
        if opts.get("ppoll", 0): ppoll(s(sPL), 15, [244, 246, 248], vL8, smask=s(sT1))
        else: poll(s(sPL), 15, vT, vL8, smask=s(sT1))
    else:
        poll(s(sPL), 15, vT, vL8)
    lds_set(W_S1A, vT, vT + 1)
    st(4)
    asm("s_lshl_b32 %s, %s, 3" % (s(sT0), s(sRB2)))
    asm("s_mul_i32 %s, %s, 40960" % (s(sT0), s(sT0)))
    asm("s_mul_i32 %s, %s, 320" % (s(sT1), s(sHH)))
    asm("s_add_u32 %s, %s, %s" % (s(sT0), s(sT0), s(sT1)))
    asm("s_add_u32 %s, %s, %d" % (s(sT1), s(sT0), R_KA))
    asm("s_add_u32 %s, %s, %d" % (s(sT2), s(sT0), R_VA))
    asm("s_mov_b64 exec, %s" % s(sMSK, 2))
    for b in range(8):
        for m in range(2):
            asm("buffer_load_dwordx4 %s, %s, %s, %s offen sc1" % (v((b * 2 + m) * 4, 4), v(vFo), s(SWS, 4), s(sT1)))
            asm("buffer_load_dwordx4 %s, %s, %s, %s offen sc1" % (v(64 + (b * 2 + m) * 4, 4), v(vFo), s(SWS, 4), s(sT2)))
            asm("s_add_u32 %s, %s, 20480" % (s(sT1), s(sT1)))
            asm("s_add_u32 %s, %s, 20480" % (s(sT2), s(sT2)))
    asm("s_mov_b64 exec, -1")
    lds_wait(W_S1, vT, vT + 1)
    q_loads()
    for b in range(16):
        asm("s_waitcnt vmcnt(%d)" % (32 - 2 * b))
        c = "0" if b == 0 else v(O, 16)
        asm("v_mfma_f32_32x32x16_bf16 %s, %s, %s, %s" % (v(O, 16), v(b * 4, 4), v(64 + b * 4, 4), c))
    asm("s_lshl_b32 %s, %s, 3" % (s(sT0), s(sHH)))
    asm("s_add_u32 %s, %s, %s" % (s(sT0), s(sT0), s(sRB2)))
    asm("s_mul_i32 %s, %s, 3072" % (s(sT0), s(sT0)))
    asm("s_add_u32 %s, %s, %d" % (s(sT0), s(sT0), R_KVP))
    asm("s_nop 7"); asm("s_nop 1")
    for j in range(3):
        asm("buffer_store_dwordx4 %s, %s, %s, %s offen offset:%d sc1" % (v(O + 4 * j, 4), v(vLin), s(SWS, 4), s(sT0), j * 1024))
    asm("s_waitcnt vmcnt(3)")
    asm.label("%s_kwait" % N)
    asm(";PADBEGIN")
    lds_wait(W_K, vT, vT + 1, atleast=4)
    st(5)
    PRIO = opts.get("prio", 0)
    if PRIO:
        asm("s_cmp_%s_u32 %s, 4" % ("lt" if PRIO == 1 else "ge", s(sW)))
        asm("s_cbranch_scc0 %s_noprio" % N)
        asm("s_setprio 2")
        asm.label("%s_noprio" % N)
    def rdK(d, dst):
        for gg in range(2):
            asm("ds_read_b128 %s, %s offset:%d" % (v(dst + 4 * gg, 4), v(vKa), (8 - d) * 2048 + gg * 1024))
    def rdV(d, dst):
        asm("s_mov_b64 exec, %s" % s(sMSK, 2))
        for m in range(2):
            asm("ds_read_b128 %s, %s offset:%d" % (v(dst + 4 * m, 4), v(vVa), (8 - d) * 1280 + m * 640))
        asm("s_mov_b64 exec, -1")
    rdK(0, F[0])
    for gg in range(2):
        for p in range(2):
            k = gg * 2 + p
            for j in range(2):
                r = Q + 4 * gg + 2 * p + j
                asm("v_cndmask_b32 %s, 0, %s, %s" % (v(r), v(r), s(sQM + 2 * k, 2)))
    def maxes(d):
        b = S + 16 * d
        if d == 0:
            asm("v_max3_f32 %s, %s, %s, %s" % (v(vM), v(b), v(b + 1), v(b + 2)))
            for k in range(3, 15, 2):
                asm("v_max3_f32 %s, %s, %s, %s" % (v(vM), v(vM), v(b + k), v(b + k + 1)))
            asm("v_max_f32 %s, %s, %s" % (v(vM), v(vM), v(b + 15)))
        else:
            for k in range(0, 16, 2):
                asm("v_max3_f32 %s, %s, %s, %s" % (v(vM), v(vM), v(b + k), v(b + k + 1)))
    for d in range(9):
        cur, nxt = F[d & 1], F[(d + 1) & 1]
        asm("s_waitcnt lgkmcnt(0)")
        if d < 8: rdK(d + 1, nxt)
        if d > 0:
            asm("s_cmp_le_u32 %s, %d" % (s(sNT), d))
            asm("s_cbranch_scc1 %s_p1skip%d" % (N, d))
        else:
            asm("s_nop 1")
        c = v(CM8, 16) if d == 0 else (v(CM0, 16) if d == 8 else "0")
        b = v(S + 16 * d, 16)
        asm("v_mfma_f32_32x32x16_bf16 %s, %s, %s, %s" % (b, v(cur, 4), v(Q, 4), c))
        asm("v_mfma_f32_32x32x16_bf16 %s, %s, %s, %s" % (b, v(cur + 4, 4), v(Q + 4, 4), b))
        if d > 0:
            asm.label("%s_p1skip%d" % (N, d))
            if d == 1: asm("s_nop 7")
            maxes(d - 1)
            asm("s_cbranch_scc1 %s_p1end" % N)
    asm("s_nop 3")
    maxes(8)
    asm.label("%s_p1end" % N)
    st(6)
    SIGD = opts.get("sigd", 2)
    def a_signal():
        asm("s_cmp_lg_u32 %s, %d" % (s(sW), AW))
        asm("s_cbranch_scc1 %s_nosig" % N)
        asm("s_waitcnt vmcnt(0)")
        asm("s_lshl_b32 %s, %s, 4" % (s(sT0), s(sHH)))
        asm("s_add_u32 %s, %s, %s" % (s(sT0), s(sT0), s(sRB2)))
        asm("s_lshl_b32 %s, %s, 3" % (s(sT0), s(sT0)))
        asm("s_add_u32 %s, %s, %d" % (s(sT0), s(sT0), F2))
        flag_store(s(sT0), vT, vT + 2)
        asm.label("%s_nosig" % N)
    if SIGD < 0: a_signal()
    asm("s_cmp_lt_u32 %s, 6" % s(sW))
    asm("s_cbranch_scc1 %s_vw" % N)
    asm("s_waitcnt vmcnt(0)")
    lds_inc(W_V)
    asm.label("%s_vw" % N)
    lds_wait(W_V, vT, vT + 1, atleast=2)
    asm("s_waitcnt lgkmcnt(0)")
    asm("s_mov_b32 %s, 0x3f803f80" % s(sT0))
    for r in range(16): asm("v_mov_b32 %s, %s" % (v(VF[0] + r), s(sT0)))
    rdV(0, VF[0])
    asm("v_mov_b32 %s, %s" % (v(vT + 2), v(vM)))
    asm("v_mov_b32 %s, %s" % (v(vT + 3), v(vM)))
    asm("s_nop 1")
    asm("v_permlane32_swap_b32 %s, %s" % (v(vT + 2), v(vT + 3)))
    asm("s_nop 1")
    asm("v_max_f32 %s, %s, %s" % (v(vM), v(vT + 2), v(vT + 3)))
    asm("v_sub_f32 %s, 0, %s" % (v(vNM), v(vM)))
    asm("v_sub_f32 %s, 0, %s" % (v(vNM + 1), v(vM)))
    PQD = opts.get("pqd", 5)
    sPQ = 7
    asm("s_mov_b32 %s, 0" % s(sPQ))
    def pq_loads():
        lds_wait(W_S1A, vT + 4, vT + 5)
        asm("buffer_load_dwordx4 %s, %s, %s, %s offen sc1" % (v(Q, 4), v(vLin), s(SWS, 4), s(sOffQA)))
        asm("buffer_load_dwordx4 %s, %s, %s, %s offen offset:1024 sc1" % (v(Q + 4, 4), v(vLin), s(SWS, 4), s(sOffQA)))
    for d in range(9):
        cur, nxt = VF[d & 1], VF[(d + 1) & 1]
        b = S + 16 * d
        if d > 0:
            asm("s_cmp_le_u32 %s, %d" % (s(sNT), d))
            asm("s_cbranch_scc1 %s_p2end" % N)
        for k in range(8):
            asm("v_pk_add_f32 %s, %s, %s" % (v(b + 2 * k, 2), v(b + 2 * k, 2), v(vNM, 2)))
        for k in range(16):
            asm("v_exp_f32 %s, %s" % (v(b + k), v(b + k)))
        asm("s_waitcnt lgkmcnt(0)")
        if d < 8: rdV(d + 1, nxt)
        for k in range(8):
            asm("v_cvt_pk_bf16_f32 %s, %s, %s" % (v(b + k), v(b + 2 * k), v(b + 2 * k + 1)))
        asm("s_nop 1")
        asm("v_mfma_f32_32x32x16_bf16 %s, %s, %s, %s" % (v(O, 16), v(cur, 4), v(b, 4), "0" if d == 0 else v(O, 16)))
        asm("v_mfma_f32_32x32x16_bf16 %s, %s, %s, %s" % (v(O, 16), v(cur + 4, 4), v(b + 4, 4), v(O, 16)))
        if d == SIGD: a_signal()
        if d == PQD:
            pq_loads()
            asm("s_mov_b32 %s, 1" % s(sPQ))
    asm.label("%s_p2end" % N)
    if PRIO: asm("s_setprio 0")
    if PQD > 0:
        asm("s_cmp_lg_u32 %s, 0" % s(sPQ))
        asm("s_cbranch_scc1 %s_pqdone" % N)
        pq_loads()
        asm.label("%s_pqdone" % N)
    st(7)
    def normalize(dst, eps):
        asm("v_mov_b32 %s, %s" % (v(vT), v(O + 8)))
        asm("v_mov_b32 %s, %s" % (v(vT + 1), v(O + 8)))
        asm("s_nop 1")
        asm("v_permlane32_swap_b32 %s, %s" % (v(vT), v(vT + 1)))
        asm("s_nop 1")
        if eps: asm("v_add_f32 %s, %s, %s" % (v(vT + 1), s(sEPS), v(vT + 1)))
        asm("v_rcp_f32 %s, %s" % (v(vT + 1), v(vT + 1)))
        asm("s_nop 0")
        for k in range(12): asm("v_mul_f32 %s, %s, %s" % (v(O + k), v(vT + 1), v(O + k)))
        for k in range(6): asm("v_cvt_pk_bf16_f32 %s, %s, %s" % (v(dst + k), v(O + 2 * k), v(O + 2 * k + 1)))
    def store_o(src, region):
        asm("s_add_u32 %s, %s, %d" % (s(sT0), s(sOffO), region))
        asm("buffer_store_dwordx4 %s, %s, %s, %s offen%s" % (v(src, 4), v(vOm), s(SWS, 4), s(sT0), SC))
        asm("buffer_store_dwordx2 %s, %s, %s, %s offen%s" % (v(src + 4, 2), v(vOr), s(SWS, 4), s(sT0), SC))
    asm("s_mov_b32 %s, %s" % (s(sEPS), fhex(1e-6)))
    asm("s_cmp_ge_u32 %s, 4" % s(sW))
    asm("s_cbranch_scc1 %s_hiwaves" % N)
    asm("s_lshl_b32 %s, %s, 7" % (s(sPL), s(sHH)))
    asm("s_add_u32 %s, %s, %d" % (s(sPL), s(sPL), F2))
    asm("s_cmp_lg_u32 %s, 0" % s(sW))
    asm("s_cbranch_scc1 %s_w123" % N)
    poll_issue(s(sPL), vT + 4, vL8, 8)
    asm("s_nop 7"); asm("s_nop 3")
    normalize(PB, False)
    poll(s(sPL), 8, vT + 4, vL8, preissued=True)
    lds_set(W_S2, vT + 4, vT + 5)
    asm("s_branch %s_w0123" % N)
    asm.label("%s_w123" % N)
    asm("s_nop 7"); asm("s_nop 3")
    normalize(PB, False)
    lds_wait(W_S2, vT + 4, vT + 5)
    asm.label("%s_w0123" % N)
    asm("s_lshl_b32 %s, %s, 1" % (s(sT0), s(sW)))
    asm("s_sub_u32 %s, %s, %s" % (s(sT0), s(sT0), s(sDQ)))
    asm("v_lshrrev_b32 %s, 5, %s" % (v(vT), v(vL)))
    asm("v_add_u32 %s, %s, %s" % (v(vT), s(sT0), v(vT)))
    asm("v_and_b32 %s, 31, %s" % (v(vT + 1), v(vL)))
    asm("v_lshlrev_b32 %s, 4, %s" % (v(vT + 1), v(vT + 1)))
    asm("v_lshl_add_u32 %s, %s, 9, %s" % (v(vT + 1), v(vT), v(vT + 1)))
    asm("v_cmp_ge_u32 vcc, 4, %s" % v(vT))
    asm("v_mov_b32 %s, 0x%x" % (v(vT + 2), OOB))
    asm("s_nop 0")
    asm("v_cndmask_b32 %s, %s, %s, vcc" % (v(vU), v(vT + 2), v(vT + 1)))
    asm("s_lshl_b32 %s, %s, 3" % (s(sT0), s(sHH)))
    asm("s_mul_i32 %s, %s, 3072" % (s(sT0), s(sT0)))
    asm("s_add_u32 %s, %s, %d" % (s(sT0), s(sT0), R_KVP))
    for r in range(8):
        asm("buffer_load_dwordx4 %s, %s, %s, %s offen sc1" % (v(S + 4 * r, 4), v(vU), s(SWS, 4), s(sT0)))
        if r < 7: asm("s_add_u32 %s, %s, 3072" % (s(sT0), s(sT0)))
    store_o(PB, R_OB)
    asm("s_waitcnt vmcnt(2)")
    for r in range(1, 8):
        for k in range(4):
            asm("v_add_f32 %s, %s, %s" % (v(S + k), v(S + k), v(S + 4 * r + k)))
    asm("v_cvt_pk_bf16_f32 %s, %s, %s" % (v(vT), v(S), v(S + 1)))
    asm("v_cvt_pk_bf16_f32 %s, %s, %s" % (v(vT + 1), v(S + 2), v(S + 3)))
    asm("s_lshr_b32 %s, %s, 1" % (s(sT0), s(sW)))
    asm("s_lshl_b32 %s, %s, 10" % (s(sT0), s(sT0)))
    asm("s_and_b32 %s, %s, 1" % (s(sT1), s(sW)))
    asm("s_lshl_b32 %s, %s, 3" % (s(sT1), s(sT1)))
    asm("s_add_u32 %s, %s, %s" % (s(sT0), s(sT0), s(sT1)))
    asm("s_add_u32 %s, %s, %d" % (s(sT0), s(sT0), L_KVT))
    asm("v_add_u32 %s, %s, %s" % (v(vU), s(sT0), v(vLin)))
    asm("ds_write_b64 %s, %s" % (v(vU), v(vT, 2)))
    asm("s_branch %s_join" % N)
    asm.label("%s_hiwaves" % N)
    asm("s_nop 7"); asm("s_nop 3")
    normalize(PB, False)
    store_o(PB, R_OB)
    asm.label("%s_join" % N)
    asm("s_waitcnt lgkmcnt(0)")
    asm("s_barrier")
    st(8)
    asm("v_add_u32 %s, 0x%x, %s" % (v(vU), L_KVT, v(vLin)))
    asm("ds_read_b128 %s, %s" % (v(F[0], 4), v(vU)))
    asm("ds_read_b128 %s, %s offset:1024" % (v(F[0] + 4, 4), v(vU)))
    sF3 = 69
    asm("s_lshl_b32 %s, %s, 5" % (s(sF3), s(sRB2)))
    asm("s_add_u32 %s, %s, %s" % (s(sF3), s(sF3), s(sHH)))
    asm("s_lshl_b32 %s, %s, 3" % (s(sF3), s(sF3)))
    asm("s_add_u32 %s, %s, %d" % (s(sF3), s(sF3), F3))
    asm("s_waitcnt vmcnt(2) lgkmcnt(0)")
    asm("v_mfma_f32_32x32x16_bf16 %s, %s, %s, 0" % (v(O, 16), v(F[0], 4), v(Q, 4)))
    asm("v_mfma_f32_32x32x16_bf16 %s, %s, %s, %s" % (v(O, 16), v(F[0] + 4, 4), v(Q + 4, 4), v(O, 16)))
    asm("s_nop 7"); asm("s_nop 3")
    normalize(PA, True)
    store_o(PA, R_OA)
    asm("s_add_u32 %s, %s, %d" % (s(sT1), s(sF3), 8 * 256))
    asm("s_waitcnt vmcnt(2)")
    release()
    lds_arrive(W_CNT3B, 8, vT + 6, vT + 4, s(sT1))
    asm("s_waitcnt vmcnt(0)")
    release()
    lds_arrive(W_CNT3A, 8, vT + 6, vT + 4, s(sF3))
    st(9)
    asm("s_cmp_ge_u32 %s, 4" % s(sW))
    asm("s_cbranch_scc1 %s_fin" % N)
    OF = 0; ACC3 = 160; WF = [200, 220]
    vOM, vOR, vWm, vWm2, vWr, vWr2 = 245, 246, 247, 248, 249, 250
    p3L, p3T, p3U, p3X = 251, 252, 253, 254
    vDW3 = 240
    sTB3, sOffO3, sOM = 44, 45, 46
    SOUT = SB_
    decode3()
    asm("s_load_dwordx2 s[4:5], s[0:1], 48")
    asm("s_lshl_b32 %s, %s, 2" % (s(sTB3), s(sRB3)))
    asm("s_add_u32 %s, %s, %s" % (s(sTB3), s(sTB3), s(sW)))
    lane(p3L)
    asm("v_lshlrev_b32 %s, 3, %s" % (v(p3X), v(p3L)))
    asm("s_lshl_b32 %s, %s, 3" % (s(sT0), s(sBR3)))
    asm("s_lshr_b32 %s, %s, 1" % (s(sT1), s(sRB3)))
    asm("s_add_u32 %s, %s, %s" % (s(sT0), s(sT0), s(sT1)))
    asm("s_lshl_b32 %s, %s, 8" % (s(sT0), s(sT0)))
    asm("s_add_u32 %s, %s, %d" % (s(sPL), s(sT0), F3))
    asm("v_lshrrev_b32 %s, 4, %s" % (v(p3T), v(p3L)))
    asm("v_and_b32 %s, 15, %s" % (v(p3U), v(p3L)))
    asm("v_lshrrev_b32 %s, 1, %s" % (v(vWm2), v(p3T)))
    asm("v_mul_u32_u24 %s, 1280, %s" % (v(vOM), v(vWm2)))
    asm("v_and_b32 %s, 1, %s" % (v(vWm2), v(p3T)))
    asm("v_lshl_add_u32 %s, %s, 9, %s" % (v(vOM), v(vWm2), v(vOM)))
    asm("v_lshl_add_u32 %s, %s, 4, %s" % (v(vOM), v(p3U), v(vOM)))
    asm("v_mul_u32_u24 %s, 1280, %s" % (v(vOR), v(p3T)))
    asm("v_lshl_add_u32 %s, %s, 3, %s" % (v(vOR), v(p3U), v(vOR)))
    asm("v_add_u32 %s, 1024, %s" % (v(vOR), v(vOR)))
    asm("v_bfe_u32 %s, %s, 2, 2" % (v(p3U), v(p3L)))
    asm("v_lshrrev_b32 %s, 1, %s" % (v(vWm2), v(p3T)))
    asm("v_mul_u32_u24 %s, 20, %s" % (v(vWm), v(vWm2)))
    asm("v_and_b32 %s, 1, %s" % (v(vWm2), v(p3T)))
    asm("v_lshl_add_u32 %s, %s, 2, %s" % (v(vWm), v(vWm2), v(vWm)))
    asm("v_add_u32 %s, %s, %s" % (v(vWm), v(vWm), v(p3U)))
    asm("v_mul_u32_u24 %s, 160, %s" % (v(vWm), v(vWm)))
    asm("v_mul_u32_u24 %s, 20, %s" % (v(vWr), v(p3T)))
    asm("v_add_u32 %s, %s, %s" % (v(vWr), v(vWr), v(p3U)))
    asm("v_add_u32 %s, 16, %s" % (v(vWr), v(vWr)))
    asm("v_mul_u32_u24 %s, 160, %s" % (v(vWr), v(vWr)))
    asm("v_and_b32 %s, 3, %s" % (v(vWm2), v(p3L)))
    asm("v_lshl_add_u32 %s, %s, 3, %s" % (v(vWm), v(vWm2), v(vWm)))
    asm("v_lshl_add_u32 %s, %s, 3, %s" % (v(vWr), v(vWm2), v(vWr)))
    asm("v_add_u32 %s, 51200, %s" % (v(vWm2), v(vWm)))
    asm("v_add_u32 %s, 51200, %s" % (v(vWr2), v(vWr)))
    asm("s_mul_i32 %s, %s, %d" % (s(sOffO3), s(sBR3), REG))
    asm("s_add_u32 %s, %s, %d" % (s(sOffO3), s(sOffO3), R_OA))
    asm("s_mul_i32 %s, %s, 40960" % (s(sT0), s(sTB3)))
    asm("s_add_u32 %s, %s, %s" % (s(sOffO3), s(sOffO3), s(sT0)))
    asm("s_waitcnt lgkmcnt(0)")
    srd(asm, SOUT, "s4", "s5", 2048 * 2560)
    asm("s_cmp_lg_u32 %s, 0" % s(sW))
    asm("s_cbranch_scc1 %s_p3w" % N)
    if opts.get("ppoll", 0): ppoll(s(sPL), 32, [vDW3, vDW3 + 2], p3X)
    else: poll(s(sPL), 32, vDW3, p3X)
    lds_set(W_S3, p3T, p3U)
    asm("s_branch %s_p3go" % N)
    asm.label("%s_p3w" % N)
    lds_wait(W_S3, vDW3, vDW3 + 1)
    asm.label("%s_p3go" % N)
    st(10)
    def oloads(sidx):
        if sidx < 16:
            asm("s_add_u32 %s, %s, %d" % (s(sOM), s(sOffO3), 2560 * sidx))
            for rt in range(2):
                asm("buffer_load_dwordx4 %s, %s, %s, %s offen offset:%d%s" % (v(OF + (sidx * 2 + rt) * 4, 4), v(vOM), s(SWS, 4), s(sOM), rt * 256, LSC3))
        else:
            a_ = sidx - 16
            for half in range(2):
                asm("s_add_u32 %s, %s, %d" % (s(sOM), s(sOffO3), a_ * 8 * 1280 + half * 5120))
                for rt in range(2):
                    asm("buffer_load_dwordx2 %s, %s, %s, %s offen offset:%d%s" % (v(OF + ((16 + a_) * 2 + rt) * 4 + 2 * half, 2), v(vOR), s(SWS, 4), s(sOM), rt * 128, LSC3))
    def cum(k): return 2 * (k + 1) if k < 16 else 32 + 4 * (k - 15)
    PD = opts.get("pd", 5)
    for k in range(PD): oloads(k)
    def wreads(step, dst):
        ops = []
        for ct in range(5):
            for a_ in range(2):
                if step < 16:
                    base = vWm if step < 8 else vWm2
                    off = (step & 7) * 6400 + a_ * 1280 + ct * 32
                else:
                    ap = step - 16
                    base = vWr if ap < 2 else vWr2
                    off = (ap & 1) * 25600 + a_ * 12800 + ct * 32
                ops.append(lambda ct=ct, a_=a_, base=base, off=off: asm("ds_read_b64_tr_b16 %s, %s offset:%d" % (v(dst + 4 * ct + 2 * a_, 2), v(base), off)))
        return ops
    if opts.get("p3st"): st(1)
    for f in wreads(0, WF[0]): f()
    for sidx in range(20):
        cur = WF[sidx & 1]
        nxt_ops = wreads(sidx + 1, WF[(sidx + 1) & 1]) if sidx < 19 else []
        vm = cum(min(sidx + PD - 1, 19)) - cum(sidx)
        asm("s_waitcnt vmcnt(%d) lgkmcnt(0)" % vm)
        if opts.get("p3st") and sidx in (0, 8, 16): st({0: 2, 8: 3, 16: 4}[sidx])
        m = 0
        for ct in range(5):
            for rt in range(2):
                acc = v(ACC3 + (rt * 5 + ct) * 4, 4)
                c = "0" if sidx == 0 else acc
                asm("v_mfma_f32_16x16x32_bf16 %s, %s, %s, %s" % (acc, v(cur + 4 * ct, 4), v(OF + (sidx * 2 + rt) * 4, 4), c))
                if m < 5 and nxt_ops:
                    nxt_ops[2 * m](); nxt_ops[2 * m + 1]()
                if m == 5 and sidx + PD < 20: oloads(sidx + PD)
                m += 1
    st(11)
    asm("v_and_b32 %s, 15, %s" % (v(p3U), v(p3L)))
    asm("v_mul_u32_u24 %s, 160, %s" % (v(p3U), v(p3U)))
    asm("v_lshrrev_b32 %s, 4, %s" % (v(p3T), v(p3L)))
    asm("v_lshl_add_u32 %s, %s, 3, %s" % (v(p3U), v(p3T), v(p3U)))
    asm("s_mul_i32 %s, %s, 5120" % (s(sT0), s(sW)))
    asm("s_add_u32 %s, %s, %d" % (s(sT0), s(sT0), L_OUT))
    asm("v_add_u32 %s, %s, %s" % (v(p3U), s(sT0), v(p3U)))
    asm("v_lshlrev_b32 %s, 4, %s" % (v(p3X), v(p3L)))
    asm("v_add_u32 %s, %s, %s" % (v(p3X), s(sT0), v(p3X)))
    asm("s_nop 3")
    for rt in range(2):
        for ct in range(5):
            b = ACC3 + (rt * 5 + ct) * 4
            t = OF + (rt * 5 + ct) * 2
            asm("v_cvt_pk_bf16_f32 %s, %s, %s" % (v(t), v(b), v(b + 1)))
            asm("v_cvt_pk_bf16_f32 %s, %s, %s" % (v(t + 1), v(b + 2), v(b + 3)))
            asm("ds_write_b64 %s, %s offset:%d" % (v(p3U), v(t, 2), rt * 2560 + ct * 32))
    asm("s_movk_i32 %s, 6554" % s(sT2))
    asm("s_movk_i32 %s, 2560" % s(sT3))
    for b in range(5):
        asm("v_add_u32 %s, %d, %s" % (v(p3T), 64 * b, v(p3L)))
        asm("v_mul_lo_u32 %s, %s, %s" % (v(vWm), v(p3T), s(sT2)))
        asm("v_lshrrev_b32 %s, 16, %s" % (v(vWm), v(vWm)))
        asm("v_mul_u32_u24 %s, 10, %s" % (v(vWr), v(vWm)))
        asm("v_sub_u32 %s, %s, %s" % (v(p3T), v(p3T), v(vWr)))
        asm("v_lshlrev_b32 %s, 4, %s" % (v(p3T), v(p3T)))
        asm("v_mad_u32_u24 %s, %s, %s, %s" % (v(vDW3 + b), v(vWm), s(sT3), v(p3T)))
    asm("s_mul_i32 %s, %s, %d" % (s(sT0), s(sTB3), 32 * 2560))
    asm("s_mul_i32 %s, %s, 1280" % (s(sT1), s(sBR3)))
    asm("s_add_u32 %s, %s, %s" % (s(sT0), s(sT0), s(sT1)))
    asm("s_mul_i32 %s, %s, 160" % (s(sT1), s(sCB3)))
    asm("s_add_u32 %s, %s, %s" % (s(sT0), s(sT0), s(sT1)))
    asm("s_waitcnt lgkmcnt(0)")
    for b in range(5):
        asm("ds_read_b128 %s, %s offset:%d" % (v(32 + 4 * b, 4), v(p3X), b * 1024))
    for b in range(5):
        asm("s_waitcnt lgkmcnt(%d)" % (4 - b))
        asm("buffer_store_dwordx4 %s, %s, %s, %s offen%s" % (v(32 + 4 * b, 4), v(vDW3 + b), s(SOUT, 4), s(sT0), {0: "", 1: " sc1", 2: " nt", 3: " sc0 sc1"}[opts.get("outsc", 0)]))
    asm(";PADEND")
    asm.label("%s_fin" % N)
    if stamp:
        asm("s_waitcnt vmcnt(0)")
        st(12)
        asm("s_waitcnt lgkmcnt(0)")
        asm("s_load_dwordx2 s[4:5], s[0:1], 64")
        asm("s_waitcnt lgkmcnt(0)")
        asm("s_add_u32 s4, s4, %d" % (R_STAMP + (opts.get("wsoff", 0) << 20)))
        asm("s_addc_u32 s5, s5, 0")
        srd(asm, SA_, "s4", "s5", 1 << 20)
        asm("s_lshl_b32 %s, s2, 3" % s(sT0))
        asm("s_add_u32 %s, %s, %s" % (s(sT0), s(sT0), s(sW)))
        asm("s_lshl_b32 %s, %s, 7" % (s(sT0), s(sT0)))
        asm("v_mov_b32 v1, %s" % s(sT0))
        for i in range(13):
            asm("v_mov_b32 v2, %s" % s(STB + 2 * i))
            asm("v_mov_b32 v3, %s" % s(STB + 2 * i + 1))
            asm("buffer_store_dwordx2 v[2:3], v1, %s, 0 offen offset:%d" % (s(SA_, 4), 8 * i))
            asm("s_nop 1")
        asm("s_getreg_b32 s4, hwreg(HW_REG_HW_ID)")
        asm("v_mov_b32 v2, %s" % s(sXCC))
        asm("v_mov_b32 v3, s4")
        asm("buffer_store_dwordx2 v[2:3], v1, %s, 0 offen offset:%d" % (s(SA_, 4), 8 * 13))
    asm.label("%s_end" % N)
    asm("s_endpgm")
    return dict(name=N, vgpr=256, sgpr=100, grid=256, block=512, lds=LDS_BYTES)
HEADER = open("concat_heads__linear_attn_block__sliding_block__prompt.s.ref").read().split("; Override")[0]
def insert_pads(lines, every, nseg, N):
    b = lines.index(";PADBEGIN"); e = lines.index(";PADEND")
    pos = []; cnt = every; partial = False
    for k in range(b + 1, e):
        ln = lines[k].strip()
        if not ln or ln.endswith(":") or ln.startswith(";") or ln.startswith("."): continue
        if ln.startswith("s_mov_b64 exec") or ln.startswith("s_mov_b32 exec_"):
            partial = not ln.endswith("exec, -1")
            cnt += 1
            continue
        if cnt >= every and not partial:
            pos.append(k); cnt = 0
        cnt += 1
    n = len(pos); per = (n + nseg - 1) // nseg
    out = list(lines[:pos[0]])
    for i_, k in enumerate(pos):
        seg, j = divmod(i_, per)
        name = "%s_padseg%d" % (N, seg) if j == 0 else "%s_pad%d" % (N, i_)
        last = (j == per - 1) or (i_ == n - 1)
        nxt = "%s_walkret" % N if last else "%s_pad%d" % (N, i_ + 1)
        out.append(name + ":")
        out.append("s_cbranch_execz %s" % nxt)
        out += lines[k:(pos[i_ + 1] if i_ + 1 < n else len(lines))]
    nsegs = (n + per - 1) // per
    assert nsegs == nseg, (n, per, nsegs)
    return out, n
def build(stamp=False, opts=None):
    body = A()
    i = gen(body, stamp=stamp, opts=opts)
    if opts and opts.get("pad", 0):
        body.L, npads = insert_pads(body.L, opts["pad"], 8, i["name"])
        print("pads:", npads)
    else:
        body.L = [l for l in body.L if l not in (";PADBEGIN", ";PADEND")]
    if opts and opts.get("hfirst", 0):
        N = i["name"]; L = body.L
        a = L.index("%s_p1h:" % N); b = L.index("%s_p2h:" % N)
        blk = L[a:b]; rest = L[:a] + L[b:]
        k = rest.index("s_cbranch_scc1 %s_p1h" % N)
        rest[k] = "s_cbranch_scc0 %s_p1c" % N
        body.L = rest[:k + 1] + blk + ["s_branch %s_p2h" % N, "%s_p1c:" % N] + rest[k + 1:]
    out = HEADER
    out += "; @launch grid=(%d,1,1) block=(%d,1,1) lds=%d\n" % (i["grid"], i["block"], i["lds"])
    out += '.amdgcn_target "amdgcn-amd-amdhsa--gfx950"\n.text\n'
    out += body.text()
    d = A()
    d('.section .rodata,"a"')
    kernel_desc(d, i["name"], i["vgpr"], i["sgpr"])
    out += d.text()
    return out
if __name__ == "__main__":
    import sys
    opts = {}
    for a_ in sys.argv[3:]:
        k, val = a_.split("="); opts[k] = int(val)
    open(sys.argv[1], "w").write(build(stamp=(len(sys.argv) > 2 and sys.argv[2] == "stamp"), opts=opts))
```

```python
from asmlib import *
import math
REG = 2621440
R_QA, R_KA, R_VA, R_QB, R_KB, R_VB, R_OA, R_OB, R_KVP, R_FLG = [i * REG for i in range(10)]
F1 = R_FLG
F2 = R_FLG + 65536
F3 = R_FLG + 65536 + 8192
WS_REC = R_FLG + 131072
R_STAMP = 10 * REG
LOG2E = 1.4426950408889634
QSCALE = LOG2E / math.sqrt(20.0)
BIG = -1.0e30
OOB = 0x40000000
L_WO, L_K, L_V, L_KVT = 0, 102400, 135168, 155648
L_OUT = L_K
L_SYNC = 157696
W_CNT1, W_S1, W_S1A, W_S2, W_CNT3B, W_CNT3A, W_S3, W_ISS, W_K, W_V, W_KVT = [L_SYNC + 4 * i for i in range(11)]
LDS_BYTES = 157696 + 64
SPIN_MAX = 0x40000
NAME = "concat_heads__linear_attn_block__sliding_block__prompt_kernel"
class G:
    pass
def gen(asm, stamp=False, name=NAME, opts=None):
    opts = opts or {}
    N = name
    D1 = opts.get("d1", 0)
    SC = " sc1" if D1 else ""
    SC = {0: SC, 1: " sc0 sc1", 2: " sc1 nt", 3: " sc0 sc1 nt"}[opts.get("scmode", 0)]
    R3 = opts.get("r3", 1)
    REPL = opts.get("repl", 8)
    LSC3 = "" if opts.get("plain3") else " sc1"
    sW = 3
    SWS, SDBG = 8, 12
    sNON = 16
    sT0, sT1, sT2, sT3 = 18, 19, 20, 21
    sCNT, sPL = 22, 23
    SA_, SB_ = 24, 28
    sMASK = 32
    sPC = 34
    STB = 72
    sP8, sSLOT, sLOCAL, sXCC = 70, 71, 98, 99
    def st(k):
        if stamp:
            asm("s_memrealtime %s" % s(STB + 2 * k, 2))
    def lane(dst):
        asm("v_mbcnt_lo_u32_b32 %s, -1, 0" % v(dst))
        asm("v_mbcnt_hi_u32_b32 %s, -1, %s" % (v(dst), v(dst)))
    uid = [0]
    def lab(p):
        uid[0] += 1
        return "%s_%s%d" % (N, p, uid[0])
    def sync_issue(vd, vo):
        lane(vo)
        asm("s_lshl_b32 %s, %s, 3" % (s(sT0), s(sP8)))
        asm("s_add_u32 %s, %s, 64" % (s(sT0), s(sT0)))
        asm("v_cmp_eq_u32 vcc, 1, %s" % v(vo))
        asm("v_mov_b32 %s, %s" % (v(vd), s(sT0)))
        asm("v_mov_b32 %s, 0" % v(vo))
        asm("v_cndmask_b32 %s, %s, %s, vcc" % (v(vo), v(vo), v(vd)))
        asm("buffer_load_dwordx2 %s, %s, %s, 0 offen sc1" % (v(vd, 2), v(vo), s(SDBG, 4)))
    def get_sync(vd, vo, preissued=False):
        L, D = lab("non"), lab("nond")
        if not preissued: sync_issue(vd, vo)
        asm("s_mov_b32 %s, 0" % s(sCNT))
        asm.label(L)
        asm("s_waitcnt vmcnt(0)")
        asm("v_readlane_b32 %s, %s, 0" % (s(sNON), v(vd)))
        asm("v_readlane_b32 %s, %s, 0" % (s(sNON + 1), v(vd + 1)))
        asm("v_readlane_b32 %s, %s, 1" % (s(sPC), v(vd)))
        asm("v_readlane_b32 %s, %s, 1" % (s(sPC + 1), v(vd + 1)))
        asm("s_add_u32 %s, %s, 1" % (s(sCNT), s(sCNT)))
        asm("s_nop 2")
        asm("s_cmp_lg_u32 %s, 0" % s(sNON))
        asm("s_cbranch_scc1 %s" % D)
        asm("s_cmp_ge_u32 %s, 0x%x" % (s(sCNT), SPIN_MAX))
        asm("s_cbranch_scc1 %s" % D)
        asm("s_sleep 4")
        asm("buffer_load_dwordx2 %s, %s, %s, 0 offen sc1" % (v(vd, 2), v(vo), s(SDBG, 4)))
        asm("s_branch %s" % L)
        asm.label(D)
        asm("s_lshl_b32 %s, %s, 3" % (s(sT0), s(sXCC)))
        asm("s_lshl_b64 %s, 32, %s" % (s(sMASK, 2), s(sT0)))
        asm("s_cmp_eq_u64 %s, %s" % (s(sMASK, 2), s(sPC, 2)))
        asm("s_cselect_b32 %s, 1, 0" % s(sLOCAL))
        if opts.get("nolocal"): asm("s_mov_b32 %s, 0" % s(sLOCAL))
    def release():
        if D1: return
        D = lab("rel")
        asm("s_cmp_lg_u32 %s, 0" % s(sLOCAL))
        asm("s_cbranch_scc1 %s" % D)
        asm("buffer_wbl2 sc1")
        asm("s_waitcnt vmcnt(0)")
        asm.label(D)
    def lds_set(word, va, vd):
        asm("v_mov_b32 %s, 0x%x" % (v(va), word))
        asm("v_mov_b32 %s, 1" % v(vd))
        asm("ds_write_b32 %s, %s" % (v(va), v(vd)))
    def lds_wait(word, va, vd, atleast=1):
        L, D = lab("lw"), lab("lwd")
        asm("v_mov_b32 %s, 0x%x" % (v(va), word))
        asm("s_mov_b32 %s, 0" % s(sCNT))
        asm.label(L)
        asm("ds_read_b32 %s, %s" % (v(vd), v(va)))
        asm("s_waitcnt lgkmcnt(0)")
        asm("v_readfirstlane_b32 %s, %s" % (s(sT0), v(vd)))
        asm("s_add_u32 %s, %s, 1" % (s(sCNT), s(sCNT)))
        asm("s_nop 2")
        asm("s_cmp_ge_u32 %s, %d" % (s(sT0), atleast))
        asm("s_cbranch_scc1 %s" % D)
        asm("s_cmp_ge_u32 %s, 0x%x" % (s(sCNT), SPIN_MAX * 8))
        asm("s_cbranch_scc1 %s" % D)
        if opts.get("lsleep", 1): asm("s_sleep %d" % opts.get("lsleep", 1))
        asm("s_branch %s" % L)
        asm.label(D)
    def lds_arrive(word, n, va, vd, soff, replicas=1, rshift=11):
        D = lab("arr")
        asm("v_mov_b32 %s, 0x%x" % (v(va), word))
        asm("v_mov_b32 %s, 1" % v(vd))
        asm("s_mov_b64 exec, 1")
        asm("ds_add_rtn_u32 %s, %s, %s" % (v(vd), v(va), v(vd)))
        asm("s_waitcnt lgkmcnt(0)")
        asm("s_mov_b64 exec, -1")
        asm("v_readfirstlane_b32 %s, %s" % (s(sCNT), v(vd)))
        asm("s_nop 3")
        asm("s_cmp_lg_u32 %s, %d" % (s(sCNT), n - 1))
        asm("s_cbranch_scc1 %s" % D)
        flag_store(soff, vd, va, replicas, rshift)
        asm.label(D)
    def poll_issue(soff, vd, vo, n):
        asm("s_mov_b32 exec_lo, 0x%x" % ((1 << n) - 1))
        asm("s_mov_b32 exec_hi, 0")
        asm("buffer_load_dwordx2 %s, %s, %s, %s offen sc1" % (v(vd, 2), v(vo), s(SWS, 4), soff))
        asm("s_mov_b64 exec, -1")
    def poll(soff, n, vd, vo, preissued=False, lo=0, smask=None):
        L, D = lab("poll"), lab("polld")
        m = ((1 << n) - 1) & ~((1 << lo) - 1)
        asm("s_mov_b32 %s, %s" % (s(sMASK), smask if smask else "0x%x" % (m & 0xffffffff)))
        asm("s_mov_b32 %s, 0x%x" % (s(sMASK + 1), m >> 32))
        if not preissued: poll_issue(soff, vd, vo, n)
        asm("s_mov_b32 %s, 0" % s(sCNT))
        asm.label(L)
        asm("s_waitcnt vmcnt(0)")
        asm("v_cmp_eq_u32 vcc, %s, %s" % (s(sNON), v(vd)))
        asm("v_cmp_eq_u32 %s, %s, %s" % (s(sPC, 2), s(sNON + 1), v(vd + 1)))
        asm("s_add_u32 %s, %s, 1" % (s(sCNT), s(sCNT)))
        asm("s_nop 3")
        asm("s_and_b64 %s, %s, vcc" % (s(sPC, 2), s(sPC, 2)))
        asm("s_and_b64 %s, %s, %s" % (s(sPC, 2), s(sPC, 2), s(sMASK, 2)))
        asm("s_cmp_eq_u64 %s, %s" % (s(sPC, 2), s(sMASK, 2)))
        asm("s_cbranch_scc1 %s" % D)
        asm("s_cmp_ge_u32 %s, 0x%x" % (s(sCNT), SPIN_MAX))
        asm("s_cbranch_scc1 %s" % D)
        asm("s_sleep %d" % opts.get("sleep", 3))
        poll_issue(soff, vd, vo, n)
        asm("s_branch %s" % L)
        asm.label(D)
    def ppoll(soff, n, regs, vo, smask=None):
        k = len(regs)
        L, D = lab("pp"), lab("ppd")
        m = (1 << n) - 1
        asm("s_mov_b32 %s, %s" % (s(sMASK), smask if smask else "0x%x" % (m & 0xffffffff)))
        asm("s_mov_b32 %s, 0x%x" % (s(sMASK + 1), m >> 32))
        for i, r in enumerate(regs):
            poll_issue(soff, r, vo, n)
            if i + 1 < k: asm("s_sleep %d" % opts.get("pstag", 6))
        asm("s_mov_b32 %s, 0" % s(sCNT))
        asm.label(L)
        for i, r in enumerate(regs):
            asm("s_waitcnt vmcnt(%d)" % (k - 1))
            asm("v_cmp_eq_u32 vcc, %s, %s" % (s(sNON), v(r)))
            asm("v_cmp_eq_u32 %s, %s, %s" % (s(sPC, 2), s(sNON + 1), v(r + 1)))
            asm("s_add_u32 %s, %s, 1" % (s(sCNT), s(sCNT)))
            asm("s_nop 3")
            asm("s_and_b64 %s, %s, vcc" % (s(sPC, 2), s(sPC, 2)))
            asm("s_and_b64 %s, %s, %s" % (s(sPC, 2), s(sPC, 2), s(sMASK, 2)))
            asm("s_cmp_eq_u64 %s, %s" % (s(sPC, 2), s(sMASK, 2)))
            asm("s_cbranch_scc1 %s" % D)
            poll_issue(soff, r, vo, n)
        asm("s_cmp_lt_u32 %s, 0x%x" % (s(sCNT), SPIN_MAX * 3))
        asm("s_cbranch_scc1 %s" % L)
        asm.label(D)
    def flag_store(soff, vd, vo, replicas=1, rshift=11):
        if replicas > 1:
            lane(vo)
            asm("v_lshlrev_b32 %s, %d, %s" % (v(vo), rshift, v(vo)))
        else:
            asm("v_mov_b32 %s, 0" % v(vo))
        asm("v_mov_b32 %s, %s" % (v(vd), s(sNON)))
        asm("v_mov_b32 %s, %s" % (v(vd + 1), s(sNON + 1)))
        asm("s_mov_b64 exec, %d" % ((1 << replicas) - 1 if replicas <= 6 else -1) if replicas <= 6 else "s_mov_b32 exec_lo, 0x%x\n    s_mov_b32 exec_hi, 0" % ((1 << replicas) - 1))
        asm("buffer_store_dwordx2 %s, %s, %s, %s offen sc1" % (v(vd, 2), v(vo), s(SWS, 4), soff))
        asm("s_mov_b64 exec, -1")
    kernel_header(asm, N)
    asm("s_cmp_ge_u32 s2, 256")
    asm("s_cbranch_scc1 %s_end" % N)
    if stamp:
        for i in range(26): asm("s_mov_b32 %s, 0" % s(STB + i))
    st(0)
    asm("s_load_dwordx4 s[4:7], s[0:1], 56")
    asm("s_load_dwordx4 s[36:39], s[0:1], 0")
    asm("s_load_dwordx4 s[40:43], s[0:1], 24")
    asm("v_lshrrev_b32 v1, 6, v0")
    asm("s_nop 0")
    asm("v_readfirstlane_b32 %s, v1" % s(sW))
    CPF = opts.get("cpf", 0)
    if CPF:
        asm("s_lshr_b32 %s, s2, 3" % s(sT0))
        asm("s_nop 1")
        asm("s_cmp_lg_u32 %s, %d" % (s(sW), CPF))
        asm("s_cbranch_scc1 %s_nocpf" % N)
        asm("s_getpc_b64 s[24:25]")
        asm.label("%s_cpfpc" % N)
        asm("s_sub_u32 s24, s24, (%s_cpfpc - %s)" % (N, N))
        asm("s_subb_u32 s25, s25, 0")
        asm("s_and_b32 s25, s25, 0xffff")
        asm("s_mov_b32 s26, (%s_end - %s)" % (N, N))
        asm("s_mov_b32 s27, 0x20000")
        lane(5)
        asm("s_and_b32 %s, %s, 3" % (s(sT0), s(sT0)))
        asm("s_lshl_b32 %s, %s, 6" % (s(sT0), s(sT0)))
        asm("v_add_u32 v5, %s, v5" % s(sT0))
        asm("v_lshlrev_b32 v5, 7, v5")
        asm("buffer_load_dword v223, v5, s[24:27], 0 offen")
        asm.label("%s_nocpf" % N)
    sBR, sRB, sCB, sPART, sCBP, sW4, sWM, sWN = 44, 45, 46, 47, 48, 49, 50, 51
    asm("s_and_b32 %s, s2, 7" % s(sP8))
    asm("s_lshr_b32 %s, s2, 3" % s(sSLOT))
    asm("s_getreg_b32 %s, hwreg(HW_REG_XCC_ID, 0, 4)" % s(sXCC))
    asm("s_and_b32 %s, %s, 7" % (s(sXCC), s(sXCC)))
    if not D1:
        asm("s_cmp_ge_u32 %s, 15" % s(sSLOT))
        asm("s_cselect_b32 %s, 1, 0" % s(sBR))
        asm("s_cselect_b32 %s, 15, 0" % s(sT0))
        asm("s_sub_u32 %s, %s, %s" % (s(sCB), s(sSLOT), s(sT0)))
        asm("s_mov_b32 %s, %s" % (s(sRB), s(sP8)))
    else:
        asm("s_lshr_b32 %s, %s, 2" % (s(sBR), s(sP8)))
        asm("s_and_b32 %s, %s, 3" % (s(sT0), s(sP8)))
        asm("s_mul_i32 %s, %s, 30" % (s(sT0), s(sT0)))
        asm("s_add_u32 %s, %s, %s" % (s(sT0), s(sT0), s(sSLOT)))
        asm("s_cmp_ge_u32 %s, 60" % s(sT0))
        asm("s_cselect_b32 %s, 4, 0" % s(sT1))
        asm("s_cselect_b32 %s, 60, 0" % s(sT2))
        asm("s_sub_u32 %s, %s, %s" % (s(sT0), s(sT0), s(sT2)))
        asm("s_lshr_b32 %s, %s, 2" % (s(sCB), s(sT0)))
        asm("s_and_b32 %s, %s, 3" % (s(sT0), s(sT0)))
        asm("s_add_u32 %s, %s, %s" % (s(sRB), s(sT1), s(sT0)))
    asm("s_cmp_ge_u32 %s, 5" % s(sCB))
    asm("s_cselect_b32 %s, 1, 0" % s(sPART))
    asm("s_cmp_ge_u32 %s, 10" % s(sCB))
    asm("s_cselect_b32 %s, 2, %s" % (s(sPART), s(sPART)))
    asm("s_mul_i32 %s, %s, 5" % (s(sT0), s(sPART)))
    asm("s_sub_u32 %s, %s, %s" % (s(sCBP), s(sCB), s(sT0)))
    asm("s_and_b32 %s, %s, 3" % (s(sW4), s(sW)))
    asm("s_lshr_b32 %s, %s, 1" % (s(sWM), s(sW4)))
    asm("s_and_b32 %s, %s, 1" % (s(sWN), s(sW4)))
    asm("s_waitcnt lgkmcnt(0)")
    if opts.get("wsoff"):
        asm("s_add_u32 s6, s6, 0x%x" % (opts["wsoff"] << 20))
        asm("s_addc_u32 s7, s7, 0")
    srd(asm, SWS, "s6", "s7", WS_REC)
    srd(asm, SDBG, "s4", "s5", 256)
    asm("s_cmp_ge_u32 %s, 4" % s(sW))
    asm("s_cbranch_scc1 %s_p1h" % N)
    ACC = 0; FX = [128, 144]; FW = [160, 168]
    vXA, vWA = 176, 180
    vL, vT, vU, vV = 194, 195, 196, 197
    vSO = 198; TMP = 200; TE = 216; vN = 220
    sSTG, sDELTA, sRBUF, sNEG = 52, 53, 54, 55
    sTN, sGG, sSO = 56, 57, 58
    sC0, sC1 = 60, 62
    asm("s_or_b32 %s, s2, %s" % (s(sT0), s(sW)))
    asm("s_cmp_lg_u32 %s, 0" % s(sT0))
    asm("s_cbranch_scc1 %s_nonon" % N)
    asm("s_memrealtime %s" % s(sNON, 2))
    asm("s_waitcnt lgkmcnt(0)")
    asm("s_or_b32 %s, %s, 1" % (s(sNON), s(sNON)))
    asm("v_mov_b32 v2, %s" % s(sNON))
    asm("v_mov_b32 v3, %s" % s(sNON + 1))
    asm("v_mov_b32 v4, 0")
    asm("s_mov_b64 exec, 1")
    asm("buffer_store_dwordx2 v[2:3], v4, %s, 0 offen sc1" % s(SDBG, 4))
    asm("s_mov_b64 exec, -1")
    asm.label("%s_nonon" % N)
    TLBW = opts.get("tlbw", 0)
    if TLBW:
        asm("s_cmp_lg_u32 %s, 2" % s(sW))
        asm("s_cbranch_scc1 %s_notlb" % N)
        asm("s_load_dwordx2 s[4:5], s[0:1], 48")
        lane(5)
        asm("v_lshlrev_b32 v5, %d, v5" % TLBW)
        asm("buffer_load_dword v223, v5, %s, 0 offen sc1" % s(SWS, 4))
        asm("s_waitcnt lgkmcnt(0)")
        srd(asm, SB_, "s4", "s5", 2048 * 2560)
        asm("buffer_load_dword v223, v5, %s, 0 offen sc1" % s(SB_, 4))
        asm("v_mov_b32 v5, 128")
        asm("buffer_load_dword v223, v5, %s, 0 offen sc1" % s(SDBG, 4))
        asm.label("%s_notlb" % N)
    asm("s_cmp_lg_u32 %s, 0" % s(sW))
    asm("s_cbranch_scc1 %s_noinit" % N)
    asm("s_lshl_b32 %s, %s, 3" % (s(sT0), s(sXCC)))
    asm("s_lshl_b64 s[4:5], 1, %s" % s(sT0))
    asm("s_lshl_b32 %s, %s, 3" % (s(sT0), s(sP8)))
    asm("s_add_u32 %s, %s, 64" % (s(sT0), s(sT0)))
    asm("v_mov_b32 v2, s4")
    asm("v_mov_b32 v3, s5")
    asm("v_mov_b32 v4, %s" % s(sT0))
    if not D1:
        asm("s_mov_b64 exec, 1")
        asm("buffer_atomic_add_x2 v[2:3], v4, %s, 0 offen" % s(SDBG, 4))
        asm("s_mov_b64 exec, -1")
    lane(5)
    asm("v_lshlrev_b32 v5, 2, v5")
    asm("v_add_u32 v5, 0x%x, v5" % L_SYNC)
    asm("v_mov_b32 v6, 0")
    asm("s_mov_b32 exec_lo, 0xffff")
    asm("s_mov_b32 exec_hi, 0")
    asm("ds_write_b32 v5, v6")
    asm("s_mov_b64 exec, -1")
    asm("s_waitcnt lgkmcnt(0)")
    if opts.get("ft", 0):
        lane(5)
        asm("s_lshl_b32 %s, %s, 2" % (s(sT0), s(sP8)))
        asm("s_and_b32 %s, %s, 3" % (s(sT1), s(sSLOT)))
        asm("s_add_u32 %s, %s, %s" % (s(sT0), s(sT0), s(sT1)))
        asm("s_lshl_b32 %s, %s, 7" % (s(sT0), s(sT0)))
        asm("s_add_u32 %s, %s, %d" % (s(sT0), s(sT0), F2))
        asm("s_lshr_b32 %s, %s, 2" % (s(sT1), s(sP8)))
        asm("s_lshl_b32 %s, %s, 3" % (s(sT1), s(sT1)))
        asm("s_and_b32 %s, %s, 3" % (s(sT2), s(sP8)))
        asm("s_lshl_b32 %s, %s, 1" % (s(sT2), s(sT2)))
        asm("s_lshr_b32 %s, %s, 4" % (s(sT3), s(sSLOT)))
        asm("s_add_u32 %s, %s, %s" % (s(sT2), s(sT2), s(sT3)))
        asm("s_add_u32 %s, %s, %s" % (s(sT1), s(sT1), s(sT2)))
        asm("s_lshl_b32 %s, %s, 8" % (s(sT1), s(sT1)))
        if R3 > 1:
            asm("s_and_b32 %s, %s, %d" % (s(sT2), s(sSLOT), R3 - 1))
            asm("s_lshl_b32 %s, %s, 12" % (s(sT2), s(sT2)))
            asm("s_add_u32 %s, %s, %s" % (s(sT1), s(sT1), s(sT2)))
        asm("s_add_u32 %s, %s, %d" % (s(sT1), s(sT1), F3 - 128))
        asm("v_lshlrev_b32 v6, 3, v5")
        asm("v_add_u32 v7, %s, v6" % s(sT0))
        asm("v_add_u32 v6, %s, v6" % s(sT1))
        asm("v_cmp_gt_u32 vcc, 16, v5")
        asm("s_nop 1")
        asm("v_cndmask_b32 v6, v6, v7, vcc")
        asm("s_mov_b32 exec_lo, -1")
        asm("s_mov_b32 exec_hi, 0xffff")
        asm("buffer_load_dword v223, v6, %s, 0 offen sc1" % s(SWS, 4))
        asm("s_mov_b64 exec, -1")
    asm.label("%s_noinit" % N)
    asm("s_cmp_ge_u32 %s, 30" % s(sSLOT))
    asm("s_cbranch_scc1 %s_p2c" % N)
    lane(vL)
    asm.c("X frag read addr")
    asm("v_and_b32 %s, 31, %s" % (v(vT), v(vL)))
    asm("s_lshl_b32 %s, %s, 7" % (s(sT0), s(sWM)))
    asm("v_add_u32 %s, %s, %s" % (v(vU), s(sT0), v(vT)))
    asm("v_lshlrev_b32 %s, 7, %s" % (v(vU), v(vU)))
    asm("v_bfe_u32 %s, %s, 1, 3" % (v(vT), v(vT)))
    asm("v_lshrrev_b32 %s, 5, %s" % (v(vV), v(vL)))
    for ks in range(4):
        asm("v_add_u32 %s, %d, %s" % (v(TMP), 2 * ks, v(vV)))
        asm("v_xor_b32 %s, %s, %s" % (v(TMP), v(TMP), v(vT)))
        asm("v_lshl_add_u32 %s, %s, 4, %s" % (v(vXA + ks), v(TMP), v(vU)))
    asm.c("W frag read addr")
    asm("v_bfe_u32 %s, %s, 2, 2" % (v(vT), v(vL)))
    asm("v_lshrrev_b32 %s, 5, %s" % (v(vU), v(vL)))
    asm("v_lshl_add_u32 %s, %s, 3, %s" % (v(vU), v(vU), v(vT)))
    asm("v_lshlrev_b32 %s, 8, %s" % (v(vU), v(vU)))
    asm("v_add_u32 %s, 32768, %s" % (v(vU), v(vU)))
    asm("v_and_b32 %s, 1, %s" % (v(vV), v(vL)))
    asm("v_lshl_add_u32 %s, %s, 3, %s" % (v(vU), v(vV), v(vU)))
    asm("v_bfe_u32 %s, %s, 4, 1" % (v(vV), v(vL)))
    asm("v_lshlrev_b32 %s, 1, %s" % (v(vV), v(vV)))
    asm("v_bfe_u32 %s, %s, 1, 1" % (v(TMP), v(vL)))
    asm("v_add_u32 %s, %s, %s" % (v(vV), v(vV), v(TMP)))
    asm("s_lshl_b32 %s, %s, 3" % (s(sT0), s(sWN)))
    asm("v_add_u32 %s, %s, %s" % (v(vV), s(sT0), v(vV)))
    asm("v_lshlrev_b32 %s, 2, %s" % (v(vT), v(vT)))
    for tn in range(2):
        asm("v_add_u32 %s, %d, %s" % (v(TMP), 4 * tn, v(vV)))
        asm("v_xor_b32 %s, %s, %s" % (v(TMP), v(TMP), v(vT)))
        asm("v_lshl_add_u32 %s, %s, 4, %s" % (v(vWA + tn), v(TMP), v(vU)))
    for i in range(128):
        asm("v_mov_b32 %s, 0" % v(ACC + i))
    asm("s_mul_i32 %s, %s, 3" % (s(sT0), s(sBR)))
    asm("s_add_u32 %s, %s, %s" % (s(sT0), s(sT0), s(sPART)))
    asm("s_mul_i32 %s, %s, %d" % (s(sT0), s(sT0), REG))
    asm("s_add_u32 s6, s6, %s" % s(sT0))
    asm("s_addc_u32 s7, s7, 0")
    SO = SA_
    srd(asm, SO, "s6", "s7", REG)
    def rdX(st_, tm, ks):
        asm("ds_read_b128 %s, %s offset:%d" % (v(FX[st_] + 4 * tm, 4), v(vXA + ks), tm * 4096))
    def rdW(st_, tn, a_, ks):
        asm("ds_read_b64_tr_b16 %s, %s offset:%d" % (v(FW[st_] + 4 * tn + 2 * a_, 2), v(vWA + tn), ks * 4096 + a_ * 1024))
    def reads(st_, ks):
        return [lambda: rdW(st_, 0, 0, ks), lambda: rdW(st_, 0, 1, ks), lambda: rdX(st_, 0, ks), lambda: rdX(st_, 1, ks),
                lambda: rdW(st_, 1, 0, ks), lambda: rdW(st_, 1, 1, ks), lambda: rdX(st_, 2, ks), lambda: rdX(st_, 3, ks)]
    MORD = [(0, 0), (1, 0), (0, 1), (1, 1), (2, 0), (2, 1), (3, 0), (3, 1)]
    def mfma(orient, st_, tm, tn):
        acc = v(ACC + (tm * 2 + tn) * 16, 16)
        x = v(FX[st_] + 4 * tm, 4); w = v(FW[st_] + 4 * tn, 4)
        if orient == "T": asm("v_mfma_f32_32x32x16_bf16 %s, %s, %s, %s" % (acc, w, x, acc))
        else: asm("v_mfma_f32_32x32x16_bf16 %s, %s, %s, %s" % (acc, x, w, acc))
    PF = opts.get("pf", 0)
    if PF:
        nst_ = 10 - PF
        per = (1024 * nst_ + 119) // 120
        assert per <= 64
        asm("s_lshl_b32 %s, %s, 2" % (s(sT0), s(sSLOT)))
        asm("s_add_u32 %s, %s, %s" % (s(sT0), s(sT0), s(sW4)))
        asm("s_mul_i32 %s, %s, %d" % (s(sT0), s(sT0), per))
        asm("v_add_u32 %s, %s, %s" % (v(vT), s(sT0), v(vL)))
        asm("v_lshrrev_b32 %s, 10, %s" % (v(vU), v(vT)))
        asm("v_and_b32 %s, 1023, %s" % (v(vV), v(vT)))
        asm("s_lshr_b32 %s, %s, 1" % (s(sT1), s(sP8)))
        asm("s_and_b32 %s, %s, 1" % (s(sT1), s(sT1)))
        asm("s_lshl_b32 %s, %s, 10" % (s(sT1), s(sT1)))
        asm("v_add_u32 %s, %s, %s" % (v(vV), s(sT1), v(vV)))
        asm("v_mul_u32_u24 %s, 1280, %s" % (v(vV), v(vV)))
        asm("v_lshl_add_u32 %s, %s, 7, %s" % (v(vV), v(vU), v(vV)))
        asm("v_add_u32 %s, %d, %s" % (v(vV), PF * 128, v(vV)))
        asm("v_lshrrev_b32 %s, 4, %s" % (v(vU), v(vT)))
        asm("v_add_u32 %s, %d, %s" % (v(vU), 64 * PF, v(vU)))
        asm("v_mul_u32_u24 %s, 3840, %s" % (v(vU), v(vU)))
        asm("v_and_b32 %s, 15, %s" % (v(TMP), v(vT)))
        asm("v_lshl_add_u32 %s, %s, 7, %s" % (v(vU), v(TMP), v(vU)))
        asm("s_and_b32 %s, %s, 1" % (s(sT1), s(sP8)))
        asm("s_mul_i32 %s, %s, %d" % (s(sT1), s(sT1), 7 * 256))
        asm("v_add_u32 %s, %s, %s" % (v(vU), s(sT1), v(vU)))
        asm("v_mov_b32 %s, 0x%x" % (v(TMP), OOB))
        asm("v_cmp_gt_u32 vcc, %d, %s" % (1024 * nst_, v(vT)))
        asm("v_cmp_gt_u32 %s, %d, %s" % (s(sPC, 2), per, v(vL)))
        asm("s_nop 1")
        asm("s_and_b64 vcc, vcc, %s" % s(sPC, 2))
        asm("s_nop 1")
        asm("v_cndmask_b32 %s, %s, %s, vcc" % (v(vV), v(TMP), v(vV)))
        asm("v_cndmask_b32 %s, %s, %s, vcc" % (v(vU), v(TMP), v(vU)))
        asm("s_cmp_eq_u32 %s, 0" % s(sBR))
        asm("s_cselect_b32 s4, s36, s40")
        asm("s_cselect_b32 s5, s37, s41")
        srd(asm, SB_, "s4", "s5", 2048 * 1280)
        asm("buffer_load_dword v223, %s, %s, 0 offen" % (v(vV), s(SB_, 4)))
        asm("s_cmp_eq_u32 %s, 0" % s(sBR))
        asm("s_cselect_b32 s4, s38, s42")
        asm("s_cselect_b32 s5, s39, s43")
        srd(asm, SB_, "s4", "s5", 640 * 3840)
        asm("buffer_load_dword v223, %s, %s, 0 offen" % (v(vU), s(SB_, 4)))
    asm("s_lshl_b32 %s, %s, 3" % (s(sT0), s(sRB)))
    asm("s_lshl_b32 %s, %s, 2" % (s(sT1), s(sWM)))
    asm("s_add_u32 %s, %s, %s" % (s(sT3), s(sT0), s(sT1)))
    sVAR = 59
    asm("s_mov_b32 %s, %s" % (s(sVAR), s(sPART)))
    asm("s_cmp_eq_u32 %s, 0" % s(sBR))
    asm("s_cbranch_scc1 %s_varok" % N)
    asm("s_cmp_eq_u32 %s, 2" % s(sPART))
    asm("s_cselect_b32 %s, 2, 3" % s(sVAR))
    asm.label("%s_varok" % N)
    asm("s_cmp_eq_u32 %s, 0" % s(sVAR))
    asm("s_cbranch_scc1 %s_adrT" % N)
    asm("s_cmp_eq_u32 %s, 3" % s(sVAR))
    asm("s_cbranch_scc1 %s_adrT" % N)
    asm("s_mul_i32 %s, %s, 40960" % (s(sT0), s(sT3)))
    asm("s_lshl_b32 %s, %s, 11" % (s(sT1), s(sCBP)))
    asm("s_add_u32 %s, %s, %s" % (s(sT0), s(sT0), s(sT1)))
    asm("s_lshl_b32 %s, %s, 10" % (s(sT1), s(sWN)))
    asm("s_add_u32 %s, %s, %s" % (s(sT0), s(sT0), s(sT1)))
    asm("v_lshrrev_b32 %s, 5, %s" % (v(vT), v(vL)))
    asm("v_mul_u32_u24 %s, 10240, %s" % (v(vT), v(vT)))
    asm("v_and_b32 %s, 31, %s" % (v(vU), v(vL)))
    asm("v_lshl_add_u32 %s, %s, 4, %s" % (v(vSO), v(vU), v(vT)))
    asm("v_add_u32 %s, %s, %s" % (v(vSO), s(sT0), v(vSO)))
    asm("s_movk_i32 %s, 512" % s(sTN))
    asm("s_movk_i32 %s, 20480" % s(sGG))
    asm("s_branch %s_adrok" % N)
    asm.label("%s_adrT" % N)
    asm("s_mul_i32 %s, %s, 40" % (s(sT0), s(sT3)))
    asm("s_lshl_b32 %s, %s, 3" % (s(sT1), s(sCBP)))
    asm("s_add_u32 %s, %s, %s" % (s(sT0), s(sT0), s(sT1)))
    asm("s_lshl_b32 %s, %s, 2" % (s(sT1), s(sWN)))
    asm("s_add_u32 %s, %s, %s" % (s(sT0), s(sT0), s(sT1)))
    asm("s_lshl_b32 %s, %s, 10" % (s(sT0), s(sT0)))
    asm("v_lshlrev_b32 %s, 4, %s" % (v(vSO), v(vL)))
    asm("v_add_u32 %s, %s, %s" % (v(vSO), s(sT0), v(vSO)))
    asm("s_movk_i32 %s, 2048" % s(sTN))
    asm("s_movk_i32 %s, 1024" % s(sGG))
    asm.label("%s_adrok" % N)
    asm("s_cmp_lt_u32 %s, 2" % s(sVAR))
    asm("s_cselect_b32 %s, %s, 1.0" % (s(sC0), fhex(LOG2E)))
    asm("s_cmp_eq_u32 %s, 3" % s(sVAR))
    asm("s_cbranch_scc0 %s_c0ok" % N)
    asm("s_cmp_eq_u32 %s, 0" % s(sPART))
    asm("s_cselect_b32 %s, %s, 1.0" % (s(sC0), fhex(QSCALE)))
    asm.label("%s_c0ok" % N)
    asm("s_mov_b32 %s, %s" % (s(sC0 + 1), s(sC0)))
    asm("s_mov_b32 %s, %s" % (s(sC1), fhex(1e-6)))
    asm("s_mov_b32 %s, 0" % s(sSTG))
    asm("s_mov_b32 %s, 0" % s(sRBUF))
    asm("s_mov_b32 %s, 0x%x" % (s(sNEG), (-2 * 49152) & 0xffffffff))
    asm("s_barrier")
    st(1)
    for f in reads(0, 0): f()
    asm("s_cmp_eq_u32 %s, 0" % s(sVAR))
    asm("s_cbranch_scc1 %s_loopT" % N)
    asm("s_cmp_eq_u32 %s, 3" % s(sVAR))
    asm("s_cbranch_scc0 %s_loopF" % N)
    def loop(orient):
        L = "%s_loop%s" % (N, orient)
        asm(".p2align 4")
        asm.label(L)
        for ks in range(4):
            st_ = ks & 1; nst_ = st_ ^ 1
            if ks == 3:
                asm("s_cbranch_scc1 %s_final%s" % (N, orient))
            asm("s_waitcnt lgkmcnt(0)")
            if ks < 3:
                rs = reads(nst_, ks + 1)
                for m in range(8):
                    mfma(orient, st_, *MORD[m])
                    if m < 4:
                        rs[2 * m](); rs[2 * m + 1]()
                    if ks == 2 and m == 4:
                        asm("s_add_u32 %s, %s, 1" % (s(sRBUF), s(sRBUF)))
                        asm("s_cmp_eq_u32 %s, 3" % s(sRBUF))
                        asm("s_cselect_b32 %s, 0, %s" % (s(sRBUF), s(sRBUF)))
                        asm("s_cselect_b32 %s, %s, 49152" % (s(sDELTA), s(sNEG)))
                    if ks == 2 and m == 5:
                        for k in range(3): asm("v_add_u32 %s, %s, %s" % (v(vXA + k), s(sDELTA), v(vXA + k)))
                    if ks == 2 and m == 6:
                        asm("v_add_u32 %s, %s, %s" % (v(vXA + 3), s(sDELTA), v(vXA + 3)))
                        for k in range(2): asm("v_add_u32 %s, %s, %s" % (v(vWA + k), s(sDELTA), v(vWA + k)))
                        asm("s_add_u32 %s, %s, 1" % (s(sSTG), s(sSTG)))
                        asm("s_cmp_eq_u32 %s, 9" % s(sSTG))
            else:
                mfma(orient, st_, *MORD[0])
                mfma(orient, st_, *MORD[1])
                asm("s_barrier")
                rs = reads(nst_, 0)
                mfma(orient, st_, *MORD[2])
                rs[0](); rs[1](); rs[2]()
                mfma(orient, st_, *MORD[3])
                rs[3](); rs[4](); rs[5]()
                mfma(orient, st_, *MORD[4])
                rs[6](); rs[7]()
                mfma(orient, st_, *MORD[5])
                mfma(orient, st_, *MORD[6])
                mfma(orient, st_, *MORD[7])
        asm("s_branch %s" % L)
    loop("T")
    loop("F")
    WALL = 224
    XS = [FX[0], FX[1]]
    def epi_lines(kind, q):
        tm, tn = q >> 1, q & 1
        b = ACC + q * 16
        tb_ = TMP + 8 * (q & 1)
        L_ = []
        if kind == "phi":
            for qq in range(4):
                r0 = b + 4 * qq
                L_.append("v_pk_mul_f32 %s, %s, %s" % (v(TE, 2), v(r0, 2), s(sC0, 2)))
                L_.append("v_pk_mul_f32 %s, %s, %s" % (v(TE + 2, 2), v(r0 + 2, 2), s(sC0, 2)))
                for k in range(4): L_.append("v_exp_f32_e64 %s, %s clamp" % (v(TE + k), v(TE + k)))
                for k in range(4): L_.append("v_max_f32 %s, %s, %s" % (v(r0 + k), s(sC1), v(r0 + k)))
                L_.append("v_pk_add_f32 %s, %s, %s" % (v(r0, 2), v(r0, 2), v(TE, 2)))
                L_.append("v_pk_add_f32 %s, %s, %s" % (v(r0 + 2, 2), v(r0 + 2, 2), v(TE + 2, 2)))
                L_.append("v_cvt_pk_bf16_f32 %s, %s, %s" % (v(tb_ + 2 * qq), v(r0), v(r0 + 1)))
                L_.append("v_cvt_pk_bf16_f32 %s, %s, %s" % (v(tb_ + 2 * qq + 1), v(r0 + 2), v(r0 + 3)))
        else:
            if kind == "scale":
                for p_ in range(8): L_.append("v_pk_mul_f32 %s, %s, %s" % (v(b + 2 * p_, 2), v(b + 2 * p_, 2), s(sC0, 2)))
            for p_ in range(8): L_.append("v_cvt_pk_bf16_f32 %s, %s, %s" % (v(tb_ + p_), v(b + 2 * p_), v(b + 2 * p_ + 1)))
        L_.append("s_mul_i32 %s, %s, %d" % (s(sSO), s(sTN), tn))
        if tm: L_.append("s_add_u32 %s, %s, %d" % (s(sSO), s(sSO), tm * 40960))
        L_.append("buffer_store_dwordx4 %s, %s, %s, %s offen%s" % (v(tb_, 4), v(vSO), s(SO, 4), s(sSO), SC))
        L_.append("s_add_u32 %s, %s, %s" % (s(sSO), s(sSO), s(sGG)))
        L_.append("buffer_store_dwordx4 %s, %s, %s, %s offen%s" % (v(tb_ + 4, 4), v(vSO), s(SO, 4), s(sSO), SC))
        return L_
    def final(orient, kind, label):
        asm.label(label)
        sync_issue(vN, vN + 2)
        asm("s_waitcnt lgkmcnt(0)")
        mfma(orient, 1, *MORD[0])
        mfma(orient, 1, *MORD[1])
        asm("s_barrier")
        rd = []
        for ks in range(4):
            rd.append("ds_read_b128 %s, %s" % (v(XS[0] + 4 * ks, 4), v(vXA + ks)))
            for a_ in range(2):
                rd.append("ds_read_b64_tr_b16 %s, %s offset:%d" % (v(WALL + ks * 4 + 2 * a_, 2), v(vWA), ks * 4096 + a_ * 1024))
        for ks in range(4):
            for a_ in range(2):
                rd.append("ds_read_b64_tr_b16 %s, %s offset:%d" % (v(WALL + (4 + ks) * 4 + 2 * a_, 2), v(vWA + 1), ks * 4096 + a_ * 1024))
        per = [4, 4, 3, 3, 3, 3]
        pos = 0
        for m in range(2, 8):
            mfma(orient, 1, *MORD[m])
            for k in range(per[m - 2]):
                asm(rd[pos]); pos += 1
        assert pos == len(rd) == 20
        for q in range(8):
            tm, tn = q >> 1, q & 1
            xs = XS[tm & 1]
            if q == 0:
                asm("s_waitcnt lgkmcnt(8)")
            elif q == 1:
                asm("s_waitcnt lgkmcnt(4)")
            elif tn == 0:
                asm("s_waitcnt lgkmcnt(0)")
                if tm == 3: asm("s_barrier")
            ep = epi_lines(kind, q - 2) if q >= 2 else []
            if q == 2: ep = ["s_nop 7"] + ep
            chunk = (len(ep) + 3) // 4
            acc = v(ACC + q * 16, 16)
            for ks in range(4):
                x = v(xs + 4 * ks, 4); w = v(WALL + (tn * 4 + ks) * 4, 4)
                if orient == "T": asm("v_mfma_f32_32x32x16_bf16 %s, %s, %s, %s" % (acc, w, x, acc))
                else: asm("v_mfma_f32_32x32x16_bf16 %s, %s, %s, %s" % (acc, x, w, acc))
                if tn == 0 and tm < 3:
                    asm("ds_read_b128 %s, %s offset:%d" % (v(XS[(tm + 1) & 1] + 4 * ks, 4), v(vXA + ks), (tm + 1) * 4096))
                for ln in ep[ks * chunk:(ks + 1) * chunk]: asm(ln)
        st(2)
        for ln in epi_lines(kind, 6): asm(ln)
        for ln in epi_lines(kind, 7): asm(ln)
        asm("s_branch %s_fin1" % N)
    asm.label("%s_finalT" % N)
    asm("s_cmp_eq_u32 %s, 0" % s(sVAR))
    asm("s_cbranch_scc0 %s_fin_ts" % N)
    final("T", "phi", "%s_fin_tp" % N)
    final("T", "scale", "%s_fin_ts" % N)
    asm.label("%s_finalF" % N)
    asm("s_cmp_eq_u32 %s, 1" % s(sVAR))
    asm("s_cbranch_scc0 %s_fin_fn" % N)
    final("F", "phi", "%s_fin_fp" % N)
    final("F", "plain", "%s_fin_fn" % N)
    asm.label("%s_fin1" % N)
    asm("v_mov_b32 %s, 0x%x" % (v(vT), W_ISS))
    asm("v_mov_b32 %s, 1" % v(vU))
    asm("s_mov_b64 exec, 1")
    asm("ds_add_u32 %s, %s" % (v(vT), v(vU)))
    asm("s_mov_b64 exec, -1")
    st(3)
    get_sync(vN, vN + 2, preissued=True)
    release()
    asm("s_lshl_b32 %s, %s, 3" % (s(sT1), s(sBR)))
    asm("s_add_u32 %s, %s, %s" % (s(sT1), s(sT1), s(sRB)))
    asm("s_lshl_b32 %s, %s, 4" % (s(sT1), s(sT1)))
    asm("s_add_u32 %s, %s, %s" % (s(sT1), s(sT1), s(sCB)))
    asm("s_lshl_b32 %s, %s, 3" % (s(sT1), s(sT1)))
    asm("s_add_u32 %s, %s, %d" % (s(sT1), s(sT1), F1))
    lds_arrive(W_CNT1, 4, vN + 2, vN, s(sT1), replicas=REPL)
    st(4)
    asm("s_branch %s_p2setup" % N)
    asm.label("%s_p2c" % N)
    asm("s_barrier")
    get_sync(220, 222)
    asm("s_branch %s_p2setup" % N)

    asm.label("%s_p1h" % N)
    hL, hT, hU, hV = 2, 3, 4, 5
    vDX, vDW, hTMP = 8, 16, 20
    sXOFF, sWOFF, sM0X, sM0W, sDBUF, sHS = 52, 53, 54, 55, 56, 57
    SX, SWD = SA_, SB_
    asm("s_cmp_lt_u32 %s, 30" % s(sSLOT))
    asm("s_cbranch_scc1 %s_p1h2" % N)
    asm("s_barrier")
    asm("s_branch %s_p2h" % N)
    asm.label("%s_p1h2" % N)
    lane(hL)
    asm("v_lshrrev_b32 %s, 3, %s" % (v(hT), v(hL)))
    asm("s_lshl_b32 %s, %s, 6" % (s(sT0), s(sW4)))
    asm("v_add_u32 %s, %s, %s" % (v(hT), s(sT0), v(hT)))
    asm("s_movk_i32 %s, 1280" % s(sT1))
    asm("v_mul_lo_u32 %s, %s, %s" % (v(hT), v(hT), s(sT1)))
    asm("v_lshrrev_b32 %s, 4, %s" % (v(hU), v(hL)))
    asm("v_and_b32 %s, 7, %s" % (v(hV), v(hL)))
    for par in range(2):
        if par == 1: asm("v_add_u32 %s, 4, %s" % (v(hU), v(hU)))
        asm("v_xor_b32 %s, %s, %s" % (v(hTMP + par), v(hV), v(hU)))
        asm("v_lshl_add_u32 %s, %s, 4, %s" % (v(hTMP + par), v(hTMP + par), v(hT)))
    for i in range(8):
        asm("v_add_u32 %s, %d, %s" % (v(vDX + i), i * 8 * 1280 - (i & 3) * 1024, v(hTMP + (i & 1))))
    asm("v_lshrrev_b32 %s, 4, %s" % (v(hU), v(hL)))
    asm("s_lshl_b32 %s, %s, 4" % (s(sT0), s(sW4)))
    asm("v_add_u32 %s, %s, %s" % (v(hT), s(sT0), v(hU)))
    asm("s_movk_i32 %s, 3840" % s(sT1))
    asm("v_mul_lo_u32 %s, %s, %s" % (v(hT), v(hT), s(sT1)))
    asm("v_lshlrev_b32 %s, 2, %s" % (v(hU), v(hU)))
    asm("v_and_b32 %s, 15, %s" % (v(hV), v(hL)))
    asm("v_xor_b32 %s, %s, %s" % (v(hV), v(hV), v(hU)))
    asm("v_lshl_add_u32 %s, %s, 4, %s" % (v(hT), v(hV), v(hT)))
    for i in range(4):
        asm("v_add_u32 %s, %d, %s" % (v(vDW + i), i * 4 * 3840 - i * 1024, v(hT)))
    asm("s_cmp_eq_u32 %s, 0" % s(sBR))
    asm("s_cselect_b32 s36, s36, s40")
    asm("s_cselect_b32 s37, s37, s41")
    asm("s_cselect_b32 s38, s38, s42")
    asm("s_cselect_b32 s39, s39, s43")
    asm("s_mul_i32 %s, %s, %d" % (s(sT0), s(sRB), 256 * 1280))
    asm("s_add_u32 s36, s36, %s" % s(sT0))
    asm("s_addc_u32 s37, s37, 0")
    asm("s_lshl_b32 %s, %s, 8" % (s(sT0), s(sCB)))
    asm("s_add_u32 s38, s38, %s" % s(sT0))
    asm("s_addc_u32 s39, s39, 0")
    asm("s_sub_u32 %s, %d, %s" % (s(sT1), 640 * 3840, s(sT0)))
    srd(asm, SX, "s36", "s37", 256 * 1280)
    srd(asm, SWD, "s38", "s39", s(sT1))
    def dma_stage():
        asm("s_lshl_b32 %s, %s, 13" % (s(sT0), s(sW4)))
        asm("s_add_u32 %s, %s, %s" % (s(sM0X), s(sDBUF), s(sT0)))
        asm("s_lshl_b32 %s, %s, 12" % (s(sT0), s(sW4)))
        asm("s_add_u32 %s, %s, %s" % (s(sT0), s(sT0), s(sDBUF)))
        asm("s_add_u32 %s, %s, 32768" % (s(sM0W), s(sT0)))
        for idx in range(8):
            if idx == 0:
                asm("s_mov_b32 m0, %s" % s(sM0X)); asm("s_nop 0")
            if idx == 4:
                asm("s_add_u32 m0, %s, 4096" % s(sM0X)); asm("s_nop 0")
            asm("buffer_load_dwordx4 %s, %s, %s offen offset:%d lds" % (v(vDX + idx), s(SX, 4), s(sXOFF), (idx & 3) * 1024))
        asm("s_mov_b32 m0, %s" % s(sM0W)); asm("s_nop 0")
        for j in range(4):
            asm("buffer_load_dwordx4 %s, %s, %s offen offset:%d lds" % (v(vDW + j), s(SWD, 4), s(sWOFF), j * 1024))
        asm("s_add_u32 %s, %s, 128" % (s(sXOFF), s(sXOFF)))
        asm("s_add_u32 %s, %s, %d" % (s(sWOFF), s(sWOFF), 64 * 3840))
        asm("s_add_u32 %s, %s, 49152" % (s(sDBUF), s(sDBUF)))
        asm("s_cmp_ge_u32 %s, %d" % (s(sDBUF), 3 * 49152))
        asm("s_cselect_b32 %s, 0, %s" % (s(sDBUF), s(sDBUF)))
    WARM = opts.get("warm", 3)
    if WARM:
        asm("s_load_dwordx2 s[4:5], s[0:1], 16")
        asm("s_load_dwordx2 s[6:7], s[0:1], 40")
        asm("s_lshl_b32 s58, %s, 2" % s(sSLOT))
        asm("s_add_u32 s58, s58, %s" % s(sW4))
        asm("s_mul_i32 s58, s58, %d" % (54 * 128))
        asm("v_lshlrev_b32 v6, 7, %s" % v(hL))
    asm("s_mov_b32 %s, 0" % s(sXOFF))
    asm("s_mov_b32 %s, 0" % s(sWOFF))
    asm("s_mov_b32 %s, 0" % s(sDBUF))
    asm("s_mov_b32 %s, 0" % s(sHS))
    pro = opts.get("pro", 2)
    Lp = "%s_hpro" % N
    asm.label(Lp)
    dma_stage()
    asm("s_add_u32 %s, %s, 1" % (s(sHS), s(sHS)))
    asm("s_cmp_eq_u32 %s, %d" % (s(sHS), pro))
    asm("s_cbranch_scc0 %s_hpro_n" % N)
    st(3)
    asm("s_waitcnt vmcnt(%d)" % (12 * (pro - 1)))
    st(1)
    asm("s_barrier")
    asm.label("%s_hpro_n" % N)
    asm("s_cmp_lt_u32 %s, 3" % s(sHS))
    asm("s_cbranch_scc1 %s" % Lp)
    asm("s_mov_b32 %s, 0" % s(sHS))
    Lh = "%s_hloop" % N
    asm.label(Lh)
    asm("s_cmp_lt_u32 %s, 8" % s(sHS))
    asm("s_cbranch_scc1 %s_hw12" % N)
    asm("s_waitcnt vmcnt(0)")
    asm("s_branch %s_hw" % N)
    asm.label("%s_hw12" % N)
    asm("s_waitcnt vmcnt(12)")
    asm.label("%s_hw" % N)
    asm("s_barrier")
    asm("s_cmp_lt_u32 %s, 7" % s(sHS))
    asm("s_cbranch_scc0 %s_hnodma" % N)
    dma_stage()
    if WARM:
        asm("s_cmp_eq_u32 %s, %d" % (s(sHS), WARM - 1))
        asm("s_cbranch_scc0 %s_hnodma" % N)
        asm("s_waitcnt lgkmcnt(0)")
        asm("s_cmp_lt_u32 %s, 4" % s(sP8))
        asm("s_cselect_b32 s4, s4, s6")
        asm("s_cselect_b32 s5, s5, s7")
        srd(asm, 60, "s4", "s5", 640 * 1280)
        asm("s_mov_b32 exec_lo, -1")
        asm("s_mov_b32 exec_hi, 0x3fffff")
        asm("buffer_load_dword v7, v6, s[60:63], s58 offen")
        asm("s_mov_b64 exec, -1")
        if opts.get("ft", 0):
            asm("s_cmp_eq_u32 %s, 0" % s(sW4))
            asm("s_cbranch_scc0 %s_hnodma" % N)
            asm("s_lshl_b32 %s, %s, 2" % (s(sT0), s(sP8)))
            asm("s_and_b32 %s, %s, 3" % (s(sT1), s(sSLOT)))
            asm("s_add_u32 %s, %s, %s" % (s(sT0), s(sT0), s(sT1)))
            asm("s_and_b32 %s, %s, %d" % (s(sT0), s(sT0) if opts.get("repl", 8) > 8 else s(sP8), opts.get("repl", 8) - 1))
            asm("s_lshl_b32 %s, %s, 11" % (s(sT0), s(sT0)))
            asm("s_add_u32 %s, %s, %d" % (s(sT0), s(sT0), F1))
            asm("s_lshr_b32 %s, %s, 2" % (s(sT1), s(sSLOT)))
            asm("s_lshl_b32 %s, %s, 7" % (s(sT1), s(sT1)))
            asm("s_add_u32 %s, %s, %s" % (s(sT0), s(sT0), s(sT1)))
            asm("v_lshlrev_b32 v23, 3, %s" % v(hL))
            asm("v_add_u32 v22, %s, v23" % s(sT0))
            asm("v_subrev_u32 v22, 256, v22")
            asm("s_add_u32 %s, %s, %d" % (s(sT0), s(sT0), 7 * 128))
            asm("v_add_u32 v23, %s, v23" % s(sT0))
            asm("v_cmp_gt_u32 vcc, 32, %s" % v(hL))
            asm("s_nop 1")
            asm("v_cndmask_b32 v23, v22, v23, vcc")
            asm("s_mov_b32 exec_lo, -1")
            asm("s_mov_b32 exec_hi, 0xffff")
            asm("buffer_load_dword v24, v23, %s, 0 offen sc1" % s(SWS, 4))
            asm("s_mov_b64 exec, -1")
    asm.label("%s_hnodma" % N)
    asm("s_add_u32 %s, %s, 1" % (s(sHS), s(sHS)))
    asm("s_cmp_lt_u32 %s, 10" % s(sHS))
    asm("s_cbranch_scc1 %s" % Lh)
    asm.label("%s_p2h" % N)
    st(2)
    sBR3, sRB3, sCB3 = 64, 65, 66
    def decode3():
        if not D1:
            asm("s_lshr_b32 %s, %s, 4" % (s(sBR3), s(sSLOT)))
            asm("s_bfe_u32 %s, %s, 0x10003" % (s(sRB3), s(sSLOT)))
            asm("s_lshl_b32 %s, %s, 1" % (s(sT0), s(sP8)))
            asm("s_add_u32 %s, %s, %s" % (s(sRB3), s(sRB3), s(sT0)))
            asm("s_and_b32 %s, %s, 7" % (s(sCB3), s(sSLOT)))
        else:
            asm("s_lshr_b32 %s, %s, 2" % (s(sBR3), s(sP8)))
            asm("s_and_b32 %s, %s, 3" % (s(sT0), s(sP8)))
            asm("s_lshl_b32 %s, %s, 2" % (s(sT0), s(sT0)))
            asm("s_lshr_b32 %s, %s, 3" % (s(sRB3), s(sSLOT)))
            asm("s_add_u32 %s, %s, %s" % (s(sRB3), s(sRB3), s(sT0)))
            asm("s_and_b32 %s, %s, 7" % (s(sCB3), s(sSLOT)))
    get_sync(220, 222)
    sHH, sRB2, sG0, sDQ, sTB, sNT = 44, 45, 46, 47, 48, 49
    sMSK, sM40 = 50, 52
    sP = 36
    sQM = 54
    sOffO, sOffQA, sBIG, sEPS = 62, 63, 67, 68
    S = 0; O = 144; Q = 160; F = [168, 176]; CM8 = 184; CM0 = 200; VF = [184, 192]
    vM, vNM = 216, 218
    vT = 220
    vLin, vKa, vVa, vL = 228, 229, 230, 231
    vOm, vOr, vFo, vU = 232, 233, 234, 235
    PB = 236
    PA = 168
    vL8 = 242
    AW = 4
    asm.label("%s_p2setup" % N)
    if not D1:
        asm("s_mov_b32 %s, %s" % (s(sHH), s(sSLOT)))
        asm("s_mov_b32 %s, %s" % (s(sRB2), s(sP8)))
    else:
        asm("s_lshl_b32 %s, %s, 2" % (s(sT0), s(sP8)))
        asm("s_and_b32 %s, %s, 3" % (s(sHH), s(sSLOT)))
        asm("s_add_u32 %s, %s, %s" % (s(sHH), s(sHH), s(sT0)))
        asm("s_lshr_b32 %s, %s, 2" % (s(sRB2), s(sSLOT)))
    asm("s_mul_i32 %s, %s, 5" % (s(sT0), s(sHH)))
    asm("s_lshr_b32 %s, %s, 2" % (s(sG0), s(sT0)))
    asm("s_and_b32 %s, %s, 3" % (s(sDQ), s(sT0)))
    asm("s_lshl_b32 %s, %s, 3" % (s(sTB), s(sRB2)))
    asm("s_add_u32 %s, %s, %s" % (s(sTB), s(sTB), s(sW)))
    asm("s_add_u32 %s, %s, 1" % (s(sNT), s(sTB)))
    asm("s_min_u32 %s, %s, 9" % (s(sNT), s(sNT)))
    asm("s_mov_b32 %s, 0x000fffff" % s(sMSK)); asm("s_mov_b32 %s, 0x000fffff" % s(sMSK + 1))
    asm("s_mov_b32 %s, -1" % s(sM40)); asm("s_mov_b32 %s, 0xff" % s(sM40 + 1))
    lane(vL)
    asm("v_lshlrev_b32 %s, 3, %s" % (v(vL8), v(vL)))
    asm("v_lshlrev_b32 %s, 4, %s" % (v(vLin), v(vL)))
    asm("s_mov_b32 %s, %s" % (s(sBIG), fhex(BIG)))
    asm("v_and_b32 %s, 31, %s" % (v(vU), v(vL)))
    asm("v_lshrrev_b32 %s, 5, %s" % (v(vT + 4), v(vL)))
    asm("v_lshlrev_b32 %s, 2, %s" % (v(vT + 4), v(vT + 4)))
    asm("v_sub_u32 %s, %s, %s" % (v(vU), v(vU), v(vT + 4)))
    asm("v_mov_b32 %s, %s" % (v(vT + 5), s(sBIG)))
    asm("v_mov_b32 %s, 0" % v(vT + 6))
    for r0 in range(0, 16, 4):
        for k in range(4):
            r = r0 + k
            asm("v_cmp_le_i32 %s, %d, %s" % (s(sP + 2 * k, 2), 8 * (r >> 2) + (r & 3), v(vU)))
        asm("s_nop 1")
        for k in range(4):
            r = r0 + k
            asm("v_cndmask_b32 %s, %s, %s, %s" % (v(CM8 + r), v(vT + 5), v(vT + 6), s(sP + 2 * k, 2)))
            asm("v_cndmask_b32 %s, %s, %s, %s" % (v(CM0 + r), v(vT + 6), v(vT + 5), s(sP + 2 * k, 2)))
    for gg in range(2):
        for p in range(2):
            k = gg * 2 + p
            for h in range(2):
                asm("s_sub_u32 %s, %d, %s" % (s(sT0), 4 * gg + 2 * p + h, s(sDQ)))
                asm("s_cmp_le_u32 %s, 4" % s(sT0))
                asm("s_cselect_b32 %s, -1, 0" % s(sQM + 2 * k + h))
    asm("s_lshl_b32 %s, %s, 11" % (s(sT0), s(sW)))
    asm("s_add_u32 %s, %s, %d" % (s(sT0), s(sT0), L_K))
    asm("v_add_u32 %s, %s, %s" % (v(vKa), s(sT0), v(vLin)))
    asm("v_lshrrev_b32 %s, 5, %s" % (v(vT), v(vL)))
    asm("v_mul_u32_u24 %s, 20, %s" % (v(vT), v(vT)))
    asm("v_and_b32 %s, 31, %s" % (v(vU), v(vL)))
    asm("v_add_u32 %s, %s, %s" % (v(vT), v(vT), v(vU)))
    asm("v_lshlrev_b32 %s, 4, %s" % (v(vT), v(vT)))
    asm("s_mul_i32 %s, %s, 1280" % (s(sT0), s(sW)))
    asm("s_add_u32 %s, %s, %d" % (s(sT0), s(sT0), L_V))
    asm("v_add_u32 %s, %s, %s" % (v(vVa), s(sT0), v(vT)))
    asm("s_lshl_b32 %s, %s, 5" % (s(sT0), s(sTB)))
    asm("s_add_u32 %s, %s, %s" % (s(sT0), s(sT0), s(sHH)))
    asm("s_mul_i32 %s, %s, 1280" % (s(sOffO), s(sT0)))
    asm("v_mov_b32 %s, %s" % (v(vOm), v(vLin)))
    asm("v_add_u32 %s, 1024, %s" % (v(vOr), v(vL8)))
    asm("v_mov_b32 %s, 0x%x" % (v(vT + 4), OOB))
    asm("v_cmp_gt_u32 vcc, 32, %s" % v(vL))
    asm("s_nop 1")
    asm("v_cndmask_b32 %s, %s, %s, vcc" % (v(vOr), v(vT + 4), v(vOr)))
    asm("s_mul_i32 %s, %s, 40" % (s(sT2), s(sTB)))
    asm("s_add_u32 %s, %s, %s" % (s(sT2), s(sT2), s(sG0)))
    asm("s_lshl_b32 %s, %s, 10" % (s(sT2), s(sT2)))
    asm("s_add_u32 %s, %s, %d" % (s(sOffQA), s(sT2), R_QA))
    def q_loads():
        asm("s_add_u32 %s, %s, %d" % (s(sT3), s(sOffQA), R_QB - R_QA))
        asm("buffer_load_dwordx4 %s, %s, %s, %s offen sc1" % (v(Q, 4), v(vLin), s(SWS, 4), s(sT3)))
        asm("buffer_load_dwordx4 %s, %s, %s, %s offen offset:1024 sc1" % (v(Q + 4, 4), v(vLin), s(SWS, 4), s(sT3)))
    FINE = opts.get("fine", 1)
    def tile_masks():
        asm("s_lshr_b32 %s, %s, 3" % (s(sT1), s(sG0)))
        asm("s_lshl_b32 %s, 1, %s" % (s(sT1), s(sT1)))
        asm("s_add_u32 %s, %s, 1" % (s(sT2), s(sG0)))
        asm("s_lshr_b32 %s, %s, 3" % (s(sT2), s(sT2)))
        asm("s_lshl_b32 %s, 1, %s" % (s(sT2), s(sT2)))
        asm("s_or_b32 %s, %s, %s" % (s(sT1), s(sT1), s(sT2)))
        asm("s_mul_i32 %s, %s, 20" % (s(sT3), s(sHH)))
        asm("s_lshr_b32 %s, %s, 7" % (s(sT2), s(sT3)))
        asm("s_lshl_b32 %s, 1, %s" % (s(sT2), s(sT2)))
        asm("s_add_u32 %s, %s, 19" % (s(sT3), s(sT3)))
        asm("s_lshr_b32 %s, %s, 7" % (s(sT3), s(sT3)))
        asm("s_lshl_b32 %s, 1, %s" % (s(sT3), s(sT3)))
        asm("s_or_b32 %s, %s, %s" % (s(sT2), s(sT2), s(sT3)))
    def own_tile_wait():
        D = lab("otw")
        asm("s_cmp_ge_u32 %s, 30" % s(sSLOT))
        asm("s_cbranch_scc1 %s" % D)
        lds_wait(W_CNT1, vT, vT + 1, atleast=4)
        asm.label(D)
    def lds_inc(word):
        asm("v_mov_b32 %s, 0x%x" % (v(vT), word))
        asm("v_mov_b32 %s, 1" % v(vT + 1))
        asm("s_mov_b64 exec, 1")
        asm("ds_add_u32 %s, %s" % (v(vT), v(vT + 1)))
        asm("s_mov_b64 exec, -1")
    if opts.get("pad", 0):
        asm("s_mov_b64 exec, 0")
        for k in range(8):
            asm("s_cmp_eq_u32 %s, %d" % (s(sW), (k + 4) & 7))
            asm("s_cbranch_scc1 %s_padseg%d" % (N, k))
        asm.label("%s_walkret" % N)
        asm("s_mov_b64 exec, -1")
    asm("s_cmp_eq_u32 %s, %d" % (s(sW), AW))
    asm("s_cbranch_scc1 %s_aearly" % N)
    asm("s_cmp_eq_u32 %s, 5" % s(sW))
    asm("s_cbranch_scc1 %s_w5" % N)
    asm("s_cmp_ge_u32 %s, 6" % s(sW))
    asm("s_cbranch_scc1 %s_w67" % N)
    sTK, sKO, sLK, sIk = 4, 5, 6, 7
    lds_wait(W_S1, vT, vT + 1)
    st(4) if opts.get("kvst") else None
    asm("s_lshl_b32 %s, %s, 2" % (s(sIk), s(sW)))
    asm("s_cmp_eq_u32 %s, 0" % s(sRB2))
    asm("s_cselect_b32 %s, 8, 0" % s(sT0))
    asm("s_cmp_lt_u32 %s, %s" % (s(sIk), s(sT0)))
    asm("s_cbranch_scc1 %s_nok" % N)
    asm("s_lshl_b32 %s, %s, 3" % (s(sTK), s(sRB2)))
    asm("s_add_u32 %s, %s, %s" % (s(sTK), s(sTK), s(sIk)))
    asm("s_sub_u32 %s, %s, 8" % (s(sTK), s(sTK)))
    asm("s_mul_i32 %s, %s, 40" % (s(sKO), s(sTK)))
    asm("s_add_u32 %s, %s, %s" % (s(sKO), s(sKO), s(sG0)))
    asm("s_lshl_b32 %s, %s, 10" % (s(sKO), s(sKO)))
    asm("s_add_u32 %s, %s, %d" % (s(sKO), s(sKO), R_KB))
    asm("s_lshl_b32 %s, %s, 11" % (s(sLK), s(sIk)))
    asm("s_add_u32 %s, %s, %d" % (s(sLK), s(sLK), L_K))
    for ii in range(4):
        asm("s_add_u32 m0, %s, %d" % (s(sLK), ii * 2048))
        asm("s_nop 0")
        asm("buffer_load_dwordx4 %s, %s, %s offen sc1 lds" % (v(vLin), s(SWS, 4), s(sKO)))
        asm("buffer_load_dwordx4 %s, %s, %s offen offset:1024 sc1 lds" % (v(vLin), s(SWS, 4), s(sKO)))
        if ii < 3: asm("s_add_u32 %s, %s, 40960" % (s(sKO), s(sKO)))
    asm.label("%s_nok" % N)
    q_loads()
    asm("s_waitcnt vmcnt(0)")
    lds_inc(W_K)
    asm("s_branch %s_kwait" % N)
    asm.label("%s_w67" % N)
    vDWO = 243
    sDA, sDM = 4, 5
    SWO = SA_
    decode3()
    asm("s_load_dwordx2 s[4:5], s[0:1], 16")
    asm("s_load_dwordx2 s[6:7], s[0:1], 40")
    asm("s_movk_i32 %s, 6554" % s(sT2))
    asm("s_movk_i32 %s, 1280" % s(sT3))
    for b in range(5):
        asm("v_add_u32 %s, %d, %s" % (v(vT), 64 * b, v(vL)))
        asm("v_mul_lo_u32 %s, %s, %s" % (v(vT + 1), v(vT), s(sT2)))
        asm("v_lshrrev_b32 %s, 16, %s" % (v(vT + 1), v(vT + 1)))
        asm("v_mul_u32_u24 %s, 10, %s" % (v(vT + 2), v(vT + 1)))
        asm("v_sub_u32 %s, %s, %s" % (v(vT), v(vT), v(vT + 2)))
        asm("v_lshlrev_b32 %s, 4, %s" % (v(vT), v(vT)))
        asm("v_mad_u32_u24 %s, %s, %s, %s" % (v(vDWO + b), v(vT + 1), s(sT3), v(vT)))
        if 0 < b < 4: asm("v_subrev_u32 %s, %d, %s" % (v(vDWO + b), b * 1024, v(vDWO + b)))
    asm("s_waitcnt lgkmcnt(0)")
    asm("s_cmp_eq_u32 %s, 0" % s(sBR3))
    asm("s_cselect_b32 s4, s4, s6")
    asm("s_cselect_b32 s5, s5, s7")
    asm("s_mul_i32 %s, %s, 160" % (s(sT0), s(sCB3)))
    asm("s_add_u32 s4, s4, %s" % s(sT0))
    asm("s_addc_u32 s5, s5, 0")
    asm("s_sub_u32 %s, %d, %s" % (s(sT1), 640 * 1280, s(sT0)))
    srd(asm, SWO, "s4", "s5", s(sT1))
    asm("s_and_b32 %s, %s, 1" % (s(sT0), s(sW)))
    asm("s_mul_i32 %s, %s, %d" % (s(sDA), s(sT0), 32 * 1280))
    asm("s_mul_i32 %s, %s, 5120" % (s(sDM), s(sT0)))
    def wo_group():
        asm("s_mov_b32 m0, %s" % s(sDM)); asm("s_nop 0")
        asm("buffer_load_dwordx4 %s, %s, %s offen lds" % (v(vDWO), s(SWO, 4), s(sDA)))
        for b in range(1, 4):
            asm("buffer_load_dwordx4 %s, %s, %s offen offset:%d lds" % (v(vDWO + b), s(SWO, 4), s(sDA), b * 1024))
        asm("s_add_u32 m0, %s, 4096" % s(sDM)); asm("s_nop 0")
        asm("buffer_load_dwordx4 %s, %s, %s offen lds" % (v(vDWO + 4), s(SWO, 4), s(sDA)))
        asm("s_add_u32 %s, %s, %d" % (s(sDA), s(sDA), 2 * 32 * 1280))
        asm("s_add_u32 %s, %s, %d" % (s(sDM), s(sDM), 2 * 5120))
    asm("s_cmp_ge_u32 %s, 30" % s(sSLOT))
    asm("s_cbranch_scc1 %s_wogo" % N)
    lds_wait(W_ISS, vT, vT + 1, atleast=4)
    asm.label("%s_wogo" % N)
    asm("s_mov_b32 s6, 0")
    asm.label("%s_woloop" % N)
    wo_group()
    asm("s_add_u32 s6, s6, 1")
    asm("s_cmp_lt_u32 s6, 10")
    asm("s_cbranch_scc1 %s_woloop" % N)
    lds_wait(W_S1, vT, vT + 1)
    asm("s_waitcnt vmcnt(30)")
    q_loads()
    asm("v_cmp_le_u32 vcc, 20, %s" % v(vL))
    asm("v_mov_b32 %s, 0" % v(vT))
    asm("v_mov_b32 %s, %d" % (v(vT + 1), 10240 - 320))
    asm("v_cndmask_b32 %s, %s, %s, vcc" % (v(vT), v(vT), v(vT + 1)))
    asm("v_add_u32 %s, %s, %s" % (v(vFo), v(vT), v(vLin)))
    asm("s_and_b32 %s, %s, 1" % (s(sIk), s(sW)))
    asm("s_lshl_b32 %s, %s, 3" % (s(sIk), s(sIk)))
    asm("s_or_b32 %s, %s, %s" % (s(sT0), s(sIk), s(sRB2)))
    asm("s_cmp_eq_u32 %s, 0" % s(sT0))
    asm("s_cbranch_scc1 %s_nov" % N)
    asm("s_lshl_b32 %s, %s, 3" % (s(sTK), s(sRB2)))
    asm("s_add_u32 %s, %s, %s" % (s(sTK), s(sTK), s(sIk)))
    asm("s_sub_u32 %s, %s, 8" % (s(sTK), s(sTK)))
    asm("s_mul_i32 %s, %s, 40960" % (s(sKO), s(sTK)))
    asm("s_mul_i32 %s, %s, 320" % (s(sT1), s(sHH)))
    asm("s_add_u32 %s, %s, %s" % (s(sKO), s(sKO), s(sT1)))
    asm("s_add_u32 %s, %s, %d" % (s(sKO), s(sKO), R_VB))
    asm("s_mul_i32 %s, %s, 1280" % (s(sLK), s(sIk)))
    asm("s_add_u32 %s, %s, %d" % (s(sLK), s(sLK), L_V))
    asm("s_mov_b64 exec, %s" % s(sM40, 2))
    for ii in range(8):
        asm("s_add_u32 m0, %s, %d" % (s(sLK), ii * 1280))
        asm("s_add_u32 %s, %s, %d" % (s(sT1), s(sKO), 20480 - 640))
        asm("buffer_load_dwordx4 %s, %s, %s offen sc1 lds" % (v(vFo), s(SWS, 4), s(sKO)))
        asm("buffer_load_dwordx4 %s, %s, %s offen offset:640 sc1 lds" % (v(vFo), s(SWS, 4), s(sT1)))
        if ii < 7: asm("s_add_u32 %s, %s, 40960" % (s(sKO), s(sKO)))
    asm("s_mov_b64 exec, -1")
    asm("s_waitcnt vmcnt(16)")
    asm("s_branch %s_kwait" % N)
    asm.label("%s_nov" % N)
    asm("s_waitcnt vmcnt(0)")
    asm("s_branch %s_kwait" % N)
    asm.label("%s_w5" % N)
    own_tile_wait()
    asm("s_add_u32 %s, %s, 7" % (s(sT0), s(sRB2)))
    asm("s_lshl_b32 %s, %s, 7" % (s(sT0), s(sT0)))
    asm("s_and_b32 %s, %s, %d" % (s(sT1), s(sP8) if REPL <= 8 else s(sHH), REPL - 1))
    asm("s_lshl_b32 %s, %s, 11" % (s(sT1), s(sT1)))
    asm("s_add_u32 %s, %s, %s" % (s(sT0), s(sT0), s(sT1)))
    asm("s_add_u32 %s, %s, %d" % (s(sPL), s(sT0), F1))
    if FINE:
        tile_masks()
        asm("s_lshl_b32 %s, %s, 5" % (s(sT3), s(sT1)))
        asm("s_lshl_b32 %s, %s, 10" % (s(sT2), s(sT2)))
        asm("s_or_b32 %s, %s, %s" % (s(sT3), s(sT3), s(sT2)))
        asm("s_or_b32 %s, %s, %s" % (s(sT1), s(sT1), s(sT3)))
        asm("s_lshl_b32 %s, %s, 16" % (s(sT1), s(sT1)))
        asm("s_cmp_eq_u32 %s, 0" % s(sRB2))
        asm("s_cselect_b32 %s, 0, %s" % (s(sT3), s(sT3)))
        asm("s_or_b32 %s, %s, %s" % (s(sT1), s(sT1), s(sT3)))
    else:
        asm("s_cmp_eq_u32 %s, 0" % s(sRB2))
        asm("s_cselect_b32 %s, 0, 0x7fe0" % s(sT1))
        asm("s_or_b32 %s, %s, 0x7fff0000" % (s(sT1), s(sT1)))
    if opts.get("ppoll", 0): ppoll(s(sPL), 32, [244, 246, 248], vL8, smask=s(sT1))
    else: poll(s(sPL), 32, vT, vL8, smask=s(sT1))
    lds_set(W_S1, vT, vT + 1)
    st(4)
    q_loads()
    asm("s_waitcnt vmcnt(0)")
    asm("s_branch %s_kwait" % N)
    asm.label("%s_aearly" % N)
    asm("v_lshrrev_b32 %s, 5, %s" % (v(vT), v(vL)))
    asm("v_mul_u32_u24 %s, 10240, %s" % (v(vT), v(vT)))
    asm("v_and_b32 %s, 31, %s" % (v(vU), v(vL)))
    asm("v_lshl_add_u32 %s, %s, 4, %s" % (v(vFo), v(vU), v(vT)))
    asm("v_mov_b32 %s, 0x3f803f80" % v(vT + 2))
    for r in range(64, 128): asm("v_mov_b32 %s, %s" % (v(r), v(vT + 2)))
    own_tile_wait()
    asm("s_lshl_b32 %s, %s, 7" % (s(sT0), s(sRB2)))
    asm("s_and_b32 %s, %s, %d" % (s(sT1), s(sP8) if REPL <= 8 else s(sHH), REPL - 1))
    asm("s_lshl_b32 %s, %s, 11" % (s(sT1), s(sT1)))
    asm("s_add_u32 %s, %s, %s" % (s(sT0), s(sT0), s(sT1)))
    asm("s_add_u32 %s, %s, %d" % (s(sPL), s(sT0), F1))
    if FINE:
        tile_masks()
        asm("s_lshl_b32 %s, %s, 5" % (s(sT3), s(sT2)))
        asm("s_lshl_b32 %s, %s, 10" % (s(sT2), s(sT2)))
        asm("s_or_b32 %s, %s, %s" % (s(sT1), s(sT1), s(sT3)))
        asm("s_or_b32 %s, %s, %s" % (s(sT1), s(sT1), s(sT2)))
        if opts.get("ppoll", 0): ppoll(s(sPL), 15, [244, 246, 248], vL8, smask=s(sT1))
        else: poll(s(sPL), 15, vT, vL8, smask=s(sT1))
    else:
        poll(s(sPL), 15, vT, vL8)
    lds_set(W_S1A, vT, vT + 1)
    st(4)
    asm("s_lshl_b32 %s, %s, 3" % (s(sT0), s(sRB2)))
    asm("s_mul_i32 %s, %s, 40960" % (s(sT0), s(sT0)))
    asm("s_mul_i32 %s, %s, 320" % (s(sT1), s(sHH)))
    asm("s_add_u32 %s, %s, %s" % (s(sT0), s(sT0), s(sT1)))
    asm("s_add_u32 %s, %s, %d" % (s(sT1), s(sT0), R_KA))
    asm("s_add_u32 %s, %s, %d" % (s(sT2), s(sT0), R_VA))
    asm("s_mov_b64 exec, %s" % s(sMSK, 2))
    for b in range(8):
        for m in range(2):
            asm("buffer_load_dwordx4 %s, %s, %s, %s offen sc1" % (v((b * 2 + m) * 4, 4), v(vFo), s(SWS, 4), s(sT1)))
            asm("buffer_load_dwordx4 %s, %s, %s, %s offen sc1" % (v(64 + (b * 2 + m) * 4, 4), v(vFo), s(SWS, 4), s(sT2)))
            asm("s_add_u32 %s, %s, 20480" % (s(sT1), s(sT1)))
            asm("s_add_u32 %s, %s, 20480" % (s(sT2), s(sT2)))
    asm("s_mov_b64 exec, -1")
    lds_wait(W_S1, vT, vT + 1)
    q_loads()
    for b in range(16):
        asm("s_waitcnt vmcnt(%d)" % (32 - 2 * b))
        c = "0" if b == 0 else v(O, 16)
        asm("v_mfma_f32_32x32x16_bf16 %s, %s, %s, %s" % (v(O, 16), v(b * 4, 4), v(64 + b * 4, 4), c))
    asm("s_lshl_b32 %s, %s, 3" % (s(sT0), s(sHH)))
    asm("s_add_u32 %s, %s, %s" % (s(sT0), s(sT0), s(sRB2)))
    asm("s_mul_i32 %s, %s, 3072" % (s(sT0), s(sT0)))
    asm("s_add_u32 %s, %s, %d" % (s(sT0), s(sT0), R_KVP))
    asm("s_nop 7"); asm("s_nop 1")
    for j in range(3):
        asm("buffer_store_dwordx4 %s, %s, %s, %s offen offset:%d sc1" % (v(O + 4 * j, 4), v(vLin), s(SWS, 4), s(sT0), j * 1024))
    asm("s_waitcnt vmcnt(3)")
    asm.label("%s_kwait" % N)
    asm(";PADBEGIN")
    lds_wait(W_K, vT, vT + 1, atleast=4)
    st(5)
    PRIO = opts.get("prio", 0)
    if PRIO:
        asm("s_cmp_%s_u32 %s, 4" % ("lt" if PRIO == 1 else "ge", s(sW)))
        asm("s_cbranch_scc0 %s_noprio" % N)
        asm("s_setprio 2")
        asm.label("%s_noprio" % N)
    def rdK(d, dst):
        for gg in range(2):
            asm("ds_read_b128 %s, %s offset:%d" % (v(dst + 4 * gg, 4), v(vKa), (8 - d) * 2048 + gg * 1024))
    def rdV(d, dst):
        asm("s_mov_b64 exec, %s" % s(sMSK, 2))
        for m in range(2):
            asm("ds_read_b128 %s, %s offset:%d" % (v(dst + 4 * m, 4), v(vVa), (8 - d) * 1280 + m * 640))
        asm("s_mov_b64 exec, -1")
    rdK(0, F[0])
    for gg in range(2):
        for p in range(2):
            k = gg * 2 + p
            for j in range(2):
                r = Q + 4 * gg + 2 * p + j
                asm("v_cndmask_b32 %s, 0, %s, %s" % (v(r), v(r), s(sQM + 2 * k, 2)))
    def maxes(d):
        b = S + 16 * d
        if d == 0:
            asm("v_max3_f32 %s, %s, %s, %s" % (v(vM), v(b), v(b + 1), v(b + 2)))
            for k in range(3, 15, 2):
                asm("v_max3_f32 %s, %s, %s, %s" % (v(vM), v(vM), v(b + k), v(b + k + 1)))
            asm("v_max_f32 %s, %s, %s" % (v(vM), v(vM), v(b + 15)))
        else:
            for k in range(0, 16, 2):
                asm("v_max3_f32 %s, %s, %s, %s" % (v(vM), v(vM), v(b + k), v(b + k + 1)))
    for d in range(9):
        cur, nxt = F[d & 1], F[(d + 1) & 1]
        asm("s_waitcnt lgkmcnt(0)")
        if d < 8: rdK(d + 1, nxt)
        if d > 0:
            asm("s_cmp_le_u32 %s, %d" % (s(sNT), d))
            asm("s_cbranch_scc1 %s_p1skip%d" % (N, d))
        else:
            asm("s_nop 1")
        c = v(CM8, 16) if d == 0 else (v(CM0, 16) if d == 8 else "0")
        b = v(S + 16 * d, 16)
        asm("v_mfma_f32_32x32x16_bf16 %s, %s, %s, %s" % (b, v(cur, 4), v(Q, 4), c))
        asm("v_mfma_f32_32x32x16_bf16 %s, %s, %s, %s" % (b, v(cur + 4, 4), v(Q + 4, 4), b))
        if d > 0:
            asm.label("%s_p1skip%d" % (N, d))
            if d == 1: asm("s_nop 7")
            maxes(d - 1)
            asm("s_cbranch_scc1 %s_p1end" % N)
    asm("s_nop 3")
    maxes(8)
    asm.label("%s_p1end" % N)
    st(6)
    SIGD = opts.get("sigd", 2)
    def a_signal():
        asm("s_cmp_lg_u32 %s, %d" % (s(sW), AW))
        asm("s_cbranch_scc1 %s_nosig" % N)
        asm("s_waitcnt vmcnt(0)")
        asm("s_lshl_b32 %s, %s, 4" % (s(sT0), s(sHH)))
        asm("s_add_u32 %s, %s, %s" % (s(sT0), s(sT0), s(sRB2)))
        asm("s_lshl_b32 %s, %s, 3" % (s(sT0), s(sT0)))
        asm("s_add_u32 %s, %s, %d" % (s(sT0), s(sT0), F2))
        flag_store(s(sT0), vT, vT + 2)
        asm.label("%s_nosig" % N)
    if SIGD < 0: a_signal()
    asm("s_cmp_lt_u32 %s, 6" % s(sW))
    asm("s_cbranch_scc1 %s_vw" % N)
    asm("s_waitcnt vmcnt(0)")
    lds_inc(W_V)
    asm.label("%s_vw" % N)
    lds_wait(W_V, vT, vT + 1, atleast=2)
    asm("s_waitcnt lgkmcnt(0)")
    asm("s_mov_b32 %s, 0x3f803f80" % s(sT0))
    for r in range(16): asm("v_mov_b32 %s, %s" % (v(VF[0] + r), s(sT0)))
    rdV(0, VF[0])
    asm("v_mov_b32 %s, %s" % (v(vT + 2), v(vM)))
    asm("v_mov_b32 %s, %s" % (v(vT + 3), v(vM)))
    asm("s_nop 1")
    asm("v_permlane32_swap_b32 %s, %s" % (v(vT + 2), v(vT + 3)))
    asm("s_nop 1")
    asm("v_max_f32 %s, %s, %s" % (v(vM), v(vT + 2), v(vT + 3)))
    asm("v_sub_f32 %s, 0, %s" % (v(vNM), v(vM)))
    asm("v_sub_f32 %s, 0, %s" % (v(vNM + 1), v(vM)))
    PQD = opts.get("pqd", 5)
    sPQ = 7
    asm("s_mov_b32 %s, 0" % s(sPQ))
    def pq_loads():
        lds_wait(W_S1A, vT + 4, vT + 5)
        asm("buffer_load_dwordx4 %s, %s, %s, %s offen sc1" % (v(Q, 4), v(vLin), s(SWS, 4), s(sOffQA)))
        asm("buffer_load_dwordx4 %s, %s, %s, %s offen offset:1024 sc1" % (v(Q + 4, 4), v(vLin), s(SWS, 4), s(sOffQA)))
    for d in range(9):
        cur, nxt = VF[d & 1], VF[(d + 1) & 1]
        b = S + 16 * d
        if d > 0:
            asm("s_cmp_le_u32 %s, %d" % (s(sNT), d))
            asm("s_cbranch_scc1 %s_p2end" % N)
        for k in range(8):
            asm("v_pk_add_f32 %s, %s, %s" % (v(b + 2 * k, 2), v(b + 2 * k, 2), v(vNM, 2)))
        for k in range(16):
            asm("v_exp_f32 %s, %s" % (v(b + k), v(b + k)))
        asm("s_waitcnt lgkmcnt(0)")
        if d < 8: rdV(d + 1, nxt)
        for k in range(8):
            asm("v_cvt_pk_bf16_f32 %s, %s, %s" % (v(b + k), v(b + 2 * k), v(b + 2 * k + 1)))
        asm("s_nop 1")
        asm("v_mfma_f32_32x32x16_bf16 %s, %s, %s, %s" % (v(O, 16), v(cur, 4), v(b, 4), "0" if d == 0 else v(O, 16)))
        asm("v_mfma_f32_32x32x16_bf16 %s, %s, %s, %s" % (v(O, 16), v(cur + 4, 4), v(b + 4, 4), v(O, 16)))
        if d == SIGD: a_signal()
        if d == PQD:
            pq_loads()
            asm("s_mov_b32 %s, 1" % s(sPQ))
    asm.label("%s_p2end" % N)
    if PRIO: asm("s_setprio 0")
    if PQD > 0:
        asm("s_cmp_lg_u32 %s, 0" % s(sPQ))
        asm("s_cbranch_scc1 %s_pqdone" % N)
        pq_loads()
        asm.label("%s_pqdone" % N)
    st(7)
    def normalize(dst, eps, O=O):
        asm("v_mov_b32 %s, %s" % (v(vT), v(O + 8)))
        asm("v_mov_b32 %s, %s" % (v(vT + 1), v(O + 8)))
        asm("s_nop 1")
        asm("v_permlane32_swap_b32 %s, %s" % (v(vT), v(vT + 1)))
        asm("s_nop 1")
        if eps: asm("v_add_f32 %s, %s, %s" % (v(vT + 1), s(sEPS), v(vT + 1)))
        asm("v_rcp_f32 %s, %s" % (v(vT + 1), v(vT + 1)))
        asm("s_nop 0")
        for k in range(12): asm("v_mul_f32 %s, %s, %s" % (v(O + k), v(vT + 1), v(O + k)))
        for k in range(6): asm("v_cvt_pk_bf16_f32 %s, %s, %s" % (v(dst + k), v(O + 2 * k), v(O + 2 * k + 1)))
    def store_o(src, region):
        asm("s_add_u32 %s, %s, %d" % (s(sT0), s(sOffO), region))
        asm("buffer_store_dwordx4 %s, %s, %s, %s offen%s" % (v(src, 4), v(vOm), s(SWS, 4), s(sT0), SC))
        asm("buffer_store_dwordx2 %s, %s, %s, %s offen%s" % (v(src + 4, 2), v(vOr), s(SWS, 4), s(sT0), SC))
    asm("s_mov_b32 %s, %s" % (s(sEPS), fhex(1e-6)))
    asm("s_cmp_ge_u32 %s, 4" % s(sW))
    asm("s_cbranch_scc1 %s_hiwaves" % N)
    asm("s_lshl_b32 %s, %s, 7" % (s(sPL), s(sHH)))
    asm("s_add_u32 %s, %s, %d" % (s(sPL), s(sPL), F2))
    asm("s_cmp_lg_u32 %s, 0" % s(sW))
    asm("s_cbranch_scc1 %s_w123" % N)
    poll_issue(s(sPL), vT + 4, vL8, 8)
    asm("s_nop 7"); asm("s_nop 3")
    normalize(PB, False)
    poll(s(sPL), 8, vT + 4, vL8, preissued=True)
    lds_set(W_S2, vT + 4, vT + 5)
    asm("s_branch %s_w0123" % N)
    asm.label("%s_w123" % N)
    asm("s_nop 7"); asm("s_nop 3")
    normalize(PB, False)
    lds_wait(W_S2, vT + 4, vT + 5)
    asm.label("%s_w0123" % N)
    asm("s_lshl_b32 %s, %s, 1" % (s(sT0), s(sW)))
    asm("s_sub_u32 %s, %s, %s" % (s(sT0), s(sT0), s(sDQ)))
    asm("v_lshrrev_b32 %s, 5, %s" % (v(vT), v(vL)))
    asm("v_add_u32 %s, %s, %s" % (v(vT), s(sT0), v(vT)))
    asm("v_and_b32 %s, 31, %s" % (v(vT + 1), v(vL)))
    asm("v_lshlrev_b32 %s, 4, %s" % (v(vT + 1), v(vT + 1)))
    asm("v_lshl_add_u32 %s, %s, 9, %s" % (v(vT + 1), v(vT), v(vT + 1)))
    asm("v_cmp_ge_u32 vcc, 4, %s" % v(vT))
    asm("v_mov_b32 %s, 0x%x" % (v(vT + 2), OOB))
    asm("s_nop 0")
    asm("v_cndmask_b32 %s, %s, %s, vcc" % (v(vU), v(vT + 2), v(vT + 1)))
    asm("s_lshl_b32 %s, %s, 3" % (s(sT0), s(sHH)))
    asm("s_mul_i32 %s, %s, 3072" % (s(sT0), s(sT0)))
    asm("s_add_u32 %s, %s, %d" % (s(sT0), s(sT0), R_KVP))
    for r in range(8):
        asm("buffer_load_dwordx4 %s, %s, %s, %s offen sc1" % (v(S + 4 * r, 4), v(vU), s(SWS, 4), s(sT0)))
        if r < 7: asm("s_add_u32 %s, %s, 3072" % (s(sT0), s(sT0)))
    store_o(PB, R_OB)
    asm("s_waitcnt vmcnt(2)")
    for r in range(1, 8):
        for k in range(4):
            asm("v_add_f32 %s, %s, %s" % (v(S + k), v(S + k), v(S + 4 * r + k)))
    asm("v_cvt_pk_bf16_f32 %s, %s, %s" % (v(vT), v(S), v(S + 1)))
    asm("v_cvt_pk_bf16_f32 %s, %s, %s" % (v(vT + 1), v(S + 2), v(S + 3)))
    asm("s_lshr_b32 %s, %s, 1" % (s(sT0), s(sW)))
    asm("s_lshl_b32 %s, %s, 10" % (s(sT0), s(sT0)))
    asm("s_and_b32 %s, %s, 1" % (s(sT1), s(sW)))
    asm("s_lshl_b32 %s, %s, 3" % (s(sT1), s(sT1)))
    asm("s_add_u32 %s, %s, %s" % (s(sT0), s(sT0), s(sT1)))
    asm("s_add_u32 %s, %s, %d" % (s(sT0), s(sT0), L_KVT))
    asm("v_add_u32 %s, %s, %s" % (v(vU), s(sT0), v(vLin)))
    asm("ds_write_b64 %s, %s" % (v(vU), v(vT, 2)))
    TAIL2 = opts.get("tail2", 0)
    sF3 = 69
    def f3_offset():
        asm("s_lshl_b32 %s, %s, 5" % (s(sF3), s(sRB2)))
        asm("s_add_u32 %s, %s, %s" % (s(sF3), s(sF3), s(sHH)))
        asm("s_lshl_b32 %s, %s, 3" % (s(sF3), s(sF3)))
        asm("s_add_u32 %s, %s, %d" % (s(sF3), s(sF3), F3))
    if TAIL2:
        D2 = S
        def a_product(vm):
            lds_wait(W_KVT, vT + 4, vT + 5, atleast=4)
            asm("v_add_u32 %s, 0x%x, %s" % (v(vU), L_KVT, v(vLin)))
            asm("ds_read_b128 %s, %s" % (v(F[0], 4), v(vU)))
            asm("ds_read_b128 %s, %s offset:1024" % (v(F[0] + 4, 4), v(vU)))
            f3_offset()
            asm("s_waitcnt vmcnt(%d) lgkmcnt(0)" % vm)
            asm("v_mfma_f32_32x32x16_bf16 %s, %s, %s, 0" % (v(D2, 16), v(F[0], 4), v(Q, 4)))
            asm("v_mfma_f32_32x32x16_bf16 %s, %s, %s, %s" % (v(D2, 16), v(F[0] + 4, 4), v(Q + 4, 4), v(D2, 16)))
        asm("s_waitcnt lgkmcnt(0)")
        lds_inc(W_KVT)
        a_product(2)
        asm("s_nop 7"); asm("s_nop 3")
        asm("s_branch %s_join" % N)
        asm.label("%s_hiwaves" % N)
        a_product(0)
        normalize(PB, False)
        store_o(PB, R_OB)
        asm.label("%s_join" % N)
        st(8)
        normalize(PA, True, O=D2)
        store_o(PA, R_OA)
    else:
        asm("s_branch %s_join" % N)
        asm.label("%s_hiwaves" % N)
        asm("s_nop 7"); asm("s_nop 3")
        normalize(PB, False)
        store_o(PB, R_OB)
        asm.label("%s_join" % N)
        asm("s_waitcnt lgkmcnt(0)")
        asm("s_barrier")
        st(8)
        asm("v_add_u32 %s, 0x%x, %s" % (v(vU), L_KVT, v(vLin)))
        asm("ds_read_b128 %s, %s" % (v(F[0], 4), v(vU)))
        asm("ds_read_b128 %s, %s offset:1024" % (v(F[0] + 4, 4), v(vU)))
        asm("s_lshl_b32 %s, %s, 5" % (s(sF3), s(sRB2)))
        asm("s_add_u32 %s, %s, %s" % (s(sF3), s(sF3), s(sHH)))
        asm("s_lshl_b32 %s, %s, 3" % (s(sF3), s(sF3)))
        asm("s_add_u32 %s, %s, %d" % (s(sF3), s(sF3), F3))
        asm("s_waitcnt vmcnt(2) lgkmcnt(0)")
        asm("v_mfma_f32_32x32x16_bf16 %s, %s, %s, 0" % (v(O, 16), v(F[0], 4), v(Q, 4)))
        asm("v_mfma_f32_32x32x16_bf16 %s, %s, %s, %s" % (v(O, 16), v(F[0] + 4, 4), v(Q + 4, 4), v(O, 16)))
        asm("s_nop 7"); asm("s_nop 3")
        normalize(PA, True)
        store_o(PA, R_OA)
    asm("s_add_u32 %s, %s, %d" % (s(sT1), s(sF3), 8 * 256))
    asm("s_waitcnt vmcnt(2)")
    release()
    lds_arrive(W_CNT3B, 8, vT + 6, vT + 4, s(sT1), replicas=R3, rshift=12)
    asm("s_waitcnt vmcnt(0)")
    release()
    lds_arrive(W_CNT3A, 8, vT + 6, vT + 4, s(sF3), replicas=R3, rshift=12)
    st(9)
    asm("s_cmp_ge_u32 %s, 4" % s(sW))
    asm("s_cbranch_scc1 %s_fin" % N)
    OF = 0; ACC3 = 160; WF = [200, 220]
    vOM, vOR, vWm, vWm2, vWr, vWr2 = 245, 246, 247, 248, 249, 250
    p3L, p3T, p3U, p3X = 251, 252, 253, 254
    vDW3 = 240
    sTB3, sOffO3, sOM = 44, 45, 46
    SOUT = SB_
    decode3()
    asm("s_load_dwordx2 s[4:5], s[0:1], 48")
    asm("s_lshl_b32 %s, %s, 2" % (s(sTB3), s(sRB3)))
    asm("s_add_u32 %s, %s, %s" % (s(sTB3), s(sTB3), s(sW)))
    lane(p3L)
    asm("v_lshlrev_b32 %s, 3, %s" % (v(p3X), v(p3L)))
    asm("s_lshl_b32 %s, %s, 3" % (s(sT0), s(sBR3)))
    asm("s_lshr_b32 %s, %s, 1" % (s(sT1), s(sRB3)))
    asm("s_add_u32 %s, %s, %s" % (s(sT0), s(sT0), s(sT1)))
    asm("s_lshl_b32 %s, %s, 8" % (s(sT0), s(sT0)))
    if R3 > 1:
        asm("s_and_b32 %s, %s, %d" % (s(sT1), s(sCB3), R3 - 1))
        asm("s_lshl_b32 %s, %s, 12" % (s(sT1), s(sT1)))
        asm("s_add_u32 %s, %s, %s" % (s(sT0), s(sT0), s(sT1)))
    asm("s_add_u32 %s, %s, %d" % (s(sPL), s(sT0), F3))
    asm("v_lshrrev_b32 %s, 4, %s" % (v(p3T), v(p3L)))
    asm("v_and_b32 %s, 15, %s" % (v(p3U), v(p3L)))
    asm("v_lshrrev_b32 %s, 1, %s" % (v(vWm2), v(p3T)))
    asm("v_mul_u32_u24 %s, 1280, %s" % (v(vOM), v(vWm2)))
    asm("v_and_b32 %s, 1, %s" % (v(vWm2), v(p3T)))
    asm("v_lshl_add_u32 %s, %s, 9, %s" % (v(vOM), v(vWm2), v(vOM)))
    asm("v_lshl_add_u32 %s, %s, 4, %s" % (v(vOM), v(p3U), v(vOM)))
    asm("v_mul_u32_u24 %s, 1280, %s" % (v(vOR), v(p3T)))
    asm("v_lshl_add_u32 %s, %s, 3, %s" % (v(vOR), v(p3U), v(vOR)))
    asm("v_add_u32 %s, 1024, %s" % (v(vOR), v(vOR)))
    asm("v_bfe_u32 %s, %s, 2, 2" % (v(p3U), v(p3L)))
    asm("v_lshrrev_b32 %s, 1, %s" % (v(vWm2), v(p3T)))
    asm("v_mul_u32_u24 %s, 20, %s" % (v(vWm), v(vWm2)))
    asm("v_and_b32 %s, 1, %s" % (v(vWm2), v(p3T)))
    asm("v_lshl_add_u32 %s, %s, 2, %s" % (v(vWm), v(vWm2), v(vWm)))
    asm("v_add_u32 %s, %s, %s" % (v(vWm), v(vWm), v(p3U)))
    asm("v_mul_u32_u24 %s, 160, %s" % (v(vWm), v(vWm)))
    asm("v_mul_u32_u24 %s, 20, %s" % (v(vWr), v(p3T)))
    asm("v_add_u32 %s, %s, %s" % (v(vWr), v(vWr), v(p3U)))
    asm("v_add_u32 %s, 16, %s" % (v(vWr), v(vWr)))
    asm("v_mul_u32_u24 %s, 160, %s" % (v(vWr), v(vWr)))
    asm("v_and_b32 %s, 3, %s" % (v(vWm2), v(p3L)))
    asm("v_lshl_add_u32 %s, %s, 3, %s" % (v(vWm), v(vWm2), v(vWm)))
    asm("v_lshl_add_u32 %s, %s, 3, %s" % (v(vWr), v(vWm2), v(vWr)))
    asm("v_add_u32 %s, 51200, %s" % (v(vWm2), v(vWm)))
    asm("v_add_u32 %s, 51200, %s" % (v(vWr2), v(vWr)))
    asm("s_mul_i32 %s, %s, %d" % (s(sOffO3), s(sBR3), REG))
    asm("s_add_u32 %s, %s, %d" % (s(sOffO3), s(sOffO3), R_OA))
    asm("s_mul_i32 %s, %s, 40960" % (s(sT0), s(sTB3)))
    asm("s_add_u32 %s, %s, %s" % (s(sOffO3), s(sOffO3), s(sT0)))
    asm("s_waitcnt lgkmcnt(0)")
    srd(asm, SOUT, "s4", "s5", 2048 * 2560)
    asm("s_cmp_lg_u32 %s, 0" % s(sW))
    asm("s_cbranch_scc1 %s_p3w" % N)
    if opts.get("ppoll", 0): ppoll(s(sPL), 32, [vDW3, vDW3 + 2], p3X)
    else: poll(s(sPL), 32, vDW3, p3X)
    lds_set(W_S3, p3T, p3U)
    asm("s_branch %s_p3go" % N)
    asm.label("%s_p3w" % N)
    lds_wait(W_S3, vDW3, vDW3 + 1)
    asm.label("%s_p3go" % N)
    st(10)
    def oloads(sidx):
        if sidx < 16:
            asm("s_add_u32 %s, %s, %d" % (s(sOM), s(sOffO3), 2560 * sidx))
            for rt in range(2):
                asm("buffer_load_dwordx4 %s, %s, %s, %s offen offset:%d%s" % (v(OF + (sidx * 2 + rt) * 4, 4), v(vOM), s(SWS, 4), s(sOM), rt * 256, LSC3))
        else:
            a_ = sidx - 16
            for half in range(2):
                asm("s_add_u32 %s, %s, %d" % (s(sOM), s(sOffO3), a_ * 8 * 1280 + half * 5120))
                for rt in range(2):
                    asm("buffer_load_dwordx2 %s, %s, %s, %s offen offset:%d%s" % (v(OF + ((16 + a_) * 2 + rt) * 4 + 2 * half, 2), v(vOR), s(SWS, 4), s(sOM), rt * 128, LSC3))
    def cum(k): return 2 * (k + 1) if k < 16 else 32 + 4 * (k - 15)
    PD = opts.get("pd", 5)
    for k in range(PD): oloads(k)
    def wreads(step, dst):
        ops = []
        for ct in range(5):
            for a_ in range(2):
                if step < 16:
                    base = vWm if step < 8 else vWm2
                    off = (step & 7) * 6400 + a_ * 1280 + ct * 32
                else:
                    ap = step - 16
                    base = vWr if ap < 2 else vWr2
                    off = (ap & 1) * 25600 + a_ * 12800 + ct * 32
                ops.append(lambda ct=ct, a_=a_, base=base, off=off: asm("ds_read_b64_tr_b16 %s, %s offset:%d" % (v(dst + 4 * ct + 2 * a_, 2), v(base), off)))
        return ops
    if opts.get("p3st"): st(1)
    for f in wreads(0, WF[0]): f()
    for sidx in range(20):
        cur = WF[sidx & 1]
        nxt_ops = wreads(sidx + 1, WF[(sidx + 1) & 1]) if sidx < 19 else []
        vm = cum(min(sidx + PD - 1, 19)) - cum(sidx)
        asm("s_waitcnt vmcnt(%d) lgkmcnt(0)" % vm)
        if opts.get("p3st") and sidx in (0, 8, 16): st({0: 2, 8: 3, 16: 4}[sidx])
        m = 0
        for ct in range(5):
            for rt in range(2):
                acc = v(ACC3 + (rt * 5 + ct) * 4, 4)
                c = "0" if sidx == 0 else acc
                asm("v_mfma_f32_16x16x32_bf16 %s, %s, %s, %s" % (acc, v(cur + 4 * ct, 4), v(OF + (sidx * 2 + rt) * 4, 4), c))
                if m < 5 and nxt_ops:
                    nxt_ops[2 * m](); nxt_ops[2 * m + 1]()
                if m == 5 and sidx + PD < 20: oloads(sidx + PD)
                m += 1
    st(11)
    if TAIL2: lds_wait(W_CNT3A, p3T, p3U, atleast=8)
    asm("v_and_b32 %s, 15, %s" % (v(p3U), v(p3L)))
    asm("v_mul_u32_u24 %s, 160, %s" % (v(p3U), v(p3U)))
    asm("v_lshrrev_b32 %s, 4, %s" % (v(p3T), v(p3L)))
    asm("v_lshl_add_u32 %s, %s, 3, %s" % (v(p3U), v(p3T), v(p3U)))
    asm("s_mul_i32 %s, %s, 5120" % (s(sT0), s(sW)))
    asm("s_add_u32 %s, %s, %d" % (s(sT0), s(sT0), L_OUT))
    asm("v_add_u32 %s, %s, %s" % (v(p3U), s(sT0), v(p3U)))
    asm("v_lshlrev_b32 %s, 4, %s" % (v(p3X), v(p3L)))
    asm("v_add_u32 %s, %s, %s" % (v(p3X), s(sT0), v(p3X)))
    asm("s_nop 3")
    for rt in range(2):
        for ct in range(5):
            b = ACC3 + (rt * 5 + ct) * 4
            t = OF + (rt * 5 + ct) * 2
            asm("v_cvt_pk_bf16_f32 %s, %s, %s" % (v(t), v(b), v(b + 1)))
            asm("v_cvt_pk_bf16_f32 %s, %s, %s" % (v(t + 1), v(b + 2), v(b + 3)))
            asm("ds_write_b64 %s, %s offset:%d" % (v(p3U), v(t, 2), rt * 2560 + ct * 32))
    asm("s_movk_i32 %s, 6554" % s(sT2))
    asm("s_movk_i32 %s, 2560" % s(sT3))
    for b in range(5):
        asm("v_add_u32 %s, %d, %s" % (v(p3T), 64 * b, v(p3L)))
        asm("v_mul_lo_u32 %s, %s, %s" % (v(vWm), v(p3T), s(sT2)))
        asm("v_lshrrev_b32 %s, 16, %s" % (v(vWm), v(vWm)))
        asm("v_mul_u32_u24 %s, 10, %s" % (v(vWr), v(vWm)))
        asm("v_sub_u32 %s, %s, %s" % (v(p3T), v(p3T), v(vWr)))
        asm("v_lshlrev_b32 %s, 4, %s" % (v(p3T), v(p3T)))
        asm("v_mad_u32_u24 %s, %s, %s, %s" % (v(vDW3 + b), v(vWm), s(sT3), v(p3T)))
    asm("s_mul_i32 %s, %s, %d" % (s(sT0), s(sTB3), 32 * 2560))
    asm("s_mul_i32 %s, %s, 1280" % (s(sT1), s(sBR3)))
    asm("s_add_u32 %s, %s, %s" % (s(sT0), s(sT0), s(sT1)))
    asm("s_mul_i32 %s, %s, 160" % (s(sT1), s(sCB3)))
    asm("s_add_u32 %s, %s, %s" % (s(sT0), s(sT0), s(sT1)))
    asm("s_waitcnt lgkmcnt(0)")
    for b in range(5):
        asm("ds_read_b128 %s, %s offset:%d" % (v(32 + 4 * b, 4), v(p3X), b * 1024))
    for b in range(5):
        asm("s_waitcnt lgkmcnt(%d)" % (4 - b))
        asm("buffer_store_dwordx4 %s, %s, %s, %s offen%s" % (v(32 + 4 * b, 4), v(vDW3 + b), s(SOUT, 4), s(sT0), {0: "", 1: " sc1", 2: " nt", 3: " sc0 sc1"}[opts.get("outsc", 0)]))
    asm(";PADEND")
    asm.label("%s_fin" % N)
    if stamp:
        asm("s_waitcnt vmcnt(0)")
        st(12)
        asm("s_waitcnt lgkmcnt(0)")
        asm("s_load_dwordx2 s[4:5], s[0:1], 64")
        asm("s_waitcnt lgkmcnt(0)")
        asm("s_add_u32 s4, s4, %d" % (R_STAMP + (opts.get("wsoff", 0) << 20)))
        asm("s_addc_u32 s5, s5, 0")
        srd(asm, SA_, "s4", "s5", 1 << 20)
        asm("s_lshl_b32 %s, s2, 3" % s(sT0))
        asm("s_add_u32 %s, %s, %s" % (s(sT0), s(sT0), s(sW)))
        asm("s_lshl_b32 %s, %s, 7" % (s(sT0), s(sT0)))
        asm("v_mov_b32 v1, %s" % s(sT0))
        for i in range(13):
            asm("v_mov_b32 v2, %s" % s(STB + 2 * i))
            asm("v_mov_b32 v3, %s" % s(STB + 2 * i + 1))
            asm("buffer_store_dwordx2 v[2:3], v1, %s, 0 offen offset:%d" % (s(SA_, 4), 8 * i))
            asm("s_nop 1")
        asm("s_getreg_b32 s4, hwreg(HW_REG_HW_ID)")
        asm("v_mov_b32 v2, %s" % s(sXCC))
        asm("v_mov_b32 v3, s4")
        asm("buffer_store_dwordx2 v[2:3], v1, %s, 0 offen offset:%d" % (s(SA_, 4), 8 * 13))
    asm.label("%s_end" % N)
    asm("s_endpgm")
    return dict(name=N, vgpr=256, sgpr=100, grid=256, block=512, lds=LDS_BYTES)
HEADER = open("concat_heads__linear_attn_block__sliding_block__prompt.s.ref").read().split("; Override")[0]
def insert_pads(lines, every, nseg, N):
    b = lines.index(";PADBEGIN"); e = lines.index(";PADEND")
    pos = []; cnt = every; partial = False
    for k in range(b + 1, e):
        ln = lines[k].strip()
        if not ln or ln.endswith(":") or ln.startswith(";") or ln.startswith("."): continue
        if ln.startswith("s_mov_b64 exec") or ln.startswith("s_mov_b32 exec_"):
            partial = not ln.endswith("exec, -1")
            cnt += 1
            continue
        if cnt >= every and not partial:
            pos.append(k); cnt = 0
        cnt += 1
    n = len(pos); per = (n + nseg - 1) // nseg
    out = list(lines[:pos[0]])
    for i_, k in enumerate(pos):
        seg, j = divmod(i_, per)
        name = "%s_padseg%d" % (N, seg) if j == 0 else "%s_pad%d" % (N, i_)
        last = (j == per - 1) or (i_ == n - 1)
        nxt = "%s_walkret" % N if last else "%s_pad%d" % (N, i_ + 1)
        out.append(name + ":")
        out.append("s_cbranch_execz %s" % nxt)
        out += lines[k:(pos[i_ + 1] if i_ + 1 < n else len(lines))]
    nsegs = (n + per - 1) // per
    assert nsegs == nseg, (n, per, nsegs)
    return out, n
def build(stamp=False, opts=None):
    body = A()
    i = gen(body, stamp=stamp, opts=opts)
    if opts and opts.get("pad", 0):
        body.L, npads = insert_pads(body.L, opts["pad"], 8, i["name"])
        print("pads:", npads)
    else:
        body.L = [l for l in body.L if l not in (";PADBEGIN", ";PADEND")]
    if opts and opts.get("hfirst", 0):
        N = i["name"]; L = body.L
        a = L.index("%s_p1h:" % N); b = L.index("%s_p2h:" % N)
        blk = L[a:b]; rest = L[:a] + L[b:]
        k = rest.index("s_cbranch_scc1 %s_p1h" % N)
        rest[k] = "s_cbranch_scc0 %s_p1c" % N
        body.L = rest[:k + 1] + blk + ["s_branch %s_p2h" % N, "%s_p1c:" % N] + rest[k + 1:]
    out = HEADER
    out += "; @launch grid=(%d,1,1) block=(%d,1,1) lds=%d\n" % (i["grid"], i["block"], i["lds"])
    out += '.amdgcn_target "amdgcn-amd-amdhsa--gfx950"\n.text\n'
    out += body.text()
    d = A()
    d('.section .rodata,"a"')
    kernel_desc(d, i["name"], i["vgpr"], i["sgpr"])
    out += d.text()
    return out
if __name__ == "__main__":
    import sys
    opts = {}
    for a_ in sys.argv[3:]:
        k, val = a_.split("="); opts[k] = int(val)
    open(sys.argv[1], "w").write(build(stamp=(len(sys.argv) > 2 and sys.argv[2] == "stamp"), opts=opts))
```

```python
from asmlib import *
import math
REG = 2621440
R_QA, R_KA, R_VA, R_QB, R_KB, R_VB, R_OA, R_OB, R_KVP, R_FLG = [i * REG for i in range(10)]
F1 = R_FLG
F2 = R_FLG + 65536
F3 = R_FLG + 65536 + 8192
WS_REC = R_FLG + 131072
R_STAMP = 10 * REG
LOG2E = 1.4426950408889634
QSCALE = LOG2E / math.sqrt(20.0)
BIG = -1.0e30
OOB = 0x40000000
L_WO, L_K, L_V, L_KVT = 0, 102400, 135168, 155648
L_OUT = L_K
L_SYNC = 157696
W_CNT1, W_S1, W_S1A, W_S2, W_CNT3B, W_CNT3A, W_S3, W_ISS, W_K, W_V, W_KVT = [L_SYNC + 4 * i for i in range(11)]
LDS_BYTES = 157696 + 64
SPIN_MAX = 0x40000
NAME = "concat_heads__linear_attn_block__sliding_block__prompt_kernel"
class G:
    pass
def gen(asm, stamp=False, name=NAME, opts=None):
    opts = opts or {}
    N = name
    D1 = opts.get("d1", 0)
    SC = " sc1" if D1 else ""
    SC = {0: SC, 1: " sc0 sc1", 2: " sc1 nt", 3: " sc0 sc1 nt"}[opts.get("scmode", 0)]
    R3 = opts.get("r3", 1)
    REPL = opts.get("repl", 8)
    LSC3 = "" if opts.get("plain3") else " sc1"
    sW = 3
    SWS, SDBG = 8, 12
    sNON = 16
    sT0, sT1, sT2, sT3 = 18, 19, 20, 21
    sCNT, sPL = 22, 23
    SA_, SB_ = 24, 28
    sMASK = 32
    sPC = 34
    STB = 72
    sP8, sSLOT, sLOCAL, sXCC = 70, 71, 98, 99
    def st(k):
        if stamp:
            asm("s_memrealtime %s" % s(STB + 2 * k, 2))
    def lane(dst):
        asm("v_mbcnt_lo_u32_b32 %s, -1, 0" % v(dst))
        asm("v_mbcnt_hi_u32_b32 %s, -1, %s" % (v(dst), v(dst)))
    uid = [0]
    def lab(p):
        uid[0] += 1
        return "%s_%s%d" % (N, p, uid[0])
    def sync_issue(vd, vo):
        lane(vo)
        asm("s_lshl_b32 %s, %s, 3" % (s(sT0), s(sP8)))
        asm("s_add_u32 %s, %s, 64" % (s(sT0), s(sT0)))
        asm("v_cmp_eq_u32 vcc, 1, %s" % v(vo))
        asm("v_mov_b32 %s, %s" % (v(vd), s(sT0)))
        asm("v_mov_b32 %s, 0" % v(vo))
        asm("v_cndmask_b32 %s, %s, %s, vcc" % (v(vo), v(vo), v(vd)))
        asm("buffer_load_dwordx2 %s, %s, %s, 0 offen sc1" % (v(vd, 2), v(vo), s(SDBG, 4)))
    def get_sync(vd, vo, preissued=False):
        L, D = lab("non"), lab("nond")
        if not preissued: sync_issue(vd, vo)
        asm("s_mov_b32 %s, 0" % s(sCNT))
        asm.label(L)
        asm("s_waitcnt vmcnt(0)")
        asm("v_readlane_b32 %s, %s, 0" % (s(sNON), v(vd)))
        asm("v_readlane_b32 %s, %s, 0" % (s(sNON + 1), v(vd + 1)))
        asm("v_readlane_b32 %s, %s, 1" % (s(sPC), v(vd)))
        asm("v_readlane_b32 %s, %s, 1" % (s(sPC + 1), v(vd + 1)))
        asm("s_add_u32 %s, %s, 1" % (s(sCNT), s(sCNT)))
        asm("s_nop 2")
        asm("s_cmp_lg_u32 %s, 0" % s(sNON))
        asm("s_cbranch_scc1 %s" % D)
        asm("s_cmp_ge_u32 %s, 0x%x" % (s(sCNT), SPIN_MAX))
        asm("s_cbranch_scc1 %s" % D)
        asm("s_sleep 4")
        asm("buffer_load_dwordx2 %s, %s, %s, 0 offen sc1" % (v(vd, 2), v(vo), s(SDBG, 4)))
        asm("s_branch %s" % L)
        asm.label(D)
        asm("s_lshl_b32 %s, %s, 3" % (s(sT0), s(sXCC)))
        asm("s_lshl_b64 %s, 32, %s" % (s(sMASK, 2), s(sT0)))
        asm("s_cmp_eq_u64 %s, %s" % (s(sMASK, 2), s(sPC, 2)))
        asm("s_cselect_b32 %s, 1, 0" % s(sLOCAL))
        if opts.get("nolocal"): asm("s_mov_b32 %s, 0" % s(sLOCAL))
    def release():
        if D1: return
        D = lab("rel")
        asm("s_cmp_lg_u32 %s, 0" % s(sLOCAL))
        asm("s_cbranch_scc1 %s" % D)
        asm("buffer_wbl2 sc1")
        asm("s_waitcnt vmcnt(0)")
        asm.label(D)
    def lds_set(word, va, vd):
        asm("v_mov_b32 %s, 0x%x" % (v(va), word))
        asm("v_mov_b32 %s, 1" % v(vd))
        asm("ds_write_b32 %s, %s" % (v(va), v(vd)))
    def lds_wait(word, va, vd, atleast=1):
        L, D = lab("lw"), lab("lwd")
        asm("v_mov_b32 %s, 0x%x" % (v(va), word))
        asm("s_mov_b32 %s, 0" % s(sCNT))
        asm.label(L)
        asm("ds_read_b32 %s, %s" % (v(vd), v(va)))
        asm("s_waitcnt lgkmcnt(0)")
        asm("v_readfirstlane_b32 %s, %s" % (s(sT0), v(vd)))
        asm("s_add_u32 %s, %s, 1" % (s(sCNT), s(sCNT)))
        asm("s_nop 2")
        asm("s_cmp_ge_u32 %s, %d" % (s(sT0), atleast))
        asm("s_cbranch_scc1 %s" % D)
        asm("s_cmp_ge_u32 %s, 0x%x" % (s(sCNT), SPIN_MAX * 8))
        asm("s_cbranch_scc1 %s" % D)
        if opts.get("lsleep", 1): asm("s_sleep %d" % opts.get("lsleep", 1))
        asm("s_branch %s" % L)
        asm.label(D)
    def lds_arrive(word, n, va, vd, soff, replicas=1, rshift=11):
        D = lab("arr")
        asm("v_mov_b32 %s, 0x%x" % (v(va), word))
        asm("v_mov_b32 %s, 1" % v(vd))
        asm("s_mov_b64 exec, 1")
        asm("ds_add_rtn_u32 %s, %s, %s" % (v(vd), v(va), v(vd)))
        asm("s_waitcnt lgkmcnt(0)")
        asm("s_mov_b64 exec, -1")
        asm("v_readfirstlane_b32 %s, %s" % (s(sCNT), v(vd)))
        asm("s_nop 3")
        asm("s_cmp_lg_u32 %s, %d" % (s(sCNT), n - 1))
        asm("s_cbranch_scc1 %s" % D)
        flag_store(soff, vd, va, replicas, rshift)
        asm.label(D)
    def poll_issue(soff, vd, vo, n):
        asm("s_mov_b32 exec_lo, 0x%x" % ((1 << n) - 1))
        asm("s_mov_b32 exec_hi, 0")
        asm("buffer_load_dwordx2 %s, %s, %s, %s offen sc1" % (v(vd, 2), v(vo), s(SWS, 4), soff))
        asm("s_mov_b64 exec, -1")
    def poll(soff, n, vd, vo, preissued=False, lo=0, smask=None):
        L, D = lab("poll"), lab("polld")
        m = ((1 << n) - 1) & ~((1 << lo) - 1)
        asm("s_mov_b32 %s, %s" % (s(sMASK), smask if smask else "0x%x" % (m & 0xffffffff)))
        asm("s_mov_b32 %s, 0x%x" % (s(sMASK + 1), m >> 32))
        if not preissued: poll_issue(soff, vd, vo, n)
        asm("s_mov_b32 %s, 0" % s(sCNT))
        asm.label(L)
        asm("s_waitcnt vmcnt(0)")
        asm("v_cmp_eq_u32 vcc, %s, %s" % (s(sNON), v(vd)))
        asm("v_cmp_eq_u32 %s, %s, %s" % (s(sPC, 2), s(sNON + 1), v(vd + 1)))
        asm("s_add_u32 %s, %s, 1" % (s(sCNT), s(sCNT)))
        asm("s_nop 3")
        asm("s_and_b64 %s, %s, vcc" % (s(sPC, 2), s(sPC, 2)))
        asm("s_and_b64 %s, %s, %s" % (s(sPC, 2), s(sPC, 2), s(sMASK, 2)))
        asm("s_cmp_eq_u64 %s, %s" % (s(sPC, 2), s(sMASK, 2)))
        asm("s_cbranch_scc1 %s" % D)
        asm("s_cmp_ge_u32 %s, 0x%x" % (s(sCNT), SPIN_MAX))
        asm("s_cbranch_scc1 %s" % D)
        asm("s_sleep %d" % opts.get("sleep", 3))
        poll_issue(soff, vd, vo, n)
        asm("s_branch %s" % L)
        asm.label(D)
    def ppoll(soff, n, regs, vo, smask=None):
        k = len(regs)
        L, D = lab("pp"), lab("ppd")
        m = (1 << n) - 1
        asm("s_mov_b32 %s, %s" % (s(sMASK), smask if smask else "0x%x" % (m & 0xffffffff)))
        asm("s_mov_b32 %s, 0x%x" % (s(sMASK + 1), m >> 32))
        for i, r in enumerate(regs):
            poll_issue(soff, r, vo, n)
            if i + 1 < k: asm("s_sleep %d" % opts.get("pstag", 6))
        asm("s_mov_b32 %s, 0" % s(sCNT))
        asm.label(L)
        for i, r in enumerate(regs):
            asm("s_waitcnt vmcnt(%d)" % (k - 1))
            asm("v_cmp_eq_u32 vcc, %s, %s" % (s(sNON), v(r)))
            asm("v_cmp_eq_u32 %s, %s, %s" % (s(sPC, 2), s(sNON + 1), v(r + 1)))
            asm("s_add_u32 %s, %s, 1" % (s(sCNT), s(sCNT)))
            asm("s_nop 3")
            asm("s_and_b64 %s, %s, vcc" % (s(sPC, 2), s(sPC, 2)))
            asm("s_and_b64 %s, %s, %s" % (s(sPC, 2), s(sPC, 2), s(sMASK, 2)))
            asm("s_cmp_eq_u64 %s, %s" % (s(sPC, 2), s(sMASK, 2)))
            asm("s_cbranch_scc1 %s" % D)
            poll_issue(soff, r, vo, n)
        asm("s_cmp_lt_u32 %s, 0x%x" % (s(sCNT), SPIN_MAX * 3))
        asm("s_cbranch_scc1 %s" % L)
        asm.label(D)
    def flag_store(soff, vd, vo, replicas=1, rshift=11):
        if replicas > 1:
            lane(vo)
            asm("v_lshlrev_b32 %s, %d, %s" % (v(vo), rshift, v(vo)))
        else:
            asm("v_mov_b32 %s, 0" % v(vo))
        asm("v_mov_b32 %s, %s" % (v(vd), s(sNON)))
        asm("v_mov_b32 %s, %s" % (v(vd + 1), s(sNON + 1)))
        asm("s_mov_b64 exec, %d" % ((1 << replicas) - 1 if replicas <= 6 else -1) if replicas <= 6 else "s_mov_b32 exec_lo, 0x%x\n    s_mov_b32 exec_hi, 0" % ((1 << replicas) - 1))
        asm("buffer_store_dwordx2 %s, %s, %s, %s offen sc1" % (v(vd, 2), v(vo), s(SWS, 4), soff))
        asm("s_mov_b64 exec, -1")
    kernel_header(asm, N)
    asm("s_cmp_ge_u32 s2, 256")
    asm("s_cbranch_scc1 %s_end" % N)
    if stamp:
        for i in range(26): asm("s_mov_b32 %s, 0" % s(STB + i))
    st(0)
    asm("s_load_dwordx4 s[4:7], s[0:1], 56")
    asm("s_load_dwordx4 s[36:39], s[0:1], 0")
    asm("s_load_dwordx4 s[40:43], s[0:1], 24")
    asm("v_lshrrev_b32 v1, 6, v0")
    asm("s_nop 0")
    asm("v_readfirstlane_b32 %s, v1" % s(sW))
    CPF = opts.get("cpf", 0)
    if CPF:
        asm("s_lshr_b32 %s, s2, 3" % s(sT0))
        asm("s_nop 1")
        asm("s_cmp_lg_u32 %s, %d" % (s(sW), CPF))
        asm("s_cbranch_scc1 %s_nocpf" % N)
        asm("s_getpc_b64 s[24:25]")
        asm.label("%s_cpfpc" % N)
        asm("s_sub_u32 s24, s24, (%s_cpfpc - %s)" % (N, N))
        asm("s_subb_u32 s25, s25, 0")
        asm("s_and_b32 s25, s25, 0xffff")
        asm("s_mov_b32 s26, (%s_end - %s)" % (N, N))
        asm("s_mov_b32 s27, 0x20000")
        lane(5)
        asm("s_and_b32 %s, %s, 3" % (s(sT0), s(sT0)))
        asm("s_lshl_b32 %s, %s, 6" % (s(sT0), s(sT0)))
        asm("v_add_u32 v5, %s, v5" % s(sT0))
        asm("v_lshlrev_b32 v5, 7, v5")
        asm("buffer_load_dword v199, v5, s[24:27], 0 offen")
        asm.label("%s_nocpf" % N)
    sBR, sRB, sCB, sPART, sCBP, sW4, sWM, sWN = 44, 45, 46, 47, 48, 49, 50, 51
    asm("s_and_b32 %s, s2, 7" % s(sP8))
    asm("s_lshr_b32 %s, s2, 3" % s(sSLOT))
    asm("s_getreg_b32 %s, hwreg(HW_REG_XCC_ID, 0, 4)" % s(sXCC))
    asm("s_and_b32 %s, %s, 7" % (s(sXCC), s(sXCC)))
    if not D1:
        asm("s_cmp_ge_u32 %s, 15" % s(sSLOT))
        asm("s_cselect_b32 %s, 1, 0" % s(sBR))
        asm("s_cselect_b32 %s, 15, 0" % s(sT0))
        asm("s_sub_u32 %s, %s, %s" % (s(sCB), s(sSLOT), s(sT0)))
        asm("s_mov_b32 %s, %s" % (s(sRB), s(sP8)))
    else:
        asm("s_lshr_b32 %s, %s, 2" % (s(sBR), s(sP8)))
        asm("s_and_b32 %s, %s, 3" % (s(sT0), s(sP8)))
        asm("s_mul_i32 %s, %s, 30" % (s(sT0), s(sT0)))
        asm("s_add_u32 %s, %s, %s" % (s(sT0), s(sT0), s(sSLOT)))
        asm("s_cmp_ge_u32 %s, 60" % s(sT0))
        asm("s_cselect_b32 %s, 4, 0" % s(sT1))
        asm("s_cselect_b32 %s, 60, 0" % s(sT2))
        asm("s_sub_u32 %s, %s, %s" % (s(sT0), s(sT0), s(sT2)))
        asm("s_lshr_b32 %s, %s, 2" % (s(sCB), s(sT0)))
        asm("s_and_b32 %s, %s, 3" % (s(sT0), s(sT0)))
        asm("s_add_u32 %s, %s, %s" % (s(sRB), s(sT1), s(sT0)))
    asm("s_cmp_ge_u32 %s, 5" % s(sCB))
    asm("s_cselect_b32 %s, 1, 0" % s(sPART))
    asm("s_cmp_ge_u32 %s, 10" % s(sCB))
    asm("s_cselect_b32 %s, 2, %s" % (s(sPART), s(sPART)))
    asm("s_mul_i32 %s, %s, 5" % (s(sT0), s(sPART)))
    asm("s_sub_u32 %s, %s, %s" % (s(sCBP), s(sCB), s(sT0)))
    asm("s_and_b32 %s, %s, 3" % (s(sW4), s(sW)))
    asm("s_lshr_b32 %s, %s, 1" % (s(sWM), s(sW4)))
    asm("s_and_b32 %s, %s, 1" % (s(sWN), s(sW4)))
    asm("s_waitcnt lgkmcnt(0)")
    if opts.get("wsoff"):
        asm("s_add_u32 s6, s6, 0x%x" % (opts["wsoff"] << 20))
        asm("s_addc_u32 s7, s7, 0")
    srd(asm, SWS, "s6", "s7", WS_REC)
    srd(asm, SDBG, "s4", "s5", 256)
    asm("s_cmp_ge_u32 %s, 4" % s(sW))
    asm("s_cbranch_scc1 %s_p1h" % N)
    ACC = 0; FX = [128, 144]; FW = [160, 168]
    vXA, vWA = 176, 180
    vL, vT, vU, vV = 194, 195, 196, 197
    vSO = 198; TMP = 200; TE = 216; vN = 220
    sSTG, sDELTA, sRBUF, sNEG = 52, 53, 54, 55
    sTN, sGG, sSO = 56, 57, 58
    sC0, sC1 = 60, 62
    asm("s_or_b32 %s, s2, %s" % (s(sT0), s(sW)))
    asm("s_cmp_lg_u32 %s, 0" % s(sT0))
    asm("s_cbranch_scc1 %s_nonon" % N)
    asm("s_memrealtime %s" % s(sNON, 2))
    asm("s_waitcnt lgkmcnt(0)")
    asm("s_or_b32 %s, %s, 1" % (s(sNON), s(sNON)))
    asm("v_mov_b32 v2, %s" % s(sNON))
    asm("v_mov_b32 v3, %s" % s(sNON + 1))
    asm("v_mov_b32 v4, 0")
    asm("s_mov_b64 exec, 1")
    asm("buffer_store_dwordx2 v[2:3], v4, %s, 0 offen sc1" % s(SDBG, 4))
    asm("s_mov_b64 exec, -1")
    asm.label("%s_nonon" % N)
    TLBW = opts.get("tlbw", 0)
    if TLBW:
        asm("s_cmp_lg_u32 %s, 2" % s(sW))
        asm("s_cbranch_scc1 %s_notlb" % N)
        asm("s_load_dwordx2 s[4:5], s[0:1], 48")
        lane(5)
        asm("v_lshlrev_b32 v5, %d, v5" % TLBW)
        asm("buffer_load_dword v199, v5, %s, 0 offen sc1" % s(SWS, 4))
        asm("s_waitcnt lgkmcnt(0)")
        srd(asm, SB_, "s4", "s5", 2048 * 2560)
        asm("buffer_load_dword v199, v5, %s, 0 offen sc1" % s(SB_, 4))
        asm("v_mov_b32 v5, 128")
        asm("buffer_load_dword v199, v5, %s, 0 offen sc1" % s(SDBG, 4))
        asm.label("%s_notlb" % N)
    asm("s_cmp_lg_u32 %s, 0" % s(sW))
    asm("s_cbranch_scc1 %s_noinit" % N)
    asm("s_lshl_b32 %s, %s, 3" % (s(sT0), s(sXCC)))
    asm("s_lshl_b64 s[4:5], 1, %s" % s(sT0))
    asm("s_lshl_b32 %s, %s, 3" % (s(sT0), s(sP8)))
    asm("s_add_u32 %s, %s, 64" % (s(sT0), s(sT0)))
    asm("v_mov_b32 v2, s4")
    asm("v_mov_b32 v3, s5")
    asm("v_mov_b32 v4, %s" % s(sT0))
    if not D1:
        asm("s_mov_b64 exec, 1")
        asm("buffer_atomic_add_x2 v[2:3], v4, %s, 0 offen" % s(SDBG, 4))
        asm("s_mov_b64 exec, -1")
    lane(5)
    asm("v_lshlrev_b32 v5, 2, v5")
    asm("v_add_u32 v5, 0x%x, v5" % L_SYNC)
    asm("v_mov_b32 v6, 0")
    asm("s_mov_b32 exec_lo, 0xffff")
    asm("s_mov_b32 exec_hi, 0")
    asm("ds_write_b32 v5, v6")
    asm("s_mov_b64 exec, -1")
    asm("s_waitcnt lgkmcnt(0)")
    if opts.get("ft", 0):
        lane(5)
        asm("s_lshl_b32 %s, %s, 2" % (s(sT0), s(sP8)))
        asm("s_and_b32 %s, %s, 3" % (s(sT1), s(sSLOT)))
        asm("s_add_u32 %s, %s, %s" % (s(sT0), s(sT0), s(sT1)))
        asm("s_lshl_b32 %s, %s, 7" % (s(sT0), s(sT0)))
        asm("s_add_u32 %s, %s, %d" % (s(sT0), s(sT0), F2))
        asm("s_lshr_b32 %s, %s, 2" % (s(sT1), s(sP8)))
        asm("s_lshl_b32 %s, %s, 3" % (s(sT1), s(sT1)))
        asm("s_and_b32 %s, %s, 3" % (s(sT2), s(sP8)))
        asm("s_lshl_b32 %s, %s, 1" % (s(sT2), s(sT2)))
        asm("s_lshr_b32 %s, %s, 4" % (s(sT3), s(sSLOT)))
        asm("s_add_u32 %s, %s, %s" % (s(sT2), s(sT2), s(sT3)))
        asm("s_add_u32 %s, %s, %s" % (s(sT1), s(sT1), s(sT2)))
        asm("s_lshl_b32 %s, %s, 8" % (s(sT1), s(sT1)))
        if R3 > 1:
            asm("s_and_b32 %s, %s, %d" % (s(sT2), s(sSLOT), R3 - 1))
            asm("s_lshl_b32 %s, %s, 12" % (s(sT2), s(sT2)))
            asm("s_add_u32 %s, %s, %s" % (s(sT1), s(sT1), s(sT2)))
        asm("s_add_u32 %s, %s, %d" % (s(sT1), s(sT1), F3 - 128))
        asm("v_lshlrev_b32 v6, 3, v5")
        asm("v_add_u32 v7, %s, v6" % s(sT0))
        asm("v_add_u32 v6, %s, v6" % s(sT1))
        asm("v_cmp_gt_u32 vcc, 16, v5")
        asm("s_nop 1")
        asm("v_cndmask_b32 v6, v6, v7, vcc")
        asm("s_mov_b32 exec_lo, -1")
        asm("s_mov_b32 exec_hi, 0xffff")
        asm("buffer_load_dword v199, v6, %s, 0 offen sc1" % s(SWS, 4))
        asm("s_mov_b64 exec, -1")
    asm.label("%s_noinit" % N)
    asm("s_cmp_ge_u32 %s, 30" % s(sSLOT))
    asm("s_cbranch_scc1 %s_p2c" % N)
    lane(vL)
    asm.c("X frag read addr")
    asm("v_and_b32 %s, 31, %s" % (v(vT), v(vL)))
    asm("s_lshl_b32 %s, %s, 7" % (s(sT0), s(sWM)))
    asm("v_add_u32 %s, %s, %s" % (v(vU), s(sT0), v(vT)))
    asm("v_lshlrev_b32 %s, 7, %s" % (v(vU), v(vU)))
    asm("v_bfe_u32 %s, %s, 1, 3" % (v(vT), v(vT)))
    asm("v_lshrrev_b32 %s, 5, %s" % (v(vV), v(vL)))
    for ks in range(4):
        asm("v_add_u32 %s, %d, %s" % (v(TMP), 2 * ks, v(vV)))
        asm("v_xor_b32 %s, %s, %s" % (v(TMP), v(TMP), v(vT)))
        asm("v_lshl_add_u32 %s, %s, 4, %s" % (v(vXA + ks), v(TMP), v(vU)))
    asm.c("W frag read addr")
    asm("v_bfe_u32 %s, %s, 2, 2" % (v(vT), v(vL)))
    asm("v_lshrrev_b32 %s, 5, %s" % (v(vU), v(vL)))
    asm("v_lshl_add_u32 %s, %s, 3, %s" % (v(vU), v(vU), v(vT)))
    asm("v_lshlrev_b32 %s, 8, %s" % (v(vU), v(vU)))
    asm("v_add_u32 %s, 32768, %s" % (v(vU), v(vU)))
    asm("v_and_b32 %s, 1, %s" % (v(vV), v(vL)))
    asm("v_lshl_add_u32 %s, %s, 3, %s" % (v(vU), v(vV), v(vU)))
    asm("v_bfe_u32 %s, %s, 4, 1" % (v(vV), v(vL)))
    asm("v_lshlrev_b32 %s, 1, %s" % (v(vV), v(vV)))
    asm("v_bfe_u32 %s, %s, 1, 1" % (v(TMP), v(vL)))
    asm("v_add_u32 %s, %s, %s" % (v(vV), v(vV), v(TMP)))
    asm("s_lshl_b32 %s, %s, 3" % (s(sT0), s(sWN)))
    asm("v_add_u32 %s, %s, %s" % (v(vV), s(sT0), v(vV)))
    asm("v_lshlrev_b32 %s, 2, %s" % (v(vT), v(vT)))
    for tn in range(2):
        asm("v_add_u32 %s, %d, %s" % (v(TMP), 4 * tn, v(vV)))
        asm("v_xor_b32 %s, %s, %s" % (v(TMP), v(TMP), v(vT)))
        asm("v_lshl_add_u32 %s, %s, 4, %s" % (v(vWA + tn), v(TMP), v(vU)))
    for i in range(128):
        asm("v_mov_b32 %s, 0" % v(ACC + i))
    asm("s_mul_i32 %s, %s, 3" % (s(sT0), s(sBR)))
    asm("s_add_u32 %s, %s, %s" % (s(sT0), s(sT0), s(sPART)))
    asm("s_mul_i32 %s, %s, %d" % (s(sT0), s(sT0), REG))
    asm("s_add_u32 s6, s6, %s" % s(sT0))
    asm("s_addc_u32 s7, s7, 0")
    SO = SA_
    srd(asm, SO, "s6", "s7", REG)
    def rdX(st_, tm, ks):
        asm("ds_read_b128 %s, %s offset:%d" % (v(FX[st_] + 4 * tm, 4), v(vXA + ks), tm * 4096))
    def rdW(st_, tn, a_, ks):
        asm("ds_read_b64_tr_b16 %s, %s offset:%d" % (v(FW[st_] + 4 * tn + 2 * a_, 2), v(vWA + tn), ks * 4096 + a_ * 1024))
    def reads(st_, ks):
        return [lambda: rdW(st_, 0, 0, ks), lambda: rdW(st_, 0, 1, ks), lambda: rdX(st_, 0, ks), lambda: rdX(st_, 1, ks),
                lambda: rdW(st_, 1, 0, ks), lambda: rdW(st_, 1, 1, ks), lambda: rdX(st_, 2, ks), lambda: rdX(st_, 3, ks)]
    MORD = [(0, 0), (1, 0), (0, 1), (1, 1), (2, 0), (2, 1), (3, 0), (3, 1)]
    def mfma(orient, st_, tm, tn):
        acc = v(ACC + (tm * 2 + tn) * 16, 16)
        x = v(FX[st_] + 4 * tm, 4); w = v(FW[st_] + 4 * tn, 4)
        if orient == "T": asm("v_mfma_f32_32x32x16_bf16 %s, %s, %s, %s" % (acc, w, x, acc))
        else: asm("v_mfma_f32_32x32x16_bf16 %s, %s, %s, %s" % (acc, x, w, acc))
    PF = opts.get("pf", 0)
    if PF:
        nst_ = 10 - PF
        per = (1024 * nst_ + 119) // 120
        assert per <= 64
        asm("s_lshl_b32 %s, %s, 2" % (s(sT0), s(sSLOT)))
        asm("s_add_u32 %s, %s, %s" % (s(sT0), s(sT0), s(sW4)))
        asm("s_mul_i32 %s, %s, %d" % (s(sT0), s(sT0), per))
        asm("v_add_u32 %s, %s, %s" % (v(vT), s(sT0), v(vL)))
        asm("v_lshrrev_b32 %s, 10, %s" % (v(vU), v(vT)))
        asm("v_and_b32 %s, 1023, %s" % (v(vV), v(vT)))
        asm("s_lshr_b32 %s, %s, 1" % (s(sT1), s(sP8)))
        asm("s_and_b32 %s, %s, 1" % (s(sT1), s(sT1)))
        asm("s_lshl_b32 %s, %s, 10" % (s(sT1), s(sT1)))
        asm("v_add_u32 %s, %s, %s" % (v(vV), s(sT1), v(vV)))
        asm("v_mul_u32_u24 %s, 1280, %s" % (v(vV), v(vV)))
        asm("v_lshl_add_u32 %s, %s, 7, %s" % (v(vV), v(vU), v(vV)))
        asm("v_add_u32 %s, %d, %s" % (v(vV), PF * 128, v(vV)))
        asm("v_lshrrev_b32 %s, 4, %s" % (v(vU), v(vT)))
        asm("v_add_u32 %s, %d, %s" % (v(vU), 64 * PF, v(vU)))
        asm("v_mul_u32_u24 %s, 3840, %s" % (v(vU), v(vU)))
        asm("v_and_b32 %s, 15, %s" % (v(TMP), v(vT)))
        asm("v_lshl_add_u32 %s, %s, 7, %s" % (v(vU), v(TMP), v(vU)))
        asm("s_and_b32 %s, %s, 1" % (s(sT1), s(sP8)))
        asm("s_mul_i32 %s, %s, %d" % (s(sT1), s(sT1), 7 * 256))
        asm("v_add_u32 %s, %s, %s" % (v(vU), s(sT1), v(vU)))
        asm("v_mov_b32 %s, 0x%x" % (v(TMP), OOB))
        asm("v_cmp_gt_u32 vcc, %d, %s" % (1024 * nst_, v(vT)))
        asm("v_cmp_gt_u32 %s, %d, %s" % (s(sPC, 2), per, v(vL)))
        asm("s_nop 1")
        asm("s_and_b64 vcc, vcc, %s" % s(sPC, 2))
        asm("s_nop 1")
        asm("v_cndmask_b32 %s, %s, %s, vcc" % (v(vV), v(TMP), v(vV)))
        asm("v_cndmask_b32 %s, %s, %s, vcc" % (v(vU), v(TMP), v(vU)))
        asm("s_cmp_eq_u32 %s, 0" % s(sBR))
        asm("s_cselect_b32 s4, s36, s40")
        asm("s_cselect_b32 s5, s37, s41")
        srd(asm, SB_, "s4", "s5", 2048 * 1280)
        asm("buffer_load_dword v199, %s, %s, 0 offen" % (v(vV), s(SB_, 4)))
        asm("s_cmp_eq_u32 %s, 0" % s(sBR))
        asm("s_cselect_b32 s4, s38, s42")
        asm("s_cselect_b32 s5, s39, s43")
        srd(asm, SB_, "s4", "s5", 640 * 3840)
        asm("buffer_load_dword v199, %s, %s, 0 offen" % (v(vU), s(SB_, 4)))
    RT = opts.get("rt", 0)
    vTX, vTW = 222, 223
    sTX, sTW = 63, 68
    if RT:
        asm("s_mul_i32 %s, %s, 36" % (s(sT0), s(sSLOT)))
        asm("s_mul_i32 %s, %s, 9" % (s(sT1), s(sW4)))
        asm("s_add_u32 %s, %s, %s" % (s(sT0), s(sT0), s(sT1)))
        asm("v_add_u32 %s, %s, %s" % (v(vT), s(sT0), v(vL)))
        asm("s_lshr_b32 %s, %s, 1" % (s(sT1), s(sP8)))
        asm("s_and_b32 %s, %s, 1" % (s(sT1), s(sT1)))
        asm("s_lshl_b32 %s, %s, 10" % (s(sT1), s(sT1)))
        asm("v_add_u32 %s, %s, %s" % (v(vV), s(sT1), v(vT)))
        asm("v_mul_u32_u24 %s, 1280, %s" % (v(vTX), v(vV)))
        asm("v_lshrrev_b32 %s, 4, %s" % (v(vU), v(vT)))
        asm("v_mul_u32_u24 %s, 3840, %s" % (v(vU), v(vU)))
        asm("v_and_b32 %s, 15, %s" % (v(TMP), v(vT)))
        asm("v_lshl_add_u32 %s, %s, 7, %s" % (v(vU), v(TMP), v(vU)))
        asm("s_and_b32 %s, %s, 1" % (s(sT1), s(sP8)))
        asm("s_mul_i32 %s, %s, %d" % (s(sT1), s(sT1), 7 * 256))
        asm("v_add_u32 %s, %s, %s" % (v(vTW), s(sT1), v(vU)))
        asm("v_mov_b32 %s, 0x%x" % (v(TMP), OOB))
        asm("v_cmp_gt_u32 vcc, 1024, %s" % v(vT))
        asm("s_nop 1")
        asm("v_cndmask_b32 %s, %s, %s, vcc" % (v(vTX), v(TMP), v(vTX)))
        asm("v_cndmask_b32 %s, %s, %s, vcc" % (v(vTW), v(TMP), v(vTW)))
        asm("s_cmp_eq_u32 %s, 0" % s(sBR))
        asm("s_cselect_b32 s4, s36, s40")
        asm("s_cselect_b32 s5, s37, s41")
        srd(asm, SB_, "s4", "s5", 2048 * 1280)
        asm("s_cmp_eq_u32 %s, 0" % s(sBR))
        asm("s_cselect_b32 s4, s38, s42")
        asm("s_cselect_b32 s5, s39, s43")
        srd(asm, 64, "s4", "s5", 640 * 3840)
        asm("s_movk_i32 %s, %d" % (s(sTX), 3 * 128))
        asm("s_mov_b32 %s, %d" % (s(sTW), 3 * 64 * 3840))
    def touch():
        asm("s_mov_b32 exec_lo, 0x1ff")
        asm("s_mov_b32 exec_hi, 0")
        asm("buffer_load_dword v199, %s, %s, %s offen" % (v(vTX), s(SB_, 4), s(sTX)))
        asm("buffer_load_dword v199, %s, s[64:67], %s offen" % (v(vTW), s(sTW)))
        asm("s_mov_b64 exec, -1")
        asm("s_add_u32 %s, %s, 128" % (s(sTX), s(sTX)))
        asm("s_add_u32 %s, %s, %d" % (s(sTW), s(sTW), 64 * 3840))
    if RT:
        for k in range(3, RT): touch()
    asm("s_lshl_b32 %s, %s, 3" % (s(sT0), s(sRB)))
    asm("s_lshl_b32 %s, %s, 2" % (s(sT1), s(sWM)))
    asm("s_add_u32 %s, %s, %s" % (s(sT3), s(sT0), s(sT1)))
    sVAR = 59
    asm("s_mov_b32 %s, %s" % (s(sVAR), s(sPART)))
    asm("s_cmp_eq_u32 %s, 0" % s(sBR))
    asm("s_cbranch_scc1 %s_varok" % N)
    asm("s_cmp_eq_u32 %s, 2" % s(sPART))
    asm("s_cselect_b32 %s, 2, 3" % s(sVAR))
    asm.label("%s_varok" % N)
    asm("s_cmp_eq_u32 %s, 0" % s(sVAR))
    asm("s_cbranch_scc1 %s_adrT" % N)
    asm("s_cmp_eq_u32 %s, 3" % s(sVAR))
    asm("s_cbranch_scc1 %s_adrT" % N)
    asm("s_mul_i32 %s, %s, 40960" % (s(sT0), s(sT3)))
    asm("s_lshl_b32 %s, %s, 11" % (s(sT1), s(sCBP)))
    asm("s_add_u32 %s, %s, %s" % (s(sT0), s(sT0), s(sT1)))
    asm("s_lshl_b32 %s, %s, 10" % (s(sT1), s(sWN)))
    asm("s_add_u32 %s, %s, %s" % (s(sT0), s(sT0), s(sT1)))
    asm("v_lshrrev_b32 %s, 5, %s" % (v(vT), v(vL)))
    asm("v_mul_u32_u24 %s, 10240, %s" % (v(vT), v(vT)))
    asm("v_and_b32 %s, 31, %s" % (v(vU), v(vL)))
    asm("v_lshl_add_u32 %s, %s, 4, %s" % (v(vSO), v(vU), v(vT)))
    asm("v_add_u32 %s, %s, %s" % (v(vSO), s(sT0), v(vSO)))
    asm("s_movk_i32 %s, 512" % s(sTN))
    asm("s_movk_i32 %s, 20480" % s(sGG))
    asm("s_branch %s_adrok" % N)
    asm.label("%s_adrT" % N)
    asm("s_mul_i32 %s, %s, 40" % (s(sT0), s(sT3)))
    asm("s_lshl_b32 %s, %s, 3" % (s(sT1), s(sCBP)))
    asm("s_add_u32 %s, %s, %s" % (s(sT0), s(sT0), s(sT1)))
    asm("s_lshl_b32 %s, %s, 2" % (s(sT1), s(sWN)))
    asm("s_add_u32 %s, %s, %s" % (s(sT0), s(sT0), s(sT1)))
    asm("s_lshl_b32 %s, %s, 10" % (s(sT0), s(sT0)))
    asm("v_lshlrev_b32 %s, 4, %s" % (v(vSO), v(vL)))
    asm("v_add_u32 %s, %s, %s" % (v(vSO), s(sT0), v(vSO)))
    asm("s_movk_i32 %s, 2048" % s(sTN))
    asm("s_movk_i32 %s, 1024" % s(sGG))
    asm.label("%s_adrok" % N)
    asm("s_cmp_lt_u32 %s, 2" % s(sVAR))
    asm("s_cselect_b32 %s, %s, 1.0" % (s(sC0), fhex(LOG2E)))
    asm("s_cmp_eq_u32 %s, 3" % s(sVAR))
    asm("s_cbranch_scc0 %s_c0ok" % N)
    asm("s_cmp_eq_u32 %s, 0" % s(sPART))
    asm("s_cselect_b32 %s, %s, 1.0" % (s(sC0), fhex(QSCALE)))
    asm.label("%s_c0ok" % N)
    asm("s_mov_b32 %s, %s" % (s(sC0 + 1), s(sC0)))
    asm("s_mov_b32 %s, %s" % (s(sC1), fhex(1e-6)))
    asm("s_mov_b32 %s, 0" % s(sSTG))
    asm("s_mov_b32 %s, 0" % s(sRBUF))
    asm("s_mov_b32 %s, 0x%x" % (s(sNEG), (-2 * 49152) & 0xffffffff))
    asm("s_barrier")
    st(1)
    for f in reads(0, 0): f()
    asm("s_cmp_eq_u32 %s, 0" % s(sVAR))
    asm("s_cbranch_scc1 %s_loopT" % N)
    asm("s_cmp_eq_u32 %s, 3" % s(sVAR))
    asm("s_cbranch_scc0 %s_loopF" % N)
    def loop(orient):
        L = "%s_loop%s" % (N, orient)
        asm(".p2align 4")
        asm.label(L)
        for ks in range(4):
            st_ = ks & 1; nst_ = st_ ^ 1
            if ks == 3:
                asm("s_cbranch_scc1 %s_final%s" % (N, orient))
            asm("s_waitcnt lgkmcnt(0)")
            if ks < 3:
                rs = reads(nst_, ks + 1)
                for m in range(8):
                    mfma(orient, st_, *MORD[m])
                    if m < 4:
                        rs[2 * m](); rs[2 * m + 1]()
                    if RT and ks == 0 and m == 5:
                        D_ = lab("rt")
                        asm("s_cmp_lt_u32 %s, %d" % (s(sSTG), 10 - RT))
                        asm("s_cbranch_scc0 %s" % D_)
                        touch()
                        asm.label(D_)
                    if ks == 2 and m == 4:
                        asm("s_add_u32 %s, %s, 1" % (s(sRBUF), s(sRBUF)))
                        asm("s_cmp_eq_u32 %s, 3" % s(sRBUF))
                        asm("s_cselect_b32 %s, 0, %s" % (s(sRBUF), s(sRBUF)))
                        asm("s_cselect_b32 %s, %s, 49152" % (s(sDELTA), s(sNEG)))
                    if ks == 2 and m == 5:
                        for k in range(3): asm("v_add_u32 %s, %s, %s" % (v(vXA + k), s(sDELTA), v(vXA + k)))
                    if ks == 2 and m == 6:
                        asm("v_add_u32 %s, %s, %s" % (v(vXA + 3), s(sDELTA), v(vXA + 3)))
                        for k in range(2): asm("v_add_u32 %s, %s, %s" % (v(vWA + k), s(sDELTA), v(vWA + k)))
                        asm("s_add_u32 %s, %s, 1" % (s(sSTG), s(sSTG)))
                        asm("s_cmp_eq_u32 %s, 9" % s(sSTG))
            else:
                mfma(orient, st_, *MORD[0])
                mfma(orient, st_, *MORD[1])
                asm("s_barrier")
                rs = reads(nst_, 0)
                mfma(orient, st_, *MORD[2])
                rs[0](); rs[1](); rs[2]()
                mfma(orient, st_, *MORD[3])
                rs[3](); rs[4](); rs[5]()
                mfma(orient, st_, *MORD[4])
                rs[6](); rs[7]()
                mfma(orient, st_, *MORD[5])
                mfma(orient, st_, *MORD[6])
                mfma(orient, st_, *MORD[7])
        asm("s_branch %s" % L)
    loop("T")
    loop("F")
    WALL = 224
    XS = [FX[0], FX[1]]
    def epi_lines(kind, q):
        tm, tn = q >> 1, q & 1
        b = ACC + q * 16
        tb_ = TMP + 8 * (q & 1)
        L_ = []
        if kind == "phi":
            for qq in range(4):
                r0 = b + 4 * qq
                L_.append("v_pk_mul_f32 %s, %s, %s" % (v(TE, 2), v(r0, 2), s(sC0, 2)))
                L_.append("v_pk_mul_f32 %s, %s, %s" % (v(TE + 2, 2), v(r0 + 2, 2), s(sC0, 2)))
                for k in range(4): L_.append("v_exp_f32_e64 %s, %s clamp" % (v(TE + k), v(TE + k)))
                for k in range(4): L_.append("v_max_f32 %s, %s, %s" % (v(r0 + k), s(sC1), v(r0 + k)))
                L_.append("v_pk_add_f32 %s, %s, %s" % (v(r0, 2), v(r0, 2), v(TE, 2)))
                L_.append("v_pk_add_f32 %s, %s, %s" % (v(r0 + 2, 2), v(r0 + 2, 2), v(TE + 2, 2)))
                L_.append("v_cvt_pk_bf16_f32 %s, %s, %s" % (v(tb_ + 2 * qq), v(r0), v(r0 + 1)))
                L_.append("v_cvt_pk_bf16_f32 %s, %s, %s" % (v(tb_ + 2 * qq + 1), v(r0 + 2), v(r0 + 3)))
        else:
            if kind == "scale":
                for p_ in range(8): L_.append("v_pk_mul_f32 %s, %s, %s" % (v(b + 2 * p_, 2), v(b + 2 * p_, 2), s(sC0, 2)))
            for p_ in range(8): L_.append("v_cvt_pk_bf16_f32 %s, %s, %s" % (v(tb_ + p_), v(b + 2 * p_), v(b + 2 * p_ + 1)))
        L_.append("s_mul_i32 %s, %s, %d" % (s(sSO), s(sTN), tn))
        if tm: L_.append("s_add_u32 %s, %s, %d" % (s(sSO), s(sSO), tm * 40960))
        L_.append("buffer_store_dwordx4 %s, %s, %s, %s offen%s" % (v(tb_, 4), v(vSO), s(SO, 4), s(sSO), SC))
        L_.append("s_add_u32 %s, %s, %s" % (s(sSO), s(sSO), s(sGG)))
        L_.append("buffer_store_dwordx4 %s, %s, %s, %s offen%s" % (v(tb_ + 4, 4), v(vSO), s(SO, 4), s(sSO), SC))
        return L_
    def final(orient, kind, label):
        asm.label(label)
        sync_issue(vN, vN + 2)
        asm("s_waitcnt lgkmcnt(0)")
        mfma(orient, 1, *MORD[0])
        mfma(orient, 1, *MORD[1])
        asm("s_barrier")
        rd = []
        for ks in range(4):
            rd.append("ds_read_b128 %s, %s" % (v(XS[0] + 4 * ks, 4), v(vXA + ks)))
            for a_ in range(2):
                rd.append("ds_read_b64_tr_b16 %s, %s offset:%d" % (v(WALL + ks * 4 + 2 * a_, 2), v(vWA), ks * 4096 + a_ * 1024))
        for ks in range(4):
            for a_ in range(2):
                rd.append("ds_read_b64_tr_b16 %s, %s offset:%d" % (v(WALL + (4 + ks) * 4 + 2 * a_, 2), v(vWA + 1), ks * 4096 + a_ * 1024))
        per = [4, 4, 3, 3, 3, 3]
        pos = 0
        for m in range(2, 8):
            mfma(orient, 1, *MORD[m])
            for k in range(per[m - 2]):
                asm(rd[pos]); pos += 1
        assert pos == len(rd) == 20
        for q in range(8):
            tm, tn = q >> 1, q & 1
            xs = XS[tm & 1]
            if q == 0:
                asm("s_waitcnt lgkmcnt(8)")
            elif q == 1:
                asm("s_waitcnt lgkmcnt(4)")
            elif tn == 0:
                asm("s_waitcnt lgkmcnt(0)")
                if tm == 3: asm("s_barrier")
            ep = epi_lines(kind, q - 2) if q >= 2 else []
            if q == 2: ep = ["s_nop 7"] + ep
            chunk = (len(ep) + 3) // 4
            acc = v(ACC + q * 16, 16)
            for ks in range(4):
                x = v(xs + 4 * ks, 4); w = v(WALL + (tn * 4 + ks) * 4, 4)
                if orient == "T": asm("v_mfma_f32_32x32x16_bf16 %s, %s, %s, %s" % (acc, w, x, acc))
                else: asm("v_mfma_f32_32x32x16_bf16 %s, %s, %s, %s" % (acc, x, w, acc))
                if tn == 0 and tm < 3:
                    asm("ds_read_b128 %s, %s offset:%d" % (v(XS[(tm + 1) & 1] + 4 * ks, 4), v(vXA + ks), (tm + 1) * 4096))
                for ln in ep[ks * chunk:(ks + 1) * chunk]: asm(ln)
        st(2)
        for ln in epi_lines(kind, 6): asm(ln)
        for ln in epi_lines(kind, 7): asm(ln)
        asm("s_branch %s_fin1" % N)
    asm.label("%s_finalT" % N)
    asm("s_cmp_eq_u32 %s, 0" % s(sVAR))
    asm("s_cbranch_scc0 %s_fin_ts" % N)
    final("T", "phi", "%s_fin_tp" % N)
    final("T", "scale", "%s_fin_ts" % N)
    asm.label("%s_finalF" % N)
    asm("s_cmp_eq_u32 %s, 1" % s(sVAR))
    asm("s_cbranch_scc0 %s_fin_fn" % N)
    final("F", "phi", "%s_fin_fp" % N)
    final("F", "plain", "%s_fin_fn" % N)
    asm.label("%s_fin1" % N)
    asm("v_mov_b32 %s, 0x%x" % (v(vT), W_ISS))
    asm("v_mov_b32 %s, 1" % v(vU))
    asm("s_mov_b64 exec, 1")
    asm("ds_add_u32 %s, %s" % (v(vT), v(vU)))
    asm("s_mov_b64 exec, -1")
    st(3)
    get_sync(vN, vN + 2, preissued=True)
    release()
    asm("s_lshl_b32 %s, %s, 3" % (s(sT1), s(sBR)))
    asm("s_add_u32 %s, %s, %s" % (s(sT1), s(sT1), s(sRB)))
    asm("s_lshl_b32 %s, %s, 4" % (s(sT1), s(sT1)))
    asm("s_add_u32 %s, %s, %s" % (s(sT1), s(sT1), s(sCB)))
    asm("s_lshl_b32 %s, %s, 3" % (s(sT1), s(sT1)))
    asm("s_add_u32 %s, %s, %d" % (s(sT1), s(sT1), F1))
    lds_arrive(W_CNT1, 4, vN + 2, vN, s(sT1), replicas=REPL)
    st(4)
    asm("s_branch %s_p2setup" % N)
    asm.label("%s_p2c" % N)
    asm("s_barrier")
    get_sync(220, 222)
    asm("s_branch %s_p2setup" % N)

    asm.label("%s_p1h" % N)
    hL, hT, hU, hV = 2, 3, 4, 5
    vDX, vDW, hTMP = 8, 16, 20
    sXOFF, sWOFF, sM0X, sM0W, sDBUF, sHS = 52, 53, 54, 55, 56, 57
    SX, SWD = SA_, SB_
    asm("s_cmp_lt_u32 %s, 30" % s(sSLOT))
    asm("s_cbranch_scc1 %s_p1h2" % N)
    asm("s_barrier")
    asm("s_branch %s_p2h" % N)
    asm.label("%s_p1h2" % N)
    lane(hL)
    asm("v_lshrrev_b32 %s, 3, %s" % (v(hT), v(hL)))
    asm("s_lshl_b32 %s, %s, 6" % (s(sT0), s(sW4)))
    asm("v_add_u32 %s, %s, %s" % (v(hT), s(sT0), v(hT)))
    asm("s_movk_i32 %s, 1280" % s(sT1))
    asm("v_mul_lo_u32 %s, %s, %s" % (v(hT), v(hT), s(sT1)))
    asm("v_lshrrev_b32 %s, 4, %s" % (v(hU), v(hL)))
    asm("v_and_b32 %s, 7, %s" % (v(hV), v(hL)))
    for par in range(2):
        if par == 1: asm("v_add_u32 %s, 4, %s" % (v(hU), v(hU)))
        asm("v_xor_b32 %s, %s, %s" % (v(hTMP + par), v(hV), v(hU)))
        asm("v_lshl_add_u32 %s, %s, 4, %s" % (v(hTMP + par), v(hTMP + par), v(hT)))
    for i in range(8):
        asm("v_add_u32 %s, %d, %s" % (v(vDX + i), i * 8 * 1280 - (i & 3) * 1024, v(hTMP + (i & 1))))
    asm("v_lshrrev_b32 %s, 4, %s" % (v(hU), v(hL)))
    asm("s_lshl_b32 %s, %s, 4" % (s(sT0), s(sW4)))
    asm("v_add_u32 %s, %s, %s" % (v(hT), s(sT0), v(hU)))
    asm("s_movk_i32 %s, 3840" % s(sT1))
    asm("v_mul_lo_u32 %s, %s, %s" % (v(hT), v(hT), s(sT1)))
    asm("v_lshlrev_b32 %s, 2, %s" % (v(hU), v(hU)))
    asm("v_and_b32 %s, 15, %s" % (v(hV), v(hL)))
    asm("v_xor_b32 %s, %s, %s" % (v(hV), v(hV), v(hU)))
    asm("v_lshl_add_u32 %s, %s, 4, %s" % (v(hT), v(hV), v(hT)))
    for i in range(4):
        asm("v_add_u32 %s, %d, %s" % (v(vDW + i), i * 4 * 3840 - i * 1024, v(hT)))
    asm("s_cmp_eq_u32 %s, 0" % s(sBR))
    asm("s_cselect_b32 s36, s36, s40")
    asm("s_cselect_b32 s37, s37, s41")
    asm("s_cselect_b32 s38, s38, s42")
    asm("s_cselect_b32 s39, s39, s43")
    asm("s_mul_i32 %s, %s, %d" % (s(sT0), s(sRB), 256 * 1280))
    asm("s_add_u32 s36, s36, %s" % s(sT0))
    asm("s_addc_u32 s37, s37, 0")
    asm("s_lshl_b32 %s, %s, 8" % (s(sT0), s(sCB)))
    asm("s_add_u32 s38, s38, %s" % s(sT0))
    asm("s_addc_u32 s39, s39, 0")
    asm("s_sub_u32 %s, %d, %s" % (s(sT1), 640 * 3840, s(sT0)))
    srd(asm, SX, "s36", "s37", 256 * 1280)
    srd(asm, SWD, "s38", "s39", s(sT1))
    def dma_stage():
        asm("s_lshl_b32 %s, %s, 13" % (s(sT0), s(sW4)))
        asm("s_add_u32 %s, %s, %s" % (s(sM0X), s(sDBUF), s(sT0)))
        asm("s_lshl_b32 %s, %s, 12" % (s(sT0), s(sW4)))
        asm("s_add_u32 %s, %s, %s" % (s(sT0), s(sT0), s(sDBUF)))
        asm("s_add_u32 %s, %s, 32768" % (s(sM0W), s(sT0)))
        for idx in range(8):
            if idx == 0:
                asm("s_mov_b32 m0, %s" % s(sM0X)); asm("s_nop 0")
            if idx == 4:
                asm("s_add_u32 m0, %s, 4096" % s(sM0X)); asm("s_nop 0")
            asm("buffer_load_dwordx4 %s, %s, %s offen offset:%d lds" % (v(vDX + idx), s(SX, 4), s(sXOFF), (idx & 3) * 1024))
        asm("s_mov_b32 m0, %s" % s(sM0W)); asm("s_nop 0")
        for j in range(4):
            asm("buffer_load_dwordx4 %s, %s, %s offen offset:%d lds" % (v(vDW + j), s(SWD, 4), s(sWOFF), j * 1024))
        asm("s_add_u32 %s, %s, 128" % (s(sXOFF), s(sXOFF)))
        asm("s_add_u32 %s, %s, %d" % (s(sWOFF), s(sWOFF), 64 * 3840))
        asm("s_add_u32 %s, %s, 49152" % (s(sDBUF), s(sDBUF)))
        asm("s_cmp_ge_u32 %s, %d" % (s(sDBUF), 3 * 49152))
        asm("s_cselect_b32 %s, 0, %s" % (s(sDBUF), s(sDBUF)))
    WARM = opts.get("warm", 3)
    if WARM:
        asm("s_load_dwordx2 s[4:5], s[0:1], 16")
        asm("s_load_dwordx2 s[6:7], s[0:1], 40")
        asm("s_lshl_b32 s58, %s, 2" % s(sSLOT))
        asm("s_add_u32 s58, s58, %s" % s(sW4))
        asm("s_mul_i32 s58, s58, %d" % (54 * 128))
        asm("v_lshlrev_b32 v6, 7, %s" % v(hL))
    asm("s_mov_b32 %s, 0" % s(sXOFF))
    asm("s_mov_b32 %s, 0" % s(sWOFF))
    asm("s_mov_b32 %s, 0" % s(sDBUF))
    asm("s_mov_b32 %s, 0" % s(sHS))
    pro = opts.get("pro", 2)
    Lp = "%s_hpro" % N
    asm.label(Lp)
    dma_stage()
    asm("s_add_u32 %s, %s, 1" % (s(sHS), s(sHS)))
    asm("s_cmp_eq_u32 %s, %d" % (s(sHS), pro))
    asm("s_cbranch_scc0 %s_hpro_n" % N)
    st(3)
    asm("s_waitcnt vmcnt(%d)" % (12 * (pro - 1)))
    st(1)
    asm("s_barrier")
    asm.label("%s_hpro_n" % N)
    asm("s_cmp_lt_u32 %s, 3" % s(sHS))
    asm("s_cbranch_scc1 %s" % Lp)
    asm("s_mov_b32 %s, 0" % s(sHS))
    Lh = "%s_hloop" % N
    asm.label(Lh)
    asm("s_cmp_lt_u32 %s, 8" % s(sHS))
    asm("s_cbranch_scc1 %s_hw12" % N)
    asm("s_waitcnt vmcnt(0)")
    asm("s_branch %s_hw" % N)
    asm.label("%s_hw12" % N)
    asm("s_waitcnt vmcnt(12)")
    asm.label("%s_hw" % N)
    asm("s_barrier")
    asm("s_cmp_lt_u32 %s, 7" % s(sHS))
    asm("s_cbranch_scc0 %s_hnodma" % N)
    dma_stage()
    if WARM:
        asm("s_cmp_eq_u32 %s, %d" % (s(sHS), WARM - 1))
        asm("s_cbranch_scc0 %s_hnodma" % N)
        asm("s_waitcnt lgkmcnt(0)")
        asm("s_cmp_lt_u32 %s, 4" % s(sP8))
        asm("s_cselect_b32 s4, s4, s6")
        asm("s_cselect_b32 s5, s5, s7")
        srd(asm, 60, "s4", "s5", 640 * 1280)
        asm("s_mov_b32 exec_lo, -1")
        asm("s_mov_b32 exec_hi, 0x3fffff")
        asm("buffer_load_dword v7, v6, s[60:63], s58 offen")
        asm("s_mov_b64 exec, -1")
        if opts.get("ft", 0):
            asm("s_cmp_eq_u32 %s, 0" % s(sW4))
            asm("s_cbranch_scc0 %s_hnodma" % N)
            asm("s_lshl_b32 %s, %s, 2" % (s(sT0), s(sP8)))
            asm("s_and_b32 %s, %s, 3" % (s(sT1), s(sSLOT)))
            asm("s_add_u32 %s, %s, %s" % (s(sT0), s(sT0), s(sT1)))
            asm("s_and_b32 %s, %s, %d" % (s(sT0), s(sT0) if opts.get("repl", 8) > 8 else s(sP8), opts.get("repl", 8) - 1))
            asm("s_lshl_b32 %s, %s, 11" % (s(sT0), s(sT0)))
            asm("s_add_u32 %s, %s, %d" % (s(sT0), s(sT0), F1))
            asm("s_lshr_b32 %s, %s, 2" % (s(sT1), s(sSLOT)))
            asm("s_lshl_b32 %s, %s, 7" % (s(sT1), s(sT1)))
            asm("s_add_u32 %s, %s, %s" % (s(sT0), s(sT0), s(sT1)))
            asm("v_lshlrev_b32 v23, 3, %s" % v(hL))
            asm("v_add_u32 v22, %s, v23" % s(sT0))
            asm("v_subrev_u32 v22, 256, v22")
            asm("s_add_u32 %s, %s, %d" % (s(sT0), s(sT0), 7 * 128))
            asm("v_add_u32 v23, %s, v23" % s(sT0))
            asm("v_cmp_gt_u32 vcc, 32, %s" % v(hL))
            asm("s_nop 1")
            asm("v_cndmask_b32 v23, v22, v23, vcc")
            asm("s_mov_b32 exec_lo, -1")
            asm("s_mov_b32 exec_hi, 0xffff")
            asm("buffer_load_dword v24, v23, %s, 0 offen sc1" % s(SWS, 4))
            asm("s_mov_b64 exec, -1")
    asm.label("%s_hnodma" % N)
    asm("s_add_u32 %s, %s, 1" % (s(sHS), s(sHS)))
    asm("s_cmp_lt_u32 %s, 10" % s(sHS))
    asm("s_cbranch_scc1 %s" % Lh)
    asm.label("%s_p2h" % N)
    st(2)
    sBR3, sRB3, sCB3 = 64, 65, 66
    def decode3():
        if not D1:
            asm("s_lshr_b32 %s, %s, 4" % (s(sBR3), s(sSLOT)))
            asm("s_bfe_u32 %s, %s, 0x10003" % (s(sRB3), s(sSLOT)))
            asm("s_lshl_b32 %s, %s, 1" % (s(sT0), s(sP8)))
            asm("s_add_u32 %s, %s, %s" % (s(sRB3), s(sRB3), s(sT0)))
            asm("s_and_b32 %s, %s, 7" % (s(sCB3), s(sSLOT)))
        else:
            asm("s_lshr_b32 %s, %s, 2" % (s(sBR3), s(sP8)))
            asm("s_and_b32 %s, %s, 3" % (s(sT0), s(sP8)))
            asm("s_lshl_b32 %s, %s, 2" % (s(sT0), s(sT0)))
            asm("s_lshr_b32 %s, %s, 3" % (s(sRB3), s(sSLOT)))
            asm("s_add_u32 %s, %s, %s" % (s(sRB3), s(sRB3), s(sT0)))
            asm("s_and_b32 %s, %s, 7" % (s(sCB3), s(sSLOT)))
    get_sync(220, 222)
    sHH, sRB2, sG0, sDQ, sTB, sNT = 44, 45, 46, 47, 48, 49
    sMSK, sM40 = 50, 52
    sP = 36
    sQM = 54
    sOffO, sOffQA, sBIG, sEPS = 62, 63, 67, 68
    S = 0; O = 144; Q = 160; F = [168, 176]; CM8 = 184; CM0 = 200; VF = [184, 192]
    vM, vNM = 216, 218
    vT = 220
    vLin, vKa, vVa, vL = 228, 229, 230, 231
    vOm, vOr, vFo, vU = 232, 233, 234, 235
    PB = 236
    PA = 168
    vL8 = 242
    AW = 4
    asm.label("%s_p2setup" % N)
    if not D1:
        asm("s_mov_b32 %s, %s" % (s(sHH), s(sSLOT)))
        asm("s_mov_b32 %s, %s" % (s(sRB2), s(sP8)))
    else:
        asm("s_lshl_b32 %s, %s, 2" % (s(sT0), s(sP8)))
        asm("s_and_b32 %s, %s, 3" % (s(sHH), s(sSLOT)))
        asm("s_add_u32 %s, %s, %s" % (s(sHH), s(sHH), s(sT0)))
        asm("s_lshr_b32 %s, %s, 2" % (s(sRB2), s(sSLOT)))
    asm("s_mul_i32 %s, %s, 5" % (s(sT0), s(sHH)))
    asm("s_lshr_b32 %s, %s, 2" % (s(sG0), s(sT0)))
    asm("s_and_b32 %s, %s, 3" % (s(sDQ), s(sT0)))
    asm("s_lshl_b32 %s, %s, 3" % (s(sTB), s(sRB2)))
    asm("s_add_u32 %s, %s, %s" % (s(sTB), s(sTB), s(sW)))
    asm("s_add_u32 %s, %s, 1" % (s(sNT), s(sTB)))
    asm("s_min_u32 %s, %s, 9" % (s(sNT), s(sNT)))
    asm("s_mov_b32 %s, 0x000fffff" % s(sMSK)); asm("s_mov_b32 %s, 0x000fffff" % s(sMSK + 1))
    asm("s_mov_b32 %s, -1" % s(sM40)); asm("s_mov_b32 %s, 0xff" % s(sM40 + 1))
    lane(vL)
    asm("v_lshlrev_b32 %s, 3, %s" % (v(vL8), v(vL)))
    asm("v_lshlrev_b32 %s, 4, %s" % (v(vLin), v(vL)))
    asm("s_mov_b32 %s, %s" % (s(sBIG), fhex(BIG)))
    asm("v_and_b32 %s, 31, %s" % (v(vU), v(vL)))
    asm("v_lshrrev_b32 %s, 5, %s" % (v(vT + 4), v(vL)))
    asm("v_lshlrev_b32 %s, 2, %s" % (v(vT + 4), v(vT + 4)))
    asm("v_sub_u32 %s, %s, %s" % (v(vU), v(vU), v(vT + 4)))
    asm("v_mov_b32 %s, %s" % (v(vT + 5), s(sBIG)))
    asm("v_mov_b32 %s, 0" % v(vT + 6))
    for r0 in range(0, 16, 4):
        for k in range(4):
            r = r0 + k
            asm("v_cmp_le_i32 %s, %d, %s" % (s(sP + 2 * k, 2), 8 * (r >> 2) + (r & 3), v(vU)))
        asm("s_nop 1")
        for k in range(4):
            r = r0 + k
            asm("v_cndmask_b32 %s, %s, %s, %s" % (v(CM8 + r), v(vT + 5), v(vT + 6), s(sP + 2 * k, 2)))
            asm("v_cndmask_b32 %s, %s, %s, %s" % (v(CM0 + r), v(vT + 6), v(vT + 5), s(sP + 2 * k, 2)))
    for gg in range(2):
        for p in range(2):
            k = gg * 2 + p
            for h in range(2):
                asm("s_sub_u32 %s, %d, %s" % (s(sT0), 4 * gg + 2 * p + h, s(sDQ)))
                asm("s_cmp_le_u32 %s, 4" % s(sT0))
                asm("s_cselect_b32 %s, -1, 0" % s(sQM + 2 * k + h))
    asm("s_lshl_b32 %s, %s, 11" % (s(sT0), s(sW)))
    asm("s_add_u32 %s, %s, %d" % (s(sT0), s(sT0), L_K))
    asm("v_add_u32 %s, %s, %s" % (v(vKa), s(sT0), v(vLin)))
    asm("v_lshrrev_b32 %s, 5, %s" % (v(vT), v(vL)))
    asm("v_mul_u32_u24 %s, 20, %s" % (v(vT), v(vT)))
    asm("v_and_b32 %s, 31, %s" % (v(vU), v(vL)))
    asm("v_add_u32 %s, %s, %s" % (v(vT), v(vT), v(vU)))
    asm("v_lshlrev_b32 %s, 4, %s" % (v(vT), v(vT)))
    asm("s_mul_i32 %s, %s, 1280" % (s(sT0), s(sW)))
    asm("s_add_u32 %s, %s, %d" % (s(sT0), s(sT0), L_V))
    asm("v_add_u32 %s, %s, %s" % (v(vVa), s(sT0), v(vT)))
    asm("s_lshl_b32 %s, %s, 5" % (s(sT0), s(sTB)))
    asm("s_add_u32 %s, %s, %s" % (s(sT0), s(sT0), s(sHH)))
    asm("s_mul_i32 %s, %s, 1280" % (s(sOffO), s(sT0)))
    asm("v_mov_b32 %s, %s" % (v(vOm), v(vLin)))
    asm("v_add_u32 %s, 1024, %s" % (v(vOr), v(vL8)))
    asm("v_mov_b32 %s, 0x%x" % (v(vT + 4), OOB))
    asm("v_cmp_gt_u32 vcc, 32, %s" % v(vL))
    asm("s_nop 1")
    asm("v_cndmask_b32 %s, %s, %s, vcc" % (v(vOr), v(vT + 4), v(vOr)))
    asm("s_mul_i32 %s, %s, 40" % (s(sT2), s(sTB)))
    asm("s_add_u32 %s, %s, %s" % (s(sT2), s(sT2), s(sG0)))
    asm("s_lshl_b32 %s, %s, 10" % (s(sT2), s(sT2)))
    asm("s_add_u32 %s, %s, %d" % (s(sOffQA), s(sT2), R_QA))
    def q_loads():
        asm("s_add_u32 %s, %s, %d" % (s(sT3), s(sOffQA), R_QB - R_QA))
        asm("buffer_load_dwordx4 %s, %s, %s, %s offen sc1" % (v(Q, 4), v(vLin), s(SWS, 4), s(sT3)))
        asm("buffer_load_dwordx4 %s, %s, %s, %s offen offset:1024 sc1" % (v(Q + 4, 4), v(vLin), s(SWS, 4), s(sT3)))
    FINE = opts.get("fine", 1)
    def tile_masks():
        asm("s_lshr_b32 %s, %s, 3" % (s(sT1), s(sG0)))
        asm("s_lshl_b32 %s, 1, %s" % (s(sT1), s(sT1)))
        asm("s_add_u32 %s, %s, 1" % (s(sT2), s(sG0)))
        asm("s_lshr_b32 %s, %s, 3" % (s(sT2), s(sT2)))
        asm("s_lshl_b32 %s, 1, %s" % (s(sT2), s(sT2)))
        asm("s_or_b32 %s, %s, %s" % (s(sT1), s(sT1), s(sT2)))
        asm("s_mul_i32 %s, %s, 20" % (s(sT3), s(sHH)))
        asm("s_lshr_b32 %s, %s, 7" % (s(sT2), s(sT3)))
        asm("s_lshl_b32 %s, 1, %s" % (s(sT2), s(sT2)))
        asm("s_add_u32 %s, %s, 19" % (s(sT3), s(sT3)))
        asm("s_lshr_b32 %s, %s, 7" % (s(sT3), s(sT3)))
        asm("s_lshl_b32 %s, 1, %s" % (s(sT3), s(sT3)))
        asm("s_or_b32 %s, %s, %s" % (s(sT2), s(sT2), s(sT3)))
    def own_tile_wait():
        D = lab("otw")
        asm("s_cmp_ge_u32 %s, 30" % s(sSLOT))
        asm("s_cbranch_scc1 %s" % D)
        lds_wait(W_CNT1, vT, vT + 1, atleast=4)
        asm.label(D)
    def lds_inc(word):
        asm("v_mov_b32 %s, 0x%x" % (v(vT), word))
        asm("v_mov_b32 %s, 1" % v(vT + 1))
        asm("s_mov_b64 exec, 1")
        asm("ds_add_u32 %s, %s" % (v(vT), v(vT + 1)))
        asm("s_mov_b64 exec, -1")
    if opts.get("pad", 0):
        asm("s_mov_b64 exec, 0")
        for k in range(8):
            asm("s_cmp_eq_u32 %s, %d" % (s(sW), (k + 4) & 7))
            asm("s_cbranch_scc1 %s_padseg%d" % (N, k))
        asm.label("%s_walkret" % N)
        asm("s_mov_b64 exec, -1")
    asm("s_cmp_eq_u32 %s, %d" % (s(sW), AW))
    asm("s_cbranch_scc1 %s_aearly" % N)
    asm("s_cmp_eq_u32 %s, 5" % s(sW))
    asm("s_cbranch_scc1 %s_w5" % N)
    asm("s_cmp_ge_u32 %s, 6" % s(sW))
    asm("s_cbranch_scc1 %s_w67" % N)
    sTK, sKO, sLK, sIk = 4, 5, 6, 7
    lds_wait(W_S1, vT, vT + 1)
    st(4) if opts.get("kvst") else None
    asm("s_lshl_b32 %s, %s, 2" % (s(sIk), s(sW)))
    asm("s_cmp_eq_u32 %s, 0" % s(sRB2))
    asm("s_cselect_b32 %s, 8, 0" % s(sT0))
    asm("s_cmp_lt_u32 %s, %s" % (s(sIk), s(sT0)))
    asm("s_cbranch_scc1 %s_nok" % N)
    asm("s_lshl_b32 %s, %s, 3" % (s(sTK), s(sRB2)))
    asm("s_add_u32 %s, %s, %s" % (s(sTK), s(sTK), s(sIk)))
    asm("s_sub_u32 %s, %s, 8" % (s(sTK), s(sTK)))
    asm("s_mul_i32 %s, %s, 40" % (s(sKO), s(sTK)))
    asm("s_add_u32 %s, %s, %s" % (s(sKO), s(sKO), s(sG0)))
    asm("s_lshl_b32 %s, %s, 10" % (s(sKO), s(sKO)))
    asm("s_add_u32 %s, %s, %d" % (s(sKO), s(sKO), R_KB))
    asm("s_lshl_b32 %s, %s, 11" % (s(sLK), s(sIk)))
    asm("s_add_u32 %s, %s, %d" % (s(sLK), s(sLK), L_K))
    for ii in range(4):
        asm("s_add_u32 m0, %s, %d" % (s(sLK), ii * 2048))
        asm("s_nop 0")
        asm("buffer_load_dwordx4 %s, %s, %s offen sc1 lds" % (v(vLin), s(SWS, 4), s(sKO)))
        asm("buffer_load_dwordx4 %s, %s, %s offen offset:1024 sc1 lds" % (v(vLin), s(SWS, 4), s(sKO)))
        if ii < 3: asm("s_add_u32 %s, %s, 40960" % (s(sKO), s(sKO)))
    asm.label("%s_nok" % N)
    q_loads()
    asm("s_waitcnt vmcnt(0)")
    lds_inc(W_K)
    asm("s_branch %s_kwait" % N)
    asm.label("%s_w67" % N)
    vDWO = 243
    sDA, sDM = 4, 5
    SWO = SA_
    decode3()
    asm("s_load_dwordx2 s[4:5], s[0:1], 16")
    asm("s_load_dwordx2 s[6:7], s[0:1], 40")
    asm("s_movk_i32 %s, 6554" % s(sT2))
    asm("s_movk_i32 %s, 1280" % s(sT3))
    for b in range(5):
        asm("v_add_u32 %s, %d, %s" % (v(vT), 64 * b, v(vL)))
        asm("v_mul_lo_u32 %s, %s, %s" % (v(vT + 1), v(vT), s(sT2)))
        asm("v_lshrrev_b32 %s, 16, %s" % (v(vT + 1), v(vT + 1)))
        asm("v_mul_u32_u24 %s, 10, %s" % (v(vT + 2), v(vT + 1)))
        asm("v_sub_u32 %s, %s, %s" % (v(vT), v(vT), v(vT + 2)))
        asm("v_lshlrev_b32 %s, 4, %s" % (v(vT), v(vT)))
        asm("v_mad_u32_u24 %s, %s, %s, %s" % (v(vDWO + b), v(vT + 1), s(sT3), v(vT)))
        if 0 < b < 4: asm("v_subrev_u32 %s, %d, %s" % (v(vDWO + b), b * 1024, v(vDWO + b)))
    asm("s_waitcnt lgkmcnt(0)")
    asm("s_cmp_eq_u32 %s, 0" % s(sBR3))
    asm("s_cselect_b32 s4, s4, s6")
    asm("s_cselect_b32 s5, s5, s7")
    asm("s_mul_i32 %s, %s, 160" % (s(sT0), s(sCB3)))
    asm("s_add_u32 s4, s4, %s" % s(sT0))
    asm("s_addc_u32 s5, s5, 0")
    asm("s_sub_u32 %s, %d, %s" % (s(sT1), 640 * 1280, s(sT0)))
    srd(asm, SWO, "s4", "s5", s(sT1))
    asm("s_and_b32 %s, %s, 1" % (s(sT0), s(sW)))
    asm("s_mul_i32 %s, %s, %d" % (s(sDA), s(sT0), 32 * 1280))
    asm("s_mul_i32 %s, %s, 5120" % (s(sDM), s(sT0)))
    def wo_group():
        asm("s_mov_b32 m0, %s" % s(sDM)); asm("s_nop 0")
        asm("buffer_load_dwordx4 %s, %s, %s offen lds" % (v(vDWO), s(SWO, 4), s(sDA)))
        for b in range(1, 4):
            asm("buffer_load_dwordx4 %s, %s, %s offen offset:%d lds" % (v(vDWO + b), s(SWO, 4), s(sDA), b * 1024))
        asm("s_add_u32 m0, %s, 4096" % s(sDM)); asm("s_nop 0")
        asm("buffer_load_dwordx4 %s, %s, %s offen lds" % (v(vDWO + 4), s(SWO, 4), s(sDA)))
        asm("s_add_u32 %s, %s, %d" % (s(sDA), s(sDA), 2 * 32 * 1280))
        asm("s_add_u32 %s, %s, %d" % (s(sDM), s(sDM), 2 * 5120))
    asm("s_cmp_ge_u32 %s, 30" % s(sSLOT))
    asm("s_cbranch_scc1 %s_wogo" % N)
    lds_wait(W_ISS, vT, vT + 1, atleast=4)
    asm.label("%s_wogo" % N)
    asm("s_mov_b32 s6, 0")
    asm.label("%s_woloop" % N)
    wo_group()
    asm("s_add_u32 s6, s6, 1")
    asm("s_cmp_lt_u32 s6, 10")
    asm("s_cbranch_scc1 %s_woloop" % N)
    lds_wait(W_S1, vT, vT + 1)
    asm("s_waitcnt vmcnt(30)")
    q_loads()
    asm("v_cmp_le_u32 vcc, 20, %s" % v(vL))
    asm("v_mov_b32 %s, 0" % v(vT))
    asm("v_mov_b32 %s, %d" % (v(vT + 1), 10240 - 320))
    asm("v_cndmask_b32 %s, %s, %s, vcc" % (v(vT), v(vT), v(vT + 1)))
    asm("v_add_u32 %s, %s, %s" % (v(vFo), v(vT), v(vLin)))
    asm("s_and_b32 %s, %s, 1" % (s(sIk), s(sW)))
    asm("s_lshl_b32 %s, %s, 3" % (s(sIk), s(sIk)))
    asm("s_or_b32 %s, %s, %s" % (s(sT0), s(sIk), s(sRB2)))
    asm("s_cmp_eq_u32 %s, 0" % s(sT0))
    asm("s_cbranch_scc1 %s_nov" % N)
    asm("s_lshl_b32 %s, %s, 3" % (s(sTK), s(sRB2)))
    asm("s_add_u32 %s, %s, %s" % (s(sTK), s(sTK), s(sIk)))
    asm("s_sub_u32 %s, %s, 8" % (s(sTK), s(sTK)))
    asm("s_mul_i32 %s, %s, 40960" % (s(sKO), s(sTK)))
    asm("s_mul_i32 %s, %s, 320" % (s(sT1), s(sHH)))
    asm("s_add_u32 %s, %s, %s" % (s(sKO), s(sKO), s(sT1)))
    asm("s_add_u32 %s, %s, %d" % (s(sKO), s(sKO), R_VB))
    asm("s_mul_i32 %s, %s, 1280" % (s(sLK), s(sIk)))
    asm("s_add_u32 %s, %s, %d" % (s(sLK), s(sLK), L_V))
    asm("s_mov_b64 exec, %s" % s(sM40, 2))
    for ii in range(8):
        asm("s_add_u32 m0, %s, %d" % (s(sLK), ii * 1280))
        asm("s_add_u32 %s, %s, %d" % (s(sT1), s(sKO), 20480 - 640))
        asm("buffer_load_dwordx4 %s, %s, %s offen sc1 lds" % (v(vFo), s(SWS, 4), s(sKO)))
        asm("buffer_load_dwordx4 %s, %s, %s offen offset:640 sc1 lds" % (v(vFo), s(SWS, 4), s(sT1)))
        if ii < 7: asm("s_add_u32 %s, %s, 40960" % (s(sKO), s(sKO)))
    asm("s_mov_b64 exec, -1")
    asm("s_waitcnt vmcnt(16)")
    asm("s_branch %s_kwait" % N)
    asm.label("%s_nov" % N)
    asm("s_waitcnt vmcnt(0)")
    asm("s_branch %s_kwait" % N)
    asm.label("%s_w5" % N)
    own_tile_wait()
    asm("s_add_u32 %s, %s, 7" % (s(sT0), s(sRB2)))
    asm("s_lshl_b32 %s, %s, 7" % (s(sT0), s(sT0)))
    asm("s_and_b32 %s, %s, %d" % (s(sT1), s(sP8) if REPL <= 8 else s(sHH), REPL - 1))
    asm("s_lshl_b32 %s, %s, 11" % (s(sT1), s(sT1)))
    asm("s_add_u32 %s, %s, %s" % (s(sT0), s(sT0), s(sT1)))
    asm("s_add_u32 %s, %s, %d" % (s(sPL), s(sT0), F1))
    if FINE:
        tile_masks()
        asm("s_lshl_b32 %s, %s, 5" % (s(sT3), s(sT1)))
        asm("s_lshl_b32 %s, %s, 10" % (s(sT2), s(sT2)))
        asm("s_or_b32 %s, %s, %s" % (s(sT3), s(sT3), s(sT2)))
        asm("s_or_b32 %s, %s, %s" % (s(sT1), s(sT1), s(sT3)))
        asm("s_lshl_b32 %s, %s, 16" % (s(sT1), s(sT1)))
        asm("s_cmp_eq_u32 %s, 0" % s(sRB2))
        asm("s_cselect_b32 %s, 0, %s" % (s(sT3), s(sT3)))
        asm("s_or_b32 %s, %s, %s" % (s(sT1), s(sT1), s(sT3)))
    else:
        asm("s_cmp_eq_u32 %s, 0" % s(sRB2))
        asm("s_cselect_b32 %s, 0, 0x7fe0" % s(sT1))
        asm("s_or_b32 %s, %s, 0x7fff0000" % (s(sT1), s(sT1)))
    if opts.get("ppoll", 0): ppoll(s(sPL), 32, [244, 246, 248], vL8, smask=s(sT1))
    else: poll(s(sPL), 32, vT, vL8, smask=s(sT1))
    lds_set(W_S1, vT, vT + 1)
    st(4)
    q_loads()
    asm("s_waitcnt vmcnt(0)")
    asm("s_branch %s_kwait" % N)
    asm.label("%s_aearly" % N)
    asm("v_lshrrev_b32 %s, 5, %s" % (v(vT), v(vL)))
    asm("v_mul_u32_u24 %s, 10240, %s" % (v(vT), v(vT)))
    asm("v_and_b32 %s, 31, %s" % (v(vU), v(vL)))
    asm("v_lshl_add_u32 %s, %s, 4, %s" % (v(vFo), v(vU), v(vT)))
    asm("v_mov_b32 %s, 0x3f803f80" % v(vT + 2))
    for r in range(64, 128): asm("v_mov_b32 %s, %s" % (v(r), v(vT + 2)))
    own_tile_wait()
    asm("s_lshl_b32 %s, %s, 7" % (s(sT0), s(sRB2)))
    asm("s_and_b32 %s, %s, %d" % (s(sT1), s(sP8) if REPL <= 8 else s(sHH), REPL - 1))
    asm("s_lshl_b32 %s, %s, 11" % (s(sT1), s(sT1)))
    asm("s_add_u32 %s, %s, %s" % (s(sT0), s(sT0), s(sT1)))
    asm("s_add_u32 %s, %s, %d" % (s(sPL), s(sT0), F1))
    if FINE:
        tile_masks()
        asm("s_lshl_b32 %s, %s, 5" % (s(sT3), s(sT2)))
        asm("s_lshl_b32 %s, %s, 10" % (s(sT2), s(sT2)))
        asm("s_or_b32 %s, %s, %s" % (s(sT1), s(sT1), s(sT3)))
        asm("s_or_b32 %s, %s, %s" % (s(sT1), s(sT1), s(sT2)))
        if opts.get("ppoll", 0): ppoll(s(sPL), 15, [244, 246, 248], vL8, smask=s(sT1))
        else: poll(s(sPL), 15, vT, vL8, smask=s(sT1))
    else:
        poll(s(sPL), 15, vT, vL8)
    lds_set(W_S1A, vT, vT + 1)
    st(4)
    asm("s_lshl_b32 %s, %s, 3" % (s(sT0), s(sRB2)))
    asm("s_mul_i32 %s, %s, 40960" % (s(sT0), s(sT0)))
    asm("s_mul_i32 %s, %s, 320" % (s(sT1), s(sHH)))
    asm("s_add_u32 %s, %s, %s" % (s(sT0), s(sT0), s(sT1)))
    asm("s_add_u32 %s, %s, %d" % (s(sT1), s(sT0), R_KA))
    asm("s_add_u32 %s, %s, %d" % (s(sT2), s(sT0), R_VA))
    asm("s_mov_b64 exec, %s" % s(sMSK, 2))
    for b in range(8):
        for m in range(2):
            asm("buffer_load_dwordx4 %s, %s, %s, %s offen sc1" % (v((b * 2 + m) * 4, 4), v(vFo), s(SWS, 4), s(sT1)))
            asm("buffer_load_dwordx4 %s, %s, %s, %s offen sc1" % (v(64 + (b * 2 + m) * 4, 4), v(vFo), s(SWS, 4), s(sT2)))
            asm("s_add_u32 %s, %s, 20480" % (s(sT1), s(sT1)))
            asm("s_add_u32 %s, %s, 20480" % (s(sT2), s(sT2)))
    asm("s_mov_b64 exec, -1")
    lds_wait(W_S1, vT, vT + 1)
    q_loads()
    for b in range(16):
        asm("s_waitcnt vmcnt(%d)" % (32 - 2 * b))
        c = "0" if b == 0 else v(O, 16)
        asm("v_mfma_f32_32x32x16_bf16 %s, %s, %s, %s" % (v(O, 16), v(b * 4, 4), v(64 + b * 4, 4), c))
    asm("s_lshl_b32 %s, %s, 3" % (s(sT0), s(sHH)))
    asm("s_add_u32 %s, %s, %s" % (s(sT0), s(sT0), s(sRB2)))
    asm("s_mul_i32 %s, %s, 3072" % (s(sT0), s(sT0)))
    asm("s_add_u32 %s, %s, %d" % (s(sT0), s(sT0), R_KVP))
    asm("s_nop 7"); asm("s_nop 1")
    for j in range(3):
        asm("buffer_store_dwordx4 %s, %s, %s, %s offen offset:%d sc1" % (v(O + 4 * j, 4), v(vLin), s(SWS, 4), s(sT0), j * 1024))
    asm("s_waitcnt vmcnt(3)")
    asm.label("%s_kwait" % N)
    asm(";PADBEGIN")
    lds_wait(W_K, vT, vT + 1, atleast=4)
    st(5)
    PRIO = opts.get("prio", 0)
    if PRIO:
        asm("s_cmp_%s_u32 %s, 4" % ("lt" if PRIO == 1 else "ge", s(sW)))
        asm("s_cbranch_scc0 %s_noprio" % N)
        asm("s_setprio 2")
        asm.label("%s_noprio" % N)
    def rdK(d, dst):
        for gg in range(2):
            asm("ds_read_b128 %s, %s offset:%d" % (v(dst + 4 * gg, 4), v(vKa), (8 - d) * 2048 + gg * 1024))
    def rdV(d, dst):
        asm("s_mov_b64 exec, %s" % s(sMSK, 2))
        for m in range(2):
            asm("ds_read_b128 %s, %s offset:%d" % (v(dst + 4 * m, 4), v(vVa), (8 - d) * 1280 + m * 640))
        asm("s_mov_b64 exec, -1")
    rdK(0, F[0])
    for gg in range(2):
        for p in range(2):
            k = gg * 2 + p
            for j in range(2):
                r = Q + 4 * gg + 2 * p + j
                asm("v_cndmask_b32 %s, 0, %s, %s" % (v(r), v(r), s(sQM + 2 * k, 2)))
    def maxes(d):
        b = S + 16 * d
        if d == 0:
            asm("v_max3_f32 %s, %s, %s, %s" % (v(vM), v(b), v(b + 1), v(b + 2)))
            for k in range(3, 15, 2):
                asm("v_max3_f32 %s, %s, %s, %s" % (v(vM), v(vM), v(b + k), v(b + k + 1)))
            asm("v_max_f32 %s, %s, %s" % (v(vM), v(vM), v(b + 15)))
        else:
            for k in range(0, 16, 2):
                asm("v_max3_f32 %s, %s, %s, %s" % (v(vM), v(vM), v(b + k), v(b + k + 1)))
    for d in range(9):
        cur, nxt = F[d & 1], F[(d + 1) & 1]
        asm("s_waitcnt lgkmcnt(0)")
        if d < 8: rdK(d + 1, nxt)
        if d > 0:
            asm("s_cmp_le_u32 %s, %d" % (s(sNT), d))
            asm("s_cbranch_scc1 %s_p1skip%d" % (N, d))
        else:
            asm("s_nop 1")
        c = v(CM8, 16) if d == 0 else (v(CM0, 16) if d == 8 else "0")
        b = v(S + 16 * d, 16)
        asm("v_mfma_f32_32x32x16_bf16 %s, %s, %s, %s" % (b, v(cur, 4), v(Q, 4), c))
        asm("v_mfma_f32_32x32x16_bf16 %s, %s, %s, %s" % (b, v(cur + 4, 4), v(Q + 4, 4), b))
        if d > 0:
            asm.label("%s_p1skip%d" % (N, d))
            if d == 1: asm("s_nop 7")
            maxes(d - 1)
            asm("s_cbranch_scc1 %s_p1end" % N)
    asm("s_nop 3")
    maxes(8)
    asm.label("%s_p1end" % N)
    st(6)
    SIGD = opts.get("sigd", 2)
    def a_signal():
        asm("s_cmp_lg_u32 %s, %d" % (s(sW), AW))
        asm("s_cbranch_scc1 %s_nosig" % N)
        asm("s_waitcnt vmcnt(0)")
        asm("s_lshl_b32 %s, %s, 4" % (s(sT0), s(sHH)))
        asm("s_add_u32 %s, %s, %s" % (s(sT0), s(sT0), s(sRB2)))
        asm("s_lshl_b32 %s, %s, 3" % (s(sT0), s(sT0)))
        asm("s_add_u32 %s, %s, %d" % (s(sT0), s(sT0), F2))
        flag_store(s(sT0), vT, vT + 2)
        asm.label("%s_nosig" % N)
    if SIGD < 0: a_signal()
    asm("s_cmp_lt_u32 %s, 6" % s(sW))
    asm("s_cbranch_scc1 %s_vw" % N)
    asm("s_waitcnt vmcnt(0)")
    lds_inc(W_V)
    asm.label("%s_vw" % N)
    lds_wait(W_V, vT, vT + 1, atleast=2)
    asm("s_waitcnt lgkmcnt(0)")
    asm("s_mov_b32 %s, 0x3f803f80" % s(sT0))
    for r in range(16): asm("v_mov_b32 %s, %s" % (v(VF[0] + r), s(sT0)))
    rdV(0, VF[0])
    asm("v_mov_b32 %s, %s" % (v(vT + 2), v(vM)))
    asm("v_mov_b32 %s, %s" % (v(vT + 3), v(vM)))
    asm("s_nop 1")
    asm("v_permlane32_swap_b32 %s, %s" % (v(vT + 2), v(vT + 3)))
    asm("s_nop 1")
    asm("v_max_f32 %s, %s, %s" % (v(vM), v(vT + 2), v(vT + 3)))
    asm("v_sub_f32 %s, 0, %s" % (v(vNM), v(vM)))
    asm("v_sub_f32 %s, 0, %s" % (v(vNM + 1), v(vM)))
    PQD = opts.get("pqd", 5)
    sPQ = 7
    asm("s_mov_b32 %s, 0" % s(sPQ))
    def pq_loads():
        lds_wait(W_S1A, vT + 4, vT + 5)
        asm("buffer_load_dwordx4 %s, %s, %s, %s offen sc1" % (v(Q, 4), v(vLin), s(SWS, 4), s(sOffQA)))
        asm("buffer_load_dwordx4 %s, %s, %s, %s offen offset:1024 sc1" % (v(Q + 4, 4), v(vLin), s(SWS, 4), s(sOffQA)))
    for d in range(9):
        cur, nxt = VF[d & 1], VF[(d + 1) & 1]
        b = S + 16 * d
        if d > 0:
            asm("s_cmp_le_u32 %s, %d" % (s(sNT), d))
            asm("s_cbranch_scc1 %s_p2end" % N)
        for k in range(8):
            asm("v_pk_add_f32 %s, %s, %s" % (v(b + 2 * k, 2), v(b + 2 * k, 2), v(vNM, 2)))
        for k in range(16):
            asm("v_exp_f32 %s, %s" % (v(b + k), v(b + k)))
        asm("s_waitcnt lgkmcnt(0)")
        if d < 8: rdV(d + 1, nxt)
        for k in range(8):
            asm("v_cvt_pk_bf16_f32 %s, %s, %s" % (v(b + k), v(b + 2 * k), v(b + 2 * k + 1)))
        asm("s_nop 1")
        asm("v_mfma_f32_32x32x16_bf16 %s, %s, %s, %s" % (v(O, 16), v(cur, 4), v(b, 4), "0" if d == 0 else v(O, 16)))
        asm("v_mfma_f32_32x32x16_bf16 %s, %s, %s, %s" % (v(O, 16), v(cur + 4, 4), v(b + 4, 4), v(O, 16)))
        if d == SIGD: a_signal()
        if d == PQD:
            pq_loads()
            asm("s_mov_b32 %s, 1" % s(sPQ))
    asm.label("%s_p2end" % N)
    if PRIO: asm("s_setprio 0")
    if PQD > 0:
        asm("s_cmp_lg_u32 %s, 0" % s(sPQ))
        asm("s_cbranch_scc1 %s_pqdone" % N)
        pq_loads()
        asm.label("%s_pqdone" % N)
    st(7)
    def normalize(dst, eps, O=O):
        asm("v_mov_b32 %s, %s" % (v(vT), v(O + 8)))
        asm("v_mov_b32 %s, %s" % (v(vT + 1), v(O + 8)))
        asm("s_nop 1")
        asm("v_permlane32_swap_b32 %s, %s" % (v(vT), v(vT + 1)))
        asm("s_nop 1")
        if eps: asm("v_add_f32 %s, %s, %s" % (v(vT + 1), s(sEPS), v(vT + 1)))
        asm("v_rcp_f32 %s, %s" % (v(vT + 1), v(vT + 1)))
        asm("s_nop 0")
        for k in range(12): asm("v_mul_f32 %s, %s, %s" % (v(O + k), v(vT + 1), v(O + k)))
        for k in range(6): asm("v_cvt_pk_bf16_f32 %s, %s, %s" % (v(dst + k), v(O + 2 * k), v(O + 2 * k + 1)))
    def store_o(src, region):
        asm("s_add_u32 %s, %s, %d" % (s(sT0), s(sOffO), region))
        asm("buffer_store_dwordx4 %s, %s, %s, %s offen%s" % (v(src, 4), v(vOm), s(SWS, 4), s(sT0), SC))
        asm("buffer_store_dwordx2 %s, %s, %s, %s offen%s" % (v(src + 4, 2), v(vOr), s(SWS, 4), s(sT0), SC))
    asm("s_mov_b32 %s, %s" % (s(sEPS), fhex(1e-6)))
    asm("s_cmp_ge_u32 %s, 4" % s(sW))
    asm("s_cbranch_scc1 %s_hiwaves" % N)
    asm("s_lshl_b32 %s, %s, 7" % (s(sPL), s(sHH)))
    asm("s_add_u32 %s, %s, %d" % (s(sPL), s(sPL), F2))
    asm("s_cmp_lg_u32 %s, 0" % s(sW))
    asm("s_cbranch_scc1 %s_w123" % N)
    poll_issue(s(sPL), vT + 4, vL8, 8)
    asm("s_nop 7"); asm("s_nop 3")
    normalize(PB, False)
    poll(s(sPL), 8, vT + 4, vL8, preissued=True)
    lds_set(W_S2, vT + 4, vT + 5)
    asm("s_branch %s_w0123" % N)
    asm.label("%s_w123" % N)
    asm("s_nop 7"); asm("s_nop 3")
    normalize(PB, False)
    lds_wait(W_S2, vT + 4, vT + 5)
    asm.label("%s_w0123" % N)
    asm("s_lshl_b32 %s, %s, 1" % (s(sT0), s(sW)))
    asm("s_sub_u32 %s, %s, %s" % (s(sT0), s(sT0), s(sDQ)))
    asm("v_lshrrev_b32 %s, 5, %s" % (v(vT), v(vL)))
    asm("v_add_u32 %s, %s, %s" % (v(vT), s(sT0), v(vT)))
    asm("v_and_b32 %s, 31, %s" % (v(vT + 1), v(vL)))
    asm("v_lshlrev_b32 %s, 4, %s" % (v(vT + 1), v(vT + 1)))
    asm("v_lshl_add_u32 %s, %s, 9, %s" % (v(vT + 1), v(vT), v(vT + 1)))
    asm("v_cmp_ge_u32 vcc, 4, %s" % v(vT))
    asm("v_mov_b32 %s, 0x%x" % (v(vT + 2), OOB))
    asm("s_nop 0")
    asm("v_cndmask_b32 %s, %s, %s, vcc" % (v(vU), v(vT + 2), v(vT + 1)))
    asm("s_lshl_b32 %s, %s, 3" % (s(sT0), s(sHH)))
    asm("s_mul_i32 %s, %s, 3072" % (s(sT0), s(sT0)))
    asm("s_add_u32 %s, %s, %d" % (s(sT0), s(sT0), R_KVP))
    for r in range(8):
        asm("buffer_load_dwordx4 %s, %s, %s, %s offen sc1" % (v(S + 4 * r, 4), v(vU), s(SWS, 4), s(sT0)))
        if r < 7: asm("s_add_u32 %s, %s, 3072" % (s(sT0), s(sT0)))
    store_o(PB, R_OB)
    asm("s_waitcnt vmcnt(2)")
    for r in range(1, 8):
        for k in range(4):
            asm("v_add_f32 %s, %s, %s" % (v(S + k), v(S + k), v(S + 4 * r + k)))
    asm("v_cvt_pk_bf16_f32 %s, %s, %s" % (v(vT), v(S), v(S + 1)))
    asm("v_cvt_pk_bf16_f32 %s, %s, %s" % (v(vT + 1), v(S + 2), v(S + 3)))
    asm("s_lshr_b32 %s, %s, 1" % (s(sT0), s(sW)))
    asm("s_lshl_b32 %s, %s, 10" % (s(sT0), s(sT0)))
    asm("s_and_b32 %s, %s, 1" % (s(sT1), s(sW)))
    asm("s_lshl_b32 %s, %s, 3" % (s(sT1), s(sT1)))
    asm("s_add_u32 %s, %s, %s" % (s(sT0), s(sT0), s(sT1)))
    asm("s_add_u32 %s, %s, %d" % (s(sT0), s(sT0), L_KVT))
    asm("v_add_u32 %s, %s, %s" % (v(vU), s(sT0), v(vLin)))
    asm("ds_write_b64 %s, %s" % (v(vU), v(vT, 2)))
    TAIL2 = opts.get("tail2", 0)
    sF3 = 69
    def f3_offset():
        asm("s_lshl_b32 %s, %s, 5" % (s(sF3), s(sRB2)))
        asm("s_add_u32 %s, %s, %s" % (s(sF3), s(sF3), s(sHH)))
        asm("s_lshl_b32 %s, %s, 3" % (s(sF3), s(sF3)))
        asm("s_add_u32 %s, %s, %d" % (s(sF3), s(sF3), F3))
    if TAIL2:
        D2 = S
        def a_product(vm):
            lds_wait(W_KVT, vT + 4, vT + 5, atleast=4)
            asm("v_add_u32 %s, 0x%x, %s" % (v(vU), L_KVT, v(vLin)))
            asm("ds_read_b128 %s, %s" % (v(F[0], 4), v(vU)))
            asm("ds_read_b128 %s, %s offset:1024" % (v(F[0] + 4, 4), v(vU)))
            f3_offset()
            asm("s_waitcnt vmcnt(%d) lgkmcnt(0)" % vm)
            asm("v_mfma_f32_32x32x16_bf16 %s, %s, %s, 0" % (v(D2, 16), v(F[0], 4), v(Q, 4)))
            asm("v_mfma_f32_32x32x16_bf16 %s, %s, %s, %s" % (v(D2, 16), v(F[0] + 4, 4), v(Q + 4, 4), v(D2, 16)))
        asm("s_waitcnt lgkmcnt(0)")
        lds_inc(W_KVT)
        a_product(2)
        asm("s_nop 7"); asm("s_nop 3")
        asm("s_branch %s_join" % N)
        asm.label("%s_hiwaves" % N)
        a_product(0)
        normalize(PB, False)
        store_o(PB, R_OB)
        asm.label("%s_join" % N)
        st(8)
        normalize(PA, True, O=D2)
        store_o(PA, R_OA)
    else:
        asm("s_branch %s_join" % N)
        asm.label("%s_hiwaves" % N)
        asm("s_nop 7"); asm("s_nop 3")
        normalize(PB, False)
        store_o(PB, R_OB)
        asm.label("%s_join" % N)
        asm("s_waitcnt lgkmcnt(0)")
        asm("s_barrier")
        st(8)
        asm("v_add_u32 %s, 0x%x, %s" % (v(vU), L_KVT, v(vLin)))
        asm("ds_read_b128 %s, %s" % (v(F[0], 4), v(vU)))
        asm("ds_read_b128 %s, %s offset:1024" % (v(F[0] + 4, 4), v(vU)))
        asm("s_lshl_b32 %s, %s, 5" % (s(sF3), s(sRB2)))
        asm("s_add_u32 %s, %s, %s" % (s(sF3), s(sF3), s(sHH)))
        asm("s_lshl_b32 %s, %s, 3" % (s(sF3), s(sF3)))
        asm("s_add_u32 %s, %s, %d" % (s(sF3), s(sF3), F3))
        asm("s_waitcnt vmcnt(2) lgkmcnt(0)")
        asm("v_mfma_f32_32x32x16_bf16 %s, %s, %s, 0" % (v(O, 16), v(F[0], 4), v(Q, 4)))
        asm("v_mfma_f32_32x32x16_bf16 %s, %s, %s, %s" % (v(O, 16), v(F[0] + 4, 4), v(Q + 4, 4), v(O, 16)))
        asm("s_nop 7"); asm("s_nop 3")
        normalize(PA, True)
        store_o(PA, R_OA)
    asm("s_add_u32 %s, %s, %d" % (s(sT1), s(sF3), 8 * 256))
    asm("s_waitcnt vmcnt(2)")
    release()
    lds_arrive(W_CNT3B, 8, vT + 6, vT + 4, s(sT1), replicas=R3, rshift=12)
    asm("s_waitcnt vmcnt(0)")
    release()
    lds_arrive(W_CNT3A, 8, vT + 6, vT + 4, s(sF3), replicas=R3, rshift=12)
    st(9)
    asm("s_cmp_ge_u32 %s, 4" % s(sW))
    asm("s_cbranch_scc1 %s_fin" % N)
    OF = 0; ACC3 = 160; WF = [200, 220]
    vOM, vOR, vWm, vWm2, vWr, vWr2 = 245, 246, 247, 248, 249, 250
    p3L, p3T, p3U, p3X = 251, 252, 253, 254
    vDW3 = 240
    sTB3, sOffO3, sOM = 44, 45, 46
    SOUT = SB_
    decode3()
    asm("s_load_dwordx2 s[4:5], s[0:1], 48")
    asm("s_lshl_b32 %s, %s, 2" % (s(sTB3), s(sRB3)))
    asm("s_add_u32 %s, %s, %s" % (s(sTB3), s(sTB3), s(sW)))
    lane(p3L)
    asm("v_lshlrev_b32 %s, 3, %s" % (v(p3X), v(p3L)))
    asm("s_lshl_b32 %s, %s, 3" % (s(sT0), s(sBR3)))
    asm("s_lshr_b32 %s, %s, 1" % (s(sT1), s(sRB3)))
    asm("s_add_u32 %s, %s, %s" % (s(sT0), s(sT0), s(sT1)))
    asm("s_lshl_b32 %s, %s, 8" % (s(sT0), s(sT0)))
    if R3 > 1:
        asm("s_and_b32 %s, %s, %d" % (s(sT1), s(sCB3), R3 - 1))
        asm("s_lshl_b32 %s, %s, 12" % (s(sT1), s(sT1)))
        asm("s_add_u32 %s, %s, %s" % (s(sT0), s(sT0), s(sT1)))
    asm("s_add_u32 %s, %s, %d" % (s(sPL), s(sT0), F3))
    asm("v_lshrrev_b32 %s, 4, %s" % (v(p3T), v(p3L)))
    asm("v_and_b32 %s, 15, %s" % (v(p3U), v(p3L)))
    asm("v_lshrrev_b32 %s, 1, %s" % (v(vWm2), v(p3T)))
    asm("v_mul_u32_u24 %s, 1280, %s" % (v(vOM), v(vWm2)))
    asm("v_and_b32 %s, 1, %s" % (v(vWm2), v(p3T)))
    asm("v_lshl_add_u32 %s, %s, 9, %s" % (v(vOM), v(vWm2), v(vOM)))
    asm("v_lshl_add_u32 %s, %s, 4, %s" % (v(vOM), v(p3U), v(vOM)))
    asm("v_mul_u32_u24 %s, 1280, %s" % (v(vOR), v(p3T)))
    asm("v_lshl_add_u32 %s, %s, 3, %s" % (v(vOR), v(p3U), v(vOR)))
    asm("v_add_u32 %s, 1024, %s" % (v(vOR), v(vOR)))
    asm("v_bfe_u32 %s, %s, 2, 2" % (v(p3U), v(p3L)))
    asm("v_lshrrev_b32 %s, 1, %s" % (v(vWm2), v(p3T)))
    asm("v_mul_u32_u24 %s, 20, %s" % (v(vWm), v(vWm2)))
    asm("v_and_b32 %s, 1, %s" % (v(vWm2), v(p3T)))
    asm("v_lshl_add_u32 %s, %s, 2, %s" % (v(vWm), v(vWm2), v(vWm)))
    asm("v_add_u32 %s, %s, %s" % (v(vWm), v(vWm), v(p3U)))
    asm("v_mul_u32_u24 %s, 160, %s" % (v(vWm), v(vWm)))
    asm("v_mul_u32_u24 %s, 20, %s" % (v(vWr), v(p3T)))
    asm("v_add_u32 %s, %s, %s" % (v(vWr), v(vWr), v(p3U)))
    asm("v_add_u32 %s, 16, %s" % (v(vWr), v(vWr)))
    asm("v_mul_u32_u24 %s, 160, %s" % (v(vWr), v(vWr)))
    asm("v_and_b32 %s, 3, %s" % (v(vWm2), v(p3L)))
    asm("v_lshl_add_u32 %s, %s, 3, %s" % (v(vWm), v(vWm2), v(vWm)))
    asm("v_lshl_add_u32 %s, %s, 3, %s" % (v(vWr), v(vWm2), v(vWr)))
    asm("v_add_u32 %s, 51200, %s" % (v(vWm2), v(vWm)))
    asm("v_add_u32 %s, 51200, %s" % (v(vWr2), v(vWr)))
    asm("s_mul_i32 %s, %s, %d" % (s(sOffO3), s(sBR3), REG))
    asm("s_add_u32 %s, %s, %d" % (s(sOffO3), s(sOffO3), R_OA))
    asm("s_mul_i32 %s, %s, 40960" % (s(sT0), s(sTB3)))
    asm("s_add_u32 %s, %s, %s" % (s(sOffO3), s(sOffO3), s(sT0)))
    asm("s_waitcnt lgkmcnt(0)")
    srd(asm, SOUT, "s4", "s5", 2048 * 2560)
    asm("s_cmp_lg_u32 %s, 0" % s(sW))
    asm("s_cbranch_scc1 %s_p3w" % N)
    if opts.get("ppoll", 0): ppoll(s(sPL), 32, [vDW3, vDW3 + 2], p3X)
    else: poll(s(sPL), 32, vDW3, p3X)
    lds_set(W_S3, p3T, p3U)
    asm("s_branch %s_p3go" % N)
    asm.label("%s_p3w" % N)
    lds_wait(W_S3, vDW3, vDW3 + 1)
    asm.label("%s_p3go" % N)
    st(10)
    def oloads(sidx):
        if sidx < 16:
            asm("s_add_u32 %s, %s, %d" % (s(sOM), s(sOffO3), 2560 * sidx))
            for rt in range(2):
                asm("buffer_load_dwordx4 %s, %s, %s, %s offen offset:%d%s" % (v(OF + (sidx * 2 + rt) * 4, 4), v(vOM), s(SWS, 4), s(sOM), rt * 256, LSC3))
        else:
            a_ = sidx - 16
            for half in range(2):
                asm("s_add_u32 %s, %s, %d" % (s(sOM), s(sOffO3), a_ * 8 * 1280 + half * 5120))
                for rt in range(2):
                    asm("buffer_load_dwordx2 %s, %s, %s, %s offen offset:%d%s" % (v(OF + ((16 + a_) * 2 + rt) * 4 + 2 * half, 2), v(vOR), s(SWS, 4), s(sOM), rt * 128, LSC3))
    def cum(k): return 2 * (k + 1) if k < 16 else 32 + 4 * (k - 15)
    PD = opts.get("pd", 5)
    for k in range(PD): oloads(k)
    def wreads(step, dst):
        ops = []
        for ct in range(5):
            for a_ in range(2):
                if step < 16:
                    base = vWm if step < 8 else vWm2
                    off = (step & 7) * 6400 + a_ * 1280 + ct * 32
                else:
                    ap = step - 16
                    base = vWr if ap < 2 else vWr2
                    off = (ap & 1) * 25600 + a_ * 12800 + ct * 32
                ops.append(lambda ct=ct, a_=a_, base=base, off=off: asm("ds_read_b64_tr_b16 %s, %s offset:%d" % (v(dst + 4 * ct + 2 * a_, 2), v(base), off)))
        return ops
    if opts.get("p3st"): st(1)
    for f in wreads(0, WF[0]): f()
    for sidx in range(20):
        cur = WF[sidx & 1]
        nxt_ops = wreads(sidx + 1, WF[(sidx + 1) & 1]) if sidx < 19 else []
        vm = cum(min(sidx + PD - 1, 19)) - cum(sidx)
        asm("s_waitcnt vmcnt(%d) lgkmcnt(0)" % vm)
        if opts.get("p3st") and sidx in (0, 8, 16): st({0: 2, 8: 3, 16: 4}[sidx])
        m = 0
        for ct in range(5):
            for rt in range(2):
                acc = v(ACC3 + (rt * 5 + ct) * 4, 4)
                c = "0" if sidx == 0 else acc
                asm("v_mfma_f32_16x16x32_bf16 %s, %s, %s, %s" % (acc, v(cur + 4 * ct, 4), v(OF + (sidx * 2 + rt) * 4, 4), c))
                if m < 5 and nxt_ops:
                    nxt_ops[2 * m](); nxt_ops[2 * m + 1]()
                if m == 5 and sidx + PD < 20: oloads(sidx + PD)
                m += 1
    st(11)
    if TAIL2: lds_wait(W_CNT3A, p3T, p3U, atleast=8)
    asm("v_and_b32 %s, 15, %s" % (v(p3U), v(p3L)))
    asm("v_mul_u32_u24 %s, 160, %s" % (v(p3U), v(p3U)))
    asm("v_lshrrev_b32 %s, 4, %s" % (v(p3T), v(p3L)))
    asm("v_lshl_add_u32 %s, %s, 3, %s" % (v(p3U), v(p3T), v(p3U)))
    asm("s_mul_i32 %s, %s, 5120" % (s(sT0), s(sW)))
    asm("s_add_u32 %s, %s, %d" % (s(sT0), s(sT0), L_OUT))
    asm("v_add_u32 %s, %s, %s" % (v(p3U), s(sT0), v(p3U)))
    asm("v_lshlrev_b32 %s, 4, %s" % (v(p3X), v(p3L)))
    asm("v_add_u32 %s, %s, %s" % (v(p3X), s(sT0), v(p3X)))
    asm("s_nop 3")
    for rt in range(2):
        for ct in range(5):
            b = ACC3 + (rt * 5 + ct) * 4
            t = OF + (rt * 5 + ct) * 2
            asm("v_cvt_pk_bf16_f32 %s, %s, %s" % (v(t), v(b), v(b + 1)))
            asm("v_cvt_pk_bf16_f32 %s, %s, %s" % (v(t + 1), v(b + 2), v(b + 3)))
            asm("ds_write_b64 %s, %s offset:%d" % (v(p3U), v(t, 2), rt * 2560 + ct * 32))
    asm("s_movk_i32 %s, 6554" % s(sT2))
    asm("s_movk_i32 %s, 2560" % s(sT3))
    for b in range(5):
        asm("v_add_u32 %s, %d, %s" % (v(p3T), 64 * b, v(p3L)))
        asm("v_mul_lo_u32 %s, %s, %s" % (v(vWm), v(p3T), s(sT2)))
        asm("v_lshrrev_b32 %s, 16, %s" % (v(vWm), v(vWm)))
        asm("v_mul_u32_u24 %s, 10, %s" % (v(vWr), v(vWm)))
        asm("v_sub_u32 %s, %s, %s" % (v(p3T), v(p3T), v(vWr)))
        asm("v_lshlrev_b32 %s, 4, %s" % (v(p3T), v(p3T)))
        asm("v_mad_u32_u24 %s, %s, %s, %s" % (v(vDW3 + b), v(vWm), s(sT3), v(p3T)))
    asm("s_mul_i32 %s, %s, %d" % (s(sT0), s(sTB3), 32 * 2560))
    asm("s_mul_i32 %s, %s, 1280" % (s(sT1), s(sBR3)))
    asm("s_add_u32 %s, %s, %s" % (s(sT0), s(sT0), s(sT1)))
    asm("s_mul_i32 %s, %s, 160" % (s(sT1), s(sCB3)))
    asm("s_add_u32 %s, %s, %s" % (s(sT0), s(sT0), s(sT1)))
    asm("s_waitcnt lgkmcnt(0)")
    for b in range(5):
        asm("ds_read_b128 %s, %s offset:%d" % (v(32 + 4 * b, 4), v(p3X), b * 1024))
    for b in range(5):
        asm("s_waitcnt lgkmcnt(%d)" % (4 - b))
        asm("buffer_store_dwordx4 %s, %s, %s, %s offen%s" % (v(32 + 4 * b, 4), v(vDW3 + b), s(SOUT, 4), s(sT0), {0: "", 1: " sc1", 2: " nt", 3: " sc0 sc1"}[opts.get("outsc", 0)]))
    asm(";PADEND")
    asm.label("%s_fin" % N)
    if stamp:
        asm("s_waitcnt vmcnt(0)")
        st(12)
        asm("s_waitcnt lgkmcnt(0)")
        asm("s_load_dwordx2 s[4:5], s[0:1], 64")
        asm("s_waitcnt lgkmcnt(0)")
        asm("s_add_u32 s4, s4, %d" % (R_STAMP + (opts.get("wsoff", 0) << 20)))
        asm("s_addc_u32 s5, s5, 0")
        srd(asm, SA_, "s4", "s5", 1 << 20)
        asm("s_lshl_b32 %s, s2, 3" % s(sT0))
        asm("s_add_u32 %s, %s, %s" % (s(sT0), s(sT0), s(sW)))
        asm("s_lshl_b32 %s, %s, 7" % (s(sT0), s(sT0)))
        asm("v_mov_b32 v1, %s" % s(sT0))
        for i in range(13):
            asm("v_mov_b32 v2, %s" % s(STB + 2 * i))
            asm("v_mov_b32 v3, %s" % s(STB + 2 * i + 1))
            asm("buffer_store_dwordx2 v[2:3], v1, %s, 0 offen offset:%d" % (s(SA_, 4), 8 * i))
            asm("s_nop 1")
        asm("s_getreg_b32 s4, hwreg(HW_REG_HW_ID)")
        asm("v_mov_b32 v2, %s" % s(sXCC))
        asm("v_mov_b32 v3, s4")
        asm("buffer_store_dwordx2 v[2:3], v1, %s, 0 offen offset:%d" % (s(SA_, 4), 8 * 13))
    asm.label("%s_end" % N)
    asm("s_endpgm")
    return dict(name=N, vgpr=256, sgpr=100, grid=256, block=512, lds=LDS_BYTES)
HEADER = open("concat_heads__linear_attn_block__sliding_block__prompt.s.ref").read().split("; Override")[0]
def insert_pads(lines, every, nseg, N):
    b = lines.index(";PADBEGIN"); e = lines.index(";PADEND")
    pos = []; cnt = every; partial = False
    for k in range(b + 1, e):
        ln = lines[k].strip()
        if not ln or ln.endswith(":") or ln.startswith(";") or ln.startswith("."): continue
        if ln.startswith("s_mov_b64 exec") or ln.startswith("s_mov_b32 exec_"):
            partial = not ln.endswith("exec, -1")
            cnt += 1
            continue
        if cnt >= every and not partial:
            pos.append(k); cnt = 0
        cnt += 1
    n = len(pos); per = (n + nseg - 1) // nseg
    out = list(lines[:pos[0]])
    for i_, k in enumerate(pos):
        seg, j = divmod(i_, per)
        name = "%s_padseg%d" % (N, seg) if j == 0 else "%s_pad%d" % (N, i_)
        last = (j == per - 1) or (i_ == n - 1)
        nxt = "%s_walkret" % N if last else "%s_pad%d" % (N, i_ + 1)
        out.append(name + ":")
        out.append("s_cbranch_execz %s" % nxt)
        out += lines[k:(pos[i_ + 1] if i_ + 1 < n else len(lines))]
    nsegs = (n + per - 1) // per
    assert nsegs == nseg, (n, per, nsegs)
    return out, n
def build(stamp=False, opts=None):
    body = A()
    i = gen(body, stamp=stamp, opts=opts)
    if opts and opts.get("pad", 0):
        body.L, npads = insert_pads(body.L, opts["pad"], 8, i["name"])
        print("pads:", npads)
    else:
        body.L = [l for l in body.L if l not in (";PADBEGIN", ";PADEND")]
    if opts and opts.get("hfirst", 0):
        N = i["name"]; L = body.L
        a = L.index("%s_p1h:" % N); b = L.index("%s_p2h:" % N)
        blk = L[a:b]; rest = L[:a] + L[b:]
        k = rest.index("s_cbranch_scc1 %s_p1h" % N)
        rest[k] = "s_cbranch_scc0 %s_p1c" % N
        body.L = rest[:k + 1] + blk + ["s_branch %s_p2h" % N, "%s_p1c:" % N] + rest[k + 1:]
    out = HEADER
    out += "; @launch grid=(%d,1,1) block=(%d,1,1) lds=%d\n" % (i["grid"], i["block"], i["lds"])
    out += '.amdgcn_target "amdgcn-amd-amdhsa--gfx950"\n.text\n'
    out += body.text()
    d = A()
    d('.section .rodata,"a"')
    kernel_desc(d, i["name"], i["vgpr"], i["sgpr"])
    out += d.text()
    return out
if __name__ == "__main__":
    import sys
    opts = {}
    for a_ in sys.argv[3:]:
        k, val = a_.split("="); opts[k] = int(val)
    open(sys.argv[1], "w").write(build(stamp=(len(sys.argv) > 2 and sys.argv[2] == "stamp"), opts=opts))
```

```python
from asmlib import *
import math
REG = 2621440
R_QA, R_KA, R_VA, R_QB, R_KB, R_VB, R_OA, R_OB, R_KVP, R_FLG = [i * REG for i in range(10)]
F1 = R_FLG
F2 = R_FLG + 65536
F3 = R_FLG + 65536 + 8192
WS_REC = R_FLG + 131072
R_STAMP = 10 * REG
LOG2E = 1.4426950408889634
QSCALE = LOG2E / math.sqrt(20.0)
BIG = -1.0e30
OOB = 0x40000000
L_WO, L_K, L_V, L_KVT = 0, 102400, 135168, 155648
L_OUT = L_K
L_SYNC = 157696
W_CNT1, W_S1, W_S1A, W_S2, W_CNT3B, W_CNT3A, W_S3, W_ISS, W_K, W_V, W_KVT = [L_SYNC + 4 * i for i in range(11)]
LDS_BYTES = 157696 + 64
SPIN_MAX = 0x40000
NAME = "concat_heads__linear_attn_block__sliding_block__prompt_kernel"
class G:
    pass
def gen(asm, stamp=False, name=NAME, opts=None):
    opts = opts or {}
    N = name
    D1 = opts.get("d1", 0)
    SC = " sc1" if D1 else ""
    SC = {0: SC, 1: " sc0 sc1", 2: " sc1 nt", 3: " sc0 sc1 nt"}[opts.get("scmode", 0)]
    R3 = opts.get("r3", 1)
    REPL = opts.get("repl", 8)
    LSC3 = "" if opts.get("plain3") else " sc1"
    sW = 3
    SWS, SDBG = 8, 12
    sNON = 16
    sT0, sT1, sT2, sT3 = 18, 19, 20, 21
    sCNT, sPL = 22, 23
    SA_, SB_ = 24, 28
    sMASK = 32
    sPC = 34
    STB = 72
    sP8, sSLOT, sLOCAL, sXCC = 70, 71, 98, 99
    def st(k):
        if stamp:
            asm("s_memrealtime %s" % s(STB + 2 * k, 2))
    def lane(dst):
        asm("v_mbcnt_lo_u32_b32 %s, -1, 0" % v(dst))
        asm("v_mbcnt_hi_u32_b32 %s, -1, %s" % (v(dst), v(dst)))
    uid = [0]
    def lab(p):
        uid[0] += 1
        return "%s_%s%d" % (N, p, uid[0])
    def sync_issue(vd, vo):
        lane(vo)
        asm("s_lshl_b32 %s, %s, 3" % (s(sT0), s(sP8)))
        asm("s_add_u32 %s, %s, 64" % (s(sT0), s(sT0)))
        asm("v_cmp_eq_u32 vcc, 1, %s" % v(vo))
        asm("v_mov_b32 %s, %s" % (v(vd), s(sT0)))
        asm("v_mov_b32 %s, 0" % v(vo))
        asm("v_cndmask_b32 %s, %s, %s, vcc" % (v(vo), v(vo), v(vd)))
        asm("buffer_load_dwordx2 %s, %s, %s, 0 offen sc1" % (v(vd, 2), v(vo), s(SDBG, 4)))
    def get_sync(vd, vo, preissued=False):
        L, D = lab("non"), lab("nond")
        if not preissued: sync_issue(vd, vo)
        asm("s_mov_b32 %s, 0" % s(sCNT))
        asm.label(L)
        asm("s_waitcnt vmcnt(0)")
        asm("v_readlane_b32 %s, %s, 0" % (s(sNON), v(vd)))
        asm("v_readlane_b32 %s, %s, 0" % (s(sNON + 1), v(vd + 1)))
        asm("v_readlane_b32 %s, %s, 1" % (s(sPC), v(vd)))
        asm("v_readlane_b32 %s, %s, 1" % (s(sPC + 1), v(vd + 1)))
        asm("s_add_u32 %s, %s, 1" % (s(sCNT), s(sCNT)))
        asm("s_nop 2")
        asm("s_cmp_lg_u32 %s, 0" % s(sNON))
        asm("s_cbranch_scc1 %s" % D)
        asm("s_cmp_ge_u32 %s, 0x%x" % (s(sCNT), SPIN_MAX))
        asm("s_cbranch_scc1 %s" % D)
        asm("s_sleep 4")
        asm("buffer_load_dwordx2 %s, %s, %s, 0 offen sc1" % (v(vd, 2), v(vo), s(SDBG, 4)))
        asm("s_branch %s" % L)
        asm.label(D)
        asm("s_lshl_b32 %s, %s, 3" % (s(sT0), s(sXCC)))
        asm("s_lshl_b64 %s, 32, %s" % (s(sMASK, 2), s(sT0)))
        asm("s_cmp_eq_u64 %s, %s" % (s(sMASK, 2), s(sPC, 2)))
        asm("s_cselect_b32 %s, 1, 0" % s(sLOCAL))
        if opts.get("nolocal"): asm("s_mov_b32 %s, 0" % s(sLOCAL))
    def release():
        if D1: return
        D = lab("rel")
        asm("s_cmp_lg_u32 %s, 0" % s(sLOCAL))
        asm("s_cbranch_scc1 %s" % D)
        asm("buffer_wbl2 sc1")
        asm("s_waitcnt vmcnt(0)")
        asm.label(D)
    def lds_set(word, va, vd):
        asm("v_mov_b32 %s, 0x%x" % (v(va), word))
        asm("v_mov_b32 %s, 1" % v(vd))
        asm("ds_write_b32 %s, %s" % (v(va), v(vd)))
    def lds_wait(word, va, vd, atleast=1):
        L, D = lab("lw"), lab("lwd")
        asm("v_mov_b32 %s, 0x%x" % (v(va), word))
        asm("s_mov_b32 %s, 0" % s(sCNT))
        asm.label(L)
        asm("ds_read_b32 %s, %s" % (v(vd), v(va)))
        asm("s_waitcnt lgkmcnt(0)")
        asm("v_readfirstlane_b32 %s, %s" % (s(sT0), v(vd)))
        asm("s_add_u32 %s, %s, 1" % (s(sCNT), s(sCNT)))
        asm("s_nop 2")
        asm("s_cmp_ge_u32 %s, %d" % (s(sT0), atleast))
        asm("s_cbranch_scc1 %s" % D)
        asm("s_cmp_ge_u32 %s, 0x%x" % (s(sCNT), SPIN_MAX * 8))
        asm("s_cbranch_scc1 %s" % D)
        if opts.get("lsleep", 1): asm("s_sleep %d" % opts.get("lsleep", 1))
        asm("s_branch %s" % L)
        asm.label(D)
    def lds_arrive(word, n, va, vd, soff, replicas=1, rshift=11):
        D = lab("arr")
        asm("v_mov_b32 %s, 0x%x" % (v(va), word))
        asm("v_mov_b32 %s, 1" % v(vd))
        asm("s_mov_b64 exec, 1")
        asm("ds_add_rtn_u32 %s, %s, %s" % (v(vd), v(va), v(vd)))
        asm("s_waitcnt lgkmcnt(0)")
        asm("s_mov_b64 exec, -1")
        asm("v_readfirstlane_b32 %s, %s" % (s(sCNT), v(vd)))
        asm("s_nop 3")
        asm("s_cmp_lg_u32 %s, %d" % (s(sCNT), n - 1))
        asm("s_cbranch_scc1 %s" % D)
        flag_store(soff, vd, va, replicas, rshift)
        asm.label(D)
    def poll_issue(soff, vd, vo, n):
        asm("s_mov_b32 exec_lo, 0x%x" % ((1 << n) - 1))
        asm("s_mov_b32 exec_hi, 0")
        asm("buffer_load_dwordx2 %s, %s, %s, %s offen sc1" % (v(vd, 2), v(vo), s(SWS, 4), soff))
        asm("s_mov_b64 exec, -1")
    def poll(soff, n, vd, vo, preissued=False, lo=0, smask=None):
        L, D = lab("poll"), lab("polld")
        m = ((1 << n) - 1) & ~((1 << lo) - 1)
        asm("s_mov_b32 %s, %s" % (s(sMASK), smask if smask else "0x%x" % (m & 0xffffffff)))
        asm("s_mov_b32 %s, 0x%x" % (s(sMASK + 1), m >> 32))
        if not preissued: poll_issue(soff, vd, vo, n)
        asm("s_mov_b32 %s, 0" % s(sCNT))
        asm.label(L)
        asm("s_waitcnt vmcnt(0)")
        asm("v_cmp_eq_u32 vcc, %s, %s" % (s(sNON), v(vd)))
        asm("v_cmp_eq_u32 %s, %s, %s" % (s(sPC, 2), s(sNON + 1), v(vd + 1)))
        asm("s_add_u32 %s, %s, 1" % (s(sCNT), s(sCNT)))
        asm("s_nop 3")
        asm("s_and_b64 %s, %s, vcc" % (s(sPC, 2), s(sPC, 2)))
        asm("s_and_b64 %s, %s, %s" % (s(sPC, 2), s(sPC, 2), s(sMASK, 2)))
        asm("s_cmp_eq_u64 %s, %s" % (s(sPC, 2), s(sMASK, 2)))
        asm("s_cbranch_scc1 %s" % D)
        asm("s_cmp_ge_u32 %s, 0x%x" % (s(sCNT), SPIN_MAX))
        asm("s_cbranch_scc1 %s" % D)
        asm("s_sleep %d" % opts.get("sleep", 3))
        poll_issue(soff, vd, vo, n)
        asm("s_branch %s" % L)
        asm.label(D)
    def ppoll(soff, n, regs, vo, smask=None):
        k = len(regs)
        L, D = lab("pp"), lab("ppd")
        m = (1 << n) - 1
        asm("s_mov_b32 %s, %s" % (s(sMASK), smask if smask else "0x%x" % (m & 0xffffffff)))
        asm("s_mov_b32 %s, 0x%x" % (s(sMASK + 1), m >> 32))
        for i, r in enumerate(regs):
            poll_issue(soff, r, vo, n)
            if i + 1 < k: asm("s_sleep %d" % opts.get("pstag", 6))
        asm("s_mov_b32 %s, 0" % s(sCNT))
        asm.label(L)
        for i, r in enumerate(regs):
            asm("s_waitcnt vmcnt(%d)" % (k - 1))
            asm("v_cmp_eq_u32 vcc, %s, %s" % (s(sNON), v(r)))
            asm("v_cmp_eq_u32 %s, %s, %s" % (s(sPC, 2), s(sNON + 1), v(r + 1)))
            asm("s_add_u32 %s, %s, 1" % (s(sCNT), s(sCNT)))
            asm("s_nop 3")
            asm("s_and_b64 %s, %s, vcc" % (s(sPC, 2), s(sPC, 2)))
            asm("s_and_b64 %s, %s, %s" % (s(sPC, 2), s(sPC, 2), s(sMASK, 2)))
            asm("s_cmp_eq_u64 %s, %s" % (s(sPC, 2), s(sMASK, 2)))
            asm("s_cbranch_scc1 %s" % D)
            poll_issue(soff, r, vo, n)
        asm("s_cmp_lt_u32 %s, 0x%x" % (s(sCNT), SPIN_MAX * 3))
        asm("s_cbranch_scc1 %s" % L)
        asm.label(D)
    def flag_store(soff, vd, vo, replicas=1, rshift=11):
        if replicas > 1:
            lane(vo)
            asm("v_lshlrev_b32 %s, %d, %s" % (v(vo), rshift, v(vo)))
        else:
            asm("v_mov_b32 %s, 0" % v(vo))
        asm("v_mov_b32 %s, %s" % (v(vd), s(sNON)))
        asm("v_mov_b32 %s, %s" % (v(vd + 1), s(sNON + 1)))
        asm("s_mov_b64 exec, %d" % ((1 << replicas) - 1 if replicas <= 6 else -1) if replicas <= 6 else "s_mov_b32 exec_lo, 0x%x\n    s_mov_b32 exec_hi, 0" % ((1 << replicas) - 1))
        asm("buffer_store_dwordx2 %s, %s, %s, %s offen sc1" % (v(vd, 2), v(vo), s(SWS, 4), soff))
        asm("s_mov_b64 exec, -1")
    kernel_header(asm, N)
    asm("s_cmp_ge_u32 s2, 256")
    asm("s_cbranch_scc1 %s_end" % N)
    if stamp:
        for i in range(26): asm("s_mov_b32 %s, 0" % s(STB + i))
    st(0)
    asm("s_load_dwordx4 s[4:7], s[0:1], 56")
    asm("s_load_dwordx4 s[36:39], s[0:1], 0")
    asm("s_load_dwordx4 s[40:43], s[0:1], 24")
    asm("v_lshrrev_b32 v1, 6, v0")
    asm("s_nop 0")
    asm("v_readfirstlane_b32 %s, v1" % s(sW))
    CPF = opts.get("cpf", 0)
    if CPF:
        asm("s_lshr_b32 %s, s2, 3" % s(sT0))
        asm("s_nop 1")
        asm("s_cmp_lg_u32 %s, %d" % (s(sW), CPF))
        asm("s_cbranch_scc1 %s_nocpf" % N)
        asm("s_getpc_b64 s[24:25]")
        asm.label("%s_cpfpc" % N)
        asm("s_sub_u32 s24, s24, (%s_cpfpc - %s)" % (N, N))
        asm("s_subb_u32 s25, s25, 0")
        asm("s_and_b32 s25, s25, 0xffff")
        asm("s_mov_b32 s26, (%s_end - %s)" % (N, N))
        asm("s_mov_b32 s27, 0x20000")
        lane(5)
        asm("s_and_b32 %s, %s, 3" % (s(sT0), s(sT0)))
        asm("s_lshl_b32 %s, %s, 6" % (s(sT0), s(sT0)))
        asm("v_add_u32 v5, %s, v5" % s(sT0))
        asm("v_lshlrev_b32 v5, 7, v5")
        asm("buffer_load_dword v199, v5, s[24:27], 0 offen")
        asm.label("%s_nocpf" % N)
    sBR, sRB, sCB, sPART, sCBP, sW4, sWM, sWN = 44, 45, 46, 47, 48, 49, 50, 51
    asm("s_and_b32 %s, s2, 7" % s(sP8))
    asm("s_lshr_b32 %s, s2, 3" % s(sSLOT))
    asm("s_getreg_b32 %s, hwreg(HW_REG_XCC_ID, 0, 4)" % s(sXCC))
    asm("s_and_b32 %s, %s, 7" % (s(sXCC), s(sXCC)))
    if not D1:
        asm("s_cmp_ge_u32 %s, 15" % s(sSLOT))
        asm("s_cselect_b32 %s, 1, 0" % s(sBR))
        asm("s_cselect_b32 %s, 15, 0" % s(sT0))
        asm("s_sub_u32 %s, %s, %s" % (s(sCB), s(sSLOT), s(sT0)))
        asm("s_mov_b32 %s, %s" % (s(sRB), s(sP8)))
    else:
        asm("s_lshr_b32 %s, %s, 2" % (s(sBR), s(sP8)))
        asm("s_and_b32 %s, %s, 3" % (s(sT0), s(sP8)))
        asm("s_mul_i32 %s, %s, 30" % (s(sT0), s(sT0)))
        asm("s_add_u32 %s, %s, %s" % (s(sT0), s(sT0), s(sSLOT)))
        asm("s_cmp_ge_u32 %s, 60" % s(sT0))
        asm("s_cselect_b32 %s, 4, 0" % s(sT1))
        asm("s_cselect_b32 %s, 60, 0" % s(sT2))
        asm("s_sub_u32 %s, %s, %s" % (s(sT0), s(sT0), s(sT2)))
        asm("s_lshr_b32 %s, %s, 2" % (s(sCB), s(sT0)))
        asm("s_and_b32 %s, %s, 3" % (s(sT0), s(sT0)))
        asm("s_add_u32 %s, %s, %s" % (s(sRB), s(sT1), s(sT0)))
    asm("s_cmp_ge_u32 %s, 5" % s(sCB))
    asm("s_cselect_b32 %s, 1, 0" % s(sPART))
    asm("s_cmp_ge_u32 %s, 10" % s(sCB))
    asm("s_cselect_b32 %s, 2, %s" % (s(sPART), s(sPART)))
    asm("s_mul_i32 %s, %s, 5" % (s(sT0), s(sPART)))
    asm("s_sub_u32 %s, %s, %s" % (s(sCBP), s(sCB), s(sT0)))
    asm("s_and_b32 %s, %s, 3" % (s(sW4), s(sW)))
    asm("s_lshr_b32 %s, %s, 1" % (s(sWM), s(sW4)))
    asm("s_and_b32 %s, %s, 1" % (s(sWN), s(sW4)))
    asm("s_waitcnt lgkmcnt(0)")
    if opts.get("wsoff"):
        asm("s_add_u32 s6, s6, 0x%x" % (opts["wsoff"] << 20))
        asm("s_addc_u32 s7, s7, 0")
    srd(asm, SWS, "s6", "s7", WS_REC)
    srd(asm, SDBG, "s4", "s5", 256)
    asm("s_cmp_ge_u32 %s, 4" % s(sW))
    asm("s_cbranch_scc1 %s_p1h" % N)
    ACC = 0; FX = [128, 144]; FW = [160, 168]
    vXA, vWA = 176, 180
    vL, vT, vU, vV = 194, 195, 196, 197
    vSO = 198; TMP = 200; TE = 216; vN = 220
    sSTG, sDELTA, sRBUF, sNEG = 52, 53, 54, 55
    sTN, sGG, sSO = 56, 57, 58
    sC0, sC1 = 60, 62
    asm("s_or_b32 %s, s2, %s" % (s(sT0), s(sW)))
    asm("s_cmp_lg_u32 %s, 0" % s(sT0))
    asm("s_cbranch_scc1 %s_nonon" % N)
    asm("s_memrealtime %s" % s(sNON, 2))
    asm("s_waitcnt lgkmcnt(0)")
    asm("s_or_b32 %s, %s, 1" % (s(sNON), s(sNON)))
    asm("v_mov_b32 v2, %s" % s(sNON))
    asm("v_mov_b32 v3, %s" % s(sNON + 1))
    asm("v_mov_b32 v4, 0")
    asm("s_mov_b64 exec, 1")
    asm("buffer_store_dwordx2 v[2:3], v4, %s, 0 offen sc1" % s(SDBG, 4))
    asm("s_mov_b64 exec, -1")
    asm.label("%s_nonon" % N)
    TLBW = opts.get("tlbw", 0)
    if TLBW:
        asm("s_cmp_lg_u32 %s, 2" % s(sW))
        asm("s_cbranch_scc1 %s_notlb" % N)
        asm("s_load_dwordx2 s[4:5], s[0:1], 48")
        lane(5)
        asm("v_lshlrev_b32 v5, %d, v5" % TLBW)
        asm("buffer_load_dword v199, v5, %s, 0 offen sc1" % s(SWS, 4))
        asm("s_waitcnt lgkmcnt(0)")
        srd(asm, SB_, "s4", "s5", 2048 * 2560)
        asm("buffer_load_dword v199, v5, %s, 0 offen sc1" % s(SB_, 4))
        asm("v_mov_b32 v5, 128")
        asm("buffer_load_dword v199, v5, %s, 0 offen sc1" % s(SDBG, 4))
        asm.label("%s_notlb" % N)
    asm("s_cmp_lg_u32 %s, 0" % s(sW))
    asm("s_cbranch_scc1 %s_noinit" % N)
    asm("s_lshl_b32 %s, %s, 3" % (s(sT0), s(sXCC)))
    asm("s_lshl_b64 s[4:5], 1, %s" % s(sT0))
    asm("s_lshl_b32 %s, %s, 3" % (s(sT0), s(sP8)))
    asm("s_add_u32 %s, %s, 64" % (s(sT0), s(sT0)))
    asm("v_mov_b32 v2, s4")
    asm("v_mov_b32 v3, s5")
    asm("v_mov_b32 v4, %s" % s(sT0))
    if not D1:
        asm("s_mov_b64 exec, 1")
        asm("buffer_atomic_add_x2 v[2:3], v4, %s, 0 offen" % s(SDBG, 4))
        asm("s_mov_b64 exec, -1")
    lane(5)
    asm("v_lshlrev_b32 v5, 2, v5")
    asm("v_add_u32 v5, 0x%x, v5" % L_SYNC)
    asm("v_mov_b32 v6, 0")
    asm("s_mov_b32 exec_lo, 0xffff")
    asm("s_mov_b32 exec_hi, 0")
    asm("ds_write_b32 v5, v6")
    asm("s_mov_b64 exec, -1")
    asm("s_waitcnt lgkmcnt(0)")
    if opts.get("ft", 0):
        lane(5)
        asm("s_lshl_b32 %s, %s, 2" % (s(sT0), s(sP8)))
        asm("s_and_b32 %s, %s, 3" % (s(sT1), s(sSLOT)))
        asm("s_add_u32 %s, %s, %s" % (s(sT0), s(sT0), s(sT1)))
        asm("s_lshl_b32 %s, %s, 7" % (s(sT0), s(sT0)))
        asm("s_add_u32 %s, %s, %d" % (s(sT0), s(sT0), F2))
        asm("s_lshr_b32 %s, %s, 2" % (s(sT1), s(sP8)))
        asm("s_lshl_b32 %s, %s, 3" % (s(sT1), s(sT1)))
        asm("s_and_b32 %s, %s, 3" % (s(sT2), s(sP8)))
        asm("s_lshl_b32 %s, %s, 1" % (s(sT2), s(sT2)))
        asm("s_lshr_b32 %s, %s, 4" % (s(sT3), s(sSLOT)))
        asm("s_add_u32 %s, %s, %s" % (s(sT2), s(sT2), s(sT3)))
        asm("s_add_u32 %s, %s, %s" % (s(sT1), s(sT1), s(sT2)))
        asm("s_lshl_b32 %s, %s, 8" % (s(sT1), s(sT1)))
        if R3 > 1:
            asm("s_and_b32 %s, %s, %d" % (s(sT2), s(sSLOT), R3 - 1))
            asm("s_lshl_b32 %s, %s, 12" % (s(sT2), s(sT2)))
            asm("s_add_u32 %s, %s, %s" % (s(sT1), s(sT1), s(sT2)))
        asm("s_add_u32 %s, %s, %d" % (s(sT1), s(sT1), F3 - 128))
        asm("v_lshlrev_b32 v6, 3, v5")
        asm("v_add_u32 v7, %s, v6" % s(sT0))
        asm("v_add_u32 v6, %s, v6" % s(sT1))
        asm("v_cmp_gt_u32 vcc, 16, v5")
        asm("s_nop 1")
        asm("v_cndmask_b32 v6, v6, v7, vcc")
        asm("s_mov_b32 exec_lo, -1")
        asm("s_mov_b32 exec_hi, 0xffff")
        asm("buffer_load_dword v199, v6, %s, 0 offen sc1" % s(SWS, 4))
        asm("s_mov_b64 exec, -1")
    asm.label("%s_noinit" % N)
    asm("s_cmp_ge_u32 %s, 30" % s(sSLOT))
    asm("s_cbranch_scc1 %s_p2c" % N)
    RT = 0; RTI = 1; touch = None
    def rt_block():
        nonlocal RT, RTI, touch
        RT = opts.get("rt", 0)
        RT0 = opts.get("rt0", 3)
        vTX, vTW = 222, 223
        sTX, sTW = 63, 68
        if RT:
            asm("s_mul_i32 %s, %s, 36" % (s(sT0), s(sSLOT)))
            asm("s_mul_i32 %s, %s, 9" % (s(sT1), s(sW4)))
            asm("s_add_u32 %s, %s, %s" % (s(sT0), s(sT0), s(sT1)))
            asm("v_add_u32 %s, %s, %s" % (v(vT), s(sT0), v(vL)))
            asm("s_lshr_b32 %s, %s, 1" % (s(sT1), s(sP8)))
            asm("s_and_b32 %s, %s, 1" % (s(sT1), s(sT1)))
            asm("s_lshl_b32 %s, %s, 10" % (s(sT1), s(sT1)))
            asm("v_add_u32 %s, %s, %s" % (v(vV), s(sT1), v(vT)))
            asm("v_mul_u32_u24 %s, 1280, %s" % (v(vTX), v(vV)))
            asm("v_lshrrev_b32 %s, 4, %s" % (v(vU), v(vT)))
            asm("v_mul_u32_u24 %s, 3840, %s" % (v(vU), v(vU)))
            asm("v_and_b32 %s, 15, %s" % (v(TMP), v(vT)))
            asm("v_lshl_add_u32 %s, %s, 7, %s" % (v(vU), v(TMP), v(vU)))
            asm("s_and_b32 %s, %s, 1" % (s(sT1), s(sP8)))
            asm("s_mul_i32 %s, %s, %d" % (s(sT1), s(sT1), 7 * 256))
            asm("v_add_u32 %s, %s, %s" % (v(vTW), s(sT1), v(vU)))
            asm("v_mov_b32 %s, 0x%x" % (v(TMP), OOB))
            asm("v_cmp_gt_u32 vcc, 1024, %s" % v(vT))
            asm("s_nop 1")
            asm("v_cndmask_b32 %s, %s, %s, vcc" % (v(vTX), v(TMP), v(vTX)))
            asm("v_cndmask_b32 %s, %s, %s, vcc" % (v(vTW), v(TMP), v(vTW)))
            asm("s_cmp_eq_u32 %s, 0" % s(sBR))
            asm("s_cselect_b32 s4, s36, s40")
            asm("s_cselect_b32 s5, s37, s41")
            srd(asm, SB_, "s4", "s5", 2048 * 1280)
            asm("s_cmp_eq_u32 %s, 0" % s(sBR))
            asm("s_cselect_b32 s4, s38, s42")
            asm("s_cselect_b32 s5, s39, s43")
            srd(asm, 64, "s4", "s5", 640 * 3840)
            asm("s_movk_i32 %s, %d" % (s(sTX), RT0 * 128))
            asm("s_mov_b32 %s, %d" % (s(sTW), RT0 * 64 * 3840))
        def touch_():
            asm("s_mov_b32 exec_lo, 0x1ff")
            asm("s_mov_b32 exec_hi, 0")
            asm("buffer_load_dword v199, %s, %s, %s offen" % (v(vTX), s(SB_, 4), s(sTX)))
            asm("buffer_load_dword v199, %s, s[64:67], %s offen" % (v(vTW), s(sTW)))
            asm("s_mov_b64 exec, -1")
            asm("s_add_u32 %s, %s, 128" % (s(sTX), s(sTX)))
            asm("s_add_u32 %s, %s, %d" % (s(sTW), s(sTW), 64 * 3840))
        RTI = opts.get("rtinit", 1)
        if RT and RTI == 1:
            for k in range(RT0, RT): touch_()
        if RT and RTI == 0:
            asm("s_movk_i32 %s, %d" % (s(sTX), RT * 128))
            asm("s_mov_b32 %s, %d" % (s(sTW), RT * 64 * 3840))
        touch = touch_
    lane(vL)
    if opts.get("rtearly", 0): rt_block()
    asm.c("X frag read addr")
    asm("v_and_b32 %s, 31, %s" % (v(vT), v(vL)))
    asm("s_lshl_b32 %s, %s, 7" % (s(sT0), s(sWM)))
    asm("v_add_u32 %s, %s, %s" % (v(vU), s(sT0), v(vT)))
    asm("v_lshlrev_b32 %s, 7, %s" % (v(vU), v(vU)))
    asm("v_bfe_u32 %s, %s, 1, 3" % (v(vT), v(vT)))
    asm("v_lshrrev_b32 %s, 5, %s" % (v(vV), v(vL)))
    for ks in range(4):
        asm("v_add_u32 %s, %d, %s" % (v(TMP), 2 * ks, v(vV)))
        asm("v_xor_b32 %s, %s, %s" % (v(TMP), v(TMP), v(vT)))
        asm("v_lshl_add_u32 %s, %s, 4, %s" % (v(vXA + ks), v(TMP), v(vU)))
    asm.c("W frag read addr")
    asm("v_bfe_u32 %s, %s, 2, 2" % (v(vT), v(vL)))
    asm("v_lshrrev_b32 %s, 5, %s" % (v(vU), v(vL)))
    asm("v_lshl_add_u32 %s, %s, 3, %s" % (v(vU), v(vU), v(vT)))
    asm("v_lshlrev_b32 %s, 8, %s" % (v(vU), v(vU)))
    asm("v_add_u32 %s, 32768, %s" % (v(vU), v(vU)))
    asm("v_and_b32 %s, 1, %s" % (v(vV), v(vL)))
    asm("v_lshl_add_u32 %s, %s, 3, %s" % (v(vU), v(vV), v(vU)))
    asm("v_bfe_u32 %s, %s, 4, 1" % (v(vV), v(vL)))
    asm("v_lshlrev_b32 %s, 1, %s" % (v(vV), v(vV)))
    asm("v_bfe_u32 %s, %s, 1, 1" % (v(TMP), v(vL)))
    asm("v_add_u32 %s, %s, %s" % (v(vV), v(vV), v(TMP)))
    asm("s_lshl_b32 %s, %s, 3" % (s(sT0), s(sWN)))
    asm("v_add_u32 %s, %s, %s" % (v(vV), s(sT0), v(vV)))
    asm("v_lshlrev_b32 %s, 2, %s" % (v(vT), v(vT)))
    for tn in range(2):
        asm("v_add_u32 %s, %d, %s" % (v(TMP), 4 * tn, v(vV)))
        asm("v_xor_b32 %s, %s, %s" % (v(TMP), v(TMP), v(vT)))
        asm("v_lshl_add_u32 %s, %s, 4, %s" % (v(vWA + tn), v(TMP), v(vU)))
    for i in range(128):
        asm("v_mov_b32 %s, 0" % v(ACC + i))
    asm("s_mul_i32 %s, %s, 3" % (s(sT0), s(sBR)))
    asm("s_add_u32 %s, %s, %s" % (s(sT0), s(sT0), s(sPART)))
    asm("s_mul_i32 %s, %s, %d" % (s(sT0), s(sT0), REG))
    asm("s_add_u32 s6, s6, %s" % s(sT0))
    asm("s_addc_u32 s7, s7, 0")
    SO = SA_
    srd(asm, SO, "s6", "s7", REG)
    def rdX(st_, tm, ks):
        asm("ds_read_b128 %s, %s offset:%d" % (v(FX[st_] + 4 * tm, 4), v(vXA + ks), tm * 4096))
    def rdW(st_, tn, a_, ks):
        asm("ds_read_b64_tr_b16 %s, %s offset:%d" % (v(FW[st_] + 4 * tn + 2 * a_, 2), v(vWA + tn), ks * 4096 + a_ * 1024))
    def reads(st_, ks):
        return [lambda: rdW(st_, 0, 0, ks), lambda: rdW(st_, 0, 1, ks), lambda: rdX(st_, 0, ks), lambda: rdX(st_, 1, ks),
                lambda: rdW(st_, 1, 0, ks), lambda: rdW(st_, 1, 1, ks), lambda: rdX(st_, 2, ks), lambda: rdX(st_, 3, ks)]
    MORD = [(0, 0), (1, 0), (0, 1), (1, 1), (2, 0), (2, 1), (3, 0), (3, 1)]
    def mfma(orient, st_, tm, tn):
        acc = v(ACC + (tm * 2 + tn) * 16, 16)
        x = v(FX[st_] + 4 * tm, 4); w = v(FW[st_] + 4 * tn, 4)
        if orient == "T": asm("v_mfma_f32_32x32x16_bf16 %s, %s, %s, %s" % (acc, w, x, acc))
        else: asm("v_mfma_f32_32x32x16_bf16 %s, %s, %s, %s" % (acc, x, w, acc))
    PF = opts.get("pf", 0)
    if PF:
        nst_ = 10 - PF
        per = (1024 * nst_ + 119) // 120
        assert per <= 64
        asm("s_lshl_b32 %s, %s, 2" % (s(sT0), s(sSLOT)))
        asm("s_add_u32 %s, %s, %s" % (s(sT0), s(sT0), s(sW4)))
        asm("s_mul_i32 %s, %s, %d" % (s(sT0), s(sT0), per))
        asm("v_add_u32 %s, %s, %s" % (v(vT), s(sT0), v(vL)))
        asm("v_lshrrev_b32 %s, 10, %s" % (v(vU), v(vT)))
        asm("v_and_b32 %s, 1023, %s" % (v(vV), v(vT)))
        asm("s_lshr_b32 %s, %s, 1" % (s(sT1), s(sP8)))
        asm("s_and_b32 %s, %s, 1" % (s(sT1), s(sT1)))
        asm("s_lshl_b32 %s, %s, 10" % (s(sT1), s(sT1)))
        asm("v_add_u32 %s, %s, %s" % (v(vV), s(sT1), v(vV)))
        asm("v_mul_u32_u24 %s, 1280, %s" % (v(vV), v(vV)))
        asm("v_lshl_add_u32 %s, %s, 7, %s" % (v(vV), v(vU), v(vV)))
        asm("v_add_u32 %s, %d, %s" % (v(vV), PF * 128, v(vV)))
        asm("v_lshrrev_b32 %s, 4, %s" % (v(vU), v(vT)))
        asm("v_add_u32 %s, %d, %s" % (v(vU), 64 * PF, v(vU)))
        asm("v_mul_u32_u24 %s, 3840, %s" % (v(vU), v(vU)))
        asm("v_and_b32 %s, 15, %s" % (v(TMP), v(vT)))
        asm("v_lshl_add_u32 %s, %s, 7, %s" % (v(vU), v(TMP), v(vU)))
        asm("s_and_b32 %s, %s, 1" % (s(sT1), s(sP8)))
        asm("s_mul_i32 %s, %s, %d" % (s(sT1), s(sT1), 7 * 256))
        asm("v_add_u32 %s, %s, %s" % (v(vU), s(sT1), v(vU)))
        asm("v_mov_b32 %s, 0x%x" % (v(TMP), OOB))
        asm("v_cmp_gt_u32 vcc, %d, %s" % (1024 * nst_, v(vT)))
        asm("v_cmp_gt_u32 %s, %d, %s" % (s(sPC, 2), per, v(vL)))
        asm("s_nop 1")
        asm("s_and_b64 vcc, vcc, %s" % s(sPC, 2))
        asm("s_nop 1")
        asm("v_cndmask_b32 %s, %s, %s, vcc" % (v(vV), v(TMP), v(vV)))
        asm("v_cndmask_b32 %s, %s, %s, vcc" % (v(vU), v(TMP), v(vU)))
        asm("s_cmp_eq_u32 %s, 0" % s(sBR))
        asm("s_cselect_b32 s4, s36, s40")
        asm("s_cselect_b32 s5, s37, s41")
        srd(asm, SB_, "s4", "s5", 2048 * 1280)
        asm("buffer_load_dword v199, %s, %s, 0 offen" % (v(vV), s(SB_, 4)))
        asm("s_cmp_eq_u32 %s, 0" % s(sBR))
        asm("s_cselect_b32 s4, s38, s42")
        asm("s_cselect_b32 s5, s39, s43")
        srd(asm, SB_, "s4", "s5", 640 * 3840)
        asm("buffer_load_dword v199, %s, %s, 0 offen" % (v(vU), s(SB_, 4)))
    if not opts.get("rtearly", 0): rt_block()
    asm("s_lshl_b32 %s, %s, 3" % (s(sT0), s(sRB)))
    asm("s_lshl_b32 %s, %s, 2" % (s(sT1), s(sWM)))
    asm("s_add_u32 %s, %s, %s" % (s(sT3), s(sT0), s(sT1)))
    sVAR = 59
    asm("s_mov_b32 %s, %s" % (s(sVAR), s(sPART)))
    asm("s_cmp_eq_u32 %s, 0" % s(sBR))
    asm("s_cbranch_scc1 %s_varok" % N)
    asm("s_cmp_eq_u32 %s, 2" % s(sPART))
    asm("s_cselect_b32 %s, 2, 3" % s(sVAR))
    asm.label("%s_varok" % N)
    asm("s_cmp_eq_u32 %s, 0" % s(sVAR))
    asm("s_cbranch_scc1 %s_adrT" % N)
    asm("s_cmp_eq_u32 %s, 3" % s(sVAR))
    asm("s_cbranch_scc1 %s_adrT" % N)
    asm("s_mul_i32 %s, %s, 40960" % (s(sT0), s(sT3)))
    asm("s_lshl_b32 %s, %s, 11" % (s(sT1), s(sCBP)))
    asm("s_add_u32 %s, %s, %s" % (s(sT0), s(sT0), s(sT1)))
    asm("s_lshl_b32 %s, %s, 10" % (s(sT1), s(sWN)))
    asm("s_add_u32 %s, %s, %s" % (s(sT0), s(sT0), s(sT1)))
    asm("v_lshrrev_b32 %s, 5, %s" % (v(vT), v(vL)))
    asm("v_mul_u32_u24 %s, 10240, %s" % (v(vT), v(vT)))
    asm("v_and_b32 %s, 31, %s" % (v(vU), v(vL)))
    asm("v_lshl_add_u32 %s, %s, 4, %s" % (v(vSO), v(vU), v(vT)))
    asm("v_add_u32 %s, %s, %s" % (v(vSO), s(sT0), v(vSO)))
    asm("s_movk_i32 %s, 512" % s(sTN))
    asm("s_movk_i32 %s, 20480" % s(sGG))
    asm("s_branch %s_adrok" % N)
    asm.label("%s_adrT" % N)
    asm("s_mul_i32 %s, %s, 40" % (s(sT0), s(sT3)))
    asm("s_lshl_b32 %s, %s, 3" % (s(sT1), s(sCBP)))
    asm("s_add_u32 %s, %s, %s" % (s(sT0), s(sT0), s(sT1)))
    asm("s_lshl_b32 %s, %s, 2" % (s(sT1), s(sWN)))
    asm("s_add_u32 %s, %s, %s" % (s(sT0), s(sT0), s(sT1)))
    asm("s_lshl_b32 %s, %s, 10" % (s(sT0), s(sT0)))
    asm("v_lshlrev_b32 %s, 4, %s" % (v(vSO), v(vL)))
    asm("v_add_u32 %s, %s, %s" % (v(vSO), s(sT0), v(vSO)))
    asm("s_movk_i32 %s, 2048" % s(sTN))
    asm("s_movk_i32 %s, 1024" % s(sGG))
    asm.label("%s_adrok" % N)
    asm("s_cmp_lt_u32 %s, 2" % s(sVAR))
    asm("s_cselect_b32 %s, %s, 1.0" % (s(sC0), fhex(LOG2E)))
    asm("s_cmp_eq_u32 %s, 3" % s(sVAR))
    asm("s_cbranch_scc0 %s_c0ok" % N)
    asm("s_cmp_eq_u32 %s, 0" % s(sPART))
    asm("s_cselect_b32 %s, %s, 1.0" % (s(sC0), fhex(QSCALE)))
    asm.label("%s_c0ok" % N)
    asm("s_mov_b32 %s, %s" % (s(sC0 + 1), s(sC0)))
    asm("s_mov_b32 %s, %s" % (s(sC1), fhex(1e-6)))
    asm("s_mov_b32 %s, 0" % s(sSTG))
    asm("s_mov_b32 %s, 0" % s(sRBUF))
    asm("s_mov_b32 %s, 0x%x" % (s(sNEG), (-2 * 49152) & 0xffffffff))
    asm("s_barrier")
    st(1)
    for f in reads(0, 0): f()
    if RT and RTI == 2:
        for k in range(3, RT): touch()
    asm("s_cmp_eq_u32 %s, 0" % s(sVAR))
    asm("s_cbranch_scc1 %s_loopT" % N)
    asm("s_cmp_eq_u32 %s, 3" % s(sVAR))
    asm("s_cbranch_scc0 %s_loopF" % N)
    def loop(orient):
        L = "%s_loop%s" % (N, orient)
        asm(".p2align 4")
        asm.label(L)
        for ks in range(4):
            st_ = ks & 1; nst_ = st_ ^ 1
            if ks == 3:
                asm("s_cbranch_scc1 %s_final%s" % (N, orient))
            asm("s_waitcnt lgkmcnt(0)")
            if ks < 3:
                rs = reads(nst_, ks + 1)
                for m in range(8):
                    mfma(orient, st_, *MORD[m])
                    if m < 4:
                        rs[2 * m](); rs[2 * m + 1]()
                    if RT and opts.get("rtroll", 1) and ks == 0 and m == 5:
                        D_ = lab("rt")
                        asm("s_cmp_lt_u32 %s, %d" % (s(sSTG), 10 - RT))
                        asm("s_cbranch_scc0 %s" % D_)
                        touch()
                        asm.label(D_)
                    if ks == 2 and m == 4:
                        asm("s_add_u32 %s, %s, 1" % (s(sRBUF), s(sRBUF)))
                        asm("s_cmp_eq_u32 %s, 3" % s(sRBUF))
                        asm("s_cselect_b32 %s, 0, %s" % (s(sRBUF), s(sRBUF)))
                        asm("s_cselect_b32 %s, %s, 49152" % (s(sDELTA), s(sNEG)))
                    if ks == 2 and m == 5:
                        for k in range(3): asm("v_add_u32 %s, %s, %s" % (v(vXA + k), s(sDELTA), v(vXA + k)))
                    if ks == 2 and m == 6:
                        asm("v_add_u32 %s, %s, %s" % (v(vXA + 3), s(sDELTA), v(vXA + 3)))
                        for k in range(2): asm("v_add_u32 %s, %s, %s" % (v(vWA + k), s(sDELTA), v(vWA + k)))
                        asm("s_add_u32 %s, %s, 1" % (s(sSTG), s(sSTG)))
                        asm("s_cmp_eq_u32 %s, 9" % s(sSTG))
            else:
                mfma(orient, st_, *MORD[0])
                mfma(orient, st_, *MORD[1])
                asm("s_barrier")
                rs = reads(nst_, 0)
                mfma(orient, st_, *MORD[2])
                rs[0](); rs[1](); rs[2]()
                mfma(orient, st_, *MORD[3])
                rs[3](); rs[4](); rs[5]()
                mfma(orient, st_, *MORD[4])
                rs[6](); rs[7]()
                mfma(orient, st_, *MORD[5])
                mfma(orient, st_, *MORD[6])
                mfma(orient, st_, *MORD[7])
        asm("s_branch %s" % L)
    loop("T")
    loop("F")
    WALL = 224
    XS = [FX[0], FX[1]]
    def epi_lines(kind, q):
        tm, tn = q >> 1, q & 1
        b = ACC + q * 16
        tb_ = TMP + 8 * (q & 1)
        L_ = []
        if kind == "phi":
            for qq in range(4):
                r0 = b + 4 * qq
                L_.append("v_pk_mul_f32 %s, %s, %s" % (v(TE, 2), v(r0, 2), s(sC0, 2)))
                L_.append("v_pk_mul_f32 %s, %s, %s" % (v(TE + 2, 2), v(r0 + 2, 2), s(sC0, 2)))
                for k in range(4): L_.append("v_exp_f32_e64 %s, %s clamp" % (v(TE + k), v(TE + k)))
                for k in range(4): L_.append("v_max_f32 %s, %s, %s" % (v(r0 + k), s(sC1), v(r0 + k)))
                L_.append("v_pk_add_f32 %s, %s, %s" % (v(r0, 2), v(r0, 2), v(TE, 2)))
                L_.append("v_pk_add_f32 %s, %s, %s" % (v(r0 + 2, 2), v(r0 + 2, 2), v(TE + 2, 2)))
                L_.append("v_cvt_pk_bf16_f32 %s, %s, %s" % (v(tb_ + 2 * qq), v(r0), v(r0 + 1)))
                L_.append("v_cvt_pk_bf16_f32 %s, %s, %s" % (v(tb_ + 2 * qq + 1), v(r0 + 2), v(r0 + 3)))
        else:
            if kind == "scale":
                for p_ in range(8): L_.append("v_pk_mul_f32 %s, %s, %s" % (v(b + 2 * p_, 2), v(b + 2 * p_, 2), s(sC0, 2)))
            for p_ in range(8): L_.append("v_cvt_pk_bf16_f32 %s, %s, %s" % (v(tb_ + p_), v(b + 2 * p_), v(b + 2 * p_ + 1)))
        L_.append("s_mul_i32 %s, %s, %d" % (s(sSO), s(sTN), tn))
        if tm: L_.append("s_add_u32 %s, %s, %d" % (s(sSO), s(sSO), tm * 40960))
        L_.append("buffer_store_dwordx4 %s, %s, %s, %s offen%s" % (v(tb_, 4), v(vSO), s(SO, 4), s(sSO), SC))
        L_.append("s_add_u32 %s, %s, %s" % (s(sSO), s(sSO), s(sGG)))
        L_.append("buffer_store_dwordx4 %s, %s, %s, %s offen%s" % (v(tb_ + 4, 4), v(vSO), s(SO, 4), s(sSO), SC))
        return L_
    def final(orient, kind, label):
        asm.label(label)
        sync_issue(vN, vN + 2)
        asm("s_waitcnt lgkmcnt(0)")
        mfma(orient, 1, *MORD[0])
        mfma(orient, 1, *MORD[1])
        asm("s_barrier")
        rd = []
        for ks in range(4):
            rd.append("ds_read_b128 %s, %s" % (v(XS[0] + 4 * ks, 4), v(vXA + ks)))
            for a_ in range(2):
                rd.append("ds_read_b64_tr_b16 %s, %s offset:%d" % (v(WALL + ks * 4 + 2 * a_, 2), v(vWA), ks * 4096 + a_ * 1024))
        for ks in range(4):
            for a_ in range(2):
                rd.append("ds_read_b64_tr_b16 %s, %s offset:%d" % (v(WALL + (4 + ks) * 4 + 2 * a_, 2), v(vWA + 1), ks * 4096 + a_ * 1024))
        per = [4, 4, 3, 3, 3, 3]
        pos = 0
        for m in range(2, 8):
            mfma(orient, 1, *MORD[m])
            for k in range(per[m - 2]):
                asm(rd[pos]); pos += 1
        assert pos == len(rd) == 20
        for q in range(8):
            tm, tn = q >> 1, q & 1
            xs = XS[tm & 1]
            if q == 0:
                asm("s_waitcnt lgkmcnt(8)")
            elif q == 1:
                asm("s_waitcnt lgkmcnt(4)")
            elif tn == 0:
                asm("s_waitcnt lgkmcnt(0)")
                if tm == 3: asm("s_barrier")
            ep = epi_lines(kind, q - 2) if q >= 2 else []
            if q == 2: ep = ["s_nop 7"] + ep
            chunk = (len(ep) + 3) // 4
            acc = v(ACC + q * 16, 16)
            for ks in range(4):
                x = v(xs + 4 * ks, 4); w = v(WALL + (tn * 4 + ks) * 4, 4)
                if orient == "T": asm("v_mfma_f32_32x32x16_bf16 %s, %s, %s, %s" % (acc, w, x, acc))
                else: asm("v_mfma_f32_32x32x16_bf16 %s, %s, %s, %s" % (acc, x, w, acc))
                if tn == 0 and tm < 3:
                    asm("ds_read_b128 %s, %s offset:%d" % (v(XS[(tm + 1) & 1] + 4 * ks, 4), v(vXA + ks), (tm + 1) * 4096))
                for ln in ep[ks * chunk:(ks + 1) * chunk]: asm(ln)
        st(2)
        for ln in epi_lines(kind, 6): asm(ln)
        for ln in epi_lines(kind, 7): asm(ln)
        asm("s_branch %s_fin1" % N)
    asm.label("%s_finalT" % N)
    asm("s_cmp_eq_u32 %s, 0" % s(sVAR))
    asm("s_cbranch_scc0 %s_fin_ts" % N)
    final("T", "phi", "%s_fin_tp" % N)
    final("T", "scale", "%s_fin_ts" % N)
    asm.label("%s_finalF" % N)
    asm("s_cmp_eq_u32 %s, 1" % s(sVAR))
    asm("s_cbranch_scc0 %s_fin_fn" % N)
    final("F", "phi", "%s_fin_fp" % N)
    final("F", "plain", "%s_fin_fn" % N)
    asm.label("%s_fin1" % N)
    asm("v_mov_b32 %s, 0x%x" % (v(vT), W_ISS))
    asm("v_mov_b32 %s, 1" % v(vU))
    asm("s_mov_b64 exec, 1")
    asm("ds_add_u32 %s, %s" % (v(vT), v(vU)))
    asm("s_mov_b64 exec, -1")
    st(3)
    get_sync(vN, vN + 2, preissued=True)
    release()
    asm("s_lshl_b32 %s, %s, 3" % (s(sT1), s(sBR)))
    asm("s_add_u32 %s, %s, %s" % (s(sT1), s(sT1), s(sRB)))
    asm("s_lshl_b32 %s, %s, 4" % (s(sT1), s(sT1)))
    asm("s_add_u32 %s, %s, %s" % (s(sT1), s(sT1), s(sCB)))
    asm("s_lshl_b32 %s, %s, 3" % (s(sT1), s(sT1)))
    asm("s_add_u32 %s, %s, %d" % (s(sT1), s(sT1), F1))
    lds_arrive(W_CNT1, 4, vN + 2, vN, s(sT1), replicas=REPL)
    st(4)
    asm("s_branch %s_p2setup" % N)
    asm.label("%s_p2c" % N)
    asm("s_barrier")
    get_sync(220, 222)
    asm("s_branch %s_p2setup" % N)

    asm.label("%s_p1h" % N)
    hL, hT, hU, hV = 2, 3, 4, 5
    vDX, vDW, hTMP = 8, 16, 20
    sXOFF, sWOFF, sM0X, sM0W, sDBUF, sHS = 52, 53, 54, 55, 56, 57
    SX, SWD = SA_, SB_
    asm("s_cmp_lt_u32 %s, 30" % s(sSLOT))
    asm("s_cbranch_scc1 %s_p1h2" % N)
    asm("s_barrier")
    asm("s_branch %s_p2h" % N)
    asm.label("%s_p1h2" % N)
    lane(hL)
    asm("v_lshrrev_b32 %s, 3, %s" % (v(hT), v(hL)))
    asm("s_lshl_b32 %s, %s, 6" % (s(sT0), s(sW4)))
    asm("v_add_u32 %s, %s, %s" % (v(hT), s(sT0), v(hT)))
    asm("s_movk_i32 %s, 1280" % s(sT1))
    asm("v_mul_lo_u32 %s, %s, %s" % (v(hT), v(hT), s(sT1)))
    asm("v_lshrrev_b32 %s, 4, %s" % (v(hU), v(hL)))
    asm("v_and_b32 %s, 7, %s" % (v(hV), v(hL)))
    for par in range(2):
        if par == 1: asm("v_add_u32 %s, 4, %s" % (v(hU), v(hU)))
        asm("v_xor_b32 %s, %s, %s" % (v(hTMP + par), v(hV), v(hU)))
        asm("v_lshl_add_u32 %s, %s, 4, %s" % (v(hTMP + par), v(hTMP + par), v(hT)))
    for i in range(8):
        asm("v_add_u32 %s, %d, %s" % (v(vDX + i), i * 8 * 1280 - (i & 3) * 1024, v(hTMP + (i & 1))))
    asm("v_lshrrev_b32 %s, 4, %s" % (v(hU), v(hL)))
    asm("s_lshl_b32 %s, %s, 4" % (s(sT0), s(sW4)))
    asm("v_add_u32 %s, %s, %s" % (v(hT), s(sT0), v(hU)))
    asm("s_movk_i32 %s, 3840" % s(sT1))
    asm("v_mul_lo_u32 %s, %s, %s" % (v(hT), v(hT), s(sT1)))
    asm("v_lshlrev_b32 %s, 2, %s" % (v(hU), v(hU)))
    asm("v_and_b32 %s, 15, %s" % (v(hV), v(hL)))
    asm("v_xor_b32 %s, %s, %s" % (v(hV), v(hV), v(hU)))
    asm("v_lshl_add_u32 %s, %s, 4, %s" % (v(hT), v(hV), v(hT)))
    for i in range(4):
        asm("v_add_u32 %s, %d, %s" % (v(vDW + i), i * 4 * 3840 - i * 1024, v(hT)))
    asm("s_cmp_eq_u32 %s, 0" % s(sBR))
    asm("s_cselect_b32 s36, s36, s40")
    asm("s_cselect_b32 s37, s37, s41")
    asm("s_cselect_b32 s38, s38, s42")
    asm("s_cselect_b32 s39, s39, s43")
    asm("s_mul_i32 %s, %s, %d" % (s(sT0), s(sRB), 256 * 1280))
    asm("s_add_u32 s36, s36, %s" % s(sT0))
    asm("s_addc_u32 s37, s37, 0")
    asm("s_lshl_b32 %s, %s, 8" % (s(sT0), s(sCB)))
    asm("s_add_u32 s38, s38, %s" % s(sT0))
    asm("s_addc_u32 s39, s39, 0")
    asm("s_sub_u32 %s, %d, %s" % (s(sT1), 640 * 3840, s(sT0)))
    srd(asm, SX, "s36", "s37", 256 * 1280)
    srd(asm, SWD, "s38", "s39", s(sT1))
    def dma_stage():
        asm("s_lshl_b32 %s, %s, 13" % (s(sT0), s(sW4)))
        asm("s_add_u32 %s, %s, %s" % (s(sM0X), s(sDBUF), s(sT0)))
        asm("s_lshl_b32 %s, %s, 12" % (s(sT0), s(sW4)))
        asm("s_add_u32 %s, %s, %s" % (s(sT0), s(sT0), s(sDBUF)))
        asm("s_add_u32 %s, %s, 32768" % (s(sM0W), s(sT0)))
        for idx in range(8):
            if idx == 0:
                asm("s_mov_b32 m0, %s" % s(sM0X)); asm("s_nop 0")
            if idx == 4:
                asm("s_add_u32 m0, %s, 4096" % s(sM0X)); asm("s_nop 0")
            asm("buffer_load_dwordx4 %s, %s, %s offen offset:%d lds" % (v(vDX + idx), s(SX, 4), s(sXOFF), (idx & 3) * 1024))
        asm("s_mov_b32 m0, %s" % s(sM0W)); asm("s_nop 0")
        for j in range(4):
            asm("buffer_load_dwordx4 %s, %s, %s offen offset:%d lds" % (v(vDW + j), s(SWD, 4), s(sWOFF), j * 1024))
        asm("s_add_u32 %s, %s, 128" % (s(sXOFF), s(sXOFF)))
        asm("s_add_u32 %s, %s, %d" % (s(sWOFF), s(sWOFF), 64 * 3840))
        asm("s_add_u32 %s, %s, 49152" % (s(sDBUF), s(sDBUF)))
        asm("s_cmp_ge_u32 %s, %d" % (s(sDBUF), 3 * 49152))
        asm("s_cselect_b32 %s, 0, %s" % (s(sDBUF), s(sDBUF)))
    WARM = opts.get("warm", 3)
    if WARM:
        asm("s_load_dwordx2 s[4:5], s[0:1], 16")
        asm("s_load_dwordx2 s[6:7], s[0:1], 40")
        asm("s_lshl_b32 s58, %s, 2" % s(sSLOT))
        asm("s_add_u32 s58, s58, %s" % s(sW4))
        asm("s_mul_i32 s58, s58, %d" % (54 * 128))
        asm("v_lshlrev_b32 v6, 7, %s" % v(hL))
    asm("s_mov_b32 %s, 0" % s(sXOFF))
    asm("s_mov_b32 %s, 0" % s(sWOFF))
    asm("s_mov_b32 %s, 0" % s(sDBUF))
    asm("s_mov_b32 %s, 0" % s(sHS))
    pro = opts.get("pro", 2)
    Lp = "%s_hpro" % N
    asm.label(Lp)
    dma_stage()
    asm("s_add_u32 %s, %s, 1" % (s(sHS), s(sHS)))
    asm("s_cmp_eq_u32 %s, %d" % (s(sHS), pro))
    asm("s_cbranch_scc0 %s_hpro_n" % N)
    st(3)
    asm("s_waitcnt vmcnt(%d)" % (12 * (pro - 1)))
    st(1)
    asm("s_barrier")
    asm.label("%s_hpro_n" % N)
    asm("s_cmp_lt_u32 %s, 3" % s(sHS))
    asm("s_cbranch_scc1 %s" % Lp)
    asm("s_mov_b32 %s, 0" % s(sHS))
    Lh = "%s_hloop" % N
    asm.label(Lh)
    asm("s_cmp_lt_u32 %s, 8" % s(sHS))
    asm("s_cbranch_scc1 %s_hw12" % N)
    asm("s_waitcnt vmcnt(0)")
    asm("s_branch %s_hw" % N)
    asm.label("%s_hw12" % N)
    asm("s_waitcnt vmcnt(12)")
    asm.label("%s_hw" % N)
    asm("s_barrier")
    asm("s_cmp_lt_u32 %s, 7" % s(sHS))
    asm("s_cbranch_scc0 %s_hnodma" % N)
    dma_stage()
    if WARM:
        asm("s_cmp_eq_u32 %s, %d" % (s(sHS), WARM - 1))
        asm("s_cbranch_scc0 %s_hnodma" % N)
        asm("s_waitcnt lgkmcnt(0)")
        asm("s_cmp_lt_u32 %s, 4" % s(sP8))
        asm("s_cselect_b32 s4, s4, s6")
        asm("s_cselect_b32 s5, s5, s7")
        srd(asm, 60, "s4", "s5", 640 * 1280)
        asm("s_mov_b32 exec_lo, -1")
        asm("s_mov_b32 exec_hi, 0x3fffff")
        asm("buffer_load_dword v7, v6, s[60:63], s58 offen")
        asm("s_mov_b64 exec, -1")
        if opts.get("ft", 0):
            asm("s_cmp_eq_u32 %s, 0" % s(sW4))
            asm("s_cbranch_scc0 %s_hnodma" % N)
            asm("s_lshl_b32 %s, %s, 2" % (s(sT0), s(sP8)))
            asm("s_and_b32 %s, %s, 3" % (s(sT1), s(sSLOT)))
            asm("s_add_u32 %s, %s, %s" % (s(sT0), s(sT0), s(sT1)))
            asm("s_and_b32 %s, %s, %d" % (s(sT0), s(sT0) if opts.get("repl", 8) > 8 else s(sP8), opts.get("repl", 8) - 1))
            asm("s_lshl_b32 %s, %s, 11" % (s(sT0), s(sT0)))
            asm("s_add_u32 %s, %s, %d" % (s(sT0), s(sT0), F1))
            asm("s_lshr_b32 %s, %s, 2" % (s(sT1), s(sSLOT)))
            asm("s_lshl_b32 %s, %s, 7" % (s(sT1), s(sT1)))
            asm("s_add_u32 %s, %s, %s" % (s(sT0), s(sT0), s(sT1)))
            asm("v_lshlrev_b32 v23, 3, %s" % v(hL))
            asm("v_add_u32 v22, %s, v23" % s(sT0))
            asm("v_subrev_u32 v22, 256, v22")
            asm("s_add_u32 %s, %s, %d" % (s(sT0), s(sT0), 7 * 128))
            asm("v_add_u32 v23, %s, v23" % s(sT0))
            asm("v_cmp_gt_u32 vcc, 32, %s" % v(hL))
            asm("s_nop 1")
            asm("v_cndmask_b32 v23, v22, v23, vcc")
            asm("s_mov_b32 exec_lo, -1")
            asm("s_mov_b32 exec_hi, 0xffff")
            asm("buffer_load_dword v24, v23, %s, 0 offen sc1" % s(SWS, 4))
            asm("s_mov_b64 exec, -1")
    asm.label("%s_hnodma" % N)
    asm("s_add_u32 %s, %s, 1" % (s(sHS), s(sHS)))
    asm("s_cmp_lt_u32 %s, 10" % s(sHS))
    asm("s_cbranch_scc1 %s" % Lh)
    asm.label("%s_p2h" % N)
    st(2)
    sBR3, sRB3, sCB3 = 64, 65, 66
    def decode3():
        if not D1:
            asm("s_lshr_b32 %s, %s, 4" % (s(sBR3), s(sSLOT)))
            asm("s_bfe_u32 %s, %s, 0x10003" % (s(sRB3), s(sSLOT)))
            asm("s_lshl_b32 %s, %s, 1" % (s(sT0), s(sP8)))
            asm("s_add_u32 %s, %s, %s" % (s(sRB3), s(sRB3), s(sT0)))
            asm("s_and_b32 %s, %s, 7" % (s(sCB3), s(sSLOT)))
        else:
            asm("s_lshr_b32 %s, %s, 2" % (s(sBR3), s(sP8)))
            asm("s_and_b32 %s, %s, 3" % (s(sT0), s(sP8)))
            asm("s_lshl_b32 %s, %s, 2" % (s(sT0), s(sT0)))
            asm("s_lshr_b32 %s, %s, 3" % (s(sRB3), s(sSLOT)))
            asm("s_add_u32 %s, %s, %s" % (s(sRB3), s(sRB3), s(sT0)))
            asm("s_and_b32 %s, %s, 7" % (s(sCB3), s(sSLOT)))
    get_sync(220, 222)
    sHH, sRB2, sG0, sDQ, sTB, sNT = 44, 45, 46, 47, 48, 49
    sMSK, sM40 = 50, 52
    sP = 36
    sQM = 54
    sOffO, sOffQA, sBIG, sEPS = 62, 63, 67, 68
    S = 0; O = 144; Q = 160; F = [168, 176]; CM8 = 184; CM0 = 200; VF = [184, 192]
    vM, vNM = 216, 218
    vT = 220
    vLin, vKa, vVa, vL = 228, 229, 230, 231
    vOm, vOr, vFo, vU = 232, 233, 234, 235
    PB = 236
    PA = 168
    vL8 = 242
    AW = 4
    asm.label("%s_p2setup" % N)
    if not D1:
        asm("s_mov_b32 %s, %s" % (s(sHH), s(sSLOT)))
        asm("s_mov_b32 %s, %s" % (s(sRB2), s(sP8)))
    else:
        asm("s_lshl_b32 %s, %s, 2" % (s(sT0), s(sP8)))
        asm("s_and_b32 %s, %s, 3" % (s(sHH), s(sSLOT)))
        asm("s_add_u32 %s, %s, %s" % (s(sHH), s(sHH), s(sT0)))
        asm("s_lshr_b32 %s, %s, 2" % (s(sRB2), s(sSLOT)))
    asm("s_mul_i32 %s, %s, 5" % (s(sT0), s(sHH)))
    asm("s_lshr_b32 %s, %s, 2" % (s(sG0), s(sT0)))
    asm("s_and_b32 %s, %s, 3" % (s(sDQ), s(sT0)))
    asm("s_lshl_b32 %s, %s, 3" % (s(sTB), s(sRB2)))
    asm("s_add_u32 %s, %s, %s" % (s(sTB), s(sTB), s(sW)))
    asm("s_add_u32 %s, %s, 1" % (s(sNT), s(sTB)))
    asm("s_min_u32 %s, %s, 9" % (s(sNT), s(sNT)))
    asm("s_mov_b32 %s, 0x000fffff" % s(sMSK)); asm("s_mov_b32 %s, 0x000fffff" % s(sMSK + 1))
    asm("s_mov_b32 %s, -1" % s(sM40)); asm("s_mov_b32 %s, 0xff" % s(sM40 + 1))
    lane(vL)
    asm("v_lshlrev_b32 %s, 3, %s" % (v(vL8), v(vL)))
    asm("v_lshlrev_b32 %s, 4, %s" % (v(vLin), v(vL)))
    asm("s_mov_b32 %s, %s" % (s(sBIG), fhex(BIG)))
    asm("v_and_b32 %s, 31, %s" % (v(vU), v(vL)))
    asm("v_lshrrev_b32 %s, 5, %s" % (v(vT + 4), v(vL)))
    asm("v_lshlrev_b32 %s, 2, %s" % (v(vT + 4), v(vT + 4)))
    asm("v_sub_u32 %s, %s, %s" % (v(vU), v(vU), v(vT + 4)))
    asm("v_mov_b32 %s, %s" % (v(vT + 5), s(sBIG)))
    asm("v_mov_b32 %s, 0" % v(vT + 6))
    for r0 in range(0, 16, 4):
        for k in range(4):
            r = r0 + k
            asm("v_cmp_le_i32 %s, %d, %s" % (s(sP + 2 * k, 2), 8 * (r >> 2) + (r & 3), v(vU)))
        asm("s_nop 1")
        for k in range(4):
            r = r0 + k
            asm("v_cndmask_b32 %s, %s, %s, %s" % (v(CM8 + r), v(vT + 5), v(vT + 6), s(sP + 2 * k, 2)))
            asm("v_cndmask_b32 %s, %s, %s, %s" % (v(CM0 + r), v(vT + 6), v(vT + 5), s(sP + 2 * k, 2)))
    for gg in range(2):
        for p in range(2):
            k = gg * 2 + p
            for h in range(2):
                asm("s_sub_u32 %s, %d, %s" % (s(sT0), 4 * gg + 2 * p + h, s(sDQ)))
                asm("s_cmp_le_u32 %s, 4" % s(sT0))
                asm("s_cselect_b32 %s, -1, 0" % s(sQM + 2 * k + h))
    asm("s_lshl_b32 %s, %s, 11" % (s(sT0), s(sW)))
    asm("s_add_u32 %s, %s, %d" % (s(sT0), s(sT0), L_K))
    asm("v_add_u32 %s, %s, %s" % (v(vKa), s(sT0), v(vLin)))
    asm("v_lshrrev_b32 %s, 5, %s" % (v(vT), v(vL)))
    asm("v_mul_u32_u24 %s, 20, %s" % (v(vT), v(vT)))
    asm("v_and_b32 %s, 31, %s" % (v(vU), v(vL)))
    asm("v_add_u32 %s, %s, %s" % (v(vT), v(vT), v(vU)))
    asm("v_lshlrev_b32 %s, 4, %s" % (v(vT), v(vT)))
    asm("s_mul_i32 %s, %s, 1280" % (s(sT0), s(sW)))
    asm("s_add_u32 %s, %s, %d" % (s(sT0), s(sT0), L_V))
    asm("v_add_u32 %s, %s, %s" % (v(vVa), s(sT0), v(vT)))
    asm("s_lshl_b32 %s, %s, 5" % (s(sT0), s(sTB)))
    asm("s_add_u32 %s, %s, %s" % (s(sT0), s(sT0), s(sHH)))
    asm("s_mul_i32 %s, %s, 1280" % (s(sOffO), s(sT0)))
    asm("v_mov_b32 %s, %s" % (v(vOm), v(vLin)))
    asm("v_add_u32 %s, 1024, %s" % (v(vOr), v(vL8)))
    asm("v_mov_b32 %s, 0x%x" % (v(vT + 4), OOB))
    asm("v_cmp_gt_u32 vcc, 32, %s" % v(vL))
    asm("s_nop 1")
    asm("v_cndmask_b32 %s, %s, %s, vcc" % (v(vOr), v(vT + 4), v(vOr)))
    asm("s_mul_i32 %s, %s, 40" % (s(sT2), s(sTB)))
    asm("s_add_u32 %s, %s, %s" % (s(sT2), s(sT2), s(sG0)))
    asm("s_lshl_b32 %s, %s, 10" % (s(sT2), s(sT2)))
    asm("s_add_u32 %s, %s, %d" % (s(sOffQA), s(sT2), R_QA))
    def q_loads():
        asm("s_add_u32 %s, %s, %d" % (s(sT3), s(sOffQA), R_QB - R_QA))
        asm("buffer_load_dwordx4 %s, %s, %s, %s offen sc1" % (v(Q, 4), v(vLin), s(SWS, 4), s(sT3)))
        asm("buffer_load_dwordx4 %s, %s, %s, %s offen offset:1024 sc1" % (v(Q + 4, 4), v(vLin), s(SWS, 4), s(sT3)))
    FINE = opts.get("fine", 1)
    def tile_masks():
        asm("s_lshr_b32 %s, %s, 3" % (s(sT1), s(sG0)))
        asm("s_lshl_b32 %s, 1, %s" % (s(sT1), s(sT1)))
        asm("s_add_u32 %s, %s, 1" % (s(sT2), s(sG0)))
        asm("s_lshr_b32 %s, %s, 3" % (s(sT2), s(sT2)))
        asm("s_lshl_b32 %s, 1, %s" % (s(sT2), s(sT2)))
        asm("s_or_b32 %s, %s, %s" % (s(sT1), s(sT1), s(sT2)))
        asm("s_mul_i32 %s, %s, 20" % (s(sT3), s(sHH)))
        asm("s_lshr_b32 %s, %s, 7" % (s(sT2), s(sT3)))
        asm("s_lshl_b32 %s, 1, %s" % (s(sT2), s(sT2)))
        asm("s_add_u32 %s, %s, 19" % (s(sT3), s(sT3)))
        asm("s_lshr_b32 %s, %s, 7" % (s(sT3), s(sT3)))
        asm("s_lshl_b32 %s, 1, %s" % (s(sT3), s(sT3)))
        asm("s_or_b32 %s, %s, %s" % (s(sT2), s(sT2), s(sT3)))
    def own_tile_wait():
        D = lab("otw")
        asm("s_cmp_ge_u32 %s, 30" % s(sSLOT))
        asm("s_cbranch_scc1 %s" % D)
        lds_wait(W_CNT1, vT, vT + 1, atleast=4)
        asm.label(D)
    def lds_inc(word):
        asm("v_mov_b32 %s, 0x%x" % (v(vT), word))
        asm("v_mov_b32 %s, 1" % v(vT + 1))
        asm("s_mov_b64 exec, 1")
        asm("ds_add_u32 %s, %s" % (v(vT), v(vT + 1)))
        asm("s_mov_b64 exec, -1")
    if opts.get("pad", 0):
        asm("s_mov_b64 exec, 0")
        for k in range(8):
            asm("s_cmp_eq_u32 %s, %d" % (s(sW), (k + 4) & 7))
            asm("s_cbranch_scc1 %s_padseg%d" % (N, k))
        asm.label("%s_walkret" % N)
        asm("s_mov_b64 exec, -1")
    asm("s_cmp_eq_u32 %s, %d" % (s(sW), AW))
    asm("s_cbranch_scc1 %s_aearly" % N)
    asm("s_cmp_eq_u32 %s, 5" % s(sW))
    asm("s_cbranch_scc1 %s_w5" % N)
    asm("s_cmp_ge_u32 %s, 6" % s(sW))
    asm("s_cbranch_scc1 %s_w67" % N)
    sTK, sKO, sLK, sIk = 4, 5, 6, 7
    lds_wait(W_S1, vT, vT + 1)
    st(4) if opts.get("kvst") else None
    asm("s_lshl_b32 %s, %s, 2" % (s(sIk), s(sW)))
    asm("s_cmp_eq_u32 %s, 0" % s(sRB2))
    asm("s_cselect_b32 %s, 8, 0" % s(sT0))
    asm("s_cmp_lt_u32 %s, %s" % (s(sIk), s(sT0)))
    asm("s_cbranch_scc1 %s_nok" % N)
    asm("s_lshl_b32 %s, %s, 3" % (s(sTK), s(sRB2)))
    asm("s_add_u32 %s, %s, %s" % (s(sTK), s(sTK), s(sIk)))
    asm("s_sub_u32 %s, %s, 8" % (s(sTK), s(sTK)))
    asm("s_mul_i32 %s, %s, 40" % (s(sKO), s(sTK)))
    asm("s_add_u32 %s, %s, %s" % (s(sKO), s(sKO), s(sG0)))
    asm("s_lshl_b32 %s, %s, 10" % (s(sKO), s(sKO)))
    asm("s_add_u32 %s, %s, %d" % (s(sKO), s(sKO), R_KB))
    asm("s_lshl_b32 %s, %s, 11" % (s(sLK), s(sIk)))
    asm("s_add_u32 %s, %s, %d" % (s(sLK), s(sLK), L_K))
    for ii in range(4):
        asm("s_add_u32 m0, %s, %d" % (s(sLK), ii * 2048))
        asm("s_nop 0")
        asm("buffer_load_dwordx4 %s, %s, %s offen sc1 lds" % (v(vLin), s(SWS, 4), s(sKO)))
        asm("buffer_load_dwordx4 %s, %s, %s offen offset:1024 sc1 lds" % (v(vLin), s(SWS, 4), s(sKO)))
        if ii < 3: asm("s_add_u32 %s, %s, 40960" % (s(sKO), s(sKO)))
    asm.label("%s_nok" % N)
    q_loads()
    asm("s_waitcnt vmcnt(0)")
    lds_inc(W_K)
    asm("s_branch %s_kwait" % N)
    asm.label("%s_w67" % N)
    vDWO = 243
    sDA, sDM = 4, 5
    SWO = SA_
    decode3()
    asm("s_load_dwordx2 s[4:5], s[0:1], 16")
    asm("s_load_dwordx2 s[6:7], s[0:1], 40")
    asm("s_movk_i32 %s, 6554" % s(sT2))
    asm("s_movk_i32 %s, 1280" % s(sT3))
    for b in range(5):
        asm("v_add_u32 %s, %d, %s" % (v(vT), 64 * b, v(vL)))
        asm("v_mul_lo_u32 %s, %s, %s" % (v(vT + 1), v(vT), s(sT2)))
        asm("v_lshrrev_b32 %s, 16, %s" % (v(vT + 1), v(vT + 1)))
        asm("v_mul_u32_u24 %s, 10, %s" % (v(vT + 2), v(vT + 1)))
        asm("v_sub_u32 %s, %s, %s" % (v(vT), v(vT), v(vT + 2)))
        asm("v_lshlrev_b32 %s, 4, %s" % (v(vT), v(vT)))
        asm("v_mad_u32_u24 %s, %s, %s, %s" % (v(vDWO + b), v(vT + 1), s(sT3), v(vT)))
        if 0 < b < 4: asm("v_subrev_u32 %s, %d, %s" % (v(vDWO + b), b * 1024, v(vDWO + b)))
    asm("s_waitcnt lgkmcnt(0)")
    asm("s_cmp_eq_u32 %s, 0" % s(sBR3))
    asm("s_cselect_b32 s4, s4, s6")
    asm("s_cselect_b32 s5, s5, s7")
    asm("s_mul_i32 %s, %s, 160" % (s(sT0), s(sCB3)))
    asm("s_add_u32 s4, s4, %s" % s(sT0))
    asm("s_addc_u32 s5, s5, 0")
    asm("s_sub_u32 %s, %d, %s" % (s(sT1), 640 * 1280, s(sT0)))
    srd(asm, SWO, "s4", "s5", s(sT1))
    asm("s_and_b32 %s, %s, 1" % (s(sT0), s(sW)))
    asm("s_mul_i32 %s, %s, %d" % (s(sDA), s(sT0), 32 * 1280))
    asm("s_mul_i32 %s, %s, 5120" % (s(sDM), s(sT0)))
    def wo_group():
        asm("s_mov_b32 m0, %s" % s(sDM)); asm("s_nop 0")
        asm("buffer_load_dwordx4 %s, %s, %s offen lds" % (v(vDWO), s(SWO, 4), s(sDA)))
        for b in range(1, 4):
            asm("buffer_load_dwordx4 %s, %s, %s offen offset:%d lds" % (v(vDWO + b), s(SWO, 4), s(sDA), b * 1024))
        asm("s_add_u32 m0, %s, 4096" % s(sDM)); asm("s_nop 0")
        asm("buffer_load_dwordx4 %s, %s, %s offen lds" % (v(vDWO + 4), s(SWO, 4), s(sDA)))
        asm("s_add_u32 %s, %s, %d" % (s(sDA), s(sDA), 2 * 32 * 1280))
        asm("s_add_u32 %s, %s, %d" % (s(sDM), s(sDM), 2 * 5120))
    asm("s_cmp_ge_u32 %s, 30" % s(sSLOT))
    asm("s_cbranch_scc1 %s_wogo" % N)
    lds_wait(W_ISS, vT, vT + 1, atleast=4)
    asm.label("%s_wogo" % N)
    asm("s_mov_b32 s6, 0")
    asm.label("%s_woloop" % N)
    wo_group()
    asm("s_add_u32 s6, s6, 1")
    asm("s_cmp_lt_u32 s6, 10")
    asm("s_cbranch_scc1 %s_woloop" % N)
    lds_wait(W_S1, vT, vT + 1)
    asm("s_waitcnt vmcnt(30)")
    q_loads()
    asm("v_cmp_le_u32 vcc, 20, %s" % v(vL))
    asm("v_mov_b32 %s, 0" % v(vT))
    asm("v_mov_b32 %s, %d" % (v(vT + 1), 10240 - 320))
    asm("v_cndmask_b32 %s, %s, %s, vcc" % (v(vT), v(vT), v(vT + 1)))
    asm("v_add_u32 %s, %s, %s" % (v(vFo), v(vT), v(vLin)))
    asm("s_and_b32 %s, %s, 1" % (s(sIk), s(sW)))
    asm("s_lshl_b32 %s, %s, 3" % (s(sIk), s(sIk)))
    asm("s_or_b32 %s, %s, %s" % (s(sT0), s(sIk), s(sRB2)))
    asm("s_cmp_eq_u32 %s, 0" % s(sT0))
    asm("s_cbranch_scc1 %s_nov" % N)
    asm("s_lshl_b32 %s, %s, 3" % (s(sTK), s(sRB2)))
    asm("s_add_u32 %s, %s, %s" % (s(sTK), s(sTK), s(sIk)))
    asm("s_sub_u32 %s, %s, 8" % (s(sTK), s(sTK)))
    asm("s_mul_i32 %s, %s, 40960" % (s(sKO), s(sTK)))
    asm("s_mul_i32 %s, %s, 320" % (s(sT1), s(sHH)))
    asm("s_add_u32 %s, %s, %s" % (s(sKO), s(sKO), s(sT1)))
    asm("s_add_u32 %s, %s, %d" % (s(sKO), s(sKO), R_VB))
    asm("s_mul_i32 %s, %s, 1280" % (s(sLK), s(sIk)))
    asm("s_add_u32 %s, %s, %d" % (s(sLK), s(sLK), L_V))
    asm("s_mov_b64 exec, %s" % s(sM40, 2))
    for ii in range(8):
        asm("s_add_u32 m0, %s, %d" % (s(sLK), ii * 1280))
        asm("s_add_u32 %s, %s, %d" % (s(sT1), s(sKO), 20480 - 640))
        asm("buffer_load_dwordx4 %s, %s, %s offen sc1 lds" % (v(vFo), s(SWS, 4), s(sKO)))
        asm("buffer_load_dwordx4 %s, %s, %s offen offset:640 sc1 lds" % (v(vFo), s(SWS, 4), s(sT1)))
        if ii < 7: asm("s_add_u32 %s, %s, 40960" % (s(sKO), s(sKO)))
    asm("s_mov_b64 exec, -1")
    asm("s_waitcnt vmcnt(16)")
    asm("s_branch %s_kwait" % N)
    asm.label("%s_nov" % N)
    asm("s_waitcnt vmcnt(0)")
    asm("s_branch %s_kwait" % N)
    asm.label("%s_w5" % N)
    own_tile_wait()
    asm("s_add_u32 %s, %s, 7" % (s(sT0), s(sRB2)))
    asm("s_lshl_b32 %s, %s, 7" % (s(sT0), s(sT0)))
    asm("s_and_b32 %s, %s, %d" % (s(sT1), s(sP8) if REPL <= 8 else s(sHH), REPL - 1))
    asm("s_lshl_b32 %s, %s, 11" % (s(sT1), s(sT1)))
    asm("s_add_u32 %s, %s, %s" % (s(sT0), s(sT0), s(sT1)))
    asm("s_add_u32 %s, %s, %d" % (s(sPL), s(sT0), F1))
    if FINE:
        tile_masks()
        asm("s_lshl_b32 %s, %s, 5" % (s(sT3), s(sT1)))
        asm("s_lshl_b32 %s, %s, 10" % (s(sT2), s(sT2)))
        asm("s_or_b32 %s, %s, %s" % (s(sT3), s(sT3), s(sT2)))
        asm("s_or_b32 %s, %s, %s" % (s(sT1), s(sT1), s(sT3)))
        asm("s_lshl_b32 %s, %s, 16" % (s(sT1), s(sT1)))
        asm("s_cmp_eq_u32 %s, 0" % s(sRB2))
        asm("s_cselect_b32 %s, 0, %s" % (s(sT3), s(sT3)))
        asm("s_or_b32 %s, %s, %s" % (s(sT1), s(sT1), s(sT3)))
    else:
        asm("s_cmp_eq_u32 %s, 0" % s(sRB2))
        asm("s_cselect_b32 %s, 0, 0x7fe0" % s(sT1))
        asm("s_or_b32 %s, %s, 0x7fff0000" % (s(sT1), s(sT1)))
    if opts.get("ppoll", 0): ppoll(s(sPL), 32, [244, 246, 248], vL8, smask=s(sT1))
    else: poll(s(sPL), 32, vT, vL8, smask=s(sT1))
    lds_set(W_S1, vT, vT + 1)
    st(4)
    q_loads()
    asm("s_waitcnt vmcnt(0)")
    asm("s_branch %s_kwait" % N)
    asm.label("%s_aearly" % N)
    asm("v_lshrrev_b32 %s, 5, %s" % (v(vT), v(vL)))
    asm("v_mul_u32_u24 %s, 10240, %s" % (v(vT), v(vT)))
    asm("v_and_b32 %s, 31, %s" % (v(vU), v(vL)))
    asm("v_lshl_add_u32 %s, %s, 4, %s" % (v(vFo), v(vU), v(vT)))
    asm("v_mov_b32 %s, 0x3f803f80" % v(vT + 2))
    for r in range(64, 128): asm("v_mov_b32 %s, %s" % (v(r), v(vT + 2)))
    own_tile_wait()
    asm("s_lshl_b32 %s, %s, 7" % (s(sT0), s(sRB2)))
    asm("s_and_b32 %s, %s, %d" % (s(sT1), s(sP8) if REPL <= 8 else s(sHH), REPL - 1))
    asm("s_lshl_b32 %s, %s, 11" % (s(sT1), s(sT1)))
    asm("s_add_u32 %s, %s, %s" % (s(sT0), s(sT0), s(sT1)))
    asm("s_add_u32 %s, %s, %d" % (s(sPL), s(sT0), F1))
    if FINE:
        tile_masks()
        asm("s_lshl_b32 %s, %s, 5" % (s(sT3), s(sT2)))
        asm("s_lshl_b32 %s, %s, 10" % (s(sT2), s(sT2)))
        asm("s_or_b32 %s, %s, %s" % (s(sT1), s(sT1), s(sT3)))
        asm("s_or_b32 %s, %s, %s" % (s(sT1), s(sT1), s(sT2)))
        if opts.get("ppoll", 0): ppoll(s(sPL), 15, [244, 246, 248], vL8, smask=s(sT1))
        else: poll(s(sPL), 15, vT, vL8, smask=s(sT1))
    else:
        poll(s(sPL), 15, vT, vL8)
    lds_set(W_S1A, vT, vT + 1)
    st(4)
    asm("s_lshl_b32 %s, %s, 3" % (s(sT0), s(sRB2)))
    asm("s_mul_i32 %s, %s, 40960" % (s(sT0), s(sT0)))
    asm("s_mul_i32 %s, %s, 320" % (s(sT1), s(sHH)))
    asm("s_add_u32 %s, %s, %s" % (s(sT0), s(sT0), s(sT1)))
    asm("s_add_u32 %s, %s, %d" % (s(sT1), s(sT0), R_KA))
    asm("s_add_u32 %s, %s, %d" % (s(sT2), s(sT0), R_VA))
    asm("s_mov_b64 exec, %s" % s(sMSK, 2))
    for b in range(8):
        for m in range(2):
            asm("buffer_load_dwordx4 %s, %s, %s, %s offen sc1" % (v((b * 2 + m) * 4, 4), v(vFo), s(SWS, 4), s(sT1)))
            asm("buffer_load_dwordx4 %s, %s, %s, %s offen sc1" % (v(64 + (b * 2 + m) * 4, 4), v(vFo), s(SWS, 4), s(sT2)))
            asm("s_add_u32 %s, %s, 20480" % (s(sT1), s(sT1)))
            asm("s_add_u32 %s, %s, 20480" % (s(sT2), s(sT2)))
    asm("s_mov_b64 exec, -1")
    lds_wait(W_S1, vT, vT + 1)
    q_loads()
    for b in range(16):
        asm("s_waitcnt vmcnt(%d)" % (32 - 2 * b))
        c = "0" if b == 0 else v(O, 16)
        asm("v_mfma_f32_32x32x16_bf16 %s, %s, %s, %s" % (v(O, 16), v(b * 4, 4), v(64 + b * 4, 4), c))
    asm("s_lshl_b32 %s, %s, 3" % (s(sT0), s(sHH)))
    asm("s_add_u32 %s, %s, %s" % (s(sT0), s(sT0), s(sRB2)))
    asm("s_mul_i32 %s, %s, 3072" % (s(sT0), s(sT0)))
    asm("s_add_u32 %s, %s, %d" % (s(sT0), s(sT0), R_KVP))
    asm("s_nop 7"); asm("s_nop 1")
    for j in range(3):
        asm("buffer_store_dwordx4 %s, %s, %s, %s offen offset:%d sc1" % (v(O + 4 * j, 4), v(vLin), s(SWS, 4), s(sT0), j * 1024))
    asm("s_waitcnt vmcnt(3)")
    asm.label("%s_kwait" % N)
    asm(";PADBEGIN")
    lds_wait(W_K, vT, vT + 1, atleast=4)
    st(5)
    PRIO = opts.get("prio", 0)
    if PRIO:
        asm("s_cmp_%s_u32 %s, 4" % ("lt" if PRIO == 1 else "ge", s(sW)))
        asm("s_cbranch_scc0 %s_noprio" % N)
        asm("s_setprio 2")
        asm.label("%s_noprio" % N)
    def rdK(d, dst):
        for gg in range(2):
            asm("ds_read_b128 %s, %s offset:%d" % (v(dst + 4 * gg, 4), v(vKa), (8 - d) * 2048 + gg * 1024))
    def rdV(d, dst):
        asm("s_mov_b64 exec, %s" % s(sMSK, 2))
        for m in range(2):
            asm("ds_read_b128 %s, %s offset:%d" % (v(dst + 4 * m, 4), v(vVa), (8 - d) * 1280 + m * 640))
        asm("s_mov_b64 exec, -1")
    rdK(0, F[0])
    for gg in range(2):
        for p in range(2):
            k = gg * 2 + p
            for j in range(2):
                r = Q + 4 * gg + 2 * p + j
                asm("v_cndmask_b32 %s, 0, %s, %s" % (v(r), v(r), s(sQM + 2 * k, 2)))
    def maxes(d):
        b = S + 16 * d
        if d == 0:
            asm("v_max3_f32 %s, %s, %s, %s" % (v(vM), v(b), v(b + 1), v(b + 2)))
            for k in range(3, 15, 2):
                asm("v_max3_f32 %s, %s, %s, %s" % (v(vM), v(vM), v(b + k), v(b + k + 1)))
            asm("v_max_f32 %s, %s, %s" % (v(vM), v(vM), v(b + 15)))
        else:
            for k in range(0, 16, 2):
                asm("v_max3_f32 %s, %s, %s, %s" % (v(vM), v(vM), v(b + k), v(b + k + 1)))
    for d in range(9):
        cur, nxt = F[d & 1], F[(d + 1) & 1]
        asm("s_waitcnt lgkmcnt(0)")
        if d < 8: rdK(d + 1, nxt)
        if d > 0:
            asm("s_cmp_le_u32 %s, %d" % (s(sNT), d))
            asm("s_cbranch_scc1 %s_p1skip%d" % (N, d))
        else:
            asm("s_nop 1")
        c = v(CM8, 16) if d == 0 else (v(CM0, 16) if d == 8 else "0")
        b = v(S + 16 * d, 16)
        asm("v_mfma_f32_32x32x16_bf16 %s, %s, %s, %s" % (b, v(cur, 4), v(Q, 4), c))
        asm("v_mfma_f32_32x32x16_bf16 %s, %s, %s, %s" % (b, v(cur + 4, 4), v(Q + 4, 4), b))
        if d > 0:
            asm.label("%s_p1skip%d" % (N, d))
            if d == 1: asm("s_nop 7")
            maxes(d - 1)
            asm("s_cbranch_scc1 %s_p1end" % N)
    asm("s_nop 3")
    maxes(8)
    asm.label("%s_p1end" % N)
    st(6)
    SIGD = opts.get("sigd", 2)
    def a_signal():
        asm("s_cmp_lg_u32 %s, %d" % (s(sW), AW))
        asm("s_cbranch_scc1 %s_nosig" % N)
        asm("s_waitcnt vmcnt(0)")
        asm("s_lshl_b32 %s, %s, 4" % (s(sT0), s(sHH)))
        asm("s_add_u32 %s, %s, %s" % (s(sT0), s(sT0), s(sRB2)))
        asm("s_lshl_b32 %s, %s, 3" % (s(sT0), s(sT0)))
        asm("s_add_u32 %s, %s, %d" % (s(sT0), s(sT0), F2))
        flag_store(s(sT0), vT, vT + 2)
        asm.label("%s_nosig" % N)
    if SIGD < 0: a_signal()
    asm("s_cmp_lt_u32 %s, 6" % s(sW))
    asm("s_cbranch_scc1 %s_vw" % N)
    asm("s_waitcnt vmcnt(0)")
    lds_inc(W_V)
    asm.label("%s_vw" % N)
    lds_wait(W_V, vT, vT + 1, atleast=2)
    asm("s_waitcnt lgkmcnt(0)")
    asm("s_mov_b32 %s, 0x3f803f80" % s(sT0))
    for r in range(16): asm("v_mov_b32 %s, %s" % (v(VF[0] + r), s(sT0)))
    rdV(0, VF[0])
    asm("v_mov_b32 %s, %s" % (v(vT + 2), v(vM)))
    asm("v_mov_b32 %s, %s" % (v(vT + 3), v(vM)))
    asm("s_nop 1")
    asm("v_permlane32_swap_b32 %s, %s" % (v(vT + 2), v(vT + 3)))
    asm("s_nop 1")
    asm("v_max_f32 %s, %s, %s" % (v(vM), v(vT + 2), v(vT + 3)))
    asm("v_sub_f32 %s, 0, %s" % (v(vNM), v(vM)))
    asm("v_sub_f32 %s, 0, %s" % (v(vNM + 1), v(vM)))
    PQD = opts.get("pqd", 5)
    sPQ = 7
    asm("s_mov_b32 %s, 0" % s(sPQ))
    def pq_loads():
        lds_wait(W_S1A, vT + 4, vT + 5)
        asm("buffer_load_dwordx4 %s, %s, %s, %s offen sc1" % (v(Q, 4), v(vLin), s(SWS, 4), s(sOffQA)))
        asm("buffer_load_dwordx4 %s, %s, %s, %s offen offset:1024 sc1" % (v(Q + 4, 4), v(vLin), s(SWS, 4), s(sOffQA)))
    for d in range(9):
        cur, nxt = VF[d & 1], VF[(d + 1) & 1]
        b = S + 16 * d
        if d > 0:
            asm("s_cmp_le_u32 %s, %d" % (s(sNT), d))
            asm("s_cbranch_scc1 %s_p2end" % N)
        for k in range(8):
            asm("v_pk_add_f32 %s, %s, %s" % (v(b + 2 * k, 2), v(b + 2 * k, 2), v(vNM, 2)))
        for k in range(16):
            asm("v_exp_f32 %s, %s" % (v(b + k), v(b + k)))
        asm("s_waitcnt lgkmcnt(0)")
        if d < 8: rdV(d + 1, nxt)
        for k in range(8):
            asm("v_cvt_pk_bf16_f32 %s, %s, %s" % (v(b + k), v(b + 2 * k), v(b + 2 * k + 1)))
        asm("s_nop 1")
        asm("v_mfma_f32_32x32x16_bf16 %s, %s, %s, %s" % (v(O, 16), v(cur, 4), v(b, 4), "0" if d == 0 else v(O, 16)))
        asm("v_mfma_f32_32x32x16_bf16 %s, %s, %s, %s" % (v(O, 16), v(cur + 4, 4), v(b + 4, 4), v(O, 16)))
        if d == SIGD: a_signal()
        if d == PQD:
            pq_loads()
            asm("s_mov_b32 %s, 1" % s(sPQ))
    asm.label("%s_p2end" % N)
    if PRIO: asm("s_setprio 0")
    if PQD > 0:
        asm("s_cmp_lg_u32 %s, 0" % s(sPQ))
        asm("s_cbranch_scc1 %s_pqdone" % N)
        pq_loads()
        asm.label("%s_pqdone" % N)
    st(7)
    def normalize(dst, eps, O=O):
        asm("v_mov_b32 %s, %s" % (v(vT), v(O + 8)))
        asm("v_mov_b32 %s, %s" % (v(vT + 1), v(O + 8)))
        asm("s_nop 1")
        asm("v_permlane32_swap_b32 %s, %s" % (v(vT), v(vT + 1)))
        asm("s_nop 1")
        if eps: asm("v_add_f32 %s, %s, %s" % (v(vT + 1), s(sEPS), v(vT + 1)))
        asm("v_rcp_f32 %s, %s" % (v(vT + 1), v(vT + 1)))
        asm("s_nop 0")
        for k in range(12): asm("v_mul_f32 %s, %s, %s" % (v(O + k), v(vT + 1), v(O + k)))
        for k in range(6): asm("v_cvt_pk_bf16_f32 %s, %s, %s" % (v(dst + k), v(O + 2 * k), v(O + 2 * k + 1)))
    def store_o(src, region):
        asm("s_add_u32 %s, %s, %d" % (s(sT0), s(sOffO), region))
        asm("buffer_store_dwordx4 %s, %s, %s, %s offen%s" % (v(src, 4), v(vOm), s(SWS, 4), s(sT0), SC))
        asm("buffer_store_dwordx2 %s, %s, %s, %s offen%s" % (v(src + 4, 2), v(vOr), s(SWS, 4), s(sT0), SC))
    asm("s_mov_b32 %s, %s" % (s(sEPS), fhex(1e-6)))
    asm("s_cmp_ge_u32 %s, 4" % s(sW))
    asm("s_cbranch_scc1 %s_hiwaves" % N)
    asm("s_lshl_b32 %s, %s, 7" % (s(sPL), s(sHH)))
    asm("s_add_u32 %s, %s, %d" % (s(sPL), s(sPL), F2))
    asm("s_cmp_lg_u32 %s, 0" % s(sW))
    asm("s_cbranch_scc1 %s_w123" % N)
    poll_issue(s(sPL), vT + 4, vL8, 8)
    asm("s_nop 7"); asm("s_nop 3")
    normalize(PB, False)
    poll(s(sPL), 8, vT + 4, vL8, preissued=True)
    lds_set(W_S2, vT + 4, vT + 5)
    asm("s_branch %s_w0123" % N)
    asm.label("%s_w123" % N)
    asm("s_nop 7"); asm("s_nop 3")
    normalize(PB, False)
    lds_wait(W_S2, vT + 4, vT + 5)
    asm.label("%s_w0123" % N)
    asm("s_lshl_b32 %s, %s, 1" % (s(sT0), s(sW)))
    asm("s_sub_u32 %s, %s, %s" % (s(sT0), s(sT0), s(sDQ)))
    asm("v_lshrrev_b32 %s, 5, %s" % (v(vT), v(vL)))
    asm("v_add_u32 %s, %s, %s" % (v(vT), s(sT0), v(vT)))
    asm("v_and_b32 %s, 31, %s" % (v(vT + 1), v(vL)))
    asm("v_lshlrev_b32 %s, 4, %s" % (v(vT + 1), v(vT + 1)))
    asm("v_lshl_add_u32 %s, %s, 9, %s" % (v(vT + 1), v(vT), v(vT + 1)))
    asm("v_cmp_ge_u32 vcc, 4, %s" % v(vT))
    asm("v_mov_b32 %s, 0x%x" % (v(vT + 2), OOB))
    asm("s_nop 0")
    asm("v_cndmask_b32 %s, %s, %s, vcc" % (v(vU), v(vT + 2), v(vT + 1)))
    asm("s_lshl_b32 %s, %s, 3" % (s(sT0), s(sHH)))
    asm("s_mul_i32 %s, %s, 3072" % (s(sT0), s(sT0)))
    asm("s_add_u32 %s, %s, %d" % (s(sT0), s(sT0), R_KVP))
    for r in range(8):
        asm("buffer_load_dwordx4 %s, %s, %s, %s offen sc1" % (v(S + 4 * r, 4), v(vU), s(SWS, 4), s(sT0)))
        if r < 7: asm("s_add_u32 %s, %s, 3072" % (s(sT0), s(sT0)))
    store_o(PB, R_OB)
    asm("s_waitcnt vmcnt(2)")
    for r in range(1, 8):
        for k in range(4):
            asm("v_add_f32 %s, %s, %s" % (v(S + k), v(S + k), v(S + 4 * r + k)))
    asm("v_cvt_pk_bf16_f32 %s, %s, %s" % (v(vT), v(S), v(S + 1)))
    asm("v_cvt_pk_bf16_f32 %s, %s, %s" % (v(vT + 1), v(S + 2), v(S + 3)))
    asm("s_lshr_b32 %s, %s, 1" % (s(sT0), s(sW)))
    asm("s_lshl_b32 %s, %s, 10" % (s(sT0), s(sT0)))
    asm("s_and_b32 %s, %s, 1" % (s(sT1), s(sW)))
    asm("s_lshl_b32 %s, %s, 3" % (s(sT1), s(sT1)))
    asm("s_add_u32 %s, %s, %s" % (s(sT0), s(sT0), s(sT1)))
    asm("s_add_u32 %s, %s, %d" % (s(sT0), s(sT0), L_KVT))
    asm("v_add_u32 %s, %s, %s" % (v(vU), s(sT0), v(vLin)))
    asm("ds_write_b64 %s, %s" % (v(vU), v(vT, 2)))
    TAIL2 = opts.get("tail2", 0)
    sF3 = 69
    def f3_offset():
        asm("s_lshl_b32 %s, %s, 5" % (s(sF3), s(sRB2)))
        asm("s_add_u32 %s, %s, %s" % (s(sF3), s(sF3), s(sHH)))
        asm("s_lshl_b32 %s, %s, 3" % (s(sF3), s(sF3)))
        asm("s_add_u32 %s, %s, %d" % (s(sF3), s(sF3), F3))
    if TAIL2:
        D2 = S
        def a_product(vm):
            lds_wait(W_KVT, vT + 4, vT + 5, atleast=4)
            asm("v_add_u32 %s, 0x%x, %s" % (v(vU), L_KVT, v(vLin)))
            asm("ds_read_b128 %s, %s" % (v(F[0], 4), v(vU)))
            asm("ds_read_b128 %s, %s offset:1024" % (v(F[0] + 4, 4), v(vU)))
            f3_offset()
            asm("s_waitcnt vmcnt(%d) lgkmcnt(0)" % vm)
            asm("v_mfma_f32_32x32x16_bf16 %s, %s, %s, 0" % (v(D2, 16), v(F[0], 4), v(Q, 4)))
            asm("v_mfma_f32_32x32x16_bf16 %s, %s, %s, %s" % (v(D2, 16), v(F[0] + 4, 4), v(Q + 4, 4), v(D2, 16)))
        asm("s_waitcnt lgkmcnt(0)")
        lds_inc(W_KVT)
        a_product(2)
        asm("s_nop 7"); asm("s_nop 3")
        asm("s_branch %s_join" % N)
        asm.label("%s_hiwaves" % N)
        a_product(0)
        normalize(PB, False)
        store_o(PB, R_OB)
        asm.label("%s_join" % N)
        st(8)
        normalize(PA, True, O=D2)
        store_o(PA, R_OA)
    else:
        asm("s_branch %s_join" % N)
        asm.label("%s_hiwaves" % N)
        asm("s_nop 7"); asm("s_nop 3")
        normalize(PB, False)
        store_o(PB, R_OB)
        asm.label("%s_join" % N)
        asm("s_waitcnt lgkmcnt(0)")
        asm("s_barrier")
        st(8)
        asm("v_add_u32 %s, 0x%x, %s" % (v(vU), L_KVT, v(vLin)))
        asm("ds_read_b128 %s, %s" % (v(F[0], 4), v(vU)))
        asm("ds_read_b128 %s, %s offset:1024" % (v(F[0] + 4, 4), v(vU)))
        asm("s_lshl_b32 %s, %s, 5" % (s(sF3), s(sRB2)))
        asm("s_add_u32 %s, %s, %s" % (s(sF3), s(sF3), s(sHH)))
        asm("s_lshl_b32 %s, %s, 3" % (s(sF3), s(sF3)))
        asm("s_add_u32 %s, %s, %d" % (s(sF3), s(sF3), F3))
        asm("s_waitcnt vmcnt(2) lgkmcnt(0)")
        asm("v_mfma_f32_32x32x16_bf16 %s, %s, %s, 0" % (v(O, 16), v(F[0], 4), v(Q, 4)))
        asm("v_mfma_f32_32x32x16_bf16 %s, %s, %s, %s" % (v(O, 16), v(F[0] + 4, 4), v(Q + 4, 4), v(O, 16)))
        asm("s_nop 7"); asm("s_nop 3")
        normalize(PA, True)
        store_o(PA, R_OA)
    asm("s_add_u32 %s, %s, %d" % (s(sT1), s(sF3), 8 * 256))
    asm("s_waitcnt vmcnt(2)")
    release()
    lds_arrive(W_CNT3B, 8, vT + 6, vT + 4, s(sT1), replicas=R3, rshift=12)
    asm("s_waitcnt vmcnt(0)")
    release()
    lds_arrive(W_CNT3A, 8, vT + 6, vT + 4, s(sF3), replicas=R3, rshift=12)
    st(9)
    asm("s_cmp_ge_u32 %s, 4" % s(sW))
    asm("s_cbranch_scc1 %s_fin" % N)
    OF = 0; ACC3 = 160; WF = [200, 220]
    vOM, vOR, vWm, vWm2, vWr, vWr2 = 245, 246, 247, 248, 249, 250
    p3L, p3T, p3U, p3X = 251, 252, 253, 254
    vDW3 = 240
    sTB3, sOffO3, sOM = 44, 45, 46
    SOUT = SB_
    decode3()
    asm("s_load_dwordx2 s[4:5], s[0:1], 48")
    asm("s_lshl_b32 %s, %s, 2" % (s(sTB3), s(sRB3)))
    asm("s_add_u32 %s, %s, %s" % (s(sTB3), s(sTB3), s(sW)))
    lane(p3L)
    asm("v_lshlrev_b32 %s, 3, %s" % (v(p3X), v(p3L)))
    asm("s_lshl_b32 %s, %s, 3" % (s(sT0), s(sBR3)))
    asm("s_lshr_b32 %s, %s, 1" % (s(sT1), s(sRB3)))
    asm("s_add_u32 %s, %s, %s" % (s(sT0), s(sT0), s(sT1)))
    asm("s_lshl_b32 %s, %s, 8" % (s(sT0), s(sT0)))
    if R3 > 1:
        asm("s_and_b32 %s, %s, %d" % (s(sT1), s(sCB3), R3 - 1))
        asm("s_lshl_b32 %s, %s, 12" % (s(sT1), s(sT1)))
        asm("s_add_u32 %s, %s, %s" % (s(sT0), s(sT0), s(sT1)))
    asm("s_add_u32 %s, %s, %d" % (s(sPL), s(sT0), F3))
    asm("v_lshrrev_b32 %s, 4, %s" % (v(p3T), v(p3L)))
    asm("v_and_b32 %s, 15, %s" % (v(p3U), v(p3L)))
    asm("v_lshrrev_b32 %s, 1, %s" % (v(vWm2), v(p3T)))
    asm("v_mul_u32_u24 %s, 1280, %s" % (v(vOM), v(vWm2)))
    asm("v_and_b32 %s, 1, %s" % (v(vWm2), v(p3T)))
    asm("v_lshl_add_u32 %s, %s, 9, %s" % (v(vOM), v(vWm2), v(vOM)))
    asm("v_lshl_add_u32 %s, %s, 4, %s" % (v(vOM), v(p3U), v(vOM)))
    asm("v_mul_u32_u24 %s, 1280, %s" % (v(vOR), v(p3T)))
    asm("v_lshl_add_u32 %s, %s, 3, %s" % (v(vOR), v(p3U), v(vOR)))
    asm("v_add_u32 %s, 1024, %s" % (v(vOR), v(vOR)))
    asm("v_bfe_u32 %s, %s, 2, 2" % (v(p3U), v(p3L)))
    asm("v_lshrrev_b32 %s, 1, %s" % (v(vWm2), v(p3T)))
    asm("v_mul_u32_u24 %s, 20, %s" % (v(vWm), v(vWm2)))
    asm("v_and_b32 %s, 1, %s" % (v(vWm2), v(p3T)))
    asm("v_lshl_add_u32 %s, %s, 2, %s" % (v(vWm), v(vWm2), v(vWm)))
    asm("v_add_u32 %s, %s, %s" % (v(vWm), v(vWm), v(p3U)))
    asm("v_mul_u32_u24 %s, 160, %s" % (v(vWm), v(vWm)))
    asm("v_mul_u32_u24 %s, 20, %s" % (v(vWr), v(p3T)))
    asm("v_add_u32 %s, %s, %s" % (v(vWr), v(vWr), v(p3U)))
    asm("v_add_u32 %s, 16, %s" % (v(vWr), v(vWr)))
    asm("v_mul_u32_u24 %s, 160, %s" % (v(vWr), v(vWr)))
    asm("v_and_b32 %s, 3, %s" % (v(vWm2), v(p3L)))
    asm("v_lshl_add_u32 %s, %s, 3, %s" % (v(vWm), v(vWm2), v(vWm)))
    asm("v_lshl_add_u32 %s, %s, 3, %s" % (v(vWr), v(vWm2), v(vWr)))
    asm("v_add_u32 %s, 51200, %s" % (v(vWm2), v(vWm)))
    asm("v_add_u32 %s, 51200, %s" % (v(vWr2), v(vWr)))
    asm("s_mul_i32 %s, %s, %d" % (s(sOffO3), s(sBR3), REG))
    asm("s_add_u32 %s, %s, %d" % (s(sOffO3), s(sOffO3), R_OA))
    asm("s_mul_i32 %s, %s, 40960" % (s(sT0), s(sTB3)))
    asm("s_add_u32 %s, %s, %s" % (s(sOffO3), s(sOffO3), s(sT0)))
    asm("s_waitcnt lgkmcnt(0)")
    srd(asm, SOUT, "s4", "s5", 2048 * 2560)
    asm("s_cmp_lg_u32 %s, 0" % s(sW))
    asm("s_cbranch_scc1 %s_p3w" % N)
    if opts.get("ppoll", 0): ppoll(s(sPL), 32, [vDW3, vDW3 + 2], p3X)
    else: poll(s(sPL), 32, vDW3, p3X)
    lds_set(W_S3, p3T, p3U)
    asm("s_branch %s_p3go" % N)
    asm.label("%s_p3w" % N)
    lds_wait(W_S3, vDW3, vDW3 + 1)
    asm.label("%s_p3go" % N)
    st(10)
    def oloads(sidx):
        if sidx < 16:
            asm("s_add_u32 %s, %s, %d" % (s(sOM), s(sOffO3), 2560 * sidx))
            for rt in range(2):
                asm("buffer_load_dwordx4 %s, %s, %s, %s offen offset:%d%s" % (v(OF + (sidx * 2 + rt) * 4, 4), v(vOM), s(SWS, 4), s(sOM), rt * 256, LSC3))
        else:
            a_ = sidx - 16
            for half in range(2):
                asm("s_add_u32 %s, %s, %d" % (s(sOM), s(sOffO3), a_ * 8 * 1280 + half * 5120))
                for rt in range(2):
                    asm("buffer_load_dwordx2 %s, %s, %s, %s offen offset:%d%s" % (v(OF + ((16 + a_) * 2 + rt) * 4 + 2 * half, 2), v(vOR), s(SWS, 4), s(sOM), rt * 128, LSC3))
    def cum(k): return 2 * (k + 1) if k < 16 else 32 + 4 * (k - 15)
    PD = opts.get("pd", 5)
    for k in range(PD): oloads(k)
    def wreads(step, dst):
        ops = []
        for ct in range(5):
            for a_ in range(2):
                if step < 16:
                    base = vWm if step < 8 else vWm2
                    off = (step & 7) * 6400 + a_ * 1280 + ct * 32
                else:
                    ap = step - 16
                    base = vWr if ap < 2 else vWr2
                    off = (ap & 1) * 25600 + a_ * 12800 + ct * 32
                ops.append(lambda ct=ct, a_=a_, base=base, off=off: asm("ds_read_b64_tr_b16 %s, %s offset:%d" % (v(dst + 4 * ct + 2 * a_, 2), v(base), off)))
        return ops
    if opts.get("p3st"): st(1)
    for f in wreads(0, WF[0]): f()
    for sidx in range(20):
        cur = WF[sidx & 1]
        nxt_ops = wreads(sidx + 1, WF[(sidx + 1) & 1]) if sidx < 19 else []
        vm = cum(min(sidx + PD - 1, 19)) - cum(sidx)
        asm("s_waitcnt vmcnt(%d) lgkmcnt(0)" % vm)
        if opts.get("p3st") and sidx in (0, 8, 16): st({0: 2, 8: 3, 16: 4}[sidx])
        m = 0
        for ct in range(5):
            for rt in range(2):
                acc = v(ACC3 + (rt * 5 + ct) * 4, 4)
                c = "0" if sidx == 0 else acc
                asm("v_mfma_f32_16x16x32_bf16 %s, %s, %s, %s" % (acc, v(cur + 4 * ct, 4), v(OF + (sidx * 2 + rt) * 4, 4), c))
                if m < 5 and nxt_ops:
                    nxt_ops[2 * m](); nxt_ops[2 * m + 1]()
                if m == 5 and sidx + PD < 20: oloads(sidx + PD)
                m += 1
    st(11)
    if TAIL2: lds_wait(W_CNT3A, p3T, p3U, atleast=8)
    asm("v_and_b32 %s, 15, %s" % (v(p3U), v(p3L)))
    asm("v_mul_u32_u24 %s, 160, %s" % (v(p3U), v(p3U)))
    asm("v_lshrrev_b32 %s, 4, %s" % (v(p3T), v(p3L)))
    asm("v_lshl_add_u32 %s, %s, 3, %s" % (v(p3U), v(p3T), v(p3U)))
    asm("s_mul_i32 %s, %s, 5120" % (s(sT0), s(sW)))
    asm("s_add_u32 %s, %s, %d" % (s(sT0), s(sT0), L_OUT))
    asm("v_add_u32 %s, %s, %s" % (v(p3U), s(sT0), v(p3U)))
    asm("v_lshlrev_b32 %s, 4, %s" % (v(p3X), v(p3L)))
    asm("v_add_u32 %s, %s, %s" % (v(p3X), s(sT0), v(p3X)))
    asm("s_nop 3")
    for rt in range(2):
        for ct in range(5):
            b = ACC3 + (rt * 5 + ct) * 4
            t = OF + (rt * 5 + ct) * 2
            asm("v_cvt_pk_bf16_f32 %s, %s, %s" % (v(t), v(b), v(b + 1)))
            asm("v_cvt_pk_bf16_f32 %s, %s, %s" % (v(t + 1), v(b + 2), v(b + 3)))
            asm("ds_write_b64 %s, %s offset:%d" % (v(p3U), v(t, 2), rt * 2560 + ct * 32))
    asm("s_movk_i32 %s, 6554" % s(sT2))
    asm("s_movk_i32 %s, 2560" % s(sT3))
    for b in range(5):
        asm("v_add_u32 %s, %d, %s" % (v(p3T), 64 * b, v(p3L)))
        asm("v_mul_lo_u32 %s, %s, %s" % (v(vWm), v(p3T), s(sT2)))
        asm("v_lshrrev_b32 %s, 16, %s" % (v(vWm), v(vWm)))
        asm("v_mul_u32_u24 %s, 10, %s" % (v(vWr), v(vWm)))
        asm("v_sub_u32 %s, %s, %s" % (v(p3T), v(p3T), v(vWr)))
        asm("v_lshlrev_b32 %s, 4, %s" % (v(p3T), v(p3T)))
        asm("v_mad_u32_u24 %s, %s, %s, %s" % (v(vDW3 + b), v(vWm), s(sT3), v(p3T)))
    asm("s_mul_i32 %s, %s, %d" % (s(sT0), s(sTB3), 32 * 2560))
    asm("s_mul_i32 %s, %s, 1280" % (s(sT1), s(sBR3)))
    asm("s_add_u32 %s, %s, %s" % (s(sT0), s(sT0), s(sT1)))
    asm("s_mul_i32 %s, %s, 160" % (s(sT1), s(sCB3)))
    asm("s_add_u32 %s, %s, %s" % (s(sT0), s(sT0), s(sT1)))
    asm("s_waitcnt lgkmcnt(0)")
    for b in range(5):
        asm("ds_read_b128 %s, %s offset:%d" % (v(32 + 4 * b, 4), v(p3X), b * 1024))
    for b in range(5):
        asm("s_waitcnt lgkmcnt(%d)" % (4 - b))
        asm("buffer_store_dwordx4 %s, %s, %s, %s offen%s" % (v(32 + 4 * b, 4), v(vDW3 + b), s(SOUT, 4), s(sT0), {0: "", 1: " sc1", 2: " nt", 3: " sc0 sc1"}[opts.get("outsc", 0)]))
    asm(";PADEND")
    asm.label("%s_fin" % N)
    if stamp:
        asm("s_waitcnt vmcnt(0)")
        st(12)
        asm("s_waitcnt lgkmcnt(0)")
        asm("s_load_dwordx2 s[4:5], s[0:1], 64")
        asm("s_waitcnt lgkmcnt(0)")
        asm("s_add_u32 s4, s4, %d" % (R_STAMP + (opts.get("wsoff", 0) << 20)))
        asm("s_addc_u32 s5, s5, 0")
        srd(asm, SA_, "s4", "s5", 1 << 20)
        asm("s_lshl_b32 %s, s2, 3" % s(sT0))
        asm("s_add_u32 %s, %s, %s" % (s(sT0), s(sT0), s(sW)))
        asm("s_lshl_b32 %s, %s, 7" % (s(sT0), s(sT0)))
        asm("v_mov_b32 v1, %s" % s(sT0))
        for i in range(13):
            asm("v_mov_b32 v2, %s" % s(STB + 2 * i))
            asm("v_mov_b32 v3, %s" % s(STB + 2 * i + 1))
            asm("buffer_store_dwordx2 v[2:3], v1, %s, 0 offen offset:%d" % (s(SA_, 4), 8 * i))
            asm("s_nop 1")
        asm("s_getreg_b32 s4, hwreg(HW_REG_HW_ID)")
        asm("v_mov_b32 v2, %s" % s(sXCC))
        asm("v_mov_b32 v3, s4")
        asm("buffer_store_dwordx2 v[2:3], v1, %s, 0 offen offset:%d" % (s(SA_, 4), 8 * 13))
    asm.label("%s_end" % N)
    asm("s_endpgm")
    return dict(name=N, vgpr=256, sgpr=100, grid=256, block=512, lds=LDS_BYTES)
HEADER = open("concat_heads__linear_attn_block__sliding_block__prompt.s.ref").read().split("; Override")[0]
def insert_pads(lines, every, nseg, N):
    b = lines.index(";PADBEGIN"); e = lines.index(";PADEND")
    pos = []; cnt = every; partial = False
    for k in range(b + 1, e):
        ln = lines[k].strip()
        if not ln or ln.endswith(":") or ln.startswith(";") or ln.startswith("."): continue
        if ln.startswith("s_mov_b64 exec") or ln.startswith("s_mov_b32 exec_"):
            partial = not ln.endswith("exec, -1")
            cnt += 1
            continue
        if cnt >= every and not partial:
            pos.append(k); cnt = 0
        cnt += 1
    n = len(pos); per = (n + nseg - 1) // nseg
    out = list(lines[:pos[0]])
    for i_, k in enumerate(pos):
        seg, j = divmod(i_, per)
        name = "%s_padseg%d" % (N, seg) if j == 0 else "%s_pad%d" % (N, i_)
        last = (j == per - 1) or (i_ == n - 1)
        nxt = "%s_walkret" % N if last else "%s_pad%d" % (N, i_ + 1)
        out.append(name + ":")
        out.append("s_cbranch_execz %s" % nxt)
        out += lines[k:(pos[i_ + 1] if i_ + 1 < n else len(lines))]
    nsegs = (n + per - 1) // per
    assert nsegs == nseg, (n, per, nsegs)
    return out, n
def build(stamp=False, opts=None):
    body = A()
    i = gen(body, stamp=stamp, opts=opts)
    if opts and opts.get("pad", 0):
        body.L, npads = insert_pads(body.L, opts["pad"], 8, i["name"])
        print("pads:", npads)
    else:
        body.L = [l for l in body.L if l not in (";PADBEGIN", ";PADEND")]
    if opts and opts.get("hfirst", 0):
        N = i["name"]; L = body.L
        a = L.index("%s_p1h:" % N); b = L.index("%s_p2h:" % N)
        blk = L[a:b]; rest = L[:a] + L[b:]
        k = rest.index("s_cbranch_scc1 %s_p1h" % N)
        rest[k] = "s_cbranch_scc0 %s_p1c" % N
        body.L = rest[:k + 1] + blk + ["s_branch %s_p2h" % N, "%s_p1c:" % N] + rest[k + 1:]
    out = HEADER
    out += "; @launch grid=(%d,1,1) block=(%d,1,1) lds=%d\n" % (i["grid"], i["block"], i["lds"])
    out += '.amdgcn_target "amdgcn-amd-amdhsa--gfx950"\n.text\n'
    out += body.text()
    d = A()
    d('.section .rodata,"a"')
    kernel_desc(d, i["name"], i["vgpr"], i["sgpr"])
    out += d.text()
    return out
if __name__ == "__main__":
    import sys
    opts = {}
    for a_ in sys.argv[3:]:
        k, val = a_.split("="); opts[k] = int(val)
    open(sys.argv[1], "w").write(build(stamp=(len(sys.argv) > 2 and sys.argv[2] == "stamp"), opts=opts))
```

```python
from asmlib import *
import math
REG = 2621440
R_QA, R_KA, R_VA, R_QB, R_KB, R_VB, R_OA, R_OB, R_KVP, R_FLG = [i * REG for i in range(10)]
F1 = R_FLG
F2 = R_FLG + 65536
F3 = R_FLG + 65536 + 8192
WS_REC = R_FLG + 131072
R_STAMP = 10 * REG
LOG2E = 1.4426950408889634
QSCALE = LOG2E / math.sqrt(20.0)
BIG = -1.0e30
OOB = 0x40000000
L_WO, L_K, L_V, L_KVT = 0, 102400, 135168, 155648
L_OUT = L_K
L_SYNC = 157696
W_CNT1, W_S1, W_S1A, W_S2, W_CNT3B, W_CNT3A, W_S3, W_ISS, W_K, W_V, W_KVT = [L_SYNC + 4 * i for i in range(11)]
LDS_BYTES = 157696 + 64
SPIN_MAX = 0x100000
NAME = "concat_heads__linear_attn_block__sliding_block__prompt_kernel"
class G:
    pass
def gen(asm, stamp=False, name=NAME, opts=None):
    opts = opts or {}
    N = name
    D1 = opts.get("d1", 0)
    SC = " sc1" if D1 else ""
    SC = {0: SC, 1: " sc0 sc1", 2: " sc1 nt", 3: " sc0 sc1 nt"}[opts.get("scmode", 0)]
    R3 = opts.get("r3", 1)
    REPL = opts.get("repl", 8)
    LSC3 = "" if opts.get("plain3") else " sc1"
    sW = 3
    SWS, SDBG = 8, 12
    sNON = 16
    sT0, sT1, sT2, sT3 = 18, 19, 20, 21
    sCNT, sPL = 22, 23
    SA_, SB_ = 24, 28
    sMASK = 32
    sPC = 34
    STB = 72
    sP8, sSLOT, sLOCAL, sXCC = 70, 71, 98, 99
    def st(k):
        if stamp:
            asm("s_memrealtime %s" % s(STB + 2 * k, 2))
    def lane(dst):
        asm("v_mbcnt_lo_u32_b32 %s, -1, 0" % v(dst))
        asm("v_mbcnt_hi_u32_b32 %s, -1, %s" % (v(dst), v(dst)))
    uid = [0]
    def lab(p):
        uid[0] += 1
        return "%s_%s%d" % (N, p, uid[0])
    def sync_issue(vd, vo):
        if D1:
            asm("v_mov_b32 %s, 0" % v(vo))
            asm("buffer_load_dwordx2 %s, %s, %s, 0 offen sc1" % (v(vd, 2), v(vo), s(SDBG, 4)))
            return
        lane(vo)
        asm("s_lshl_b32 %s, %s, 3" % (s(sT0), s(sP8)))
        asm("s_add_u32 %s, %s, 64" % (s(sT0), s(sT0)))
        asm("v_cmp_eq_u32 vcc, 1, %s" % v(vo))
        asm("v_mov_b32 %s, %s" % (v(vd), s(sT0)))
        asm("v_mov_b32 %s, 0" % v(vo))
        asm("v_cndmask_b32 %s, %s, %s, vcc" % (v(vo), v(vo), v(vd)))
        asm("buffer_load_dwordx2 %s, %s, %s, 0 offen sc1" % (v(vd, 2), v(vo), s(SDBG, 4)))
    def get_sync(vd, vo, preissued=False):
        L, D = lab("non"), lab("nond")
        if not preissued: sync_issue(vd, vo)
        asm("s_mov_b32 %s, 0" % s(sCNT))
        asm.label(L)
        asm("s_waitcnt vmcnt(0)")
        asm("v_readlane_b32 %s, %s, 0" % (s(sNON), v(vd)))
        asm("v_readlane_b32 %s, %s, 0" % (s(sNON + 1), v(vd + 1)))
        if not D1:
            asm("v_readlane_b32 %s, %s, 1" % (s(sPC), v(vd)))
            asm("v_readlane_b32 %s, %s, 1" % (s(sPC + 1), v(vd + 1)))
        asm("s_add_u32 %s, %s, 1" % (s(sCNT), s(sCNT)))
        asm("s_nop 2")
        asm("s_cmp_lg_u32 %s, 0" % s(sNON))
        asm("s_cbranch_scc1 %s" % D)
        asm("s_cmp_ge_u32 %s, 0x%x" % (s(sCNT), SPIN_MAX))
        asm("s_cbranch_scc1 %s" % D)
        asm("s_sleep 4")
        asm("buffer_load_dwordx2 %s, %s, %s, 0 offen sc1" % (v(vd, 2), v(vo), s(SDBG, 4)))
        asm("s_branch %s" % L)
        asm.label(D)
        if D1: return
        asm("s_lshl_b32 %s, %s, 3" % (s(sT0), s(sXCC)))
        asm("s_lshl_b64 %s, 32, %s" % (s(sMASK, 2), s(sT0)))
        asm("s_cmp_eq_u64 %s, %s" % (s(sMASK, 2), s(sPC, 2)))
        asm("s_cselect_b32 %s, 1, 0" % s(sLOCAL))
        if opts.get("nolocal"): asm("s_mov_b32 %s, 0" % s(sLOCAL))
    def release():
        if D1: return
        D = lab("rel")
        asm("s_cmp_lg_u32 %s, 0" % s(sLOCAL))
        asm("s_cbranch_scc1 %s" % D)
        asm("buffer_wbl2 sc1")
        asm("s_waitcnt vmcnt(0)")
        asm.label(D)
    def lds_set(word, va, vd):
        asm("v_mov_b32 %s, 0x%x" % (v(va), word))
        asm("v_mov_b32 %s, 1" % v(vd))
        asm("ds_write_b32 %s, %s" % (v(va), v(vd)))
    def lds_wait(word, va, vd, atleast=1):
        L, D = lab("lw"), lab("lwd")
        asm("v_mov_b32 %s, 0x%x" % (v(va), word))
        asm("s_mov_b32 %s, 0" % s(sCNT))
        asm.label(L)
        asm("ds_read_b32 %s, %s" % (v(vd), v(va)))
        asm("s_waitcnt lgkmcnt(0)")
        asm("v_readfirstlane_b32 %s, %s" % (s(sT0), v(vd)))
        asm("s_add_u32 %s, %s, 1" % (s(sCNT), s(sCNT)))
        asm("s_nop 2")
        asm("s_cmp_ge_u32 %s, %d" % (s(sT0), atleast))
        asm("s_cbranch_scc1 %s" % D)
        asm("s_cmp_ge_u32 %s, 0x%x" % (s(sCNT), SPIN_MAX * 16))
        asm("s_cbranch_scc1 %s" % D)
        if opts.get("lsleep", 1): asm("s_sleep %d" % opts.get("lsleep", 1))
        asm("s_branch %s" % L)
        asm.label(D)
    def lds_arrive(word, n, va, vd, soff, replicas=1, rshift=11):
        D = lab("arr")
        asm("v_mov_b32 %s, 0x%x" % (v(va), word))
        asm("v_mov_b32 %s, 1" % v(vd))
        asm("s_mov_b64 exec, 1")
        asm("ds_add_rtn_u32 %s, %s, %s" % (v(vd), v(va), v(vd)))
        asm("s_waitcnt lgkmcnt(0)")
        asm("s_mov_b64 exec, -1")
        asm("v_readfirstlane_b32 %s, %s" % (s(sCNT), v(vd)))
        asm("s_nop 3")
        asm("s_cmp_lg_u32 %s, %d" % (s(sCNT), n - 1))
        asm("s_cbranch_scc1 %s" % D)
        flag_store(soff, vd, va, replicas, rshift)
        asm.label(D)
    def poll_issue(soff, vd, vo, n):
        asm("s_mov_b32 exec_lo, 0x%x" % ((1 << n) - 1))
        asm("s_mov_b32 exec_hi, 0")
        asm("buffer_load_dwordx2 %s, %s, %s, %s offen sc1" % (v(vd, 2), v(vo), s(SWS, 4), soff))
        asm("s_mov_b64 exec, -1")
    def poll(soff, n, vd, vo, preissued=False, lo=0, smask=None):
        L, D = lab("poll"), lab("polld")
        m = ((1 << n) - 1) & ~((1 << lo) - 1)
        asm("s_mov_b32 %s, %s" % (s(sMASK), smask if smask else "0x%x" % (m & 0xffffffff)))
        asm("s_mov_b32 %s, 0x%x" % (s(sMASK + 1), m >> 32))
        if not preissued: poll_issue(soff, vd, vo, n)
        asm("s_mov_b32 %s, 0" % s(sCNT))
        asm.label(L)
        asm("s_waitcnt vmcnt(0)")
        asm("v_cmp_eq_u32 vcc, %s, %s" % (s(sNON), v(vd)))
        asm("v_cmp_eq_u32 %s, %s, %s" % (s(sPC, 2), s(sNON + 1), v(vd + 1)))
        asm("s_add_u32 %s, %s, 1" % (s(sCNT), s(sCNT)))
        asm("s_nop 3")
        asm("s_and_b64 %s, %s, vcc" % (s(sPC, 2), s(sPC, 2)))
        asm("s_and_b64 %s, %s, %s" % (s(sPC, 2), s(sPC, 2), s(sMASK, 2)))
        asm("s_cmp_eq_u64 %s, %s" % (s(sPC, 2), s(sMASK, 2)))
        asm("s_cbranch_scc1 %s" % D)
        asm("s_cmp_ge_u32 %s, 0x%x" % (s(sCNT), SPIN_MAX))
        asm("s_cbranch_scc1 %s" % D)
        asm("s_sleep %d" % opts.get("sleep", 3))
        poll_issue(soff, vd, vo, n)
        asm("s_branch %s" % L)
        asm.label(D)
    def ppoll(soff, n, regs, vo, smask=None):
        k = len(regs)
        L, D = lab("pp"), lab("ppd")
        m = (1 << n) - 1
        asm("s_mov_b32 %s, %s" % (s(sMASK), smask if smask else "0x%x" % (m & 0xffffffff)))
        asm("s_mov_b32 %s, 0x%x" % (s(sMASK + 1), m >> 32))
        for i, r in enumerate(regs):
            poll_issue(soff, r, vo, n)
            if i + 1 < k: asm("s_sleep %d" % opts.get("pstag", 6))
        asm("s_mov_b32 %s, 0" % s(sCNT))
        asm.label(L)
        for i, r in enumerate(regs):
            asm("s_waitcnt vmcnt(%d)" % (k - 1))
            asm("v_cmp_eq_u32 vcc, %s, %s" % (s(sNON), v(r)))
            asm("v_cmp_eq_u32 %s, %s, %s" % (s(sPC, 2), s(sNON + 1), v(r + 1)))
            asm("s_add_u32 %s, %s, 1" % (s(sCNT), s(sCNT)))
            asm("s_nop 3")
            asm("s_and_b64 %s, %s, vcc" % (s(sPC, 2), s(sPC, 2)))
            asm("s_and_b64 %s, %s, %s" % (s(sPC, 2), s(sPC, 2), s(sMASK, 2)))
            asm("s_cmp_eq_u64 %s, %s" % (s(sPC, 2), s(sMASK, 2)))
            asm("s_cbranch_scc1 %s" % D)
            poll_issue(soff, r, vo, n)
        asm("s_cmp_lt_u32 %s, 0x%x" % (s(sCNT), SPIN_MAX * 3))
        asm("s_cbranch_scc1 %s" % L)
        asm.label(D)
    def flag_store(soff, vd, vo, replicas=1, rshift=11):
        if replicas > 1:
            lane(vo)
            asm("v_lshlrev_b32 %s, %d, %s" % (v(vo), rshift, v(vo)))
        else:
            asm("v_mov_b32 %s, 0" % v(vo))
        asm("v_mov_b32 %s, %s" % (v(vd), s(sNON)))
        asm("v_mov_b32 %s, %s" % (v(vd + 1), s(sNON + 1)))
        asm("s_mov_b64 exec, %d" % ((1 << replicas) - 1 if replicas <= 6 else -1) if replicas <= 6 else "s_mov_b32 exec_lo, 0x%x\n    s_mov_b32 exec_hi, 0" % ((1 << replicas) - 1))
        asm("buffer_store_dwordx2 %s, %s, %s, %s offen sc1" % (v(vd, 2), v(vo), s(SWS, 4), soff))
        asm("s_mov_b64 exec, -1")
    kernel_header(asm, N)
    asm("s_cmp_ge_u32 s2, 256")
    asm("s_cbranch_scc1 %s_end" % N)
    if stamp:
        for i in range(26): asm("s_mov_b32 %s, 0" % s(STB + i))
    st(0)
    asm("s_load_dwordx4 s[4:7], s[0:1], 56")
    asm("s_load_dwordx4 s[36:39], s[0:1], 0")
    asm("s_load_dwordx4 s[40:43], s[0:1], 24")
    asm("v_lshrrev_b32 v1, 6, v0")
    asm("s_nop 0")
    asm("v_readfirstlane_b32 %s, v1" % s(sW))
    CPF = opts.get("cpf", 0)
    if CPF:
        asm("s_lshr_b32 %s, s2, 3" % s(sT0))
        asm("s_nop 1")
        asm("s_cmp_lg_u32 %s, %d" % (s(sW), CPF))
        asm("s_cbranch_scc1 %s_nocpf" % N)
        asm("s_getpc_b64 s[24:25]")
        asm.label("%s_cpfpc" % N)
        asm("s_sub_u32 s24, s24, (%s_cpfpc - %s)" % (N, N))
        asm("s_subb_u32 s25, s25, 0")
        asm("s_and_b32 s25, s25, 0xffff")
        asm("s_mov_b32 s26, (%s_end - %s)" % (N, N))
        asm("s_mov_b32 s27, 0x20000")
        lane(5)
        asm("s_and_b32 %s, %s, 3" % (s(sT0), s(sT0)))
        asm("s_lshl_b32 %s, %s, 6" % (s(sT0), s(sT0)))
        asm("v_add_u32 v5, %s, v5" % s(sT0))
        asm("v_lshlrev_b32 v5, 7, v5")
        asm("buffer_load_dword v199, v5, s[24:27], 0 offen")
        asm.label("%s_nocpf" % N)
    sBR, sRB, sCB, sPART, sCBP, sW4, sWM, sWN = 44, 45, 46, 47, 48, 49, 50, 51
    asm("s_and_b32 %s, s2, 7" % s(sP8))
    asm("s_lshr_b32 %s, s2, 3" % s(sSLOT))
    if not D1 or stamp:
        asm("s_getreg_b32 %s, hwreg(HW_REG_XCC_ID, 0, 4)" % s(sXCC))
        asm("s_and_b32 %s, %s, 7" % (s(sXCC), s(sXCC)))
    if not D1:
        asm("s_cmp_ge_u32 %s, 15" % s(sSLOT))
        asm("s_cselect_b32 %s, 1, 0" % s(sBR))
        asm("s_cselect_b32 %s, 15, 0" % s(sT0))
        asm("s_sub_u32 %s, %s, %s" % (s(sCB), s(sSLOT), s(sT0)))
        asm("s_mov_b32 %s, %s" % (s(sRB), s(sP8)))
    else:
        asm("s_lshr_b32 %s, %s, 2" % (s(sBR), s(sP8)))
        asm("s_and_b32 %s, %s, 3" % (s(sT0), s(sP8)))
        asm("s_mul_i32 %s, %s, 30" % (s(sT0), s(sT0)))
        asm("s_add_u32 %s, %s, %s" % (s(sT0), s(sT0), s(sSLOT)))
        asm("s_cmp_ge_u32 %s, 60" % s(sT0))
        asm("s_cselect_b32 %s, 4, 0" % s(sT1))
        asm("s_cselect_b32 %s, 60, 0" % s(sT2))
        asm("s_sub_u32 %s, %s, %s" % (s(sT0), s(sT0), s(sT2)))
        asm("s_lshr_b32 %s, %s, 2" % (s(sCB), s(sT0)))
        asm("s_and_b32 %s, %s, 3" % (s(sT0), s(sT0)))
        asm("s_add_u32 %s, %s, %s" % (s(sRB), s(sT1), s(sT0)))
    asm("s_cmp_ge_u32 %s, 5" % s(sCB))
    asm("s_cselect_b32 %s, 1, 0" % s(sPART))
    asm("s_cmp_ge_u32 %s, 10" % s(sCB))
    asm("s_cselect_b32 %s, 2, %s" % (s(sPART), s(sPART)))
    asm("s_mul_i32 %s, %s, 5" % (s(sT0), s(sPART)))
    asm("s_sub_u32 %s, %s, %s" % (s(sCBP), s(sCB), s(sT0)))
    asm("s_and_b32 %s, %s, 3" % (s(sW4), s(sW)))
    asm("s_lshr_b32 %s, %s, 1" % (s(sWM), s(sW4)))
    asm("s_and_b32 %s, %s, 1" % (s(sWN), s(sW4)))
    asm("s_waitcnt lgkmcnt(0)")
    if opts.get("wsoff"):
        asm("s_add_u32 s6, s6, 0x%x" % (opts["wsoff"] << 20))
        asm("s_addc_u32 s7, s7, 0")
    srd(asm, SWS, "s6", "s7", WS_REC)
    srd(asm, SDBG, "s4", "s5", 256)
    asm("s_cmp_ge_u32 %s, 4" % s(sW))
    asm("s_cbranch_scc1 %s_p1h" % N)
    ACC = 0; FX = [128, 144]; FW = [160, 168]
    vXA, vWA = 176, 180
    vL, vT, vU, vV = 194, 195, 196, 197
    vSO = 198; TMP = 200; TE = 216; vN = 220
    sSTG, sDELTA, sRBUF, sNEG = 52, 53, 54, 55
    sTN, sGG, sSO = 56, 57, 58
    sC0, sC1 = 60, 62
    asm("s_or_b32 %s, s2, %s" % (s(sT0), s(sW)))
    asm("s_cmp_lg_u32 %s, 0" % s(sT0))
    asm("s_cbranch_scc1 %s_nonon" % N)
    asm("s_memrealtime %s" % s(sNON, 2))
    asm("s_waitcnt lgkmcnt(0)")
    asm("s_or_b32 %s, %s, 1" % (s(sNON), s(sNON)))
    asm("v_mov_b32 v2, %s" % s(sNON))
    asm("v_mov_b32 v3, %s" % s(sNON + 1))
    asm("v_mov_b32 v4, 0")
    asm("s_mov_b64 exec, 1")
    asm("buffer_store_dwordx2 v[2:3], v4, %s, 0 offen sc1" % s(SDBG, 4))
    asm("s_mov_b64 exec, -1")
    asm.label("%s_nonon" % N)
    TLBW = opts.get("tlbw", 0)
    if TLBW:
        asm("s_cmp_lg_u32 %s, 2" % s(sW))
        asm("s_cbranch_scc1 %s_notlb" % N)
        asm("s_load_dwordx2 s[4:5], s[0:1], 48")
        lane(5)
        asm("v_lshlrev_b32 v5, %d, v5" % TLBW)
        asm("buffer_load_dword v199, v5, %s, 0 offen sc1" % s(SWS, 4))
        asm("s_waitcnt lgkmcnt(0)")
        srd(asm, SB_, "s4", "s5", 2048 * 2560)
        asm("buffer_load_dword v199, v5, %s, 0 offen sc1" % s(SB_, 4))
        asm("v_mov_b32 v5, 128")
        asm("buffer_load_dword v199, v5, %s, 0 offen sc1" % s(SDBG, 4))
        asm.label("%s_notlb" % N)
    asm("s_cmp_lg_u32 %s, 0" % s(sW))
    asm("s_cbranch_scc1 %s_noinit" % N)
    if not D1:
        asm("s_lshl_b32 %s, %s, 3" % (s(sT0), s(sXCC)))
        asm("s_lshl_b64 s[4:5], 1, %s" % s(sT0))
        asm("s_lshl_b32 %s, %s, 3" % (s(sT0), s(sP8)))
        asm("s_add_u32 %s, %s, 64" % (s(sT0), s(sT0)))
        asm("v_mov_b32 v2, s4")
        asm("v_mov_b32 v3, s5")
        asm("v_mov_b32 v4, %s" % s(sT0))
        asm("s_mov_b64 exec, 1")
        asm("buffer_atomic_add_x2 v[2:3], v4, %s, 0 offen" % s(SDBG, 4))
        asm("s_mov_b64 exec, -1")
    lane(5)
    asm("v_lshlrev_b32 v5, 2, v5")
    asm("v_add_u32 v5, 0x%x, v5" % L_SYNC)
    asm("v_mov_b32 v6, 0")
    asm("s_mov_b32 exec_lo, 0xffff")
    asm("s_mov_b32 exec_hi, 0")
    asm("ds_write_b32 v5, v6")
    asm("s_mov_b64 exec, -1")
    asm("s_waitcnt lgkmcnt(0)")
    if opts.get("ft", 0):
        lane(5)
        asm("s_lshl_b32 %s, %s, 2" % (s(sT0), s(sP8)))
        asm("s_and_b32 %s, %s, 3" % (s(sT1), s(sSLOT)))
        asm("s_add_u32 %s, %s, %s" % (s(sT0), s(sT0), s(sT1)))
        asm("s_lshl_b32 %s, %s, 7" % (s(sT0), s(sT0)))
        asm("s_add_u32 %s, %s, %d" % (s(sT0), s(sT0), F2))
        asm("s_lshr_b32 %s, %s, 2" % (s(sT1), s(sP8)))
        asm("s_lshl_b32 %s, %s, 3" % (s(sT1), s(sT1)))
        asm("s_and_b32 %s, %s, 3" % (s(sT2), s(sP8)))
        asm("s_lshl_b32 %s, %s, 1" % (s(sT2), s(sT2)))
        asm("s_lshr_b32 %s, %s, 4" % (s(sT3), s(sSLOT)))
        asm("s_add_u32 %s, %s, %s" % (s(sT2), s(sT2), s(sT3)))
        asm("s_add_u32 %s, %s, %s" % (s(sT1), s(sT1), s(sT2)))
        asm("s_lshl_b32 %s, %s, 8" % (s(sT1), s(sT1)))
        if R3 > 1:
            asm("s_and_b32 %s, %s, %d" % (s(sT2), s(sSLOT), R3 - 1))
            asm("s_lshl_b32 %s, %s, 12" % (s(sT2), s(sT2)))
            asm("s_add_u32 %s, %s, %s" % (s(sT1), s(sT1), s(sT2)))
        asm("s_add_u32 %s, %s, %d" % (s(sT1), s(sT1), F3 - 128))
        asm("v_lshlrev_b32 v6, 3, v5")
        asm("v_add_u32 v7, %s, v6" % s(sT0))
        asm("v_add_u32 v6, %s, v6" % s(sT1))
        asm("v_cmp_gt_u32 vcc, 16, v5")
        asm("s_nop 1")
        asm("v_cndmask_b32 v6, v6, v7, vcc")
        asm("s_mov_b32 exec_lo, -1")
        asm("s_mov_b32 exec_hi, 0xffff")
        asm("buffer_load_dword v199, v6, %s, 0 offen sc1" % s(SWS, 4))
        asm("s_mov_b64 exec, -1")
    asm.label("%s_noinit" % N)
    asm("s_cmp_ge_u32 %s, 30" % s(sSLOT))
    asm("s_cbranch_scc1 %s_p2c" % N)
    RT = 0; RTI = 1; touch = None
    def rt_block():
        nonlocal RT, RTI, touch
        RT = opts.get("rt", 0)
        RT0 = opts.get("rt0", 3)
        vTX, vTW = 222, 223
        sTX, sTW = 63, 68
        if RT:
            asm("s_mul_i32 %s, %s, 36" % (s(sT0), s(sSLOT)))
            asm("s_mul_i32 %s, %s, 9" % (s(sT1), s(sW4)))
            asm("s_add_u32 %s, %s, %s" % (s(sT0), s(sT0), s(sT1)))
            asm("v_add_u32 %s, %s, %s" % (v(vT), s(sT0), v(vL)))
            asm("s_lshr_b32 %s, %s, 1" % (s(sT1), s(sP8)))
            asm("s_and_b32 %s, %s, 1" % (s(sT1), s(sT1)))
            asm("s_lshl_b32 %s, %s, 10" % (s(sT1), s(sT1)))
            asm("v_add_u32 %s, %s, %s" % (v(vV), s(sT1), v(vT)))
            asm("v_mul_u32_u24 %s, 1280, %s" % (v(vTX), v(vV)))
            asm("v_lshrrev_b32 %s, 4, %s" % (v(vU), v(vT)))
            asm("v_mul_u32_u24 %s, 3840, %s" % (v(vU), v(vU)))
            asm("v_and_b32 %s, 15, %s" % (v(TMP), v(vT)))
            asm("v_lshl_add_u32 %s, %s, 7, %s" % (v(vU), v(TMP), v(vU)))
            asm("s_and_b32 %s, %s, 1" % (s(sT1), s(sP8)))
            asm("s_mul_i32 %s, %s, %d" % (s(sT1), s(sT1), 7 * 256))
            asm("v_add_u32 %s, %s, %s" % (v(vTW), s(sT1), v(vU)))
            asm("v_mov_b32 %s, 0x%x" % (v(TMP), OOB))
            asm("v_cmp_gt_u32 vcc, 1024, %s" % v(vT))
            asm("s_nop 1")
            asm("v_cndmask_b32 %s, %s, %s, vcc" % (v(vTX), v(TMP), v(vTX)))
            asm("v_cndmask_b32 %s, %s, %s, vcc" % (v(vTW), v(TMP), v(vTW)))
            asm("s_cmp_eq_u32 %s, 0" % s(sBR))
            asm("s_cselect_b32 s4, s36, s40")
            asm("s_cselect_b32 s5, s37, s41")
            srd(asm, SB_, "s4", "s5", 2048 * 1280)
            asm("s_cmp_eq_u32 %s, 0" % s(sBR))
            asm("s_cselect_b32 s4, s38, s42")
            asm("s_cselect_b32 s5, s39, s43")
            srd(asm, 64, "s4", "s5", 640 * 3840)
            asm("s_movk_i32 %s, %d" % (s(sTX), RT0 * 128))
            asm("s_mov_b32 %s, %d" % (s(sTW), RT0 * 64 * 3840))
        def touch_():
            asm("s_mov_b32 exec_lo, 0x1ff")
            asm("s_mov_b32 exec_hi, 0")
            asm("buffer_load_dword v199, %s, %s, %s offen" % (v(vTX), s(SB_, 4), s(sTX)))
            asm("buffer_load_dword v199, %s, s[64:67], %s offen" % (v(vTW), s(sTW)))
            asm("s_mov_b64 exec, -1")
            asm("s_add_u32 %s, %s, 128" % (s(sTX), s(sTX)))
            asm("s_add_u32 %s, %s, %d" % (s(sTW), s(sTW), 64 * 3840))
        RTI = opts.get("rtinit", 1)
        if RT and RTI == 1:
            for k in range(RT0, RT): touch_()
        if RT and RTI == 0:
            asm("s_movk_i32 %s, %d" % (s(sTX), RT * 128))
            asm("s_mov_b32 %s, %d" % (s(sTW), RT * 64 * 3840))
        touch = touch_
    lane(vL)
    if opts.get("rtearly", 0): rt_block()
    asm.c("X frag read addr")
    asm("v_and_b32 %s, 31, %s" % (v(vT), v(vL)))
    asm("s_lshl_b32 %s, %s, 7" % (s(sT0), s(sWM)))
    asm("v_add_u32 %s, %s, %s" % (v(vU), s(sT0), v(vT)))
    asm("v_lshlrev_b32 %s, 7, %s" % (v(vU), v(vU)))
    asm("v_bfe_u32 %s, %s, 1, 3" % (v(vT), v(vT)))
    asm("v_lshrrev_b32 %s, 5, %s" % (v(vV), v(vL)))
    for ks in range(4):
        asm("v_add_u32 %s, %d, %s" % (v(TMP), 2 * ks, v(vV)))
        asm("v_xor_b32 %s, %s, %s" % (v(TMP), v(TMP), v(vT)))
        asm("v_lshl_add_u32 %s, %s, 4, %s" % (v(vXA + ks), v(TMP), v(vU)))
    asm.c("W frag read addr")
    asm("v_bfe_u32 %s, %s, 2, 2" % (v(vT), v(vL)))
    asm("v_lshrrev_b32 %s, 5, %s" % (v(vU), v(vL)))
    asm("v_lshl_add_u32 %s, %s, 3, %s" % (v(vU), v(vU), v(vT)))
    asm("v_lshlrev_b32 %s, 8, %s" % (v(vU), v(vU)))
    asm("v_add_u32 %s, 32768, %s" % (v(vU), v(vU)))
    asm("v_and_b32 %s, 1, %s" % (v(vV), v(vL)))
    asm("v_lshl_add_u32 %s, %s, 3, %s" % (v(vU), v(vV), v(vU)))
    asm("v_bfe_u32 %s, %s, 4, 1" % (v(vV), v(vL)))
    asm("v_lshlrev_b32 %s, 1, %s" % (v(vV), v(vV)))
    asm("v_bfe_u32 %s, %s, 1, 1" % (v(TMP), v(vL)))
    asm("v_add_u32 %s, %s, %s" % (v(vV), v(vV), v(TMP)))
    asm("s_lshl_b32 %s, %s, 3" % (s(sT0), s(sWN)))
    asm("v_add_u32 %s, %s, %s" % (v(vV), s(sT0), v(vV)))
    asm("v_lshlrev_b32 %s, 2, %s" % (v(vT), v(vT)))
    for tn in range(2):
        asm("v_add_u32 %s, %d, %s" % (v(TMP), 4 * tn, v(vV)))
        asm("v_xor_b32 %s, %s, %s" % (v(TMP), v(TMP), v(vT)))
        asm("v_lshl_add_u32 %s, %s, 4, %s" % (v(vWA + tn), v(TMP), v(vU)))
    for i in range(128):
        asm("v_mov_b32 %s, 0" % v(ACC + i))
    asm("s_mul_i32 %s, %s, 3" % (s(sT0), s(sBR)))
    asm("s_add_u32 %s, %s, %s" % (s(sT0), s(sT0), s(sPART)))
    asm("s_mul_i32 %s, %s, %d" % (s(sT0), s(sT0), REG))
    asm("s_add_u32 s6, s6, %s" % s(sT0))
    asm("s_addc_u32 s7, s7, 0")
    SO = SA_
    srd(asm, SO, "s6", "s7", REG)
    def rdX(st_, tm, ks):
        asm("ds_read_b128 %s, %s offset:%d" % (v(FX[st_] + 4 * tm, 4), v(vXA + ks), tm * 4096))
    def rdW(st_, tn, a_, ks):
        asm("ds_read_b64_tr_b16 %s, %s offset:%d" % (v(FW[st_] + 4 * tn + 2 * a_, 2), v(vWA + tn), ks * 4096 + a_ * 1024))
    def reads(st_, ks):
        return [lambda: rdW(st_, 0, 0, ks), lambda: rdW(st_, 0, 1, ks), lambda: rdX(st_, 0, ks), lambda: rdX(st_, 1, ks),
                lambda: rdW(st_, 1, 0, ks), lambda: rdW(st_, 1, 1, ks), lambda: rdX(st_, 2, ks), lambda: rdX(st_, 3, ks)]
    MORD = [(0, 0), (1, 0), (0, 1), (1, 1), (2, 0), (2, 1), (3, 0), (3, 1)]
    def mfma(orient, st_, tm, tn):
        acc = v(ACC + (tm * 2 + tn) * 16, 16)
        x = v(FX[st_] + 4 * tm, 4); w = v(FW[st_] + 4 * tn, 4)
        if orient == "T": asm("v_mfma_f32_32x32x16_bf16 %s, %s, %s, %s" % (acc, w, x, acc))
        else: asm("v_mfma_f32_32x32x16_bf16 %s, %s, %s, %s" % (acc, x, w, acc))
    PF = opts.get("pf", 0)
    if PF:
        nst_ = 10 - PF
        per = (1024 * nst_ + 119) // 120
        assert per <= 64
        asm("s_lshl_b32 %s, %s, 2" % (s(sT0), s(sSLOT)))
        asm("s_add_u32 %s, %s, %s" % (s(sT0), s(sT0), s(sW4)))
        asm("s_mul_i32 %s, %s, %d" % (s(sT0), s(sT0), per))
        asm("v_add_u32 %s, %s, %s" % (v(vT), s(sT0), v(vL)))
        asm("v_lshrrev_b32 %s, 10, %s" % (v(vU), v(vT)))
        asm("v_and_b32 %s, 1023, %s" % (v(vV), v(vT)))
        asm("s_lshr_b32 %s, %s, 1" % (s(sT1), s(sP8)))
        asm("s_and_b32 %s, %s, 1" % (s(sT1), s(sT1)))
        asm("s_lshl_b32 %s, %s, 10" % (s(sT1), s(sT1)))
        asm("v_add_u32 %s, %s, %s" % (v(vV), s(sT1), v(vV)))
        asm("v_mul_u32_u24 %s, 1280, %s" % (v(vV), v(vV)))
        asm("v_lshl_add_u32 %s, %s, 7, %s" % (v(vV), v(vU), v(vV)))
        asm("v_add_u32 %s, %d, %s" % (v(vV), PF * 128, v(vV)))
        asm("v_lshrrev_b32 %s, 4, %s" % (v(vU), v(vT)))
        asm("v_add_u32 %s, %d, %s" % (v(vU), 64 * PF, v(vU)))
        asm("v_mul_u32_u24 %s, 3840, %s" % (v(vU), v(vU)))
        asm("v_and_b32 %s, 15, %s" % (v(TMP), v(vT)))
        asm("v_lshl_add_u32 %s, %s, 7, %s" % (v(vU), v(TMP), v(vU)))
        asm("s_and_b32 %s, %s, 1" % (s(sT1), s(sP8)))
        asm("s_mul_i32 %s, %s, %d" % (s(sT1), s(sT1), 7 * 256))
        asm("v_add_u32 %s, %s, %s" % (v(vU), s(sT1), v(vU)))
        asm("v_mov_b32 %s, 0x%x" % (v(TMP), OOB))
        asm("v_cmp_gt_u32 vcc, %d, %s" % (1024 * nst_, v(vT)))
        asm("v_cmp_gt_u32 %s, %d, %s" % (s(sPC, 2), per, v(vL)))
        asm("s_nop 1")
        asm("s_and_b64 vcc, vcc, %s" % s(sPC, 2))
        asm("s_nop 1")
        asm("v_cndmask_b32 %s, %s, %s, vcc" % (v(vV), v(TMP), v(vV)))
        asm("v_cndmask_b32 %s, %s, %s, vcc" % (v(vU), v(TMP), v(vU)))
        asm("s_cmp_eq_u32 %s, 0" % s(sBR))
        asm("s_cselect_b32 s4, s36, s40")
        asm("s_cselect_b32 s5, s37, s41")
        srd(asm, SB_, "s4", "s5", 2048 * 1280)
        asm("buffer_load_dword v199, %s, %s, 0 offen" % (v(vV), s(SB_, 4)))
        asm("s_cmp_eq_u32 %s, 0" % s(sBR))
        asm("s_cselect_b32 s4, s38, s42")
        asm("s_cselect_b32 s5, s39, s43")
        srd(asm, SB_, "s4", "s5", 640 * 3840)
        asm("buffer_load_dword v199, %s, %s, 0 offen" % (v(vU), s(SB_, 4)))
    if not opts.get("rtearly", 0): rt_block()
    asm("s_lshl_b32 %s, %s, 3" % (s(sT0), s(sRB)))
    asm("s_lshl_b32 %s, %s, 2" % (s(sT1), s(sWM)))
    asm("s_add_u32 %s, %s, %s" % (s(sT3), s(sT0), s(sT1)))
    sVAR = 59
    asm("s_mov_b32 %s, %s" % (s(sVAR), s(sPART)))
    asm("s_cmp_eq_u32 %s, 0" % s(sBR))
    asm("s_cbranch_scc1 %s_varok" % N)
    asm("s_cmp_eq_u32 %s, 2" % s(sPART))
    asm("s_cselect_b32 %s, 2, 3" % s(sVAR))
    asm.label("%s_varok" % N)
    asm("s_cmp_eq_u32 %s, 0" % s(sVAR))
    asm("s_cbranch_scc1 %s_adrT" % N)
    asm("s_cmp_eq_u32 %s, 3" % s(sVAR))
    asm("s_cbranch_scc1 %s_adrT" % N)
    asm("s_mul_i32 %s, %s, 40960" % (s(sT0), s(sT3)))
    asm("s_lshl_b32 %s, %s, 11" % (s(sT1), s(sCBP)))
    asm("s_add_u32 %s, %s, %s" % (s(sT0), s(sT0), s(sT1)))
    asm("s_lshl_b32 %s, %s, 10" % (s(sT1), s(sWN)))
    asm("s_add_u32 %s, %s, %s" % (s(sT0), s(sT0), s(sT1)))
    asm("v_lshrrev_b32 %s, 5, %s" % (v(vT), v(vL)))
    asm("v_mul_u32_u24 %s, 10240, %s" % (v(vT), v(vT)))
    asm("v_and_b32 %s, 31, %s" % (v(vU), v(vL)))
    asm("v_lshl_add_u32 %s, %s, 4, %s" % (v(vSO), v(vU), v(vT)))
    asm("v_add_u32 %s, %s, %s" % (v(vSO), s(sT0), v(vSO)))
    asm("s_movk_i32 %s, 512" % s(sTN))
    asm("s_movk_i32 %s, 20480" % s(sGG))
    asm("s_branch %s_adrok" % N)
    asm.label("%s_adrT" % N)
    asm("s_mul_i32 %s, %s, 40" % (s(sT0), s(sT3)))
    asm("s_lshl_b32 %s, %s, 3" % (s(sT1), s(sCBP)))
    asm("s_add_u32 %s, %s, %s" % (s(sT0), s(sT0), s(sT1)))
    asm("s_lshl_b32 %s, %s, 2" % (s(sT1), s(sWN)))
    asm("s_add_u32 %s, %s, %s" % (s(sT0), s(sT0), s(sT1)))
    asm("s_lshl_b32 %s, %s, 10" % (s(sT0), s(sT0)))
    asm("v_lshlrev_b32 %s, 4, %s" % (v(vSO), v(vL)))
    asm("v_add_u32 %s, %s, %s" % (v(vSO), s(sT0), v(vSO)))
    asm("s_movk_i32 %s, 2048" % s(sTN))
    asm("s_movk_i32 %s, 1024" % s(sGG))
    asm.label("%s_adrok" % N)
    asm("s_cmp_lt_u32 %s, 2" % s(sVAR))
    asm("s_cselect_b32 %s, %s, 1.0" % (s(sC0), fhex(LOG2E)))
    asm("s_cmp_eq_u32 %s, 3" % s(sVAR))
    asm("s_cbranch_scc0 %s_c0ok" % N)
    asm("s_cmp_eq_u32 %s, 0" % s(sPART))
    asm("s_cselect_b32 %s, %s, 1.0" % (s(sC0), fhex(QSCALE)))
    asm.label("%s_c0ok" % N)
    asm("s_mov_b32 %s, %s" % (s(sC0 + 1), s(sC0)))
    asm("s_mov_b32 %s, %s" % (s(sC1), fhex(1e-6)))
    asm("s_mov_b32 %s, 0" % s(sSTG))
    asm("s_mov_b32 %s, 0" % s(sRBUF))
    asm("s_mov_b32 %s, 0x%x" % (s(sNEG), (-2 * 49152) & 0xffffffff))
    asm("s_barrier")
    st(1)
    for f in reads(0, 0): f()
    if RT and RTI == 2:
        for k in range(3, RT): touch()
    asm("s_cmp_eq_u32 %s, 0" % s(sVAR))
    asm("s_cbranch_scc1 %s_loopT" % N)
    asm("s_cmp_eq_u32 %s, 3" % s(sVAR))
    asm("s_cbranch_scc0 %s_loopF" % N)
    def loop(orient):
        L = "%s_loop%s" % (N, orient)
        asm(".p2align 4")
        asm.label(L)
        for ks in range(4):
            st_ = ks & 1; nst_ = st_ ^ 1
            if ks == 3:
                asm("s_cbranch_scc1 %s_final%s" % (N, orient))
            asm("s_waitcnt lgkmcnt(0)")
            if ks < 3:
                rs = reads(nst_, ks + 1)
                for m in range(8):
                    mfma(orient, st_, *MORD[m])
                    if m < 4:
                        rs[2 * m](); rs[2 * m + 1]()
                    if RT and opts.get("rtroll", 1) and ks == 0 and m == 5:
                        D_ = lab("rt")
                        asm("s_cmp_lt_u32 %s, %d" % (s(sSTG), 10 - RT))
                        asm("s_cbranch_scc0 %s" % D_)
                        touch()
                        asm.label(D_)
                    if ks == 2 and m == 4:
                        asm("s_add_u32 %s, %s, 1" % (s(sRBUF), s(sRBUF)))
                        asm("s_cmp_eq_u32 %s, 3" % s(sRBUF))
                        asm("s_cselect_b32 %s, 0, %s" % (s(sRBUF), s(sRBUF)))
                        asm("s_cselect_b32 %s, %s, 49152" % (s(sDELTA), s(sNEG)))
                    if ks == 2 and m == 5:
                        for k in range(3): asm("v_add_u32 %s, %s, %s" % (v(vXA + k), s(sDELTA), v(vXA + k)))
                    if ks == 2 and m == 6:
                        asm("v_add_u32 %s, %s, %s" % (v(vXA + 3), s(sDELTA), v(vXA + 3)))
                        for k in range(2): asm("v_add_u32 %s, %s, %s" % (v(vWA + k), s(sDELTA), v(vWA + k)))
                        asm("s_add_u32 %s, %s, 1" % (s(sSTG), s(sSTG)))
                        asm("s_cmp_eq_u32 %s, 9" % s(sSTG))
            else:
                mfma(orient, st_, *MORD[0])
                mfma(orient, st_, *MORD[1])
                asm("s_barrier")
                rs = reads(nst_, 0)
                mfma(orient, st_, *MORD[2])
                rs[0](); rs[1](); rs[2]()
                mfma(orient, st_, *MORD[3])
                rs[3](); rs[4](); rs[5]()
                mfma(orient, st_, *MORD[4])
                rs[6](); rs[7]()
                mfma(orient, st_, *MORD[5])
                mfma(orient, st_, *MORD[6])
                mfma(orient, st_, *MORD[7])
        asm("s_branch %s" % L)
    loop("T")
    loop("F")
    WALL = 224
    XS = [FX[0], FX[1]]
    def epi_lines(kind, q):
        tm, tn = q >> 1, q & 1
        b = ACC + q * 16
        tb_ = TMP + 8 * (q & 1)
        L_ = []
        if kind == "phi":
            for qq in range(4):
                r0 = b + 4 * qq
                L_.append("v_pk_mul_f32 %s, %s, %s" % (v(TE, 2), v(r0, 2), s(sC0, 2)))
                L_.append("v_pk_mul_f32 %s, %s, %s" % (v(TE + 2, 2), v(r0 + 2, 2), s(sC0, 2)))
                for k in range(4): L_.append("v_exp_f32_e64 %s, %s clamp" % (v(TE + k), v(TE + k)))
                for k in range(4): L_.append("v_max_f32 %s, %s, %s" % (v(r0 + k), s(sC1), v(r0 + k)))
                L_.append("v_pk_add_f32 %s, %s, %s" % (v(r0, 2), v(r0, 2), v(TE, 2)))
                L_.append("v_pk_add_f32 %s, %s, %s" % (v(r0 + 2, 2), v(r0 + 2, 2), v(TE + 2, 2)))
                L_.append("v_cvt_pk_bf16_f32 %s, %s, %s" % (v(tb_ + 2 * qq), v(r0), v(r0 + 1)))
                L_.append("v_cvt_pk_bf16_f32 %s, %s, %s" % (v(tb_ + 2 * qq + 1), v(r0 + 2), v(r0 + 3)))
        else:
            if kind == "scale":
                for p_ in range(8): L_.append("v_pk_mul_f32 %s, %s, %s" % (v(b + 2 * p_, 2), v(b + 2 * p_, 2), s(sC0, 2)))
            for p_ in range(8): L_.append("v_cvt_pk_bf16_f32 %s, %s, %s" % (v(tb_ + p_), v(b + 2 * p_), v(b + 2 * p_ + 1)))
        L_.append("s_mul_i32 %s, %s, %d" % (s(sSO), s(sTN), tn))
        if tm: L_.append("s_add_u32 %s, %s, %d" % (s(sSO), s(sSO), tm * 40960))
        L_.append("buffer_store_dwordx4 %s, %s, %s, %s offen%s" % (v(tb_, 4), v(vSO), s(SO, 4), s(sSO), SC))
        L_.append("s_add_u32 %s, %s, %s" % (s(sSO), s(sSO), s(sGG)))
        L_.append("buffer_store_dwordx4 %s, %s, %s, %s offen%s" % (v(tb_ + 4, 4), v(vSO), s(SO, 4), s(sSO), SC))
        return L_
    def final(orient, kind, label):
        asm.label(label)
        sync_issue(vN, vN + 2)
        asm("s_waitcnt lgkmcnt(0)")
        mfma(orient, 1, *MORD[0])
        mfma(orient, 1, *MORD[1])
        asm("s_barrier")
        rd = []
        for ks in range(4):
            rd.append("ds_read_b128 %s, %s" % (v(XS[0] + 4 * ks, 4), v(vXA + ks)))
            for a_ in range(2):
                rd.append("ds_read_b64_tr_b16 %s, %s offset:%d" % (v(WALL + ks * 4 + 2 * a_, 2), v(vWA), ks * 4096 + a_ * 1024))
        for ks in range(4):
            for a_ in range(2):
                rd.append("ds_read_b64_tr_b16 %s, %s offset:%d" % (v(WALL + (4 + ks) * 4 + 2 * a_, 2), v(vWA + 1), ks * 4096 + a_ * 1024))
        per = [4, 4, 3, 3, 3, 3]
        pos = 0
        for m in range(2, 8):
            mfma(orient, 1, *MORD[m])
            for k in range(per[m - 2]):
                asm(rd[pos]); pos += 1
        assert pos == len(rd) == 20
        for q in range(8):
            tm, tn = q >> 1, q & 1
            xs = XS[tm & 1]
            if q == 0:
                asm("s_waitcnt lgkmcnt(8)")
            elif q == 1:
                asm("s_waitcnt lgkmcnt(4)")
            elif tn == 0:
                asm("s_waitcnt lgkmcnt(0)")
                if tm == 3: asm("s_barrier")
            ep = epi_lines(kind, q - 2) if q >= 2 else []
            if q == 2: ep = ["s_nop 7"] + ep
            chunk = (len(ep) + 3) // 4
            acc = v(ACC + q * 16, 16)
            for ks in range(4):
                x = v(xs + 4 * ks, 4); w = v(WALL + (tn * 4 + ks) * 4, 4)
                if orient == "T": asm("v_mfma_f32_32x32x16_bf16 %s, %s, %s, %s" % (acc, w, x, acc))
                else: asm("v_mfma_f32_32x32x16_bf16 %s, %s, %s, %s" % (acc, x, w, acc))
                if tn == 0 and tm < 3:
                    asm("ds_read_b128 %s, %s offset:%d" % (v(XS[(tm + 1) & 1] + 4 * ks, 4), v(vXA + ks), (tm + 1) * 4096))
                for ln in ep[ks * chunk:(ks + 1) * chunk]: asm(ln)
        st(2)
        for ln in epi_lines(kind, 6): asm(ln)
        for ln in epi_lines(kind, 7): asm(ln)
        asm("s_branch %s_fin1" % N)
    asm.label("%s_finalT" % N)
    asm("s_cmp_eq_u32 %s, 0" % s(sVAR))
    asm("s_cbranch_scc0 %s_fin_ts" % N)
    final("T", "phi", "%s_fin_tp" % N)
    final("T", "scale", "%s_fin_ts" % N)
    asm.label("%s_finalF" % N)
    asm("s_cmp_eq_u32 %s, 1" % s(sVAR))
    asm("s_cbranch_scc0 %s_fin_fn" % N)
    final("F", "phi", "%s_fin_fp" % N)
    final("F", "plain", "%s_fin_fn" % N)
    asm.label("%s_fin1" % N)
    asm("v_mov_b32 %s, 0x%x" % (v(vT), W_ISS))
    asm("v_mov_b32 %s, 1" % v(vU))
    asm("s_mov_b64 exec, 1")
    asm("ds_add_u32 %s, %s" % (v(vT), v(vU)))
    asm("s_mov_b64 exec, -1")
    st(3)
    get_sync(vN, vN + 2, preissued=True)
    release()
    asm("s_lshl_b32 %s, %s, 3" % (s(sT1), s(sBR)))
    asm("s_add_u32 %s, %s, %s" % (s(sT1), s(sT1), s(sRB)))
    asm("s_lshl_b32 %s, %s, 4" % (s(sT1), s(sT1)))
    asm("s_add_u32 %s, %s, %s" % (s(sT1), s(sT1), s(sCB)))
    asm("s_lshl_b32 %s, %s, 3" % (s(sT1), s(sT1)))
    asm("s_add_u32 %s, %s, %d" % (s(sT1), s(sT1), F1))
    lds_arrive(W_CNT1, 4, vN + 2, vN, s(sT1), replicas=REPL)
    st(4)
    asm("s_branch %s_p2setup" % N)
    asm.label("%s_p2c" % N)
    asm("s_barrier")
    get_sync(220, 222)
    asm("s_branch %s_p2setup" % N)

    asm.label("%s_p1h" % N)
    hL, hT, hU, hV = 2, 3, 4, 5
    vDX, vDW, hTMP = 8, 16, 20
    sXOFF, sWOFF, sM0X, sM0W, sDBUF, sHS = 52, 53, 54, 55, 56, 57
    SX, SWD = SA_, SB_
    asm("s_cmp_lt_u32 %s, 30" % s(sSLOT))
    asm("s_cbranch_scc1 %s_p1h2" % N)
    asm("s_barrier")
    asm("s_branch %s_p2h" % N)
    asm.label("%s_p1h2" % N)
    lane(hL)
    asm("v_lshrrev_b32 %s, 3, %s" % (v(hT), v(hL)))
    asm("s_lshl_b32 %s, %s, 6" % (s(sT0), s(sW4)))
    asm("v_add_u32 %s, %s, %s" % (v(hT), s(sT0), v(hT)))
    asm("s_movk_i32 %s, 1280" % s(sT1))
    asm("v_mul_lo_u32 %s, %s, %s" % (v(hT), v(hT), s(sT1)))
    asm("v_lshrrev_b32 %s, 4, %s" % (v(hU), v(hL)))
    asm("v_and_b32 %s, 7, %s" % (v(hV), v(hL)))
    for par in range(2):
        if par == 1: asm("v_add_u32 %s, 4, %s" % (v(hU), v(hU)))
        asm("v_xor_b32 %s, %s, %s" % (v(hTMP + par), v(hV), v(hU)))
        asm("v_lshl_add_u32 %s, %s, 4, %s" % (v(hTMP + par), v(hTMP + par), v(hT)))
    for i in range(8):
        asm("v_add_u32 %s, %d, %s" % (v(vDX + i), i * 8 * 1280 - (i & 3) * 1024, v(hTMP + (i & 1))))
    asm("v_lshrrev_b32 %s, 4, %s" % (v(hU), v(hL)))
    asm("s_lshl_b32 %s, %s, 4" % (s(sT0), s(sW4)))
    asm("v_add_u32 %s, %s, %s" % (v(hT), s(sT0), v(hU)))
    asm("s_movk_i32 %s, 3840" % s(sT1))
    asm("v_mul_lo_u32 %s, %s, %s" % (v(hT), v(hT), s(sT1)))
    asm("v_lshlrev_b32 %s, 2, %s" % (v(hU), v(hU)))
    asm("v_and_b32 %s, 15, %s" % (v(hV), v(hL)))
    asm("v_xor_b32 %s, %s, %s" % (v(hV), v(hV), v(hU)))
    asm("v_lshl_add_u32 %s, %s, 4, %s" % (v(hT), v(hV), v(hT)))
    for i in range(4):
        asm("v_add_u32 %s, %d, %s" % (v(vDW + i), i * 4 * 3840 - i * 1024, v(hT)))
    asm("s_cmp_eq_u32 %s, 0" % s(sBR))
    asm("s_cselect_b32 s36, s36, s40")
    asm("s_cselect_b32 s37, s37, s41")
    asm("s_cselect_b32 s38, s38, s42")
    asm("s_cselect_b32 s39, s39, s43")
    asm("s_mul_i32 %s, %s, %d" % (s(sT0), s(sRB), 256 * 1280))
    asm("s_add_u32 s36, s36, %s" % s(sT0))
    asm("s_addc_u32 s37, s37, 0")
    asm("s_lshl_b32 %s, %s, 8" % (s(sT0), s(sCB)))
    asm("s_add_u32 s38, s38, %s" % s(sT0))
    asm("s_addc_u32 s39, s39, 0")
    asm("s_sub_u32 %s, %d, %s" % (s(sT1), 640 * 3840, s(sT0)))
    srd(asm, SX, "s36", "s37", 256 * 1280)
    srd(asm, SWD, "s38", "s39", s(sT1))
    def dma_stage():
        asm("s_lshl_b32 %s, %s, 13" % (s(sT0), s(sW4)))
        asm("s_add_u32 %s, %s, %s" % (s(sM0X), s(sDBUF), s(sT0)))
        asm("s_lshl_b32 %s, %s, 12" % (s(sT0), s(sW4)))
        asm("s_add_u32 %s, %s, %s" % (s(sT0), s(sT0), s(sDBUF)))
        asm("s_add_u32 %s, %s, 32768" % (s(sM0W), s(sT0)))
        for idx in range(8):
            if idx == 0:
                asm("s_mov_b32 m0, %s" % s(sM0X)); asm("s_nop 0")
            if idx == 4:
                asm("s_add_u32 m0, %s, 4096" % s(sM0X)); asm("s_nop 0")
            asm("buffer_load_dwordx4 %s, %s, %s offen offset:%d lds" % (v(vDX + idx), s(SX, 4), s(sXOFF), (idx & 3) * 1024))
        asm("s_mov_b32 m0, %s" % s(sM0W)); asm("s_nop 0")
        for j in range(4):
            asm("buffer_load_dwordx4 %s, %s, %s offen offset:%d lds" % (v(vDW + j), s(SWD, 4), s(sWOFF), j * 1024))
        asm("s_add_u32 %s, %s, 128" % (s(sXOFF), s(sXOFF)))
        asm("s_add_u32 %s, %s, %d" % (s(sWOFF), s(sWOFF), 64 * 3840))
        asm("s_add_u32 %s, %s, 49152" % (s(sDBUF), s(sDBUF)))
        asm("s_cmp_ge_u32 %s, %d" % (s(sDBUF), 3 * 49152))
        asm("s_cselect_b32 %s, 0, %s" % (s(sDBUF), s(sDBUF)))
    WARM = opts.get("warm", 3)
    if WARM:
        asm("s_load_dwordx2 s[4:5], s[0:1], 16")
        asm("s_load_dwordx2 s[6:7], s[0:1], 40")
        asm("s_lshl_b32 s58, %s, 2" % s(sSLOT))
        asm("s_add_u32 s58, s58, %s" % s(sW4))
        asm("s_mul_i32 s58, s58, %d" % (54 * 128))
        asm("v_lshlrev_b32 v6, 7, %s" % v(hL))
    asm("s_mov_b32 %s, 0" % s(sXOFF))
    asm("s_mov_b32 %s, 0" % s(sWOFF))
    asm("s_mov_b32 %s, 0" % s(sDBUF))
    asm("s_mov_b32 %s, 0" % s(sHS))
    pro = opts.get("pro", 2)
    Lp = "%s_hpro" % N
    asm.label(Lp)
    dma_stage()
    asm("s_add_u32 %s, %s, 1" % (s(sHS), s(sHS)))
    asm("s_cmp_eq_u32 %s, %d" % (s(sHS), pro))
    asm("s_cbranch_scc0 %s_hpro_n" % N)
    st(3)
    asm("s_waitcnt vmcnt(%d)" % (12 * (pro - 1)))
    st(1)
    asm("s_barrier")
    asm.label("%s_hpro_n" % N)
    asm("s_cmp_lt_u32 %s, 3" % s(sHS))
    asm("s_cbranch_scc1 %s" % Lp)
    asm("s_mov_b32 %s, 0" % s(sHS))
    Lh = "%s_hloop" % N
    asm.label(Lh)
    asm("s_cmp_lt_u32 %s, 8" % s(sHS))
    asm("s_cbranch_scc1 %s_hw12" % N)
    asm("s_waitcnt vmcnt(0)")
    asm("s_branch %s_hw" % N)
    asm.label("%s_hw12" % N)
    asm("s_waitcnt vmcnt(12)")
    asm.label("%s_hw" % N)
    asm("s_barrier")
    asm("s_cmp_lt_u32 %s, 7" % s(sHS))
    asm("s_cbranch_scc0 %s_hnodma" % N)
    dma_stage()
    if WARM:
        asm("s_cmp_eq_u32 %s, %d" % (s(sHS), WARM - 1))
        asm("s_cbranch_scc0 %s_hnodma" % N)
        asm("s_waitcnt lgkmcnt(0)")
        asm("s_cmp_lt_u32 %s, 4" % s(sP8))
        asm("s_cselect_b32 s4, s4, s6")
        asm("s_cselect_b32 s5, s5, s7")
        srd(asm, 60, "s4", "s5", 640 * 1280)
        asm("s_mov_b32 exec_lo, -1")
        asm("s_mov_b32 exec_hi, 0x3fffff")
        asm("buffer_load_dword v7, v6, s[60:63], s58 offen")
        asm("s_mov_b64 exec, -1")
        if opts.get("ft", 0):
            asm("s_cmp_eq_u32 %s, 0" % s(sW4))
            asm("s_cbranch_scc0 %s_hnodma" % N)
            asm("s_lshl_b32 %s, %s, 2" % (s(sT0), s(sP8)))
            asm("s_and_b32 %s, %s, 3" % (s(sT1), s(sSLOT)))
            asm("s_add_u32 %s, %s, %s" % (s(sT0), s(sT0), s(sT1)))
            asm("s_and_b32 %s, %s, %d" % (s(sT0), s(sT0) if opts.get("repl", 8) > 8 else s(sP8), opts.get("repl", 8) - 1))
            asm("s_lshl_b32 %s, %s, 11" % (s(sT0), s(sT0)))
            asm("s_add_u32 %s, %s, %d" % (s(sT0), s(sT0), F1))
            asm("s_lshr_b32 %s, %s, 2" % (s(sT1), s(sSLOT)))
            asm("s_lshl_b32 %s, %s, 7" % (s(sT1), s(sT1)))
            asm("s_add_u32 %s, %s, %s" % (s(sT0), s(sT0), s(sT1)))
            asm("v_lshlrev_b32 v23, 3, %s" % v(hL))
            asm("v_add_u32 v22, %s, v23" % s(sT0))
            asm("v_subrev_u32 v22, 256, v22")
            asm("s_add_u32 %s, %s, %d" % (s(sT0), s(sT0), 7 * 128))
            asm("v_add_u32 v23, %s, v23" % s(sT0))
            asm("v_cmp_gt_u32 vcc, 32, %s" % v(hL))
            asm("s_nop 1")
            asm("v_cndmask_b32 v23, v22, v23, vcc")
            asm("s_mov_b32 exec_lo, -1")
            asm("s_mov_b32 exec_hi, 0xffff")
            asm("buffer_load_dword v24, v23, %s, 0 offen sc1" % s(SWS, 4))
            asm("s_mov_b64 exec, -1")
    asm.label("%s_hnodma" % N)
    asm("s_add_u32 %s, %s, 1" % (s(sHS), s(sHS)))
    asm("s_cmp_lt_u32 %s, 10" % s(sHS))
    asm("s_cbranch_scc1 %s" % Lh)
    asm.label("%s_p2h" % N)
    st(2)
    sBR3, sRB3, sCB3 = 64, 65, 66
    def decode3():
        if not D1:
            asm("s_lshr_b32 %s, %s, 4" % (s(sBR3), s(sSLOT)))
            asm("s_bfe_u32 %s, %s, 0x10003" % (s(sRB3), s(sSLOT)))
            asm("s_lshl_b32 %s, %s, 1" % (s(sT0), s(sP8)))
            asm("s_add_u32 %s, %s, %s" % (s(sRB3), s(sRB3), s(sT0)))
            asm("s_and_b32 %s, %s, 7" % (s(sCB3), s(sSLOT)))
        else:
            asm("s_lshr_b32 %s, %s, 2" % (s(sBR3), s(sP8)))
            asm("s_and_b32 %s, %s, 3" % (s(sT0), s(sP8)))
            asm("s_lshl_b32 %s, %s, 2" % (s(sT0), s(sT0)))
            asm("s_lshr_b32 %s, %s, 3" % (s(sRB3), s(sSLOT)))
            asm("s_add_u32 %s, %s, %s" % (s(sRB3), s(sRB3), s(sT0)))
            asm("s_and_b32 %s, %s, 7" % (s(sCB3), s(sSLOT)))
    get_sync(220, 222)
    sHH, sRB2, sG0, sDQ, sTB, sNT = 44, 45, 46, 47, 48, 49
    sMSK, sM40 = 50, 52
    sP = 36
    sQM = 54
    sOffO, sOffQA, sBIG, sEPS = 62, 63, 67, 68
    S = 0; O = 144; Q = 160; F = [168, 176]; CM8 = 184; CM0 = 200; VF = [184, 192]
    vM, vNM = 216, 218
    vT = 220
    vLin, vKa, vVa, vL = 228, 229, 230, 231
    vOm, vOr, vFo, vU = 232, 233, 234, 235
    PB = 236
    PA = 168
    vL8 = 242
    AW = 4
    asm.label("%s_p2setup" % N)
    if not D1:
        asm("s_mov_b32 %s, %s" % (s(sHH), s(sSLOT)))
        asm("s_mov_b32 %s, %s" % (s(sRB2), s(sP8)))
    else:
        asm("s_lshl_b32 %s, %s, 2" % (s(sT0), s(sP8)))
        asm("s_and_b32 %s, %s, 3" % (s(sHH), s(sSLOT)))
        asm("s_add_u32 %s, %s, %s" % (s(sHH), s(sHH), s(sT0)))
        asm("s_lshr_b32 %s, %s, 2" % (s(sRB2), s(sSLOT)))
    asm("s_mul_i32 %s, %s, 5" % (s(sT0), s(sHH)))
    asm("s_lshr_b32 %s, %s, 2" % (s(sG0), s(sT0)))
    asm("s_and_b32 %s, %s, 3" % (s(sDQ), s(sT0)))
    asm("s_lshl_b32 %s, %s, 3" % (s(sTB), s(sRB2)))
    asm("s_add_u32 %s, %s, %s" % (s(sTB), s(sTB), s(sW)))
    asm("s_add_u32 %s, %s, 1" % (s(sNT), s(sTB)))
    asm("s_min_u32 %s, %s, 9" % (s(sNT), s(sNT)))
    asm("s_mov_b32 %s, 0x000fffff" % s(sMSK)); asm("s_mov_b32 %s, 0x000fffff" % s(sMSK + 1))
    asm("s_mov_b32 %s, -1" % s(sM40)); asm("s_mov_b32 %s, 0xff" % s(sM40 + 1))
    lane(vL)
    asm("v_lshlrev_b32 %s, 3, %s" % (v(vL8), v(vL)))
    asm("v_lshlrev_b32 %s, 4, %s" % (v(vLin), v(vL)))
    asm("s_mov_b32 %s, %s" % (s(sBIG), fhex(BIG)))
    asm("v_and_b32 %s, 31, %s" % (v(vU), v(vL)))
    asm("v_lshrrev_b32 %s, 5, %s" % (v(vT + 4), v(vL)))
    asm("v_lshlrev_b32 %s, 2, %s" % (v(vT + 4), v(vT + 4)))
    asm("v_sub_u32 %s, %s, %s" % (v(vU), v(vU), v(vT + 4)))
    asm("v_mov_b32 %s, %s" % (v(vT + 5), s(sBIG)))
    asm("v_mov_b32 %s, 0" % v(vT + 6))
    for r0 in range(0, 16, 4):
        for k in range(4):
            r = r0 + k
            asm("v_cmp_le_i32 %s, %d, %s" % (s(sP + 2 * k, 2), 8 * (r >> 2) + (r & 3), v(vU)))
        asm("s_nop 1")
        for k in range(4):
            r = r0 + k
            asm("v_cndmask_b32 %s, %s, %s, %s" % (v(CM8 + r), v(vT + 5), v(vT + 6), s(sP + 2 * k, 2)))
            asm("v_cndmask_b32 %s, %s, %s, %s" % (v(CM0 + r), v(vT + 6), v(vT + 5), s(sP + 2 * k, 2)))
    for gg in range(2):
        for p in range(2):
            k = gg * 2 + p
            for h in range(2):
                asm("s_sub_u32 %s, %d, %s" % (s(sT0), 4 * gg + 2 * p + h, s(sDQ)))
                asm("s_cmp_le_u32 %s, 4" % s(sT0))
                asm("s_cselect_b32 %s, -1, 0" % s(sQM + 2 * k + h))
    asm("s_lshl_b32 %s, %s, 11" % (s(sT0), s(sW)))
    asm("s_add_u32 %s, %s, %d" % (s(sT0), s(sT0), L_K))
    asm("v_add_u32 %s, %s, %s" % (v(vKa), s(sT0), v(vLin)))
    asm("v_lshrrev_b32 %s, 5, %s" % (v(vT), v(vL)))
    asm("v_mul_u32_u24 %s, 20, %s" % (v(vT), v(vT)))
    asm("v_and_b32 %s, 31, %s" % (v(vU), v(vL)))
    asm("v_add_u32 %s, %s, %s" % (v(vT), v(vT), v(vU)))
    asm("v_lshlrev_b32 %s, 4, %s" % (v(vT), v(vT)))
    asm("s_mul_i32 %s, %s, 1280" % (s(sT0), s(sW)))
    asm("s_add_u32 %s, %s, %d" % (s(sT0), s(sT0), L_V))
    asm("v_add_u32 %s, %s, %s" % (v(vVa), s(sT0), v(vT)))
    asm("s_lshl_b32 %s, %s, 5" % (s(sT0), s(sTB)))
    asm("s_add_u32 %s, %s, %s" % (s(sT0), s(sT0), s(sHH)))
    asm("s_mul_i32 %s, %s, 1280" % (s(sOffO), s(sT0)))
    asm("v_mov_b32 %s, %s" % (v(vOm), v(vLin)))
    asm("v_add_u32 %s, 1024, %s" % (v(vOr), v(vL8)))
    asm("v_mov_b32 %s, 0x%x" % (v(vT + 4), OOB))
    asm("v_cmp_gt_u32 vcc, 32, %s" % v(vL))
    asm("s_nop 1")
    asm("v_cndmask_b32 %s, %s, %s, vcc" % (v(vOr), v(vT + 4), v(vOr)))
    asm("s_mul_i32 %s, %s, 40" % (s(sT2), s(sTB)))
    asm("s_add_u32 %s, %s, %s" % (s(sT2), s(sT2), s(sG0)))
    asm("s_lshl_b32 %s, %s, 10" % (s(sT2), s(sT2)))
    asm("s_add_u32 %s, %s, %d" % (s(sOffQA), s(sT2), R_QA))
    def q_loads():
        asm("s_add_u32 %s, %s, %d" % (s(sT3), s(sOffQA), R_QB - R_QA))
        asm("buffer_load_dwordx4 %s, %s, %s, %s offen sc1" % (v(Q, 4), v(vLin), s(SWS, 4), s(sT3)))
        asm("buffer_load_dwordx4 %s, %s, %s, %s offen offset:1024 sc1" % (v(Q + 4, 4), v(vLin), s(SWS, 4), s(sT3)))
    FINE = opts.get("fine", 1)
    def tile_masks():
        asm("s_lshr_b32 %s, %s, 3" % (s(sT1), s(sG0)))
        asm("s_lshl_b32 %s, 1, %s" % (s(sT1), s(sT1)))
        asm("s_add_u32 %s, %s, 1" % (s(sT2), s(sG0)))
        asm("s_lshr_b32 %s, %s, 3" % (s(sT2), s(sT2)))
        asm("s_lshl_b32 %s, 1, %s" % (s(sT2), s(sT2)))
        asm("s_or_b32 %s, %s, %s" % (s(sT1), s(sT1), s(sT2)))
        asm("s_mul_i32 %s, %s, 20" % (s(sT3), s(sHH)))
        asm("s_lshr_b32 %s, %s, 7" % (s(sT2), s(sT3)))
        asm("s_lshl_b32 %s, 1, %s" % (s(sT2), s(sT2)))
        asm("s_add_u32 %s, %s, 19" % (s(sT3), s(sT3)))
        asm("s_lshr_b32 %s, %s, 7" % (s(sT3), s(sT3)))
        asm("s_lshl_b32 %s, 1, %s" % (s(sT3), s(sT3)))
        asm("s_or_b32 %s, %s, %s" % (s(sT2), s(sT2), s(sT3)))
    def own_tile_wait():
        D = lab("otw")
        asm("s_cmp_ge_u32 %s, 30" % s(sSLOT))
        asm("s_cbranch_scc1 %s" % D)
        lds_wait(W_CNT1, vT, vT + 1, atleast=4)
        asm.label(D)
    def lds_inc(word):
        asm("v_mov_b32 %s, 0x%x" % (v(vT), word))
        asm("v_mov_b32 %s, 1" % v(vT + 1))
        asm("s_mov_b64 exec, 1")
        asm("ds_add_u32 %s, %s" % (v(vT), v(vT + 1)))
        asm("s_mov_b64 exec, -1")
    if opts.get("pad", 0):
        asm("s_mov_b64 exec, 0")
        for k in range(8):
            asm("s_cmp_eq_u32 %s, %d" % (s(sW), (k + 4) & 7))
            asm("s_cbranch_scc1 %s_padseg%d" % (N, k))
        asm.label("%s_walkret" % N)
        asm("s_mov_b64 exec, -1")
    asm("s_cmp_eq_u32 %s, %d" % (s(sW), AW))
    asm("s_cbranch_scc1 %s_aearly" % N)
    asm("s_cmp_eq_u32 %s, 5" % s(sW))
    asm("s_cbranch_scc1 %s_w5" % N)
    asm("s_cmp_ge_u32 %s, 6" % s(sW))
    asm("s_cbranch_scc1 %s_w67" % N)
    sTK, sKO, sLK, sIk = 4, 5, 6, 7
    lds_wait(W_S1, vT, vT + 1)
    st(4) if opts.get("kvst") else None
    asm("s_lshl_b32 %s, %s, 2" % (s(sIk), s(sW)))
    asm("s_cmp_eq_u32 %s, 0" % s(sRB2))
    asm("s_cselect_b32 %s, 8, 0" % s(sT0))
    asm("s_cmp_lt_u32 %s, %s" % (s(sIk), s(sT0)))
    asm("s_cbranch_scc1 %s_nok" % N)
    asm("s_lshl_b32 %s, %s, 3" % (s(sTK), s(sRB2)))
    asm("s_add_u32 %s, %s, %s" % (s(sTK), s(sTK), s(sIk)))
    asm("s_sub_u32 %s, %s, 8" % (s(sTK), s(sTK)))
    asm("s_mul_i32 %s, %s, 40" % (s(sKO), s(sTK)))
    asm("s_add_u32 %s, %s, %s" % (s(sKO), s(sKO), s(sG0)))
    asm("s_lshl_b32 %s, %s, 10" % (s(sKO), s(sKO)))
    asm("s_add_u32 %s, %s, %d" % (s(sKO), s(sKO), R_KB))
    asm("s_lshl_b32 %s, %s, 11" % (s(sLK), s(sIk)))
    asm("s_add_u32 %s, %s, %d" % (s(sLK), s(sLK), L_K))
    for ii in range(4):
        asm("s_add_u32 m0, %s, %d" % (s(sLK), ii * 2048))
        asm("s_nop 0")
        asm("buffer_load_dwordx4 %s, %s, %s offen sc1 lds" % (v(vLin), s(SWS, 4), s(sKO)))
        asm("buffer_load_dwordx4 %s, %s, %s offen offset:1024 sc1 lds" % (v(vLin), s(SWS, 4), s(sKO)))
        if ii < 3: asm("s_add_u32 %s, %s, 40960" % (s(sKO), s(sKO)))
    asm.label("%s_nok" % N)
    q_loads()
    asm("s_waitcnt vmcnt(0)")
    lds_inc(W_K)
    asm("s_branch %s_kwait" % N)
    asm.label("%s_w67" % N)
    vDWO = 243
    sDA, sDM = 4, 5
    SWO = SA_
    decode3()
    asm("s_load_dwordx2 s[4:5], s[0:1], 16")
    asm("s_load_dwordx2 s[6:7], s[0:1], 40")
    asm("s_movk_i32 %s, 6554" % s(sT2))
    asm("s_movk_i32 %s, 1280" % s(sT3))
    for b in range(5):
        asm("v_add_u32 %s, %d, %s" % (v(vT), 64 * b, v(vL)))
        asm("v_mul_lo_u32 %s, %s, %s" % (v(vT + 1), v(vT), s(sT2)))
        asm("v_lshrrev_b32 %s, 16, %s" % (v(vT + 1), v(vT + 1)))
        asm("v_mul_u32_u24 %s, 10, %s" % (v(vT + 2), v(vT + 1)))
        asm("v_sub_u32 %s, %s, %s" % (v(vT), v(vT), v(vT + 2)))
        asm("v_lshlrev_b32 %s, 4, %s" % (v(vT), v(vT)))
        asm("v_mad_u32_u24 %s, %s, %s, %s" % (v(vDWO + b), v(vT + 1), s(sT3), v(vT)))
        if 0 < b < 4: asm("v_subrev_u32 %s, %d, %s" % (v(vDWO + b), b * 1024, v(vDWO + b)))
    asm("s_waitcnt lgkmcnt(0)")
    asm("s_cmp_eq_u32 %s, 0" % s(sBR3))
    asm("s_cselect_b32 s4, s4, s6")
    asm("s_cselect_b32 s5, s5, s7")
    asm("s_mul_i32 %s, %s, 160" % (s(sT0), s(sCB3)))
    asm("s_add_u32 s4, s4, %s" % s(sT0))
    asm("s_addc_u32 s5, s5, 0")
    asm("s_sub_u32 %s, %d, %s" % (s(sT1), 640 * 1280, s(sT0)))
    srd(asm, SWO, "s4", "s5", s(sT1))
    asm("s_and_b32 %s, %s, 1" % (s(sT0), s(sW)))
    asm("s_mul_i32 %s, %s, %d" % (s(sDA), s(sT0), 32 * 1280))
    asm("s_mul_i32 %s, %s, 5120" % (s(sDM), s(sT0)))
    def wo_group():
        asm("s_mov_b32 m0, %s" % s(sDM)); asm("s_nop 0")
        asm("buffer_load_dwordx4 %s, %s, %s offen lds" % (v(vDWO), s(SWO, 4), s(sDA)))
        for b in range(1, 4):
            asm("buffer_load_dwordx4 %s, %s, %s offen offset:%d lds" % (v(vDWO + b), s(SWO, 4), s(sDA), b * 1024))
        asm("s_add_u32 m0, %s, 4096" % s(sDM)); asm("s_nop 0")
        asm("buffer_load_dwordx4 %s, %s, %s offen lds" % (v(vDWO + 4), s(SWO, 4), s(sDA)))
        asm("s_add_u32 %s, %s, %d" % (s(sDA), s(sDA), 2 * 32 * 1280))
        asm("s_add_u32 %s, %s, %d" % (s(sDM), s(sDM), 2 * 5120))
    asm("s_cmp_ge_u32 %s, 30" % s(sSLOT))
    asm("s_cbranch_scc1 %s_wogo" % N)
    lds_wait(W_ISS, vT, vT + 1, atleast=4)
    asm.label("%s_wogo" % N)
    asm("s_mov_b32 s6, 0")
    asm.label("%s_woloop" % N)
    wo_group()
    asm("s_add_u32 s6, s6, 1")
    asm("s_cmp_lt_u32 s6, 10")
    asm("s_cbranch_scc1 %s_woloop" % N)
    lds_wait(W_S1, vT, vT + 1)
    asm("s_waitcnt vmcnt(30)")
    q_loads()
    asm("v_cmp_le_u32 vcc, 20, %s" % v(vL))
    asm("v_mov_b32 %s, 0" % v(vT))
    asm("v_mov_b32 %s, %d" % (v(vT + 1), 10240 - 320))
    asm("v_cndmask_b32 %s, %s, %s, vcc" % (v(vT), v(vT), v(vT + 1)))
    asm("v_add_u32 %s, %s, %s" % (v(vFo), v(vT), v(vLin)))
    asm("s_and_b32 %s, %s, 1" % (s(sIk), s(sW)))
    asm("s_lshl_b32 %s, %s, 3" % (s(sIk), s(sIk)))
    asm("s_or_b32 %s, %s, %s" % (s(sT0), s(sIk), s(sRB2)))
    asm("s_cmp_eq_u32 %s, 0" % s(sT0))
    asm("s_cbranch_scc1 %s_nov" % N)
    asm("s_lshl_b32 %s, %s, 3" % (s(sTK), s(sRB2)))
    asm("s_add_u32 %s, %s, %s" % (s(sTK), s(sTK), s(sIk)))
    asm("s_sub_u32 %s, %s, 8" % (s(sTK), s(sTK)))
    asm("s_mul_i32 %s, %s, 40960" % (s(sKO), s(sTK)))
    asm("s_mul_i32 %s, %s, 320" % (s(sT1), s(sHH)))
    asm("s_add_u32 %s, %s, %s" % (s(sKO), s(sKO), s(sT1)))
    asm("s_add_u32 %s, %s, %d" % (s(sKO), s(sKO), R_VB))
    asm("s_mul_i32 %s, %s, 1280" % (s(sLK), s(sIk)))
    asm("s_add_u32 %s, %s, %d" % (s(sLK), s(sLK), L_V))
    asm("s_mov_b64 exec, %s" % s(sM40, 2))
    for ii in range(8):
        asm("s_add_u32 m0, %s, %d" % (s(sLK), ii * 1280))
        asm("s_add_u32 %s, %s, %d" % (s(sT1), s(sKO), 20480 - 640))
        asm("buffer_load_dwordx4 %s, %s, %s offen sc1 lds" % (v(vFo), s(SWS, 4), s(sKO)))
        asm("buffer_load_dwordx4 %s, %s, %s offen offset:640 sc1 lds" % (v(vFo), s(SWS, 4), s(sT1)))
        if ii < 7: asm("s_add_u32 %s, %s, 40960" % (s(sKO), s(sKO)))
    asm("s_mov_b64 exec, -1")
    asm("s_waitcnt vmcnt(16)")
    asm("s_branch %s_kwait" % N)
    asm.label("%s_nov" % N)
    asm("s_waitcnt vmcnt(0)")
    asm("s_branch %s_kwait" % N)
    asm.label("%s_w5" % N)
    own_tile_wait()
    asm("s_add_u32 %s, %s, 7" % (s(sT0), s(sRB2)))
    asm("s_lshl_b32 %s, %s, 7" % (s(sT0), s(sT0)))
    asm("s_and_b32 %s, %s, %d" % (s(sT1), s(sP8) if REPL <= 8 else s(sHH), REPL - 1))
    asm("s_lshl_b32 %s, %s, 11" % (s(sT1), s(sT1)))
    asm("s_add_u32 %s, %s, %s" % (s(sT0), s(sT0), s(sT1)))
    asm("s_add_u32 %s, %s, %d" % (s(sPL), s(sT0), F1))
    if FINE:
        tile_masks()
        asm("s_lshl_b32 %s, %s, 5" % (s(sT3), s(sT1)))
        asm("s_lshl_b32 %s, %s, 10" % (s(sT2), s(sT2)))
        asm("s_or_b32 %s, %s, %s" % (s(sT3), s(sT3), s(sT2)))
        asm("s_or_b32 %s, %s, %s" % (s(sT1), s(sT1), s(sT3)))
        asm("s_lshl_b32 %s, %s, 16" % (s(sT1), s(sT1)))
        asm("s_cmp_eq_u32 %s, 0" % s(sRB2))
        asm("s_cselect_b32 %s, 0, %s" % (s(sT3), s(sT3)))
        asm("s_or_b32 %s, %s, %s" % (s(sT1), s(sT1), s(sT3)))
    else:
        asm("s_cmp_eq_u32 %s, 0" % s(sRB2))
        asm("s_cselect_b32 %s, 0, 0x7fe0" % s(sT1))
        asm("s_or_b32 %s, %s, 0x7fff0000" % (s(sT1), s(sT1)))
    if opts.get("ppoll", 0): ppoll(s(sPL), 32, [244, 246, 248], vL8, smask=s(sT1))
    else: poll(s(sPL), 32, vT, vL8, smask=s(sT1))
    lds_set(W_S1, vT, vT + 1)
    st(4)
    q_loads()
    asm("s_waitcnt vmcnt(0)")
    asm("s_branch %s_kwait" % N)
    asm.label("%s_aearly" % N)
    asm("v_lshrrev_b32 %s, 5, %s" % (v(vT), v(vL)))
    asm("v_mul_u32_u24 %s, 10240, %s" % (v(vT), v(vT)))
    asm("v_and_b32 %s, 31, %s" % (v(vU), v(vL)))
    asm("v_lshl_add_u32 %s, %s, 4, %s" % (v(vFo), v(vU), v(vT)))
    asm("v_mov_b32 %s, 0x3f803f80" % v(vT + 2))
    for r in range(64, 128): asm("v_mov_b32 %s, %s" % (v(r), v(vT + 2)))
    own_tile_wait()
    asm("s_lshl_b32 %s, %s, 7" % (s(sT0), s(sRB2)))
    asm("s_and_b32 %s, %s, %d" % (s(sT1), s(sP8) if REPL <= 8 else s(sHH), REPL - 1))
    asm("s_lshl_b32 %s, %s, 11" % (s(sT1), s(sT1)))
    asm("s_add_u32 %s, %s, %s" % (s(sT0), s(sT0), s(sT1)))
    asm("s_add_u32 %s, %s, %d" % (s(sPL), s(sT0), F1))
    if FINE:
        tile_masks()
        asm("s_lshl_b32 %s, %s, 5" % (s(sT3), s(sT2)))
        asm("s_lshl_b32 %s, %s, 10" % (s(sT2), s(sT2)))
        asm("s_or_b32 %s, %s, %s" % (s(sT1), s(sT1), s(sT3)))
        asm("s_or_b32 %s, %s, %s" % (s(sT1), s(sT1), s(sT2)))
        if opts.get("ppoll", 0): ppoll(s(sPL), 15, [244, 246, 248], vL8, smask=s(sT1))
        else: poll(s(sPL), 15, vT, vL8, smask=s(sT1))
    else:
        poll(s(sPL), 15, vT, vL8)
    lds_set(W_S1A, vT, vT + 1)
    st(4)
    asm("s_lshl_b32 %s, %s, 3" % (s(sT0), s(sRB2)))
    asm("s_mul_i32 %s, %s, 40960" % (s(sT0), s(sT0)))
    asm("s_mul_i32 %s, %s, 320" % (s(sT1), s(sHH)))
    asm("s_add_u32 %s, %s, %s" % (s(sT0), s(sT0), s(sT1)))
    asm("s_add_u32 %s, %s, %d" % (s(sT1), s(sT0), R_KA))
    asm("s_add_u32 %s, %s, %d" % (s(sT2), s(sT0), R_VA))
    asm("s_mov_b64 exec, %s" % s(sMSK, 2))
    for b in range(8):
        for m in range(2):
            asm("buffer_load_dwordx4 %s, %s, %s, %s offen sc1" % (v((b * 2 + m) * 4, 4), v(vFo), s(SWS, 4), s(sT1)))
            asm("buffer_load_dwordx4 %s, %s, %s, %s offen sc1" % (v(64 + (b * 2 + m) * 4, 4), v(vFo), s(SWS, 4), s(sT2)))
            asm("s_add_u32 %s, %s, 20480" % (s(sT1), s(sT1)))
            asm("s_add_u32 %s, %s, 20480" % (s(sT2), s(sT2)))
    asm("s_mov_b64 exec, -1")
    lds_wait(W_S1, vT, vT + 1)
    q_loads()
    for b in range(16):
        asm("s_waitcnt vmcnt(%d)" % (32 - 2 * b))
        c = "0" if b == 0 else v(O, 16)
        asm("v_mfma_f32_32x32x16_bf16 %s, %s, %s, %s" % (v(O, 16), v(b * 4, 4), v(64 + b * 4, 4), c))
    asm("s_lshl_b32 %s, %s, 3" % (s(sT0), s(sHH)))
    asm("s_add_u32 %s, %s, %s" % (s(sT0), s(sT0), s(sRB2)))
    asm("s_mul_i32 %s, %s, 3072" % (s(sT0), s(sT0)))
    asm("s_add_u32 %s, %s, %d" % (s(sT0), s(sT0), R_KVP))
    asm("s_nop 7"); asm("s_nop 1")
    for j in range(3):
        asm("buffer_store_dwordx4 %s, %s, %s, %s offen offset:%d sc1" % (v(O + 4 * j, 4), v(vLin), s(SWS, 4), s(sT0), j * 1024))
    asm("s_waitcnt vmcnt(3)")
    asm.label("%s_kwait" % N)
    asm(";PADBEGIN")
    lds_wait(W_K, vT, vT + 1, atleast=4)
    st(5)
    PRIO = opts.get("prio", 0)
    if PRIO:
        asm("s_cmp_%s_u32 %s, 4" % ("lt" if PRIO == 1 else "ge", s(sW)))
        asm("s_cbranch_scc0 %s_noprio" % N)
        asm("s_setprio 2")
        asm.label("%s_noprio" % N)
    def rdK(d, dst):
        for gg in range(2):
            asm("ds_read_b128 %s, %s offset:%d" % (v(dst + 4 * gg, 4), v(vKa), (8 - d) * 2048 + gg * 1024))
    def rdV(d, dst):
        asm("s_mov_b64 exec, %s" % s(sMSK, 2))
        for m in range(2):
            asm("ds_read_b128 %s, %s offset:%d" % (v(dst + 4 * m, 4), v(vVa), (8 - d) * 1280 + m * 640))
        asm("s_mov_b64 exec, -1")
    rdK(0, F[0])
    for gg in range(2):
        for p in range(2):
            k = gg * 2 + p
            for j in range(2):
                r = Q + 4 * gg + 2 * p + j
                asm("v_cndmask_b32 %s, 0, %s, %s" % (v(r), v(r), s(sQM + 2 * k, 2)))
    def maxes(d):
        b = S + 16 * d
        if d == 0:
            asm("v_max3_f32 %s, %s, %s, %s" % (v(vM), v(b), v(b + 1), v(b + 2)))
            for k in range(3, 15, 2):
                asm("v_max3_f32 %s, %s, %s, %s" % (v(vM), v(vM), v(b + k), v(b + k + 1)))
            asm("v_max_f32 %s, %s, %s" % (v(vM), v(vM), v(b + 15)))
        else:
            for k in range(0, 16, 2):
                asm("v_max3_f32 %s, %s, %s, %s" % (v(vM), v(vM), v(b + k), v(b + k + 1)))
    for d in range(9):
        cur, nxt = F[d & 1], F[(d + 1) & 1]
        asm("s_waitcnt lgkmcnt(0)")
        if d < 8: rdK(d + 1, nxt)
        if d > 0:
            asm("s_cmp_le_u32 %s, %d" % (s(sNT), d))
            asm("s_cbranch_scc1 %s_p1skip%d" % (N, d))
        else:
            asm("s_nop 1")
        c = v(CM8, 16) if d == 0 else (v(CM0, 16) if d == 8 else "0")
        b = v(S + 16 * d, 16)
        asm("v_mfma_f32_32x32x16_bf16 %s, %s, %s, %s" % (b, v(cur, 4), v(Q, 4), c))
        asm("v_mfma_f32_32x32x16_bf16 %s, %s, %s, %s" % (b, v(cur + 4, 4), v(Q + 4, 4), b))
        if d > 0:
            asm.label("%s_p1skip%d" % (N, d))
            if d == 1: asm("s_nop 7")
            maxes(d - 1)
            asm("s_cbranch_scc1 %s_p1end" % N)
    asm("s_nop 3")
    maxes(8)
    asm.label("%s_p1end" % N)
    st(6)
    SIGD = opts.get("sigd", 2)
    def a_signal():
        asm("s_cmp_lg_u32 %s, %d" % (s(sW), AW))
        asm("s_cbranch_scc1 %s_nosig" % N)
        asm("s_waitcnt vmcnt(0)")
        asm("s_lshl_b32 %s, %s, 4" % (s(sT0), s(sHH)))
        asm("s_add_u32 %s, %s, %s" % (s(sT0), s(sT0), s(sRB2)))
        asm("s_lshl_b32 %s, %s, 3" % (s(sT0), s(sT0)))
        asm("s_add_u32 %s, %s, %d" % (s(sT0), s(sT0), F2))
        flag_store(s(sT0), vT, vT + 2)
        asm.label("%s_nosig" % N)
    if SIGD < 0: a_signal()
    asm("s_cmp_lt_u32 %s, 6" % s(sW))
    asm("s_cbranch_scc1 %s_vw" % N)
    asm("s_waitcnt vmcnt(0)")
    lds_inc(W_V)
    asm.label("%s_vw" % N)
    lds_wait(W_V, vT, vT + 1, atleast=2)
    asm("s_waitcnt lgkmcnt(0)")
    asm("s_mov_b32 %s, 0x3f803f80" % s(sT0))
    for r in range(16): asm("v_mov_b32 %s, %s" % (v(VF[0] + r), s(sT0)))
    rdV(0, VF[0])
    asm("v_mov_b32 %s, %s" % (v(vT + 2), v(vM)))
    asm("v_mov_b32 %s, %s" % (v(vT + 3), v(vM)))
    asm("s_nop 1")
    asm("v_permlane32_swap_b32 %s, %s" % (v(vT + 2), v(vT + 3)))
    asm("s_nop 1")
    asm("v_max_f32 %s, %s, %s" % (v(vM), v(vT + 2), v(vT + 3)))
    asm("v_sub_f32 %s, 0, %s" % (v(vNM), v(vM)))
    asm("v_sub_f32 %s, 0, %s" % (v(vNM + 1), v(vM)))
    PQD = opts.get("pqd", 5)
    sPQ = 7
    asm("s_mov_b32 %s, 0" % s(sPQ))
    def pq_loads():
        lds_wait(W_S1A, vT + 4, vT + 5)
        asm("buffer_load_dwordx4 %s, %s, %s, %s offen sc1" % (v(Q, 4), v(vLin), s(SWS, 4), s(sOffQA)))
        asm("buffer_load_dwordx4 %s, %s, %s, %s offen offset:1024 sc1" % (v(Q + 4, 4), v(vLin), s(SWS, 4), s(sOffQA)))
    for d in range(9):
        cur, nxt = VF[d & 1], VF[(d + 1) & 1]
        b = S + 16 * d
        if d > 0:
            asm("s_cmp_le_u32 %s, %d" % (s(sNT), d))
            asm("s_cbranch_scc1 %s_p2end" % N)
        for k in range(8):
            asm("v_pk_add_f32 %s, %s, %s" % (v(b + 2 * k, 2), v(b + 2 * k, 2), v(vNM, 2)))
        for k in range(16):
            asm("v_exp_f32 %s, %s" % (v(b + k), v(b + k)))
        asm("s_waitcnt lgkmcnt(0)")
        if d < 8: rdV(d + 1, nxt)
        for k in range(8):
            asm("v_cvt_pk_bf16_f32 %s, %s, %s" % (v(b + k), v(b + 2 * k), v(b + 2 * k + 1)))
        asm("s_nop 1")
        asm("v_mfma_f32_32x32x16_bf16 %s, %s, %s, %s" % (v(O, 16), v(cur, 4), v(b, 4), "0" if d == 0 else v(O, 16)))
        asm("v_mfma_f32_32x32x16_bf16 %s, %s, %s, %s" % (v(O, 16), v(cur + 4, 4), v(b + 4, 4), v(O, 16)))
        if d == SIGD: a_signal()
        if d == PQD:
            pq_loads()
            asm("s_mov_b32 %s, 1" % s(sPQ))
    asm.label("%s_p2end" % N)
    if PRIO: asm("s_setprio 0")
    if PQD > 0:
        asm("s_cmp_lg_u32 %s, 0" % s(sPQ))
        asm("s_cbranch_scc1 %s_pqdone" % N)
        pq_loads()
        asm.label("%s_pqdone" % N)
    st(7)
    def normalize(dst, eps, O=O):
        asm("v_mov_b32 %s, %s" % (v(vT), v(O + 8)))
        asm("v_mov_b32 %s, %s" % (v(vT + 1), v(O + 8)))
        asm("s_nop 1")
        asm("v_permlane32_swap_b32 %s, %s" % (v(vT), v(vT + 1)))
        asm("s_nop 1")
        if eps: asm("v_add_f32 %s, %s, %s" % (v(vT + 1), s(sEPS), v(vT + 1)))
        asm("v_rcp_f32 %s, %s" % (v(vT + 1), v(vT + 1)))
        asm("s_nop 0")
        for k in range(12): asm("v_mul_f32 %s, %s, %s" % (v(O + k), v(vT + 1), v(O + k)))
        for k in range(6): asm("v_cvt_pk_bf16_f32 %s, %s, %s" % (v(dst + k), v(O + 2 * k), v(O + 2 * k + 1)))
    def store_o(src, region):
        asm("s_add_u32 %s, %s, %d" % (s(sT0), s(sOffO), region))
        asm("buffer_store_dwordx4 %s, %s, %s, %s offen%s" % (v(src, 4), v(vOm), s(SWS, 4), s(sT0), SC))
        asm("buffer_store_dwordx2 %s, %s, %s, %s offen%s" % (v(src + 4, 2), v(vOr), s(SWS, 4), s(sT0), SC))
    asm("s_mov_b32 %s, %s" % (s(sEPS), fhex(1e-6)))
    asm("s_cmp_ge_u32 %s, 4" % s(sW))
    asm("s_cbranch_scc1 %s_hiwaves" % N)
    asm("s_lshl_b32 %s, %s, 7" % (s(sPL), s(sHH)))
    asm("s_add_u32 %s, %s, %d" % (s(sPL), s(sPL), F2))
    asm("s_cmp_lg_u32 %s, 0" % s(sW))
    asm("s_cbranch_scc1 %s_w123" % N)
    poll_issue(s(sPL), vT + 4, vL8, 8)
    asm("s_nop 7"); asm("s_nop 3")
    normalize(PB, False)
    poll(s(sPL), 8, vT + 4, vL8, preissued=True)
    lds_set(W_S2, vT + 4, vT + 5)
    asm("s_branch %s_w0123" % N)
    asm.label("%s_w123" % N)
    asm("s_nop 7"); asm("s_nop 3")
    normalize(PB, False)
    lds_wait(W_S2, vT + 4, vT + 5)
    asm.label("%s_w0123" % N)
    asm("s_lshl_b32 %s, %s, 1" % (s(sT0), s(sW)))
    asm("s_sub_u32 %s, %s, %s" % (s(sT0), s(sT0), s(sDQ)))
    asm("v_lshrrev_b32 %s, 5, %s" % (v(vT), v(vL)))
    asm("v_add_u32 %s, %s, %s" % (v(vT), s(sT0), v(vT)))
    asm("v_and_b32 %s, 31, %s" % (v(vT + 1), v(vL)))
    asm("v_lshlrev_b32 %s, 4, %s" % (v(vT + 1), v(vT + 1)))
    asm("v_lshl_add_u32 %s, %s, 9, %s" % (v(vT + 1), v(vT), v(vT + 1)))
    asm("v_cmp_ge_u32 vcc, 4, %s" % v(vT))
    asm("v_mov_b32 %s, 0x%x" % (v(vT + 2), OOB))
    asm("s_nop 0")
    asm("v_cndmask_b32 %s, %s, %s, vcc" % (v(vU), v(vT + 2), v(vT + 1)))
    asm("s_lshl_b32 %s, %s, 3" % (s(sT0), s(sHH)))
    asm("s_mul_i32 %s, %s, 3072" % (s(sT0), s(sT0)))
    asm("s_add_u32 %s, %s, %d" % (s(sT0), s(sT0), R_KVP))
    for r in range(8):
        asm("buffer_load_dwordx4 %s, %s, %s, %s offen sc1" % (v(S + 4 * r, 4), v(vU), s(SWS, 4), s(sT0)))
        if r < 7: asm("s_add_u32 %s, %s, 3072" % (s(sT0), s(sT0)))
    store_o(PB, R_OB)
    asm("s_waitcnt vmcnt(2)")
    for r in range(1, 8):
        for k in range(4):
            asm("v_add_f32 %s, %s, %s" % (v(S + k), v(S + k), v(S + 4 * r + k)))
    asm("v_cvt_pk_bf16_f32 %s, %s, %s" % (v(vT), v(S), v(S + 1)))
    asm("v_cvt_pk_bf16_f32 %s, %s, %s" % (v(vT + 1), v(S + 2), v(S + 3)))
    asm("s_lshr_b32 %s, %s, 1" % (s(sT0), s(sW)))
    asm("s_lshl_b32 %s, %s, 10" % (s(sT0), s(sT0)))
    asm("s_and_b32 %s, %s, 1" % (s(sT1), s(sW)))
    asm("s_lshl_b32 %s, %s, 3" % (s(sT1), s(sT1)))
    asm("s_add_u32 %s, %s, %s" % (s(sT0), s(sT0), s(sT1)))
    asm("s_add_u32 %s, %s, %d" % (s(sT0), s(sT0), L_KVT))
    asm("v_add_u32 %s, %s, %s" % (v(vU), s(sT0), v(vLin)))
    asm("ds_write_b64 %s, %s" % (v(vU), v(vT, 2)))
    TAIL2 = opts.get("tail2", 0)
    sF3 = 69
    def f3_offset():
        asm("s_lshl_b32 %s, %s, 5" % (s(sF3), s(sRB2)))
        asm("s_add_u32 %s, %s, %s" % (s(sF3), s(sF3), s(sHH)))
        asm("s_lshl_b32 %s, %s, 3" % (s(sF3), s(sF3)))
        asm("s_add_u32 %s, %s, %d" % (s(sF3), s(sF3), F3))
    if TAIL2:
        D2 = S
        def a_product(vm):
            lds_wait(W_KVT, vT + 4, vT + 5, atleast=4)
            asm("v_add_u32 %s, 0x%x, %s" % (v(vU), L_KVT, v(vLin)))
            asm("ds_read_b128 %s, %s" % (v(F[0], 4), v(vU)))
            asm("ds_read_b128 %s, %s offset:1024" % (v(F[0] + 4, 4), v(vU)))
            f3_offset()
            asm("s_waitcnt vmcnt(%d) lgkmcnt(0)" % vm)
            asm("v_mfma_f32_32x32x16_bf16 %s, %s, %s, 0" % (v(D2, 16), v(F[0], 4), v(Q, 4)))
            asm("v_mfma_f32_32x32x16_bf16 %s, %s, %s, %s" % (v(D2, 16), v(F[0] + 4, 4), v(Q + 4, 4), v(D2, 16)))
        asm("s_waitcnt lgkmcnt(0)")
        lds_inc(W_KVT)
        a_product(2)
        asm("s_nop 7"); asm("s_nop 3")
        asm("s_branch %s_join" % N)
        asm.label("%s_hiwaves" % N)
        a_product(0)
        normalize(PB, False)
        store_o(PB, R_OB)
        asm.label("%s_join" % N)
        st(8)
        normalize(PA, True, O=D2)
        store_o(PA, R_OA)
    else:
        asm("s_branch %s_join" % N)
        asm.label("%s_hiwaves" % N)
        asm("s_nop 7"); asm("s_nop 3")
        normalize(PB, False)
        store_o(PB, R_OB)
        asm.label("%s_join" % N)
        asm("s_waitcnt lgkmcnt(0)")
        asm("s_barrier")
        st(8)
        asm("v_add_u32 %s, 0x%x, %s" % (v(vU), L_KVT, v(vLin)))
        asm("ds_read_b128 %s, %s" % (v(F[0], 4), v(vU)))
        asm("ds_read_b128 %s, %s offset:1024" % (v(F[0] + 4, 4), v(vU)))
        asm("s_lshl_b32 %s, %s, 5" % (s(sF3), s(sRB2)))
        asm("s_add_u32 %s, %s, %s" % (s(sF3), s(sF3), s(sHH)))
        asm("s_lshl_b32 %s, %s, 3" % (s(sF3), s(sF3)))
        asm("s_add_u32 %s, %s, %d" % (s(sF3), s(sF3), F3))
        asm("s_waitcnt vmcnt(2) lgkmcnt(0)")
        asm("v_mfma_f32_32x32x16_bf16 %s, %s, %s, 0" % (v(O, 16), v(F[0], 4), v(Q, 4)))
        asm("v_mfma_f32_32x32x16_bf16 %s, %s, %s, %s" % (v(O, 16), v(F[0] + 4, 4), v(Q + 4, 4), v(O, 16)))
        asm("s_nop 7"); asm("s_nop 3")
        normalize(PA, True)
        store_o(PA, R_OA)
    asm("s_add_u32 %s, %s, %d" % (s(sT1), s(sF3), 8 * 256))
    asm("s_waitcnt vmcnt(2)")
    release()
    lds_arrive(W_CNT3B, 8, vT + 6, vT + 4, s(sT1), replicas=R3, rshift=12)
    asm("s_waitcnt vmcnt(0)")
    release()
    lds_arrive(W_CNT3A, 8, vT + 6, vT + 4, s(sF3), replicas=R3, rshift=12)
    st(9)
    asm("s_cmp_ge_u32 %s, 4" % s(sW))
    asm("s_cbranch_scc1 %s_fin" % N)
    OF = 0; ACC3 = 160; WF = [200, 220]
    vOM, vOR, vWm, vWm2, vWr, vWr2 = 245, 246, 247, 248, 249, 250
    p3L, p3T, p3U, p3X = 251, 252, 253, 254
    vDW3 = 240
    sTB3, sOffO3, sOM = 44, 45, 46
    SOUT = SB_
    decode3()
    asm("s_load_dwordx2 s[4:5], s[0:1], 48")
    asm("s_lshl_b32 %s, %s, 2" % (s(sTB3), s(sRB3)))
    asm("s_add_u32 %s, %s, %s" % (s(sTB3), s(sTB3), s(sW)))
    lane(p3L)
    asm("v_lshlrev_b32 %s, 3, %s" % (v(p3X), v(p3L)))
    asm("s_lshl_b32 %s, %s, 3" % (s(sT0), s(sBR3)))
    asm("s_lshr_b32 %s, %s, 1" % (s(sT1), s(sRB3)))
    asm("s_add_u32 %s, %s, %s" % (s(sT0), s(sT0), s(sT1)))
    asm("s_lshl_b32 %s, %s, 8" % (s(sT0), s(sT0)))
    if R3 > 1:
        asm("s_and_b32 %s, %s, %d" % (s(sT1), s(sCB3), R3 - 1))
        asm("s_lshl_b32 %s, %s, 12" % (s(sT1), s(sT1)))
        asm("s_add_u32 %s, %s, %s" % (s(sT0), s(sT0), s(sT1)))
    asm("s_add_u32 %s, %s, %d" % (s(sPL), s(sT0), F3))
    asm("v_lshrrev_b32 %s, 4, %s" % (v(p3T), v(p3L)))
    asm("v_and_b32 %s, 15, %s" % (v(p3U), v(p3L)))
    asm("v_lshrrev_b32 %s, 1, %s" % (v(vWm2), v(p3T)))
    asm("v_mul_u32_u24 %s, 1280, %s" % (v(vOM), v(vWm2)))
    asm("v_and_b32 %s, 1, %s" % (v(vWm2), v(p3T)))
    asm("v_lshl_add_u32 %s, %s, 9, %s" % (v(vOM), v(vWm2), v(vOM)))
    asm("v_lshl_add_u32 %s, %s, 4, %s" % (v(vOM), v(p3U), v(vOM)))
    asm("v_mul_u32_u24 %s, 1280, %s" % (v(vOR), v(p3T)))
    asm("v_lshl_add_u32 %s, %s, 3, %s" % (v(vOR), v(p3U), v(vOR)))
    asm("v_add_u32 %s, 1024, %s" % (v(vOR), v(vOR)))
    asm("v_bfe_u32 %s, %s, 2, 2" % (v(p3U), v(p3L)))
    asm("v_lshrrev_b32 %s, 1, %s" % (v(vWm2), v(p3T)))
    asm("v_mul_u32_u24 %s, 20, %s" % (v(vWm), v(vWm2)))
    asm("v_and_b32 %s, 1, %s" % (v(vWm2), v(p3T)))
    asm("v_lshl_add_u32 %s, %s, 2, %s" % (v(vWm), v(vWm2), v(vWm)))
    asm("v_add_u32 %s, %s, %s" % (v(vWm), v(vWm), v(p3U)))
    asm("v_mul_u32_u24 %s, 160, %s" % (v(vWm), v(vWm)))
    asm("v_mul_u32_u24 %s, 20, %s" % (v(vWr), v(p3T)))
    asm("v_add_u32 %s, %s, %s" % (v(vWr), v(vWr), v(p3U)))
    asm("v_add_u32 %s, 16, %s" % (v(vWr), v(vWr)))
    asm("v_mul_u32_u24 %s, 160, %s" % (v(vWr), v(vWr)))
    asm("v_and_b32 %s, 3, %s" % (v(vWm2), v(p3L)))
    asm("v_lshl_add_u32 %s, %s, 3, %s" % (v(vWm), v(vWm2), v(vWm)))
    asm("v_lshl_add_u32 %s, %s, 3, %s" % (v(vWr), v(vWm2), v(vWr)))
    asm("v_add_u32 %s, 51200, %s" % (v(vWm2), v(vWm)))
    asm("v_add_u32 %s, 51200, %s" % (v(vWr2), v(vWr)))
    asm("s_mul_i32 %s, %s, %d" % (s(sOffO3), s(sBR3), REG))
    asm("s_add_u32 %s, %s, %d" % (s(sOffO3), s(sOffO3), R_OA))
    asm("s_mul_i32 %s, %s, 40960" % (s(sT0), s(sTB3)))
    asm("s_add_u32 %s, %s, %s" % (s(sOffO3), s(sOffO3), s(sT0)))
    asm("s_waitcnt lgkmcnt(0)")
    srd(asm, SOUT, "s4", "s5", 2048 * 2560)
    asm("s_cmp_lg_u32 %s, 0" % s(sW))
    asm("s_cbranch_scc1 %s_p3w" % N)
    if opts.get("ppoll", 0): ppoll(s(sPL), 32, [vDW3, vDW3 + 2], p3X)
    else: poll(s(sPL), 32, vDW3, p3X)
    lds_set(W_S3, p3T, p3U)
    asm("s_branch %s_p3go" % N)
    asm.label("%s_p3w" % N)
    lds_wait(W_S3, vDW3, vDW3 + 1)
    asm.label("%s_p3go" % N)
    st(10)
    def oloads(sidx):
        if sidx < 16:
            asm("s_add_u32 %s, %s, %d" % (s(sOM), s(sOffO3), 2560 * sidx))
            for rt in range(2):
                asm("buffer_load_dwordx4 %s, %s, %s, %s offen offset:%d%s" % (v(OF + (sidx * 2 + rt) * 4, 4), v(vOM), s(SWS, 4), s(sOM), rt * 256, LSC3))
        else:
            a_ = sidx - 16
            for half in range(2):
                asm("s_add_u32 %s, %s, %d" % (s(sOM), s(sOffO3), a_ * 8 * 1280 + half * 5120))
                for rt in range(2):
                    asm("buffer_load_dwordx2 %s, %s, %s, %s offen offset:%d%s" % (v(OF + ((16 + a_) * 2 + rt) * 4 + 2 * half, 2), v(vOR), s(SWS, 4), s(sOM), rt * 128, LSC3))
    def cum(k): return 2 * (k + 1) if k < 16 else 32 + 4 * (k - 15)
    PD = opts.get("pd", 5)
    for k in range(PD): oloads(k)
    def wreads(step, dst):
        ops = []
        for ct in range(5):
            for a_ in range(2):
                if step < 16:
                    base = vWm if step < 8 else vWm2
                    off = (step & 7) * 6400 + a_ * 1280 + ct * 32
                else:
                    ap = step - 16
                    base = vWr if ap < 2 else vWr2
                    off = (ap & 1) * 25600 + a_ * 12800 + ct * 32
                ops.append(lambda ct=ct, a_=a_, base=base, off=off: asm("ds_read_b64_tr_b16 %s, %s offset:%d" % (v(dst + 4 * ct + 2 * a_, 2), v(base), off)))
        return ops
    if opts.get("p3st"): st(1)
    for f in wreads(0, WF[0]): f()
    for sidx in range(20):
        cur = WF[sidx & 1]
        nxt_ops = wreads(sidx + 1, WF[(sidx + 1) & 1]) if sidx < 19 else []
        vm = cum(min(sidx + PD - 1, 19)) - cum(sidx)
        asm("s_waitcnt vmcnt(%d) lgkmcnt(0)" % vm)
        if opts.get("p3st") and sidx in (0, 8, 16): st({0: 2, 8: 3, 16: 4}[sidx])
        m = 0
        for ct in range(5):
            for rt in range(2):
                acc = v(ACC3 + (rt * 5 + ct) * 4, 4)
                c = "0" if sidx == 0 else acc
                asm("v_mfma_f32_16x16x32_bf16 %s, %s, %s, %s" % (acc, v(cur + 4 * ct, 4), v(OF + (sidx * 2 + rt) * 4, 4), c))
                if m < 5 and nxt_ops:
                    nxt_ops[2 * m](); nxt_ops[2 * m + 1]()
                if m == 5 and sidx + PD < 20: oloads(sidx + PD)
                m += 1
    st(11)
    if TAIL2: lds_wait(W_CNT3A, p3T, p3U, atleast=8)
    asm("v_and_b32 %s, 15, %s" % (v(p3U), v(p3L)))
    asm("v_mul_u32_u24 %s, 160, %s" % (v(p3U), v(p3U)))
    asm("v_lshrrev_b32 %s, 4, %s" % (v(p3T), v(p3L)))
    asm("v_lshl_add_u32 %s, %s, 3, %s" % (v(p3U), v(p3T), v(p3U)))
    asm("s_mul_i32 %s, %s, 5120" % (s(sT0), s(sW)))
    asm("s_add_u32 %s, %s, %d" % (s(sT0), s(sT0), L_OUT))
    asm("v_add_u32 %s, %s, %s" % (v(p3U), s(sT0), v(p3U)))
    asm("v_lshlrev_b32 %s, 4, %s" % (v(p3X), v(p3L)))
    asm("v_add_u32 %s, %s, %s" % (v(p3X), s(sT0), v(p3X)))
    asm("s_nop 3")
    for rt in range(2):
        for ct in range(5):
            b = ACC3 + (rt * 5 + ct) * 4
            t = OF + (rt * 5 + ct) * 2
            asm("v_cvt_pk_bf16_f32 %s, %s, %s" % (v(t), v(b), v(b + 1)))
            asm("v_cvt_pk_bf16_f32 %s, %s, %s" % (v(t + 1), v(b + 2), v(b + 3)))
            asm("ds_write_b64 %s, %s offset:%d" % (v(p3U), v(t, 2), rt * 2560 + ct * 32))
    asm("s_movk_i32 %s, 6554" % s(sT2))
    asm("s_movk_i32 %s, 2560" % s(sT3))
    for b in range(5):
        asm("v_add_u32 %s, %d, %s" % (v(p3T), 64 * b, v(p3L)))
        asm("v_mul_lo_u32 %s, %s, %s" % (v(vWm), v(p3T), s(sT2)))
        asm("v_lshrrev_b32 %s, 16, %s" % (v(vWm), v(vWm)))
        asm("v_mul_u32_u24 %s, 10, %s" % (v(vWr), v(vWm)))
        asm("v_sub_u32 %s, %s, %s" % (v(p3T), v(p3T), v(vWr)))
        asm("v_lshlrev_b32 %s, 4, %s" % (v(p3T), v(p3T)))
        asm("v_mad_u32_u24 %s, %s, %s, %s" % (v(vDW3 + b), v(vWm), s(sT3), v(p3T)))
    asm("s_mul_i32 %s, %s, %d" % (s(sT0), s(sTB3), 32 * 2560))
    asm("s_mul_i32 %s, %s, 1280" % (s(sT1), s(sBR3)))
    asm("s_add_u32 %s, %s, %s" % (s(sT0), s(sT0), s(sT1)))
    asm("s_mul_i32 %s, %s, 160" % (s(sT1), s(sCB3)))
    asm("s_add_u32 %s, %s, %s" % (s(sT0), s(sT0), s(sT1)))
    asm("s_waitcnt lgkmcnt(0)")
    for b in range(5):
        asm("ds_read_b128 %s, %s offset:%d" % (v(32 + 4 * b, 4), v(p3X), b * 1024))
    for b in range(5):
        asm("s_waitcnt lgkmcnt(%d)" % (4 - b))
        asm("buffer_store_dwordx4 %s, %s, %s, %s offen%s" % (v(32 + 4 * b, 4), v(vDW3 + b), s(SOUT, 4), s(sT0), {0: "", 1: " sc1", 2: " nt", 3: " sc0 sc1"}[opts.get("outsc", 0)]))
    asm(";PADEND")
    asm.label("%s_fin" % N)
    if stamp:
        asm("s_waitcnt vmcnt(0)")
        st(12)
        asm("s_waitcnt lgkmcnt(0)")
        asm("s_load_dwordx2 s[4:5], s[0:1], 64")
        asm("s_waitcnt lgkmcnt(0)")
        asm("s_add_u32 s4, s4, %d" % (R_STAMP + (opts.get("wsoff", 0) << 20)))
        asm("s_addc_u32 s5, s5, 0")
        srd(asm, SA_, "s4", "s5", 1 << 20)
        asm("s_lshl_b32 %s, s2, 3" % s(sT0))
        asm("s_add_u32 %s, %s, %s" % (s(sT0), s(sT0), s(sW)))
        asm("s_lshl_b32 %s, %s, 7" % (s(sT0), s(sT0)))
        asm("v_mov_b32 v1, %s" % s(sT0))
        for i in range(13):
            asm("v_mov_b32 v2, %s" % s(STB + 2 * i))
            asm("v_mov_b32 v3, %s" % s(STB + 2 * i + 1))
            asm("buffer_store_dwordx2 v[2:3], v1, %s, 0 offen offset:%d" % (s(SA_, 4), 8 * i))
            asm("s_nop 1")
        asm("s_getreg_b32 s4, hwreg(HW_REG_HW_ID)")
        asm("v_mov_b32 v2, %s" % s(sXCC))
        asm("v_mov_b32 v3, s4")
        asm("buffer_store_dwordx2 v[2:3], v1, %s, 0 offen offset:%d" % (s(SA_, 4), 8 * 13))
    asm.label("%s_end" % N)
    asm("s_endpgm")
    return dict(name=N, vgpr=256, sgpr=100, grid=256, block=512, lds=LDS_BYTES)
HEADER = open("concat_heads__linear_attn_block__sliding_block__prompt.s.ref").read().split("; Override")[0]
def insert_pads(lines, every, nseg, N):
    b = lines.index(";PADBEGIN"); e = lines.index(";PADEND")
    pos = []; cnt = every; partial = False
    for k in range(b + 1, e):
        ln = lines[k].strip()
        if not ln or ln.endswith(":") or ln.startswith(";") or ln.startswith("."): continue
        if ln.startswith("s_mov_b64 exec") or ln.startswith("s_mov_b32 exec_"):
            partial = not ln.endswith("exec, -1")
            cnt += 1
            continue
        if cnt >= every and not partial:
            pos.append(k); cnt = 0
        cnt += 1
    n = len(pos); per = (n + nseg - 1) // nseg
    out = list(lines[:pos[0]])
    for i_, k in enumerate(pos):
        seg, j = divmod(i_, per)
        name = "%s_padseg%d" % (N, seg) if j == 0 else "%s_pad%d" % (N, i_)
        last = (j == per - 1) or (i_ == n - 1)
        nxt = "%s_walkret" % N if last else "%s_pad%d" % (N, i_ + 1)
        out.append(name + ":")
        out.append("s_cbranch_execz %s" % nxt)
        out += lines[k:(pos[i_ + 1] if i_ + 1 < n else len(lines))]
    nsegs = (n + per - 1) // per
    assert nsegs == nseg, (n, per, nsegs)
    return out, n
def build(stamp=False, opts=None):
    body = A()
    i = gen(body, stamp=stamp, opts=opts)
    if opts and opts.get("pad", 0):
        body.L, npads = insert_pads(body.L, opts["pad"], 8, i["name"])
        print("pads:", npads)
    else:
        body.L = [l for l in body.L if l not in (";PADBEGIN", ";PADEND")]
    if opts and opts.get("hfirst", 0):
        N = i["name"]; L = body.L
        a = L.index("%s_p1h:" % N); b = L.index("%s_p2h:" % N)
        blk = L[a:b]; rest = L[:a] + L[b:]
        k = rest.index("s_cbranch_scc1 %s_p1h" % N)
        rest[k] = "s_cbranch_scc0 %s_p1c" % N
        body.L = rest[:k + 1] + blk + ["s_branch %s_p2h" % N, "%s_p1c:" % N] + rest[k + 1:]
    out = HEADER
    out += "; @launch grid=(%d,1,1) block=(%d,1,1) lds=%d\n" % (i["grid"], i["block"], i["lds"])
    out += '.amdgcn_target "amdgcn-amd-amdhsa--gfx950"\n.text\n'
    out += body.text()
    d = A()
    d('.section .rodata,"a"')
    kernel_desc(d, i["name"], i["vgpr"], i["sgpr"])
    out += d.text()
    return out
if __name__ == "__main__":
    import sys
    opts = {}
    for a_ in sys.argv[3:]:
        k, val = a_.split("="); opts[k] = int(val)
    open(sys.argv[1], "w").write(build(stamp=(len(sys.argv) > 2 and sys.argv[2] == "stamp"), opts=opts))
```
